```python
import torch

def _softmax(x, axis=-1):
    return torch.softmax(x, dim=axis)
def _gelu(x):
    return torch.nn.functional.gelu(x, approximate="tanh")
def _silu(x):
    return torch.nn.functional.silu(x)
def _sigmoid(x):
    return torch.sigmoid(x)
def _layernorm(x, axis=-1, eps=1e-5):
    m = x.mean(dim=axis, keepdim=True)
    v = x.var(dim=axis, keepdim=True, unbiased=False)
    return (x - m) / torch.sqrt(v + eps)
def _scatter_add(tgt, idx, src, axis=0):
    return tgt.clone().index_add_(axis, idx, src)
def _segment_sum(src, seg, n):
    out = torch.zeros((n,) + src.shape[1:], dtype=src.dtype)
    return out.index_add_(0, seg, src)
def _pad(x, pw):
    flat = tuple(v for pair in reversed(pw) for v in pair)
    return torch.nn.functional.pad(x, flat)

kernel_name = 'concat_heads__softmax_full_mha__ssm_conv_s5__prompt'

def setup_inputs():

    _w = (lambda a: (lambda t: t.to(torch.bfloat16) if t.is_floating_point() else t)(torch.as_tensor(a)))
    def _A_setup():
        B, S, D = 1, 2048, 576
        return {
            "x": _w((lambda *s: torch.randn(*s, dtype=torch.bfloat16) * 0.2)(B, S, D)),
            "wqkv": _w((lambda *s: torch.randn(*s, dtype=torch.bfloat16) * 0.2)(D, 3 * D)),
            "wo": _w((lambda *s: torch.randn(*s, dtype=torch.bfloat16) * 0.05)(D, D)),
        }
    _A_in = _A_setup()

    def _B_setup():
        B, S, D = 1, 2048, 576
        P = D
        Lambda_re = -0.5 * (lambda _x: torch.exp(torch.as_tensor(_x)))((lambda *s: torch.randn(*s, dtype=torch.bfloat16) * 0.8)(P))
        Lambda_im = (lambda *s: torch.randn(*s, dtype=torch.bfloat16) * 0.8)(P) * 1.0
        B_re = (lambda *s: torch.randn(*s, dtype=torch.bfloat16) * 0.8)(P, D) * (D ** -0.5)
        B_im = (lambda *s: torch.randn(*s, dtype=torch.bfloat16) * 0.8)(P, D) * (D ** -0.5)
        C_re = (lambda *s: torch.randn(*s, dtype=torch.bfloat16) * 0.8)(D, P) * (P ** -0.5)
        C_im = (lambda *s: torch.randn(*s, dtype=torch.bfloat16) * 0.8)(D, P) * (P ** -0.5)
        log_dt = (lambda *s: torch.randn(*s, dtype=torch.bfloat16) * 0.8)(P) * 0.3 - 2.0
        Dskip = (lambda *s: torch.randn(*s, dtype=torch.bfloat16) * 0.8)(D)
        return {
            "x": _w((lambda *s: torch.randn(*s, dtype=torch.bfloat16) * 0.05)(B, S, D)),
            "Lambda_re": _w(Lambda_re),
            "Lambda_im": _w(Lambda_im),
            "B_re": _w(B_re),
            "B_im": _w(B_im),
            "C_re": _w(C_re),
            "C_im": _w(C_im),
            "log_dt": _w(log_dt),
            "Dskip": _w(Dskip),
        }
    _B_in = _B_setup()

    return {
        "A_x": _A_in["x"],
        "A_wqkv": _A_in["wqkv"],
        "A_wo": _A_in["wo"],
        "B_x": _B_in["x"],
        "B_Lambda_re": _B_in["Lambda_re"],
        "B_Lambda_im": _B_in["Lambda_im"],
        "B_B_re": _B_in["B_re"],
        "B_B_im": _B_in["B_im"],
        "B_C_re": _B_in["C_re"],
        "B_C_im": _B_in["C_im"],
        "B_log_dt": _B_in["log_dt"],
        "B_Dskip": _B_in["Dskip"],
    }

def reference(A_x, A_wqkv, A_wo, B_x, B_Lambda_re, B_Lambda_im, B_B_re, B_B_im, B_C_re, B_C_im, B_log_dt, B_Dskip):
    def _A_ref(x, wqkv, wo):
        B, S, D = x.shape
        H = 32; Dh = D // H
        qkv = (lambda x, *d: x.permute(*d))((x @ wqkv).reshape(B, S, 3, H, Dh), 2, 0, 3, 1, 4)
        q, k, v = qkv[0], qkv[1], qkv[2]
        scale = Dh ** -0.5
        scores = torch.einsum("bhqd,bhkd->bhqk", q, k) * scale
        p = _softmax(scores, axis=-1)
        o = torch.einsum("bhqk,bhkd->bhqd", p, v)
        return (lambda x, *d: x.permute(*d))(o, 0, 2, 1, 3).reshape(B, S, D) @ wo

    def _B_ref(x, Lambda_re, Lambda_im, B_re, B_im, C_re, C_im, log_dt, Dskip):
        Bsz, L, H = x.shape
        Lam = Lambda_re + 1j * Lambda_im
        Bmat = B_re + 1j * B_im
        Cmat = C_re + 1j * C_im
        dt = torch.exp(log_dt)
        Lam_bar = torch.exp(dt * Lam)
        B_bar = ((Lam_bar - 1.0) / Lam)[:, None] * Bmat
        Bu = torch.einsum("bld,pd->blp", x + 0j, B_bar)
        h = torch.zeros_like(Bu[:, 0, :])
        hs = []
        for t in range(L):
            h = Lam_bar[None, :] * h + Bu[:, t, :]
            hs.append(h)
        hseq = torch.stack(hs, 1)
        y = 2.0 * torch.einsum("blp,dp->bld", hseq, Cmat).real + x * Dskip[None, None, :]
        return y

    a = _A_ref(A_x, A_wqkv, A_wo)
    b = _B_ref(B_x, B_Lambda_re, B_Lambda_im, B_B_re, B_B_im, B_C_re, B_C_im, B_log_dt, B_Dskip)
    return torch.concatenate([a, b], axis=-1)
```

```python
import re

class Asm:
    def __init__(self):
        self.lines = []
        self.uid = 0
    def __call__(self, s):
        for l in s.split("\n"):
            l = l.strip()
            if l:
                self.lines.append("  " + l)
    def label(self, n):
        self.lines.append(n + ":")
    def raw(self, s):
        self.lines.append(s)
    def comment(self, s):
        self.lines.append("  ; " + s)
    def newlabel(self, p="L"):
        self.uid += 1
        return f"{p}_{self.uid}"
    def text(self):
        return "\n".join(self.lines) + "\n"

def vr(a, n=1):
    return f"v{a}" if n == 1 else f"v[{a}:{a+n-1}]"
def sr(a, n=1):
    return f"s{a}" if n == 1 else f"s[{a}:{a+n-1}]"

_reg = re.compile(r"^(-|\|)?(abs\()?([vsa])(\d+|\[(\d+):(\d+)\])\)?\|?$")
def parse_operand(o):
    o = o.strip()
    if o in ("vcc",): return {("s", 106), ("s", 107)}
    if o == "vcc_lo": return {("s", 106)}
    if o == "vcc_hi": return {("s", 107)}
    if o == "exec": return {("s", 126), ("s", 127)}
    if o == "m0": return {("s", 124)}
    m = _reg.match(o)
    if not m: return set()
    k = m.group(3)
    if m.group(5) is not None:
        return {(k, i) for i in range(int(m.group(5)), int(m.group(6)) + 1)}
    return {(k, int(m.group(4)))}

TRANS = ("v_exp_f32", "v_log_f32", "v_rcp_f32", "v_rsq_f32", "v_sqrt_f32", "v_sin_f32", "v_cos_f32", "v_rcp_iflag_f32", "v_exp_f16")
def mfma_passes(op):
    if "32x32x4_2b" in op: return 16
    if "32x32x" in op: return 8
    if "16x16x" in op: return 4
    raise ValueError(op)

class Ins:
    def __init__(self, text, idx):
        self.text = text; self.idx = idx
        t = text.split(";")[0].strip()
        parts = t.split(None, 1)
        self.op = parts[0]
        rest = parts[1] if len(parts) > 1 else ""
        ops = []; cur = ""; depth = 0
        for ch in rest:
            if ch == "[": depth += 1
            if ch == "]": depth -= 1
            if ch == "," and depth == 0:
                ops.append(cur.strip()); cur = ""
            else: cur += ch
        if cur.strip(): ops.append(cur.strip())
        self.mods = ""
        if ops:
            lp = ops[-1].split(None, 1)
            ops[-1] = lp[0]
            if len(lp) > 1: self.mods = lp[1]
        self.ops = ops
        op = self.op
        self.is_mfma = op.startswith("v_mfma") or op.startswith("v_smfmac")
        self.is_valu = op.startswith("v_") and not self.is_mfma
        self.is_trans = any(op.startswith(x) for x in TRANS)
        self.is_ds = op.startswith("ds_")
        self.is_vmem = op.startswith("buffer_") or op.startswith("global_")
        self.is_salu = op.startswith("s_")
        self.wr = set(); self.rd = set(); self.srcC = set(); self.srcAB = set(); self.store_data=set()
        P = [parse_operand(o) for o in ops]
        if self.is_mfma:
            self.passes = mfma_passes(op)
            self.wr = P[0]
            if op.startswith("v_smfmac"):
                self.srcC = P[0]; self.srcAB = P[1] | P[2] | P[3]
            else:
                self.srcC = P[3]; self.srcAB = P[1] | P[2]
            self.rd = self.srcC | self.srcAB
        elif self.is_valu:
            if op.startswith("v_cmp"):
                self.wr = P[0]; self.rd = set().union(*P[1:])
            elif op.startswith("v_permlane") and "swap" in op:
                self.wr = P[0] | P[1]; self.rd = P[0] | P[1]
            elif op.startswith(("v_add_co", "v_sub_co", "v_addc_co", "v_subb_co", "v_mad_u64_u32")):
                self.wr = P[0] | P[1]; self.rd = set().union(*P[2:])
            else:
                self.wr = P[0]; self.rd = set().union(*P[1:]) if len(P) > 1 else set()
                if op.startswith(("v_fmac", "v_pk_fmac", "v_writelane")) or "UNUSED_PRESERVE" in self.mods:
                    self.rd |= P[0]
        elif self.is_ds:
            if op.startswith(("ds_read", "ds_bpermute", "ds_permute", "ds_swizzle")) or "_rtn" in op:
                self.wr = P[0]; self.rd = set().union(*P[1:])
            else:
                self.rd = set().union(*P)
        elif self.is_vmem:
            lds = " lds" in (" " + self.mods) or "load_lds" in op
            if "load" in op and not lds:
                self.wr = P[0]; self.rd = set().union(*P[1:])
            elif "atomic" in op and "sc0" in self.mods and op.startswith("global"):
                self.wr = P[0]; self.rd = set().union(*P[1:])
            else:
                self.rd = set().union(*P)
                if "store" in op and ("x4" in op or "x3" in op):
                    self.store_data = P[0] if op.startswith("buffer") else P[1]
            if lds: self.rd |= {("s", 124)}
            self.is_ldsdma = lds
        elif self.is_salu:
            if op.startswith(("s_cmp", "s_cbranch", "s_branch", "s_waitcnt", "s_nop", "s_barrier", "s_endpgm", "s_setprio", "s_sleep", "s_bitcmp")):
                self.rd = set().union(*P) if P else set()
            else:
                self.wr = P[0] if P else set(); self.rd = set().union(*P[1:]) if len(P) > 1 else set()
        self.states = 1
        if op == "s_nop": self.states = int(ops[0], 0) + 1

def required(p, c):
    need = 0; why = ""
    def up(n, w):
        nonlocal need, why
        if n > need: need = n; why = w
    pv = {r for r in p.wr if r[0] in "va"}; ps = {r for r in p.wr if r[0] == "s"}
    if p.is_valu:
        if c.is_mfma and pv & c.rd: up(2, "VALU->MFMA read")
        if p.is_trans and c.is_valu and not c.is_trans and pv & c.rd: up(1, "trans->VALU")
        if c.op.startswith(("v_readfirstlane", "v_readlane")) and pv & c.rd: up(1, "VALU->readlane")
        if c.op.startswith("v_permlane") and pv & c.rd: up(2, "VALU->permlane")
        if c.is_valu and ("dpp" in c.op or "row_" in c.mods or "quad_perm" in c.mods) and pv & c.rd: up(2, "VALU->DPP")
        if ps:
            if c.is_valu and ps & c.rd: up(2, "VALU sgpr->VALU const")
            if c.op.startswith(("v_readlane", "v_writelane")) and ps & c.rd: up(4, "VALU sgpr->lanesel")
            if c.is_vmem and ps & c.rd: up(5, "VALU sgpr->VMEM")
            if c.op.startswith("v_cndmask") and len(c.ops) == 3 and ("s",106) in ps: up(2, "vcc->cndmask")
            if c.op.startswith("v_div_fmas") and ("s",106) in ps: up(4, "vcc->div_fmas")
        if ("sdwa" in p.op or ("op_sel" in p.mods and not p.op.startswith("v_pk_"))) and c.is_valu and pv & (c.rd | c.wr): up(1, "opsel/sdwa->VALU")
    if p.is_mfma:
        n = p.passes
        if c.is_mfma:
            if pv & c.srcAB: up(n + 4, "MFMA D->MFMA A/B")
            if pv & c.srcC:
                if pv == c.srcC and c.passes == n: up(0, "")
                else: up(n + 2, "MFMA D->MFMA C overlap")
            elif pv & c.wr: up(n + 2, "MFMA D->MFMA D WAW(conservative)")
        elif c.is_valu or c.is_ds or c.is_vmem:
            if pv & (c.rd | c.wr): up(n + 4, "MFMA D->VALU/mem")
        if c.is_valu and p.srcC & c.wr: up(n - 1, "MFMA C read->VALU write")
    if p.is_salu and ("s", 124) in p.wr and c.is_vmem and getattr(c, "is_ldsdma", False): up(1, "m0->ldsdma")
    if p.store_data and (c.is_valu or c.is_ds or c.is_vmem or c.is_mfma) and p.store_data & c.wr: up(2, "wide store WAR")
    return need, why

def check_hazards(text, verbose=True):
    ins = []; labels = {}
    for l in text.split("\n"):
        s = l.split(";")[0].strip()
        if not s or s.startswith("."): continue
        if s.endswith(":"):
            labels[s[:-1]] = len(ins); continue
        if not re.match(r"^(v_|s_|ds_|buffer_|global_)", s): continue
        ins.append(Ins(s, len(ins)))
    def succ(i):
        I = ins[i]
        if I.op == "s_endpgm": return []
        if I.op == "s_branch": return [labels[I.ops[0]]]
        r = [i + 1] if i + 1 < len(ins) else []
        if I.op.startswith("s_cbranch"): r.append(labels[I.ops[0]])
        return r
    errs = []
    MAXD = 21
    for i, p in enumerate(ins):
        if not (p.is_valu or p.is_mfma or p.store_data or (p.is_salu and ("s",124) in p.wr)): continue
        lim = MAXD if p.is_mfma else 5
        seen = {}
        stack = [(j, 0) for j in succ(i)]
        while stack:
            j, d = stack.pop()
            if j >= len(ins) or d >= lim: continue
            if seen.get(j, 99) <= d: continue
            seen[j] = d
            c = ins[j]
            need, why = required(p, c)
            if need > d:
                errs.append(f"HAZARD {why}: need {need} have {d}\n    P[{i}]: {p.text}\n    C[{j}]: {c.text}")
            for k in succ(j): stack.append((k, d + c.states))
    if verbose:
        for e in errs[:40]: print(e)
        print(f"hazard check: {len(ins)} instrs, {len(errs)} problems")
    return errs

def kernel_header(name):
    return f""".text
.globl {name}
.p2align 8
.type {name},@function
{name}:"""

def kernel_desc(name, nv, ns=96, acc=None):
    acc = acc if acc is not None else (nv + 3) // 4 * 4
    return f""".section .rodata,"a"
.p2align 6
.amdhsa_kernel {name}
  .amdhsa_next_free_vgpr {nv}
  .amdhsa_next_free_sgpr {ns}
  .amdhsa_accum_offset {acc}
  .amdhsa_group_segment_fixed_size 0
  .amdhsa_kernarg_size 120
  .amdhsa_user_sgpr_count 2
  .amdhsa_user_sgpr_kernarg_segment_ptr 1
  .amdhsa_system_sgpr_workgroup_id_x 1
.end_amdhsa_kernel"""
```

```python
from asmlib import *
from layout import *
import math, struct
NSLOT = 5
K1_LDS = NSLOT * 32768
QSCALE = struct.unpack("<I", struct.pack("<f", 18 ** -0.5 * math.log2(math.e)))[0]
OOB = 0x7ff00000

def stamp_code(a, idx):
    a(f"s_memtime s[{60+2*idx}:{61+2*idx}]")

def gen_k1(name="qkv_kernel", stamp=False, st_flags="", DEPTH=2, spread=True):
    a = Asm()
    a.raw(kernel_header(name))
    VX, VW = 4, 8
    AX, AW = 12, 20
    EA = 24
    FX, FW = 40, 56
    ACC = 72
    T = 136
    NV = 152
    a(f"""
    s_cmp_ge_u32 s2, 256
    s_cbranch_scc1 k1_end
    s_load_dwordx4 s[4:7], s[0:1], 0
    s_load_dwordx2 s[16:17], s[0:1], 112
    """)
    if stamp: a("s_memtime s[60:61]\ns_memrealtime s[80:81]")
    a(f"""
    v_lshrrev_b32 v1, 6, v0
    v_and_b32 v2, 63, v0
    v_readfirstlane_b32 s3, v1            ; wave
    s_lshr_b32 s28, s2, 3                 ; idx
    s_and_b32 s29, s2, 3
    s_lshl_b32 s29, s29, 2
    s_and_b32 s30, s28, 3
    s_add_u32 s29, s29, s30               ; mb
    s_bfe_u32 s30, s2, 0x10002            ; ng
    s_mul_i32 s30, s30, 7
    s_lshr_b32 s31, s28, 2
    s_add_u32 s30, s30, s31               ; nb
    s_mov_b32 s10, {2048*1152}
    s_mov_b32 s11, 0x20000
    s_mov_b32 s14, {576*3456}
    s_mov_b32 s15, 0x20000
    s_mov_b32 s22, {WS_BYTES}
    s_mov_b32 s23, 0x20000
    v_lshrrev_b32 v{T}, 3, v2             ; r = lane>>3
    v_and_b32 v{T+1}, 7, v2               ; slot
    v_lshrrev_b32 v{T+2}, 1, v{T}         ; r>>1
    v_xor_b32 v{T+1}, v{T+1}, v{T+2}
    v_mul_u32_u24 v{T}, 1152, v{T}
    v_lshl_add_u32 v{VX}, v{T+1}, 4, v{T}
    v_xor_b32 v{T+1}, 4, v{T+1}
    v_lshl_add_u32 v{VX+1}, v{T+1}, 4, v{T}
    v_add_u32 v{VX+2}, {2*(9216-1024)}, v{VX}
    v_add_u32 v{VX+1}, {9216-1024}, v{VX+1}
    v_add_u32 v{VX+3}, {2*(9216-1024)}, v{VX+1}
    v_lshrrev_b32 v{T}, 4, v2             ; r = lane>>4
    v_and_b32 v{T+1}, 15, v2
    v_lshlrev_b32 v{T+2}, 2, v{T}
    v_xor_b32 v{T+1}, v{T+1}, v{T+2}
    v_mul_u32_u24 v{T}, 3456, v{T}
    v_lshl_add_u32 v{VW}, v{T+1}, 4, v{T}
    v_add_u32 v{VW+1}, {4*3456-1024}, v{VW}
    v_add_u32 v{VW+2}, {2*(4*3456-1024)}, v{VW}
    v_add_u32 v{VW+3}, {3*(4*3456-1024)}, v{VW}
    s_lshl_b32 s32, s29, 7
    s_lshl_b32 s33, s3, 5
    s_add_u32 s32, s32, s33
    s_mul_i32 s32, s32, 1152
    s_mul_i32 s33, s3, {16*3456}
    s_lshl_b32 s34, s30, 8
    s_add_u32 s33, s33, s34
    s_lshl_b32 s34, s3, 12
    s_waitcnt lgkmcnt(0)
    s_mov_b32 s8, s4
    s_and_b32 s9, s5, 0xffff
    s_mov_b32 s12, s6
    s_and_b32 s13, s7, 0xffff
    s_mov_b32 s20, s16
    s_and_b32 s21, s17, 0xffff
    s_cmp_ge_u32 s28, 28
    s_cbranch_scc1 k1_spare
    """)
    XR, WR = 0, NSLOT * 16384
    def dma(stage, parts=(0, 1, 2, 3)):
        slot = stage % NSLOT
        for p in parts:
            if p == 0: a(f"s_add_u32 m0, s34, {XR + slot*16384}\ns_nop 0")
            if p == 2: a(f"s_add_u32 m0, s34, {WR + slot*16384}\ns_add_u32 s32, s32, 128")
            for n in ((0, 1) if p % 2 == 0 else (2, 3)):
                if p < 2: a(f"buffer_load_dwordx4 v{VX+n}, s[8:11], s32 offen offset:{n*1024} lds")
                else: a(f"buffer_load_dwordx4 v{VW+n}, s[12:15], s33 offen offset:{n*1024} lds")
            if p == 3: a(f"s_add_u32 s33, s33, {64*3456}")
    PRE = min(2, DEPTH)
    for s in range(PRE): dma(s)
    a(f"""
    s_lshr_b32 s35, s3, 1                 ; wm
    s_and_b32 s36, s3, 1                  ; wn
    v_and_b32 v{T}, 31, v2                ; row
    v_lshrrev_b32 v{T+1}, 5, v2           ; h
    s_cmp_lt_u32 s30, 9
    s_cbranch_scc1 k1_noswap
    v_and_b32 v{T+2}, 4, v{T}
    v_and_b32 v{T+3}, 8, v{T}
    v_and_b32 v{T}, 0x13, v{T}
    v_lshl_add_u32 v{T}, v{T+2}, 1, v{T}
    v_lshrrev_b32 v{T+3}, 1, v{T+3}
    v_add_u32 v{T}, v{T}, v{T+3}
    """)
    a.label("k1_noswap")
    a(f"""
    v_bfe_u32 v{T+2}, v{T}, 1, 3          ; (row>>1)&7
    v_xor_b32 v{T+2}, v{T+2}, v{T+1}      ; ^h
    s_lshl_b32 s37, s35, 13
    v_lshl_add_u32 v{T+3}, v{T}, 7, s37
    """)
    for s in range(4):
        a(f"v_xor_b32 v{T+4}, {2*s}, v{T+2}\nv_lshl_add_u32 v{AX+s}, v{T+4}, 4, v{T+3}\nv_add_u32 v{AX+4+s}, {3*16384}, v{AX+s}")
    a(f"""
    v_bfe_u32 v{T+2}, v2, 2, 2            ; r
    v_lshl_add_u32 v{T+3}, v{T+1}, 3, v{T+2}   ; k = 8h + r
    v_lshlrev_b32 v{T+3}, 8, v{T+3}
    v_bfe_u32 v{T+4}, v2, 4, 1
    v_lshl_add_u32 v{T+3}, v{T+4}, 5, v{T+3}
    v_and_b32 v{T+4}, 3, v2
    v_lshl_add_u32 v{T+3}, v{T+4}, 3, v{T+3}
    v_add_u32 v{T+3}, {WR}, v{T+3}
    s_lshl_b32 s37, s36, 1
    """)
    for nt in range(2):
        a(f"v_xor_b32 v{T+4}, s37, v{T+2}")
        if nt: a(f"v_xor_b32 v{T+4}, 1, v{T+4}")
        a(f"v_lshl_add_u32 v{AW+nt}, v{T+4}, 6, v{T+3}\nv_add_u32 v{AW+2+nt}, {3*16384}, v{AW+nt}")
    for s in range(PRE, DEPTH): dma(s)
    a("s_cmp_ge_u32 s30, 9\ns_cbranch_scc1 k1_vtype")

    def mainloop(vtype):
        def reads(stage, s, buf):
            slot = stage % NSLOT
            st, off = (0, slot * 16384) if slot < 3 else (1, (slot - 3) * 16384)
            for mt in range(2):
                a(f"ds_read_b128 v[{FX+buf*8+mt*4}:{FX+buf*8+mt*4+3}], v{AX+st*4+s} offset:{off + mt*4096}")
            for nt in range(2):
                for hf in range(2):
                    r = FW + buf * 8 + nt * 4 + hf * 2
                    a(f"ds_read_b64_tr_b16 v[{r}:{r+1}], v{AW+st*2+nt} offset:{off + s*4096 + hf*1024}")
        def mfmas(buf, first):
            for mt in range(2):
                for nt in range(2):
                    d = ACC + (mt * 2 + nt) * 16
                    x = f"v[{FX+buf*8+mt*4}:{FX+buf*8+mt*4+3}]"; w = f"v[{FW+buf*8+nt*4}:{FW+buf*8+nt*4+3}]"
                    A, B = (x, w) if vtype else (w, x)
                    c = "0" if first else f"v[{d}:{d+15}]"
                    a(f"v_mfma_f32_32x32x16_bf16 v[{d}:{d+15}], {A}, {B}, {c}")
        for stage in range(9):
            issued = min(9, stage + DEPTH)
            a(f"s_waitcnt vmcnt({8*(issued - stage - 1)})\ns_barrier")
            if stamp and stage == 0: stamp_code(a, 1)
            reads(stage, 0, 0)
            if stage + DEPTH < 9 and not spread: dma(stage + DEPTH)
            for s in range(4):
                if s < 3:
                    reads(stage, s + 1, (s + 1) % 2)
                    a("s_waitcnt lgkmcnt(6)")
                else:
                    a("s_waitcnt lgkmcnt(0)")
                mfmas(s % 2, stage == 0 and s == 0)
                if stage + DEPTH < 9 and spread: dma(stage + DEPTH, (s,))
        if stamp: stamp_code(a, 2)

    a(f"""
    s_lshl_b32 s37, s30, 5
    s_lshl_b32 s38, s36, 4
    s_add_u32 s37, s37, s38
    v_and_b32 v{T}, 31, v2
    v_lshlrev_b32 v{T}, 4, v{T}           ; i*16
    s_mul_i32 s38, s29, {QUAD}
    s_lshl_b32 s39, s35, 11
    s_add_u32 s39, s39, s38
    s_lshl_b32 s40, s35, 3
    s_add_u32 s40, s40, s38
    s_add_u32 s40, s40, 4096
    s_mov_b32 s41, {HEADB}
    v_mov_b32 v{T+8}, {OOB}
    """)
    for nt in range(2):
        a(f"""
        s_add_u32 s42, s37, {nt*8}
        s_cmp_ge_u32 s42, 144
        s_cselect_b32 s43, 144, 0
        s_cselect_b32 s{44+nt}, {KV}, {QI}
        s_cselect_b32 s{46+nt}, 1.0, {QSCALE}
        s_sub_u32 s42, s42, s43
        """)
        for g in range(4):
            e = nt * 4 + g
            a(f"""
            v_add_u32 v{T+2}, s42, v{T+1}
            v_add_u32 v{T+2}, {2*g}, v{T+2}          ; cidx
            v_mul_u32_u24 v{T+3}, 57, v{T+2}
            v_lshrrev_b32 v{T+3}, 9, v{T+3}          ; j
            v_mul_u32_u24 v{T+4}, 9, v{T+3}
            v_sub_u32 v{T+4}, v{T+2}, v{T+4}         ; c
            v_cmp_lt_u32 vcc, 4, v{T+4}
            v_cmp_eq_u32 s[48:49], 4, v{T+4}
            v_lshlrev_b32 v{T+3}, 1, v{T+3}
            v_addc_co_u32 v{T+3}, s[50:51], 0, v{T+3}, vcc     ; hd
            v_subrev_u32 v{T+5}, 5, v{T+4}
            v_cndmask_b32 v{T+4}, v{T+4}, v{T+5}, vcc          ; cc
            v_mul_lo_u32 v{T+3}, v{T+3}, s41
            v_add_u32 v{T+3}, v{T+3}, v{T}
            v_lshrrev_b32 v{T+5}, 1, v{T+4}
            v_and_b32 v{T+4}, 1, v{T+4}
            v_lshl_add_u32 v{T+5}, v{T+5}, 9, v{T+3}
            v_lshl_add_u32 v{T+5}, v{T+4}, 3, v{T+5}
            v_add_u32 v{T+5}, s39, v{T+5}
            v_add_u32 v{T+3}, s40, v{T+3}
            v_cndmask_b32 v{EA+e}, v{T+5}, v{T+8}, s[48:49]
            v_cndmask_b32 v{EA+8+e}, v{T+8}, v{T+3}, s[48:49]
            """)
    mainloop(False)
    a("s_nop 11")
    for nt in range(2):
        for g in range(4):
            e = nt * 4 + g
            for mt in range(2):
                d = ACC + (mt * 2 + nt) * 16 + 4 * g
                for r in range(4): a(f"v_mul_f32 v{d+r}, s{46+nt}, v{d+r}")
                a(f"v_cvt_pk_bf16_f32 v{d}, v{d}, v{d+1}\nv_cvt_pk_bf16_f32 v{d+1}, v{d+2}, v{d+3}")
                a(f"buffer_store_dwordx2 v[{d}:{d+1}], v{EA+e}, s[20:23], s{44+nt} offen offset:{mt*1024} {st_flags}")
            lab = a.newlabel("k1_nl")
            a(f"""
            v_cmp_ne_u32 vcc, v{T+8}, v{EA+8+e}
            s_add_u32 s42, s{44+nt}, s41
            s_cbranch_vccz {lab}
            """)
            for mt in range(2):
                d = ACC + (mt * 2 + nt) * 16 + 4 * g
                a(f"buffer_store_dword v{d}, v{EA+8+e}, s[20:23], s{44+nt} offen offset:{mt*512} {st_flags}")
                a(f"buffer_store_dword v{d+1}, v{EA+8+e}, s[20:23], s42 offen offset:{mt*512} {st_flags}")
            a.label(lab)
    a("s_branch k1_done")

    a.label("k1_vtype")
    a(f"""
    s_sub_u32 s37, s30, 9
    s_lshl_b32 s37, s37, 7
    s_lshl_b32 s38, s36, 6
    s_add_u32 s37, s37, s38
    s_mul_i32 s38, s29, {QUAD}
    s_mul_i32 s39, s35, {8*VROW}
    s_add_u32 s38, s38, s39
    s_add_u32 s38, s38, {KV + 5120}
    s_mov_b32 s41, {HEADB}
    v_and_b32 v{T}, 31, v2
    v_mul_u32_u24 v{T+6}, {VROW}, v{T+1}
    v_mov_b32 v{T+8}, {OOB}
    """)
    for nt in range(2):
        a(f"""
        v_add_u32 v{T+2}, s37, v{T}
        v_add_u32 v{T+2}, {nt*32}, v{T+2}        ; vcol
        v_mul_u32_u24 v{T+3}, 3641, v{T+2}
        v_lshrrev_b32 v{T+3}, 16, v{T+3}
        v_mul_u32_u24 v{T+4}, 18, v{T+3}
        v_sub_u32 v{T+4}, v{T+2}, v{T+4}         ; d
        v_cmp_gt_u32 vcc, 32, v{T+3}
        v_mul_lo_u32 v{T+3}, v{T+3}, s41
        v_lshl_add_u32 v{T+3}, v{T+4}, 4, v{T+3}
        v_add_u32 v{T+3}, v{T+3}, v{T+6}
        v_cndmask_b32 v{EA+nt}, v{T+8}, v{T+3}, vcc
        """)
    mainloop(True)
    a("s_nop 11")
    for mt in range(2):
        for nt in range(2):
            for m in range(2):
                d = ACC + (mt * 2 + nt) * 16 + 8 * m
                for r in range(4): a(f"v_cvt_pk_bf16_f32 v{d+r}, v{d+2*r}, v{d+2*r+1}")
                a(f"buffer_store_dwordx4 v[{d}:{d+3}], v{EA+nt}, s[20:23], s38 offen offset:{(mt*4+m*2)*VROW} {st_flags}")
    a("s_branch k1_done")

    a.label("k1_spare")
    a(f"""
    s_and_b32 s37, s2, 7
    s_lshl_b32 s37, s37, 2
    s_add_u32 s37, s37, s28
    s_sub_u32 s37, s37, 28
    s_mul_i32 s37, s37, {HEADB}
    s_add_u32 s37, s37, {KV}
    v_mov_b32 v8, 0x3f803f80
    v_mov_b32 v9, 0x3f803f80
    v_mov_b32 v10, 0x3f803f80
    v_mov_b32 v11, 0x3f803f80
    v_lshrrev_b32 v4, 4, v0               ; quad
    v_and_b32 v5, 15, v0
    v_mul_u32_u24 v4, {QUAD}, v4
    v_mul_u32_u24 v5, {VROW}, v5
    v_add_u32 v4, v4, v5
    v_add_u32 v4, {5120 + 18*16}, v4
    buffer_store_dwordx4 v[8:11], v4, s[20:23], s37 offen {st_flags}
    v_lshrrev_b32 v4, 7, v0               ; 0..1
    v_and_b32 v5, 127, v0
    v_mul_u32_u24 v4, {QUAD}, v4
    v_lshl_add_u32 v4, v5, 3, v4
    v_add_u32 v4, {4096+4}, v4
    """)
    for i in range(8):
        a(f"buffer_store_dword v8, v4, s[20:23], s37 offen {st_flags}\ns_add_u32 s37, s37, {2*QUAD}")
    a("s_branch k1_end")
    a.label("k1_done")
    if stamp:
        a(f"""
        s_memtime s[66:67]
        s_waitcnt vmcnt(0)
        s_memtime s[68:69]
        s_memrealtime s[82:83]
        s_waitcnt lgkmcnt(0)
        s_sub_u32 s62, s62, s60
        s_sub_u32 s64, s64, s60
        s_sub_u32 s66, s66, s60
        s_sub_u32 s68, s68, s60
        v_mov_b32 v4, s62
        v_mov_b32 v5, s64
        v_mov_b32 v6, s66
        v_mov_b32 v7, s68
        v_mov_b32 v8, s80
        v_mov_b32 v9, s82
        s_lshl_b32 s40, s2, 3
        s_add_u32 s40, s40, s3
        s_lshl_b32 s40, s40, 5
        s_add_u32 s40, s40, 0x8100000
        v_mov_b32 v3, 0
        s_mov_b64 exec, 1
        buffer_store_dwordx4 v[4:7], v3, s[20:23], s40 offen
        buffer_store_dwordx2 v[8:9], v3, s[20:23], s40 offen offset:16
        """)
    a.label("k1_end")
    a("s_endpgm")
    return a.text(), kernel_desc(name, NV, 90)

if __name__ == "__main__":
    body, desc = gen_k1()
    check_hazards(body)
    for v in range(640): assert (v * 3641) >> 16 == v // 18
    for v in range(144): assert (v * 57) >> 9 == v // 9
```

```python
from build import *
from k1 import *; from k2 import *; from k3 import *; from kb import *
out = f"cdna_kernels/{NAME}.s"
compose([gen_k1(), gen_k2(var="oob"), gen_k3(), gen_b1(), gen_b2(), gen_b3()],
    [("qkv_kernel", 256, 256, K1_LDS), ("attn_kernel", 256, 512, K2_LDS), ("proj_kernel", 144, 256, K3_LDS),
     ("b1_kernel", 144, 256, B1_LDS), ("b2_kernel", 144, 256, 0), ("b3_kernel", 144, 256, B3_LDS)], out)
assemble(out)
```

```python
WS_BYTES = 268435456
OUT_BYTES = 2048 * 1152 * 4
QKP = 0x000000
VT  = 0x500000
OW  = 0x800000
HH  = 0xB00000
EE  = 0x1000000
FL  = 0x1100000
F1 = FL
F2 = FL + 1024
F3 = FL + 3072
F4 = FL + 8192
FLBYTES = 16384
STB = 0x8000000
VROW = 304
LDS_K = 0
LDS_V = 81920
LDS_SCR = 160768
LDS_TOTAL = 163840
```

```python
from asmlib import *
from lay2 import *
import math, struct
def f32(x): return "0x%08x" % struct.unpack("<I", struct.pack("<f", x))[0]
QSCALE = f32(18 ** -0.5 * math.log2(math.e))
WT = "sc0 sc1"
SPIN_MAX = 20000
P_AX, P_WQKV, P_WO, P_BX, P_LRE, P_LIM, P_BRE, P_BIM, P_CRE, P_CIM, P_LDT, P_DSK, P_OUT, P_DBG, P_WS = range(64, 94, 2)
S_WAVE, S_XCD, S_IDX, S_MB, S_NB, S_TYPE, S_CHB, S_CHA, S_HALF, S_ROT = 3, 20, 21, 22, 23, 24, 25, 26, 27, 28
BS, BSA = 192, 144
LR, LI, CR, CI, LCR, LCI, PWR, PWI, MUR, MUI = range(BS + 32, BS + 42)
VST = 255

class G:
    def __init__(self, stamp=False, stop=99):
        self.a = Asm(); self.stamp_on = stamp; self.stop = stop
    def stamp(self, k, real=False):
        if not self.stamp_on: return
        op = "s_memrealtime" if real else "s_memtime"
        self.a(f"{op} s[94:95]\ns_waitcnt lgkmcnt(0)\nv_writelane_b32 v{VST}, s94, {k}")
    def srd(self, d, p, n):
        self.a(f"s_mov_b32 s{d}, s{p}\ns_and_b32 s{d+1}, s{p+1}, 0xffff\ns_mov_b32 s{d+2}, {n}\ns_mov_b32 s{d+3}, 0x20000")

    def prologue(self):
        a = self.a
        a(f"""
        s_cmp_ge_u32 s2, 256
        s_cbranch_scc1 L_end
        s_load_dwordx16 s[64:79], s[0:1], 0
        s_load_dwordx8 s[80:87], s[0:1], 64
        s_load_dwordx4 s[88:91], s[0:1], 96
        s_load_dwordx2 s[92:93], s[0:1], 112
        v_lshrrev_b32 v1, 6, v0
        v_and_b32 v2, 63, v0
        v_readfirstlane_b32 s{S_WAVE}, v1
        v_lshlrev_b32 v3, 4, v2
        s_and_b32 s{S_XCD}, s2, 7
        s_lshr_b32 s{S_IDX}, s2, 3
        """)
        a(f"""
        s_cmp_lg_u32 s{S_WAVE}, 3
        s_cbranch_scc1 L_nopf
        s_getpc_b64 s[30:31]
        """)
        a.label("L_pc")
        a(f"""
        s_lshl_b32 s32, s{S_IDX}, 10
        s_cmp_ge_u32 s32, L_end-L_pc-1024
        s_cbranch_scc1 L_nopf
        s_add_u32 s30, s30, s32
        s_addc_u32 s31, s31, 0
        v_mov_b32 v5, s31
        v_add_co_u32 v4, vcc, s30, v3
        s_nop 1
        v_addc_co_u32 v5, vcc, 0, v5, vcc
        global_load_dwordx4 v[136:139], v[4:5], off
        """)
        a.label("L_nopf")
        if self.stamp_on: a(f"v_mov_b32 v{VST}, 0")
        self.stamp(0); self.stamp(30, True)
        a(f"""
        s_and_b32 s30, s{S_XCD}, 3
        s_lshl_b32 s30, s30, 2
        s_and_b32 s31, s{S_IDX}, 3
        s_add_u32 s{S_MB}, s30, s31
        s_lshr_b32 s30, s{S_XCD}, 2            ; hg
        s_lshr_b32 s31, s{S_IDX}, 2
        s_mul_i32 s32, s30, 7
        s_add_u32 s{S_NB}, s32, s31
        s_mul_i32 s32, s30, 9
        s_add_u32 s{S_CHB}, s32, s31
        s_add_u32 s{S_CHA}, s32, 8
        s_cmp_ge_u32 s{S_NB}, 9
        s_cselect_b32 s{S_TYPE}, 1, 0
        s_cmp_ge_u32 s{S_IDX}, 28
        s_cselect_b32 s{S_TYPE}, 2, s{S_TYPE}
        s_lshl_b32 s32, s{S_MB}, 1
        s_add_u32 s32, s32, s{S_CHB}           ; 0..47
        s_mul_i32 s33, s32, 57
        s_lshr_b32 s33, s33, 9
        s_mul_i32 s33, s33, 9
        s_sub_u32 s{S_ROT}, s32, s33           ; rotation 0..8
        s_waitcnt lgkmcnt(0)
        """)
        self.srd(4, P_WS, WS_BYTES)
        a(f"s_cmp_lt_u32 s{S_WAVE}, 4\ns_cbranch_scc1 L_p1_compute")

    def make_vx(self, dst, n, sa, sb, sc1, sc0, T):
        a = self.a
        a(f"""
        v_lshrrev_b32 v{T}, 3, v2
        v_and_b32 v{T+1}, 7, v2
        v_lshrrev_b32 v{T+2}, 1, v{T}
        v_xor_b32 v{T+1}, v{T+1}, v{T+2}
        v_lshrrev_b32 v{T+2}, 2, v{T}
        v_and_b32 v{T}, 3, v{T}
        v_mul_u32_u24 v{T+2}, {sa}, v{T+2}
        v_mul_u32_u24 v{T}, {sb}, v{T}
        v_add_u32 v{T}, v{T}, v{T+2}
        v_mul_u32_u24 v{T}, 1152, v{T}
        v_lshl_add_u32 v{dst}, v{T+1}, 4, v{T}
        v_xor_b32 v{T+1}, 4, v{T+1}
        v_lshl_add_u32 v{dst+1}, v{T+1}, 4, v{T}
        s_mul_i32 s34, {sc0}, 1152
        s_sub_u32 s34, s34, 1024
        v_add_u32 v{dst+1}, s34, v{dst+1}
        """)
        if n == 4:
            a(f"""
            s_mul_i32 s34, {sc1}, 1152
            s_sub_u32 s34, s34, 2048
            v_add_u32 v{dst+2}, s34, v{dst}
            v_add_u32 v{dst+3}, s34, v{dst+1}
            """)

    def p1_loader(self):
        a = self.a
        VX, VX2, VW, VB, T, VD = 4, 8, 12, 16, 20, 28
        LW, SI, KK, XB, WB, SL, LT = 40, 41, 42, 43, 44, 45, 46
        a.label("L_p1_loader")
        a(f"s_sub_u32 s{LW}, s{S_WAVE}, 4\nv_mov_b32 v{VD+1}, 0\nv_mov_b32 v{VD}, 0")
        def setup_b1(chs):
            self.srd(8, P_BX, 2048 * 1152)
            a(f"""
            s_cmp_lt_u32 s{LW}, 2
            s_cselect_b32 s12, s{P_BRE}, s{P_BIM}
            s_cselect_b32 s13, s{P_BRE+1}, s{P_BIM+1}
            s_and_b32 s13, s13, 0xffff
            s_mov_b32 s14, {576*1152}
            s_mov_b32 s15, 0x20000
            s_lshl_b32 s30, s{S_MB}, 7
            s_lshl_b32 s31, s{LW}, 5
            s_add_u32 s30, s30, s31
            s_mul_i32 s{XB}, s30, 1152
            s_lshl_b32 s30, s{chs}, 5
            s_and_b32 s31, s{LW}, 1
            s_lshl_b32 s31, s31, 4
            s_add_u32 s30, s30, s31
            s_mul_i32 s{WB}, s30, 1152
            s_mov_b32 s{LT}, 1
            v_mov_b32 v{VX}, v{VX2}
            v_mov_b32 v{VX+1}, v{VX2+1}
            v_mov_b32 v{VX+2}, v{VX2+2}
            v_mov_b32 v{VX+3}, v{VX2+3}
            """)
        a(f"s_cmp_eq_u32 s{S_TYPE}, 2\ns_cbranch_scc1 L_p1l_spare")
        a(f"""
        s_cmp_eq_u32 s{S_TYPE}, 0
        s_cselect_b32 s36, 2, 1
        s_cselect_b32 s37, 32, 16
        s_cselect_b32 s38, 16, 4
        s_lshr_b32 s30, s{LW}, 1
        s_lshl_b32 s30, s30, 6
        s_and_b32 s31, s{LW}, 1
        s_add_u32 s30, s30, s31
        s_lshl_b32 s31, s{LW}, 5
        s_cmp_eq_u32 s{S_TYPE}, 0
        s_cselect_b32 s30, s30, s31
        s_lshl_b32 s31, s{S_MB}, 7
        s_add_u32 s30, s30, s31
        s_mul_i32 s{XB}, s30, 1152
        s_mul_i32 s30, s{LW}, {16*3456}
        s_lshl_b32 s31, s{S_NB}, 8
        s_add_u32 s{WB}, s30, s31
        s_mov_b32 s{LT}, 0
        """)
        self.make_vx(VX, 4, "8", "s36", "s37", "s38", T)
        a(f"""
        v_lshrrev_b32 v{T}, 4, v2
        v_and_b32 v{T+1}, 15, v2
        v_lshlrev_b32 v{T+2}, 2, v{T}
        v_xor_b32 v{T+1}, v{T+1}, v{T+2}
        v_mul_u32_u24 v{T}, 3456, v{T}
        v_lshl_add_u32 v{VW}, v{T+1}, 4, v{T}
        v_add_u32 v{VW+1}, {4*3456-1024}, v{VW}
        v_add_u32 v{VW+2}, {2*(4*3456-1024)}, v{VW}
        v_add_u32 v{VW+3}, {3*(4*3456-1024)}, v{VW}
        v_mov_b32 v{VB}, 0
        v_mov_b32 v{VB+1}, 0
        """)
        self.srd(8, P_AX, 2048 * 1152); self.srd(12, P_WQKV, 576 * 3456)
        a("s_branch L_p1l_go")
        a.label("L_p1l_spare")
        self.make_vx(VX2, 4, "16", "1", "8", "4", T)
        self.make_vx(VB, 2, "4", "1", "16", "8", T)
        for i in range(4): a(f"v_mov_b32 v{VW+i}, 0")
        setup_b1(S_CHA)
        a.label("L_p1l_go")
        a(f"""
        s_mov_b32 s{SI}, 0
        s_mov_b32 s{KK}, s{S_ROT}
        s_lshl_b32 s{SL}, s{LW}, 12
        """)
        a.label("L_p1l_loop")
        a(f"""
        s_cmp_lt_u32 s{SI}, 3
        s_cbranch_scc1 L_p1l_nobar
        s_waitcnt vmcnt(12)
        s_barrier
        s_cmp_eq_u32 s{SI}, 9
        s_cbranch_scc1 L_p1l_switch
        s_cmp_eq_u32 s{SI}, 15
        s_cbranch_scc1 L_p1l_flag
        """)
        a.label("L_p1l_nobar")
        a(f"""
        s_mov_b32 m0, s{SL}
        s_lshl_b32 s30, s{KK}, 7
        s_add_u32 s31, s30, s{XB}
        """)
        for n in range(4): a(f"buffer_load_dwordx4 v{VX+n}, s[8:11], s31 offen offset:{n*1024} lds")
        a(f"""
        s_cmp_lg_u32 s{LT}, 0
        s_cbranch_scc1 L_p1l_b
        s_add_u32 m0, s{SL}, 16384
        s_mul_i32 s31, s{KK}, {64*3456}
        s_add_u32 s31, s31, s{WB}
        """)
        for n in range(4): a(f"buffer_load_dwordx4 v{VW+n}, s[12:15], s31 offen offset:{n*1024} lds")
        a("s_branch L_p1l_next")
        a.label("L_p1l_b")
        a(f"""
        s_lshl_b32 s32, s{LW}, 11
        s_sub_u32 s32, s{SL}, s32
        s_add_u32 m0, s32, 16384
        s_add_u32 s31, s30, s{WB}
        """)
        for n in range(2): a(f"buffer_load_dwordx4 v{VB+n}, s[12:15], s31 offen offset:{n*1024} lds")
        a.label("L_p1l_next")
        a(f"""
        s_add_u32 s{SL}, s{SL}, 32768
        s_and_b32 s{SL}, s{SL}, 0x1ffff
        s_add_u32 s{KK}, s{KK}, 1
        s_cmp_eq_u32 s{KK}, 9
        s_cselect_b32 s{KK}, 0, s{KK}
        s_add_u32 s{SI}, s{SI}, 1
        s_cmp_lt_u32 s{SI}, 18
        s_cbranch_scc1 L_p1l_loop
        s_waitcnt vmcnt(12)
        s_barrier
        s_waitcnt vmcnt(6)
        s_barrier
        s_waitcnt vmcnt(0)
        s_barrier
        s_branch L_p1_join
        """)
        a.label("L_p1l_switch")
        self.make_vx(VX2, 4, "16", "1", "8", "4", T)
        self.make_vx(VB, 2, "4", "1", "16", "8", T)
        setup_b1(S_CHB)
        a(f"global_load_dword v{VD}, v{VD+1}, s[{P_DBG}:{P_DBG+1}] sc0 sc1\ns_branch L_p1l_nobar")
        a.label("L_p1l_flag")
        a(f"s_mov_b32 s33, 0")
        a.label("L_p1l_chk")
        a(f"""
        v_readfirstlane_b32 s30, v{VD}
        s_cmp_eq_u32 s30, 1
        s_cbranch_scc1 L_p1l_ok
        s_add_u32 s33, s33, 1
        s_cmp_gt_u32 s33, {SPIN_MAX}
        s_cbranch_scc1 L_p1l_ok
        global_load_dword v{VD}, v{VD+1}, s[{P_DBG}:{P_DBG+1}] sc0 sc1
        s_waitcnt vmcnt(0)
        s_branch L_p1l_chk
        """)
        a.label("L_p1l_ok")
        a(f"""
        s_cmp_lg_u32 s{S_WAVE}, 7
        s_cbranch_scc1 L_p1l_nobar
        s_lshl_b32 s30, s2, 2
        s_add_u32 s30, s30, {F1}
        v_mov_b32 v{VD}, 1
        s_mov_b64 exec, 1
        buffer_store_dword v{VD}, v{VD+1}, s[4:7], s30 offen {WT}
        s_mov_b64 exec, -1
        s_branch L_p1l_nobar
        """)

    def p1_compute(self):
        a = self.a
        AX, AW, AB, Z = 4, 8, 8, 12
        FX, FW, ACC, T = 16, 32, 48, 112
        SS, SLOT, DL, WM, WN = 40, 41, 42, 43, 44
        a.label("L_p1_compute")
        a(f"""
        s_or_b32 s30, s2, s{S_WAVE}
        s_cmp_lg_u32 s30, 0
        s_cbranch_scc1 L_p1c_nz
        v_mov_b32 v{T}, 0
        v_mov_b32 v{T+1}, 0
        v_mov_b32 v{T+2}, 0
        v_mov_b32 v{T+3}, 0
        s_mov_b32 s30, {FL}
        """)
        for i in range(FLBYTES // 1024):
            a(f"buffer_store_dwordx4 v[{T}:{T+3}], v3, s[4:7], s30 offen offset:{(i%4)*1024} {WT}")
            if i % 4 == 3: a("s_add_u32 s30, s30, 4096")
        a(f"""
        s_waitcnt vmcnt(0)
        v_mov_b32 v{T+1}, 1
        s_mov_b64 exec, 1
        global_store_dword v{T}, v{T+1}, s[{P_DBG}:{P_DBG+1}] {WT}
        s_mov_b64 exec, -1
        """)
        a.label("L_p1c_nz")
        a(f"""
        v_and_b32 v{T}, 31, v2
        v_lshrrev_b32 v{T+1}, 5, v2
        v_bfe_u32 v{T+2}, v{T}, 1, 3
        v_xor_b32 v{T+2}, v{T+2}, v{T+1}
        v_lshlrev_b32 v{T+3}, 7, v{T}
        """)
        for s in range(4): a(f"v_xor_b32 v{T+4}, {2*s}, v{T+2}\nv_lshl_add_u32 v{Z+s}, v{T+4}, 4, v{T+3}")
        a(f"""
        s_mov_b32 s{SLOT}, 0
        s_mov_b32 s{S_HALF}, 0
        s_mov_b32 s29, s{S_CHA}
        s_cmp_eq_u32 s{S_TYPE}, 2
        s_cbranch_scc1 L_b1
        s_lshr_b32 s{WM}, s{S_WAVE}, 1
        s_and_b32 s{WN}, s{S_WAVE}, 1
        s_lshl_b32 s30, s{WM}, 13
        """)
        for s in range(4): a(f"v_add_u32 v{AX+s}, s30, v{Z+s}")
        a(f"""
        v_bfe_u32 v{T+2}, v2, 2, 2
        v_lshl_add_u32 v{T+3}, v{T+1}, 3, v{T+2}
        v_lshlrev_b32 v{T+3}, 8, v{T+3}
        v_bfe_u32 v{T+4}, v2, 4, 1
        v_lshl_add_u32 v{T+3}, v{T+4}, 5, v{T+3}
        v_and_b32 v{T+4}, 3, v2
        v_lshl_add_u32 v{T+3}, v{T+4}, 3, v{T+3}
        v_add_u32 v{T+3}, 16384, v{T+3}
        s_lshl_b32 s30, s{WN}, 1
        v_xor_b32 v{T+4}, s30, v{T+2}
        v_lshl_add_u32 v{AW}, v{T+4}, 6, v{T+3}
        v_xor_b32 v{AW+1}, 64, v{AW}
        """)
        for i in range(64): a(f"v_mov_b32 v{ACC+i}, 0")
        a(f"s_mov_b32 s{SS}, 0\ns_cmp_eq_u32 s{S_TYPE}, 1\ns_cbranch_scc1 L_a1v")
        def advance(regs):
            a(f"""
            s_add_u32 s30, s{SLOT}, 32768
            s_and_b32 s30, s30, 0x1ffff
            s_sub_u32 s{DL}, s30, s{SLOT}
            s_mov_b32 s{SLOT}, s30
            s_add_u32 s{SS}, s{SS}, 1
            """)
            for r in regs: a(f"v_add_u32 v{r}, s{DL}, v{r}")
        def a1loop(vtype, lab):
            def reads(s, buf):
                for mt in range(2): a(f"ds_read_b128 v[{FX+buf*8+mt*4}:{FX+buf*8+mt*4+3}], v{AX+s} offset:{mt*4096}")
                for nt in range(2):
                    for hf in range(2):
                        r = FW + buf * 8 + nt * 4 + hf * 2
                        a(f"ds_read_b64_tr_b16 v[{r}:{r+1}], v{AW+nt} offset:{s*4096 + hf*1024}")
            a.label(lab)
            a("s_barrier")
            reads(0, 0)
            for s in range(4):
                if s < 3: reads(s + 1, (s + 1) % 2); a("s_waitcnt lgkmcnt(6)")
                else: a("s_waitcnt lgkmcnt(0)")
                buf = s % 2
                for mt in range(2):
                    for nt in range(2):
                        d = ACC + (mt * 2 + nt) * 16
                        x = f"v[{FX+buf*8+mt*4}:{FX+buf*8+mt*4+3}]"; w = f"v[{FW+buf*8+nt*4}:{FW+buf*8+nt*4+3}]"
                        A, B = (x, w) if vtype else (w, x)
                        a(f"v_mfma_f32_32x32x16_bf16 v[{d}:{d+15}], {A}, {B}, v[{d}:{d+15}]")
            advance([AX, AX + 1, AX + 2, AX + 3, AW, AW + 1])
            a(f"s_cmp_lt_u32 s{SS}, 9\ns_cbranch_scc1 {lab}")
        a1loop(False, "L_a1qk")
        self.stamp(1)
        a(f"""
        s_lshl_b32 s30, s{S_NB}, 5
        s_lshl_b32 s31, s{WN}, 4
        s_add_u32 s30, s30, s31
        s_mul_i32 s31, s{S_MB}, 288
        s_add_u32 s31, s31, s30
        s_lshl_b32 s31, s31, 10
        s_lshl_b32 s32, s{WM}, 9
        s_add_u32 s31, s31, s32
        s_add_u32 s31, s31, {QKP}
        v_lshlrev_b32 v{T+2}, 4, v{T}
        v_lshl_add_u32 v{T+2}, v{T+1}, 10, v{T+2}
        s_mov_b32 s32, {QSCALE}
        s_cmp_ge_u32 s30, 144
        s_cbranch_scc1 L_a1qk_ns
        """)
        for i in range(64): a(f"v_mul_f32 v{ACC+i}, s32, v{ACC+i}")
        a.label("L_a1qk_ns")
        for nt in range(2):
            for g in range(4):
                o = FX + ((nt * 4 + g) % 8) * 4
                for mt in range(2):
                    d = ACC + (mt * 2 + nt) * 16 + 4 * g
                    a(f"v_cvt_pk_bf16_f32 v{o+2*mt}, v{d}, v{d+1}\nv_cvt_pk_bf16_f32 v{o+2*mt+1}, v{d+2}, v{d+3}")
                a(f"buffer_store_dwordx4 v[{o}:{o+3}], v{T+2}, s[4:7], s31 offen offset:{(g%2)*2048} {WT}")
                if g % 2 == 1: a("s_add_u32 s31, s31, 4096")
        a("s_branch L_a1done")
        a1loop(True, "L_a1v")
        self.stamp(1)
        a(f"""
        s_sub_u32 s30, s{S_NB}, 9
        s_lshl_b32 s30, s30, 7
        s_lshl_b32 s31, s{WN}, 6
        s_add_u32 s30, s30, s31
        s_cmp_ge_u32 s30, 576
        s_cbranch_scc1 L_a1done
        s_lshl_b32 s31, s{S_MB}, 4
        s_lshl_b32 s32, s{WM}, 3
        s_add_u32 s31, s31, s32
        s_mul_i32 s31, s31, 9216
        s_lshl_b32 s30, s30, 4
        s_add_u32 s31, s31, s30
        s_add_u32 s31, s31, {VT}
        v_mul_u32_u24 v{T+2}, 9216, v{T+1}
        v_lshl_add_u32 v{T+2}, v{T}, 4, v{T+2}
        """)
        for mt in range(2):
            for m in range(2):
                for nt in range(2):
                    d = ACC + (mt * 2 + nt) * 16 + 8 * m
                    for r in range(4): a(f"v_cvt_pk_bf16_f32 v{d+r}, v{d+2*r}, v{d+2*r+1}")
                    a(f"buffer_store_dwordx4 v[{d}:{d+3}], v{T+2}, s[4:7], s31 offen offset:{nt*512} {WT}")
                a(f"s_add_u32 s31, s31, {2*9216}")
        a.label("L_a1done")
        self.stamp(2)
        a(f"s_mov_b32 s{S_HALF}, 1\ns_mov_b32 s29, s{S_CHB}")
        a.label("L_b1")
        LT_ = T + 8
        a(f"""
        s_lshl_b32 s30, s29, 6
        v_lshl_add_u32 v{T+2}, v{T}, 1, s30
        global_load_ushort v{LT_}, v{T+2}, s[{P_LRE}:{P_LRE+1}]
        global_load_ushort v{LT_+1}, v{T+2}, s[{P_LIM}:{P_LIM+1}]
        global_load_ushort v{LT_+2}, v{T+2}, s[{P_LDT}:{P_LDT+1}]
        s_lshl_b32 s30, s{S_WAVE}, 12
        s_add_u32 s30, s30, s{SLOT}
        s_add_u32 s31, s{SLOT}, 16384
        """)
        for s in range(4): a(f"v_add_u32 v{AX+s}, s30, v{Z+s}\nv_add_u32 v{AB+s}, s31, v{Z+s}")
        for i in range(32): a(f"v_mov_b32 v{BS+i}, 0")
        a(f"s_mov_b32 s{SS}, 0")
        a.label("L_b1loop")
        a(f"s_cmp_lg_u32 s{SS}, 3\ns_cbranch_scc1 L_b1nw\ns_waitcnt vmcnt(0)")
        a.label("L_b1nw")
        a("s_barrier")
        def breads(s, buf):
            a(f"ds_read_b128 v[{FX+buf*4}:{FX+buf*4+3}], v{AX+s}")
            for nt in range(2): a(f"ds_read_b128 v[{FW+buf*8+nt*4}:{FW+buf*8+nt*4+3}], v{AB+s} offset:{nt*4096}")
        breads(0, 0)
        for s in range(4):
            if s < 3: breads(s + 1, (s + 1) % 2); a("s_waitcnt lgkmcnt(3)")
            else: a("s_waitcnt lgkmcnt(0)")
            buf = s % 2
            for nt in range(2):
                d = BS + nt * 16
                a(f"v_mfma_f32_32x32x16_bf16 v[{d}:{d+15}], v[{FX+buf*4}:{FX+buf*4+3}], v[{FW+buf*8+nt*4}:{FW+buf*8+nt*4+3}], v[{d}:{d+15}]")
        advance([AX, AX + 1, AX + 2, AX + 3, AB, AB + 1, AB + 2, AB + 3])
        a(f"s_cmp_lt_u32 s{SS}, 9\ns_cbranch_scc1 L_b1loop")
        self.stamp(3)
        self.lam_calc(LT_)
        GR, GI, TT = T + 4, T + 5, T + 6
        a(f"v_mov_b32 v{GR}, v{BS}\nv_mov_b32 v{GI}, v{BS+16}")
        for t in range(1, 16):
            last = t == 15
            a(f"""
            v_fma_f32 v{TT}, v{LR}, v{GR}, v{BS+t}
            v_fma_f32 v{TT+1}, v{LR}, v{GI}, v{BS+16+t}
            v_fma_f32 v{TT}, -v{LI}, v{GI}, v{TT}
            v_fma_f32 v{GI}, v{LI}, v{GR}, v{TT+1}
            v_mov_b32 v{GR}, v{TT}
            """)
        a(f"""
        s_lshl_b32 s30, s{S_HALF}, 11
        s_lshl_b32 s31, s{S_WAVE}, 9
        s_add_u32 s30, s30, s31
        s_add_u32 s30, s30, 131072
        v_lshl_add_u32 v{TT}, v2, 3, s30
        ds_write_b64 v{TT}, v[{GR}:{GI}]
        s_cmp_lg_u32 s{S_HALF}, 0
        s_cbranch_scc1 L_b1done
        """)
        for i in range(42): a(f"v_mov_b32 v{BSA+i}, v{BS+i}")
        a(f"s_mov_b32 s{S_HALF}, 1\ns_mov_b32 s29, s{S_CHB}\ns_branch L_b1")
        a.label("L_b1done")
        a("s_waitcnt lgkmcnt(0)")
        a.label("L_p1_join")
        a("s_barrier")
        self.stamp(4)
        a(f"s_cmp_ge_u32 s{S_WAVE}, 4\ns_cbranch_scc1 L_p1_end")
        a.label("L_pb")
        EB = T + 20
        a(f"""
        s_lshl_b32 s30, s{S_HALF}, 11
        s_add_u32 s30, s30, {131072 - 256}
        v_lshl_add_u32 v{TT+2}, v2, 3, s30
        v_mov_b32 v{LCR}, 0
        v_mov_b32 v{LCI}, 0
        v_mov_b32 v{PWR}, 1.0
        v_mov_b32 v{PWI}, 0
        s_lshl_b32 s31, s{S_WAVE}, 1
        s_mov_b32 s32, 0
        s_mov_b32 exec_lo, 0
        """)
        a.label("L_pbloop")
        a(f"""
        ds_read_b64 v[{EB}:{EB+1}], v{TT+2}
        v_mul_f32 v{TT}, v{MUR}, v{PWR}
        v_mul_f32 v{TT+1}, v{MUR}, v{PWI}
        v_fma_f32 v{TT}, -v{MUI}, v{PWI}, v{TT}
        v_fma_f32 v{PWI}, v{MUI}, v{PWR}, v{TT+1}
        v_mov_b32 v{PWR}, v{TT}
        s_waitcnt lgkmcnt(0)
        v_fma_f32 v{TT}, v{MUR}, v{LCR}, v{EB}
        v_fma_f32 v{TT+1}, v{MUR}, v{LCI}, v{EB+1}
        v_fma_f32 v{TT}, -v{MUI}, v{LCI}, v{TT}
        v_fma_f32 v{LCI}, v{MUI}, v{LCR}, v{TT+1}
        v_mov_b32 v{LCR}, v{TT}
        s_mov_b32 exec_lo, -1
        v_add_u32 v{TT+2}, 256, v{TT+2}
        s_add_u32 s32, s32, 1
        s_cmp_le_u32 s32, s31
        s_cbranch_scc1 L_pbloop
        s_cmp_lg_u32 s{S_WAVE}, 3
        s_cbranch_scc1 L_pbne
        ds_read_b64 v[{EB}:{EB+1}], v{TT+2}
        s_mul_i32 s30, s{S_MB}, {576*8}
        s_lshl_b32 s31, s29, 8
        s_add_u32 s30, s30, s31
        s_add_u32 s30, s30, {EE - 256}
        v_lshlrev_b32 v{TT+2}, 3, v2
        s_waitcnt lgkmcnt(0)
        v_fma_f32 v{EB}, v{MUR}, v{LCR}, v{EB}
        v_fma_f32 v{EB+1}, v{MUR}, v{LCI}, v{EB+1}
        v_fma_f32 v{EB}, -v{MUI}, v{LCI}, v{EB}
        v_fma_f32 v{EB+1}, v{MUI}, v{LCR}, v{EB+1}
        s_mov_b32 exec_lo, 0
        buffer_store_dwordx2 v[{EB}:{EB+1}], v{TT+2}, s[4:7], s30 offen {WT}
        s_mov_b32 exec_lo, -1
        """)
        a.label("L_pbne")
        for i in range(3):
            a(f"""
            v_mul_f32 v{TT}, v{MUI}, v{MUI}
            v_mul_f32 v{TT+1}, v{MUR}, v{MUI}
            v_fma_f32 v{MUR}, v{MUR}, v{MUR}, -v{TT}
            v_add_f32 v{MUI}, v{TT+1}, v{TT+1}
            """)
        a(f"""
        s_cmp_lg_u32 s{S_TYPE}, 2
        s_cbranch_scc1 L_p1_end
        s_cmp_eq_u32 s{S_HALF}, 0
        s_cbranch_scc1 L_p1_end
        """)
        for i in range(42): a(f"v_swap_b32 v{BSA+i}, v{BS+i}")
        a(f"s_mov_b32 s{S_HALF}, 0\ns_mov_b32 s29, s{S_CHA}\ns_branch L_pb")
        a.label("L_p1_end")

    def lam_calc(self, T):
        a = self.a; L2E = f32(math.log2(math.e))
        a(f"""
        v_lshlrev_b32 v{T}, 16, v{T}
        v_lshlrev_b32 v{T+1}, 16, v{T+1}
        v_lshlrev_b32 v{T+2}, 16, v{T+2}
        v_mul_f32 v{T+2}, {L2E}, v{T+2}
        v_exp_f32 v{T+2}, v{T+2}
        s_nop 0
        v_cvt_pk_bf16_f32 v{T+2}, v{T+2}, v{T+2}
        v_lshlrev_b32 v{T+2}, 16, v{T+2}
        v_mul_f32 v{T+3}, v{T+2}, v{T}
        v_mul_f32 v{T+4}, v{T+2}, v{T+1}
        v_mul_f32 v{T+3}, {L2E}, v{T+3}
        v_mul_f32 v{T+4}, {f32(1/(2*math.pi))}, v{T+4}
        v_exp_f32 v{T+3}, v{T+3}
        v_fract_f32 v{T+4}, v{T+4}
        v_cos_f32 v{T+5}, v{T+4}
        v_sin_f32 v{T+6}, v{T+4}
        s_nop 0
        v_mul_f32 v{LR}, v{T+3}, v{T+5}
        v_mul_f32 v{LI}, v{T+3}, v{T+6}
        v_mul_f32 v{T+3}, v{T}, v{T}
        v_fmac_f32 v{T+3}, v{T+1}, v{T+1}
        v_rcp_f32 v{T+3}, v{T+3}
        v_add_f32 v{T+4}, -1.0, v{LR}
        v_mul_f32 v{T+5}, v{T+4}, v{T}
        v_fmac_f32 v{T+5}, v{LI}, v{T+1}
        v_mul_f32 v{T+6}, v{LI}, v{T}
        v_fma_f32 v{T+6}, -v{T+4}, v{T+1}, v{T+6}
        v_add_f32 v{T+3}, v{T+3}, v{T+3}
        v_mul_f32 v{CR}, v{T+5}, v{T+3}
        v_mul_f32 v{CI}, v{T+6}, v{T+3}
        v_mov_b32 v{MUR}, v{LR}
        v_mov_b32 v{MUI}, v{LI}
        """)
        for i in range(4):
            a(f"""
            v_mul_f32 v{T+3}, v{MUI}, v{MUI}
            v_mul_f32 v{T+4}, v{MUR}, v{MUI}
            v_fma_f32 v{MUR}, v{MUR}, v{MUR}, -v{T+3}
            v_add_f32 v{MUI}, v{T+4}, v{T+4}
            """)

    def poll(self, lab, vdst, voff, soff, n=1, first_issued=False):
        a = self.a
        ld = f"buffer_load_dword v{vdst}, v{voff}, s[4:7], {soff} offen sc0 sc1" if n == 1 else f"buffer_load_dwordx4 v[{vdst}:{vdst+3}], v{voff}, s[4:7], {soff} offen sc0 sc1"
        a("s_mov_b32 s33, 0")
        if first_issued: a(f"s_branch {lab}_c")
        a.label(lab)
        a(ld + "\ns_waitcnt vmcnt(0)")
        a.label(lab + "_c")
        if n == 4:
            a(f"v_and_b32 v{vdst}, v{vdst}, v{vdst+1}\nv_and_b32 v{vdst+2}, v{vdst+2}, v{vdst+3}\nv_and_b32 v{vdst}, v{vdst}, v{vdst+2}")
        a(f"""
        v_cmp_ne_u32 vcc, 1, v{vdst}
        s_add_u32 s33, s33, 1
        s_cmp_gt_u32 s33, {SPIN_MAX}
        s_cbranch_scc1 {lab}_x
        s_cbranch_vccz {lab}_x
        s_sleep 1
        s_branch {lab}
        """)
        a.label(lab + "_x")

    def attention(self):
        a = self.a
        QM, QL, IDX, AK, AV, AL, T0, T1 = 4, 8, 10, 11, 12, 13, 14, 15
        KM, KL, VF, O, S0, S1 = 16, 24, 28, 44, 60, 92
        LK, LV, LL, VV, V3, PT = 124, 125, 126, 127, 128, 132
        HD, TQ, PAR, CH, IT, DK, DV, FB, MC, MB_, MI = 40, 41, 42, 43, 44, 45, 46, 47, 48, 49, 50
        GK, GV, G3, L3, GS3, LS3, NC = 51, 52, 53, 54, 55, 56, 57
        KCH, VCH = 10240, 32 * VROW
        C0 = 0
        a(f"""
        s_lshl_b32 s{HD}, s{S_XCD}, 2
        s_and_b32 s30, s{S_IDX}, 3
        s_add_u32 s{HD}, s{HD}, s30
        s_lshr_b32 s{TQ}, s{S_IDX}, 2
        s_lshl_b32 s{TQ}, s{TQ}, 3
        s_add_u32 s{TQ}, s{TQ}, s{S_WAVE}
        s_and_b32 s{PAR}, s{HD}, 1
        s_mov_b32 s30, {F1}
        """)
        self.poll("L_pollF1", S0, 3, "s30", n=4)
        self.stamp(5)
        a(f"""
        v_and_b32 v1, 31, v2
        v_lshrrev_b32 v{T1}, 5, v2
        v_lshlrev_b32 v{T0}, 3, v1
        v_lshl_add_u32 v{LK}, v{T1}, 11, v{T0}
        s_lshl_b32 s30, s{PAR}, 10
        v_add_u32 v{LK}, s30, v{LK}              ; par*1024 + h*2048 + i*8
        s_mul_i32 s31, s{PAR}, 4092
        s_sub_u32 s31, 4096, s31                 ; par ? 4 : 4096
        v_lshl_add_u32 v{LL}, v2, 3, s31
        v_add_u32 v{T0}, s31, v{T0}
        s_lshr_b32 s30, s{HD}, 1
        s_mul_i32 s30, s30, 9
        s_lshl_b32 s32, s{PAR}, 2
        s_add_u32 s30, s30, s32                  ; f
        s_lshr_b32 s32, s{TQ}, 2
        s_mul_i32 s32, s32, 288
        s_add_u32 s32, s32, s30
        s_lshl_b32 s32, s32, 10
        s_and_b32 s34, s{TQ}, 3
        s_lshl_b32 s34, s34, 8
        s_add_u32 s32, s32, s34
        s_add_u32 s32, s32, {QKP}
        buffer_load_dwordx2 v[{QM}:{QM+1}], v{LK}, s[4:7], s32 offen sc0 sc1
        buffer_load_dwordx2 v[{QM+2}:{QM+3}], v{LK}, s[4:7], s32 offen offset:1024 sc0 sc1
        buffer_load_dword v{QL}, v{T0}, s[4:7], s32 offen sc0 sc1
        """)
        a(f"""
        s_add_u32 s30, s30, 144
        s_lshl_b32 s30, s30, 10
        s_add_u32 s30, s30, {QKP + C0*2*288*1024}
        s_cmp_ge_u32 s{S_WAVE}, 5
        s_cselect_b32 s31, {283*1024}, 0
        s_lshl_b32 s32, s{S_WAVE}, 10
        s_add_u32 s{GK}, s30, s31
        s_add_u32 s{GK}, s{GK}, s32
        s_mul_i32 s34, s{HD}, 288
        s_add_u32 s34, s34, {VT + C0*32*9216}
        s_mul_i32 s31, s{S_WAVE}, {3*9216}
        s_add_u32 s{GV}, s34, s31
        v_mul_u32_u24 v{T0}, 27, v2
        v_lshrrev_b32 v{T0}, 9, v{T0}                 ; lane/19
        v_mul_u32_u24 v{VV}, 19, v{T0}
        v_sub_u32 v{VV}, v2, v{VV}                    ; lane%19
        v_cmp_gt_u32 vcc, 18, v{VV}
        v_cmp_gt_u32 s[58:59], 3, v{T0}
        v_mul_u32_u24 v{T0}, 9216, v{T0}
        v_lshl_add_u32 v{VV}, v{VV}, 4, v{T0}
        s_and_b64 s[58:59], s[58:59], vcc
        s_cmp_lt_u32 s{S_WAVE}, 2
        s_cbranch_scc1 L_at3k
        s_cmp_lt_u32 s{S_WAVE}, 5
        s_cbranch_scc1 L_at3v
        s_mov_b32 s{G3}, s{GK}
        s_mov_b32 s{L3}, s32
        s_branch L_at3k2
        """)
        a.label("L_at3k")
        a(f"""
        s_add_u32 s{G3}, s30, {(283+8)*1024}
        s_add_u32 s{G3}, s{G3}, s32
        s_add_u32 s{L3}, s32, 8192
        """)
        a.label("L_at3k2")
        a(f"""
        s_add_u32 s{L3}, s{L3}, {LDS_K + C0*KCH}
        s_mov_b32 s{GS3}, {2*288*1024}
        s_mov_b32 s{LS3}, {KCH}
        s_mov_b64 s[60:61], -1
        v_mov_b32 v{V3}, v3
        s_branch L_at3d
        """)
        a.label("L_at3v")
        a(f"""
        s_add_u32 s{G3}, s{GV}, {6*3*9216}
        s_mul_i32 s{L3}, s{S_WAVE}, {3*VROW}
        s_add_u32 s{L3}, s{L3}, {LDS_V + 6*3*VROW + C0*VCH}
        s_mov_b32 s{GS3}, {32*9216}
        s_mov_b32 s{LS3}, {VCH}
        s_mov_b64 s[60:61], s[58:59]
        v_mov_b32 v{V3}, v{VV}
        """)
        a.label("L_at3d")
        a(f"s_mov_b32 s{NC}, 0")
        def dma_chunk():
            a(f"""
            s_mul_i32 s30, s{NC}, {KCH}
            s_lshl_b32 s31, s{S_WAVE}, 10
            s_add_u32 m0, s30, s31
            s_mul_i32 s30, s{NC}, {VCH}
            buffer_load_dwordx4 v3, s[4:7], s{GK} offen sc0 sc1 lds
            s_mul_i32 s31, s{S_WAVE}, {3*VROW}
            s_add_u32 s30, s30, s31
            s_add_u32 m0, s30, {LDS_V}
            s_mov_b64 exec, s[58:59]
            buffer_load_dwordx4 v{VV}, s[4:7], s{GV} offen sc0 sc1 lds
            s_mov_b32 m0, s{L3}
            s_mov_b64 exec, s[60:61]
            buffer_load_dwordx4 v{V3}, s[4:7], s{G3} offen sc0 sc1 lds
            s_mov_b64 exec, -1
            s_add_u32 s{GK}, s{GK}, {2*288*1024}
            s_add_u32 s{GV}, s{GV}, {32*9216}
            s_add_u32 s{G3}, s{G3}, s{GS3}
            s_add_u32 s{L3}, s{L3}, s{LS3}
            s_add_u32 s{NC}, s{NC}, 1
            """)
        dma_chunk(); dma_chunk()
        a(f"""
        v_min_u32 v{AV}, 18, v1
        v_mul_u32_u24 v{T1}, {VROW}, v{T1}
        v_lshl_add_u32 v{LV}, v{AV}, 4, v{T1}
        v_add_u32 v{LV}, {LDS_V}, v{LV}
        v_cmp_lt_u32 vcc, 18, v1
        v_cmp_ne_u32 s[30:31], 28, v1
        s_and_b64 vcc, vcc, s[30:31]
        v_mov_b32 v{T1}, 0x100000
        v_mov_b32 v{IDX}, 0xdddd
        v_cndmask_b32 v{LV}, v{LV}, v{T1}, vcc
        v_mov_b32 v{KL+1}, 0x3f803f80
        v_mov_b32 v{KL+3}, 0x3f803f80
        v_mov_b32 v{KL}, 0x3f803f80
        v_mov_b32 v{KL+2}, 0x3f803f80
        v_and_b32 v{T0}, 127, v0
        v_mul_u32_u24 v{T0}, {VROW}, v{T0}
        v_add_u32 v{V3+1}, {LDS_V + 18*16}, v{T0}
        ds_write_b128 v{V3+1}, v[{KL}:{KL+3}]
        s_mov_b32 s62, 0
        s_mov_b32 s63, -1
        s_mov_b32 s{FB}, 0
        s_mov_b32 s{MC}, 1
        s_mov_b32 s{MB_}, {C0*KCH}
        s_waitcnt vmcnt(3) lgkmcnt(0)
        s_barrier
        ds_write_b128 v{V3+1}, v[{KL}:{KL+3}] offset:{128*VROW}
        """)
        a(f"""
        s_cmp_lg_u32 s{S_WAVE}, 3
        s_cbranch_scc1 L_nof2
        s_lshl_b32 s30, s{S_CHB}, 4
        s_add_u32 s30, s30, s{S_MB}
        s_lshl_b32 s30, s30, 2
        s_add_u32 s30, s30, {F2}
        s_lshl_b32 s31, s29, 4
        s_add_u32 s31, s31, s{S_MB}
        s_lshl_b32 s31, s31, 2
        s_add_u32 s31, s31, {F2}
        v_mov_b32 v{T0}, 0
        v_mov_b32 v{T1}, 1
        s_mov_b64 exec, 1
        buffer_store_dword v{T1}, v{T0}, s[4:7], s30 offen {WT}
        buffer_store_dword v{T1}, v{T0}, s[4:7], s31 offen {WT}
        s_mov_b64 exec, -1
        """)
        a.label("L_nof2")
        self.stamp(6)
        a.label("L_maxpass")
        MX = T1
        a(f"""
        v_add_u32 v{AK}, s{MB_}, v{LK}
        v_add_u32 v{AL}, s{MB_}, v{LL}
        v_mov_b32 v{QL+1}, 0
        v_mov_b32 v{MX}, 0xff800000
        s_mov_b32 s{MI}, 0
        """)
        def rdKm(t, p, A=AK):
            off = (p // 2) * 5120 + (2 * (p % 2) + t) * 256
            a(f"ds_read_b64 v[{KM+4*t}:{KM+4*t+1}], v{A} offset:{off}\nds_read_b64 v[{KM+4*t+2}:{KM+4*t+3}], v{A} offset:{off+1024}")
        def rdKl(p):
            a(f"ds_read_b32 v{KL+2*(p%2)}, v{AL} offset:{(p//2)*5120 + (p%2)*512}")
        def rdV(n, p): a(f"ds_read_b128 v[{VF+4*n}:{VF+4*n+3}], v{AV} offset:{(p*8+n*2)*VROW}")
        def b2(N, p): a(f"v_mfma_f32_32x32x4_2b_bf16 v[{N}:{N+31}], v[{KL+2*(p%2)}:{KL+2*(p%2)+1}], v[{QL}:{QL+1}], 0")
        def mainm(N, t): a(f"v_mfma_f32_32x32x16_bf16 v[{N+16*t}:{N+16*t+15}], v[{KM+4*t}:{KM+4*t+3}], v[{QM}:{QM+3}], v[{N+16*t}:{N+16*t+15}]")
        def smf(n, S): a(f"v_smfmac_f32_32x32x32_bf16 v[{O}:{O+15}], v[{VF+4*n}:{VF+4*n+3}], v[{S+8*n}:{S+8*n+7}], v{IDX}")
        def E(S, lo, hi):
            for r in range(lo, hi): a(f"v_exp_f32 v{S+r}, v{S+r}")
        a.label("L_maxloop")
        rdKl(0); rdKm(0, 0); rdKm(1, 0)
        a(f"""
        s_and_b32 s30, s{MI}, 1
        s_mul_i32 s30, s30, {5120-1024}
        s_add_u32 s30, s30, 512
        s_add_u32 s{MI}, s{MI}, 1
        s_waitcnt lgkmcnt(0)
        """)
        b2(S0, 0)
        a(f"v_add_u32 v{AK}, s30, v{AK}\nv_add_u32 v{AL}, s30, v{AL}\ns_nop 15")
        mainm(S0, 0); mainm(S0, 1)
        a("s_nop 10")
        for i in range(16): a(f"v_max3_f32 v{MX}, v{S0+2*i}, v{S0+2*i+1}, v{MX}")
        a(f"""
        s_cmp_lt_u32 s{MI}, s{MC}
        s_cbranch_scc1 L_maxloop
        v_mov_b32 v{T0}, v{MX}
        s_nop 1
        v_permlane32_swap_b32 v{T0}, v{MX}
        s_nop 1
        v_max_f32 v{MX}, v{T0}, v{MX}
        v_cvt_pk_bf16_f32 v{T0}, -v{MX}, 0
        v_lshlrev_b32 v{T0}, 16, v{T0}
        v_sub_f32 v{T0}, -v{MX}, v{T0}
        v_cvt_pk_bf16_f32 v{QL+1}, -v{MX}, v{T0}
        v_add_u32 v{AK}, {C0*KCH}, v{LK}
        v_add_u32 v{AL}, {C0*KCH}, v{LL}
        v_add_u32 v{AV}, {C0*VCH}, v{LV}
        s_mov_b32 s{CH}, {C0}
        s_mov_b32 s{IT}, 0
        """)
        rdKl(0); rdKm(0, 0); rdKm(1, 0); rdKl(1)
        rdV(0, 0); rdV(1, 0); rdV(2, 0)
        for i in range(16): a(f"v_mov_b32 v{O+i}, 0")
        for i in range(8): a(f"v_mov_b32 v{S1+24+i}, 0")
        for i in range(4): a(f"v_mov_b32 v{VF+12+i}, 0")
        a("s_waitcnt lgkmcnt(0)")
        b2(S0, 0)
        a("s_nop 15\ns_nop 1")
        mainm(S0, 0); mainm(S0, 1)
        rdKm(0, 1); rdKm(1, 1)
        a("s_nop 5\ns_waitcnt lgkmcnt(0)")
        self.stamp(7)
        a.raw(".p2align 6")
        a.label("L_loop")
        for i in range(4):
            C, N = (S0, S1) if i % 2 == 0 else (S1, S0)
            if i == 0:
                a(f"""
                s_add_u32 s30, s{CH}, 1
                s_and_b32 s30, s30, 7
                s_sub_u32 s31, s30, s{CH}
                s_mul_i32 s{DK}, s31, {KCH}
                s_mul_i32 s{DV}, s31, {VCH}
                s_mov_b32 s{CH}, s30
                """)
            E(C, 0, 2)
            a("s_waitcnt lgkmcnt(5)")
            smf(3, N); rdV(3, i)
            if i == 3: a(f"v_add_u32 v{AV}, s{DV}, v{AV}")
            if i == 2:
                a(f"""
                v_add_u32 v{AK}, s{DK}, v{AK}
                v_add_u32 v{AL}, s{DK}, v{AL}
                s_add_u32 s30, s{IT}, s{FB}
                s_cmp_lt_u32 s30, 4
                s_cbranch_scc1 L_hook
                """)
                a.label("L_hookret")
            E(C, 2, 6)
            b2(N, i + 1)
            rdKl((i + 2) % 4)
            E(C, 6, 12)
            smf(0, C); rdV(0, (i + 1) % 4)
            E(C, 12, 18)
            smf(1, C); rdV(1, (i + 1) % 4)
            E(C, 18, 22)
            a("s_waitcnt lgkmcnt(4)")
            mainm(N, 0); rdKm(0, (i + 2) % 4)
            E(C, 22, 26)
            smf(2, C); rdV(2, (i + 1) % 4)
            E(C, 26, 30)
            mainm(N, 1); rdKm(1, (i + 2) % 4)
            if i == 3: a(f"s_add_u32 s{IT}, s{IT}, 1\ns_cmp_lt_u32 s{IT}, 8")
            E(C, 30, 32)
        a("s_cbranch_scc1 L_loop")
        a("s_waitcnt lgkmcnt(0)\ns_nop 0")
        smf(3, S1)
        self.stamp(8)
        L, SUM = T0, T1
        a(f"s_nop 11\nv_cndmask_b32 v{L}, v{O+10}, v{O+12}, s[62:63]\nv_add_f32 v{SUM}, |v{O}|, |v{O+1}|")
        for r in range(2, 10): a(f"v_add_f32 v{SUM}, v{SUM}, |v{O+r}|")
        a(f"""
        s_mov_b32 s30, 0x5d800000
        s_mov_b32 s31, 0x7f7fffff
        v_cmp_nge_f32 vcc, s30, v{L}
        v_cmp_nge_f32 s[34:35], s31, v{SUM}
        s_or_b64 vcc, vcc, s[34:35]
        s_cmp_lg_u32 s{FB}, 0
        s_cbranch_scc1 L_fin
        s_cmp_eq_u64 vcc, 0
        s_cbranch_scc1 L_fin
        s_mov_b32 s{FB}, 8
        s_mov_b32 s{MC}, 32
        s_mov_b32 s{MB_}, 0
        s_branch L_maxpass
        """)
        a.label("L_hook")
        FV, EV = PT, 236
        a(f"""
        s_cmp_eq_u32 s{IT}, 2
        s_cbranch_scc1 L_hook2
        s_waitcnt vmcnt(0)
        s_barrier
        s_cmp_eq_u32 s{IT}, 3
        s_cbranch_scc1 L_hook3
        """)
        dma_chunk(); dma_chunk()
        a("s_branch L_hookret")
        a.label("L_hook3")
        a(f"""
        s_cmp_ge_u32 s{S_WAVE}, 4
        s_cbranch_scc1 L_hookret
        s_mul_i32 s30, s{S_MB}, 18
        s_add_u32 s31, s30, s{S_CHB}
        s_lshl_b32 s31, s31, 2
        s_add_u32 s31, s31, s{S_WAVE}
        s_lshl_b32 s31, s31, 2
        s_add_u32 s31, s31, {F3}
        s_cmp_eq_u32 s{S_TYPE}, 2
        s_cselect_b32 s32, s{S_CHA}, s{S_CHB}
        s_add_u32 s32, s30, s32
        s_lshl_b32 s32, s32, 2
        s_add_u32 s32, s32, s{S_WAVE}
        s_lshl_b32 s32, s32, 2
        s_add_u32 s32, s32, {F3}
        v_mov_b32 v{PT}, 0
        v_mov_b32 v{PT+1}, 1
        s_mov_b64 exec, 1
        buffer_store_dword v{PT+1}, v{PT}, s[4:7], s31 offen {WT}
        buffer_store_dword v{PT+1}, v{PT}, s[4:7], s32 offen {WT}
        s_mov_b64 exec, -1
        s_branch L_hookret
        """)
        a.label("L_hook2")
        dma_chunk(); dma_chunk()
        a(f"s_cmp_ge_u32 s{S_WAVE}, 4\ns_cbranch_scc1 L_hookret")
        self.pass2(PT)
        a("s_branch L_hookret")
        a.label("L_fin")
        a(f"v_rcp_f32 v{L}, v{L}\ns_nop 0")
        for r in range(10): a(f"v_mul_f32 v{O+r}, v{O+r}, v{L}")
        for r in range(5): a(f"v_cvt_pk_bf16_f32 v{S0+r}, v{O+2*r}, v{O+2*r+1}")
        a(f"""
        s_mul_i32 s30, s{TQ}, {36*1024}
        s_add_u32 s30, s30, {OW}
        s_lshl_b32 s31, s{HD}, 10
        s_add_u32 s31, s31, s30
        buffer_store_dwordx4 v[{S0}:{S0+3}], v3, s[4:7], s31 offen {WT}
        s_lshl_b32 s31, s{HD}, 7
        s_add_u32 s31, s31, s30
        s_add_u32 s31, s31, 32768
        v_lshlrev_b32 v{T0}, 2, v2
        s_mov_b32 exec_hi, 0
        buffer_store_dword v{S0+4}, v{T0}, s[4:7], s31 offen {WT}
        s_lshl_b32 s31, s{TQ}, 5
        s_add_u32 s31, s31, s{HD}
        s_lshl_b32 s31, s31, 2
        s_add_u32 s31, s31, {F4}
        v_mov_b32 v{T1}, 1
        s_mov_b64 exec, 1
        s_waitcnt vmcnt(0)
        buffer_store_dword v{T1}, v{T0}, s[4:7], s31 offen {WT}
        s_mov_b64 exec, -1
        """)
        self.stamp(9)

    def pass2(self, T):
        a = self.a
        GR, GI, TT, EB, AD = T, T + 1, T + 2, T + 4, T + 6
        a.label("L_p2")
        a(f"""
        v_mov_b32 v{GR}, 0
        v_mov_b32 v{GI}, 0
        s_cmp_eq_u32 s{S_MB}, 0
        s_cbranch_scc1 L_p2nc
        s_lshl_b32 s34, s29, 6
        s_add_u32 s34, s34, {F2}
        s_sub_u32 s35, s{S_MB}, 1
        v_min_u32 v{AD}, s35, v2
        v_lshlrev_b32 v{AD}, 2, v{AD}
        """)
        self.poll("L_pollF2", EB, AD, "s34", n=1)
        a(f"""
        v_and_b32 v{AD}, 31, v2
        v_lshlrev_b32 v{AD}, 3, v{AD}
        s_lshl_b32 s34, s29, 8
        s_add_u32 s34, s34, {EE}
        s_mov_b32 s35, 0
        """)
        a.label("L_p2grp")
        for j in range(8):
            a(f"buffer_load_dwordx2 v[{236+2*j}:{237+2*j}], v{AD}, s[4:7], s34 offen sc0 sc1\ns_add_u32 s34, s34, {576*8}")
        for j in range(8):
            a(f"""
            s_waitcnt vmcnt({7-j})
            v_fma_f32 v{TT}, v{MUR}, v{GR}, v{236+2*j}
            v_fma_f32 v{TT+1}, v{MUR}, v{GI}, v{237+2*j}
            v_fma_f32 v{TT}, -v{MUI}, v{GI}, v{TT}
            v_fma_f32 v{GI}, v{MUI}, v{GR}, v{TT+1}
            v_mov_b32 v{GR}, v{TT}
            s_add_u32 s35, s35, 1
            s_cmp_ge_u32 s35, s{S_MB}
            s_cbranch_scc1 L_p2nc
            """)
        a("s_branch L_p2grp")
        a.label("L_p2nc")
        a(f"""
        v_fma_f32 v{TT}, v{PWR}, v{GR}, v{LCR}
        v_fma_f32 v{TT+1}, v{PWR}, v{GI}, v{LCI}
        v_fma_f32 v{TT}, -v{PWI}, v{GI}, v{TT}
        v_fma_f32 v{GI}, v{PWI}, v{GR}, v{TT+1}
        v_mov_b32 v{GR}, v{TT}
        """)
        for t in range(16):
            a(f"""
            v_fma_f32 v{TT}, v{LR}, v{GR}, v{BS+t}
            v_fma_f32 v{TT+1}, v{LR}, v{GI}, v{BS+16+t}
            v_fma_f32 v{TT}, -v{LI}, v{GI}, v{TT}
            v_fma_f32 v{GI}, v{LI}, v{GR}, v{TT+1}
            v_mov_b32 v{GR}, v{TT}
            v_mul_f32 v{BS+t}, v{CR}, v{TT}
            v_mul_f32 v{BS+16+t}, v{CR}, v{GI}
            v_fma_f32 v{BS+t}, -v{CI}, v{GI}, v{BS+t}
            v_fma_f32 v{BS+16+t}, -v{CI}, v{TT}, -v{BS+16+t}
            """)
        a(f"""
        s_lshl_b32 s34, s{S_MB}, 2
        s_add_u32 s34, s34, s{S_WAVE}
        s_mul_i32 s34, s34, 36
        s_add_u32 s34, s34, s29
        s_lshl_b32 s34, s34, 11
        s_add_u32 s34, s34, {HH}
        s_add_u32 s35, s34, {18*2048}
        v_lshrrev_b32 v{TT}, 5, v2
        v_and_b32 v{AD}, 31, v2
        v_lshlrev_b32 v{AD}, 4, v{AD}
        v_mul_u32_u24 v{TT}, {1024+128}, v{TT}
        v_xor_b32 v{AD}, v{AD}, v{TT}              ; h*1024 + (ch ^ 8h)*16
        v_xor_b32 v{AD+1}, {512+64}, v{AD}
        """)
        for c in range(2):
            for jj in range(2):
                d = BS + 16 * c + 8 * jj
                for r in range(4): a(f"v_cvt_pk_bf16_f32 v{d+r}, v{d+2*r}, v{d+2*r+1}")
                a(f"buffer_store_dwordx4 v[{d}:{d+3}], v{AD+jj}, s[4:7], s{34+c} offen {WT}")
        a(f"""
        s_cmp_eq_u32 s29, s{S_CHB}
        s_cbranch_scc1 L_p2end
        s_nop 1
        """)
        for i in range(42): a(f"v_mov_b32 v{BS+i}, v{BSA+i}")
        a(f"s_mov_b32 s29, s{S_CHB}\ns_branch L_p2")
        a.label("L_p2end")

    def p3(self):
        a = self.a
        MB, NB, LW, SI, KK, HB, CB, SL, SS, SLOT, DL, TT_ = 40, 41, 42, 43, 44, 45, 46, 47, 48, 49, 50, 51
        a(f"""
        s_cmp_ge_u32 s{S_IDX}, 30
        s_cbranch_scc1 L_exit
        s_barrier
        s_lshl_b32 s{MB}, s{S_XCD}, 1
        s_and_b32 s30, s{S_IDX}, 1
        s_add_u32 s{MB}, s{MB}, s30
        s_lshr_b32 s{NB}, s{S_IDX}, 1
        s_and_b32 s{LW}, s{S_WAVE}, 3
        s_lshl_b32 s{TT_}, s{MB}, 2
        s_add_u32 s{TT_}, s{TT_}, s{LW}
        """)
        self.srd(16, P_OUT, OUT_BYTES)
        a(f"s_cmp_ge_u32 s{S_IDX}, 18\ns_cbranch_scc1 L_a3\ns_cmp_lt_u32 s{S_WAVE}, 4\ns_cbranch_scc1 L_b3c")
        VB, T = 4, 20
        self.make_vx(VB, 2, "4", "1", "16", "8", T)
        a(f"""
        s_mul_i32 s34, s{MB}, {72*4}
        s_add_u32 s34, s34, {F3}
        v_min_u32 v{T+4}, 17, v2
        v_lshlrev_b32 v{T+4}, 4, v{T+4}
        """)
        self.poll("L_pollF3", T + 8, T + 4, "s34", n=4)
        a(f"""
        s_mul_i32 s{HB}, s{TT_}, 73728
        s_add_u32 s{HB}, s{HB}, {HH}
        s_lshl_b32 s30, s{NB}, 6
        s_lshl_b32 s31, s{LW}, 4
        s_add_u32 s30, s30, s31
        s_mul_i32 s{CB}, s30, 1152
        s_mov_b32 s14, {576*1152}
        s_mov_b32 s15, 0x20000
        s_mov_b32 s{SI}, 0
        s_lshl_b32 s{KK}, s{S_ROT}, 1
        s_lshl_b32 s{SL}, s{LW}, 12
        """)
        a.label("L_b3l_loop")
        a(f"""
        s_cmp_lt_u32 s{SI}, 3
        s_cbranch_scc1 L_b3l_nb
        s_waitcnt vmcnt(12)
        s_barrier
        """)
        a.label("L_b3l_nb")
        a(f"""
        s_mov_b32 m0, s{SL}
        s_lshl_b32 s31, s{KK}, 12
        s_add_u32 s31, s31, s{HB}
        """)
        for n in range(4): a(f"buffer_load_dwordx4 v3, s[4:7], s31 offen offset:{n*1024} sc0 sc1 lds")
        a(f"""
        s_cmp_lt_u32 s{KK}, 9
        s_cselect_b32 s12, s{P_CRE}, s{P_CIM}
        s_cselect_b32 s13, s{P_CRE+1}, s{P_CIM+1}
        s_cselect_b32 s30, 0, 9
        s_and_b32 s13, s13, 0xffff
        s_sub_u32 s30, s{KK}, s30
        s_lshl_b32 s30, s30, 7
        s_lshl_b32 s32, s{LW}, 11
        s_sub_u32 s32, s{SL}, s32
        s_add_u32 m0, s32, 16384
        s_add_u32 s31, s30, s{CB}
        """)
        for n in range(2): a(f"buffer_load_dwordx4 v{VB+n}, s[12:15], s31 offen offset:{n*1024} lds")
        a(f"""
        s_add_u32 s{SL}, s{SL}, 32768
        s_and_b32 s{SL}, s{SL}, 0x1ffff
        s_add_u32 s{KK}, s{KK}, 1
        s_cmp_eq_u32 s{KK}, 18
        s_cselect_b32 s{KK}, 0, s{KK}
        s_add_u32 s{SI}, s{SI}, 1
        s_cmp_lt_u32 s{SI}, 18
        s_cbranch_scc1 L_b3l_loop
        s_waitcnt vmcnt(12)
        s_barrier
        s_waitcnt vmcnt(6)
        s_barrier
        s_waitcnt vmcnt(0)
        s_barrier
        s_branch L_exit
        """)
        a.label("L_b3c")
        AC, AH, EA, FC, FH, ACC, T, XD = 4, 8, 10, 16, 32, 40, 72, 84
        a(f"""
        v_lshrrev_b32 v{T+1}, 5, v2
        v_bfe_u32 v{T+2}, v2, 2, 2
        v_lshl_add_u32 v{T+3}, v{T+1}, 3, v{T+2}
        v_bfe_u32 v{T+4}, v2, 4, 1
        v_bfe_u32 v{T+5}, v2, 1, 1
        v_lshl_add_u32 v{T+4}, v{T+4}, 1, v{T+5}    ; j
        v_lshlrev_b32 v{T+5}, 2, v{T+4}
        v_xor_b32 v{T+6}, v{T+3}, v{T+5}
        v_and_b32 v{T+5}, 1, v2
        v_lshlrev_b32 v{T+5}, 3, v{T+5}
        v_lshl_add_u32 v{T+5}, v{T+4}, 9, v{T+5}
        s_lshl_b32 s30, s{LW}, 12
        v_add_u32 v{T+5}, s30, v{T+5}
        v_lshl_add_u32 v{AH}, v{T+6}, 4, v{T+5}
        v_xor_b32 v{AH+1}, 64, v{AH}
        v_and_b32 v{T}, 31, v2
        v_bfe_u32 v{T+2}, v{T}, 1, 3
        v_xor_b32 v{T+2}, v{T+2}, v{T+1}
        v_lshlrev_b32 v{T+3}, 7, v{T}
        v_add_u32 v{T+3}, 16384, v{T+3}
        """)
        for s in range(4): a(f"v_xor_b32 v{T+4}, {2*s}, v{T+2}\nv_lshl_add_u32 v{AC+s}, v{T+4}, 4, v{T+3}")
        a(f"""
        v_mul_u32_u24 v{EA}, 4608, v{T}
        v_lshl_add_u32 v{EA}, v{T+1}, 4, v{EA}
        v_mul_u32_u24 v{EA+1}, 1152, v{T}
        v_lshl_add_u32 v{EA+1}, v{T+1}, 3, v{EA+1}
        s_mul_i32 s30, s{TT_}, {32*1152}
        s_lshl_b32 s31, s{NB}, 7
        s_add_u32 s30, s30, s31
        v_add_u32 v{EA+1}, s30, v{EA+1}
        v_lshl_add_u32 v{T+8}, v{T+1}, 3, s31
        """)
        for e in range(8):
            a(f"global_load_dwordx2 v[{XD+2*e}:{XD+2*e+1}], v{EA+1}, s[{P_BX}:{P_BX+1}] offset:{e*16}")
            a(f"global_load_dwordx2 v[{XD+16+2*e}:{XD+16+2*e+1}], v{T+8}, s[{P_DSK}:{P_DSK+1}] offset:{e*16}")
        a("s_waitcnt vmcnt(0)")
        for e in range(8):
            d = ACC + 4 * e
            for q in range(2):
                x = XD + 2 * e + q; k = XD + 16 + 2 * e + q
                a(f"""
                v_lshlrev_b32 v{T+2}, 16, v{x}
                v_lshlrev_b32 v{T+3}, 16, v{k}
                v_and_b32 v{x}, 0xffff0000, v{x}
                v_and_b32 v{k}, 0xffff0000, v{k}
                v_mul_f32 v{d+2*q}, v{T+2}, v{T+3}
                v_mul_f32 v{d+2*q+1}, v{x}, v{k}
                """)
        a(f"s_mov_b32 s{SS}, 0\ns_mov_b32 s{SLOT}, 0")
        a.label("L_b3c_loop")
        a("s_barrier")
        def reads(s, buf):
            for nt in range(2): a(f"ds_read_b128 v[{FC+buf*8+nt*4}:{FC+buf*8+nt*4+3}], v{AC+s} offset:{nt*4096}")
            for hf in range(2):
                r = FH + buf * 4 + hf * 2
                a(f"ds_read_b64_tr_b16 v[{r}:{r+1}], v{AH+hf} offset:{(s>>1)*2048 + (s&1)*256}")
        reads(0, 0)
        for s in range(4):
            if s < 3: reads(s + 1, (s + 1) % 2); a("s_waitcnt lgkmcnt(4)")
            else: a("s_waitcnt lgkmcnt(0)")
            buf = s % 2
            for nt in range(2):
                d = ACC + nt * 16
                a(f"v_mfma_f32_32x32x16_bf16 v[{d}:{d+15}], v[{FC+buf*8+nt*4}:{FC+buf*8+nt*4+3}], v[{FH+buf*4}:{FH+buf*4+3}], v[{d}:{d+15}]")
        a(f"""
        s_add_u32 s30, s{SLOT}, 32768
        s_and_b32 s30, s30, 0x1ffff
        s_sub_u32 s{DL}, s30, s{SLOT}
        s_mov_b32 s{SLOT}, s30
        s_add_u32 s{SS}, s{SS}, 1
        """)
        for r in (AC, AC + 1, AC + 2, AC + 3, AH, AH + 1): a(f"v_add_u32 v{r}, s{DL}, v{r}")
        a(f"""
        s_cmp_lt_u32 s{SS}, 18
        s_cbranch_scc1 L_b3c_loop
        s_mul_i32 s30, s{TT_}, {32*4608}
        s_lshl_b32 s31, s{NB}, 8
        s_add_u32 s30, s30, s31
        s_add_u32 s30, s30, {576*4}
        """)
        self.stamp(11)
        for e in range(8):
            d = ACC + 4 * e
            a(f"buffer_store_dwordx4 v[{d}:{d+3}], v{EA}, s[16:19], s30 offen offset:{e*32}")
        a("s_branch L_exit")
        a.label("L_a3")
        VW, VL, AW, EA, T, FW, ACC, FO = 4, 5, 6, 8, 10, 20, 44, 92
        self.srd(12, P_WO, 576 * 1152)
        a(f"""
        s_sub_u32 s{NB}, s{NB}, 9
        v_lshrrev_b32 v{T}, 2, v2              ; kappa
        v_and_b32 v{T+1}, 3, v2
        v_and_b32 v{T+2}, 3, v{T}
        v_bfe_u32 v{T+3}, v{T}, 2, 1
        v_lshl_add_u32 v{T+2}, v{T+3}, 3, v{T+2}
        v_lshrrev_b32 v{T+3}, 3, v{T}
        v_lshl_add_u32 v{T+2}, v{T+3}, 2, v{T+2}
        v_mul_u32_u24 v{T+2}, 1152, v{T+2}
        v_lshl_add_u32 v{VW}, v{T+1}, 4, v{T+2}
        v_lshrrev_b32 v{T+2}, 1, v{T}
        v_mul_u32_u24 v{T+2}, 18, v{T+2}
        v_and_b32 v{T+3}, 1, v{T}
        v_add3_u32 v{T+2}, v{T+2}, v{T+3}, 16
        v_mul_u32_u24 v{T+2}, 1152, v{T+2}
        v_lshl_add_u32 v{VL}, v{T+1}, 4, v{T+2}
        s_mul_i32 s30, s{NB}, 192
        s_mul_i32 s31, s{S_WAVE}, {18*1152}
        s_add_u32 s31, s31, s30
        s_mul_i32 s32, s{S_WAVE}, 3072
        """)
        for r in range(4):
            for nt in range(3):
                a(f"s_add_u32 m0, s32, {r*8*3072 + nt*1024}\ns_add_u32 s34, s31, {r*8*18*1152 + nt*64}")
                a(f"buffer_load_dwordx4 v{VW}, s[12:15], s34 offen lds")
        a(f"""
        s_cmp_lt_u32 s{S_WAVE}, 4
        s_cbranch_scc1 L_a3c
        s_mul_i32 s31, s{LW}, {8*18*1152}
        s_add_u32 s31, s31, s30
        s_mul_i32 s32, s{LW}, 3072
        """)
        for nt in range(3):
            a(f"s_add_u32 m0, s32, {32*3072 + nt*1024}\ns_add_u32 s34, s31, {nt*64}")
            a(f"buffer_load_dwordx4 v{VL}, s[12:15], s34 offen lds")
        a("s_waitcnt vmcnt(0)\ns_barrier\ns_branch L_exit")
        a.label("L_a3c")
        a(f"""
        s_lshl_b32 s34, s{TT_}, 7
        s_add_u32 s34, s34, {F4}
        v_and_b32 v{T}, 31, v2
        v_lshlrev_b32 v{T+4}, 2, v{T}
        v_lshrrev_b32 v{T+1}, 5, v2
        v_bfe_u32 v{T+2}, v2, 2, 2
        v_lshl_add_u32 v{T+3}, v{T+1}, 3, v{T+2}
        v_lshlrev_b32 v{T+3}, 6, v{T+3}
        v_bfe_u32 v{T+2}, v2, 4, 1
        v_lshl_add_u32 v{T+3}, v{T+2}, 5, v{T+3}
        v_and_b32 v{T+2}, 3, v2
        v_lshl_add_u32 v{AW}, v{T+2}, 3, v{T+3}
        v_add_u32 v{AW+1}, {18*3072}, v{AW}
        v_mul_u32_u24 v{EA}, 4608, v{T}
        v_lshl_add_u32 v{EA}, v{T+1}, 4, v{EA}
        v_lshl_add_u32 v{EA+1}, v{T+1}, 9, v{T+4}
        """)
        self.poll("L_pollF4", T + 5, T + 4, "s34", n=1)
        self.stamp(10)
        a(f"s_mul_i32 s30, s{TT_}, {36*1024}\ns_add_u32 s30, s30, {OW}\ns_barrier")
        nld = [0]
        def oload(s):
            r = FO + 4 * s
            if s < 32:
                a(f"buffer_load_dwordx4 v[{r}:{r+3}], v3, s[4:7], s30 offen offset:{(s%4)*1024} sc0 sc1")
                if s % 4 == 3: a("s_add_u32 s30, s30, 4096")
                return 1
            for j in range(4):
                a(f"buffer_load_dword v{r+j}, v{EA+1}, s[4:7], s30 offen offset:{(s-32)*1024 + j*128} sc0 sc1")
            return 4
        def reads(s, buf):
            st, off = (0, s * 3072) if s < 18 else (1, (s - 18) * 3072)
            for nt in range(3):
                for hf in range(2):
                    r = FW + buf * 12 + nt * 4 + hf * 2
                    a(f"ds_read_b64_tr_b16 v[{r}:{r+1}], v{AW+st} offset:{off + nt*1024 + hf*256}")
        D = 10
        cnt = [1] * 32 + [4] * 4
        for s in range(D): oload(s)
        reads(0, 0)
        for s in range(36):
            if s + D < 36: oload(s + D)
            if s < 35: reads(s + 1, (s + 1) % 2)
            out = sum(cnt[s + 1:min(36, s + D + 1)])
            a(f"s_waitcnt vmcnt({out}) lgkmcnt({6 if s < 35 else 0})")
            for nt in range(3):
                d = ACC + nt * 16; w = FW + (s % 2) * 12 + nt * 4; o = FO + 4 * s
                c = "0" if s == 0 else f"v[{d}:{d+15}]"
                a(f"v_mfma_f32_32x32x16_bf16 v[{d}:{d+15}], v[{w}:{w+3}], v[{o}:{o+3}], {c}")
        a(f"""
        s_mul_i32 s30, s{TT_}, {32*4608}
        s_mul_i32 s31, s{NB}, 384
        s_add_u32 s30, s30, s31
        s_nop 8
        """)
        self.stamp(11)
        for e in range(12):
            d = ACC + 4 * e
            a(f"buffer_store_dwordx4 v[{d}:{d+3}], v{EA}, s[16:19], s30 offen offset:{e*32}")

    def finish(self):
        a = self.a
        a.label("L_exit")
        if self.stamp_on:
            self.stamp(12)
            a("s_waitcnt vmcnt(0)")
            self.stamp(13); self.stamp(31, True)
            a(f"""
            s_lshl_b32 s30, s2, 3
            s_add_u32 s30, s30, s{S_WAVE}
            s_lshl_b32 s30, s30, 7
            s_add_u32 s30, s30, {STB}
            v_lshlrev_b32 v3, 2, v2
            s_mov_b32 exec_hi, 0
            buffer_store_dword v{VST}, v3, s[4:7], s30 offen
            """)
        a.label("L_end")
        a("s_endpgm")

def gen_mega(name, stamp=False, stop=99):
    g = G(stamp, stop)
    g.a.raw(kernel_header(name))
    g.prologue(); g.p1_loader(); g.p1_compute()
    if stop >= 2: g.attention()
    if stop >= 3: g.p3()
    g.finish()
    return g.a.text(), kernel_desc(name, 256, 96)

if __name__ == "__main__":
    import sys
    from build import *
    KN = NAME + "_kernel"
    out = sys.argv[1]; stamp = len(sys.argv) > 2 and sys.argv[2] == "1"; stop = int(sys.argv[3]) if len(sys.argv) > 3 else 99
    compose([gen_mega(KN, stamp, stop)], [(KN, 256, 512, LDS_TOTAL)], out)
    assemble(out)
```

```python
from asmlib import *
from lay2 import *
import math, struct
def f32(x): return "0x%08x" % struct.unpack("<I", struct.pack("<f", x))[0]
QSCALE = f32(18 ** -0.5 * math.log2(math.e))
WT = "sc0 sc1"
SPIN_MAX = 20000
P_AX, P_WQKV, P_WO, P_BX, P_LRE, P_LIM, P_BRE, P_BIM, P_CRE, P_CIM, P_LDT, P_DSK, P_OUT, P_DBG, P_WS = range(64, 94, 2)
S_WAVE, S_XCD, S_IDX, S_MB, S_NB, S_TYPE, S_CHB, S_CHA, S_HALF, S_ROT = 3, 20, 21, 22, 23, 24, 25, 26, 27, 28
BS, BSA = 192, 144
LR, LI, CR, CI, LCR, LCI, PWR, PWI, MUR, MUI = range(BS + 32, BS + 42)
VST = 255

class G:
    def __init__(self, stamp=False, stop=99, opt=None):
        self.a = Asm(); self.stamp_on = stamp; self.stop = stop; self.opt = opt or {}
    def stamp(self, k, real=False):
        if not self.stamp_on: return
        op = "s_memrealtime" if real else "s_memtime"
        self.a(f"{op} s[94:95]\ns_waitcnt lgkmcnt(0)\nv_writelane_b32 v{VST}, s94, {k}")
    def stampx(self, base):
        if not self.stamp_on: return
        self.a(f"s_memtime s[94:95]\ns_add_u32 m0, s96, {base}\ns_add_u32 s96, s96, 1\ns_waitcnt lgkmcnt(0)\nv_writelane_b32 v{VST}, s94, m0")
    def srd(self, d, p, n):
        self.a(f"s_mov_b32 s{d}, s{p}\ns_and_b32 s{d+1}, s{p+1}, 0xffff\ns_mov_b32 s{d+2}, {n}\ns_mov_b32 s{d+3}, 0x20000")

    def prologue(self):
        a = self.a
        a(f"""
        s_cmp_ge_u32 s2, 256
        s_cbranch_scc1 L_end
        s_load_dwordx16 s[64:79], s[0:1], 0
        s_load_dwordx8 s[80:87], s[0:1], 64
        s_load_dwordx4 s[88:91], s[0:1], 96
        s_load_dwordx2 s[92:93], s[0:1], 112
        v_lshrrev_b32 v1, 6, v0
        v_and_b32 v2, 63, v0
        v_readfirstlane_b32 s{S_WAVE}, v1
        v_lshlrev_b32 v3, 4, v2
        s_and_b32 s{S_XCD}, s2, 7
        s_lshr_b32 s{S_IDX}, s2, 3
        """)
        a(f"""
        s_cmp_lg_u32 s{S_WAVE}, 3
        s_cbranch_scc1 L_nopf
        s_getpc_b64 s[30:31]
        """)
        a.label("L_pc")
        a(f"""
        s_lshl_b32 s32, s{S_IDX}, 10
        s_cmp_ge_u32 s32, L_end-L_pc-1024
        s_cbranch_scc1 L_nopf
        s_add_u32 s30, s30, s32
        s_addc_u32 s31, s31, 0
        v_mov_b32 v5, s31
        v_add_co_u32 v4, vcc, s30, v3
        s_nop 1
        v_addc_co_u32 v5, vcc, 0, v5, vcc
        global_load_dwordx4 v[136:139], v[4:5], off
        """)
        a.label("L_nopf")
        if self.stamp_on: a(f"v_mov_b32 v{VST}, 0\ns_mov_b32 s96, 0")
        self.stamp(0); self.stamp(14, True)
        a(f"""
        s_and_b32 s30, s{S_XCD}, 3
        s_lshl_b32 s30, s30, 2
        s_and_b32 s31, s{S_IDX}, 3
        s_add_u32 s{S_MB}, s30, s31
        s_lshr_b32 s30, s{S_XCD}, 2            ; hg
        s_lshr_b32 s31, s{S_IDX}, 2
        s_mul_i32 s32, s30, 7
        s_add_u32 s{S_NB}, s32, s31
        s_mul_i32 s32, s30, 9
        s_add_u32 s{S_CHB}, s32, s31
        s_add_u32 s{S_CHA}, s32, 8
        s_cmp_ge_u32 s{S_NB}, 9
        s_cselect_b32 s{S_TYPE}, 1, 0
        s_cmp_ge_u32 s{S_IDX}, 28
        s_cselect_b32 s{S_TYPE}, 2, s{S_TYPE}
        s_lshl_b32 s32, s{S_MB}, 1
        s_add_u32 s32, s32, s{S_CHB}           ; 0..47
        s_mul_i32 s33, s32, 57
        s_lshr_b32 s33, s33, 9
        s_mul_i32 s33, s33, 9
        s_sub_u32 s{S_ROT}, s32, s33           ; rotation 0..8
        s_waitcnt lgkmcnt(0)
        """)
        if self.opt.get("norot"): a(f"s_mov_b32 s{S_ROT}, 0")
        self.srd(4, P_WS, WS_BYTES)
        a(f"s_cmp_lt_u32 s{S_WAVE}, 4\ns_cbranch_scc1 L_p1_compute")

    def make_vx(self, dst, n, sa, sb, sc1, sc0, T):
        a = self.a
        a(f"""
        v_lshrrev_b32 v{T}, 3, v2
        v_and_b32 v{T+1}, 7, v2
        v_lshrrev_b32 v{T+2}, 1, v{T}
        v_xor_b32 v{T+1}, v{T+1}, v{T+2}
        v_lshrrev_b32 v{T+2}, 2, v{T}
        v_and_b32 v{T}, 3, v{T}
        v_mul_u32_u24 v{T+2}, {sa}, v{T+2}
        v_mul_u32_u24 v{T}, {sb}, v{T}
        v_add_u32 v{T}, v{T}, v{T+2}
        v_mul_u32_u24 v{T}, 1152, v{T}
        v_lshl_add_u32 v{dst}, v{T+1}, 4, v{T}
        v_xor_b32 v{T+1}, 4, v{T+1}
        v_lshl_add_u32 v{dst+1}, v{T+1}, 4, v{T}
        s_mul_i32 s34, {sc0}, 1152
        s_sub_u32 s34, s34, 1024
        v_add_u32 v{dst+1}, s34, v{dst+1}
        """)
        if n == 4:
            a(f"""
            s_mul_i32 s34, {sc1}, 1152
            s_sub_u32 s34, s34, 2048
            v_add_u32 v{dst+2}, s34, v{dst}
            v_add_u32 v{dst+3}, s34, v{dst+1}
            """)

    def p1_loader(self):
        a = self.a
        VX, VX2, VW, VB, T, VD = 4, 8, 12, 16, 20, 28
        LW, SI, KK, XB, WB, SL, LT = 40, 41, 42, 43, 44, 45, 46
        a.label("L_p1_loader")
        a(f"s_sub_u32 s{LW}, s{S_WAVE}, 4\nv_mov_b32 v{VD+1}, 0\nv_mov_b32 v{VD}, 0")
        def setup_b1(chs):
            self.srd(8, P_BX, 2048 * 1152)
            a(f"""
            s_cmp_lt_u32 s{LW}, 2
            s_cselect_b32 s12, s{P_BRE}, s{P_BIM}
            s_cselect_b32 s13, s{P_BRE+1}, s{P_BIM+1}
            s_and_b32 s13, s13, 0xffff
            s_mov_b32 s14, {576*1152}
            s_mov_b32 s15, 0x20000
            s_lshl_b32 s30, s{S_MB}, 7
            s_lshl_b32 s31, s{LW}, 5
            s_add_u32 s30, s30, s31
            s_mul_i32 s{XB}, s30, 1152
            s_lshl_b32 s30, s{chs}, 5
            s_and_b32 s31, s{LW}, 1
            s_lshl_b32 s31, s31, 4
            s_add_u32 s30, s30, s31
            s_mul_i32 s{WB}, s30, 1152
            s_mov_b32 s{LT}, 1
            v_mov_b32 v{VX}, v{VX2}
            v_mov_b32 v{VX+1}, v{VX2+1}
            v_mov_b32 v{VX+2}, v{VX2+2}
            v_mov_b32 v{VX+3}, v{VX2+3}
            """)
        a(f"s_cmp_eq_u32 s{S_TYPE}, 2\ns_cbranch_scc1 L_p1l_spare")
        a(f"""
        s_cmp_eq_u32 s{S_TYPE}, 0
        s_cselect_b32 s36, 2, 1
        s_cselect_b32 s37, 32, 16
        s_cselect_b32 s38, 16, 4
        s_lshr_b32 s30, s{LW}, 1
        s_lshl_b32 s30, s30, 6
        s_and_b32 s31, s{LW}, 1
        s_add_u32 s30, s30, s31
        s_lshl_b32 s31, s{LW}, 5
        s_cmp_eq_u32 s{S_TYPE}, 0
        s_cselect_b32 s30, s30, s31
        s_lshl_b32 s31, s{S_MB}, 7
        s_add_u32 s30, s30, s31
        s_mul_i32 s{XB}, s30, 1152
        s_mul_i32 s30, s{LW}, {16*3456}
        s_lshl_b32 s31, s{S_NB}, 8
        s_add_u32 s{WB}, s30, s31
        s_mov_b32 s{LT}, 0
        """)
        self.make_vx(VX, 4, "8", "s36", "s37", "s38", T)
        a(f"""
        v_lshrrev_b32 v{T}, 4, v2
        v_and_b32 v{T+1}, 15, v2
        v_lshlrev_b32 v{T+2}, 2, v{T}
        v_xor_b32 v{T+1}, v{T+1}, v{T+2}
        v_mul_u32_u24 v{T}, 3456, v{T}
        v_lshl_add_u32 v{VW}, v{T+1}, 4, v{T}
        v_add_u32 v{VW+1}, {4*3456-1024}, v{VW}
        v_add_u32 v{VW+2}, {2*(4*3456-1024)}, v{VW}
        v_add_u32 v{VW+3}, {3*(4*3456-1024)}, v{VW}
        v_mov_b32 v{VB}, 0
        v_mov_b32 v{VB+1}, 0
        """)
        self.srd(8, P_AX, 2048 * 1152); self.srd(12, P_WQKV, 576 * 3456)
        a("s_branch L_p1l_go")
        a.label("L_p1l_spare")
        self.make_vx(VX2, 4, "16", "1", "8", "4", T)
        self.make_vx(VB, 2, "4", "1", "16", "8", T)
        for i in range(4): a(f"v_mov_b32 v{VW+i}, 0")
        setup_b1(S_CHA)
        a.label("L_p1l_go")
        a(f"""
        s_mov_b32 s{SI}, 0
        s_mov_b32 s{KK}, s{S_ROT}
        s_lshl_b32 s{SL}, s{LW}, 12
        """)
        a.label("L_p1l_loop")
        a(f"""
        s_cmp_lt_u32 s{SI}, 3
        s_cbranch_scc1 L_p1l_nobar
        s_waitcnt vmcnt(12)
        s_barrier
        s_cmp_eq_u32 s{SI}, 9
        s_cbranch_scc1 L_p1l_switch
        s_cmp_eq_u32 s{SI}, 15
        s_cbranch_scc1 L_p1l_flag
        """)
        a.label("L_p1l_nobar")
        a(f"""
        s_mov_b32 m0, s{SL}
        s_lshl_b32 s30, s{KK}, 7
        s_add_u32 s31, s30, s{XB}
        """)
        for n in range(4): a(f"buffer_load_dwordx4 v{VX+n}, s[8:11], s31 offen offset:{n*1024} lds")
        a(f"""
        s_cmp_lg_u32 s{LT}, 0
        s_cbranch_scc1 L_p1l_b
        s_add_u32 m0, s{SL}, 16384
        s_mul_i32 s31, s{KK}, {64*3456}
        s_add_u32 s31, s31, s{WB}
        """)
        for n in range(4): a(f"buffer_load_dwordx4 v{VW+n}, s[12:15], s31 offen offset:{n*1024} lds")
        a("s_branch L_p1l_next")
        a.label("L_p1l_b")
        a(f"""
        s_lshl_b32 s32, s{LW}, 11
        s_sub_u32 s32, s{SL}, s32
        s_add_u32 m0, s32, 16384
        s_add_u32 s31, s30, s{WB}
        """)
        for n in range(2): a(f"buffer_load_dwordx4 v{VB+n}, s[12:15], s31 offen offset:{n*1024} lds")
        a.label("L_p1l_next")
        a(f"""
        s_add_u32 s{SL}, s{SL}, 32768
        s_and_b32 s{SL}, s{SL}, 0x1ffff
        s_add_u32 s{KK}, s{KK}, 1
        s_cmp_eq_u32 s{KK}, 9
        s_cselect_b32 s{KK}, 0, s{KK}
        s_add_u32 s{SI}, s{SI}, 1
        s_cmp_lt_u32 s{SI}, 18
        s_cbranch_scc1 L_p1l_loop
        s_waitcnt vmcnt(12)
        s_barrier
        s_waitcnt vmcnt(6)
        s_barrier
        s_waitcnt vmcnt(0)
        s_barrier
        s_branch L_p1_join
        """)
        a.label("L_p1l_switch")
        self.make_vx(VX2, 4, "16", "1", "8", "4", T)
        self.make_vx(VB, 2, "4", "1", "16", "8", T)
        setup_b1(S_CHB)
        a(f"global_load_dword v{VD}, v{VD+1}, s[{P_DBG}:{P_DBG+1}] sc0 sc1\ns_branch L_p1l_nobar")
        a.label("L_p1l_flag")
        a(f"s_mov_b32 s33, 0")
        a.label("L_p1l_chk")
        a(f"""
        v_readfirstlane_b32 s30, v{VD}
        s_cmp_eq_u32 s30, 1
        s_cbranch_scc1 L_p1l_ok
        s_add_u32 s33, s33, 1
        s_cmp_gt_u32 s33, {SPIN_MAX}
        s_cbranch_scc1 L_p1l_ok
        global_load_dword v{VD}, v{VD+1}, s[{P_DBG}:{P_DBG+1}] sc0 sc1
        s_waitcnt vmcnt(0)
        s_branch L_p1l_chk
        """)
        a.label("L_p1l_ok")
        a(f"""
        s_cmp_lg_u32 s{S_WAVE}, 7
        s_cbranch_scc1 L_p1l_nobar
        s_lshl_b32 s30, s2, 2
        s_add_u32 s30, s30, {F1}
        v_mov_b32 v{VD}, 1
        s_mov_b64 exec, 1
        buffer_store_dword v{VD}, v{VD+1}, s[4:7], s30 offen {WT}
        s_mov_b64 exec, -1
        s_branch L_p1l_nobar
        """)

    def p1_compute(self):
        a = self.a
        AX, AW, AB, Z = 4, 8, 8, 12
        FX, FW, ACC, T = 16, 32, 48, 112
        SS, SLOT, DL, WM, WN = 40, 41, 42, 43, 44
        a.label("L_p1_compute")
        a(f"""
        s_or_b32 s30, s2, s{S_WAVE}
        s_cmp_lg_u32 s30, 0
        s_cbranch_scc1 L_p1c_nz
        v_mov_b32 v{T}, 0
        v_mov_b32 v{T+1}, 0
        v_mov_b32 v{T+2}, 0
        v_mov_b32 v{T+3}, 0
        s_mov_b32 s30, {FL}
        """)
        for i in range(FLBYTES // 1024):
            a(f"buffer_store_dwordx4 v[{T}:{T+3}], v3, s[4:7], s30 offen offset:{(i%4)*1024} {WT}")
            if i % 4 == 3: a("s_add_u32 s30, s30, 4096")
        a(f"""
        s_waitcnt vmcnt(0)
        v_mov_b32 v{T+1}, 1
        s_mov_b64 exec, 1
        global_store_dword v{T}, v{T+1}, s[{P_DBG}:{P_DBG+1}] {WT}
        s_mov_b64 exec, -1
        """)
        a.label("L_p1c_nz")
        a(f"""
        v_and_b32 v{T}, 31, v2
        v_lshrrev_b32 v{T+1}, 5, v2
        v_bfe_u32 v{T+2}, v{T}, 1, 3
        v_xor_b32 v{T+2}, v{T+2}, v{T+1}
        v_lshlrev_b32 v{T+3}, 7, v{T}
        """)
        for s in range(4): a(f"v_xor_b32 v{T+4}, {2*s}, v{T+2}\nv_lshl_add_u32 v{Z+s}, v{T+4}, 4, v{T+3}")
        a(f"""
        s_mov_b32 s{SLOT}, 0
        s_mov_b32 s{S_HALF}, 0
        s_mov_b32 s29, s{S_CHA}
        s_cmp_eq_u32 s{S_TYPE}, 2
        s_cbranch_scc1 L_b1
        s_lshr_b32 s{WM}, s{S_WAVE}, 1
        s_and_b32 s{WN}, s{S_WAVE}, 1
        s_lshl_b32 s30, s{WM}, 13
        """)
        for s in range(4): a(f"v_add_u32 v{AX+s}, s30, v{Z+s}")
        a(f"""
        v_bfe_u32 v{T+2}, v2, 2, 2
        v_lshl_add_u32 v{T+3}, v{T+1}, 3, v{T+2}
        v_lshlrev_b32 v{T+3}, 8, v{T+3}
        v_bfe_u32 v{T+4}, v2, 4, 1
        v_lshl_add_u32 v{T+3}, v{T+4}, 5, v{T+3}
        v_and_b32 v{T+4}, 3, v2
        v_lshl_add_u32 v{T+3}, v{T+4}, 3, v{T+3}
        v_add_u32 v{T+3}, 16384, v{T+3}
        s_lshl_b32 s30, s{WN}, 1
        v_xor_b32 v{T+4}, s30, v{T+2}
        v_lshl_add_u32 v{AW}, v{T+4}, 6, v{T+3}
        v_xor_b32 v{AW+1}, 64, v{AW}
        """)
        for i in range(64): a(f"v_mov_b32 v{ACC+i}, 0")
        a(f"s_mov_b32 s{SS}, 0\ns_cmp_eq_u32 s{S_TYPE}, 1\ns_cbranch_scc1 L_a1v")
        def advance(regs):
            a(f"""
            s_add_u32 s30, s{SLOT}, 32768
            s_and_b32 s30, s30, 0x1ffff
            s_sub_u32 s{DL}, s30, s{SLOT}
            s_mov_b32 s{SLOT}, s30
            s_add_u32 s{SS}, s{SS}, 1
            """)
            for r in regs: a(f"v_add_u32 v{r}, s{DL}, v{r}")
        def a1loop(vtype, lab):
            def reads(s, buf):
                for mt in range(2): a(f"ds_read_b128 v[{FX+buf*8+mt*4}:{FX+buf*8+mt*4+3}], v{AX+s} offset:{mt*4096}")
                for nt in range(2):
                    for hf in range(2):
                        r = FW + buf * 8 + nt * 4 + hf * 2
                        a(f"ds_read_b64_tr_b16 v[{r}:{r+1}], v{AW+nt} offset:{s*4096 + hf*1024}")
            a.label(lab)
            a("s_barrier")
            self.stampx(16)
            reads(0, 0)
            for s in range(4):
                if s < 3: reads(s + 1, (s + 1) % 2); a("s_waitcnt lgkmcnt(6)")
                else: a("s_waitcnt lgkmcnt(0)")
                buf = s % 2
                for mt in range(2):
                    for nt in range(2):
                        d = ACC + (mt * 2 + nt) * 16
                        x = f"v[{FX+buf*8+mt*4}:{FX+buf*8+mt*4+3}]"; w = f"v[{FW+buf*8+nt*4}:{FW+buf*8+nt*4+3}]"
                        A, B = (x, w) if vtype else (w, x)
                        a(f"v_mfma_f32_32x32x16_bf16 v[{d}:{d+15}], {A}, {B}, v[{d}:{d+15}]")
            advance([AX, AX + 1, AX + 2, AX + 3, AW, AW + 1])
            a(f"s_cmp_lt_u32 s{SS}, 9\ns_cbranch_scc1 {lab}")
        a1loop(False, "L_a1qk")
        self.stamp(1)
        a(f"""
        s_lshl_b32 s30, s{S_NB}, 5
        s_lshl_b32 s31, s{WN}, 4
        s_add_u32 s30, s30, s31
        s_mul_i32 s31, s{S_MB}, 288
        s_add_u32 s31, s31, s30
        s_lshl_b32 s31, s31, 10
        s_lshl_b32 s32, s{WM}, 9
        s_add_u32 s31, s31, s32
        s_add_u32 s31, s31, {QKP}
        v_lshlrev_b32 v{T+2}, 4, v{T}
        v_lshl_add_u32 v{T+2}, v{T+1}, 10, v{T+2}
        s_mov_b32 s32, {QSCALE}
        s_cmp_ge_u32 s30, 144
        s_cbranch_scc1 L_a1qk_ns
        """)
        for i in range(64): a(f"v_mul_f32 v{ACC+i}, s32, v{ACC+i}")
        a.label("L_a1qk_ns")
        for nt in range(2):
            for g in range(4):
                o = FX + ((nt * 4 + g) % 8) * 4
                for mt in range(2):
                    d = ACC + (mt * 2 + nt) * 16 + 4 * g
                    a(f"v_cvt_pk_bf16_f32 v{o+2*mt}, v{d}, v{d+1}\nv_cvt_pk_bf16_f32 v{o+2*mt+1}, v{d+2}, v{d+3}")
                a(f"buffer_store_dwordx4 v[{o}:{o+3}], v{T+2}, s[4:7], s31 offen offset:{(g%2)*2048} {WT}")
                if g % 2 == 1: a("s_add_u32 s31, s31, 4096")
        a("s_branch L_a1done")
        a1loop(True, "L_a1v")
        self.stamp(1)
        a(f"""
        s_sub_u32 s30, s{S_NB}, 9
        s_lshl_b32 s30, s30, 7
        s_lshl_b32 s31, s{WN}, 6
        s_add_u32 s30, s30, s31
        s_cmp_ge_u32 s30, 576
        s_cbranch_scc1 L_a1done
        s_lshl_b32 s31, s{S_MB}, 4
        s_lshl_b32 s32, s{WM}, 3
        s_add_u32 s31, s31, s32
        s_mul_i32 s31, s31, 9216
        s_lshl_b32 s30, s30, 4
        s_add_u32 s31, s31, s30
        s_add_u32 s31, s31, {VT}
        v_mul_u32_u24 v{T+2}, 9216, v{T+1}
        v_lshl_add_u32 v{T+2}, v{T}, 4, v{T+2}
        """)
        for mt in range(2):
            for m in range(2):
                for nt in range(2):
                    d = ACC + (mt * 2 + nt) * 16 + 8 * m
                    for r in range(4): a(f"v_cvt_pk_bf16_f32 v{d+r}, v{d+2*r}, v{d+2*r+1}")
                    a(f"buffer_store_dwordx4 v[{d}:{d+3}], v{T+2}, s[4:7], s31 offen offset:{nt*512} {WT}")
                a(f"s_add_u32 s31, s31, {2*9216}")
        a.label("L_a1done")
        self.stamp(2)
        a(f"s_mov_b32 s{S_HALF}, 1\ns_mov_b32 s29, s{S_CHB}")
        a.label("L_b1")
        LT_ = T + 8
        a(f"""
        s_lshl_b32 s30, s29, 6
        v_lshl_add_u32 v{T+2}, v{T}, 1, s30
        global_load_ushort v{LT_}, v{T+2}, s[{P_LRE}:{P_LRE+1}]
        global_load_ushort v{LT_+1}, v{T+2}, s[{P_LIM}:{P_LIM+1}]
        global_load_ushort v{LT_+2}, v{T+2}, s[{P_LDT}:{P_LDT+1}]
        s_lshl_b32 s30, s{S_WAVE}, 12
        s_add_u32 s30, s30, s{SLOT}
        s_add_u32 s31, s{SLOT}, 16384
        """)
        for s in range(4): a(f"v_add_u32 v{AX+s}, s30, v{Z+s}\nv_add_u32 v{AB+s}, s31, v{Z+s}")
        for i in range(32): a(f"v_mov_b32 v{BS+i}, 0")
        a(f"s_mov_b32 s{SS}, 0")
        a.label("L_b1loop")
        a(f"s_cmp_lg_u32 s{SS}, 3\ns_cbranch_scc1 L_b1nw\ns_waitcnt vmcnt(0)")
        a.label("L_b1nw")
        a("s_barrier")
        self.stampx(16)
        def breads(s, buf):
            a(f"ds_read_b128 v[{FX+buf*4}:{FX+buf*4+3}], v{AX+s}")
            for nt in range(2): a(f"ds_read_b128 v[{FW+buf*8+nt*4}:{FW+buf*8+nt*4+3}], v{AB+s} offset:{nt*4096}")
        breads(0, 0)
        for s in range(4):
            if s < 3: breads(s + 1, (s + 1) % 2); a("s_waitcnt lgkmcnt(3)")
            else: a("s_waitcnt lgkmcnt(0)")
            buf = s % 2
            for nt in range(2):
                d = BS + nt * 16
                a(f"v_mfma_f32_32x32x16_bf16 v[{d}:{d+15}], v[{FX+buf*4}:{FX+buf*4+3}], v[{FW+buf*8+nt*4}:{FW+buf*8+nt*4+3}], v[{d}:{d+15}]")
        advance([AX, AX + 1, AX + 2, AX + 3, AB, AB + 1, AB + 2, AB + 3])
        a(f"s_cmp_lt_u32 s{SS}, 9\ns_cbranch_scc1 L_b1loop")
        self.stamp(3)
        self.lam_calc(LT_)
        GR, GI, TT = T + 4, T + 5, T + 6
        a(f"v_mov_b32 v{GR}, v{BS}\nv_mov_b32 v{GI}, v{BS+16}")
        for t in range(1, 16):
            last = t == 15
            a(f"""
            v_fma_f32 v{TT}, v{LR}, v{GR}, v{BS+t}
            v_fma_f32 v{TT+1}, v{LR}, v{GI}, v{BS+16+t}
            v_fma_f32 v{TT}, -v{LI}, v{GI}, v{TT}
            v_fma_f32 v{GI}, v{LI}, v{GR}, v{TT+1}
            v_mov_b32 v{GR}, v{TT}
            """)
        a(f"""
        s_lshl_b32 s30, s{S_HALF}, 11
        s_lshl_b32 s31, s{S_WAVE}, 9
        s_add_u32 s30, s30, s31
        s_add_u32 s30, s30, 131072
        v_lshl_add_u32 v{TT}, v2, 3, s30
        ds_write_b64 v{TT}, v[{GR}:{GI}]
        s_cmp_lg_u32 s{S_HALF}, 0
        s_cbranch_scc1 L_b1done
        """)
        for i in range(42): a(f"v_mov_b32 v{BSA+i}, v{BS+i}")
        a(f"s_mov_b32 s{S_HALF}, 1\ns_mov_b32 s29, s{S_CHB}\ns_branch L_b1")
        a.label("L_b1done")
        a("s_waitcnt lgkmcnt(0)")
        a.label("L_p1_join")
        a("s_barrier")
        self.stamp(4)
        a(f"s_cmp_ge_u32 s{S_WAVE}, 4\ns_cbranch_scc1 L_p1_end")
        a.label("L_pb")
        EB = T + 20
        a(f"""
        s_lshl_b32 s30, s{S_HALF}, 11
        s_add_u32 s30, s30, {131072 - 256}
        v_lshl_add_u32 v{TT+2}, v2, 3, s30
        v_mov_b32 v{LCR}, 0
        v_mov_b32 v{LCI}, 0
        v_mov_b32 v{PWR}, 1.0
        v_mov_b32 v{PWI}, 0
        s_lshl_b32 s31, s{S_WAVE}, 1
        s_mov_b32 s32, 0
        s_mov_b32 exec_lo, 0
        """)
        a.label("L_pbloop")
        a(f"""
        ds_read_b64 v[{EB}:{EB+1}], v{TT+2}
        v_mul_f32 v{TT}, v{MUR}, v{PWR}
        v_mul_f32 v{TT+1}, v{MUR}, v{PWI}
        v_fma_f32 v{TT}, -v{MUI}, v{PWI}, v{TT}
        v_fma_f32 v{PWI}, v{MUI}, v{PWR}, v{TT+1}
        v_mov_b32 v{PWR}, v{TT}
        s_waitcnt lgkmcnt(0)
        v_fma_f32 v{TT}, v{MUR}, v{LCR}, v{EB}
        v_fma_f32 v{TT+1}, v{MUR}, v{LCI}, v{EB+1}
        v_fma_f32 v{TT}, -v{MUI}, v{LCI}, v{TT}
        v_fma_f32 v{LCI}, v{MUI}, v{LCR}, v{TT+1}
        v_mov_b32 v{LCR}, v{TT}
        s_mov_b32 exec_lo, -1
        v_add_u32 v{TT+2}, 256, v{TT+2}
        s_add_u32 s32, s32, 1
        s_cmp_le_u32 s32, s31
        s_cbranch_scc1 L_pbloop
        s_cmp_lg_u32 s{S_WAVE}, 3
        s_cbranch_scc1 L_pbne
        ds_read_b64 v[{EB}:{EB+1}], v{TT+2}
        s_mul_i32 s30, s{S_MB}, {576*8}
        s_lshl_b32 s31, s29, 8
        s_add_u32 s30, s30, s31
        s_add_u32 s30, s30, {EE - 256}
        v_lshlrev_b32 v{TT+2}, 3, v2
        s_waitcnt lgkmcnt(0)
        v_fma_f32 v{EB}, v{MUR}, v{LCR}, v{EB}
        v_fma_f32 v{EB+1}, v{MUR}, v{LCI}, v{EB+1}
        v_fma_f32 v{EB}, -v{MUI}, v{LCI}, v{EB}
        v_fma_f32 v{EB+1}, v{MUI}, v{LCR}, v{EB+1}
        s_mov_b32 exec_lo, 0
        buffer_store_dwordx2 v[{EB}:{EB+1}], v{TT+2}, s[4:7], s30 offen {WT}
        s_mov_b32 exec_lo, -1
        """)
        a.label("L_pbne")
        for i in range(3):
            a(f"""
            v_mul_f32 v{TT}, v{MUI}, v{MUI}
            v_mul_f32 v{TT+1}, v{MUR}, v{MUI}
            v_fma_f32 v{MUR}, v{MUR}, v{MUR}, -v{TT}
            v_add_f32 v{MUI}, v{TT+1}, v{TT+1}
            """)
        a(f"""
        s_cmp_lg_u32 s{S_TYPE}, 2
        s_cbranch_scc1 L_p1_end
        s_cmp_eq_u32 s{S_HALF}, 0
        s_cbranch_scc1 L_p1_end
        """)
        for i in range(42): a(f"v_swap_b32 v{BSA+i}, v{BS+i}")
        a(f"s_mov_b32 s{S_HALF}, 0\ns_mov_b32 s29, s{S_CHA}\ns_branch L_pb")
        a.label("L_p1_end")

    def lam_calc(self, T):
        a = self.a; L2E = f32(math.log2(math.e))
        a(f"""
        v_lshlrev_b32 v{T}, 16, v{T}
        v_lshlrev_b32 v{T+1}, 16, v{T+1}
        v_lshlrev_b32 v{T+2}, 16, v{T+2}
        v_mul_f32 v{T+2}, {L2E}, v{T+2}
        v_exp_f32 v{T+2}, v{T+2}
        s_nop 0
        v_cvt_pk_bf16_f32 v{T+2}, v{T+2}, v{T+2}
        v_lshlrev_b32 v{T+2}, 16, v{T+2}
        v_mul_f32 v{T+3}, v{T+2}, v{T}
        v_mul_f32 v{T+4}, v{T+2}, v{T+1}
        v_mul_f32 v{T+3}, {L2E}, v{T+3}
        v_mul_f32 v{T+4}, {f32(1/(2*math.pi))}, v{T+4}
        v_exp_f32 v{T+3}, v{T+3}
        v_fract_f32 v{T+4}, v{T+4}
        v_cos_f32 v{T+5}, v{T+4}
        v_sin_f32 v{T+6}, v{T+4}
        s_nop 0
        v_mul_f32 v{LR}, v{T+3}, v{T+5}
        v_mul_f32 v{LI}, v{T+3}, v{T+6}
        v_mul_f32 v{T+3}, v{T}, v{T}
        v_fmac_f32 v{T+3}, v{T+1}, v{T+1}
        v_rcp_f32 v{T+3}, v{T+3}
        v_add_f32 v{T+4}, -1.0, v{LR}
        v_mul_f32 v{T+5}, v{T+4}, v{T}
        v_fmac_f32 v{T+5}, v{LI}, v{T+1}
        v_mul_f32 v{T+6}, v{LI}, v{T}
        v_fma_f32 v{T+6}, -v{T+4}, v{T+1}, v{T+6}
        v_add_f32 v{T+3}, v{T+3}, v{T+3}
        v_mul_f32 v{CR}, v{T+5}, v{T+3}
        v_mul_f32 v{CI}, v{T+6}, v{T+3}
        v_mov_b32 v{MUR}, v{LR}
        v_mov_b32 v{MUI}, v{LI}
        """)
        for i in range(4):
            a(f"""
            v_mul_f32 v{T+3}, v{MUI}, v{MUI}
            v_mul_f32 v{T+4}, v{MUR}, v{MUI}
            v_fma_f32 v{MUR}, v{MUR}, v{MUR}, -v{T+3}
            v_add_f32 v{MUI}, v{T+4}, v{T+4}
            """)

    def poll(self, lab, vdst, voff, soff, n=1, first_issued=False):
        a = self.a
        ld = f"buffer_load_dword v{vdst}, v{voff}, s[4:7], {soff} offen sc0 sc1" if n == 1 else f"buffer_load_dwordx4 v[{vdst}:{vdst+3}], v{voff}, s[4:7], {soff} offen sc0 sc1"
        a("s_mov_b32 s33, 0")
        if first_issued: a(f"s_branch {lab}_c")
        a.label(lab)
        a(ld + "\ns_waitcnt vmcnt(0)")
        a.label(lab + "_c")
        if n == 4:
            a(f"v_and_b32 v{vdst}, v{vdst}, v{vdst+1}\nv_and_b32 v{vdst+2}, v{vdst+2}, v{vdst+3}\nv_and_b32 v{vdst}, v{vdst}, v{vdst+2}")
        a(f"""
        v_cmp_ne_u32 vcc, 1, v{vdst}
        s_add_u32 s33, s33, 1
        s_cmp_gt_u32 s33, {SPIN_MAX}
        s_cbranch_scc1 {lab}_x
        s_cbranch_vccz {lab}_x
        s_sleep 1
        s_branch {lab}
        """)
        a.label(lab + "_x")

    def attention(self):
        a = self.a
        QM, QL, IDX, AK, AV, AL, T0, T1 = 4, 8, 10, 11, 12, 13, 14, 15
        KM, KL, VF, O, S0, S1 = 16, 24, 28, 44, 60, 92
        LK, LV, LL, VV, V3, PT = 124, 125, 126, 127, 128, 132
        HD, TQ, PAR, CH, IT, DK, DV, FB, MC, MB_, MI = 40, 41, 42, 43, 44, 45, 46, 47, 48, 49, 50
        GK, GV, G3, L3, GS3, LS3, NC = 51, 52, 53, 54, 55, 56, 57
        KCH, VCH = 10240, 32 * VROW
        C0 = 0
        a(f"""
        s_lshl_b32 s{HD}, s{S_XCD}, 2
        s_and_b32 s30, s{S_IDX}, 3
        s_add_u32 s{HD}, s{HD}, s30
        s_lshr_b32 s{TQ}, s{S_IDX}, 2
        s_lshl_b32 s{TQ}, s{TQ}, 3
        s_add_u32 s{TQ}, s{TQ}, s{S_WAVE}
        s_and_b32 s{PAR}, s{HD}, 1
        s_mov_b32 s30, {F1}
        """)
        self.poll("L_pollF1", S0, 3, "s30", n=4)
        self.stamp(5)
        a(f"""
        v_and_b32 v1, 31, v2
        v_lshrrev_b32 v{T1}, 5, v2
        v_lshlrev_b32 v{T0}, 3, v1
        v_lshl_add_u32 v{LK}, v{T1}, 11, v{T0}
        s_lshl_b32 s30, s{PAR}, 10
        v_add_u32 v{LK}, s30, v{LK}              ; par*1024 + h*2048 + i*8
        s_mul_i32 s31, s{PAR}, 4092
        s_sub_u32 s31, 4096, s31                 ; par ? 4 : 4096
        v_lshl_add_u32 v{LL}, v2, 3, s31
        v_add_u32 v{T0}, s31, v{T0}
        s_lshr_b32 s30, s{HD}, 1
        s_mul_i32 s30, s30, 9
        s_lshl_b32 s32, s{PAR}, 2
        s_add_u32 s30, s30, s32                  ; f
        s_lshr_b32 s32, s{TQ}, 2
        s_mul_i32 s32, s32, 288
        s_add_u32 s32, s32, s30
        s_lshl_b32 s32, s32, 10
        s_and_b32 s34, s{TQ}, 3
        s_lshl_b32 s34, s34, 8
        s_add_u32 s32, s32, s34
        s_add_u32 s32, s32, {QKP}
        buffer_load_dwordx2 v[{QM}:{QM+1}], v{LK}, s[4:7], s32 offen sc0 sc1
        buffer_load_dwordx2 v[{QM+2}:{QM+3}], v{LK}, s[4:7], s32 offen offset:1024 sc0 sc1
        buffer_load_dword v{QL}, v{T0}, s[4:7], s32 offen sc0 sc1
        """)
        a(f"""
        s_add_u32 s30, s30, 144
        s_lshl_b32 s30, s30, 10
        s_add_u32 s30, s30, {QKP + C0*2*288*1024}
        s_cmp_ge_u32 s{S_WAVE}, 5
        s_cselect_b32 s31, {283*1024}, 0
        s_lshl_b32 s32, s{S_WAVE}, 10
        s_add_u32 s{GK}, s30, s31
        s_add_u32 s{GK}, s{GK}, s32
        s_mul_i32 s34, s{HD}, 288
        s_add_u32 s34, s34, {VT + C0*32*9216}
        s_mul_i32 s31, s{S_WAVE}, {3*9216}
        s_add_u32 s{GV}, s34, s31
        v_mul_u32_u24 v{T0}, 27, v2
        v_lshrrev_b32 v{T0}, 9, v{T0}                 ; lane/19
        v_mul_u32_u24 v{VV}, 19, v{T0}
        v_sub_u32 v{VV}, v2, v{VV}                    ; lane%19
        v_cmp_gt_u32 vcc, 18, v{VV}
        v_cmp_gt_u32 s[58:59], 3, v{T0}
        v_mul_u32_u24 v{T0}, 9216, v{T0}
        v_lshl_add_u32 v{VV}, v{VV}, 4, v{T0}
        s_and_b64 s[58:59], s[58:59], vcc
        s_cmp_lt_u32 s{S_WAVE}, 2
        s_cbranch_scc1 L_at3k
        s_cmp_lt_u32 s{S_WAVE}, 5
        s_cbranch_scc1 L_at3v
        s_mov_b32 s{G3}, s{GK}
        s_mov_b32 s{L3}, s32
        s_branch L_at3k2
        """)
        a.label("L_at3k")
        a(f"""
        s_add_u32 s{G3}, s30, {(283+8)*1024}
        s_add_u32 s{G3}, s{G3}, s32
        s_add_u32 s{L3}, s32, 8192
        """)
        a.label("L_at3k2")
        a(f"""
        s_add_u32 s{L3}, s{L3}, {LDS_K + C0*KCH}
        s_mov_b32 s{GS3}, {2*288*1024}
        s_mov_b32 s{LS3}, {KCH}
        s_mov_b64 s[60:61], -1
        v_mov_b32 v{V3}, v3
        s_branch L_at3d
        """)
        a.label("L_at3v")
        a(f"""
        s_add_u32 s{G3}, s{GV}, {6*3*9216}
        s_mul_i32 s{L3}, s{S_WAVE}, {3*VROW}
        s_add_u32 s{L3}, s{L3}, {LDS_V + 6*3*VROW + C0*VCH}
        s_mov_b32 s{GS3}, {32*9216}
        s_mov_b32 s{LS3}, {VCH}
        s_mov_b64 s[60:61], s[58:59]
        v_mov_b32 v{V3}, v{VV}
        """)
        a.label("L_at3d")
        a(f"s_mov_b32 s{NC}, 0")
        def dma_chunk():
            a(f"""
            s_mul_i32 s30, s{NC}, {KCH}
            s_lshl_b32 s31, s{S_WAVE}, 10
            s_add_u32 m0, s30, s31
            s_mul_i32 s30, s{NC}, {VCH}
            buffer_load_dwordx4 v3, s[4:7], s{GK} offen sc0 sc1 lds
            s_mul_i32 s31, s{S_WAVE}, {3*VROW}
            s_add_u32 s30, s30, s31
            s_add_u32 m0, s30, {LDS_V}
            s_mov_b64 exec, s[58:59]
            buffer_load_dwordx4 v{VV}, s[4:7], s{GV} offen sc0 sc1 lds
            s_mov_b32 m0, s{L3}
            s_mov_b64 exec, s[60:61]
            buffer_load_dwordx4 v{V3}, s[4:7], s{G3} offen sc0 sc1 lds
            s_mov_b64 exec, -1
            s_add_u32 s{GK}, s{GK}, {2*288*1024}
            s_add_u32 s{GV}, s{GV}, {32*9216}
            s_add_u32 s{G3}, s{G3}, s{GS3}
            s_add_u32 s{L3}, s{L3}, s{LS3}
            s_add_u32 s{NC}, s{NC}, 1
            """)
        dma_chunk(); dma_chunk()
        a(f"""
        v_min_u32 v{AV}, 18, v1
        v_mul_u32_u24 v{T1}, {VROW}, v{T1}
        v_lshl_add_u32 v{LV}, v{AV}, 4, v{T1}
        v_add_u32 v{LV}, {LDS_V}, v{LV}
        v_cmp_lt_u32 vcc, 18, v1
        v_cmp_ne_u32 s[30:31], 28, v1
        s_and_b64 vcc, vcc, s[30:31]
        v_mov_b32 v{T1}, 0x100000
        v_mov_b32 v{IDX}, 0xdddd
        v_cndmask_b32 v{LV}, v{LV}, v{T1}, vcc
        v_mov_b32 v{KL+1}, 0x3f803f80
        v_mov_b32 v{KL+3}, 0x3f803f80
        v_mov_b32 v{KL}, 0x3f803f80
        v_mov_b32 v{KL+2}, 0x3f803f80
        v_and_b32 v{T0}, 127, v0
        v_mul_u32_u24 v{T0}, {VROW}, v{T0}
        v_add_u32 v{V3+1}, {LDS_V + 18*16}, v{T0}
        ds_write_b128 v{V3+1}, v[{KL}:{KL+3}]
        s_mov_b32 s62, 0
        s_mov_b32 s63, -1
        s_mov_b32 s{FB}, 0
        s_mov_b32 s{MC}, 1
        s_mov_b32 s{MB_}, {C0*KCH}
        s_waitcnt vmcnt(3) lgkmcnt(0)
        s_barrier
        ds_write_b128 v{V3+1}, v[{KL}:{KL+3}] offset:{128*VROW}
        """)
        a(f"""
        s_cmp_lg_u32 s{S_WAVE}, 3
        s_cbranch_scc1 L_nof2
        s_lshl_b32 s30, s{S_CHB}, 4
        s_add_u32 s30, s30, s{S_MB}
        s_lshl_b32 s30, s30, 2
        s_add_u32 s30, s30, {F2}
        s_lshl_b32 s31, s29, 4
        s_add_u32 s31, s31, s{S_MB}
        s_lshl_b32 s31, s31, 2
        s_add_u32 s31, s31, {F2}
        v_mov_b32 v{T0}, 0
        v_mov_b32 v{T1}, 1
        s_mov_b64 exec, 1
        buffer_store_dword v{T1}, v{T0}, s[4:7], s30 offen {WT}
        buffer_store_dword v{T1}, v{T0}, s[4:7], s31 offen {WT}
        s_mov_b64 exec, -1
        """)
        a.label("L_nof2")
        self.stamp(6)
        a.label("L_maxpass")
        MX = T1
        a(f"""
        v_add_u32 v{AK}, s{MB_}, v{LK}
        v_add_u32 v{AL}, s{MB_}, v{LL}
        v_mov_b32 v{QL+1}, 0
        v_mov_b32 v{MX}, 0xff800000
        s_mov_b32 s{MI}, 0
        """)
        def rdKm(t, p, A=AK):
            off = (p // 2) * 5120 + (2 * (p % 2) + t) * 256
            a(f"ds_read_b64 v[{KM+4*t}:{KM+4*t+1}], v{A} offset:{off}\nds_read_b64 v[{KM+4*t+2}:{KM+4*t+3}], v{A} offset:{off+1024}")
        def rdKl(p):
            a(f"ds_read_b32 v{KL+2*(p%2)}, v{AL} offset:{(p//2)*5120 + (p%2)*512}")
        def rdV(n, p): a(f"ds_read_b128 v[{VF+4*n}:{VF+4*n+3}], v{AV} offset:{(p*8+n*2)*VROW}")
        def b2(N, p): a(f"v_mfma_f32_32x32x4_2b_bf16 v[{N}:{N+31}], v[{KL+2*(p%2)}:{KL+2*(p%2)+1}], v[{QL}:{QL+1}], 0")
        def mainm(N, t): a(f"v_mfma_f32_32x32x16_bf16 v[{N+16*t}:{N+16*t+15}], v[{KM+4*t}:{KM+4*t+3}], v[{QM}:{QM+3}], v[{N+16*t}:{N+16*t+15}]")
        def smf(n, S): a(f"v_smfmac_f32_32x32x32_bf16 v[{O}:{O+15}], v[{VF+4*n}:{VF+4*n+3}], v[{S+8*n}:{S+8*n+7}], v{IDX}")
        def E(S, lo, hi):
            for r in range(lo, hi): a(f"v_exp_f32 v{S+r}, v{S+r}")
        a.label("L_maxloop")
        rdKl(0); rdKm(0, 0); rdKm(1, 0)
        a(f"""
        s_and_b32 s30, s{MI}, 1
        s_mul_i32 s30, s30, {5120-1024}
        s_add_u32 s30, s30, 512
        s_add_u32 s{MI}, s{MI}, 1
        s_waitcnt lgkmcnt(0)
        """)
        b2(S0, 0)
        a(f"v_add_u32 v{AK}, s30, v{AK}\nv_add_u32 v{AL}, s30, v{AL}\ns_nop 15")
        mainm(S0, 0); mainm(S0, 1)
        a("s_nop 10")
        for i in range(16): a(f"v_max3_f32 v{MX}, v{S0+2*i}, v{S0+2*i+1}, v{MX}")
        a(f"""
        s_cmp_lt_u32 s{MI}, s{MC}
        s_cbranch_scc1 L_maxloop
        v_mov_b32 v{T0}, v{MX}
        s_nop 1
        v_permlane32_swap_b32 v{T0}, v{MX}
        s_nop 1
        v_max_f32 v{MX}, v{T0}, v{MX}
        v_cvt_pk_bf16_f32 v{T0}, -v{MX}, 0
        v_lshlrev_b32 v{T0}, 16, v{T0}
        v_sub_f32 v{T0}, -v{MX}, v{T0}
        v_cvt_pk_bf16_f32 v{QL+1}, -v{MX}, v{T0}
        v_add_u32 v{AK}, {C0*KCH}, v{LK}
        v_add_u32 v{AL}, {C0*KCH}, v{LL}
        v_add_u32 v{AV}, {C0*VCH}, v{LV}
        s_mov_b32 s{CH}, {C0}
        s_mov_b32 s{IT}, 0
        """)
        rdKl(0); rdKm(0, 0); rdKm(1, 0); rdKl(1)
        rdV(0, 0); rdV(1, 0); rdV(2, 0)
        for i in range(16): a(f"v_mov_b32 v{O+i}, 0")
        for i in range(8): a(f"v_mov_b32 v{S1+24+i}, 0")
        for i in range(4): a(f"v_mov_b32 v{VF+12+i}, 0")
        a("s_waitcnt lgkmcnt(0)")
        b2(S0, 0)
        a("s_nop 15\ns_nop 1")
        mainm(S0, 0); mainm(S0, 1)
        rdKm(0, 1); rdKm(1, 1)
        a("s_nop 5\ns_waitcnt lgkmcnt(0)")
        self.stamp(7)
        a.raw(".p2align 6")
        a.label("L_loop")
        for i in range(4):
            C, N = (S0, S1) if i % 2 == 0 else (S1, S0)
            if i == 0:
                a(f"""
                s_add_u32 s30, s{CH}, 1
                s_and_b32 s30, s30, 7
                s_sub_u32 s31, s30, s{CH}
                s_mul_i32 s{DK}, s31, {KCH}
                s_mul_i32 s{DV}, s31, {VCH}
                s_mov_b32 s{CH}, s30
                """)
            E(C, 0, 2)
            a("s_waitcnt lgkmcnt(5)")
            smf(3, N); rdV(3, i)
            if i == 3: a(f"v_add_u32 v{AV}, s{DV}, v{AV}")
            if i == 2:
                a(f"""
                v_add_u32 v{AK}, s{DK}, v{AK}
                v_add_u32 v{AL}, s{DK}, v{AL}
                s_add_u32 s30, s{IT}, s{FB}
                s_cmp_lt_u32 s30, 4
                s_cbranch_scc1 L_hook
                """)
                a.label("L_hookret")
            E(C, 2, 6)
            b2(N, i + 1)
            rdKl((i + 2) % 4)
            E(C, 6, 12)
            smf(0, C); rdV(0, (i + 1) % 4)
            E(C, 12, 18)
            smf(1, C); rdV(1, (i + 1) % 4)
            E(C, 18, 22)
            a("s_waitcnt lgkmcnt(4)")
            mainm(N, 0); rdKm(0, (i + 2) % 4)
            E(C, 22, 26)
            smf(2, C); rdV(2, (i + 1) % 4)
            E(C, 26, 30)
            mainm(N, 1); rdKm(1, (i + 2) % 4)
            if i == 3: a(f"s_add_u32 s{IT}, s{IT}, 1\ns_cmp_lt_u32 s{IT}, 8")
            E(C, 30, 32)
        a("s_cbranch_scc1 L_loop")
        a("s_waitcnt lgkmcnt(0)\ns_nop 0")
        smf(3, S1)
        self.stamp(8)
        L, SUM = T0, T1
        a(f"s_nop 11\nv_cndmask_b32 v{L}, v{O+10}, v{O+12}, s[62:63]\nv_add_f32 v{SUM}, |v{O}|, |v{O+1}|")
        for r in range(2, 10): a(f"v_add_f32 v{SUM}, v{SUM}, |v{O+r}|")
        a(f"""
        s_mov_b32 s30, 0x5d800000
        s_mov_b32 s31, 0x7f7fffff
        v_cmp_nge_f32 vcc, s30, v{L}
        v_cmp_nge_f32 s[34:35], s31, v{SUM}
        s_or_b64 vcc, vcc, s[34:35]
        s_cmp_lg_u32 s{FB}, 0
        s_cbranch_scc1 L_fin
        s_cmp_eq_u64 vcc, 0
        s_cbranch_scc1 L_fin
        s_mov_b32 s{FB}, 8
        s_mov_b32 s{MC}, 32
        s_mov_b32 s{MB_}, 0
        s_branch L_maxpass
        """)
        a.label("L_hook")
        FV, EV = PT, 236
        a(f"""
        s_cmp_eq_u32 s{IT}, 2
        s_cbranch_scc1 L_hook2
        s_waitcnt vmcnt(0)
        s_barrier
        s_cmp_eq_u32 s{IT}, 3
        s_cbranch_scc1 L_hook3
        """)
        dma_chunk(); dma_chunk()
        a("s_branch L_hookret")
        a.label("L_hook3")
        a(f"""
        s_cmp_ge_u32 s{S_WAVE}, 4
        s_cbranch_scc1 L_hookret
        s_mul_i32 s30, s{S_MB}, 18
        s_add_u32 s31, s30, s{S_CHB}
        s_lshl_b32 s31, s31, 2
        s_add_u32 s31, s31, s{S_WAVE}
        s_lshl_b32 s31, s31, 2
        s_add_u32 s31, s31, {F3}
        s_cmp_eq_u32 s{S_TYPE}, 2
        s_cselect_b32 s32, s{S_CHA}, s{S_CHB}
        s_add_u32 s32, s30, s32
        s_lshl_b32 s32, s32, 2
        s_add_u32 s32, s32, s{S_WAVE}
        s_lshl_b32 s32, s32, 2
        s_add_u32 s32, s32, {F3}
        v_mov_b32 v{PT}, 0
        v_mov_b32 v{PT+1}, 1
        s_mov_b64 exec, 1
        buffer_store_dword v{PT+1}, v{PT}, s[4:7], s31 offen {WT}
        buffer_store_dword v{PT+1}, v{PT}, s[4:7], s32 offen {WT}
        s_mov_b64 exec, -1
        s_branch L_hookret
        """)
        a.label("L_hook2")
        dma_chunk(); dma_chunk()
        a(f"s_cmp_ge_u32 s{S_WAVE}, 4\ns_cbranch_scc1 L_hookret")
        self.pass2(PT)
        a("s_branch L_hookret")
        a.label("L_fin")
        a(f"v_rcp_f32 v{L}, v{L}\ns_nop 0")
        for r in range(10): a(f"v_mul_f32 v{O+r}, v{O+r}, v{L}")
        for r in range(5): a(f"v_cvt_pk_bf16_f32 v{S0+r}, v{O+2*r}, v{O+2*r+1}")
        a(f"""
        s_mul_i32 s30, s{TQ}, {36*1024}
        s_add_u32 s30, s30, {OW}
        s_lshl_b32 s31, s{HD}, 10
        s_add_u32 s31, s31, s30
        buffer_store_dwordx4 v[{S0}:{S0+3}], v3, s[4:7], s31 offen {WT}
        s_lshl_b32 s31, s{HD}, 7
        s_add_u32 s31, s31, s30
        s_add_u32 s31, s31, 32768
        v_lshlrev_b32 v{T0}, 2, v2
        s_mov_b32 exec_hi, 0
        buffer_store_dword v{S0+4}, v{T0}, s[4:7], s31 offen {WT}
        s_lshl_b32 s31, s{TQ}, 5
        s_add_u32 s31, s31, s{HD}
        s_lshl_b32 s31, s31, 2
        s_add_u32 s31, s31, {F4}
        v_mov_b32 v{T1}, 1
        s_mov_b64 exec, 1
        s_waitcnt vmcnt(0)
        buffer_store_dword v{T1}, v{T0}, s[4:7], s31 offen {WT}
        s_mov_b64 exec, -1
        """)
        self.stamp(9)

    def pass2(self, T):
        a = self.a
        GR, GI, TT, EB, AD = T, T + 1, T + 2, T + 4, T + 6
        a.label("L_p2")
        a(f"""
        v_mov_b32 v{GR}, 0
        v_mov_b32 v{GI}, 0
        s_cmp_eq_u32 s{S_MB}, 0
        s_cbranch_scc1 L_p2nc
        s_lshl_b32 s34, s29, 6
        s_add_u32 s34, s34, {F2}
        s_sub_u32 s35, s{S_MB}, 1
        v_min_u32 v{AD}, s35, v2
        v_lshlrev_b32 v{AD}, 2, v{AD}
        """)
        self.poll("L_pollF2", EB, AD, "s34", n=1)
        a(f"""
        v_and_b32 v{AD}, 31, v2
        v_lshlrev_b32 v{AD}, 3, v{AD}
        s_lshl_b32 s34, s29, 8
        s_add_u32 s34, s34, {EE}
        s_mov_b32 s35, 0
        """)
        a.label("L_p2grp")
        for j in range(8):
            a(f"buffer_load_dwordx2 v[{236+2*j}:{237+2*j}], v{AD}, s[4:7], s34 offen sc0 sc1\ns_add_u32 s34, s34, {576*8}")
        for j in range(8):
            a(f"""
            s_waitcnt vmcnt({7-j})
            v_fma_f32 v{TT}, v{MUR}, v{GR}, v{236+2*j}
            v_fma_f32 v{TT+1}, v{MUR}, v{GI}, v{237+2*j}
            v_fma_f32 v{TT}, -v{MUI}, v{GI}, v{TT}
            v_fma_f32 v{GI}, v{MUI}, v{GR}, v{TT+1}
            v_mov_b32 v{GR}, v{TT}
            s_add_u32 s35, s35, 1
            s_cmp_ge_u32 s35, s{S_MB}
            s_cbranch_scc1 L_p2nc
            """)
        a("s_branch L_p2grp")
        a.label("L_p2nc")
        a(f"""
        v_fma_f32 v{TT}, v{PWR}, v{GR}, v{LCR}
        v_fma_f32 v{TT+1}, v{PWR}, v{GI}, v{LCI}
        v_fma_f32 v{TT}, -v{PWI}, v{GI}, v{TT}
        v_fma_f32 v{GI}, v{PWI}, v{GR}, v{TT+1}
        v_mov_b32 v{GR}, v{TT}
        """)
        for t in range(16):
            a(f"""
            v_fma_f32 v{TT}, v{LR}, v{GR}, v{BS+t}
            v_fma_f32 v{TT+1}, v{LR}, v{GI}, v{BS+16+t}
            v_fma_f32 v{TT}, -v{LI}, v{GI}, v{TT}
            v_fma_f32 v{GI}, v{LI}, v{GR}, v{TT+1}
            v_mov_b32 v{GR}, v{TT}
            v_mul_f32 v{BS+t}, v{CR}, v{TT}
            v_mul_f32 v{BS+16+t}, v{CR}, v{GI}
            v_fma_f32 v{BS+t}, -v{CI}, v{GI}, v{BS+t}
            v_fma_f32 v{BS+16+t}, -v{CI}, v{TT}, -v{BS+16+t}
            """)
        a(f"""
        s_lshl_b32 s34, s{S_MB}, 2
        s_add_u32 s34, s34, s{S_WAVE}
        s_mul_i32 s34, s34, 36
        s_add_u32 s34, s34, s29
        s_lshl_b32 s34, s34, 11
        s_add_u32 s34, s34, {HH}
        s_add_u32 s35, s34, {18*2048}
        v_lshrrev_b32 v{TT}, 5, v2
        v_and_b32 v{AD}, 31, v2
        v_lshlrev_b32 v{AD}, 4, v{AD}
        v_mul_u32_u24 v{TT}, {1024+128}, v{TT}
        v_xor_b32 v{AD}, v{AD}, v{TT}              ; h*1024 + (ch ^ 8h)*16
        v_xor_b32 v{AD+1}, {512+64}, v{AD}
        """)
        for c in range(2):
            for jj in range(2):
                d = BS + 16 * c + 8 * jj
                for r in range(4): a(f"v_cvt_pk_bf16_f32 v{d+r}, v{d+2*r}, v{d+2*r+1}")
                a(f"buffer_store_dwordx4 v[{d}:{d+3}], v{AD+jj}, s[4:7], s{34+c} offen {WT}")
        a(f"""
        s_cmp_eq_u32 s29, s{S_CHB}
        s_cbranch_scc1 L_p2end
        s_nop 1
        """)
        for i in range(42): a(f"v_mov_b32 v{BS+i}, v{BSA+i}")
        a(f"s_mov_b32 s29, s{S_CHB}\ns_branch L_p2")
        a.label("L_p2end")

    def p3(self):
        a = self.a
        MB, NB, LW, SI, KK, HB, CB, SL, SS, SLOT, DL, TT_ = 40, 41, 42, 43, 44, 45, 46, 47, 48, 49, 50, 51
        a(f"""
        s_cmp_ge_u32 s{S_IDX}, 30
        s_cbranch_scc1 L_exit
        s_barrier
        s_lshl_b32 s{MB}, s{S_XCD}, 1
        s_and_b32 s30, s{S_IDX}, 1
        s_add_u32 s{MB}, s{MB}, s30
        s_lshr_b32 s{NB}, s{S_IDX}, 1
        s_and_b32 s{LW}, s{S_WAVE}, 3
        s_lshl_b32 s{TT_}, s{MB}, 2
        s_add_u32 s{TT_}, s{TT_}, s{LW}
        """)
        self.srd(16, P_OUT, OUT_BYTES)
        a(f"s_cmp_ge_u32 s{S_IDX}, 18\ns_cbranch_scc1 L_a3\ns_cmp_lt_u32 s{S_WAVE}, 4\ns_cbranch_scc1 L_b3c")
        VB, T = 4, 20
        self.make_vx(VB, 2, "4", "1", "16", "8", T)
        a(f"""
        s_mul_i32 s34, s{MB}, {72*4}
        s_add_u32 s34, s34, {F3}
        v_min_u32 v{T+4}, 17, v2
        v_lshlrev_b32 v{T+4}, 4, v{T+4}
        """)
        self.poll("L_pollF3", T + 8, T + 4, "s34", n=4)
        a(f"""
        s_mul_i32 s{HB}, s{TT_}, 73728
        s_add_u32 s{HB}, s{HB}, {HH}
        s_lshl_b32 s30, s{NB}, 6
        s_lshl_b32 s31, s{LW}, 4
        s_add_u32 s30, s30, s31
        s_mul_i32 s{CB}, s30, 1152
        s_mov_b32 s14, {576*1152}
        s_mov_b32 s15, 0x20000
        s_mov_b32 s{SI}, 0
        s_lshl_b32 s{KK}, s{S_ROT}, 1
        s_lshl_b32 s{SL}, s{LW}, 12
        """)
        a.label("L_b3l_loop")
        a(f"""
        s_cmp_lt_u32 s{SI}, 3
        s_cbranch_scc1 L_b3l_nb
        s_waitcnt vmcnt(12)
        s_barrier
        """)
        a.label("L_b3l_nb")
        a(f"""
        s_mov_b32 m0, s{SL}
        s_lshl_b32 s31, s{KK}, 12
        s_add_u32 s31, s31, s{HB}
        """)
        for n in range(4): a(f"buffer_load_dwordx4 v3, s[4:7], s31 offen offset:{n*1024} sc0 sc1 lds")
        a(f"""
        s_cmp_lt_u32 s{KK}, 9
        s_cselect_b32 s12, s{P_CRE}, s{P_CIM}
        s_cselect_b32 s13, s{P_CRE+1}, s{P_CIM+1}
        s_cselect_b32 s30, 0, 9
        s_and_b32 s13, s13, 0xffff
        s_sub_u32 s30, s{KK}, s30
        s_lshl_b32 s30, s30, 7
        s_lshl_b32 s32, s{LW}, 11
        s_sub_u32 s32, s{SL}, s32
        s_add_u32 m0, s32, 16384
        s_add_u32 s31, s30, s{CB}
        """)
        for n in range(2): a(f"buffer_load_dwordx4 v{VB+n}, s[12:15], s31 offen offset:{n*1024} lds")
        a(f"""
        s_add_u32 s{SL}, s{SL}, 32768
        s_and_b32 s{SL}, s{SL}, 0x1ffff
        s_add_u32 s{KK}, s{KK}, 1
        s_cmp_eq_u32 s{KK}, 18
        s_cselect_b32 s{KK}, 0, s{KK}
        s_add_u32 s{SI}, s{SI}, 1
        s_cmp_lt_u32 s{SI}, 18
        s_cbranch_scc1 L_b3l_loop
        s_waitcnt vmcnt(12)
        s_barrier
        s_waitcnt vmcnt(6)
        s_barrier
        s_waitcnt vmcnt(0)
        s_barrier
        s_branch L_exit
        """)
        a.label("L_b3c")
        AC, AH, EA, FC, FH, ACC, T, XD = 4, 8, 10, 16, 32, 40, 72, 84
        a(f"""
        v_lshrrev_b32 v{T+1}, 5, v2
        v_bfe_u32 v{T+2}, v2, 2, 2
        v_lshl_add_u32 v{T+3}, v{T+1}, 3, v{T+2}
        v_bfe_u32 v{T+4}, v2, 4, 1
        v_bfe_u32 v{T+5}, v2, 1, 1
        v_lshl_add_u32 v{T+4}, v{T+4}, 1, v{T+5}    ; j
        v_lshlrev_b32 v{T+5}, 2, v{T+4}
        v_xor_b32 v{T+6}, v{T+3}, v{T+5}
        v_and_b32 v{T+5}, 1, v2
        v_lshlrev_b32 v{T+5}, 3, v{T+5}
        v_lshl_add_u32 v{T+5}, v{T+4}, 9, v{T+5}
        s_lshl_b32 s30, s{LW}, 12
        v_add_u32 v{T+5}, s30, v{T+5}
        v_lshl_add_u32 v{AH}, v{T+6}, 4, v{T+5}
        v_xor_b32 v{AH+1}, 64, v{AH}
        v_and_b32 v{T}, 31, v2
        v_bfe_u32 v{T+2}, v{T}, 1, 3
        v_xor_b32 v{T+2}, v{T+2}, v{T+1}
        v_lshlrev_b32 v{T+3}, 7, v{T}
        v_add_u32 v{T+3}, 16384, v{T+3}
        """)
        for s in range(4): a(f"v_xor_b32 v{T+4}, {2*s}, v{T+2}\nv_lshl_add_u32 v{AC+s}, v{T+4}, 4, v{T+3}")
        a(f"""
        v_mul_u32_u24 v{EA}, 4608, v{T}
        v_lshl_add_u32 v{EA}, v{T+1}, 4, v{EA}
        v_mul_u32_u24 v{EA+1}, 1152, v{T}
        v_lshl_add_u32 v{EA+1}, v{T+1}, 3, v{EA+1}
        s_mul_i32 s30, s{TT_}, {32*1152}
        s_lshl_b32 s31, s{NB}, 7
        s_add_u32 s30, s30, s31
        v_add_u32 v{EA+1}, s30, v{EA+1}
        v_lshl_add_u32 v{T+8}, v{T+1}, 3, s31
        """)
        for e in range(8):
            a(f"global_load_dwordx2 v[{XD+2*e}:{XD+2*e+1}], v{EA+1}, s[{P_BX}:{P_BX+1}] offset:{e*16}")
            a(f"global_load_dwordx2 v[{XD+16+2*e}:{XD+16+2*e+1}], v{T+8}, s[{P_DSK}:{P_DSK+1}] offset:{e*16}")
        a("s_waitcnt vmcnt(0)")
        for e in range(8):
            d = ACC + 4 * e
            for q in range(2):
                x = XD + 2 * e + q; k = XD + 16 + 2 * e + q
                a(f"""
                v_lshlrev_b32 v{T+2}, 16, v{x}
                v_lshlrev_b32 v{T+3}, 16, v{k}
                v_and_b32 v{x}, 0xffff0000, v{x}
                v_and_b32 v{k}, 0xffff0000, v{k}
                v_mul_f32 v{d+2*q}, v{T+2}, v{T+3}
                v_mul_f32 v{d+2*q+1}, v{x}, v{k}
                """)
        a(f"s_mov_b32 s{SS}, 0\ns_mov_b32 s{SLOT}, 0")
        a.label("L_b3c_loop")
        a("s_barrier")
        self.stampx(16)
        def reads(s, buf):
            for nt in range(2): a(f"ds_read_b128 v[{FC+buf*8+nt*4}:{FC+buf*8+nt*4+3}], v{AC+s} offset:{nt*4096}")
            for hf in range(2):
                r = FH + buf * 4 + hf * 2
                a(f"ds_read_b64_tr_b16 v[{r}:{r+1}], v{AH+hf} offset:{(s>>1)*2048 + (s&1)*256}")
        reads(0, 0)
        for s in range(4):
            if s < 3: reads(s + 1, (s + 1) % 2); a("s_waitcnt lgkmcnt(4)")
            else: a("s_waitcnt lgkmcnt(0)")
            buf = s % 2
            for nt in range(2):
                d = ACC + nt * 16
                a(f"v_mfma_f32_32x32x16_bf16 v[{d}:{d+15}], v[{FC+buf*8+nt*4}:{FC+buf*8+nt*4+3}], v[{FH+buf*4}:{FH+buf*4+3}], v[{d}:{d+15}]")
        a(f"""
        s_add_u32 s30, s{SLOT}, 32768
        s_and_b32 s30, s30, 0x1ffff
        s_sub_u32 s{DL}, s30, s{SLOT}
        s_mov_b32 s{SLOT}, s30
        s_add_u32 s{SS}, s{SS}, 1
        """)
        for r in (AC, AC + 1, AC + 2, AC + 3, AH, AH + 1): a(f"v_add_u32 v{r}, s{DL}, v{r}")
        a(f"""
        s_cmp_lt_u32 s{SS}, 18
        s_cbranch_scc1 L_b3c_loop
        s_mul_i32 s30, s{TT_}, {32*4608}
        s_lshl_b32 s31, s{NB}, 8
        s_add_u32 s30, s30, s31
        s_add_u32 s30, s30, {576*4}
        """)
        self.stamp(11)
        for e in range(8):
            d = ACC + 4 * e
            a(f"buffer_store_dwordx4 v[{d}:{d+3}], v{EA}, s[16:19], s30 offen offset:{e*32}")
        a("s_branch L_exit")
        a.label("L_a3")
        VW, VL, AW, EA, T, FW, ACC, FO = 4, 5, 6, 8, 10, 20, 44, 92
        self.srd(12, P_WO, 576 * 1152)
        a(f"""
        s_sub_u32 s{NB}, s{NB}, 9
        v_lshrrev_b32 v{T}, 2, v2              ; kappa
        v_and_b32 v{T+1}, 3, v2
        v_and_b32 v{T+2}, 3, v{T}
        v_bfe_u32 v{T+3}, v{T}, 2, 1
        v_lshl_add_u32 v{T+2}, v{T+3}, 3, v{T+2}
        v_lshrrev_b32 v{T+3}, 3, v{T}
        v_lshl_add_u32 v{T+2}, v{T+3}, 2, v{T+2}
        v_mul_u32_u24 v{T+2}, 1152, v{T+2}
        v_lshl_add_u32 v{VW}, v{T+1}, 4, v{T+2}
        v_lshrrev_b32 v{T+2}, 1, v{T}
        v_mul_u32_u24 v{T+2}, 18, v{T+2}
        v_and_b32 v{T+3}, 1, v{T}
        v_add3_u32 v{T+2}, v{T+2}, v{T+3}, 16
        v_mul_u32_u24 v{T+2}, 1152, v{T+2}
        v_lshl_add_u32 v{VL}, v{T+1}, 4, v{T+2}
        s_mul_i32 s30, s{NB}, 192
        s_mul_i32 s31, s{S_WAVE}, {18*1152}
        s_add_u32 s31, s31, s30
        s_mul_i32 s32, s{S_WAVE}, 3072
        """)
        for r in range(4):
            for nt in range(3):
                a(f"s_add_u32 m0, s32, {r*8*3072 + nt*1024}\ns_add_u32 s34, s31, {r*8*18*1152 + nt*64}")
                a(f"buffer_load_dwordx4 v{VW}, s[12:15], s34 offen lds")
        a(f"""
        s_cmp_lt_u32 s{S_WAVE}, 4
        s_cbranch_scc1 L_a3c
        s_mul_i32 s31, s{LW}, {8*18*1152}
        s_add_u32 s31, s31, s30
        s_mul_i32 s32, s{LW}, 3072
        """)
        for nt in range(3):
            a(f"s_add_u32 m0, s32, {32*3072 + nt*1024}\ns_add_u32 s34, s31, {nt*64}")
            a(f"buffer_load_dwordx4 v{VL}, s[12:15], s34 offen lds")
        a("s_waitcnt vmcnt(0)\ns_barrier\ns_branch L_exit")
        a.label("L_a3c")
        a(f"""
        s_lshl_b32 s34, s{TT_}, 7
        s_add_u32 s34, s34, {F4}
        v_and_b32 v{T}, 31, v2
        v_lshlrev_b32 v{T+4}, 2, v{T}
        v_lshrrev_b32 v{T+1}, 5, v2
        v_bfe_u32 v{T+2}, v2, 2, 2
        v_lshl_add_u32 v{T+3}, v{T+1}, 3, v{T+2}
        v_lshlrev_b32 v{T+3}, 6, v{T+3}
        v_bfe_u32 v{T+2}, v2, 4, 1
        v_lshl_add_u32 v{T+3}, v{T+2}, 5, v{T+3}
        v_and_b32 v{T+2}, 3, v2
        v_lshl_add_u32 v{AW}, v{T+2}, 3, v{T+3}
        v_add_u32 v{AW+1}, {18*3072}, v{AW}
        v_mul_u32_u24 v{EA}, 4608, v{T}
        v_lshl_add_u32 v{EA}, v{T+1}, 4, v{EA}
        v_lshl_add_u32 v{EA+1}, v{T+1}, 9, v{T+4}
        """)
        self.poll("L_pollF4", T + 5, T + 4, "s34", n=1)
        self.stamp(10)
        a(f"s_mul_i32 s30, s{TT_}, {36*1024}\ns_add_u32 s30, s30, {OW}\ns_barrier")
        nld = [0]
        def oload(s):
            r = FO + 4 * s
            if s < 32:
                a(f"buffer_load_dwordx4 v[{r}:{r+3}], v3, s[4:7], s30 offen offset:{(s%4)*1024} sc0 sc1")
                if s % 4 == 3: a("s_add_u32 s30, s30, 4096")
                return 1
            for j in range(4):
                a(f"buffer_load_dword v{r+j}, v{EA+1}, s[4:7], s30 offen offset:{(s-32)*1024 + j*128} sc0 sc1")
            return 4
        def reads(s, buf):
            st, off = (0, s * 3072) if s < 18 else (1, (s - 18) * 3072)
            for nt in range(3):
                for hf in range(2):
                    r = FW + buf * 12 + nt * 4 + hf * 2
                    a(f"ds_read_b64_tr_b16 v[{r}:{r+1}], v{AW+st} offset:{off + nt*1024 + hf*256}")
        D = 10
        cnt = [1] * 32 + [4] * 4
        for s in range(D): oload(s)
        reads(0, 0)
        for s in range(36):
            if s + D < 36: oload(s + D)
            if s < 35: reads(s + 1, (s + 1) % 2)
            out = sum(cnt[s + 1:min(36, s + D + 1)])
            a(f"s_waitcnt vmcnt({out}) lgkmcnt({6 if s < 35 else 0})")
            for nt in range(3):
                d = ACC + nt * 16; w = FW + (s % 2) * 12 + nt * 4; o = FO + 4 * s
                c = "0" if s == 0 else f"v[{d}:{d+15}]"
                a(f"v_mfma_f32_32x32x16_bf16 v[{d}:{d+15}], v[{w}:{w+3}], v[{o}:{o+3}], {c}")
        a(f"""
        s_mul_i32 s30, s{TT_}, {32*4608}
        s_mul_i32 s31, s{NB}, 384
        s_add_u32 s30, s30, s31
        s_nop 8
        """)
        self.stamp(11)
        for e in range(12):
            d = ACC + 4 * e
            a(f"buffer_store_dwordx4 v[{d}:{d+3}], v{EA}, s[16:19], s30 offen offset:{e*32}")

    def finish(self):
        a = self.a
        a.label("L_exit")
        if self.stamp_on:
            self.stamp(12)
            a("s_waitcnt vmcnt(0)")
            self.stamp(13); self.stamp(15, True)
            a(f"""
            s_lshl_b32 s30, s2, 3
            s_add_u32 s30, s30, s{S_WAVE}
            s_lshl_b32 s30, s30, 8
            s_add_u32 s30, s30, {STB}
            v_lshlrev_b32 v3, 2, v2
            buffer_store_dword v{VST}, v3, s[4:7], s30 offen
            """)
        a.label("L_end")
        a("s_endpgm")

def gen_mega(name, stamp=False, stop=99, opt=None):
    g = G(stamp, stop, opt)
    g.a.raw(kernel_header(name))
    g.prologue(); g.p1_loader(); g.p1_compute()
    if stop >= 2: g.attention()
    if stop >= 3: g.p3()
    g.finish()
    return g.a.text(), kernel_desc(name, 256, 98)

if __name__ == "__main__":
    import sys
    from build import *
    KN = NAME + "_kernel"
    out = sys.argv[1]; stamp = len(sys.argv) > 2 and sys.argv[2] == "1"; stop = 99
    opt = dict((kv.split("=") + ["1"])[:2] for kv in sys.argv[3:])
    compose([gen_mega(KN, stamp, stop, opt)], [(KN, 256, 512, LDS_TOTAL)], out)
    assemble(out)
```

```python
from asmlib import *
from lay2 import *
import math, struct
def f32(x): return "0x%08x" % struct.unpack("<I", struct.pack("<f", x))[0]
QSCALE = f32(18 ** -0.5 * math.log2(math.e))
WT = "sc0 sc1"
SPIN_MAX = 20000
P_AX, P_WQKV, P_WO, P_BX, P_LRE, P_LIM, P_BRE, P_BIM, P_CRE, P_CIM, P_LDT, P_DSK, P_OUT, P_DBG, P_WS = range(64, 94, 2)
S_WAVE, S_XCD, S_IDX, S_MB, S_NB, S_TYPE, S_CHB, S_CHA, S_HALF, S_ROT = 3, 20, 21, 22, 23, 24, 25, 26, 27, 28
BS, BSA = 192, 144
LR, LI, CR, CI, LCR, LCI, PWR, PWI, MUR, MUI = range(BS + 32, BS + 42)
VST = 255

class G:
    def __init__(self, stamp=False, stop=99, opt=None):
        self.a = Asm(); self.stamp_on = stamp; self.stop = stop; self.opt = opt or {}
    def stamp(self, k, real=False):
        if not self.stamp_on: return
        op = "s_memrealtime" if real else "s_memtime"
        self.a(f"{op} s[94:95]\ns_waitcnt lgkmcnt(0)\nv_writelane_b32 v{VST}, s94, {k}")
    def stampx(self, base):
        if not self.stamp_on: return
        self.a(f"s_memtime s[94:95]\ns_add_u32 m0, s96, {base}\ns_add_u32 s96, s96, 1\ns_waitcnt lgkmcnt(0)\nv_writelane_b32 v{VST}, s94, m0")
    def srd(self, d, p, n):
        self.a(f"s_mov_b32 s{d}, s{p}\ns_and_b32 s{d+1}, s{p+1}, 0xffff\ns_mov_b32 s{d+2}, {n}\ns_mov_b32 s{d+3}, 0x20000")

    def prologue(self):
        a = self.a
        a(f"""
        s_cmp_ge_u32 s2, 256
        s_cbranch_scc1 L_end
        s_load_dwordx16 s[64:79], s[0:1], 0
        s_load_dwordx8 s[80:87], s[0:1], 64
        s_load_dwordx4 s[88:91], s[0:1], 96
        s_load_dwordx2 s[92:93], s[0:1], 112
        v_lshrrev_b32 v1, 6, v0
        v_and_b32 v2, 63, v0
        v_readfirstlane_b32 s{S_WAVE}, v1
        v_lshlrev_b32 v3, 4, v2
        s_and_b32 s{S_XCD}, s2, 7
        s_lshr_b32 s{S_IDX}, s2, 3
        """)
        a(f"""
        s_cmp_lg_u32 s{S_WAVE}, 3
        s_cbranch_scc1 L_nopf
        s_getpc_b64 s[30:31]
        """)
        a.label("L_pc")
        a(f"""
        s_lshl_b32 s32, s{S_IDX}, 10
        s_cmp_ge_u32 s32, L_end-L_pc-1024
        s_cbranch_scc1 L_nopf
        s_add_u32 s30, s30, s32
        s_addc_u32 s31, s31, 0
        v_mov_b32 v5, s31
        v_add_co_u32 v4, vcc, s30, v3
        s_nop 1
        v_addc_co_u32 v5, vcc, 0, v5, vcc
        global_load_dwordx4 v[136:139], v[4:5], off
        """)
        a.label("L_nopf")
        if self.stamp_on: a(f"v_mov_b32 v{VST}, 0\ns_mov_b32 s96, 0")
        self.stamp(0); self.stamp(14, True)
        a(f"""
        s_and_b32 s30, s{S_XCD}, 3
        s_lshl_b32 s30, s30, 2
        s_and_b32 s31, s{S_IDX}, 3
        s_add_u32 s{S_MB}, s30, s31
        s_lshr_b32 s30, s{S_XCD}, 2            ; hg
        s_lshr_b32 s31, s{S_IDX}, 2
        s_mul_i32 s32, s30, 7
        s_add_u32 s{S_NB}, s32, s31
        s_mul_i32 s32, s30, 9
        s_add_u32 s{S_CHB}, s32, s31
        s_add_u32 s{S_CHA}, s32, 8
        s_cmp_ge_u32 s{S_NB}, 9
        s_cselect_b32 s{S_TYPE}, 1, 0
        s_cmp_ge_u32 s{S_IDX}, 28
        s_cselect_b32 s{S_TYPE}, 2, s{S_TYPE}
        s_lshl_b32 s32, s{S_MB}, 1
        s_add_u32 s32, s32, s{S_CHB}           ; 0..47
        s_mul_i32 s33, s32, 57
        s_lshr_b32 s33, s33, 9
        s_mul_i32 s33, s33, 9
        s_sub_u32 s{S_ROT}, s32, s33           ; rotation 0..8
        s_waitcnt lgkmcnt(0)
        """)
        if self.opt.get("norot"): a(f"s_mov_b32 s{S_ROT}, 0")
        self.srd(4, P_WS, WS_BYTES)
        a(f"s_cmp_lt_u32 s{S_WAVE}, 4\ns_cbranch_scc1 L_p1_compute")

    def make_vx(self, dst, n, sa, sb, sc1, sc0, T):
        a = self.a
        a(f"""
        v_lshrrev_b32 v{T}, 3, v2
        v_and_b32 v{T+1}, 7, v2
        v_lshrrev_b32 v{T+2}, 1, v{T}
        v_xor_b32 v{T+1}, v{T+1}, v{T+2}
        v_lshrrev_b32 v{T+2}, 2, v{T}
        v_and_b32 v{T}, 3, v{T}
        v_mul_u32_u24 v{T+2}, {sa}, v{T+2}
        v_mul_u32_u24 v{T}, {sb}, v{T}
        v_add_u32 v{T}, v{T}, v{T+2}
        v_mul_u32_u24 v{T}, 1152, v{T}
        v_lshl_add_u32 v{dst}, v{T+1}, 4, v{T}
        v_xor_b32 v{T+1}, 4, v{T+1}
        v_lshl_add_u32 v{dst+1}, v{T+1}, 4, v{T}
        s_mul_i32 s34, {sc0}, 1152
        s_sub_u32 s34, s34, 1024
        v_add_u32 v{dst+1}, s34, v{dst+1}
        """)
        if n == 4:
            a(f"""
            s_mul_i32 s34, {sc1}, 1152
            s_sub_u32 s34, s34, 2048
            v_add_u32 v{dst+2}, s34, v{dst}
            v_add_u32 v{dst+3}, s34, v{dst+1}
            """)

    def p1_loader(self):
        a = self.a
        VX, VX2, VW, VB, T, VD = 4, 8, 12, 16, 20, 28
        LW, SI, KK, XB, WB, SL, LT = 40, 41, 42, 43, 44, 45, 46
        a.label("L_p1_loader")
        a(f"s_sub_u32 s{LW}, s{S_WAVE}, 4\nv_mov_b32 v{VD+1}, 0\nv_mov_b32 v{VD}, 0")
        def setup_b1(chs):
            self.srd(8, P_BX, 2048 * 1152)
            a(f"""
            s_cmp_lt_u32 s{LW}, 2
            s_cselect_b32 s12, s{P_BRE}, s{P_BIM}
            s_cselect_b32 s13, s{P_BRE+1}, s{P_BIM+1}
            s_and_b32 s13, s13, 0xffff
            s_mov_b32 s14, {576*1152}
            s_mov_b32 s15, 0x20000
            s_lshl_b32 s30, s{S_MB}, 7
            s_lshl_b32 s31, s{LW}, 5
            s_add_u32 s30, s30, s31
            s_mul_i32 s{XB}, s30, 1152
            s_lshl_b32 s30, s{chs}, 5
            s_and_b32 s31, s{LW}, 1
            s_lshl_b32 s31, s31, 4
            s_add_u32 s30, s30, s31
            s_mul_i32 s{WB}, s30, 1152
            s_mov_b32 s{LT}, 1
            v_mov_b32 v{VX}, v{VX2}
            v_mov_b32 v{VX+1}, v{VX2+1}
            v_mov_b32 v{VX+2}, v{VX2+2}
            v_mov_b32 v{VX+3}, v{VX2+3}
            """)
        a(f"s_cmp_eq_u32 s{S_TYPE}, 2\ns_cbranch_scc1 L_p1l_spare")
        a(f"""
        s_cmp_eq_u32 s{S_TYPE}, 0
        s_cselect_b32 s36, 2, 1
        s_cselect_b32 s37, 32, 16
        s_cselect_b32 s38, 16, 4
        s_lshr_b32 s30, s{LW}, 1
        s_lshl_b32 s30, s30, 6
        s_and_b32 s31, s{LW}, 1
        s_add_u32 s30, s30, s31
        s_lshl_b32 s31, s{LW}, 5
        s_cmp_eq_u32 s{S_TYPE}, 0
        s_cselect_b32 s30, s30, s31
        s_lshl_b32 s31, s{S_MB}, 7
        s_add_u32 s30, s30, s31
        s_mul_i32 s{XB}, s30, 1152
        s_mul_i32 s30, s{LW}, {16*3456}
        s_lshl_b32 s31, s{S_NB}, 8
        s_add_u32 s{WB}, s30, s31
        s_mov_b32 s{LT}, 0
        """)
        self.make_vx(VX, 4, "8", "s36", "s37", "s38", T)
        a(f"""
        v_lshrrev_b32 v{T}, 4, v2
        v_and_b32 v{T+1}, 15, v2
        v_lshlrev_b32 v{T+2}, 2, v{T}
        v_xor_b32 v{T+1}, v{T+1}, v{T+2}
        v_mul_u32_u24 v{T}, 3456, v{T}
        v_lshl_add_u32 v{VW}, v{T+1}, 4, v{T}
        v_add_u32 v{VW+1}, {4*3456-1024}, v{VW}
        v_add_u32 v{VW+2}, {2*(4*3456-1024)}, v{VW}
        v_add_u32 v{VW+3}, {3*(4*3456-1024)}, v{VW}
        v_mov_b32 v{VB}, 0
        v_mov_b32 v{VB+1}, 0
        """)
        self.srd(8, P_AX, 2048 * 1152); self.srd(12, P_WQKV, 576 * 3456)
        a("s_branch L_p1l_go")
        a.label("L_p1l_spare")
        self.make_vx(VX2, 4, "16", "1", "8", "4", T)
        self.make_vx(VB, 2, "4", "1", "16", "8", T)
        for i in range(4): a(f"v_mov_b32 v{VW+i}, 0")
        setup_b1(S_CHA)
        a.label("L_p1l_go")
        a(f"""
        s_mov_b32 s{SI}, 0
        s_mov_b32 s{KK}, s{S_ROT}
        s_lshl_b32 s{SL}, s{LW}, 12
        """)
        a.label("L_p1l_loop")
        a(f"""
        s_cmp_lt_u32 s{SI}, 3
        s_cbranch_scc1 L_p1l_nobar
        s_waitcnt vmcnt(12)
        s_barrier
        s_cmp_eq_u32 s{SI}, 9
        s_cbranch_scc1 L_p1l_switch
        s_cmp_eq_u32 s{SI}, 15
        s_cbranch_scc1 L_p1l_flag
        """)
        a.label("L_p1l_nobar")
        a(f"""
        s_mov_b32 m0, s{SL}
        s_lshl_b32 s30, s{KK}, 7
        s_add_u32 s31, s30, s{XB}
        """)
        for n in range(4): a(f"buffer_load_dwordx4 v{VX+n}, s[8:11], s31 offen offset:{n*1024} lds")
        a(f"""
        s_cmp_lg_u32 s{LT}, 0
        s_cbranch_scc1 L_p1l_b
        s_add_u32 m0, s{SL}, 16384
        s_mul_i32 s31, s{KK}, {64*3456}
        s_add_u32 s31, s31, s{WB}
        """)
        for n in range(4): a(f"buffer_load_dwordx4 v{VW+n}, s[12:15], s31 offen offset:{n*1024} lds")
        a("s_branch L_p1l_next")
        a.label("L_p1l_b")
        a(f"""
        s_lshl_b32 s32, s{LW}, 11
        s_sub_u32 s32, s{SL}, s32
        s_add_u32 m0, s32, 16384
        s_add_u32 s31, s30, s{WB}
        """)
        for n in range(2): a(f"buffer_load_dwordx4 v{VB+n}, s[12:15], s31 offen offset:{n*1024} lds")
        a.label("L_p1l_next")
        a(f"""
        s_add_u32 s{SL}, s{SL}, 32768
        s_and_b32 s{SL}, s{SL}, 0x1ffff
        s_add_u32 s{KK}, s{KK}, 1
        s_cmp_eq_u32 s{KK}, 9
        s_cselect_b32 s{KK}, 0, s{KK}
        s_add_u32 s{SI}, s{SI}, 1
        s_cmp_lt_u32 s{SI}, 18
        s_cbranch_scc1 L_p1l_loop
        s_waitcnt vmcnt(12)
        s_barrier
        s_waitcnt vmcnt(6)
        s_barrier
        s_waitcnt vmcnt(0)
        s_barrier
        s_branch L_p1_join
        """)
        a.label("L_p1l_switch")
        self.make_vx(VX2, 4, "16", "1", "8", "4", T)
        self.make_vx(VB, 2, "4", "1", "16", "8", T)
        setup_b1(S_CHB)
        a(f"global_load_dword v{VD}, v{VD+1}, s[{P_DBG}:{P_DBG+1}] sc0 sc1\ns_branch L_p1l_nobar")
        a.label("L_p1l_flag")
        a(f"s_mov_b32 s33, 0")
        a.label("L_p1l_chk")
        a(f"""
        v_readfirstlane_b32 s30, v{VD}
        s_cmp_eq_u32 s30, 1
        s_cbranch_scc1 L_p1l_ok
        s_add_u32 s33, s33, 1
        s_cmp_gt_u32 s33, {SPIN_MAX}
        s_cbranch_scc1 L_p1l_ok
        global_load_dword v{VD}, v{VD+1}, s[{P_DBG}:{P_DBG+1}] sc0 sc1
        s_waitcnt vmcnt(0)
        s_branch L_p1l_chk
        """)
        a.label("L_p1l_ok")
        a(f"""
        s_cmp_lg_u32 s{S_WAVE}, 7
        s_cbranch_scc1 L_p1l_nobar
        s_lshl_b32 s30, s2, 2
        s_add_u32 s30, s30, {F1}
        v_mov_b32 v{VD}, 1
        s_mov_b64 exec, 1
        buffer_store_dword v{VD}, v{VD+1}, s[4:7], s30 offen {WT}
        s_mov_b64 exec, -1
        s_branch L_p1l_nobar
        """)

    def p1_compute(self):
        a = self.a
        AX, AW, AB, Z = 4, 8, 8, 12
        FX, FW, ACC, T = 16, 32, 48, 112
        SS, SLOT, DL, WM, WN = 40, 41, 42, 43, 44
        a.label("L_p1_compute")
        a(f"""
        s_or_b32 s30, s2, s{S_WAVE}
        s_cmp_lg_u32 s30, 0
        s_cbranch_scc1 L_p1c_nz
        v_mov_b32 v{T}, 0
        v_mov_b32 v{T+1}, 0
        v_mov_b32 v{T+2}, 0
        v_mov_b32 v{T+3}, 0
        s_mov_b32 s30, {FL}
        """)
        for i in range(FLBYTES // 1024):
            a(f"buffer_store_dwordx4 v[{T}:{T+3}], v3, s[4:7], s30 offen offset:{(i%4)*1024} {WT}")
            if i % 4 == 3: a("s_add_u32 s30, s30, 4096")
        a(f"""
        s_waitcnt vmcnt(0)
        v_mov_b32 v{T+1}, 1
        s_mov_b64 exec, 1
        global_store_dword v{T}, v{T+1}, s[{P_DBG}:{P_DBG+1}] {WT}
        s_mov_b64 exec, -1
        """)
        a.label("L_p1c_nz")
        a(f"""
        v_and_b32 v{T}, 31, v2
        v_lshrrev_b32 v{T+1}, 5, v2
        v_bfe_u32 v{T+2}, v{T}, 1, 3
        v_xor_b32 v{T+2}, v{T+2}, v{T+1}
        v_lshlrev_b32 v{T+3}, 7, v{T}
        """)
        for s in range(4): a(f"v_xor_b32 v{T+4}, {2*s}, v{T+2}\nv_lshl_add_u32 v{Z+s}, v{T+4}, 4, v{T+3}")
        a(f"""
        s_mov_b32 s{SLOT}, 0
        s_mov_b32 s{S_HALF}, 0
        s_mov_b32 s29, s{S_CHA}
        s_cmp_eq_u32 s{S_TYPE}, 2
        s_cbranch_scc1 L_b1
        s_lshr_b32 s{WM}, s{S_WAVE}, 1
        s_and_b32 s{WN}, s{S_WAVE}, 1
        s_lshl_b32 s30, s{WM}, 13
        """)
        for s in range(4): a(f"v_add_u32 v{AX+s}, s30, v{Z+s}")
        a(f"""
        v_bfe_u32 v{T+2}, v2, 2, 2
        v_lshl_add_u32 v{T+3}, v{T+1}, 3, v{T+2}
        v_lshlrev_b32 v{T+3}, 8, v{T+3}
        v_bfe_u32 v{T+4}, v2, 4, 1
        v_lshl_add_u32 v{T+3}, v{T+4}, 5, v{T+3}
        v_and_b32 v{T+4}, 3, v2
        v_lshl_add_u32 v{T+3}, v{T+4}, 3, v{T+3}
        v_add_u32 v{T+3}, 16384, v{T+3}
        s_lshl_b32 s30, s{WN}, 1
        v_xor_b32 v{T+4}, s30, v{T+2}
        v_lshl_add_u32 v{AW}, v{T+4}, 6, v{T+3}
        v_xor_b32 v{AW+1}, 64, v{AW}
        """)
        for i in range(64): a(f"v_mov_b32 v{ACC+i}, 0")
        a(f"s_mov_b32 s{SS}, 0\ns_cmp_eq_u32 s{S_TYPE}, 1\ns_cbranch_scc1 L_a1v")
        def advance(regs):
            a(f"""
            s_add_u32 s30, s{SLOT}, 32768
            s_and_b32 s30, s30, 0x1ffff
            s_sub_u32 s{DL}, s30, s{SLOT}
            s_mov_b32 s{SLOT}, s30
            s_add_u32 s{SS}, s{SS}, 1
            """)
            for r in regs: a(f"v_add_u32 v{r}, s{DL}, v{r}")
        def a1loop(vtype, lab):
            def reads(s, buf):
                for mt in range(2): a(f"ds_read_b128 v[{FX+buf*8+mt*4}:{FX+buf*8+mt*4+3}], v{AX+s} offset:{mt*4096}")
                for nt in range(2):
                    for hf in range(2):
                        r = FW + buf * 8 + nt * 4 + hf * 2
                        a(f"ds_read_b64_tr_b16 v[{r}:{r+1}], v{AW+nt} offset:{s*4096 + hf*1024}")
            a.label(lab)
            a("s_barrier")
            self.stampx(16)
            reads(0, 0)
            for s in range(4):
                if s < 3: reads(s + 1, (s + 1) % 2); a("s_waitcnt lgkmcnt(6)")
                else: a("s_waitcnt lgkmcnt(0)")
                buf = s % 2
                for mt in range(2):
                    for nt in range(2):
                        d = ACC + (mt * 2 + nt) * 16
                        x = f"v[{FX+buf*8+mt*4}:{FX+buf*8+mt*4+3}]"; w = f"v[{FW+buf*8+nt*4}:{FW+buf*8+nt*4+3}]"
                        A, B = (x, w) if vtype else (w, x)
                        a(f"v_mfma_f32_32x32x16_bf16 v[{d}:{d+15}], {A}, {B}, v[{d}:{d+15}]")
            advance([AX, AX + 1, AX + 2, AX + 3, AW, AW + 1])
            a(f"s_cmp_lt_u32 s{SS}, 9\ns_cbranch_scc1 {lab}")
        a1loop(False, "L_a1qk")
        self.stamp(1)
        a(f"""
        s_lshl_b32 s30, s{S_NB}, 5
        s_lshl_b32 s31, s{WN}, 4
        s_add_u32 s30, s30, s31
        s_mul_i32 s31, s{S_MB}, 288
        s_add_u32 s31, s31, s30
        s_lshl_b32 s31, s31, 10
        s_lshl_b32 s32, s{WM}, 9
        s_add_u32 s31, s31, s32
        s_add_u32 s31, s31, {QKP}
        v_lshlrev_b32 v{T+2}, 4, v{T}
        v_lshl_add_u32 v{T+2}, v{T+1}, 10, v{T+2}
        s_mov_b32 s32, {QSCALE}
        s_cmp_ge_u32 s30, 144
        s_cbranch_scc1 L_a1qk_ns
        """)
        for i in range(64): a(f"v_mul_f32 v{ACC+i}, s32, v{ACC+i}")
        a.label("L_a1qk_ns")
        for nt in range(2):
            for g in range(4):
                o = FX + ((nt * 4 + g) % 8) * 4
                for mt in range(2):
                    d = ACC + (mt * 2 + nt) * 16 + 4 * g
                    a(f"v_cvt_pk_bf16_f32 v{o+2*mt}, v{d}, v{d+1}\nv_cvt_pk_bf16_f32 v{o+2*mt+1}, v{d+2}, v{d+3}")
                a(f"buffer_store_dwordx4 v[{o}:{o+3}], v{T+2}, s[4:7], s31 offen offset:{(g%2)*2048} {WT}")
                if g % 2 == 1: a("s_add_u32 s31, s31, 4096")
        a("s_branch L_a1done")
        a1loop(True, "L_a1v")
        self.stamp(1)
        a(f"""
        s_sub_u32 s30, s{S_NB}, 9
        s_lshl_b32 s30, s30, 7
        s_lshl_b32 s31, s{WN}, 6
        s_add_u32 s30, s30, s31
        s_cmp_ge_u32 s30, 576
        s_cbranch_scc1 L_a1done
        s_lshl_b32 s31, s{S_MB}, 4
        s_lshl_b32 s32, s{WM}, 3
        s_add_u32 s31, s31, s32
        s_mul_i32 s31, s31, 9216
        s_lshl_b32 s30, s30, 4
        s_add_u32 s31, s31, s30
        s_add_u32 s31, s31, {VT}
        v_mul_u32_u24 v{T+2}, 9216, v{T+1}
        v_lshl_add_u32 v{T+2}, v{T}, 4, v{T+2}
        """)
        for mt in range(2):
            for m in range(2):
                for nt in range(2):
                    d = ACC + (mt * 2 + nt) * 16 + 8 * m
                    for r in range(4): a(f"v_cvt_pk_bf16_f32 v{d+r}, v{d+2*r}, v{d+2*r+1}")
                    a(f"buffer_store_dwordx4 v[{d}:{d+3}], v{T+2}, s[4:7], s31 offen offset:{nt*512} {WT}")
                a(f"s_add_u32 s31, s31, {2*9216}")
        a.label("L_a1done")
        self.stamp(2)
        a(f"s_mov_b32 s{S_HALF}, 1\ns_mov_b32 s29, s{S_CHB}")
        a.label("L_b1")
        LT_ = T + 8
        a(f"""
        s_lshl_b32 s30, s29, 6
        v_lshl_add_u32 v{T+2}, v{T}, 1, s30
        global_load_ushort v{LT_}, v{T+2}, s[{P_LRE}:{P_LRE+1}]
        global_load_ushort v{LT_+1}, v{T+2}, s[{P_LIM}:{P_LIM+1}]
        global_load_ushort v{LT_+2}, v{T+2}, s[{P_LDT}:{P_LDT+1}]
        s_lshl_b32 s30, s{S_WAVE}, 12
        s_add_u32 s30, s30, s{SLOT}
        s_add_u32 s31, s{SLOT}, 16384
        """)
        for s in range(4): a(f"v_add_u32 v{AX+s}, s30, v{Z+s}\nv_add_u32 v{AB+s}, s31, v{Z+s}")
        for i in range(32): a(f"v_mov_b32 v{BS+i}, 0")
        a(f"s_mov_b32 s{SS}, 0")
        a.label("L_b1loop")
        a(f"s_cmp_lg_u32 s{SS}, 3\ns_cbranch_scc1 L_b1nw\ns_waitcnt vmcnt(0)")
        a.label("L_b1nw")
        a("s_barrier")
        self.stampx(16)
        def breads(s, buf):
            a(f"ds_read_b128 v[{FX+buf*4}:{FX+buf*4+3}], v{AX+s}")
            for nt in range(2): a(f"ds_read_b128 v[{FW+buf*8+nt*4}:{FW+buf*8+nt*4+3}], v{AB+s} offset:{nt*4096}")
        breads(0, 0)
        for s in range(4):
            if s < 3: breads(s + 1, (s + 1) % 2); a("s_waitcnt lgkmcnt(3)")
            else: a("s_waitcnt lgkmcnt(0)")
            buf = s % 2
            for nt in range(2):
                d = BS + nt * 16
                a(f"v_mfma_f32_32x32x16_bf16 v[{d}:{d+15}], v[{FX+buf*4}:{FX+buf*4+3}], v[{FW+buf*8+nt*4}:{FW+buf*8+nt*4+3}], v[{d}:{d+15}]")
        advance([AX, AX + 1, AX + 2, AX + 3, AB, AB + 1, AB + 2, AB + 3])
        a(f"s_cmp_lt_u32 s{SS}, 9\ns_cbranch_scc1 L_b1loop")
        self.stamp(3)
        self.lam_calc(LT_)
        GR, GI, TT = T + 4, T + 5, T + 6
        a(f"v_mov_b32 v{GR}, v{BS}\nv_mov_b32 v{GI}, v{BS+16}")
        for t in range(1, 16):
            last = t == 15
            a(f"""
            v_fma_f32 v{TT}, v{LR}, v{GR}, v{BS+t}
            v_fma_f32 v{TT+1}, v{LR}, v{GI}, v{BS+16+t}
            v_fma_f32 v{TT}, -v{LI}, v{GI}, v{TT}
            v_fma_f32 v{GI}, v{LI}, v{GR}, v{TT+1}
            v_mov_b32 v{GR}, v{TT}
            """)
        a(f"""
        s_lshl_b32 s30, s{S_HALF}, 11
        s_lshl_b32 s31, s{S_WAVE}, 9
        s_add_u32 s30, s30, s31
        s_add_u32 s30, s30, 131072
        v_lshl_add_u32 v{TT}, v2, 3, s30
        ds_write_b64 v{TT}, v[{GR}:{GI}]
        s_cmp_lg_u32 s{S_HALF}, 0
        s_cbranch_scc1 L_b1done
        """)
        for i in range(42): a(f"v_mov_b32 v{BSA+i}, v{BS+i}")
        a(f"s_mov_b32 s{S_HALF}, 1\ns_mov_b32 s29, s{S_CHB}\ns_branch L_b1")
        a.label("L_b1done")
        a("s_waitcnt lgkmcnt(0)")
        a.label("L_p1_join")
        a("s_barrier")
        self.stamp(4)
        a(f"s_cmp_ge_u32 s{S_WAVE}, 4\ns_cbranch_scc1 L_p1_end")
        a.label("L_pb")
        EB = T + 20
        a(f"""
        s_lshl_b32 s30, s{S_HALF}, 11
        s_add_u32 s30, s30, {131072 - 256}
        v_lshl_add_u32 v{TT+2}, v2, 3, s30
        v_mov_b32 v{LCR}, 0
        v_mov_b32 v{LCI}, 0
        v_mov_b32 v{PWR}, 1.0
        v_mov_b32 v{PWI}, 0
        s_lshl_b32 s31, s{S_WAVE}, 1
        s_mov_b32 s32, 0
        s_mov_b32 exec_lo, 0
        """)
        a.label("L_pbloop")
        a(f"""
        ds_read_b64 v[{EB}:{EB+1}], v{TT+2}
        v_mul_f32 v{TT}, v{MUR}, v{PWR}
        v_mul_f32 v{TT+1}, v{MUR}, v{PWI}
        v_fma_f32 v{TT}, -v{MUI}, v{PWI}, v{TT}
        v_fma_f32 v{PWI}, v{MUI}, v{PWR}, v{TT+1}
        v_mov_b32 v{PWR}, v{TT}
        s_waitcnt lgkmcnt(0)
        v_fma_f32 v{TT}, v{MUR}, v{LCR}, v{EB}
        v_fma_f32 v{TT+1}, v{MUR}, v{LCI}, v{EB+1}
        v_fma_f32 v{TT}, -v{MUI}, v{LCI}, v{TT}
        v_fma_f32 v{LCI}, v{MUI}, v{LCR}, v{TT+1}
        v_mov_b32 v{LCR}, v{TT}
        s_mov_b32 exec_lo, -1
        v_add_u32 v{TT+2}, 256, v{TT+2}
        s_add_u32 s32, s32, 1
        s_cmp_le_u32 s32, s31
        s_cbranch_scc1 L_pbloop
        s_cmp_lg_u32 s{S_WAVE}, 3
        s_cbranch_scc1 L_pbne
        ds_read_b64 v[{EB}:{EB+1}], v{TT+2}
        s_mul_i32 s30, s{S_MB}, {576*8}
        s_lshl_b32 s31, s29, 8
        s_add_u32 s30, s30, s31
        s_add_u32 s30, s30, {EE - 256}
        v_lshlrev_b32 v{TT+2}, 3, v2
        s_waitcnt lgkmcnt(0)
        v_fma_f32 v{EB}, v{MUR}, v{LCR}, v{EB}
        v_fma_f32 v{EB+1}, v{MUR}, v{LCI}, v{EB+1}
        v_fma_f32 v{EB}, -v{MUI}, v{LCI}, v{EB}
        v_fma_f32 v{EB+1}, v{MUI}, v{LCR}, v{EB+1}
        s_mov_b32 exec_lo, 0
        buffer_store_dwordx2 v[{EB}:{EB+1}], v{TT+2}, s[4:7], s30 offen {WT}
        s_mov_b32 exec_lo, -1
        """)
        a.label("L_pbne")
        for i in range(3):
            a(f"""
            v_mul_f32 v{TT}, v{MUI}, v{MUI}
            v_mul_f32 v{TT+1}, v{MUR}, v{MUI}
            v_fma_f32 v{MUR}, v{MUR}, v{MUR}, -v{TT}
            v_add_f32 v{MUI}, v{TT+1}, v{TT+1}
            """)
        a(f"""
        s_cmp_lg_u32 s{S_TYPE}, 2
        s_cbranch_scc1 L_p1_end
        s_cmp_eq_u32 s{S_HALF}, 0
        s_cbranch_scc1 L_p1_end
        """)
        for i in range(42): a(f"v_swap_b32 v{BSA+i}, v{BS+i}")
        a(f"s_mov_b32 s{S_HALF}, 0\ns_mov_b32 s29, s{S_CHA}\ns_branch L_pb")
        a.label("L_p1_end")

    def lam_calc(self, T):
        a = self.a; L2E = f32(math.log2(math.e))
        a(f"""
        v_lshlrev_b32 v{T}, 16, v{T}
        v_lshlrev_b32 v{T+1}, 16, v{T+1}
        v_lshlrev_b32 v{T+2}, 16, v{T+2}
        v_mul_f32 v{T+2}, {L2E}, v{T+2}
        v_exp_f32 v{T+2}, v{T+2}
        s_nop 0
        v_cvt_pk_bf16_f32 v{T+2}, v{T+2}, v{T+2}
        v_lshlrev_b32 v{T+2}, 16, v{T+2}
        v_mul_f32 v{T+3}, v{T+2}, v{T}
        v_mul_f32 v{T+4}, v{T+2}, v{T+1}
        v_mul_f32 v{T+3}, {L2E}, v{T+3}
        v_mul_f32 v{T+4}, {f32(1/(2*math.pi))}, v{T+4}
        v_exp_f32 v{T+3}, v{T+3}
        v_fract_f32 v{T+4}, v{T+4}
        v_cos_f32 v{T+5}, v{T+4}
        v_sin_f32 v{T+6}, v{T+4}
        s_nop 0
        v_mul_f32 v{LR}, v{T+3}, v{T+5}
        v_mul_f32 v{LI}, v{T+3}, v{T+6}
        v_mul_f32 v{T+3}, v{T}, v{T}
        v_fmac_f32 v{T+3}, v{T+1}, v{T+1}
        v_rcp_f32 v{T+3}, v{T+3}
        v_add_f32 v{T+4}, -1.0, v{LR}
        v_mul_f32 v{T+5}, v{T+4}, v{T}
        v_fmac_f32 v{T+5}, v{LI}, v{T+1}
        v_mul_f32 v{T+6}, v{LI}, v{T}
        v_fma_f32 v{T+6}, -v{T+4}, v{T+1}, v{T+6}
        v_add_f32 v{T+3}, v{T+3}, v{T+3}
        v_mul_f32 v{CR}, v{T+5}, v{T+3}
        v_mul_f32 v{CI}, v{T+6}, v{T+3}
        v_mov_b32 v{MUR}, v{LR}
        v_mov_b32 v{MUI}, v{LI}
        """)
        for i in range(4):
            a(f"""
            v_mul_f32 v{T+3}, v{MUI}, v{MUI}
            v_mul_f32 v{T+4}, v{MUR}, v{MUI}
            v_fma_f32 v{MUR}, v{MUR}, v{MUR}, -v{T+3}
            v_add_f32 v{MUI}, v{T+4}, v{T+4}
            """)

    def poll(self, lab, vdst, voff, soff, n=1, first_issued=False):
        a = self.a
        ld = f"buffer_load_dword v{vdst}, v{voff}, s[4:7], {soff} offen sc0 sc1" if n == 1 else f"buffer_load_dwordx4 v[{vdst}:{vdst+3}], v{voff}, s[4:7], {soff} offen sc0 sc1"
        a("s_mov_b32 s33, 0")
        if first_issued: a(f"s_branch {lab}_c")
        a.label(lab)
        a(ld + "\ns_waitcnt vmcnt(0)")
        a.label(lab + "_c")
        if n == 4:
            a(f"v_and_b32 v{vdst}, v{vdst}, v{vdst+1}\nv_and_b32 v{vdst+2}, v{vdst+2}, v{vdst+3}\nv_and_b32 v{vdst}, v{vdst}, v{vdst+2}")
        a(f"""
        v_cmp_ne_u32 vcc, 1, v{vdst}
        s_add_u32 s33, s33, 1
        s_cmp_gt_u32 s33, {SPIN_MAX}
        s_cbranch_scc1 {lab}_x
        s_cbranch_vccz {lab}_x
        s_sleep 1
        s_branch {lab}
        """)
        a.label(lab + "_x")

    def attention(self):
        a = self.a
        QM, QL, IDX, AK, AV, AL, T0, T1 = 4, 8, 10, 11, 12, 13, 14, 15
        KM, KL, VF, O, S0, S1 = 16, 24, 28, 44, 60, 92
        LK, LV, LL, VV, V3, PT = 124, 125, 126, 127, 128, 132
        HD, TQ, PAR, CH, IT, DK, DV, FB, MC, MB_, MI = 40, 41, 42, 43, 44, 45, 46, 47, 48, 49, 50
        GK, GV, G3, L3, GS3, LS3, NC = 51, 52, 53, 54, 55, 56, 57
        KCH, VCH = 10240, 32 * VROW
        C0 = 0
        a(f"""
        s_lshl_b32 s{HD}, s{S_XCD}, 2
        s_and_b32 s30, s{S_IDX}, 3
        s_add_u32 s{HD}, s{HD}, s30
        s_lshr_b32 s{TQ}, s{S_IDX}, 2
        s_lshl_b32 s{TQ}, s{TQ}, 3
        s_add_u32 s{TQ}, s{TQ}, s{S_WAVE}
        s_and_b32 s{PAR}, s{HD}, 1
        s_mov_b32 s30, {F1}
        """)
        self.poll("L_pollF1", S0, 3, "s30", n=4)
        self.stamp(5)
        a(f"""
        v_and_b32 v1, 31, v2
        v_lshrrev_b32 v{T1}, 5, v2
        v_lshlrev_b32 v{T0}, 3, v1
        v_lshl_add_u32 v{LK}, v{T1}, 11, v{T0}
        s_lshl_b32 s30, s{PAR}, 10
        v_add_u32 v{LK}, s30, v{LK}              ; par*1024 + h*2048 + i*8
        s_mul_i32 s31, s{PAR}, 4092
        s_sub_u32 s31, 4096, s31                 ; par ? 4 : 4096
        v_lshl_add_u32 v{LL}, v2, 3, s31
        v_add_u32 v{T0}, s31, v{T0}
        s_lshr_b32 s30, s{HD}, 1
        s_mul_i32 s30, s30, 9
        s_lshl_b32 s32, s{PAR}, 2
        s_add_u32 s30, s30, s32                  ; f
        s_lshr_b32 s32, s{TQ}, 2
        s_mul_i32 s32, s32, 288
        s_add_u32 s32, s32, s30
        s_lshl_b32 s32, s32, 10
        s_and_b32 s34, s{TQ}, 3
        s_lshl_b32 s34, s34, 8
        s_add_u32 s32, s32, s34
        s_add_u32 s32, s32, {QKP}
        buffer_load_dwordx2 v[{QM}:{QM+1}], v{LK}, s[4:7], s32 offen sc0 sc1
        buffer_load_dwordx2 v[{QM+2}:{QM+3}], v{LK}, s[4:7], s32 offen offset:1024 sc0 sc1
        buffer_load_dword v{QL}, v{T0}, s[4:7], s32 offen sc0 sc1
        """)
        a(f"""
        s_add_u32 s30, s30, 144
        s_lshl_b32 s30, s30, 10
        s_add_u32 s30, s30, {QKP + C0*2*288*1024}
        s_cmp_ge_u32 s{S_WAVE}, 5
        s_cselect_b32 s31, {283*1024}, 0
        s_lshl_b32 s32, s{S_WAVE}, 10
        s_add_u32 s{GK}, s30, s31
        s_add_u32 s{GK}, s{GK}, s32
        s_mul_i32 s34, s{HD}, 288
        s_add_u32 s34, s34, {VT + C0*32*9216}
        s_mul_i32 s31, s{S_WAVE}, {3*9216}
        s_add_u32 s{GV}, s34, s31
        v_mul_u32_u24 v{T0}, 27, v2
        v_lshrrev_b32 v{T0}, 9, v{T0}                 ; lane/19
        v_mul_u32_u24 v{VV}, 19, v{T0}
        v_sub_u32 v{VV}, v2, v{VV}                    ; lane%19
        v_cmp_gt_u32 vcc, 18, v{VV}
        v_cmp_gt_u32 s[58:59], 3, v{T0}
        v_mul_u32_u24 v{T0}, 9216, v{T0}
        v_lshl_add_u32 v{VV}, v{VV}, 4, v{T0}
        s_and_b64 s[58:59], s[58:59], vcc
        s_cmp_lt_u32 s{S_WAVE}, 2
        s_cbranch_scc1 L_at3k
        s_cmp_lt_u32 s{S_WAVE}, 5
        s_cbranch_scc1 L_at3v
        s_mov_b32 s{G3}, s{GK}
        s_mov_b32 s{L3}, s32
        s_branch L_at3k2
        """)
        a.label("L_at3k")
        a(f"""
        s_add_u32 s{G3}, s30, {(283+8)*1024}
        s_add_u32 s{G3}, s{G3}, s32
        s_add_u32 s{L3}, s32, 8192
        """)
        a.label("L_at3k2")
        a(f"""
        s_add_u32 s{L3}, s{L3}, {LDS_K + C0*KCH}
        s_mov_b32 s{GS3}, {2*288*1024}
        s_mov_b32 s{LS3}, {KCH}
        s_mov_b64 s[60:61], -1
        v_mov_b32 v{V3}, v3
        s_branch L_at3d
        """)
        a.label("L_at3v")
        a(f"""
        s_add_u32 s{G3}, s{GV}, {6*3*9216}
        s_mul_i32 s{L3}, s{S_WAVE}, {3*VROW}
        s_add_u32 s{L3}, s{L3}, {LDS_V + 6*3*VROW + C0*VCH}
        s_mov_b32 s{GS3}, {32*9216}
        s_mov_b32 s{LS3}, {VCH}
        s_mov_b64 s[60:61], s[58:59]
        v_mov_b32 v{V3}, v{VV}
        """)
        a.label("L_at3d")
        a(f"s_mov_b32 s{NC}, 0")
        def dma_chunk():
            a(f"""
            s_mul_i32 s30, s{NC}, {KCH}
            s_lshl_b32 s31, s{S_WAVE}, 10
            s_add_u32 m0, s30, s31
            s_mul_i32 s30, s{NC}, {VCH}
            buffer_load_dwordx4 v3, s[4:7], s{GK} offen sc0 sc1 lds
            s_mul_i32 s31, s{S_WAVE}, {3*VROW}
            s_add_u32 s30, s30, s31
            s_add_u32 m0, s30, {LDS_V}
            s_mov_b64 exec, s[58:59]
            buffer_load_dwordx4 v{VV}, s[4:7], s{GV} offen sc0 sc1 lds
            s_mov_b32 m0, s{L3}
            s_mov_b64 exec, s[60:61]
            buffer_load_dwordx4 v{V3}, s[4:7], s{G3} offen sc0 sc1 lds
            s_mov_b64 exec, -1
            s_add_u32 s{GK}, s{GK}, {2*288*1024}
            s_add_u32 s{GV}, s{GV}, {32*9216}
            s_add_u32 s{G3}, s{G3}, s{GS3}
            s_add_u32 s{L3}, s{L3}, s{LS3}
            s_add_u32 s{NC}, s{NC}, 1
            """)
        dma_chunk(); dma_chunk()
        a(f"""
        v_min_u32 v{AV}, 18, v1
        v_mul_u32_u24 v{T1}, {VROW}, v{T1}
        v_lshl_add_u32 v{LV}, v{AV}, 4, v{T1}
        v_add_u32 v{LV}, {LDS_V}, v{LV}
        v_cmp_lt_u32 vcc, 18, v1
        v_cmp_ne_u32 s[30:31], 28, v1
        s_and_b64 vcc, vcc, s[30:31]
        v_mov_b32 v{T1}, 0x100000
        v_mov_b32 v{IDX}, 0xdddd
        v_cndmask_b32 v{LV}, v{LV}, v{T1}, vcc
        v_mov_b32 v{KL+1}, 0x3f803f80
        v_mov_b32 v{KL+3}, 0x3f803f80
        v_mov_b32 v{KL}, 0x3f803f80
        v_mov_b32 v{KL+2}, 0x3f803f80
        v_and_b32 v{T0}, 127, v0
        v_mul_u32_u24 v{T0}, {VROW}, v{T0}
        v_add_u32 v{V3+1}, {LDS_V + 18*16}, v{T0}
        ds_write_b128 v{V3+1}, v[{KL}:{KL+3}]
        s_mov_b32 s62, 0
        s_mov_b32 s63, -1
        s_mov_b32 s{FB}, 0
        s_mov_b32 s{MC}, 1
        s_mov_b32 s{MB_}, {C0*KCH}
        s_waitcnt vmcnt(3) lgkmcnt(0)
        s_barrier
        ds_write_b128 v{V3+1}, v[{KL}:{KL+3}] offset:{128*VROW}
        """)
        a(f"""
        s_cmp_lg_u32 s{S_WAVE}, 3
        s_cbranch_scc1 L_nof2
        s_lshl_b32 s30, s{S_CHB}, 4
        s_add_u32 s30, s30, s{S_MB}
        s_lshl_b32 s30, s30, 2
        s_add_u32 s30, s30, {F2}
        s_lshl_b32 s31, s29, 4
        s_add_u32 s31, s31, s{S_MB}
        s_lshl_b32 s31, s31, 2
        s_add_u32 s31, s31, {F2}
        v_mov_b32 v{T0}, 0
        v_mov_b32 v{T1}, 1
        s_mov_b64 exec, 1
        buffer_store_dword v{T1}, v{T0}, s[4:7], s30 offen {WT}
        buffer_store_dword v{T1}, v{T0}, s[4:7], s31 offen {WT}
        s_mov_b64 exec, -1
        """)
        a.label("L_nof2")
        self.stamp(6)
        a.label("L_maxpass")
        MX = T1
        a(f"""
        v_add_u32 v{AK}, s{MB_}, v{LK}
        v_add_u32 v{AL}, s{MB_}, v{LL}
        v_mov_b32 v{QL+1}, 0
        v_mov_b32 v{MX}, 0xff800000
        s_mov_b32 s{MI}, 0
        """)
        def rdKm(t, p, A=AK):
            off = (p // 2) * 5120 + (2 * (p % 2) + t) * 256
            a(f"ds_read_b64 v[{KM+4*t}:{KM+4*t+1}], v{A} offset:{off}\nds_read_b64 v[{KM+4*t+2}:{KM+4*t+3}], v{A} offset:{off+1024}")
        def rdKl(p):
            a(f"ds_read_b32 v{KL+2*(p%2)}, v{AL} offset:{(p//2)*5120 + (p%2)*512}")
        def rdV(n, p): a(f"ds_read_b128 v[{VF+4*n}:{VF+4*n+3}], v{AV} offset:{(p*8+n*2)*VROW}")
        def b2(N, p): a(f"v_mfma_f32_32x32x4_2b_bf16 v[{N}:{N+31}], v[{KL+2*(p%2)}:{KL+2*(p%2)+1}], v[{QL}:{QL+1}], 0")
        def mainm(N, t): a(f"v_mfma_f32_32x32x16_bf16 v[{N+16*t}:{N+16*t+15}], v[{KM+4*t}:{KM+4*t+3}], v[{QM}:{QM+3}], v[{N+16*t}:{N+16*t+15}]")
        def smf(n, S): a(f"v_smfmac_f32_32x32x32_bf16 v[{O}:{O+15}], v[{VF+4*n}:{VF+4*n+3}], v[{S+8*n}:{S+8*n+7}], v{IDX}")
        def E(S, lo, hi):
            for r in range(lo, hi): a(f"v_exp_f32 v{S+r}, v{S+r}")
        a.label("L_maxloop")
        rdKl(0); rdKm(0, 0); rdKm(1, 0)
        a(f"""
        s_and_b32 s30, s{MI}, 1
        s_mul_i32 s30, s30, {5120-1024}
        s_add_u32 s30, s30, 512
        s_add_u32 s{MI}, s{MI}, 1
        s_waitcnt lgkmcnt(0)
        """)
        b2(S0, 0)
        a(f"v_add_u32 v{AK}, s30, v{AK}\nv_add_u32 v{AL}, s30, v{AL}\ns_nop 15")
        mainm(S0, 0); mainm(S0, 1)
        a("s_nop 10")
        for i in range(16): a(f"v_max3_f32 v{MX}, v{S0+2*i}, v{S0+2*i+1}, v{MX}")
        a(f"""
        s_cmp_lt_u32 s{MI}, s{MC}
        s_cbranch_scc1 L_maxloop
        v_mov_b32 v{T0}, v{MX}
        s_nop 1
        v_permlane32_swap_b32 v{T0}, v{MX}
        s_nop 1
        v_max_f32 v{MX}, v{T0}, v{MX}
        v_cvt_pk_bf16_f32 v{T0}, -v{MX}, 0
        v_lshlrev_b32 v{T0}, 16, v{T0}
        v_sub_f32 v{T0}, -v{MX}, v{T0}
        v_cvt_pk_bf16_f32 v{QL+1}, -v{MX}, v{T0}
        v_add_u32 v{AK}, {C0*KCH}, v{LK}
        v_add_u32 v{AL}, {C0*KCH}, v{LL}
        v_add_u32 v{AV}, {C0*VCH}, v{LV}
        s_mov_b32 s{CH}, {C0}
        s_mov_b32 s{IT}, 0
        """)
        rdKl(0); rdKm(0, 0); rdKm(1, 0); rdKl(1)
        rdV(0, 0); rdV(1, 0); rdV(2, 0)
        for i in range(16): a(f"v_mov_b32 v{O+i}, 0")
        for i in range(8): a(f"v_mov_b32 v{S1+24+i}, 0")
        for i in range(4): a(f"v_mov_b32 v{VF+12+i}, 0")
        a("s_waitcnt lgkmcnt(0)")
        b2(S0, 0)
        a("s_nop 15\ns_nop 1")
        mainm(S0, 0); mainm(S0, 1)
        rdKm(0, 1); rdKm(1, 1)
        a("s_nop 5\ns_waitcnt lgkmcnt(0)")
        self.stamp(7)
        a.raw(".p2align 6")
        a.label("L_loop")
        for i in range(4):
            C, N = (S0, S1) if i % 2 == 0 else (S1, S0)
            if i == 0:
                a(f"""
                s_add_u32 s30, s{CH}, 1
                s_and_b32 s30, s30, 7
                s_sub_u32 s31, s30, s{CH}
                s_mul_i32 s{DK}, s31, {KCH}
                s_mul_i32 s{DV}, s31, {VCH}
                s_mov_b32 s{CH}, s30
                """)
            E(C, 0, 2)
            a("s_waitcnt lgkmcnt(5)")
            smf(3, N); rdV(3, i)
            if i == 3: a(f"v_add_u32 v{AV}, s{DV}, v{AV}")
            if i == 2:
                a(f"""
                v_add_u32 v{AK}, s{DK}, v{AK}
                v_add_u32 v{AL}, s{DK}, v{AL}
                s_add_u32 s30, s{IT}, s{FB}
                s_cmp_lt_u32 s30, 4
                s_cbranch_scc1 L_hook
                """)
                a.label("L_hookret")
            E(C, 2, 6)
            b2(N, i + 1)
            rdKl((i + 2) % 4)
            E(C, 6, 12)
            smf(0, C); rdV(0, (i + 1) % 4)
            E(C, 12, 18)
            smf(1, C); rdV(1, (i + 1) % 4)
            E(C, 18, 22)
            a("s_waitcnt lgkmcnt(4)")
            mainm(N, 0); rdKm(0, (i + 2) % 4)
            E(C, 22, 26)
            smf(2, C); rdV(2, (i + 1) % 4)
            E(C, 26, 30)
            mainm(N, 1); rdKm(1, (i + 2) % 4)
            if i == 3: a(f"s_add_u32 s{IT}, s{IT}, 1\ns_cmp_lt_u32 s{IT}, 8")
            E(C, 30, 32)
        a("s_cbranch_scc1 L_loop")
        a("s_waitcnt lgkmcnt(0)\ns_nop 0")
        smf(3, S1)
        self.stamp(8)
        L, SUM = T0, T1
        a(f"s_nop 11\nv_cndmask_b32 v{L}, v{O+10}, v{O+12}, s[62:63]\nv_add_f32 v{SUM}, |v{O}|, |v{O+1}|")
        for r in range(2, 10): a(f"v_add_f32 v{SUM}, v{SUM}, |v{O+r}|")
        a(f"""
        s_mov_b32 s30, 0x5d800000
        s_mov_b32 s31, 0x7f7fffff
        v_cmp_nge_f32 vcc, s30, v{L}
        v_cmp_nge_f32 s[34:35], s31, v{SUM}
        s_or_b64 vcc, vcc, s[34:35]
        s_cmp_lg_u32 s{FB}, 0
        s_cbranch_scc1 L_fin
        s_cmp_eq_u64 vcc, 0
        s_cbranch_scc1 L_fin
        s_mov_b32 s{FB}, 8
        s_mov_b32 s{MC}, 32
        s_mov_b32 s{MB_}, 0
        s_branch L_maxpass
        """)
        a.label("L_hook")
        FV, EV = PT, 236
        a(f"""
        s_cmp_eq_u32 s{IT}, 2
        s_cbranch_scc1 L_hook2
        s_waitcnt vmcnt(0)
        s_barrier
        s_cmp_eq_u32 s{IT}, 3
        s_cbranch_scc1 L_hook3
        """)
        dma_chunk(); dma_chunk()
        a("s_branch L_hookret")
        a.label("L_hook3")
        a(f"""
        s_cmp_ge_u32 s{S_WAVE}, 4
        s_cbranch_scc1 L_hookret
        s_mul_i32 s30, s{S_MB}, 18
        s_add_u32 s31, s30, s{S_CHB}
        s_lshl_b32 s31, s31, 2
        s_add_u32 s31, s31, s{S_WAVE}
        s_lshl_b32 s31, s31, 2
        s_add_u32 s31, s31, {F3}
        s_cmp_eq_u32 s{S_TYPE}, 2
        s_cselect_b32 s32, s{S_CHA}, s{S_CHB}
        s_add_u32 s32, s30, s32
        s_lshl_b32 s32, s32, 2
        s_add_u32 s32, s32, s{S_WAVE}
        s_lshl_b32 s32, s32, 2
        s_add_u32 s32, s32, {F3}
        v_mov_b32 v{PT}, 0
        v_mov_b32 v{PT+1}, 1
        s_mov_b64 exec, 1
        buffer_store_dword v{PT+1}, v{PT}, s[4:7], s31 offen {WT}
        buffer_store_dword v{PT+1}, v{PT}, s[4:7], s32 offen {WT}
        s_mov_b64 exec, -1
        s_branch L_hookret
        """)
        a.label("L_hook2")
        dma_chunk(); dma_chunk()
        a(f"s_cmp_ge_u32 s{S_WAVE}, 4\ns_cbranch_scc1 L_hookret")
        self.pass2(PT)
        a("s_branch L_hookret")
        a.label("L_fin")
        a(f"v_rcp_f32 v{L}, v{L}\ns_nop 0")
        for r in range(10): a(f"v_mul_f32 v{O+r}, v{O+r}, v{L}")
        for r in range(5): a(f"v_cvt_pk_bf16_f32 v{S0+r}, v{O+2*r}, v{O+2*r+1}")
        a(f"""
        s_mul_i32 s30, s{TQ}, {36*1024}
        s_add_u32 s30, s30, {OW}
        s_lshl_b32 s31, s{HD}, 10
        s_add_u32 s31, s31, s30
        buffer_store_dwordx4 v[{S0}:{S0+3}], v3, s[4:7], s31 offen {WT}
        s_lshl_b32 s31, s{HD}, 7
        s_add_u32 s31, s31, s30
        s_add_u32 s31, s31, 32768
        v_lshlrev_b32 v{T0}, 2, v2
        s_mov_b32 exec_hi, 0
        buffer_store_dword v{S0+4}, v{T0}, s[4:7], s31 offen {WT}
        s_lshl_b32 s31, s{TQ}, 5
        s_add_u32 s31, s31, s{HD}
        s_lshl_b32 s31, s31, 2
        s_add_u32 s31, s31, {F4}
        v_mov_b32 v{T1}, 1
        s_mov_b64 exec, 1
        s_waitcnt vmcnt(0)
        buffer_store_dword v{T1}, v{T0}, s[4:7], s31 offen {WT}
        s_mov_b64 exec, -1
        """)
        self.stamp(9)

    def pass2(self, T):
        a = self.a
        GR, GI, TT, EB, AD = T, T + 1, T + 2, T + 4, T + 6
        a.label("L_p2")
        a(f"""
        v_mov_b32 v{GR}, 0
        v_mov_b32 v{GI}, 0
        s_cmp_eq_u32 s{S_MB}, 0
        s_cbranch_scc1 L_p2nc
        s_lshl_b32 s34, s29, 6
        s_add_u32 s34, s34, {F2}
        s_sub_u32 s35, s{S_MB}, 1
        v_min_u32 v{AD}, s35, v2
        v_lshlrev_b32 v{AD}, 2, v{AD}
        """)
        self.poll("L_pollF2", EB, AD, "s34", n=1)
        a(f"""
        v_and_b32 v{AD}, 31, v2
        v_lshlrev_b32 v{AD}, 3, v{AD}
        s_lshl_b32 s34, s29, 8
        s_add_u32 s34, s34, {EE}
        s_mov_b32 s35, 0
        """)
        a.label("L_p2grp")
        for j in range(8):
            a(f"buffer_load_dwordx2 v[{236+2*j}:{237+2*j}], v{AD}, s[4:7], s34 offen sc0 sc1\ns_add_u32 s34, s34, {576*8}")
        for j in range(8):
            a(f"""
            s_waitcnt vmcnt({7-j})
            v_fma_f32 v{TT}, v{MUR}, v{GR}, v{236+2*j}
            v_fma_f32 v{TT+1}, v{MUR}, v{GI}, v{237+2*j}
            v_fma_f32 v{TT}, -v{MUI}, v{GI}, v{TT}
            v_fma_f32 v{GI}, v{MUI}, v{GR}, v{TT+1}
            v_mov_b32 v{GR}, v{TT}
            s_add_u32 s35, s35, 1
            s_cmp_ge_u32 s35, s{S_MB}
            s_cbranch_scc1 L_p2nc
            """)
        a("s_branch L_p2grp")
        a.label("L_p2nc")
        a(f"""
        v_fma_f32 v{TT}, v{PWR}, v{GR}, v{LCR}
        v_fma_f32 v{TT+1}, v{PWR}, v{GI}, v{LCI}
        v_fma_f32 v{TT}, -v{PWI}, v{GI}, v{TT}
        v_fma_f32 v{GI}, v{PWI}, v{GR}, v{TT+1}
        v_mov_b32 v{GR}, v{TT}
        """)
        for t in range(16):
            a(f"""
            v_fma_f32 v{TT}, v{LR}, v{GR}, v{BS+t}
            v_fma_f32 v{TT+1}, v{LR}, v{GI}, v{BS+16+t}
            v_fma_f32 v{TT}, -v{LI}, v{GI}, v{TT}
            v_fma_f32 v{GI}, v{LI}, v{GR}, v{TT+1}
            v_mov_b32 v{GR}, v{TT}
            v_mul_f32 v{BS+t}, v{CR}, v{TT}
            v_mul_f32 v{BS+16+t}, v{CR}, v{GI}
            v_fma_f32 v{BS+t}, -v{CI}, v{GI}, v{BS+t}
            v_fma_f32 v{BS+16+t}, -v{CI}, v{TT}, -v{BS+16+t}
            """)
        a(f"""
        s_lshl_b32 s34, s{S_MB}, 2
        s_add_u32 s34, s34, s{S_WAVE}
        s_mul_i32 s34, s34, 36
        s_add_u32 s34, s34, s29
        s_lshl_b32 s34, s34, 11
        s_add_u32 s34, s34, {HH}
        s_add_u32 s35, s34, {18*2048}
        v_lshrrev_b32 v{TT}, 5, v2
        v_and_b32 v{AD}, 31, v2
        v_lshlrev_b32 v{AD}, 4, v{AD}
        v_mul_u32_u24 v{TT}, {1024+128}, v{TT}
        v_xor_b32 v{AD}, v{AD}, v{TT}              ; h*1024 + (ch ^ 8h)*16
        v_xor_b32 v{AD+1}, {512+64}, v{AD}
        """)
        for c in range(2):
            for jj in range(2):
                d = BS + 16 * c + 8 * jj
                for r in range(4): a(f"v_cvt_pk_bf16_f32 v{d+r}, v{d+2*r}, v{d+2*r+1}")
                a(f"buffer_store_dwordx4 v[{d}:{d+3}], v{AD+jj}, s[4:7], s{34+c} offen {WT}")
        a(f"""
        s_cmp_eq_u32 s29, s{S_CHB}
        s_cbranch_scc1 L_p2end
        s_nop 1
        """)
        for i in range(42): a(f"v_mov_b32 v{BS+i}, v{BSA+i}")
        a(f"s_mov_b32 s29, s{S_CHB}\ns_branch L_p2")
        a.label("L_p2end")

    def p3(self):
        a = self.a
        MB, NB, LW, SI, KK, HB, CB, SL, SS, SLOT, DL, TT_ = 40, 41, 42, 43, 44, 45, 46, 47, 48, 49, 50, 51
        a(f"""
        s_cmp_ge_u32 s{S_IDX}, 30
        s_cbranch_scc1 L_exit
        s_barrier
        s_lshl_b32 s{MB}, s{S_XCD}, 1
        s_and_b32 s30, s{S_IDX}, 1
        s_add_u32 s{MB}, s{MB}, s30
        s_lshr_b32 s{NB}, s{S_IDX}, 1
        s_and_b32 s{LW}, s{S_WAVE}, 3
        s_lshl_b32 s{TT_}, s{MB}, 2
        s_add_u32 s{TT_}, s{TT_}, s{LW}
        """)
        self.srd(16, P_OUT, OUT_BYTES)
        a(f"s_cmp_ge_u32 s{S_IDX}, 18\ns_cbranch_scc1 L_a3\ns_cmp_lt_u32 s{S_WAVE}, 4\ns_cbranch_scc1 L_b3c")
        VB, T = 4, 20
        self.make_vx(VB, 2, "4", "1", "16", "8", T)
        a(f"""
        s_mul_i32 s34, s{MB}, {72*4}
        s_add_u32 s34, s34, {F3}
        v_min_u32 v{T+4}, 17, v2
        v_lshlrev_b32 v{T+4}, 4, v{T+4}
        """)
        self.poll("L_pollF3", T + 8, T + 4, "s34", n=4)
        a(f"""
        s_mul_i32 s{HB}, s{TT_}, 73728
        s_add_u32 s{HB}, s{HB}, {HH}
        s_lshl_b32 s30, s{NB}, 6
        s_lshl_b32 s31, s{LW}, 4
        s_add_u32 s30, s30, s31
        s_mul_i32 s{CB}, s30, 1152
        s_mov_b32 s14, {576*1152}
        s_mov_b32 s15, 0x20000
        s_mov_b32 s{SI}, 0
        s_lshl_b32 s{KK}, s{S_ROT}, 1
        s_lshl_b32 s{SL}, s{LW}, 12
        """)
        a.label("L_b3l_loop")
        a(f"""
        s_cmp_lt_u32 s{SI}, 3
        s_cbranch_scc1 L_b3l_nb
        s_waitcnt vmcnt(12)
        s_barrier
        """)
        a.label("L_b3l_nb")
        a(f"""
        s_mov_b32 m0, s{SL}
        s_lshl_b32 s31, s{KK}, 12
        s_add_u32 s31, s31, s{HB}
        """)
        for n in range(4): a(f"buffer_load_dwordx4 v3, s[4:7], s31 offen offset:{n*1024} sc0 sc1 lds")
        a(f"""
        s_cmp_lt_u32 s{KK}, 9
        s_cselect_b32 s12, s{P_CRE}, s{P_CIM}
        s_cselect_b32 s13, s{P_CRE+1}, s{P_CIM+1}
        s_cselect_b32 s30, 0, 9
        s_and_b32 s13, s13, 0xffff
        s_sub_u32 s30, s{KK}, s30
        s_lshl_b32 s30, s30, 7
        s_lshl_b32 s32, s{LW}, 11
        s_sub_u32 s32, s{SL}, s32
        s_add_u32 m0, s32, 16384
        s_add_u32 s31, s30, s{CB}
        """)
        for n in range(2): a(f"buffer_load_dwordx4 v{VB+n}, s[12:15], s31 offen offset:{n*1024} lds")
        a(f"""
        s_add_u32 s{SL}, s{SL}, 32768
        s_and_b32 s{SL}, s{SL}, 0x1ffff
        s_add_u32 s{KK}, s{KK}, 1
        s_cmp_eq_u32 s{KK}, 18
        s_cselect_b32 s{KK}, 0, s{KK}
        s_add_u32 s{SI}, s{SI}, 1
        s_cmp_lt_u32 s{SI}, 18
        s_cbranch_scc1 L_b3l_loop
        s_waitcnt vmcnt(12)
        s_barrier
        s_waitcnt vmcnt(6)
        s_barrier
        s_waitcnt vmcnt(0)
        s_barrier
        s_branch L_exit
        """)
        a.label("L_b3c")
        AC, AH, EA, FC, FH, ACC, T, XD = 4, 8, 10, 16, 32, 40, 72, 84
        a(f"""
        v_lshrrev_b32 v{T+1}, 5, v2
        v_bfe_u32 v{T+2}, v2, 2, 2
        v_lshl_add_u32 v{T+3}, v{T+1}, 3, v{T+2}
        v_bfe_u32 v{T+4}, v2, 4, 1
        v_bfe_u32 v{T+5}, v2, 1, 1
        v_lshl_add_u32 v{T+4}, v{T+4}, 1, v{T+5}    ; j
        v_lshlrev_b32 v{T+5}, 2, v{T+4}
        v_xor_b32 v{T+6}, v{T+3}, v{T+5}
        v_and_b32 v{T+5}, 1, v2
        v_lshlrev_b32 v{T+5}, 3, v{T+5}
        v_lshl_add_u32 v{T+5}, v{T+4}, 9, v{T+5}
        s_lshl_b32 s30, s{LW}, 12
        v_add_u32 v{T+5}, s30, v{T+5}
        v_lshl_add_u32 v{AH}, v{T+6}, 4, v{T+5}
        v_xor_b32 v{AH+1}, 64, v{AH}
        v_and_b32 v{T}, 31, v2
        v_bfe_u32 v{T+2}, v{T}, 1, 3
        v_xor_b32 v{T+2}, v{T+2}, v{T+1}
        v_lshlrev_b32 v{T+3}, 7, v{T}
        v_add_u32 v{T+3}, 16384, v{T+3}
        """)
        for s in range(4): a(f"v_xor_b32 v{T+4}, {2*s}, v{T+2}\nv_lshl_add_u32 v{AC+s}, v{T+4}, 4, v{T+3}")
        a(f"""
        v_mul_u32_u24 v{EA}, 4608, v{T}
        v_lshl_add_u32 v{EA}, v{T+1}, 4, v{EA}
        v_mul_u32_u24 v{EA+1}, 1152, v{T}
        v_lshl_add_u32 v{EA+1}, v{T+1}, 3, v{EA+1}
        s_mul_i32 s30, s{TT_}, {32*1152}
        s_lshl_b32 s31, s{NB}, 7
        s_add_u32 s30, s30, s31
        v_add_u32 v{EA+1}, s30, v{EA+1}
        v_lshl_add_u32 v{T+8}, v{T+1}, 3, s31
        """)
        for e in range(8):
            a(f"global_load_dwordx2 v[{XD+2*e}:{XD+2*e+1}], v{EA+1}, s[{P_BX}:{P_BX+1}] offset:{e*16}")
            a(f"global_load_dwordx2 v[{XD+16+2*e}:{XD+16+2*e+1}], v{T+8}, s[{P_DSK}:{P_DSK+1}] offset:{e*16}")
        a("s_waitcnt vmcnt(0)")
        for e in range(8):
            d = ACC + 4 * e
            for q in range(2):
                x = XD + 2 * e + q; k = XD + 16 + 2 * e + q
                a(f"""
                v_lshlrev_b32 v{T+2}, 16, v{x}
                v_lshlrev_b32 v{T+3}, 16, v{k}
                v_and_b32 v{x}, 0xffff0000, v{x}
                v_and_b32 v{k}, 0xffff0000, v{k}
                v_mul_f32 v{d+2*q}, v{T+2}, v{T+3}
                v_mul_f32 v{d+2*q+1}, v{x}, v{k}
                """)
        a(f"s_mov_b32 s{SS}, 0\ns_mov_b32 s{SLOT}, 0")
        a.label("L_b3c_loop")
        a("s_barrier")
        self.stampx(16)
        def reads(s, buf):
            for nt in range(2): a(f"ds_read_b128 v[{FC+buf*8+nt*4}:{FC+buf*8+nt*4+3}], v{AC+s} offset:{nt*4096}")
            for hf in range(2):
                r = FH + buf * 4 + hf * 2
                a(f"ds_read_b64_tr_b16 v[{r}:{r+1}], v{AH+hf} offset:{(s>>1)*2048 + (s&1)*256}")
        reads(0, 0)
        for s in range(4):
            if s < 3: reads(s + 1, (s + 1) % 2); a("s_waitcnt lgkmcnt(4)")
            else: a("s_waitcnt lgkmcnt(0)")
            buf = s % 2
            for nt in range(2):
                d = ACC + nt * 16
                a(f"v_mfma_f32_32x32x16_bf16 v[{d}:{d+15}], v[{FC+buf*8+nt*4}:{FC+buf*8+nt*4+3}], v[{FH+buf*4}:{FH+buf*4+3}], v[{d}:{d+15}]")
        a(f"""
        s_add_u32 s30, s{SLOT}, 32768
        s_and_b32 s30, s30, 0x1ffff
        s_sub_u32 s{DL}, s30, s{SLOT}
        s_mov_b32 s{SLOT}, s30
        s_add_u32 s{SS}, s{SS}, 1
        """)
        for r in (AC, AC + 1, AC + 2, AC + 3, AH, AH + 1): a(f"v_add_u32 v{r}, s{DL}, v{r}")
        a(f"""
        s_cmp_lt_u32 s{SS}, 18
        s_cbranch_scc1 L_b3c_loop
        s_mul_i32 s30, s{TT_}, {32*4608}
        s_lshl_b32 s31, s{NB}, 8
        s_add_u32 s30, s30, s31
        s_add_u32 s30, s30, {576*4}
        """)
        self.stamp(11)
        for e in range(8):
            d = ACC + 4 * e
            a(f"buffer_store_dwordx4 v[{d}:{d+3}], v{EA}, s[16:19], s30 offen offset:{e*32}")
        a("s_branch L_exit")
        a.label("L_a3")
        VW, VL, AW, EA, T, FW, ACC, FO = 4, 5, 6, 8, 10, 20, 44, 92
        self.srd(12, P_WO, 576 * 1152)
        a(f"""
        s_sub_u32 s{NB}, s{NB}, 9
        v_lshrrev_b32 v{T}, 2, v2              ; kappa
        v_and_b32 v{T+1}, 3, v2
        v_and_b32 v{T+2}, 3, v{T}
        v_bfe_u32 v{T+3}, v{T}, 2, 1
        v_lshl_add_u32 v{T+2}, v{T+3}, 3, v{T+2}
        v_lshrrev_b32 v{T+3}, 3, v{T}
        v_lshl_add_u32 v{T+2}, v{T+3}, 2, v{T+2}
        v_mul_u32_u24 v{T+2}, 1152, v{T+2}
        v_lshl_add_u32 v{VW}, v{T+1}, 4, v{T+2}
        v_lshrrev_b32 v{T+2}, 1, v{T}
        v_mul_u32_u24 v{T+2}, 18, v{T+2}
        v_and_b32 v{T+3}, 1, v{T}
        v_add3_u32 v{T+2}, v{T+2}, v{T+3}, 16
        v_mul_u32_u24 v{T+2}, 1152, v{T+2}
        v_lshl_add_u32 v{VL}, v{T+1}, 4, v{T+2}
        s_mul_i32 s30, s{NB}, 192
        s_mul_i32 s31, s{S_WAVE}, {18*1152}
        s_add_u32 s31, s31, s30
        s_mul_i32 s32, s{S_WAVE}, 3072
        """)
        for r in range(4):
            for nt in range(3):
                a(f"s_add_u32 m0, s32, {r*8*3072 + nt*1024}\ns_add_u32 s34, s31, {r*8*18*1152 + nt*64}")
                a(f"buffer_load_dwordx4 v{VW}, s[12:15], s34 offen lds")
        a(f"""
        s_cmp_lt_u32 s{S_WAVE}, 4
        s_cbranch_scc1 L_a3c
        s_mul_i32 s31, s{LW}, {8*18*1152}
        s_add_u32 s31, s31, s30
        s_mul_i32 s32, s{LW}, 3072
        """)
        for nt in range(3):
            a(f"s_add_u32 m0, s32, {32*3072 + nt*1024}\ns_add_u32 s34, s31, {nt*64}")
            a(f"buffer_load_dwordx4 v{VL}, s[12:15], s34 offen lds")
        a("s_waitcnt vmcnt(0)\ns_barrier\ns_branch L_exit")
        a.label("L_a3c")
        a(f"""
        s_lshl_b32 s34, s{TT_}, 7
        s_add_u32 s34, s34, {F4}
        v_and_b32 v{T}, 31, v2
        v_lshlrev_b32 v{T+4}, 2, v{T}
        v_lshrrev_b32 v{T+1}, 5, v2
        v_bfe_u32 v{T+2}, v2, 2, 2
        v_lshl_add_u32 v{T+3}, v{T+1}, 3, v{T+2}
        v_lshlrev_b32 v{T+3}, 6, v{T+3}
        v_bfe_u32 v{T+2}, v2, 4, 1
        v_lshl_add_u32 v{T+3}, v{T+2}, 5, v{T+3}
        v_and_b32 v{T+2}, 3, v2
        v_lshl_add_u32 v{AW}, v{T+2}, 3, v{T+3}
        v_add_u32 v{AW+1}, {18*3072}, v{AW}
        v_mul_u32_u24 v{EA}, 4608, v{T}
        v_lshl_add_u32 v{EA}, v{T+1}, 4, v{EA}
        v_lshl_add_u32 v{EA+1}, v{T+1}, 9, v{T+4}
        """)
        self.poll("L_pollF4", T + 5, T + 4, "s34", n=1)
        self.stamp(10)
        a(f"s_mul_i32 s30, s{TT_}, {36*1024}\ns_add_u32 s30, s30, {OW}\ns_barrier")
        nld = [0]
        def oload(s):
            r = FO + 4 * s
            if s < 32:
                a(f"buffer_load_dwordx4 v[{r}:{r+3}], v3, s[4:7], s30 offen offset:{(s%4)*1024} sc0 sc1")
                if s % 4 == 3: a("s_add_u32 s30, s30, 4096")
                return 1
            for j in range(4):
                a(f"buffer_load_dword v{r+j}, v{EA+1}, s[4:7], s30 offen offset:{(s-32)*1024 + j*128} sc0 sc1")
            return 4
        def reads(s, buf):
            st, off = (0, s * 3072) if s < 18 else (1, (s - 18) * 3072)
            for nt in range(3):
                for hf in range(2):
                    r = FW + buf * 12 + nt * 4 + hf * 2
                    a(f"ds_read_b64_tr_b16 v[{r}:{r+1}], v{AW+st} offset:{off + nt*1024 + hf*256}")
        D = 10
        cnt = [1] * 32 + [4] * 4
        for s in range(D): oload(s)
        reads(0, 0)
        for s in range(36):
            if s + D < 36: oload(s + D)
            if s < 35: reads(s + 1, (s + 1) % 2)
            out = sum(cnt[s + 1:min(36, s + D + 1)])
            a(f"s_waitcnt vmcnt({out}) lgkmcnt({6 if s < 35 else 0})")
            for nt in range(3):
                d = ACC + nt * 16; w = FW + (s % 2) * 12 + nt * 4; o = FO + 4 * s
                c = "0" if s == 0 else f"v[{d}:{d+15}]"
                a(f"v_mfma_f32_32x32x16_bf16 v[{d}:{d+15}], v[{w}:{w+3}], v[{o}:{o+3}], {c}")
        a(f"""
        s_mul_i32 s30, s{TT_}, {32*4608}
        s_mul_i32 s31, s{NB}, 384
        s_add_u32 s30, s30, s31
        s_nop 8
        """)
        self.stamp(11)
        for e in range(12):
            d = ACC + 4 * e
            a(f"buffer_store_dwordx4 v[{d}:{d+3}], v{EA}, s[16:19], s30 offen offset:{e*32}")

    def finish(self):
        a = self.a
        a.label("L_exit")
        if self.stamp_on:
            self.stamp(12)
            a("s_waitcnt vmcnt(0)")
            self.stamp(13); self.stamp(15, True)
            a(f"""
            s_lshl_b32 s30, s2, 3
            s_add_u32 s30, s30, s{S_WAVE}
            s_lshl_b32 s30, s30, 8
            s_add_u32 s30, s30, {STB}
            v_lshlrev_b32 v3, 2, v2
            buffer_store_dword v{VST}, v3, s[4:7], s30 offen
            s_cmp_lg_u32 s30, {STB + (int(self.opt.get("dbgwg", 13))*8 + int(self.opt.get("dbgwave", 0)))*256}
            s_cbranch_scc1 L_end
            v_readlane_b32 s31, v{VST}, 0
            v_readlane_b32 s32, v{VST}, 14
            v_readlane_b32 s33, v{VST}, 15
            v_readlane_b32 s34, v{VST}, 16
            s_sub_u32 s33, s33, s32
            s_add_u32 s33, s33, s31
            s_nop 0
            v_writelane_b32 v{VST}, s33, 14
            v_writelane_b32 v{VST}, s34, 15
            v_subrev_u32 v{VST}, s31, v{VST}
            s_mov_b64 exec, 0xfffe
            global_store_dword v3, v{VST}, s[{P_DBG}:{P_DBG+1}]
            """)
        a.label("L_end")
        a("s_endpgm")

def gen_mega(name, stamp=False, stop=99, opt=None):
    g = G(stamp, stop, opt)
    g.a.raw(kernel_header(name))
    g.prologue(); g.p1_loader(); g.p1_compute()
    if stop >= 2: g.attention()
    if stop >= 3: g.p3()
    g.finish()
    return g.a.text(), kernel_desc(name, 256, 98)

if __name__ == "__main__":
    import sys
    from build import *
    KN = NAME + "_kernel"
    out = sys.argv[1]; stamp = len(sys.argv) > 2 and sys.argv[2] == "1"; stop = 99
    opt = dict((kv.split("=") + ["1"])[:2] for kv in sys.argv[3:])
    compose([gen_mega(KN, stamp, stop, opt)], [(KN, 256, 512, LDS_TOTAL)], out)
    assemble(out)
```

```python
WS_BYTES = 268435456
OUT_BYTES = 2048 * 1152 * 4
QKP = 0x000000
VT  = 0x500000
OW  = 0x800000
HH  = 0xB00000
EE  = 0x1000000
FL  = 0x1100000
F2 = FL
F3 = FL + 3072
F4 = FL + 9216
F1 = FL + 17408
import os
NSUB = int(os.environ.get("NSUB", 8))
FLBYTES = 17408 + 32 * NSUB * 128
STB = 0x8000000
VROW = 304
LDS_K = 0
LDS_V = 81920
LDS_SCR = 160768
LDS_TOTAL = 163840
```

```python
from asmlib import *
from lay2 import *
import math, struct
def f32(x): return "0x%08x" % struct.unpack("<I", struct.pack("<f", x))[0]
QSCALE = f32(18 ** -0.5 * math.log2(math.e))
WT = "sc0 sc1"
LDF = ""
SPIN_MAX = 20000
P_AX, P_WQKV, P_WO, P_BX, P_LRE, P_LIM, P_BRE, P_BIM, P_CRE, P_CIM, P_LDT, P_DSK, P_OUT, P_DBG, P_WS = range(64, 94, 2)
S_WAVE, S_XCD, S_IDX, S_MB, S_NB, S_TYPE, S_CHB, S_CHA, S_HALF, S_CH = 3, 20, 21, 22, 23, 24, 25, 26, 27, 29
S_P3MB, S_P3NB, S_HD, S_LW, S_P3T = 37, 38, 39, 51, 57
S_GK, S_K4, S_GV, S_LP = 52, 54, 55, 56
S_HB, S_CB, S_SL3, S_ST3 = 52, 53, 54, 55
NV = 168
VST = 167
BS = 64
SPILL = 0x1200000
LR, LI, CR, CI, LCR, LCI, PWR, PWI, MUR, MUI = range(BS + 32, BS + 42)
C0, CHB = 5, 19968
LDS_W = 8 * CHB
W_LAND, W_PROG, W_UNS, W_BAR, W_DRN = LDS_W, LDS_W + 64, LDS_W + 96, LDS_W + 100, LDS_W + 104
W_F1 = LDS_W + 108
LDS_SCR = LDS_W + 512
B1BASE, BSLOT = 0, 24576
R3 = [100352, 124928, 2048, 26624]
W_OK = 8 * 19968 + 112
FIN_OK, FIN_BAD = 0x40000000, 0x50000000
R3BASE = 2048
WO2 = 100352
QS, VS, OS, HS = 289, 9344, 37 * 1024, 37
def pad_touch():
    pads = [QKP + (q * QS + 288) * 1024 for q in range(16)] + [VT + o * VS + 9216 for o in range(256)]
    pads += [OW + t * OS + 36 * 1024 for t in range(64)] + [HH + (t * HS + 36) * 2048 for t in range(64)] + [EE + 0x80000, FL + 0x80000]
    G = 1 << 20
    seen = {}
    for p in pads: seen.setdefault(p // G, p)
    return sorted(seen.values())
F1STRIDE = 128 * NSUB
W_FULL, W_FREE = 8 * 19968 + 2560, 8 * 19968 + 2816
R6 = [100352, 124928, 2048, 26624, 51200, 75776]

def ilv(a, mf, other):
    n = len(mf); k = 0
    for i, m in enumerate(mf):
        a(m)
        upto = (len(other) * (i + 1) + n - 2) // (n - 1) if i < n - 1 else len(other)
        upto = min(upto, len(other))
        while k < upto: a(other[k]); k += 1

class G:
    def __init__(self, stamp=False, opt=None):
        self.a = Asm(); self.stamp_on = stamp; self.opt = opt or {}; self.stubs = []
    def stamp(self, k, real=False):
        if not self.stamp_on: return
        op = "s_memrealtime" if real else "s_memtime"
        self.a(f"{op} s[94:95]\ns_waitcnt lgkmcnt(0)\nv_writelane_b32 v{VST}, s94, {k}")
    def stampx(self, base, force=False):
        if not self.stamp_on or not (force or self.opt.get("stx")): return
        self.a(f"s_memtime s[94:95]\ns_add_u32 m0, s96, {base}\ns_add_u32 s96, s96, 1\ns_waitcnt lgkmcnt(0)\nv_writelane_b32 v{VST}, s94, m0")
    def srd(self, d, p, n):
        self.a(f"s_mov_b32 s{d}, s{p}\ns_and_b32 s{d+1}, s{p+1}, 0xffff\ns_mov_b32 s{d+2}, {n}\ns_mov_b32 s{d+3}, 0x20000")
    def poll(self, lab, vdst, voff, soff, n=1, want="1", sleep=2):
        a = self.a
        ld = f"buffer_load_dword v{vdst}, v{voff}, s[4:7], {soff} offen sc0 sc1" if n == 1 else f"buffer_load_dwordx4 v[{vdst}:{vdst+3}], v{voff}, s[4:7], {soff} offen sc0 sc1"
        a("s_mov_b32 s33, 0")
        a.label(lab)
        a(ld + "\ns_waitcnt vmcnt(0)")
        if n == 4:
            a(f"v_and_b32 v{vdst}, v{vdst}, v{vdst+1}\nv_and_b32 v{vdst+2}, v{vdst+2}, v{vdst+3}\nv_and_b32 v{vdst}, v{vdst}, v{vdst+2}")
        a(f"""
        v_cmp_ne_u32 vcc, {want}, v{vdst}
        s_add_u32 s33, s33, 1
        s_cmp_gt_u32 s33, {SPIN_MAX}
        s_cbranch_scc1 {lab}_x
        s_cbranch_vccz {lab}_x
        s_sleep {sleep}
        s_branch {lab}
        """)
        a.label(lab + "_x")
    def lds_spin(self, vaddr, vtmp, want, off=0, sleep=0):
        a = self.a; lab = a.newlabel("L_sp")
        a("s_mov_b32 s33, 0")
        a.label(lab)
        a(f"""
        ds_read_b32 v{vtmp}, v{vaddr} offset:{off}
        s_add_u32 s33, s33, 1
        s_waitcnt lgkmcnt(0)
        v_readfirstlane_b32 s32, v{vtmp}
        s_cmp_ge_u32 s32, {want}
        s_cbranch_scc1 {lab}x
        {f"s_sleep {sleep}" if sleep else ""}
        s_cmp_lt_u32 s33, {SPIN_MAX*16}
        s_cbranch_scc1 {lab}
        """)
        a.label(lab + "x")
    def lds_add1(self, vaddr, vone, off=0):
        self.a(f"s_mov_b64 exec, 1\nds_add_u32 v{vaddr}, v{vone} offset:{off}\ns_mov_b64 exec, -1")
    def flag_store(self, sregs, T):
        a = self.a
        a(f"v_mov_b32 v{T}, 0\nv_mov_b32 v{T+1}, 1\ns_mov_b64 exec, 1")
        for r in sregs: a(f"buffer_store_dword v{T+1}, v{T}, s[4:7], s{r} offen {WT}")
        a("s_mov_b64 exec, -1")
    def warm(self, items, T, dst):
        a = self.a
        if self.opt.get("nowarm"): return
        a(f"s_lshl_b32 s30, s{S_LW}, 8\ns_add_u32 s30, s30, s2\ns_lshl_b32 s30, s30, 10\nv_add_u32 v{T}, s30, v3")
        for (p, n) in items:
            self.srd(8, p, n)
            for r in range((n + (1 << 20) - 1) >> 20):
                a(f"s_mov_b32 s30, {r << 20}\nbuffer_load_dwordx4 v[{dst}:{dst+3}], v{T}, s[8:11], s30 offen")
    def make_vx(self, dst, n, sa, sb, sc1, sc0, T):
        a = self.a
        a(f"""
        v_lshrrev_b32 v{T}, 3, v2
        v_and_b32 v{T+1}, 7, v2
        v_lshrrev_b32 v{T+2}, 1, v{T}
        v_xor_b32 v{T+1}, v{T+1}, v{T+2}
        v_lshrrev_b32 v{T+2}, 2, v{T}
        v_and_b32 v{T}, 3, v{T}
        v_mul_u32_u24 v{T+2}, {sa}, v{T+2}
        v_mul_u32_u24 v{T}, {sb}, v{T}
        v_add_u32 v{T}, v{T}, v{T+2}
        v_mul_u32_u24 v{T}, 1152, v{T}
        v_lshl_add_u32 v{dst}, v{T+1}, 4, v{T}
        v_xor_b32 v{T+1}, 4, v{T+1}
        v_lshl_add_u32 v{dst+1}, v{T+1}, 4, v{T}
        s_mul_i32 s34, {sc0}, 1152
        s_sub_u32 s34, s34, 1024
        v_add_u32 v{dst+1}, s34, v{dst+1}
        """)
        if n == 4:
            a(f"s_mul_i32 s34, {sc1}, 1152\ns_sub_u32 s34, s34, 2048\nv_add_u32 v{dst+2}, s34, v{dst}\nv_add_u32 v{dst+3}, s34, v{dst+1}")
    def swz(self, Z, T, add=0):
        a = self.a
        a(f"""
        v_lshrrev_b32 v{T+1}, 5, v2
        v_bfe_u32 v{T+2}, v1, 1, 3
        v_xor_b32 v{T+2}, v{T+2}, v{T+1}
        v_lshlrev_b32 v{T+3}, 7, v1
        v_add_u32 v{T+3}, {add}, v{T+3}
        """)
        for s in range(4): a(f"v_xor_b32 v{T+4}, {2*s}, v{T+2}\nv_lshl_add_u32 v{Z+s}, v{T+4}, 4, v{T+3}")

    def prologue(self):
        a = self.a
        a(f"""
        s_cmp_ge_u32 s2, 256
        s_cbranch_scc1 L_end
        s_load_dwordx16 s[64:79], s[0:1], 0
        s_load_dwordx8 s[80:87], s[0:1], 64
        s_load_dwordx4 s[88:91], s[0:1], 96
        s_load_dwordx2 s[92:93], s[0:1], 112
        v_lshrrev_b32 v1, 6, v0
        v_and_b32 v2, 63, v0
        v_readfirstlane_b32 s{S_WAVE}, v1
        v_lshlrev_b32 v3, 4, v2
        v_and_b32 v1, 31, v0
        v_mov_b32 v144, 0
        s_and_b32 s{S_XCD}, s2, 7
        s_lshr_b32 s{S_IDX}, s2, 3
        """)
        if self.stamp_on: a(f"v_mov_b32 v{VST}, 0\ns_mov_b32 s96, 0")
        self.stamp(0); self.stamp(14, True)
        a(f"""
        s_and_b32 s30, s{S_XCD}, 3
        s_lshl_b32 s30, s30, 2
        s_and_b32 s31, s{S_IDX}, 3
        s_add_u32 s{S_MB}, s30, s31
        s_lshl_b32 s{S_HD}, s{S_XCD}, 2
        s_add_u32 s{S_HD}, s{S_HD}, s31
        s_lshr_b32 s30, s{S_XCD}, 2
        s_lshr_b32 s31, s{S_IDX}, 2
        s_mul_i32 s32, s30, 7
        s_add_u32 s{S_NB}, s32, s31
        s_mul_i32 s32, s30, 9
        s_add_u32 s{S_CHB}, s32, s31
        s_add_u32 s{S_CHA}, s32, 8
        s_cmp_ge_u32 s{S_NB}, 9
        s_cselect_b32 s{S_TYPE}, 1, 0
        s_cmp_ge_u32 s{S_IDX}, 28
        s_cselect_b32 s{S_TYPE}, 2, s{S_TYPE}
        s_and_b32 s{S_LW}, s{S_WAVE}, 3
        s_cmp_lt_u32 s{S_WAVE}, 4
        s_cbranch_scc1 L_aux
        s_cmp_ge_u32 s{S_WAVE}, 8
        s_cbranch_scc1 L_idle
        """)

    def p3_ids(self):
        self.a(f"""
        s_lshl_b32 s{S_P3MB}, s{S_XCD}, 1
        s_and_b32 s30, s{S_IDX}, 1
        s_add_u32 s{S_P3MB}, s{S_P3MB}, s30
        s_lshr_b32 s{S_P3NB}, s{S_IDX}, 1
        s_lshl_b32 s{S_P3T}, s{S_P3MB}, 2
        s_add_u32 s{S_P3T}, s{S_P3T}, s{S_LW}
        """)

    def p1_loader(self):
        a = self.a
        VX, VW, T = 4, 8, 12
        SI, XB, WB, SL = 41, 43, 44, 45
        a(f"""
        s_cmp_eq_u32 s{S_TYPE}, 2
        s_cbranch_scc1 L_p1_fin
        s_mov_b32 s{SI}, 0
        s_lshl_b32 s{SL}, s{S_LW}, 12
        s_cmp_eq_u32 s{S_TYPE}, 0
        s_cselect_b32 s46, 2, 1
        s_cselect_b32 s47, 32, 16
        s_cselect_b32 s48, 16, 4
        s_lshr_b32 s30, s{S_LW}, 1
        s_lshl_b32 s30, s30, 6
        s_and_b32 s31, s{S_LW}, 1
        s_add_u32 s30, s30, s31
        s_lshl_b32 s31, s{S_LW}, 5
        s_cmp_eq_u32 s{S_TYPE}, 0
        s_cselect_b32 s30, s30, s31
        s_lshl_b32 s31, s{S_MB}, 7
        s_add_u32 s30, s30, s31
        s_mul_i32 s{XB}, s30, 1152
        s_mul_i32 s30, s{S_LW}, {16*3456}
        s_lshl_b32 s31, s{S_NB}, 8
        s_add_u32 s{WB}, s30, s31
        """)
        self.make_vx(VX, 4, "8", "s46", "s47", "s48", T)
        a(f"""
        v_lshrrev_b32 v{T}, 4, v2
        v_and_b32 v{T+1}, 15, v2
        v_lshlrev_b32 v{T+2}, 2, v{T}
        v_xor_b32 v{T+1}, v{T+1}, v{T+2}
        v_mul_u32_u24 v{T}, 3456, v{T}
        v_lshl_add_u32 v{VW}, v{T+1}, 4, v{T}
        v_add_u32 v{VW+1}, {4*3456-1024}, v{VW}
        v_add_u32 v{VW+2}, {2*(4*3456-1024)}, v{VW}
        v_add_u32 v{VW+3}, {3*(4*3456-1024)}, v{VW}
        s_waitcnt lgkmcnt(0)
        """)
        self.srd(8, P_AX, 2048 * 1152); self.srd(12, P_WQKV, 576 * 3456)
        a.label("L_p1l_issue")
        a(f"s_mov_b32 m0, s{SL}\ns_add_u32 s{SI}, s{SI}, 1")
        for n in range(4): a(f"buffer_load_dwordx4 v{VX+n}, s[8:11], s{XB} offen offset:{n*1024} lds")
        a(f"s_add_u32 m0, s{SL}, 16384\ns_add_u32 s{XB}, s{XB}, 128")
        for n in range(4): a(f"buffer_load_dwordx4 v{VW+n}, s[12:15], s{WB} offen offset:{n*1024} lds")
        a(f"""
        s_add_u32 s{WB}, s{WB}, {64*3456}
        s_add_u32 s{SL}, s{SL}, 32768
        s_sub_u32 s30, s{SL}, 163840
        s_cmp_ge_u32 s{SL}, 163840
        s_cselect_b32 s{SL}, s30, s{SL}
        s_cmp_lt_u32 s{SI}, 3
        s_cbranch_scc1 L_p1l_issue
        s_waitcnt vmcnt(16)
        s_barrier
        s_cmp_lt_u32 s{SI}, 9
        s_cbranch_scc1 L_p1l_issue
        s_waitcnt vmcnt(8)
        s_barrier
        s_waitcnt vmcnt(0)
        s_barrier
        s_branch L_p1_fin
        """)
        a.label("L_idle")
        a(f"""
        s_cmp_lg_u32 s{S_WAVE}, 11
        s_cbranch_scc1 L_nopf
        s_getpc_b64 s[30:31]
        """)
        a.label("L_pc")
        a(f"""
        s_lshl_b32 s32, s{S_IDX}, 10
        s_cmp_ge_u32 s32, L_end-L_pc-1024
        s_cbranch_scc1 L_nopf
        s_add_u32 s30, s30, s32
        s_addc_u32 s31, s31, 0
        v_mov_b32 v5, s31
        v_add_co_u32 v4, vcc, s30, v3
        s_nop 1
        v_addc_co_u32 v5, vcc, 0, v5, vcc
        global_load_dwordx4 v[140:143], v[4:5], off
        """)
        a.label("L_nopf")
        a("s_waitcnt lgkmcnt(0)")
        self.warm([(P_AX, 2048 * 1152), (P_WQKV, 576 * 3456)], 6, 140)
        self.srd(4, P_WS, WS_BYTES)
        a(f"""
        v_mov_b32 v8, 0
        v_mov_b32 v9, 0
        v_mov_b32 v10, 0
        v_mov_b32 v11, 0
        s_lshl_b32 s30, s2, 4
        s_add_u32 s30, s30, s{S_WAVE}
        s_cmp_lg_u32 s30, 9
        s_cbranch_scc1 L_idle_nz
        s_mov_b32 s30, {FL}
        """)
        for i in range(FLBYTES // 1024):
            a(f"buffer_store_dwordx4 v[8:11], v3, s[4:7], s30 offen offset:{(i%4)*1024} {WT}")
            if i % 4 == 3: a("s_add_u32 s30, s30, 4096")
        a(f"""
        s_waitcnt vmcnt(0)
        v_mov_b32 v12, 1
        s_mov_b64 exec, 1
        global_store_dword v8, v12, s[{P_DBG}:{P_DBG+1}] {WT}
        s_mov_b64 exec, -1
        """)
        a.label("L_idle_nz")
        if not self.opt.get("notlb"):
            a(f"s_cmp_lg_u32 s{S_WAVE}, 10\ns_cbranch_scc1 L_notlb")
            pt = pad_touch()
            for i, p in enumerate(pt): a(f"s_mov_b32 s30, {p}\nv_writelane_b32 v9, s30, {i}")
            a(f"s_mov_b64 exec, {(1 << len(pt)) - 1}\nbuffer_load_dword v140, v9, s[4:7], 0 offen\ns_mov_b64 exec, 0x1ff\nv_lshlrev_b32 v9, 20, v2")
            a(f"global_load_dword v141, v9, s[{P_OUT}:{P_OUT+1}]\ns_mov_b64 exec, 7\nglobal_load_dword v141, v9, s[{P_BX}:{P_BX+1}]\ns_mov_b64 exec, 1")
            for p in (P_WO, P_LRE, P_LIM, P_BRE, P_BIM, P_CRE, P_CIM, P_LDT, P_DSK): a(f"global_load_dword v141, v8, s[{p}:{p+1}]")
            a("s_mov_b64 exec, -1")
            a.label("L_notlb")
        a(f"v_mov_b32 v13, 0\ns_cmp_eq_u32 s{S_TYPE}, 2\ns_cbranch_scc1 L_idle_sp")
        a("s_barrier\ns_barrier\ns_barrier")
        self.warm([(P_BX, 2048 * 1152), (P_BRE, 576 * 1152), (P_BIM, 576 * 1152)], 6, 140)
        a(f"s_barrier\ns_barrier\ns_barrier\ns_barrier\nglobal_load_dword v13, v8, s[{P_DBG}:{P_DBG+1}]\ns_barrier\ns_barrier\ns_waitcnt vmcnt(0)")
        a.label("L_idle_sp")
        a(f"""
        s_cmp_lg_u32 s{S_WAVE}, 8
        s_cbranch_scc1 L_p1_fin
        v_lshlrev_b32 v9, 2, v2
        v_add_u32 v9, {LDS_W}, v9
        v_cmp_eq_u32 vcc, 8, v2
        v_mov_b32 v10, 8
        v_mov_b32 v144, v13
        v_cndmask_b32 v10, v8, v10, vcc
        ds_write_b32 v9, v10
        ds_write_b32 v9, v8 offset:2560
        ds_write_b32 v9, v8 offset:2816
        """)

    def dbg_check(self, T):
        a = self.a
        a(f"s_cmp_eq_u32 s{S_TYPE}, 2\ns_cselect_b32 s30, 5, 8\ns_cmp_lg_u32 s{S_WAVE}, s30\ns_cbranch_scc1 L_dbg_x\ns_mov_b32 s33, 0\nv_mov_b32 v{T}, 0")
        a.label("L_dbg_chk")
        a(f"""
        s_waitcnt vmcnt(0)
        v_readfirstlane_b32 s30, v144
        s_cmp_eq_u32 s30, 1
        s_cbranch_scc1 L_dbg_ok
        s_add_u32 s33, s33, 1
        s_cmp_gt_u32 s33, {SPIN_MAX}
        s_cbranch_scc1 L_dbg_ok
        s_sleep 8
        global_load_dword v144, v{T}, s[{P_DBG}:{P_DBG+1}] sc0 sc1
        s_branch L_dbg_chk
        """)
        a.label("L_dbg_ok")
        a(f"v_mov_b32 v{T}, {W_OK}\nv_mov_b32 v{T+1}, 1\nds_write_b32 v{T}, v{T+1}")
        a.label("L_dbg_x")
    def wait_ok(self, T):
        self.a(f"v_mov_b32 v{T}, {W_OK}")
        self.lds_spin(T, T + 1, 1, sleep=2)

    def kv_setup(self, T, VV, first):
        a = self.a
        a(f"""
        s_lshr_b32 s30, s{S_HD}, 1
        s_mul_i32 s30, s30, 9
        s_and_b32 s31, s{S_HD}, 1
        s_lshl_b32 s31, s31, 2
        s_add_u32 s36, s30, s31                  ; f
        s_add_u32 s30, s36, s{S_LW}
        s_lshl_b32 s30, s30, 10
        s_mul_i32 s31, {first}, {2*QS*1024}
        s_add_u32 s30, s30, s31
        s_add_u32 s{S_GK}, s30, {QKP + 144*1024}
        s_cmp_eq_u32 s{S_LW}, 0
        s_cselect_b32 s{S_K4}, 0, {(QS-5)*1024}
        s_add_u32 s{S_K4}, s{S_K4}, 4096
        s_mul_i32 s30, s{S_HD}, 288
        s_mul_i32 s31, s{S_LW}, {3*VS}
        s_add_u32 s30, s30, s31
        s_mul_i32 s31, {first}, {32*VS}
        s_add_u32 s30, s30, s31
        s_add_u32 s{S_GV}, s30, {VT}
        v_mul_u32_u24 v{T}, 27, v2
        v_lshrrev_b32 v{T}, 9, v{T}
        v_mul_u32_u24 v{VV}, 19, v{T}
        v_sub_u32 v{VV}, v2, v{VV}
        v_cmp_gt_u32 vcc, 18, v{VV}
        v_cmp_gt_u32 s[58:59], 3, v{T}
        v_cmp_gt_u32 s[60:61], 2, v{T}
        v_mul_u32_u24 v{T}, {VS}, v{T}
        v_lshl_add_u32 v{VV}, v{VV}, 4, v{T}
        s_and_b64 s[58:59], s[58:59], vcc
        s_and_b64 s[60:61], s[60:61], vcc
        s_cmp_eq_u32 s{S_LW}, 2
        s_cselect_b64 s[60:61], s[60:61], s[58:59]
        s_add_u32 s30, {first}, {C0}
        s_and_b32 s30, s30, 7
        s_mul_i32 s{S_LP}, s30, {CHB}
        v_mul_u32_u24 v{VV+1}, {VROW}, v1
        v_add_u32 v{VV+1}, {10240 + 288}, v{VV+1}
        """)
    def k_part(self):
        a = self.a; l1 = a.newlabel("L_kd")
        a(f"""
        s_lshl_b32 s31, s{S_LW}, 10
        s_add_u32 s31, s31, s{S_LP}
        s_mov_b32 m0, s31
        s_add_u32 s30, s{S_GK}, s{S_K4}
        buffer_load_dwordx4 v3, s[4:7], s{S_GK} offen {LDF} lds
        s_add_u32 m0, s31, 4096
        s_cmp_ge_u32 s{S_LW}, 2
        buffer_load_dwordx4 v3, s[4:7], s30 offen {LDF} lds
        s_cbranch_scc1 {l1}
        s_add_u32 m0, s31, 8192
        s_add_u32 s30, s{S_GK}, {(QS+3)*1024}
        buffer_load_dwordx4 v3, s[4:7], s30 offen {LDF} lds
        """)
        a.label(l1)
    def v_part(self, VV, ONES, T):
        a = self.a; l2 = a.newlabel("L_vd")
        a(f"""
        s_mul_i32 s31, s{S_LW}, {3*VROW}
        s_add_u32 s31, s31, s{S_LP}
        s_add_u32 m0, s31, 10240
        s_mov_b64 exec, s[58:59]
        buffer_load_dwordx4 v{VV}, s[4:7], s{S_GV} offen {LDF} lds
        s_add_u32 m0, s31, {10240 + 12*VROW}
        s_add_u32 s30, s{S_GV}, {12*VS}
        buffer_load_dwordx4 v{VV}, s[4:7], s30 offen {LDF} lds
        s_cmp_eq_u32 s{S_LW}, 3
        s_cbranch_scc1 {l2}
        s_add_u32 m0, s31, {10240 + 24*VROW}
        s_add_u32 s30, s{S_GV}, {24*VS}
        s_mov_b64 exec, s[60:61]
        buffer_load_dwordx4 v{VV}, s[4:7], s30 offen {LDF} lds
        """)
        a.label(l2)
        a(f"s_mov_b64 exec, -1\nv_add_u32 v{T}, s{S_LP}, v{VV+1}\nds_write_b128 v{T}, v[{ONES}:{ONES+3}]")
    def kv_next(self):
        self.a(f"""
        s_add_u32 s{S_GK}, s{S_GK}, {2*QS*1024}
        s_add_u32 s{S_GV}, s{S_GV}, {32*VS}
        s_add_u32 s{S_LP}, s{S_LP}, {CHB}
        s_cmp_eq_u32 s{S_LP}, {8*CHB}
        s_cselect_b32 s{S_LP}, 0, s{S_LP}
        """)
    def kv_half(self, grp, VV, ONES, T):
        a = self.a; l = a.newlabel("L_kh")
        a(f"s_cmp_lg_u32 s{grp}, 0\ns_cbranch_scc1 {l}v")
        self.k_part()
        a(f"s_branch {l}e")
        a.label(l + "v")
        self.v_part(VV, ONES, T)
        a.label(l + "e")
        self.kv_next()
    def poll_f1(self, lab, T, poller=False):
        a = self.a
        a(f"v_mov_b32 v{T+2}, {W_F1}")
        if poller:
            a(f"s_cmp_lg_u32 s{S_WAVE}, 4\ns_cbranch_scc1 {lab}_w")
            self.wait_ok(T)
            a(f"s_mul_i32 s34, s{S_HD}, {F1STRIDE}\ns_add_u32 s34, s34, {F1}\nv_and_b32 v{T}, {NSUB-1}, v2\nv_lshlrev_b32 v{T}, 7, v{T}")
            self.poll(lab, T + 1, T, "s34", want=str(864 // NSUB), sleep=int(self.opt.get("f1sleep", 4)))
            a(f"v_mov_b32 v{T}, 1\nds_write_b32 v{T+2}, v{T}")
            a.label(lab + "_w")
        self.lds_spin(T + 2, T + 1, 1, sleep=1)

    def wait_prog(self, val, T, sleep=4):
        a = self.a; lab = a.newlabel("L_pg")
        a(f"v_and_b32 v{T}, 7, v2\nv_lshlrev_b32 v{T}, 2, v{T}\nv_add_u32 v{T}, {W_PROG}, v{T}\ns_mov_b32 s33, 0\ns_mov_b32 s30, {FIN_BAD}")
        a.label(lab)
        a(f"""
        ds_read_b32 v{T+1}, v{T}
        s_add_u32 s33, s33, 1
        s_waitcnt lgkmcnt(0)
        v_cmp_gt_u32 vcc, {val}, v{T+1}
        s_cmp_gt_u32 s33, {SPIN_MAX*8}
        s_cbranch_scc1 {lab}x
        s_cbranch_vccz {lab}x
        s_sleep {sleep}
        s_branch {lab}
        """)
        a.label(lab + "x")
    def f4(self, n, T):
        a = self.a; lab = a.newlabel("L_f4")
        a(f"s_cmp_eq_u32 s50, 0\ns_cbranch_scc1 {lab}\ns_waitcnt vmcnt({n})")
        self.flag_store([36], T)
        a.label(lab)

    def attention(self):
        a = self.a
        QM, QL, IDX, AK, AV, AL, T0, T1 = 4, 8, 10, 11, 12, 13, 14, 15
        KM, KL, VF, O, S0, S1 = 16, 24, 28, 44, 60, 92
        LK, LV, LL, CA, CK, PW, VV, PC, PP, PV = 124, 125, 126, 127, 128, 129, 130, 132, 133, 134
        TQ, PAR, CH, IT, DK, GRP, FB, MC, MB_, MI, PM = 41, 42, 43, 44, 45, 46, 47, 48, 49, 50, 40
        HD = S_HD
        PR = {}
        a.label("L_p1_fin")
        a("s_waitcnt lgkmcnt(0)")
        self.srd(4, P_WS, WS_BYTES)
        a(f"s_lshr_b32 s{GRP}, s{S_WAVE}, 3")
        self.kv_setup(T0, VV, "0")
        a(f"""
        s_lshr_b32 s{TQ}, s{S_IDX}, 2
        s_lshl_b32 s{TQ}, s{TQ}, 3
        s_add_u32 s{TQ}, s{TQ}, s{S_WAVE}
        s_sub_u32 s{TQ}, s{TQ}, 4
        s_and_b32 s{PAR}, s{HD}, 1
        v_lshrrev_b32 v{T1}, 5, v2
        v_lshlrev_b32 v{T0}, 3, v1
        v_lshl_add_u32 v{LK}, v{T1}, 11, v{T0}
        s_lshl_b32 s30, s{PAR}, 10
        v_add_u32 v{LK}, s30, v{LK}
        s_mul_i32 s31, s{PAR}, 4092
        s_sub_u32 s31, 4096, s31
        v_lshl_add_u32 v{LL}, v2, 3, s31
        v_add_u32 v{AL}, s31, v{T0}              ; Q left voffset
        s_lshr_b32 s32, s{TQ}, 2
        s_mul_i32 s32, s32, {QS}
        s_add_u32 s32, s32, s36
        s_lshl_b32 s32, s32, 10
        s_lshl_b32 s30, s{S_LW}, 8
        s_add_u32 s32, s32, s30
        s_add_u32 s35, s32, {QKP}                ; Q soffset
        v_min_u32 v{AV}, 18, v1
        v_mul_u32_u24 v{T1}, {VROW}, v{T1}
        v_lshl_add_u32 v{LV}, v{AV}, 4, v{T1}
        v_add_u32 v{LV}, 10240, v{LV}
        v_cmp_lt_u32 vcc, 18, v1
        v_cmp_ne_u32 s[30:31], 28, v1
        s_and_b64 vcc, vcc, s[30:31]
        v_mov_b32 v{T1}, 0x100000
        v_mov_b32 v{IDX}, 0xdddd
        v_cndmask_b32 v{LV}, v{LV}, v{T1}, vcc
        v_mov_b32 v{KL}, 0x3f803f80
        v_mov_b32 v{KL+1}, 0x3f803f80
        v_mov_b32 v{KL+2}, 0x3f803f80
        v_mov_b32 v{KL+3}, 0x3f803f80
        s_lshl_b32 s30, s{S_WAVE}, 2
        s_add_u32 s30, s30, {W_PROG - 16}
        v_mov_b32 v{PW}, s30
        s_xor_b32 s30, s30, 16
        v_mov_b32 v{PP}, s30
        s_mov_b32 s62, 0
        s_mov_b32 s63, -1
        s_mov_b32 s{FB}, 0
        s_mov_b32 s{MC}, 1
        s_mov_b32 s{MB_}, {C0*CHB}
        s_cmp_eq_u32 s{GRP}, 0
        s_cbranch_scc1 L_att_b
        """)
        run_loader = self.b1_loader()
        a.label("L_att_b")
        a("s_barrier")
        self.dbg_check(S1)
        a(f"s_cmp_eq_u32 s{GRP}, 0\ns_cbranch_scc1 L_att_c")
        if not self.opt.get("nob"): run_loader()
        a.label("L_att_c")
        a(f"s_xor_b32 s{PM}, s{GRP}, 1")
        self.stamp(4)
        self.poll_f1("L_pollF1a", S0, True)
        self.stamp(5); self.stamp(55, True)
        a(f"""
        buffer_load_dwordx2 v[{QM}:{QM+1}], v{LK}, s[4:7], s35 offen {LDF}
        buffer_load_dwordx2 v[{QM+2}:{QM+3}], v{LK}, s[4:7], s35 offen offset:1024 {LDF}
        buffer_load_dword v{QL}, v{AL}, s[4:7], s35 offen {LDF}
        """)
        a(f"v_mov_b32 v{CA}, {W_LAND}\nv_mov_b32 v{T1}, 2\ns_setprio 2\ns_cmp_lg_u32 s{GRP}, 0\ns_cbranch_scc1 L_kvd")
        self.k_part(); self.v_part(VV, KL, T0); self.kv_next()
        a("s_waitcnt vmcnt(0)")
        self.lds_add1(CA, T1)
        a("s_mov_b32 s35, 0")
        a.label("L_kv12")
        self.k_part(); self.v_part(VV, KL, T0); self.kv_next()
        a("s_add_u32 s35, s35, 1\ns_cmp_lt_u32 s35, 2\ns_cbranch_scc1 L_kv12\ns_branch L_kve")
        a.label("L_kvd")
        a("s_waitcnt vmcnt(0)")
        a.label("L_kve")
        self.lds_spin(CA, T0, 8)
        self.stamp(6)
        a.label("L_maxpass")
        MX = T1
        a(f"""
        v_add_u32 v{AK}, s{MB_}, v{LK}
        v_add_u32 v{AL}, s{MB_}, v{LL}
        v_mov_b32 v{QL+1}, 0
        v_mov_b32 v{MX}, 0xff800000
        s_mov_b32 s{MI}, 0
        """)
        def rdKm(t, p):
            off = (p // 2) * 5120 + (2 * (p % 2) + t) * 256
            a(f"ds_read_b64 v[{KM+4*t}:{KM+4*t+1}], v{AK} offset:{off}\nds_read_b64 v[{KM+4*t+2}:{KM+4*t+3}], v{AK} offset:{off+1024}")
        def rdKl(p): a(f"ds_read_b32 v{KL+2*(p%2)}, v{AL} offset:{(p//2)*5120 + (p%2)*512}")
        def rdV(n, p): a(f"ds_read_b128 v[{VF+4*n}:{VF+4*n+3}], v{AV} offset:{(p*8+n*2)*VROW}")
        def b2(N, p): a(f"v_mfma_f32_32x32x4_2b_bf16 v[{N}:{N+31}], v[{KL+2*(p%2)}:{KL+2*(p%2)+1}], v[{QL}:{QL+1}], 0")
        def mainm(N, t): a(f"v_mfma_f32_32x32x16_bf16 v[{N+16*t}:{N+16*t+15}], v[{KM+4*t}:{KM+4*t+3}], v[{QM}:{QM+3}], v[{N+16*t}:{N+16*t+15}]")
        def smf(n, S): a(f"v_smfmac_f32_32x32x32_bf16 v[{O}:{O+15}], v[{VF+4*n}:{VF+4*n+3}], v[{S+8*n}:{S+8*n+7}], v{IDX}")
        def E(S, lo, hi):
            for r in range(lo, hi): a(f"v_exp_f32 v{S+r}, v{S+r}")
        a.label("L_maxloop")
        rdKl(0); rdKm(0, 0); rdKm(1, 0)
        a(f"""
        s_and_b32 s30, s{MI}, 1
        s_mul_i32 s30, s30, 4096
        s_add_u32 s30, s30, 512
        s_and_b32 s31, s{MI}, 3
        s_cmp_eq_u32 s31, 3
        s_cselect_b32 s30, {CHB-5632}, s30
        s_add_u32 s{MI}, s{MI}, 1
        s_waitcnt lgkmcnt(0)
        """)
        b2(S0, 0)
        a(f"v_add_u32 v{AK}, s30, v{AK}\nv_add_u32 v{AL}, s30, v{AL}")
        for i in range(16): a(f"v_mov_b32 v{O+i}, 0")
        mainm(S0, 0); mainm(S0, 1)
        for i in range(8): a(f"v_mov_b32 v{S1+24+i}, 0")
        for i in range(4): a(f"v_mov_b32 v{VF+12+i}, 0")
        for i in range(16): a(f"v_max3_f32 v{MX}, v{S0+2*i}, v{S0+2*i+1}, v{MX}")
        a(f"""
        s_cmp_lt_u32 s{MI}, s{MC}
        s_cbranch_scc1 L_maxloop
        v_add_u32 v{AK}, {C0*CHB}, v{LK}
        v_add_u32 v{AL}, {C0*CHB}, v{LL}
        v_add_u32 v{AV}, {C0*CHB}, v{LV}
        v_mov_b32 v{T0}, v{MX}
        """)
        rdKl(0); rdKm(0, 0); rdKm(1, 0); rdKl(1)
        rdV(0, 0); rdV(1, 0); rdV(2, 0)
        a(f"""
        v_permlane32_swap_b32 v{T0}, v{MX}
        s_mov_b32 s{CH}, {C0}
        s_mov_b32 s{IT}, 0
        v_max_f32 v{MX}, v{T0}, v{MX}
        v_cvt_pk_bf16_f32 v{T0}, -v{MX}, 0
        v_lshlrev_b32 v{T0}, 16, v{T0}
        v_sub_f32 v{T0}, -v{MX}, v{T0}
        v_cvt_pk_bf16_f32 v{QL+1}, -v{MX}, v{T0}
        v_mov_b32 v{CA}, {W_LAND}
        v_mov_b32 v{PC}, 0
        v_mov_b32 v{PV}, 0
        s_waitcnt lgkmcnt(3)
        """)
        b2(S0, 0)
        a("s_nop 15\ns_nop 1")
        mainm(S0, 0); mainm(S0, 1)
        rdKm(0, 1); rdKm(1, 1)
        a("s_nop 5\ns_waitcnt lgkmcnt(0)")
        self.stamp(7)
        a.raw(".p2align 6")
        a.label("L_loop")
        for i in range(4):
            C, N = (S0, S1) if i % 2 == 0 else (S1, S0)
            if i == 0:
                a(f"""
                s_add_u32 s30, s{CH}, 1
                s_and_b32 s30, s30, 7
                s_sub_u32 s31, s30, s{CH}
                s_mul_i32 s{DK}, s31, {CHB}
                s_mov_b32 s{CH}, s30
                """)
            E(C, 0, 2)
            a("s_waitcnt lgkmcnt(5)")
            smf(3, N); rdV(3, i)
            extra = 0
            if i == 1:
                a(f"s_bitcmp1_b32 s{PM}, s{IT}\ns_cbranch_scc1 L_prio")
                a.label("L_prioret")
                a(f"ds_read_b32 v{CK}, v{CA} offset:4"); extra = 1
            if i % 2 == 1:
                a(f"v_add_u32 v{PC}, 1, v{PC}\nds_read_b32 v{PV}, v{PP}\nds_write_b32 v{PW}, v{PC}"); extra += 2
            if i % 2 == 0 and self.opt.get("ladder") != "off":
                a(f"v_cmp_gt_u32 vcc, v{PC}, v{PV}\ns_setprio 2\ns_cbranch_vccz L_pp{i}\ns_setprio 1")
                a.label(f"L_pp{i}")
            if i == 3: a(f"v_add_u32 v{AV}, s{DK}, v{AV}")
            if i == 2:
                a(f"""
                v_readfirstlane_b32 s30, v{CK}
                v_add_u32 v{AK}, s{DK}, v{AK}
                v_add_u32 v{AL}, s{DK}, v{AL}
                v_add_u32 v{CA}, 4, v{CA}
                s_cmp_lt_u32 s30, 8
                s_cbranch_scc1 L_wait
                """)
                a.label("L_waitret")
            E(C, 2, 6)
            b2(N, i + 1)
            rdKl((i + 2) % 4)
            E(C, 6, 12)
            smf(0, C); rdV(0, (i + 1) % 4)
            E(C, 12, 18)
            smf(1, C); rdV(1, (i + 1) % 4)
            E(C, 18, 22)
            a(f"s_waitcnt lgkmcnt({4 + extra})")
            mainm(N, 0); rdKm(0, (i + 2) % 4)
            E(C, 22, 26)
            smf(2, C); rdV(2, (i + 1) % 4)
            E(C, 26, 30)
            mainm(N, 1); rdKm(1, (i + 2) % 4)
            if i == 3: a(f"s_add_u32 s{IT}, s{IT}, 1\ns_cmp_lt_u32 s{IT}, 8")
            E(C, 30, 32)
        a("s_cbranch_scc1 L_loop")
        a("s_waitcnt lgkmcnt(0)\ns_nop 0")
        smf(3, S1)
        self.stamp(8); self.stamp(56, True)
        L, SUM = T0, T1
        a(f"s_nop 11\nv_cndmask_b32 v{L}, v{O+10}, v{O+12}, s[62:63]\nv_add_f32 v{SUM}, |v{O}|, |v{O+1}|")
        for r in range(2, 10): a(f"v_add_f32 v{SUM}, v{SUM}, |v{O+r}|")
        a(f"""
        s_mov_b32 s30, 0x5d800000
        s_mov_b32 s31, 0x7f7fffff
        v_cmp_nge_f32 vcc, s30, v{L}
        v_cmp_nge_f32 s[34:35], s31, v{SUM}
        s_or_b64 vcc, vcc, s[34:35]
        s_cmp_lg_u32 s{FB}, 0
        s_cbranch_scc1 L_fin
        s_cmp_lg_u64 vcc, 0
        s_cbranch_scc1 L_unsafe
        """)
        a.label("L_fin")
        a(f"v_rcp_f32 v{L}, v{L}\ns_nop 0")
        for r in range(10): a(f"v_mul_f32 v{O+r}, v{O+r}, v{L}")
        for r in range(5): a(f"v_cvt_pk_bf16_f32 v{S0+r}, v{O+2*r}, v{O+2*r+1}")
        a(f"""
        s_mul_i32 s30, s{TQ}, {OS}
        s_add_u32 s30, s30, {OW}
        s_lshl_b32 s31, s{HD}, 10
        s_add_u32 s31, s31, s30
        buffer_store_dwordx4 v[{S0}:{S0+3}], v3, s[4:7], s31 offen {WT}
        s_lshl_b32 s31, s{HD}, 7
        s_add_u32 s31, s31, s30
        s_add_u32 s31, s31, 32768
        v_lshlrev_b32 v{T0}, 2, v2
        s_mov_b32 exec_hi, 0
        buffer_store_dword v{S0+4}, v{T0}, s[4:7], s31 offen {WT}
        s_mov_b32 exec_hi, -1
        v_mov_b32 v{T1}, {FIN_OK}
        ds_write_b32 v{PW}, v{T1}
        s_lshl_b32 s36, s{TQ}, 5
        s_add_u32 s36, s36, s{HD}
        s_lshl_b32 s36, s36, 2
        s_add_u32 s36, s36, {F4}
        s_waitcnt vmcnt(0)
        """)
        self.flag_store([36], AK)
        self.stamp(9); self.stamp(57, True)
        a(f"s_cmp_lg_u32 s{FB}, 0\ns_cbranch_scc1 L_redo_end")
        a.label("L_att_end")
        self.wait_prog(FIN_OK, AK)
        a(f"v_cmp_eq_u32 vcc, s30, v{AK+1}\ns_cbranch_vccz L_b3l\ns_branch L_redo")
        a.label("L_prio")
        a(f"s_cmp_lg_u32 s{IT}, 0\ns_cbranch_scc1 L_prio1")
        a(f"""
        v_lshl_add_u32 v{T0}, v2, 2, v{CA}
        v_mov_b32 v{T1}, 2
        s_waitcnt vmcnt(0)
        s_mov_b64 exec, 6
        ds_add_u32 v{T0}, v{T1}
        s_mov_b64 exec, -1
        s_waitcnt lgkmcnt(0)
        s_branch L_prioret
        """)
        a.label("L_prio1")
        for k, p in PR.items():
            a(f"s_setprio {p}\ns_cmp_eq_u32 s{IT}, {k}\ns_cbranch_scc1 L_prioret")
        a("s_branch L_prioret")
        a.label("L_wait")
        self.lds_spin(CA, CK, 8)
        a("s_branch L_waitret")
        a.label("L_unsafe")
        a(f"s_mov_b32 s{FB}, 1\nv_mov_b32 v{T1}, {FIN_BAD}\nds_write_b32 v{PW}, v{T1}")
        a.label("L_redo")
        a("s_waitcnt lgkmcnt(0)\ns_barrier")
        self.kv_setup(T0, VV, "0")
        for i in range(4): a(f"v_mov_b32 v{S0+i}, 0x3f803f80")
        a("s_mov_b32 s35, 0")
        a.label("L_redo1")
        self.kv_half(GRP, VV, S0, T0)
        a(f"""
        s_add_u32 s35, s35, 1
        s_cmp_lt_u32 s35, 8
        s_cbranch_scc1 L_redo1
        s_waitcnt vmcnt(0) lgkmcnt(0)
        s_barrier
        s_cmp_eq_u32 s{FB}, 0
        s_cbranch_scc1 L_redo_end
        s_mov_b32 s{MC}, 32
        s_mov_b32 s{MB_}, 0
        s_mov_b32 s{PM}, 0
        v_mov_b32 v{PW}, {LDS_W + 128}
        s_branch L_maxpass
        """)
        a.label("L_redo_end")
        a("s_waitcnt lgkmcnt(0)\ns_barrier\ns_branch L_b3l")

    WA, ONE, BC = 156, 157, 47
    def arrive(self, T):
        a = self.a
        a(f"s_add_u32 s{self.BC}, s{self.BC}, 4")
        self.lds_add1(self.WA, self.ONE)
    def bar(self, T):
        self.arrive(T)
        self.lds_spin(self.WA, T, f"s{self.BC}")
    def gemm_cons(self, name, N, T, CW, rl, mfl, nfree):
        a = self.a
        self.lds_spin(CW, T, 4)
        a(f"ds_read_b32 v{T}, v{CW} offset:4")
        for x in rl(0): a(x)
        for s in range(N - 1):
            mf = mfl(s); p = f"{name}_{s}"
            a("s_waitcnt lgkmcnt(0)")
            a(f"v_readfirstlane_b32 s32, v{T}")
            a(mf[0])
            self.stampx(16)
            if s < nfree: self.lds_add1(CW, self.ONE, 256 + 4 * s)
            a(f"s_cmp_lt_u32 s32, 4\ns_cbranch_scc1 {p}s")
            a.label(p + "r")
            self.stubs.append((p, CW, T, 4 * (s + 1)))
            oth = rl(s + 1) + ([f"ds_read_b32 v{T}, v{CW} offset:{4*(s+2)}"] if s + 2 < N else [])
            ilv(a, mf[1:8], oth)
        a("s_waitcnt lgkmcnt(0)")
        if N - 1 < nfree: self.lds_add1(CW, self.ONE, 256 + 4 * (N - 1))
        for m in mfl(N - 1): a(m)
    def emit_stubs(self):
        a = self.a
        for p, CW, T, off in self.stubs:
            a.label(p + "s")
            self.lds_spin(CW, T, 4, off)
            a(f"s_branch {p}r")
    def gemm_load(self, name, first, N, nslot, lag, CW, ONE, T, issue):
        a = self.a
        a(f"s_mov_b32 s40, {first}\nv_add_u32 v{CW}, {4*(first-lag)}, v{CW}")
        a.label(name)
        a(f"s_cmp_lt_u32 s40, {first + lag}\ns_cbranch_scc1 {name}n\ns_waitcnt vmcnt({6*(lag-1)})")
        self.lds_add1(CW, ONE)
        a.label(name + "n")
        a(f"s_cmp_lt_u32 s40, {nslot}\ns_cbranch_scc1 {name}i")
        self.lds_spin(CW, T, 4, 256 - 4 * (nslot - lag))
        a.label(name + "i")
        issue()
        a(f"s_add_u32 s40, s40, 1\nv_add_u32 v{CW}, 4, v{CW}\ns_cmp_lt_u32 s40, {N}\ns_cbranch_scc1 {name}")
        for j in range(lag):
            a(f"s_waitcnt vmcnt({6*(lag-1-j)})")
            self.lds_add1(CW, ONE, 4 * j)
    def b1_loader(self):
        a = self.a
        VX, VB, CW, ONE, T = 60, 64, 66, 67, 68
        XB, WB, SL, NS = 16, 17, 18, 19
        self.make_vx(VX, 4, "16", "1", "8", "4", T)
        self.make_vx(VB, 2, "4", "1", "16", "8", T)
        self.srd(8, P_BX, 2048 * 1152)
        a(f"""
        s_cmp_lt_u32 s{S_LW}, 2
        s_cselect_b32 s12, s{P_BRE}, s{P_BIM}
        s_cselect_b32 s13, s{P_BRE+1}, s{P_BIM+1}
        s_and_b32 s13, s13, 0xffff
        s_mov_b32 s14, {576*1152}
        s_mov_b32 s15, 0x20000
        s_lshl_b32 s30, s{S_MB}, 7
        s_lshl_b32 s31, s{S_LW}, 5
        s_add_u32 s30, s30, s31
        s_mul_i32 s{XB}, s30, 1152
        s_cmp_eq_u32 s{S_TYPE}, 2
        s_cselect_b32 s30, s{S_CHA}, s{S_CHB}
        s_cselect_b32 s{NS}, 18, 9
        s_lshl_b32 s30, s30, 5
        s_and_b32 s31, s{S_LW}, 1
        s_lshl_b32 s31, s31, 4
        s_add_u32 s30, s30, s31
        s_mul_i32 s{WB}, s30, 1152
        s_mov_b32 s{SL}, 0
        v_mov_b32 v{CW}, {W_FULL}
        v_mov_b32 v{ONE}, 1
        """)
        def issue():
            lab = a.newlabel("L_bi")
            a(f"""
            s_cmp_lg_u32 s40, 9
            s_cbranch_scc1 {lab}
            s_sub_u32 s{XB}, s{XB}, {9*128}
            s_sub_u32 s30, s{S_CHA}, s{S_CHB}
            s_mul_i32 s30, s30, {32*1152}
            s_add_u32 s30, s30, {9*128}
            s_sub_u32 s{WB}, s{WB}, s30
            """)
            a.label(lab)
            a(f"s_lshl_b32 s30, s{S_LW}, 12\ns_add_u32 m0, s30, s{SL}\ns_lshl_b32 s30, s{S_LW}, 11")
            for n in range(4): a(f"buffer_load_dwordx4 v{VX+n}, s[8:11], s{XB} offen offset:{n*1024} lds")
            a(f"s_add_u32 s30, s30, s{SL}\ns_add_u32 m0, s30, 16384\ns_add_u32 s{XB}, s{XB}, 128")
            for n in range(2): a(f"buffer_load_dwordx4 v{VB+n}, s[12:15], s{WB} offen offset:{n*1024} lds")
            a(f"""
            s_add_u32 s{WB}, s{WB}, 128
            s_add_u32 s{SL}, s{SL}, {BSLOT}
            s_cmp_eq_u32 s{SL}, {3*BSLOT}
            s_cselect_b32 s{SL}, 0, s{SL}
            """)
        return lambda: self.gemm_load("L_l1", 0, f"s{NS}", 3, 2, CW, ONE, T, issue)

    def aux(self):
        a = self.a
        AX, AW, FX, ACC, T = 4, 8, 16, 80, 148
        SS, SLOT, DL, WM, WN = 40, 41, 42, 43, 44
        a.label("L_aux")
        a(f"""
        s_setprio 3
        s_mov_b32 s{S_HALF}, 0
        s_mov_b32 s{S_CH}, s{S_CHA}
        s_mov_b32 s62, 0
        s_mov_b32 s63, -1
        s_waitcnt lgkmcnt(0)
        """)
        self.srd(4, P_WS, WS_BYTES)
        a(f"s_cmp_eq_u32 s{S_TYPE}, 2\ns_cbranch_scc1 L_aux_sp")
        a(f"s_lshr_b32 s{WM}, s{S_WAVE}, 1\ns_and_b32 s{WN}, s{S_WAVE}, 1\ns_lshl_b32 s30, s{WM}, 13")
        self.swz(AX, T, "s30")
        a(f"""
        v_bfe_u32 v{T+2}, v2, 2, 2
        v_lshl_add_u32 v{T+3}, v{T+1}, 3, v{T+2}
        v_lshlrev_b32 v{T+3}, 8, v{T+3}
        v_bfe_u32 v{T+4}, v2, 4, 1
        v_lshl_add_u32 v{T+3}, v{T+4}, 5, v{T+3}
        v_and_b32 v{T+4}, 3, v2
        v_lshl_add_u32 v{T+3}, v{T+4}, 3, v{T+3}
        v_add_u32 v{T+3}, 16384, v{T+3}
        s_lshl_b32 s30, s{WN}, 1
        v_xor_b32 v{T+4}, s30, v{T+2}
        v_lshl_add_u32 v{AW}, v{T+4}, 6, v{T+3}
        v_xor_b32 v{AW+1}, 64, v{AW}
        """)
        for i in range(64): a(f"v_mov_b32 v{ACC+i}, 0")
        a(f"s_mov_b32 s{SS}, 0\ns_mov_b32 s{SLOT}, 0\ns_barrier")
        self.stampx(16, True)
        def nextslot(stride, total):
            a(f"""
            s_add_u32 s30, s{SLOT}, {stride}
            s_cmp_eq_u32 s30, {total}
            s_cselect_b32 s30, 0, s30
            s_sub_u32 s{DL}, s30, s{SLOT}
            s_mov_b32 s{SLOT}, s30
            s_add_u32 s{SS}, s{SS}, 1
            """)
        def reads(s):
            l = [f"ds_read_b128 v[{FX+s*16+mt*4}:{FX+s*16+mt*4+3}], v{AX+s} offset:{mt*4096}" for mt in range(2)]
            for nt in range(2):
                for hf in range(2):
                    r = FX + s * 16 + 8 + nt * 4 + hf * 2
                    l.append(f"ds_read_b64_tr_b16 v[{r}:{r+1}], v{AW+nt} offset:{s*4096 + hf*1024}")
            return l
        for x in reads(0) + reads(1): a(x)
        a(f"s_cmp_eq_u32 s{S_TYPE}, 1\ns_cbranch_scc1 L_a1v")
        def a1loop(vtype, lab):
            a.label(lab)
            for s in range(4):
                a("s_waitcnt lgkmcnt(6)")
                if s == 2:
                    a(f"s_cmp_lt_u32 s{SS}, 9\ns_cbranch_scc1 {lab}b\ns_waitcnt lgkmcnt(0)")
                    a.label(lab + "b")
                    a("s_barrier")
                    self.stampx(16)
                mf = []
                for mt in range(2):
                    for nt in range(2):
                        d = ACC + (mt * 2 + nt) * 16
                        x = f"v[{FX+s*16+mt*4}:{FX+s*16+mt*4+3}]"; w = f"v[{FX+s*16+8+nt*4}:{FX+s*16+8+nt*4+3}]"
                        A, B = (x, w) if vtype else (w, x)
                        mf.append(f"v_mfma_f32_32x32x16_bf16 v[{d}:{d+15}], {A}, {B}, v[{d}:{d+15}]")
                ilv(a, mf, reads((s + 2) % 4))
                if s == 0: nextslot(32768, 163840)
                if s == 1:
                    for r in (AX, AX + 1, AX + 2, AX + 3, AW, AW + 1): a(f"v_add_u32 v{r}, s{DL}, v{r}")
            a(f"s_cmp_lt_u32 s{SS}, 9\ns_cbranch_scc1 {lab}")
        a1loop(False, "L_a1qk")
        self.stamp(1)
        a(f"""
        s_lshl_b32 s30, s{S_NB}, 5
        s_lshl_b32 s31, s{WN}, 4
        s_add_u32 s30, s30, s31
        s_mul_i32 s31, s{S_MB}, {QS}
        s_add_u32 s31, s31, s30
        s_lshl_b32 s31, s31, 10
        s_lshl_b32 s32, s{WM}, 9
        s_add_u32 s31, s31, s32
        s_add_u32 s31, s31, {QKP}
        v_lshlrev_b32 v{T+2}, 4, v1
        v_lshl_add_u32 v{T+2}, v{T+1}, 10, v{T+2}
        s_mov_b32 s32, {QSCALE}
        s_cmp_ge_u32 s30, 144
        s_cselect_b32 s32, 1.0, s32
        s_mov_b32 s33, s32
        s_waitcnt lgkmcnt(0)
        """)
        for nt in range(2):
            for g in range(4):
                o = FX + (nt * 4 + g) * 4
                for mt in range(2):
                    d = ACC + (mt * 2 + nt) * 16 + 4 * g
                    a(f"v_pk_mul_f32 v[{d}:{d+1}], v[{d}:{d+1}], s[32:33]\nv_pk_mul_f32 v[{d+2}:{d+3}], v[{d+2}:{d+3}], s[32:33]")
                for mt in range(2):
                    d = ACC + (mt * 2 + nt) * 16 + 4 * g
                    a(f"v_cvt_pk_bf16_f32 v{o+2*mt}, v{d}, v{d+1}\nv_cvt_pk_bf16_f32 v{o+2*mt+1}, v{d+2}, v{d+3}")
                a(f"buffer_store_dwordx4 v[{o}:{o+3}], v{T+2}, s[4:7], s31 offen offset:{(g%2)*2048} {WT}")
                if g % 2 == 1: a("s_add_u32 s31, s31, 4096")
        a("s_branch L_a1done")
        a1loop(True, "L_a1v")
        self.stamp(1)
        a(f"""
        s_sub_u32 s30, s{S_NB}, 9
        s_lshl_b32 s30, s30, 7
        s_lshl_b32 s31, s{WN}, 6
        s_add_u32 s30, s30, s31
        s_lshl_b32 s31, s{S_MB}, 4
        s_lshl_b32 s32, s{WM}, 3
        s_add_u32 s31, s31, s32
        s_mul_i32 s31, s31, {VS}
        s_lshl_b32 s32, s30, 4
        s_add_u32 s31, s31, s32
        s_add_u32 s31, s31, {VT}
        v_mul_u32_u24 v{T+2}, {VS}, v{T+1}
        v_lshl_add_u32 v{T+2}, v1, 4, v{T+2}
        s_waitcnt lgkmcnt(0)
        s_cmp_ge_u32 s30, 576
        s_cbranch_scc1 L_a1done
        """)
        for mt in range(2):
            for m in range(2):
                for nt in range(2):
                    d = ACC + (mt * 2 + nt) * 16 + 8 * m
                    for r in range(4): a(f"v_cvt_pk_bf16_f32 v{d+r}, v{d+2*r}, v{d+2*r+1}")
                    a(f"buffer_store_dwordx4 v[{d}:{d+3}], v{T+2}, s[4:7], s31 offen offset:{nt*512} {WT}")
                a(f"s_add_u32 s31, s31, {2*VS}")
        a.label("L_a1done")
        self.stamp(2); self.stamp(59, True)
        if self.opt.get("drain1"): a("s_waitcnt vmcnt(0)"); self.stamp(7)
        a(f"s_mov_b32 s{S_HALF}, 1\ns_mov_b32 s{S_CH}, s{S_CHB}\ns_branch L_b1pre")
        a.label("L_aux_sp")
        a("s_barrier")
        AB, BF, WA, ONE, AC1, CW, RAW = 8, 16, self.WA, self.ONE, 112, 155, 164
        T = 158; BC = self.BC
        a.label("L_b1pre")
        a(f"s_mov_b32 s{BC}, 0\nv_mov_b32 v{WA}, {W_BAR}\nv_mov_b32 v{ONE}, 1\nv_mov_b32 v{CW}, {W_FULL}\ns_lshl_b32 s48, s{S_LW}, 12\ns_lshl_b32 s49, s{S_LW}, 11")
        self.swz(AB, T, 16384)
        a(f"s_sub_u32 s30, s48, 16384")
        for s in range(4): a(f"v_add_u32 v{AX+s}, s30, v{AB+s}")
        a(f"""
        s_cmp_eq_u32 s{S_TYPE}, 2
        s_cbranch_scc1 L_b1
        s_lshl_b32 s30, s{S_NB}, 7
        s_add_u32 s31, s30, 128
        s_cmp_eq_u32 s{S_TYPE}, 1
        s_cselect_b32 s32, 1152, 0
        v_mul_u32_u24 v{T+2}, 18, v2
        v_add_u32 v{T+2}, s32, v{T+2}
        v_add_u32 v{T+3}, 18, v{T+2}
        v_max_u32 v{T+2}, s30, v{T+2}
        v_min_u32 v{T+3}, s31, v{T+3}
        v_min_u32 v{T+3}, 0x6c0, v{T+3}
        v_cmp_lt_u32 vcc, v{T+2}, v{T+3}
        v_sub_u32 v{T+2}, v{T+3}, v{T+2}
        v_mul_u32_u24 v{T+3}, {F1STRIDE}, v1
        s_and_b32 s31, s{S_MB}, {NSUB-1}
        s_lshl_b32 s31, s31, 7
        s_add_u32 s31, s31, {F1}
        """)
        self.wait_ok(T)
        a(f"s_waitcnt vmcnt(0)")
        self.stamp(9); self.stamp(52, True)
        a(f"""
        s_mov_b64 exec, 1
        ds_add_rtn_u32 v{T}, v{WA}, v{ONE} offset:4
        s_mov_b64 exec, -1
        s_waitcnt lgkmcnt(0)
        v_readfirstlane_b32 s35, v{T}
        s_cmp_lg_u32 s35, 3
        s_cbranch_scc1 L_b1
        s_mov_b64 exec, vcc
        buffer_atomic_add v{T+2}, v{T+3}, s[4:7], s31 offen sc1
        s_mov_b64 exec, -1
        """)
        if self.opt.get("rt"): self.stamp(53, True); a("s_waitcnt vmcnt(0)"); self.stamp(54, True)
        a.label("L_b1")
        if self.opt.get("nob"): a("s_branch L_b1done")
        a(f"""
        s_lshl_b32 s30, s{S_CH}, 6
        v_lshl_add_u32 v{T+4}, v1, 1, s30
        global_load_ushort v{RAW}, v{T+4}, s[{P_LRE}:{P_LRE+1}]
        global_load_ushort v{RAW+1}, v{T+4}, s[{P_LIM}:{P_LIM+1}]
        global_load_ushort v{RAW+2}, v{T+4}, s[{P_LDT}:{P_LDT+1}]
        """)
        def rl(st):
            l = []; off = (st % 3) * BSLOT
            for s in range(4):
                b = BF + (st % 2) * 48 + s * 12
                l.append(f"ds_read_b128 v[{b}:{b+3}], v{AX+s} offset:{off}")
                for nt in range(2): l.append(f"ds_read_b128 v[{b+4+nt*4}:{b+7+nt*4}], v{AB+s} offset:{off + nt*4096}")
            return l
        def mfl(st):
            l = []
            for s in range(4):
                b = BF + (st % 2) * 48 + s * 12
                for nt in range(2):
                    d = AC1 + nt * 16; c = "0" if st == 0 and s == 0 else f"v[{d}:{d+15}]"
                    l.append(f"v_mfma_f32_32x32x16_bf16 v[{d}:{d+15}], v[{b}:{b+3}], v[{b+4+nt*4}:{b+7+nt*4}], {c}")
            return l
        self.gemm_cons("L_g1", 9, T, CW, rl, mfl, 9)
        a(f"v_add_u32 v{CW}, 36, v{CW}\ns_waitcnt vmcnt(0)")
        self.stamp(3)
        LT_ = 144
        for i in range(3): a(f"v_mov_b32 v{LT_+i}, v{RAW+i}")
        self.lam_calc(LT_)
        for t in range(16):
            u, w, d = AC1 + t, AC1 + 16 + t, BS + 2 * t
            a(f"""
            v_mul_f32 v{d}, v{CR}, v{u}
            v_mul_f32 v{d+1}, v{CR}, v{w}
            v_fma_f32 v{d}, -v{CI}, v{w}, v{d}
            v_fma_f32 v{d+1}, v{CI}, v{u}, v{d+1}
            """)
            if t >= 1:
                g0 = BS if t == 1 else T + 2 + 2 * (t % 2); g1 = T + 2 + 2 * ((t + 1) % 2)
                self.cmac(g1, LR, g0, d)
        GR = T + 2; TT = T + 4
        a(f"""
        s_lshl_b32 s31, s{S_WAVE}, 9
        s_add_u32 s30, s31, {LDS_SCR}
        v_lshl_add_u32 v{TT}, v2, 3, s30
        ds_write_b64 v{TT}, v[{GR}:{GR+1}]
        v_lshlrev_b32 v{TT+1}, 3, v2
        v_add_u32 v{TT+1}, {LDS_SCR - 256}, v{TT+1}
        """)
        self.bar(T)
        EV = BF
        for j in range(8): a(f"ds_read_b64 v[{EV+2*j}:{EV+2*j+1}], v{TT+1} offset:{j*256}")
        a("s_waitcnt lgkmcnt(0)")
        self.partb(EV, T)
        a(f"s_cmp_lg_u32 s{S_HALF}, 0\ns_cbranch_scc1 L_b1done")
        def spill(op):
            a(f"s_lshl_b32 s30, s2, 2\ns_add_u32 s30, s30, s{S_WAVE}\ns_mul_i32 s30, s30, {12*1024}\ns_add_u32 s30, s30, {SPILL}")
            for i in range(10):
                a(f"buffer_{op}_dwordx4 v[{BS+4*i}:{BS+4*i+3}], v3, s[4:7], s30 offen offset:{(i%4)*1024}")
                if i % 4 == 3: a("s_add_u32 s30, s30, 4096")
            a(f"buffer_{op}_dwordx2 v[{BS+40}:{BS+41}], v3, s[4:7], s30 offen offset:2048\ns_waitcnt vmcnt(0)")
        spill("store")
        a(f"s_mov_b32 s{S_HALF}, 1\ns_mov_b32 s{S_CH}, s{S_CHB}\ns_branch L_b1")
        a.label("L_b1done")
        self.stamp(4)
        VV, ONES = 12, 16
        self.poll_f1("L_pollF1x", T)
        self.kv_setup(T, VV, "3")
        for i in range(4): a(f"v_mov_b32 v{ONES+i}, 0x3f803f80")
        a("s_mov_b32 s35, 0")
        a.label("L_auxkv")
        self.k_part(); self.v_part(VV, ONES, T); self.kv_next()
        a(f"""
        s_add_u32 s35, s35, 1
        s_cmp_lt_u32 s35, 5
        s_cbranch_scc1 L_auxkv
        v_lshlrev_b32 v{T}, 2, v2
        v_add_u32 v{T}, {W_LAND + 12}, v{T}
        v_mov_b32 v{T+1}, 2
        s_waitcnt vmcnt(0)
        s_mov_b64 exec, 31
        ds_add_u32 v{T}, v{T+1}
        s_mov_b64 exec, -1
        """)
        self.stamp(5)
        if self.opt.get("nob"): a("s_branch L_exit")
        a.label("L_p2")
        self.pass2(BF, T)
        a(f"s_cmp_lg_u32 s{S_TYPE}, 2\ns_cbranch_scc1 L_p2end\ns_cmp_eq_u32 s{S_CH}, s{S_CHA}\ns_cbranch_scc1 L_p2end")
        spill("load")
        a(f"s_mov_b32 s{S_CH}, s{S_CHA}\ns_branch L_p2")
        a.label("L_p2end")
        self.stamp(6)
        self.warm([(P_CRE, 576 * 1152), (P_CIM, 576 * 1152), (P_WO, 576 * 1152)], T, 16)
        self.p3_ids()
        self.p3(T)

    def cmac(self, d, m, g, c):
        self.a(f"v_pk_fma_f32 v[{d}:{d+1}], v[{m}:{m+1}], v[{g}:{g+1}], v[{c}:{c+1}] op_sel_hi:[0,1,1]")
        self.a(f"v_pk_fma_f32 v[{d}:{d+1}], v[{m}:{m+1}], v[{g}:{g+1}], v[{d}:{d+1}] op_sel:[1,1,0] op_sel_hi:[1,0,1] neg_lo:[1,0,0]")
    def lam_calc(self, T):
        a = self.a; L2E = f32(math.log2(math.e))
        a(f"""
        v_lshlrev_b32 v{T}, 16, v{T}
        v_lshlrev_b32 v{T+1}, 16, v{T+1}
        v_lshlrev_b32 v{T+2}, 16, v{T+2}
        v_mul_f32 v{T+2}, {L2E}, v{T+2}
        v_exp_f32 v{T+2}, v{T+2}
        s_nop 0
        v_cvt_pk_bf16_f32 v{T+2}, v{T+2}, v{T+2}
        v_lshlrev_b32 v{T+2}, 16, v{T+2}
        v_mul_f32 v{T+3}, v{T+2}, v{T}
        v_mul_f32 v{T+4}, v{T+2}, v{T+1}
        v_mul_f32 v{T+3}, {L2E}, v{T+3}
        v_mul_f32 v{T+4}, {f32(1/(2*math.pi))}, v{T+4}
        v_exp_f32 v{T+3}, v{T+3}
        v_fract_f32 v{T+4}, v{T+4}
        v_cos_f32 v{T+5}, v{T+4}
        v_sin_f32 v{T+6}, v{T+4}
        s_nop 0
        v_mul_f32 v{LR}, v{T+3}, v{T+5}
        v_mul_f32 v{LI}, v{T+3}, v{T+6}
        v_mul_f32 v{T+3}, v{T}, v{T}
        v_fmac_f32 v{T+3}, v{T+1}, v{T+1}
        v_rcp_f32 v{T+3}, v{T+3}
        v_add_f32 v{T+4}, -1.0, v{LR}
        v_mul_f32 v{T+5}, v{T+4}, v{T}
        v_fmac_f32 v{T+5}, v{LI}, v{T+1}
        v_mul_f32 v{T+6}, v{LI}, v{T}
        v_fma_f32 v{T+6}, -v{T+4}, v{T+1}, v{T+6}
        v_add_f32 v{T+3}, v{T+3}, v{T+3}
        v_mul_f32 v{CR}, v{T+5}, v{T+3}
        v_mul_f32 v{CI}, v{T+6}, v{T+3}
        v_mov_b32 v{MUR}, v{LR}
        v_mov_b32 v{MUI}, v{LI}
        """)
        for i in range(4):
            a(f"""
            v_mul_f32 v{T+3}, v{MUI}, v{MUI}
            v_mul_f32 v{T+4}, v{MUR}, v{MUI}
            v_fma_f32 v{MUR}, v{MUR}, v{MUR}, -v{T+3}
            v_add_f32 v{MUI}, v{T+4}, v{T+4}
            """)

    def partb(self, EV, TT):
        a = self.a
        a(f"""
        v_cndmask_b32 v{LCR}, 0, v{EV}, s[62:63]
        v_cndmask_b32 v{LCI}, 0, v{EV+1}, s[62:63]
        v_cndmask_b32 v{PWR}, 1.0, v{MUR}, s[62:63]
        v_cndmask_b32 v{PWI}, 0, v{MUI}, s[62:63]
        """)
        for j in range(1, 7):
            if j % 2 == 1: a(f"s_cmp_lt_u32 s{S_WAVE}, {(j+1)//2}\ns_cbranch_scc1 L_pbne")
            a(f"""
            v_mul_f32 v{TT}, v{MUR}, v{PWR}
            v_mul_f32 v{TT+1}, v{MUR}, v{PWI}
            v_fma_f32 v{TT+2}, v{MUR}, v{LCR}, v{EV+2*j}
            v_fma_f32 v{TT+3}, v{MUR}, v{LCI}, v{EV+2*j+1}
            v_fma_f32 v{TT}, -v{MUI}, v{PWI}, v{TT}
            v_fma_f32 v{PWI}, v{MUI}, v{PWR}, v{TT+1}
            v_fma_f32 v{TT+2}, -v{MUI}, v{LCI}, v{TT+2}
            v_fma_f32 v{LCI}, v{MUI}, v{LCR}, v{TT+3}
            v_mov_b32 v{PWR}, v{TT}
            v_mov_b32 v{LCR}, v{TT+2}
            """)
        EB = EV + 14
        a(f"""
        s_mul_i32 s30, s{S_MB}, {576*8}
        s_lshl_b32 s31, s{S_CH}, 8
        s_add_u32 s30, s30, s31
        s_add_u32 s30, s30, {EE - 256}
        v_lshlrev_b32 v{TT+2}, 3, v2
        v_fma_f32 v{TT}, v{MUR}, v{LCR}, v{EB}
        v_fma_f32 v{TT+1}, v{MUR}, v{LCI}, v{EB+1}
        v_fma_f32 v{TT}, -v{MUI}, v{LCI}, v{TT}
        v_fma_f32 v{TT+1}, v{MUI}, v{LCR}, v{TT+1}
        s_mov_b32 exec_lo, 0
        buffer_store_dwordx2 v[{TT}:{TT+1}], v{TT+2}, s[4:7], s30 offen {WT}
        s_mov_b32 exec_lo, -1
        s_lshl_b32 s30, s{S_CH}, 5
        s_add_u32 s30, s30, s{S_MB}
        s_lshl_b32 s30, s30, 2
        s_add_u32 s30, s30, {F2}
        s_waitcnt vmcnt(0)
        """)
        self.wait_ok(TT)
        self.flag_store([30], TT)
        a.label("L_pbne")
        for i in range(3):
            a(f"""
            v_mul_f32 v{TT+4}, v{MUI}, v{MUI}
            v_mul_f32 v{TT+5}, v{MUR}, v{MUI}
            v_fma_f32 v{MUR}, v{MUR}, v{MUR}, -v{TT+4}
            v_add_f32 v{MUI}, v{TT+5}, v{TT+5}
            """)

    def pass2(self, EV, T):
        a = self.a
        GR, GI, TT, AD, M2R, M2I = T, T + 1, T + 2, T + 4, T + 6, T + 7
        a(f"""
        s_cmp_eq_u32 s{S_MB}, 0
        s_cbranch_scc1 L_pollF2_x
        s_sub_u32 s35, s{S_MB}, 1
        v_min_u32 v{AD}, s35, v2
        v_lshlrev_b32 v{AD}, 2, v{AD}
        s_lshl_b32 s34, s{S_CH}, 7
        s_add_u32 s34, s34, {F2}
        """)
        self.poll("L_pollF2", TT, AD, "s34", sleep=8)
        a(f"""
        s_add_u32 s8, s{P_WS}, {EE}
        s_addc_u32 s9, s{P_WS+1}, 0
        s_and_b32 s9, s9, 0xffff
        s_mov_b32 s10, {16*576*8}
        s_mov_b32 s11, 0x20000
        v_lshrrev_b32 v{TT}, 5, v2
        v_mul_u32_u24 v{TT}, {576*8}, v{TT}
        v_lshlrev_b32 v{AD}, 3, v1
        v_sub_u32 v{AD}, v{AD}, v{TT}
        s_sub_u32 s34, s{S_MB}, 1
        s_mul_i32 s34, s34, {576*8}
        v_add_u32 v{AD}, s34, v{AD}
        s_lshl_b32 s34, s{S_CH}, 8
        """)
        for i in range(8):
            a(f"buffer_load_dwordx2 v[{EV+2*i}:{EV+2*i+1}], v{AD}, s[8:11], s34 offen sc0 sc1")
            if i < 7: a(f"v_subrev_u32 v{AD}, {2*576*8}, v{AD}")
        a(f"""
        v_mul_f32 v{TT}, v{MUI}, v{MUI}
        v_mul_f32 v{TT+1}, v{MUR}, v{MUI}
        v_fma_f32 v{M2R}, v{MUR}, v{MUR}, -v{TT}
        v_add_f32 v{M2I}, v{TT+1}, v{TT+1}
        s_waitcnt vmcnt(0)
        """)
        for i in range(6, -1, -1): self.cmac(EV + 2 * i, M2R, EV + 2 * i + 2, EV + 2 * i)
        a(f"""
        v_mov_b32 v{AD}, v{EV}
        v_mov_b32 v{AD+1}, v{EV+1}
        s_nop 1
        v_permlane32_swap_b32 v{EV}, v{AD}
        v_permlane32_swap_b32 v{EV+1}, v{AD+1}
        s_nop 1
        """)
        self.cmac(EV, MUR, AD, EV)
        self.cmac(GR, PWR, EV, LCR)
        for t in range(16): self.cmac(BS + 2 * t, LR, GR if t == 0 else BS + 2 * t - 2, BS + 2 * t)
        a(f"""
        s_lshl_b32 s34, s{S_MB}, 2
        s_add_u32 s34, s34, s{S_WAVE}
        s_mul_i32 s34, s34, {HS}
        s_add_u32 s34, s34, s{S_CH}
        s_lshl_b32 s34, s34, 11
        s_add_u32 s34, s34, {HH}
        s_add_u32 s35, s34, {18*2048}
        v_lshrrev_b32 v{TT}, 5, v2
        v_lshlrev_b32 v{AD}, 4, v1
        v_mul_u32_u24 v{TT}, {1024+128}, v{TT}
        v_xor_b32 v{AD}, v{AD}, v{TT}
        v_xor_b32 v{AD+1}, {512+64}, v{AD}
        """)
        for c in range(2):
            for jj in range(2):
                d = EV + 16 + 8 * c + 4 * jj; n = "-" if c else ""
                for r in range(4): a(f"v_cvt_pk_bf16_f32 v{d+r}, {n}v{BS+16*jj+4*r+c}, {n}v{BS+16*jj+4*r+2+c}")
                a(f"buffer_store_dwordx4 v[{d}:{d+3}], v{AD+jj}, s[4:7], s{34+c} offen {WT}")
        a(f"""
        s_mul_i32 s30, s{S_MB}, 24
        s_add_u32 s31, s30, s{S_CH}
        s_lshl_b32 s31, s31, 2
        s_add_u32 s31, s31, s{S_WAVE}
        s_lshl_b32 s31, s31, 2
        s_add_u32 s31, s31, {F3}
        s_waitcnt vmcnt(0)
        """)
        self.flag_store([31], TT)

    def b3_loader_setup(self, PB, T, st0):
        a = self.a
        self.make_vx(PB, 2, "4", "1", "16", "8", T)
        self.srd(12, P_CRE, 576 * 1152)
        a(f"""
        s_mul_i32 s{S_HB}, s{S_P3T}, {HS*2048}
        s_add_u32 s{S_HB}, s{S_HB}, {HH + st0*4096}
        s_lshl_b32 s30, s{S_P3NB}, 6
        s_lshl_b32 s31, s{S_LW}, 4
        s_add_u32 s30, s30, s31
        s_mul_i32 s{S_CB}, s30, 1152
        s_add_u32 s{S_CB}, s{S_CB}, {st0*128}
        s_mov_b32 s{S_SL3}, {R6[st0]}
        """)
        def issue():
            lab = a.newlabel("L_b3i")
            a(f"s_lshl_b32 s30, s{S_LW}, 12\ns_add_u32 m0, s30, s{S_SL3}\ns_cmp_lg_u32 s40, 9")
            for n in range(4): a(f"buffer_load_dwordx4 v3, s[4:7], s{S_HB} offen offset:{n*1024} {LDF} lds")
            a(f"s_cbranch_scc1 {lab}\ns_mov_b32 s12, s{P_CIM}\ns_and_b32 s13, s{P_CIM+1}, 0xffff\ns_sub_u32 s{S_CB}, s{S_CB}, {9*128}")
            a.label(lab)
            a(f"s_lshl_b32 s30, s{S_LW}, 11\ns_add_u32 s30, s30, s{S_SL3}\ns_add_u32 m0, s30, 16384\ns_add_u32 s{S_HB}, s{S_HB}, 4096")
            for n in range(2): a(f"buffer_load_dwordx4 v{PB+n}, s[12:15], s{S_CB} offen offset:{n*1024} lds")
            a(f"""
            s_add_u32 s{S_CB}, s{S_CB}, 128
            s_add_u32 s{S_SL3}, s{S_SL3}, {BSLOT}
            s_cmp_eq_u32 s{S_SL3}, {2048 + 6*BSLOT}
            s_cselect_b32 s{S_SL3}, 2048, s{S_SL3}
            """)
        return issue
    def a3_setup(self, PB, T):
        a = self.a
        a(f"""
        v_lshrrev_b32 v{T}, 2, v2
        v_and_b32 v{T+1}, 3, v2
        v_and_b32 v{T+2}, 3, v{T}
        v_bfe_u32 v{T+3}, v{T}, 2, 1
        v_lshl_add_u32 v{T+2}, v{T+3}, 3, v{T+2}
        v_lshrrev_b32 v{T+3}, 3, v{T}
        v_lshl_add_u32 v{T+2}, v{T+3}, 2, v{T+2}
        v_mul_u32_u24 v{T+2}, 1152, v{T+2}
        v_lshl_add_u32 v{PB}, v{T+1}, 4, v{T+2}
        v_lshrrev_b32 v{T+2}, 1, v{T}
        v_mul_u32_u24 v{T+2}, 18, v{T+2}
        v_and_b32 v{T+3}, 1, v{T}
        v_add3_u32 v{T+2}, v{T+2}, v{T+3}, 16
        v_mul_u32_u24 v{T+2}, 1152, v{T+2}
        v_lshl_add_u32 v{PB+1}, v{T+1}, 4, v{T+2}
        s_sub_u32 s30, s{S_P3NB}, 9
        s_mul_i32 s{S_CB}, s30, 192
        s_mov_b32 s{S_ST3}, s{S_LW}
        """)
        self.srd(12, P_WO, 576 * 1152)
    def a3_issue(self, PB, cnt):
        a = self.a; lab = a.newlabel("L_a3i")
        a("s_mov_b32 s35, 0")
        a.label(lab)
        a(f"""
        s_mul_i32 s30, s{S_ST3}, 3072
        s_add_u32 s31, s30, {WO2}
        s_sub_u32 s30, s30, {18*3072}
        s_add_u32 s32, s{S_ST3}, 18
        s_sub_u32 s34, s{S_ST3}, 18
        s_cmp_lt_u32 s{S_ST3}, 18
        s_cselect_b32 s30, s31, s30
        s_cselect_b32 s32, s32, s34
        s_mul_i32 s31, s32, {18*1152}
        v_mov_b32 v{PB+2}, v{PB}
        s_cmp_lt_u32 s32, 32
        s_cbranch_scc1 {lab}m
        s_sub_u32 s32, s32, 32
        s_mul_i32 s31, s32, {8*18*1152}
        v_mov_b32 v{PB+2}, v{PB+1}
        """)
        a.label(lab + "m")
        a(f"s_add_u32 s31, s31, s{S_CB}")
        for nt in range(3):
            a(f"s_add_u32 m0, s30, {nt*1024}\ns_add_u32 s32, s31, {nt*64}\nbuffer_load_dwordx4 v{PB+2}, s[12:15], s32 offen lds")
        a(f"s_add_u32 s{S_ST3}, s{S_ST3}, 4\ns_add_u32 s35, s35, 1\ns_cmp_lt_u32 s35, {cnt}\ns_cbranch_scc1 {lab}")
    def xd(self, T, XD, ACC):
        a = self.a
        a(f"""
        v_lshrrev_b32 v{T+1}, 5, v2
        v_mul_u32_u24 v{T}, 1152, v1
        v_lshl_add_u32 v{T}, v{T+1}, 3, v{T}
        s_mul_i32 s30, s{S_P3T}, {32*1152}
        s_lshl_b32 s31, s{S_P3NB}, 7
        s_add_u32 s30, s30, s31
        v_add_u32 v{T}, s30, v{T}
        v_lshl_add_u32 v{T+1}, v{T+1}, 3, s31
        """)
        for e in range(8):
            a(f"global_load_dwordx2 v[{XD+2*e}:{XD+2*e+1}], v{T}, s[{P_BX}:{P_BX+1}] offset:{e*16}")
            a(f"global_load_dwordx2 v[{XD+16+2*e}:{XD+16+2*e+1}], v{T+1}, s[{P_DSK}:{P_DSK+1}] offset:{e*16}")
        a("s_waitcnt vmcnt(0)")
        for e in range(8):
            d = ACC + 4 * e
            for q in range(2):
                x = XD + 2 * e + q; k = XD + 16 + 2 * e + q
                a(f"""
                v_lshlrev_b32 v{T+2}, 16, v{x}
                v_lshlrev_b32 v{T+3}, 16, v{k}
                v_and_b32 v{x}, 0xffff0000, v{x}
                v_and_b32 v{k}, 0xffff0000, v{k}
                v_fmac_f32 v{d+2*q}, v{T+2}, v{T+3}
                v_fmac_f32 v{d+2*q+1}, v{x}, v{k}
                """)

    def aux_final(self, T, restart):
        a = self.a; lab = a.newlabel("L_af")
        a(f"s_cmp_lg_u32 s{S_HALF}, 0\ns_cbranch_scc1 {lab}")
        self.wait_prog(FIN_OK, T, sleep=2)
        a(f"""
        v_cmp_eq_u32 vcc, s30, v{T+1}
        s_cbranch_vccz {lab}
        s_mov_b32 s{S_HALF}, 1
        s_waitcnt vmcnt(0) lgkmcnt(0)
        s_barrier
        s_barrier
        s_barrier
        """)
        if restart: a(f"s_branch {restart}")
        a.label(lab)

    def p3(self, T):
        a = self.a
        SS, DL = 40, 50
        PB = 4
        a(f"s_mov_b32 s{S_HALF}, 0")
        self.srd(16, P_OUT, OUT_BYTES)
        a(f"s_cmp_ge_u32 s{S_IDX}, 18\ns_cbranch_scc1 L_a3")
        AS, EA, BF, ACC, CW = [8, 144, 0], 14, 16, 112, 155
        AS[2] = 150 - 0
        A3S = [150, 151, 152, 153, 154, 15]
        a(f"""
        s_mul_i32 s34, s{S_P3MB}, 384
        s_add_u32 s34, s34, {F3}
        v_min_u32 v{T}, 17, v2
        v_lshlrev_b32 v{T}, 4, v{T}
        """)
        self.poll("L_pollF3", 20, T, "s34", n=4, sleep=16)
        self.stamp(7)
        AC, AH = 8, 12
        self.swz(AC, T, R6[0] + 16384)
        a(f"""
        v_bfe_u32 v{T+2}, v2, 2, 2
        v_lshl_add_u32 v{T+3}, v{T+1}, 3, v{T+2}
        v_bfe_u32 v{T+4}, v2, 4, 1
        v_bfe_u32 v{T+5}, v2, 1, 1
        v_lshl_add_u32 v{T+4}, v{T+4}, 1, v{T+5}
        v_lshlrev_b32 v{T+5}, 2, v{T+4}
        v_xor_b32 v{T+6}, v{T+3}, v{T+5}
        v_and_b32 v{T+5}, 1, v2
        v_lshlrev_b32 v{T+5}, 3, v{T+5}
        v_lshl_add_u32 v{T+5}, v{T+4}, 9, v{T+5}
        s_add_u32 s30, s48, {R6[0]}
        v_add_u32 v{T+5}, s30, v{T+5}
        v_lshl_add_u32 v{AH}, v{T+6}, 4, v{T+5}
        v_xor_b32 v{AH+1}, 64, v{AH}
        v_mul_u32_u24 v{EA}, 4608, v1
        v_lshl_add_u32 v{EA}, v{T+1}, 4, v{EA}
        v_mov_b32 v{CW}, {W_FULL + 72}
        """)
        sets = [list(range(8, 14)), list(range(144, 150)), A3S]
        for i in range(6):
            a(f"v_subrev_u32 v{sets[1][i]}, {R6[0]-R6[2]}, v{AC+i}\nv_subrev_u32 v{sets[2][i]}, {R6[0]-R6[4]}, v{AC+i}")
        pc = lambda c: 2 * (c + 1) + 1
        a.label("L_b3pf")
        iss = self.b3_loader_setup(PB, T, 0)
        a("s_mov_b32 s40, 0")
        self.wait_prog(pc(2), T, 16); iss(); iss()
        self.wait_prog(pc(4), T, 16); iss()
        self.wait_prog(pc(5), T, 16); iss()
        self.aux_final(T, "L_b3pf")
        a(f"v_lshl_add_u32 v{T}, v2, 2, v{CW}\ns_waitcnt vmcnt(0)\ns_mov_b64 exec, 15\nds_add_u32 v{T}, v{self.ONE}\ns_mov_b64 exec, -1")
        self.stamp(8)
        def rl(st):
            l = []; A = sets[(st % 6) // 2]; off = (st % 2) * BSLOT
            for s in range(4):
                b = BF + (st % 2) * 48 + s * 12
                if s == 3: l.append("s_waitcnt lgkmcnt(8)")
                for hf in range(2): l.append(f"ds_read_b64_tr_b16 v[{b+hf*2}:{b+hf*2+1}], v{A[4+hf]} offset:{off + (s>>1)*2048 + (s&1)*256}")
                for nt in range(2): l.append(f"ds_read_b128 v[{b+4+nt*4}:{b+7+nt*4}], v{A[s]} offset:{off + nt*4096}")
            return l
        def mfl(st):
            l = []
            for s in range(4):
                b = BF + (st % 2) * 48 + s * 12
                for nt in range(2):
                    d = ACC + nt * 16; c = "0" if st == 0 and s == 0 else f"v[{d}:{d+15}]"
                    l.append(f"v_mfma_f32_32x32x16_bf16 v[{d}:{d+15}], v[{b+4+nt*4}:{b+7+nt*4}], v[{b}:{b+3}], {c}")
            return l
        self.gemm_cons("L_g3", 18, T, CW, rl, mfl, 12)
        self.stamp(10)
        self.xd(T, BF, ACC)
        a(f"""
        s_mul_i32 s30, s{S_P3T}, {32*4608}
        s_lshl_b32 s31, s{S_P3NB}, 8
        s_add_u32 s30, s30, s31
        s_add_u32 s30, s30, {576*4}
        """)
        self.stamp(11)
        for e in range(8):
            d = ACC + 4 * e
            a(f"buffer_store_dwordx4 v[{d}:{d+3}], v{EA}, s[16:19], s30 offen offset:{e*32}")
        a("s_branch L_exit")
        a.label("L_b3l")
        a(f"s_cmp_ge_u32 s{S_WAVE}, 8\ns_cbranch_scc1 L_exit\ns_cmp_ge_u32 s{S_IDX}, 18\ns_cbranch_scc1 L_exit")
        self.p3_ids()
        iss2 = self.b3_loader_setup(4, 8, 4)
        a(f"v_mov_b32 v6, {W_FULL + 72}\nv_mov_b32 v7, 1")
        self.gemm_load("L_l3", 4, 18, 6, 3, 6, 7, 8, iss2)
        a("s_branch L_exit")
        a.label("L_p3idle")
        self.aux_final(T, None)
        a("s_branch L_exit")
        a.label("L_a3")
        a(f"s_cmp_ge_u32 s{S_IDX}, 30\ns_cbranch_scc1 L_p3idle")
        a.label("L_a3pf")
        self.a3_setup(PB, T)
        self.wait_prog(pc(2), T, 16); self.a3_issue(PB, 4)
        self.wait_prog(pc(5), T, 16); self.a3_issue(PB, 5)
        a("s_waitcnt vmcnt(0)")
        self.bar(T)
        self.stamp(8)
        self.aux_final(T, "L_a3pf")
        AW, EA, T, FW, ACC, FO = 4, 6, 8, 16, 52, 100
        D = 16
        a(f"""
        s_lshl_b32 s34, s{S_P3T}, 7
        s_add_u32 s34, s34, {F4}
        v_lshlrev_b32 v{T+4}, 2, v1
        v_lshrrev_b32 v{T+1}, 5, v2
        v_bfe_u32 v{T+2}, v2, 2, 2
        v_lshl_add_u32 v{T+3}, v{T+1}, 3, v{T+2}
        v_lshlrev_b32 v{T+3}, 6, v{T+3}
        v_bfe_u32 v{T+2}, v2, 4, 1
        v_lshl_add_u32 v{T+3}, v{T+2}, 5, v{T+3}
        v_and_b32 v{T+2}, 3, v2
        v_lshl_add_u32 v{AW}, v{T+2}, 3, v{T+3}
        v_add_u32 v{AW+1}, {WO2}, v{AW}
        v_mul_u32_u24 v{EA}, 4608, v1
        v_lshl_add_u32 v{EA}, v{T+1}, 4, v{EA}
        v_lshl_add_u32 v{EA+1}, v{T+1}, 9, v{T+4}
        """)
        def rl3(s):
            st, off = (0, s * 3072) if s < 18 else (1, (s - 18) * 3072)
            l = []
            for nt in range(3):
                for hf in range(2):
                    r = FW + (s % 3) * 12 + nt * 4 + hf * 2
                    l.append(f"ds_read_b64_tr_b16 v[{r}:{r+1}], v{AW+st} offset:{off + nt*1024 + hf*256}")
            return l
        for x in rl3(0) + rl3(1): a(x)
        self.poll("L_pollF4", T + 5, T + 4, "s34", sleep=1)
        self.stamp(10); self.stamp(58, True)
        a(f"s_mul_i32 s30, s{S_P3T}, {OS}\ns_add_u32 s30, s30, {OW}")
        def oload(s):
            r = FO + 4 * (s % D)
            if s < 32:
                l = [f"buffer_load_dwordx4 v[{r}:{r+3}], v3, s[4:7], s30 offen offset:{(s%4)*1024} {LDF}"]
                if s % 4 == 3: l.append("s_add_u32 s30, s30, 4096")
                return l
            return [f"buffer_load_dword v{r+j}, v{EA+1}, s[4:7], s30 offen offset:{(s-32)*1024 + j*128} {LDF}" for j in range(4)]
        cnt = [1] * 32 + [4] * 4
        for s in range(D):
            for x in oload(s): a(x)
        for s in range(36):
            out = sum(cnt[s + 1:min(36, s + D)])
            a(f"s_waitcnt vmcnt({out}) lgkmcnt({6 if s < 35 else 0})")
            mf = []
            for nt in range(3):
                d = ACC + nt * 16; w = FW + (s % 3) * 12 + nt * 4; o = FO + 4 * (s % D)
                c = "0" if s == 0 else f"v[{d}:{d+15}]"
                mf.append(f"v_mfma_f32_32x32x16_bf16 v[{d}:{d+15}], v[{w}:{w+3}], v[{o}:{o+3}], {c}")
            ilv(a, mf, rl3(s + 2) if s + 2 < 36 else [])
            if s + D < 36:
                for x in oload(s + D): a(x)
        a(f"""
        s_mul_i32 s30, s{S_P3T}, {32*4608}
        s_sub_u32 s31, s{S_P3NB}, 9
        s_mul_i32 s31, s31, 384
        s_add_u32 s30, s30, s31
        s_nop 8
        """)
        self.stamp(11)
        for e in range(12):
            d = ACC + 4 * e
            a(f"buffer_store_dwordx4 v[{d}:{d+3}], v{EA}, s[16:19], s30 offen offset:{e*32}")

    def finish(self):
        a = self.a
        a.label("L_exit")
        if self.stamp_on:
            self.stamp(12)
            a("s_waitcnt vmcnt(0)")
            self.stamp(13); self.stamp(15, True)
            a(f"""
            s_lshl_b32 s30, s2, 4
            s_add_u32 s30, s30, s{S_WAVE}
            s_lshl_b32 s30, s30, 8
            s_add_u32 s30, s30, {STB}
            v_lshlrev_b32 v3, 2, v2
            buffer_store_dword v{VST}, v3, s[4:7], s30 offen
            """)
        a("s_endpgm")
        self.emit_stubs()
        a.label("L_end")
        a("s_endpgm")

def gen_mega(name, stamp=False, opt=None):
    g = G(stamp, opt)
    g.a.raw(kernel_header(name))
    g.prologue(); g.p1_loader(); g.attention(); g.aux(); g.finish()
    return g.a.text(), kernel_desc(name, NV, 98)

if __name__ == "__main__":
    import sys
    from build import *
    KN = NAME + "_kernel"
    out = sys.argv[1]; stamp = len(sys.argv) > 2 and sys.argv[2] == "1"
    opt = dict((kv.split("=") + ["1"])[:2] for kv in sys.argv[3:])
    if "f1s" in opt: F1STRIDE = int(opt["f1s"])
    if "scld" in opt: LDF = "sc0 sc1"
    if "wt" in opt: WT = opt["wt"].replace("_", " ")
    compose([gen_mega(KN, stamp, opt)], [(KN, 256, 768, LDS_TOTAL)], out)
    assemble(out)
```

```python
from asmlib import *
from lay2 import *
import math, struct
def f32(x): return "0x%08x" % struct.unpack("<I", struct.pack("<f", x))[0]
QSCALE = f32(18 ** -0.5 * math.log2(math.e))
WT = "sc0 sc1"
LDF = ""
SPIN_MAX = 20000
P_AX, P_WQKV, P_WO, P_BX, P_LRE, P_LIM, P_BRE, P_BIM, P_CRE, P_CIM, P_LDT, P_DSK, P_OUT, P_DBG, P_WS = range(64, 94, 2)
S_WAVE, S_XCD, S_IDX, S_MB, S_NB, S_TYPE, S_CHB, S_CHA, S_HALF, S_CH = 3, 20, 21, 22, 23, 24, 25, 26, 27, 29
S_P3MB, S_P3NB, S_HD, S_LW, S_P3T = 37, 38, 39, 51, 57
S_GK, S_K4, S_GV, S_LP = 52, 54, 55, 56
S_HB, S_CB, S_SL3, S_ST3 = 52, 53, 54, 55
NV = 168
VST = 167
BS = 64
SPILL = 0x1200000
LR, LI, CR, CI, LCR, LCI, PWR, PWI, MUR, MUI = range(BS + 32, BS + 42)
C0, CHB = 5, 19968
LDS_W = 8 * CHB
W_LAND, W_PROG, W_UNS, W_BAR, W_DRN = LDS_W, LDS_W + 64, LDS_W + 96, LDS_W + 100, LDS_W + 104
W_F1 = LDS_W + 108
LDS_SCR = LDS_W + 512
B1BASE, BSLOT = 0, 24576
R3 = [100352, 124928, 2048, 26624]
W_OK = 8 * 19968 + 112
FIN_OK, FIN_BAD = 0x40000000, 0x50000000
R3BASE = 2048
WO2 = 100352
QS, VS, OS, HS = 289, 9344, 37 * 1024, 37
def pad_touch():
    pads = [QKP + (q * QS + 288) * 1024 for q in range(16)] + [VT + o * VS + 9216 for o in range(256)]
    pads += [OW + t * OS + 36 * 1024 for t in range(64)] + [HH + (t * HS + 36) * 2048 for t in range(64)] + [EE + 0x80000, FL + 0x80000]
    G = 1 << 20
    seen = {}
    for p in pads: seen.setdefault(p // G, p)
    return sorted(seen.values())
F1STRIDE = 128 * NSUB
W_FULL, W_FREE = 8 * 19968 + 2560, 8 * 19968 + 2816
R6 = [100352, 124928, 2048, 26624, 51200, 75776]

def ilv(a, mf, other):
    n = len(mf); k = 0
    for i, m in enumerate(mf):
        a(m)
        upto = (len(other) * (i + 1) + n - 2) // (n - 1) if i < n - 1 else len(other)
        upto = min(upto, len(other))
        while k < upto: a(other[k]); k += 1

class G:
    def __init__(self, stamp=False, opt=None):
        self.a = Asm(); self.stamp_on = stamp; self.opt = opt or {}; self.stubs = []
    def stamp(self, k, real=False):
        if not self.stamp_on: return
        op = "s_memrealtime" if real else "s_memtime"
        self.a(f"{op} s[94:95]\ns_waitcnt lgkmcnt(0)\nv_writelane_b32 v{VST}, s94, {k}")
    def stampx(self, base, force=False):
        if not self.stamp_on or not (force or self.opt.get("stx")): return
        self.a(f"s_memtime s[94:95]\ns_add_u32 m0, s96, {base}\ns_add_u32 s96, s96, 1\ns_waitcnt lgkmcnt(0)\nv_writelane_b32 v{VST}, s94, m0")
    def srd(self, d, p, n):
        self.a(f"s_mov_b32 s{d}, s{p}\ns_and_b32 s{d+1}, s{p+1}, 0xffff\ns_mov_b32 s{d+2}, {n}\ns_mov_b32 s{d+3}, 0x20000")
    def poll(self, lab, vdst, voff, soff, n=1, want="1", sleep=2):
        a = self.a
        ld = f"buffer_load_dword v{vdst}, v{voff}, s[4:7], {soff} offen sc0 sc1" if n == 1 else f"buffer_load_dwordx4 v[{vdst}:{vdst+3}], v{voff}, s[4:7], {soff} offen sc0 sc1"
        a("s_mov_b32 s33, 0")
        a.label(lab)
        a(ld + "\ns_waitcnt vmcnt(0)")
        if n == 4:
            a(f"v_and_b32 v{vdst}, v{vdst}, v{vdst+1}\nv_and_b32 v{vdst+2}, v{vdst+2}, v{vdst+3}\nv_and_b32 v{vdst}, v{vdst}, v{vdst+2}")
        a(f"""
        v_cmp_ne_u32 vcc, {want}, v{vdst}
        s_add_u32 s33, s33, 1
        s_cmp_gt_u32 s33, {SPIN_MAX}
        s_cbranch_scc1 {lab}_x
        s_cbranch_vccz {lab}_x
        s_sleep {sleep}
        s_branch {lab}
        """)
        a.label(lab + "_x")
    def lds_spin(self, vaddr, vtmp, want, off=0, sleep=0):
        a = self.a; lab = a.newlabel("L_sp")
        a("s_mov_b32 s33, 0")
        a.label(lab)
        a(f"""
        ds_read_b32 v{vtmp}, v{vaddr} offset:{off}
        s_add_u32 s33, s33, 1
        s_waitcnt lgkmcnt(0)
        v_readfirstlane_b32 s32, v{vtmp}
        s_cmp_ge_u32 s32, {want}
        s_cbranch_scc1 {lab}x
        {f"s_sleep {sleep}" if sleep else ""}
        s_cmp_lt_u32 s33, {SPIN_MAX*16}
        s_cbranch_scc1 {lab}
        """)
        a.label(lab + "x")
    def lds_add1(self, vaddr, vone, off=0):
        self.a(f"s_mov_b64 exec, 1\nds_add_u32 v{vaddr}, v{vone} offset:{off}\ns_mov_b64 exec, -1")
    def flag_store(self, sregs, T):
        a = self.a
        a(f"v_mov_b32 v{T}, 0\nv_mov_b32 v{T+1}, 1\ns_mov_b64 exec, 1")
        for r in sregs: a(f"buffer_store_dword v{T+1}, v{T}, s[4:7], s{r} offen {WT}")
        a("s_mov_b64 exec, -1")
    def warm(self, items, T, dst):
        a = self.a
        if self.opt.get("nowarm"): return
        a(f"s_lshl_b32 s30, s{S_LW}, 8\ns_add_u32 s30, s30, s2\ns_lshl_b32 s30, s30, 10\nv_add_u32 v{T}, s30, v3")
        for (p, n) in items:
            self.srd(8, p, n)
            for r in range((n + (1 << 20) - 1) >> 20):
                a(f"s_mov_b32 s30, {r << 20}\nbuffer_load_dwordx4 v[{dst}:{dst+3}], v{T}, s[8:11], s30 offen")
    def make_vx(self, dst, n, sa, sb, sc1, sc0, T):
        a = self.a
        a(f"""
        v_lshrrev_b32 v{T}, 3, v2
        v_and_b32 v{T+1}, 7, v2
        v_lshrrev_b32 v{T+2}, 1, v{T}
        v_xor_b32 v{T+1}, v{T+1}, v{T+2}
        v_lshrrev_b32 v{T+2}, 2, v{T}
        v_and_b32 v{T}, 3, v{T}
        v_mul_u32_u24 v{T+2}, {sa}, v{T+2}
        v_mul_u32_u24 v{T}, {sb}, v{T}
        v_add_u32 v{T}, v{T}, v{T+2}
        v_mul_u32_u24 v{T}, 1152, v{T}
        v_lshl_add_u32 v{dst}, v{T+1}, 4, v{T}
        v_xor_b32 v{T+1}, 4, v{T+1}
        v_lshl_add_u32 v{dst+1}, v{T+1}, 4, v{T}
        s_mul_i32 s34, {sc0}, 1152
        s_sub_u32 s34, s34, 1024
        v_add_u32 v{dst+1}, s34, v{dst+1}
        """)
        if n == 4:
            a(f"s_mul_i32 s34, {sc1}, 1152\ns_sub_u32 s34, s34, 2048\nv_add_u32 v{dst+2}, s34, v{dst}\nv_add_u32 v{dst+3}, s34, v{dst+1}")
    def swz(self, Z, T, add=0):
        a = self.a
        a(f"""
        v_lshrrev_b32 v{T+1}, 5, v2
        v_bfe_u32 v{T+2}, v1, 1, 3
        v_xor_b32 v{T+2}, v{T+2}, v{T+1}
        v_lshlrev_b32 v{T+3}, 7, v1
        v_add_u32 v{T+3}, {add}, v{T+3}
        """)
        for s in range(4): a(f"v_xor_b32 v{T+4}, {2*s}, v{T+2}\nv_lshl_add_u32 v{Z+s}, v{T+4}, 4, v{T+3}")

    def prologue(self):
        a = self.a
        a(f"""
        s_cmp_ge_u32 s2, 256
        s_cbranch_scc1 L_end
        s_load_dwordx16 s[64:79], s[0:1], 0
        s_load_dwordx8 s[80:87], s[0:1], 64
        s_load_dwordx4 s[88:91], s[0:1], 96
        s_load_dwordx2 s[92:93], s[0:1], 112
        v_lshrrev_b32 v1, 6, v0
        v_and_b32 v2, 63, v0
        v_readfirstlane_b32 s{S_WAVE}, v1
        v_lshlrev_b32 v3, 4, v2
        v_and_b32 v1, 31, v0
        v_mov_b32 v144, 0
        s_and_b32 s{S_XCD}, s2, 7
        s_lshr_b32 s{S_IDX}, s2, 3
        """)
        if self.stamp_on: a(f"v_mov_b32 v{VST}, 0\ns_mov_b32 s96, 0")
        self.stamp(0); self.stamp(14, True)
        a(f"""
        s_and_b32 s30, s{S_XCD}, 3
        s_lshl_b32 s30, s30, 2
        s_and_b32 s31, s{S_IDX}, 3
        s_add_u32 s{S_MB}, s30, s31
        s_lshl_b32 s{S_HD}, s{S_XCD}, 2
        s_add_u32 s{S_HD}, s{S_HD}, s31
        s_lshr_b32 s30, s{S_XCD}, 2
        s_lshr_b32 s31, s{S_IDX}, 2
        s_mul_i32 s32, s30, 7
        s_add_u32 s{S_NB}, s32, s31
        s_mul_i32 s32, s30, 9
        s_add_u32 s{S_CHB}, s32, s31
        s_add_u32 s{S_CHA}, s32, 8
        s_cmp_ge_u32 s{S_NB}, 9
        s_cselect_b32 s{S_TYPE}, 1, 0
        s_cmp_ge_u32 s{S_IDX}, 28
        s_cselect_b32 s{S_TYPE}, 2, s{S_TYPE}
        s_and_b32 s{S_LW}, s{S_WAVE}, 3
        s_cmp_lt_u32 s{S_WAVE}, 4
        s_cbranch_scc1 L_aux
        s_cmp_ge_u32 s{S_WAVE}, 8
        s_cbranch_scc1 L_idle
        """)

    def p3_ids(self):
        self.a(f"""
        s_lshl_b32 s{S_P3MB}, s{S_XCD}, 1
        s_and_b32 s30, s{S_IDX}, 1
        s_add_u32 s{S_P3MB}, s{S_P3MB}, s30
        s_lshr_b32 s{S_P3NB}, s{S_IDX}, 1
        s_lshl_b32 s{S_P3T}, s{S_P3MB}, 2
        s_add_u32 s{S_P3T}, s{S_P3T}, s{S_LW}
        """)

    def p1_loader(self):
        a = self.a
        VX, VW, T = 4, 8, 12
        SI, XB, WB, SL = 41, 43, 44, 45
        a(f"""
        s_cmp_eq_u32 s{S_TYPE}, 2
        s_cbranch_scc1 L_p1_fin
        s_mov_b32 s{SI}, 0
        s_lshl_b32 s{SL}, s{S_LW}, 12
        s_cmp_eq_u32 s{S_TYPE}, 0
        s_cselect_b32 s46, 2, 1
        s_cselect_b32 s47, 32, 16
        s_cselect_b32 s48, 16, 4
        s_lshr_b32 s30, s{S_LW}, 1
        s_lshl_b32 s30, s30, 6
        s_and_b32 s31, s{S_LW}, 1
        s_add_u32 s30, s30, s31
        s_lshl_b32 s31, s{S_LW}, 5
        s_cmp_eq_u32 s{S_TYPE}, 0
        s_cselect_b32 s30, s30, s31
        s_lshl_b32 s31, s{S_MB}, 7
        s_add_u32 s30, s30, s31
        s_mul_i32 s{XB}, s30, 1152
        s_mul_i32 s30, s{S_LW}, {16*3456}
        s_lshl_b32 s31, s{S_NB}, 8
        s_add_u32 s{WB}, s30, s31
        """)
        self.make_vx(VX, 4, "8", "s46", "s47", "s48", T)
        a(f"""
        v_lshrrev_b32 v{T}, 4, v2
        v_and_b32 v{T+1}, 15, v2
        v_lshlrev_b32 v{T+2}, 2, v{T}
        v_xor_b32 v{T+1}, v{T+1}, v{T+2}
        v_mul_u32_u24 v{T}, 3456, v{T}
        v_lshl_add_u32 v{VW}, v{T+1}, 4, v{T}
        v_add_u32 v{VW+1}, {4*3456-1024}, v{VW}
        v_add_u32 v{VW+2}, {2*(4*3456-1024)}, v{VW}
        v_add_u32 v{VW+3}, {3*(4*3456-1024)}, v{VW}
        s_waitcnt lgkmcnt(0)
        """)
        self.srd(8, P_AX, 2048 * 1152); self.srd(12, P_WQKV, 576 * 3456)
        a.label("L_p1l_issue")
        a(f"s_mov_b32 m0, s{SL}\ns_add_u32 s{SI}, s{SI}, 1")
        for n in range(4): a(f"buffer_load_dwordx4 v{VX+n}, s[8:11], s{XB} offen offset:{n*1024} lds")
        a(f"s_add_u32 m0, s{SL}, 16384\ns_add_u32 s{XB}, s{XB}, 128")
        for n in range(4): a(f"buffer_load_dwordx4 v{VW+n}, s[12:15], s{WB} offen offset:{n*1024} lds")
        a(f"""
        s_add_u32 s{WB}, s{WB}, {64*3456}
        s_add_u32 s{SL}, s{SL}, 32768
        s_sub_u32 s30, s{SL}, 163840
        s_cmp_ge_u32 s{SL}, 163840
        s_cselect_b32 s{SL}, s30, s{SL}
        s_cmp_lt_u32 s{SI}, 3
        s_cbranch_scc1 L_p1l_issue
        s_waitcnt vmcnt(16)
        s_barrier
        s_cmp_lt_u32 s{SI}, 9
        s_cbranch_scc1 L_p1l_issue
        s_waitcnt vmcnt(8)
        s_barrier
        s_waitcnt vmcnt(0)
        s_barrier
        s_branch L_p1_fin
        """)
        a.label("L_idle")
        a(f"""
        s_cmp_lg_u32 s{S_WAVE}, 11
        s_cbranch_scc1 L_nopf
        s_getpc_b64 s[30:31]
        """)
        a.label("L_pc")
        a(f"""
        s_lshl_b32 s32, s{S_IDX}, 10
        s_cmp_ge_u32 s32, L_end-L_pc-1024
        s_cbranch_scc1 L_nopf
        s_add_u32 s30, s30, s32
        s_addc_u32 s31, s31, 0
        v_mov_b32 v5, s31
        v_add_co_u32 v4, vcc, s30, v3
        s_nop 1
        v_addc_co_u32 v5, vcc, 0, v5, vcc
        global_load_dwordx4 v[140:143], v[4:5], off
        """)
        a.label("L_nopf")
        a("s_waitcnt lgkmcnt(0)")
        self.warm([(P_AX, 2048 * 1152), (P_WQKV, 576 * 3456)], 6, 140)
        self.srd(4, P_WS, WS_BYTES)
        a(f"""
        v_mov_b32 v8, 0
        v_mov_b32 v9, 0
        v_mov_b32 v10, 0
        v_mov_b32 v11, 0
        s_lshl_b32 s30, s2, 4
        s_add_u32 s30, s30, s{S_WAVE}
        s_cmp_lg_u32 s30, 9
        s_cbranch_scc1 L_idle_nz
        s_mov_b32 s30, {FL}
        """)
        for i in range(FLBYTES // 1024):
            a(f"buffer_store_dwordx4 v[8:11], v3, s[4:7], s30 offen offset:{(i%4)*1024} {WT}")
            if i % 4 == 3: a("s_add_u32 s30, s30, 4096")
        a(f"""
        s_waitcnt vmcnt(0)
        v_mov_b32 v12, 1
        s_mov_b64 exec, 1
        global_store_dword v8, v12, s[{P_DBG}:{P_DBG+1}] {WT}
        s_mov_b64 exec, -1
        """)
        a.label("L_idle_nz")
        if not self.opt.get("notlb"):
            a(f"s_cmp_lg_u32 s{S_WAVE}, 10\ns_cbranch_scc1 L_notlb")
            pt = pad_touch()
            for i, p in enumerate(pt): a(f"s_mov_b32 s30, {p}\nv_writelane_b32 v9, s30, {i}")
            a(f"s_mov_b64 exec, {(1 << len(pt)) - 1}\nbuffer_load_dword v140, v9, s[4:7], 0 offen\ns_mov_b64 exec, 0x1ff\nv_lshlrev_b32 v9, 20, v2")
            a(f"global_load_dword v141, v9, s[{P_OUT}:{P_OUT+1}]\ns_mov_b64 exec, 7\nglobal_load_dword v141, v9, s[{P_BX}:{P_BX+1}]\ns_mov_b64 exec, 1")
            for p in (P_WO, P_LRE, P_LIM, P_BRE, P_BIM, P_CRE, P_CIM, P_LDT, P_DSK): a(f"global_load_dword v141, v8, s[{p}:{p+1}]")
            a("s_mov_b64 exec, -1")
            a.label("L_notlb")
        a(f"v_mov_b32 v13, 0\ns_cmp_eq_u32 s{S_TYPE}, 2\ns_cbranch_scc1 L_idle_sp")
        a("s_barrier\ns_barrier\ns_barrier")
        self.warm([(P_BX, 2048 * 1152), (P_BRE, 576 * 1152), (P_BIM, 576 * 1152)], 6, 140)
        a(f"s_barrier\ns_barrier\ns_barrier\ns_barrier\nglobal_load_dword v13, v8, s[{P_DBG}:{P_DBG+1}]\ns_barrier\ns_barrier\ns_waitcnt vmcnt(0)")
        a.label("L_idle_sp")
        a(f"""
        s_cmp_lg_u32 s{S_WAVE}, 8
        s_cbranch_scc1 L_p1_fin
        v_lshlrev_b32 v9, 2, v2
        v_add_u32 v9, {LDS_W}, v9
        v_cmp_eq_u32 vcc, 8, v2
        v_mov_b32 v10, 8
        v_mov_b32 v144, v13
        v_cndmask_b32 v10, v8, v10, vcc
        ds_write_b32 v9, v10
        ds_write_b32 v9, v8 offset:2560
        ds_write_b32 v9, v8 offset:2816
        """)

    def dbg_check(self, T):
        a = self.a
        a(f"s_cmp_eq_u32 s{S_TYPE}, 2\ns_cselect_b32 s30, 5, 8\ns_cmp_lg_u32 s{S_WAVE}, s30\ns_cbranch_scc1 L_dbg_x\ns_mov_b32 s33, 0\nv_mov_b32 v{T}, 0")
        a.label("L_dbg_chk")
        a(f"""
        s_waitcnt vmcnt(0)
        v_readfirstlane_b32 s30, v144
        s_cmp_eq_u32 s30, 1
        s_cbranch_scc1 L_dbg_ok
        s_add_u32 s33, s33, 1
        s_cmp_gt_u32 s33, {SPIN_MAX}
        s_cbranch_scc1 L_dbg_ok
        s_sleep 8
        global_load_dword v144, v{T}, s[{P_DBG}:{P_DBG+1}] sc0 sc1
        s_branch L_dbg_chk
        """)
        a.label("L_dbg_ok")
        a(f"v_mov_b32 v{T}, {W_OK}\nv_mov_b32 v{T+1}, 1\nds_write_b32 v{T}, v{T+1}")
        a.label("L_dbg_x")
    def wait_ok(self, T):
        self.a(f"v_mov_b32 v{T}, {W_OK}")
        self.lds_spin(T, T + 1, 1, sleep=2)

    def kv_setup(self, T, VV, first):
        a = self.a
        a(f"""
        s_lshr_b32 s30, s{S_HD}, 1
        s_mul_i32 s30, s30, 9
        s_and_b32 s31, s{S_HD}, 1
        s_lshl_b32 s31, s31, 2
        s_add_u32 s36, s30, s31                  ; f
        s_add_u32 s30, s36, s{S_LW}
        s_lshl_b32 s30, s30, 10
        s_mul_i32 s31, {first}, {2*QS*1024}
        s_add_u32 s30, s30, s31
        s_add_u32 s{S_GK}, s30, {QKP + 144*1024}
        s_cmp_eq_u32 s{S_LW}, 0
        s_cselect_b32 s{S_K4}, 0, {(QS-5)*1024}
        s_add_u32 s{S_K4}, s{S_K4}, 4096
        s_mul_i32 s30, s{S_HD}, 288
        s_mul_i32 s31, s{S_LW}, {3*VS}
        s_add_u32 s30, s30, s31
        s_mul_i32 s31, {first}, {32*VS}
        s_add_u32 s30, s30, s31
        s_add_u32 s{S_GV}, s30, {VT}
        v_mul_u32_u24 v{T}, 27, v2
        v_lshrrev_b32 v{T}, 9, v{T}
        v_mul_u32_u24 v{VV}, 19, v{T}
        v_sub_u32 v{VV}, v2, v{VV}
        v_cmp_gt_u32 vcc, 18, v{VV}
        v_cmp_gt_u32 s[58:59], 3, v{T}
        v_cmp_gt_u32 s[60:61], 2, v{T}
        v_mul_u32_u24 v{T}, {VS}, v{T}
        v_lshl_add_u32 v{VV}, v{VV}, 4, v{T}
        s_and_b64 s[58:59], s[58:59], vcc
        s_and_b64 s[60:61], s[60:61], vcc
        s_cmp_eq_u32 s{S_LW}, 2
        s_cselect_b64 s[60:61], s[60:61], s[58:59]
        s_add_u32 s30, {first}, {C0}
        s_and_b32 s30, s30, 7
        s_mul_i32 s{S_LP}, s30, {CHB}
        v_mul_u32_u24 v{VV+1}, {VROW}, v1
        v_add_u32 v{VV+1}, {10240 + 288}, v{VV+1}
        """)
    def k_part(self):
        a = self.a; l1 = a.newlabel("L_kd")
        a(f"""
        s_lshl_b32 s31, s{S_LW}, 10
        s_add_u32 s31, s31, s{S_LP}
        s_mov_b32 m0, s31
        s_add_u32 s30, s{S_GK}, s{S_K4}
        buffer_load_dwordx4 v3, s[4:7], s{S_GK} offen {LDF} lds
        s_add_u32 m0, s31, 4096
        s_cmp_ge_u32 s{S_LW}, 2
        buffer_load_dwordx4 v3, s[4:7], s30 offen {LDF} lds
        s_cbranch_scc1 {l1}
        s_add_u32 m0, s31, 8192
        s_add_u32 s30, s{S_GK}, {(QS+3)*1024}
        buffer_load_dwordx4 v3, s[4:7], s30 offen {LDF} lds
        """)
        a.label(l1)
    def v_part(self, VV, ONES, T):
        a = self.a; l2 = a.newlabel("L_vd")
        a(f"""
        s_mul_i32 s31, s{S_LW}, {3*VROW}
        s_add_u32 s31, s31, s{S_LP}
        s_add_u32 m0, s31, 10240
        s_mov_b64 exec, s[58:59]
        buffer_load_dwordx4 v{VV}, s[4:7], s{S_GV} offen {LDF} lds
        s_add_u32 m0, s31, {10240 + 12*VROW}
        s_add_u32 s30, s{S_GV}, {12*VS}
        buffer_load_dwordx4 v{VV}, s[4:7], s30 offen {LDF} lds
        s_cmp_eq_u32 s{S_LW}, 3
        s_cbranch_scc1 {l2}
        s_add_u32 m0, s31, {10240 + 24*VROW}
        s_add_u32 s30, s{S_GV}, {24*VS}
        s_mov_b64 exec, s[60:61]
        buffer_load_dwordx4 v{VV}, s[4:7], s30 offen {LDF} lds
        """)
        a.label(l2)
        a(f"s_mov_b64 exec, -1\nv_add_u32 v{T}, s{S_LP}, v{VV+1}\nds_write_b128 v{T}, v[{ONES}:{ONES+3}]")
    def kv_next(self):
        self.a(f"""
        s_add_u32 s{S_GK}, s{S_GK}, {2*QS*1024}
        s_add_u32 s{S_GV}, s{S_GV}, {32*VS}
        s_add_u32 s{S_LP}, s{S_LP}, {CHB}
        s_cmp_eq_u32 s{S_LP}, {8*CHB}
        s_cselect_b32 s{S_LP}, 0, s{S_LP}
        """)
    def kv_half(self, grp, VV, ONES, T):
        a = self.a; l = a.newlabel("L_kh")
        a(f"s_cmp_lg_u32 s{grp}, 0\ns_cbranch_scc1 {l}v")
        self.k_part()
        a(f"s_branch {l}e")
        a.label(l + "v")
        self.v_part(VV, ONES, T)
        a.label(l + "e")
        self.kv_next()
    def poll_f1(self, lab, T, poller=False):
        a = self.a
        a(f"v_mov_b32 v{T+2}, {W_F1}")
        if poller:
            a(f"s_cmp_lg_u32 s{S_WAVE}, 4\ns_cbranch_scc1 {lab}_w")
            self.wait_ok(T)
            a(f"s_mul_i32 s34, s{S_HD}, {F1STRIDE}\ns_add_u32 s34, s34, {F1}\nv_and_b32 v{T}, {NSUB-1}, v2\nv_lshlrev_b32 v{T}, 7, v{T}")
            self.poll(lab, T + 1, T, "s34", want=str(864 // NSUB), sleep=int(self.opt.get("f1sleep", 4)))
            a(f"v_mov_b32 v{T}, 1\nds_write_b32 v{T+2}, v{T}")
            a.label(lab + "_w")
        self.lds_spin(T + 2, T + 1, 1, sleep=1)

    def wait_prog(self, val, T, sleep=4):
        a = self.a; lab = a.newlabel("L_pg")
        a(f"v_and_b32 v{T}, 7, v2\nv_lshlrev_b32 v{T}, 2, v{T}\nv_add_u32 v{T}, {W_PROG}, v{T}\ns_mov_b32 s33, 0\ns_mov_b32 s30, {FIN_BAD}")
        a.label(lab)
        a(f"""
        ds_read_b32 v{T+1}, v{T}
        s_add_u32 s33, s33, 1
        s_waitcnt lgkmcnt(0)
        v_cmp_gt_u32 vcc, {val}, v{T+1}
        s_cmp_gt_u32 s33, {SPIN_MAX*8}
        s_cbranch_scc1 {lab}x
        s_cbranch_vccz {lab}x
        s_sleep {sleep}
        s_branch {lab}
        """)
        a.label(lab + "x")
    def f4(self, n, T):
        a = self.a; lab = a.newlabel("L_f4")
        a(f"s_cmp_eq_u32 s50, 0\ns_cbranch_scc1 {lab}\ns_waitcnt vmcnt({n})")
        self.flag_store([36], T)
        a.label(lab)

    def attention(self):
        a = self.a
        QM, QL, IDX, AK, AV, AL, T0, T1 = 4, 8, 10, 11, 12, 13, 14, 15
        KM, KL, VF, O, S0, S1 = 16, 24, 28, 44, 60, 92
        LK, LV, LL, CA, CK, PW, VV, PC, PP, PV = 124, 125, 126, 127, 128, 129, 130, 132, 133, 134
        TQ, PAR, CH, IT, DK, GRP, FB, MC, MB_, MI, PM = 41, 42, 43, 44, 45, 46, 47, 48, 49, 50, 40
        HD = S_HD
        PR = {}
        a.label("L_p1_fin")
        a("s_waitcnt lgkmcnt(0)")
        self.srd(4, P_WS, WS_BYTES)
        a(f"s_lshr_b32 s{GRP}, s{S_WAVE}, 3")
        self.kv_setup(T0, VV, "0")
        a(f"""
        s_lshr_b32 s{TQ}, s{S_IDX}, 2
        s_lshl_b32 s{TQ}, s{TQ}, 3
        s_add_u32 s{TQ}, s{TQ}, s{S_WAVE}
        s_sub_u32 s{TQ}, s{TQ}, 4
        s_and_b32 s{PAR}, s{HD}, 1
        v_lshrrev_b32 v{T1}, 5, v2
        v_lshlrev_b32 v{T0}, 3, v1
        v_lshl_add_u32 v{LK}, v{T1}, 11, v{T0}
        s_lshl_b32 s30, s{PAR}, 10
        v_add_u32 v{LK}, s30, v{LK}
        s_mul_i32 s31, s{PAR}, 4092
        s_sub_u32 s31, 4096, s31
        v_lshl_add_u32 v{LL}, v2, 3, s31
        v_add_u32 v{AL}, s31, v{T0}              ; Q left voffset
        s_lshr_b32 s32, s{TQ}, 2
        s_mul_i32 s32, s32, {QS}
        s_add_u32 s32, s32, s36
        s_lshl_b32 s32, s32, 10
        s_lshl_b32 s30, s{S_LW}, 8
        s_add_u32 s32, s32, s30
        s_add_u32 s35, s32, {QKP}                ; Q soffset
        v_min_u32 v{AV}, 18, v1
        v_mul_u32_u24 v{T1}, {VROW}, v{T1}
        v_lshl_add_u32 v{LV}, v{AV}, 4, v{T1}
        v_add_u32 v{LV}, 10240, v{LV}
        v_cmp_lt_u32 vcc, 18, v1
        v_cmp_ne_u32 s[30:31], 28, v1
        s_and_b64 vcc, vcc, s[30:31]
        v_mov_b32 v{T1}, 0x100000
        v_mov_b32 v{IDX}, 0xdddd
        v_cndmask_b32 v{LV}, v{LV}, v{T1}, vcc
        v_mov_b32 v{KL}, 0x3f803f80
        v_mov_b32 v{KL+1}, 0x3f803f80
        v_mov_b32 v{KL+2}, 0x3f803f80
        v_mov_b32 v{KL+3}, 0x3f803f80
        s_lshl_b32 s30, s{S_WAVE}, 2
        s_add_u32 s30, s30, {W_PROG - 16}
        v_mov_b32 v{PW}, s30
        s_xor_b32 s30, s30, 16
        v_mov_b32 v{PP}, s30
        s_mov_b32 s62, 0
        s_mov_b32 s63, -1
        s_mov_b32 s{FB}, 0
        s_mov_b32 s{MC}, 1
        s_mov_b32 s{MB_}, {C0*CHB}
        s_cmp_eq_u32 s{GRP}, 0
        s_cbranch_scc1 L_att_b
        """)
        run_loader = self.b1_loader()
        a.label("L_att_b")
        a("s_barrier")
        self.dbg_check(S1)
        a(f"s_cmp_eq_u32 s{GRP}, 0\ns_cbranch_scc1 L_att_c")
        if not self.opt.get("nob"): run_loader()
        a.label("L_att_c")
        a(f"s_xor_b32 s{PM}, s{GRP}, 1")
        self.stamp(4)
        self.poll_f1("L_pollF1a", S0, True)
        self.stamp(5); self.stamp(55, True)
        a(f"""
        buffer_load_dwordx2 v[{QM}:{QM+1}], v{LK}, s[4:7], s35 offen {LDF}
        buffer_load_dwordx2 v[{QM+2}:{QM+3}], v{LK}, s[4:7], s35 offen offset:1024 {LDF}
        buffer_load_dword v{QL}, v{AL}, s[4:7], s35 offen {LDF}
        """)
        a(f"v_mov_b32 v{CA}, {W_LAND}\nv_mov_b32 v{T1}, 2\ns_setprio 2\ns_cmp_lg_u32 s{GRP}, 0\ns_cbranch_scc1 L_kvd")
        self.k_part(); self.v_part(VV, KL, T0); self.kv_next()
        a("s_waitcnt vmcnt(0)")
        self.lds_add1(CA, T1)
        a("s_mov_b32 s35, 0")
        a.label("L_kv12")
        self.k_part(); self.v_part(VV, KL, T0); self.kv_next()
        a("s_add_u32 s35, s35, 1\ns_cmp_lt_u32 s35, 2\ns_cbranch_scc1 L_kv12\ns_branch L_kve")
        a.label("L_kvd")
        a("s_waitcnt vmcnt(0)")
        a.label("L_kve")
        self.lds_spin(CA, T0, 8)
        self.stamp(6)
        a.label("L_maxpass")
        MX = T1
        a(f"""
        v_add_u32 v{AK}, s{MB_}, v{LK}
        v_add_u32 v{AL}, s{MB_}, v{LL}
        v_mov_b32 v{QL+1}, 0
        v_mov_b32 v{MX}, 0xff800000
        s_mov_b32 s{MI}, 0
        """)
        def rdKm(t, p):
            off = (p // 2) * 5120 + (2 * (p % 2) + t) * 256
            a(f"ds_read_b64 v[{KM+4*t}:{KM+4*t+1}], v{AK} offset:{off}\nds_read_b64 v[{KM+4*t+2}:{KM+4*t+3}], v{AK} offset:{off+1024}")
        def rdKl(p): a(f"ds_read_b32 v{KL+2*(p%2)}, v{AL} offset:{(p//2)*5120 + (p%2)*512}")
        def rdV(n, p): a(f"ds_read_b128 v[{VF+4*n}:{VF+4*n+3}], v{AV} offset:{(p*8+n*2)*VROW}")
        def b2(N, p): a(f"v_mfma_f32_32x32x4_2b_bf16 v[{N}:{N+31}], v[{KL+2*(p%2)}:{KL+2*(p%2)+1}], v[{QL}:{QL+1}], 0")
        def mainm(N, t): a(f"v_mfma_f32_32x32x16_bf16 v[{N+16*t}:{N+16*t+15}], v[{KM+4*t}:{KM+4*t+3}], v[{QM}:{QM+3}], v[{N+16*t}:{N+16*t+15}]")
        def smf(n, S): a(f"v_smfmac_f32_32x32x32_bf16 v[{O}:{O+15}], v[{VF+4*n}:{VF+4*n+3}], v[{S+8*n}:{S+8*n+7}], v{IDX}")
        def E(S, lo, hi):
            for r in range(lo, hi): a(f"v_exp_f32 v{S+r}, v{S+r}")
        a.label("L_maxloop")
        rdKl(0); rdKm(0, 0); rdKm(1, 0)
        a(f"""
        s_and_b32 s30, s{MI}, 1
        s_mul_i32 s30, s30, 4096
        s_add_u32 s30, s30, 512
        s_and_b32 s31, s{MI}, 3
        s_cmp_eq_u32 s31, 3
        s_cselect_b32 s30, {CHB-5632}, s30
        s_add_u32 s{MI}, s{MI}, 1
        s_waitcnt lgkmcnt(0)
        """)
        b2(S0, 0)
        a(f"v_add_u32 v{AK}, s30, v{AK}\nv_add_u32 v{AL}, s30, v{AL}")
        for i in range(16): a(f"v_mov_b32 v{O+i}, 0")
        mainm(S0, 0); mainm(S0, 1)
        for i in range(8): a(f"v_mov_b32 v{S1+24+i}, 0")
        for i in range(4): a(f"v_mov_b32 v{VF+12+i}, 0")
        for i in range(16): a(f"v_max3_f32 v{MX}, v{S0+2*i}, v{S0+2*i+1}, v{MX}")
        a(f"""
        s_cmp_lt_u32 s{MI}, s{MC}
        s_cbranch_scc1 L_maxloop
        v_add_u32 v{AK}, {C0*CHB}, v{LK}
        v_add_u32 v{AL}, {C0*CHB}, v{LL}
        v_add_u32 v{AV}, {C0*CHB}, v{LV}
        v_mov_b32 v{T0}, v{MX}
        """)
        rdKl(0); rdKm(0, 0); rdKm(1, 0); rdKl(1)
        rdV(0, 0); rdV(1, 0); rdV(2, 0)
        a(f"""
        v_permlane32_swap_b32 v{T0}, v{MX}
        s_mov_b32 s{CH}, {C0}
        s_mov_b32 s{IT}, 0
        v_max_f32 v{MX}, v{T0}, v{MX}
        v_cvt_pk_bf16_f32 v{T0}, -v{MX}, 0
        v_lshlrev_b32 v{T0}, 16, v{T0}
        v_sub_f32 v{T0}, -v{MX}, v{T0}
        v_cvt_pk_bf16_f32 v{QL+1}, -v{MX}, v{T0}
        v_mov_b32 v{CA}, {W_LAND}
        v_mov_b32 v{PC}, 0
        v_mov_b32 v{PV}, 0
        s_waitcnt lgkmcnt(3)
        """)
        b2(S0, 0)
        a("s_nop 15\ns_nop 1")
        mainm(S0, 0); mainm(S0, 1)
        rdKm(0, 1); rdKm(1, 1)
        a("s_nop 5\ns_waitcnt lgkmcnt(0)")
        self.stamp(7)
        a.raw(".p2align 6")
        a.label("L_loop")
        for i in range(4):
            C, N = (S0, S1) if i % 2 == 0 else (S1, S0)
            if i == 0:
                a(f"""
                s_add_u32 s30, s{CH}, 1
                s_and_b32 s30, s30, 7
                s_sub_u32 s31, s30, s{CH}
                s_mul_i32 s{DK}, s31, {CHB}
                s_mov_b32 s{CH}, s30
                """)
            E(C, 0, 2)
            a("s_waitcnt lgkmcnt(5)")
            smf(3, N); rdV(3, i)
            extra = 0
            if i == 1:
                a(f"s_bitcmp1_b32 s{PM}, s{IT}\ns_cbranch_scc1 L_prio")
                a.label("L_prioret")
                a(f"ds_read_b32 v{CK}, v{CA} offset:4"); extra = 1
            if i % 2 == 1:
                a(f"v_add_u32 v{PC}, 1, v{PC}\nds_read_b32 v{PV}, v{PP}\nds_write_b32 v{PW}, v{PC}"); extra += 2
            if i % 2 == 0 and self.opt.get("ladder") != "off":
                a(f"v_cmp_gt_u32 vcc, v{PC}, v{PV}\ns_setprio 2\ns_cbranch_vccz L_pp{i}\ns_setprio 1")
                a.label(f"L_pp{i}")
            if i == 3: a(f"v_add_u32 v{AV}, s{DK}, v{AV}")
            if i == 2:
                a(f"""
                v_readfirstlane_b32 s30, v{CK}
                v_add_u32 v{AK}, s{DK}, v{AK}
                v_add_u32 v{AL}, s{DK}, v{AL}
                v_add_u32 v{CA}, 4, v{CA}
                s_cmp_lt_u32 s30, 8
                s_cbranch_scc1 L_wait
                """)
                a.label("L_waitret")
            E(C, 2, 6)
            b2(N, i + 1)
            rdKl((i + 2) % 4)
            E(C, 6, 12)
            smf(0, C); rdV(0, (i + 1) % 4)
            E(C, 12, 18)
            smf(1, C); rdV(1, (i + 1) % 4)
            E(C, 18, 22)
            a(f"s_waitcnt lgkmcnt({4 + extra})")
            mainm(N, 0); rdKm(0, (i + 2) % 4)
            E(C, 22, 26)
            smf(2, C); rdV(2, (i + 1) % 4)
            E(C, 26, 30)
            mainm(N, 1); rdKm(1, (i + 2) % 4)
            if i == 3: a(f"s_add_u32 s{IT}, s{IT}, 1\ns_cmp_lt_u32 s{IT}, 8")
            E(C, 30, 32)
        a("s_cbranch_scc1 L_loop")
        a("s_waitcnt lgkmcnt(0)\ns_nop 0")
        smf(3, S1)
        self.stamp(8); self.stamp(56, True)
        L, SUM = T0, T1
        a(f"s_nop 11\nv_cndmask_b32 v{L}, v{O+10}, v{O+12}, s[62:63]\nv_add_f32 v{SUM}, |v{O}|, |v{O+1}|")
        for r in range(2, 10): a(f"v_add_f32 v{SUM}, v{SUM}, |v{O+r}|")
        a(f"""
        s_mov_b32 s30, 0x5d800000
        s_mov_b32 s31, 0x7f7fffff
        v_cmp_nge_f32 vcc, s30, v{L}
        v_cmp_nge_f32 s[34:35], s31, v{SUM}
        s_or_b64 vcc, vcc, s[34:35]
        s_cmp_lg_u32 s{FB}, 0
        s_cbranch_scc1 L_fin
        s_cmp_lg_u64 vcc, 0
        s_cbranch_scc1 L_unsafe
        """)
        a.label("L_fin")
        a(f"v_rcp_f32 v{L}, v{L}\ns_nop 0")
        for r in range(10): a(f"v_mul_f32 v{O+r}, v{O+r}, v{L}")
        for r in range(5): a(f"v_cvt_pk_bf16_f32 v{S0+r}, v{O+2*r}, v{O+2*r+1}")
        a(f"""
        s_mul_i32 s30, s{TQ}, {OS}
        s_add_u32 s30, s30, {OW}
        s_lshl_b32 s31, s{HD}, 10
        s_add_u32 s31, s31, s30
        buffer_store_dwordx4 v[{S0}:{S0+3}], v3, s[4:7], s31 offen {WT}
        s_lshl_b32 s31, s{HD}, 7
        s_add_u32 s31, s31, s30
        s_add_u32 s31, s31, 32768
        v_lshlrev_b32 v{T0}, 2, v2
        s_mov_b32 exec_hi, 0
        buffer_store_dword v{S0+4}, v{T0}, s[4:7], s31 offen {WT}
        s_mov_b32 exec_hi, -1
        v_mov_b32 v{T1}, {FIN_OK}
        ds_write_b32 v{PW}, v{T1}
        s_lshl_b32 s36, s{TQ}, 5
        s_add_u32 s36, s36, s{HD}
        s_lshl_b32 s36, s36, 2
        s_add_u32 s36, s36, {F4}
        s_waitcnt vmcnt(0)
        """)
        self.flag_store([36], AK)
        self.stamp(9); self.stamp(57, True)
        a(f"s_cmp_lg_u32 s{FB}, 0\ns_cbranch_scc1 L_redo_end")
        a.label("L_att_end")
        self.wait_prog(FIN_OK, AK)
        a(f"v_cmp_eq_u32 vcc, s30, v{AK+1}\ns_cbranch_vccz L_b3l\ns_branch L_redo")
        a.label("L_prio")
        a(f"s_cmp_lg_u32 s{IT}, 0\ns_cbranch_scc1 L_prio1")
        a(f"""
        v_lshl_add_u32 v{T0}, v2, 2, v{CA}
        v_mov_b32 v{T1}, 2
        s_waitcnt vmcnt(0)
        s_mov_b64 exec, 6
        ds_add_u32 v{T0}, v{T1}
        s_mov_b64 exec, -1
        s_waitcnt lgkmcnt(0)
        s_branch L_prioret
        """)
        a.label("L_prio1")
        for k, p in PR.items():
            a(f"s_setprio {p}\ns_cmp_eq_u32 s{IT}, {k}\ns_cbranch_scc1 L_prioret")
        a("s_branch L_prioret")
        a.label("L_wait")
        self.lds_spin(CA, CK, 8)
        a("s_branch L_waitret")
        a.label("L_unsafe")
        a(f"s_mov_b32 s{FB}, 1\nv_mov_b32 v{T1}, {FIN_BAD}\nds_write_b32 v{PW}, v{T1}")
        a.label("L_redo")
        a("s_waitcnt lgkmcnt(0)\ns_barrier")
        self.kv_setup(T0, VV, "0")
        for i in range(4): a(f"v_mov_b32 v{S0+i}, 0x3f803f80")
        a("s_mov_b32 s35, 0")
        a.label("L_redo1")
        self.kv_half(GRP, VV, S0, T0)
        a(f"""
        s_add_u32 s35, s35, 1
        s_cmp_lt_u32 s35, 8
        s_cbranch_scc1 L_redo1
        s_waitcnt vmcnt(0) lgkmcnt(0)
        s_barrier
        s_cmp_eq_u32 s{FB}, 0
        s_cbranch_scc1 L_redo_end
        s_mov_b32 s{MC}, 32
        s_mov_b32 s{MB_}, 0
        s_mov_b32 s{PM}, 0
        v_mov_b32 v{PW}, {LDS_W + 128}
        s_branch L_maxpass
        """)
        a.label("L_redo_end")
        a("s_waitcnt lgkmcnt(0)\ns_barrier\ns_branch L_b3l")

    WA, ONE, BC = 156, 157, 47
    def arrive(self, T):
        a = self.a
        a(f"s_add_u32 s{self.BC}, s{self.BC}, 4")
        self.lds_add1(self.WA, self.ONE)
    def bar(self, T):
        self.arrive(T)
        self.lds_spin(self.WA, T, f"s{self.BC}")
    def gemm_cons(self, name, N, T, CW, rl, mfl, nfree):
        a = self.a
        self.lds_spin(CW, T, 4)
        a(f"ds_read_b32 v{T}, v{CW} offset:4")
        for x in rl(0): a(x)
        for s in range(N - 1):
            mf = mfl(s); p = f"{name}_{s}"
            a("s_waitcnt lgkmcnt(0)")
            a(f"v_readfirstlane_b32 s32, v{T}")
            a(mf[0])
            self.stampx(16)
            if s < nfree: self.lds_add1(CW, self.ONE, 256 + 4 * s)
            a(f"s_cmp_lt_u32 s32, 4\ns_cbranch_scc1 {p}s")
            a.label(p + "r")
            self.stubs.append((p, CW, T, 4 * (s + 1)))
            oth = rl(s + 1) + ([f"ds_read_b32 v{T}, v{CW} offset:{4*(s+2)}"] if s + 2 < N else [])
            ilv(a, mf[1:8], oth)
        a("s_waitcnt lgkmcnt(0)")
        if N - 1 < nfree: self.lds_add1(CW, self.ONE, 256 + 4 * (N - 1))
        for m in mfl(N - 1): a(m)
    def emit_stubs(self):
        a = self.a
        for p, CW, T, off in self.stubs:
            a.label(p + "s")
            self.lds_spin(CW, T, 4, off)
            a(f"s_branch {p}r")
    def gemm_load(self, name, first, N, nslot, lag, CW, ONE, T, issue):
        a = self.a
        a(f"s_mov_b32 s40, {first}\nv_add_u32 v{CW}, {4*(first-lag)}, v{CW}")
        a.label(name)
        a(f"s_cmp_lt_u32 s40, {first + lag}\ns_cbranch_scc1 {name}n\ns_waitcnt vmcnt({6*(lag-1)})")
        self.lds_add1(CW, ONE)
        a.label(name + "n")
        a(f"s_cmp_lt_u32 s40, {nslot}\ns_cbranch_scc1 {name}i")
        self.lds_spin(CW, T, 4, 256 - 4 * (nslot - lag))
        a.label(name + "i")
        issue()
        a(f"s_add_u32 s40, s40, 1\nv_add_u32 v{CW}, 4, v{CW}\ns_cmp_lt_u32 s40, {N}\ns_cbranch_scc1 {name}")
        for j in range(lag):
            a(f"s_waitcnt vmcnt({6*(lag-1-j)})")
            self.lds_add1(CW, ONE, 4 * j)
    def b1_loader(self):
        a = self.a
        VX, VB, CW, ONE, T = 60, 64, 66, 67, 68
        XB, WB, SL, NS = 16, 17, 18, 19
        self.make_vx(VX, 4, "16", "1", "8", "4", T)
        self.make_vx(VB, 2, "4", "1", "16", "8", T)
        self.srd(8, P_BX, 2048 * 1152)
        a(f"""
        s_cmp_lt_u32 s{S_LW}, 2
        s_cselect_b32 s12, s{P_BRE}, s{P_BIM}
        s_cselect_b32 s13, s{P_BRE+1}, s{P_BIM+1}
        s_and_b32 s13, s13, 0xffff
        s_mov_b32 s14, {576*1152}
        s_mov_b32 s15, 0x20000
        s_lshl_b32 s30, s{S_MB}, 7
        s_lshl_b32 s31, s{S_LW}, 5
        s_add_u32 s30, s30, s31
        s_mul_i32 s{XB}, s30, 1152
        s_cmp_eq_u32 s{S_TYPE}, 2
        s_cselect_b32 s30, s{S_CHA}, s{S_CHB}
        s_cselect_b32 s{NS}, 18, 9
        s_lshl_b32 s30, s30, 5
        s_and_b32 s31, s{S_LW}, 1
        s_lshl_b32 s31, s31, 4
        s_add_u32 s30, s30, s31
        s_mul_i32 s{WB}, s30, 1152
        s_mov_b32 s{SL}, 0
        v_mov_b32 v{CW}, {W_FULL}
        v_mov_b32 v{ONE}, 1
        """)
        def issue():
            lab = a.newlabel("L_bi")
            a(f"""
            s_cmp_lg_u32 s40, 9
            s_cbranch_scc1 {lab}
            s_sub_u32 s{XB}, s{XB}, {9*128}
            s_sub_u32 s30, s{S_CHA}, s{S_CHB}
            s_mul_i32 s30, s30, {32*1152}
            s_add_u32 s30, s30, {9*128}
            s_sub_u32 s{WB}, s{WB}, s30
            """)
            a.label(lab)
            a(f"s_lshl_b32 s30, s{S_LW}, 12\ns_add_u32 m0, s30, s{SL}\ns_lshl_b32 s30, s{S_LW}, 11")
            for n in range(4): a(f"buffer_load_dwordx4 v{VX+n}, s[8:11], s{XB} offen offset:{n*1024} lds")
            a(f"s_add_u32 s30, s30, s{SL}\ns_add_u32 m0, s30, 16384\ns_add_u32 s{XB}, s{XB}, 128")
            for n in range(2): a(f"buffer_load_dwordx4 v{VB+n}, s[12:15], s{WB} offen offset:{n*1024} lds")
            a(f"""
            s_add_u32 s{WB}, s{WB}, 128
            s_add_u32 s{SL}, s{SL}, {BSLOT}
            s_cmp_eq_u32 s{SL}, {3*BSLOT}
            s_cselect_b32 s{SL}, 0, s{SL}
            """)
        return lambda: self.gemm_load("L_l1", 0, f"s{NS}", 3, 2, CW, ONE, T, issue)

    def aux(self):
        a = self.a
        AX, AW, FX, ACC, T = 4, 8, 16, 80, 148
        SS, SLOT, DL, WM, WN = 40, 41, 42, 43, 44
        a.label("L_aux")
        a(f"""
        s_setprio 3
        s_mov_b32 s{S_HALF}, 0
        s_mov_b32 s{S_CH}, s{S_CHA}
        s_mov_b32 s62, 0
        s_mov_b32 s63, -1
        s_waitcnt lgkmcnt(0)
        """)
        self.srd(4, P_WS, WS_BYTES)
        a(f"s_cmp_eq_u32 s{S_TYPE}, 2\ns_cbranch_scc1 L_aux_sp")
        a(f"s_lshr_b32 s{WM}, s{S_WAVE}, 1\ns_and_b32 s{WN}, s{S_WAVE}, 1\ns_lshl_b32 s30, s{WM}, 13")
        self.swz(AX, T, "s30")
        a(f"""
        v_bfe_u32 v{T+2}, v2, 2, 2
        v_lshl_add_u32 v{T+3}, v{T+1}, 3, v{T+2}
        v_lshlrev_b32 v{T+3}, 8, v{T+3}
        v_bfe_u32 v{T+4}, v2, 4, 1
        v_lshl_add_u32 v{T+3}, v{T+4}, 5, v{T+3}
        v_and_b32 v{T+4}, 3, v2
        v_lshl_add_u32 v{T+3}, v{T+4}, 3, v{T+3}
        v_add_u32 v{T+3}, 16384, v{T+3}
        s_lshl_b32 s30, s{WN}, 1
        v_xor_b32 v{T+4}, s30, v{T+2}
        v_lshl_add_u32 v{AW}, v{T+4}, 6, v{T+3}
        v_xor_b32 v{AW+1}, 64, v{AW}
        """)
        for i in range(64): a(f"v_mov_b32 v{ACC+i}, 0")
        a(f"s_mov_b32 s{SS}, 0\ns_mov_b32 s{SLOT}, 0\ns_barrier")
        self.stampx(16, True); self.stamp(60, True)
        def nextslot(stride, total):
            a(f"""
            s_add_u32 s30, s{SLOT}, {stride}
            s_cmp_eq_u32 s30, {total}
            s_cselect_b32 s30, 0, s30
            s_sub_u32 s{DL}, s30, s{SLOT}
            s_mov_b32 s{SLOT}, s30
            s_add_u32 s{SS}, s{SS}, 1
            """)
        def reads(s):
            l = [f"ds_read_b128 v[{FX+s*16+mt*4}:{FX+s*16+mt*4+3}], v{AX+s} offset:{mt*4096}" for mt in range(2)]
            for nt in range(2):
                for hf in range(2):
                    r = FX + s * 16 + 8 + nt * 4 + hf * 2
                    l.append(f"ds_read_b64_tr_b16 v[{r}:{r+1}], v{AW+nt} offset:{s*4096 + hf*1024}")
            return l
        for x in reads(0) + reads(1): a(x)
        a(f"s_cmp_eq_u32 s{S_TYPE}, 1\ns_cbranch_scc1 L_a1v")
        def a1loop(vtype, lab):
            a.label(lab)
            for s in range(4):
                a("s_waitcnt lgkmcnt(6)")
                if s == 2:
                    a(f"s_cmp_lt_u32 s{SS}, 9\ns_cbranch_scc1 {lab}b\ns_waitcnt lgkmcnt(0)")
                    a.label(lab + "b")
                    a("s_barrier")
                    self.stampx(16)
                mf = []
                for mt in range(2):
                    for nt in range(2):
                        d = ACC + (mt * 2 + nt) * 16
                        x = f"v[{FX+s*16+mt*4}:{FX+s*16+mt*4+3}]"; w = f"v[{FX+s*16+8+nt*4}:{FX+s*16+8+nt*4+3}]"
                        A, B = (x, w) if vtype else (w, x)
                        mf.append(f"v_mfma_f32_32x32x16_bf16 v[{d}:{d+15}], {A}, {B}, v[{d}:{d+15}]")
                ilv(a, mf, reads((s + 2) % 4))
                if s == 0: nextslot(32768, 163840)
                if s == 1:
                    for r in (AX, AX + 1, AX + 2, AX + 3, AW, AW + 1): a(f"v_add_u32 v{r}, s{DL}, v{r}")
            a(f"s_cmp_lt_u32 s{SS}, 9\ns_cbranch_scc1 {lab}")
        a1loop(False, "L_a1qk")
        self.stamp(1)
        a(f"""
        s_lshl_b32 s30, s{S_NB}, 5
        s_lshl_b32 s31, s{WN}, 4
        s_add_u32 s30, s30, s31
        s_mul_i32 s31, s{S_MB}, {QS}
        s_add_u32 s31, s31, s30
        s_lshl_b32 s31, s31, 10
        s_lshl_b32 s32, s{WM}, 9
        s_add_u32 s31, s31, s32
        s_add_u32 s31, s31, {QKP}
        v_lshlrev_b32 v{T+2}, 4, v1
        v_lshl_add_u32 v{T+2}, v{T+1}, 10, v{T+2}
        s_mov_b32 s32, {QSCALE}
        s_cmp_ge_u32 s30, 144
        s_cselect_b32 s32, 1.0, s32
        s_mov_b32 s33, s32
        s_waitcnt lgkmcnt(0)
        """)
        for nt in range(2):
            for g in range(4):
                o = FX + (nt * 4 + g) * 4
                for mt in range(2):
                    d = ACC + (mt * 2 + nt) * 16 + 4 * g
                    a(f"v_pk_mul_f32 v[{d}:{d+1}], v[{d}:{d+1}], s[32:33]\nv_pk_mul_f32 v[{d+2}:{d+3}], v[{d+2}:{d+3}], s[32:33]")
                for mt in range(2):
                    d = ACC + (mt * 2 + nt) * 16 + 4 * g
                    a(f"v_cvt_pk_bf16_f32 v{o+2*mt}, v{d}, v{d+1}\nv_cvt_pk_bf16_f32 v{o+2*mt+1}, v{d+2}, v{d+3}")
                a(f"buffer_store_dwordx4 v[{o}:{o+3}], v{T+2}, s[4:7], s31 offen offset:{(g%2)*2048} {WT}")
                if g % 2 == 1: a("s_add_u32 s31, s31, 4096")
        a("s_branch L_a1done")
        a1loop(True, "L_a1v")
        self.stamp(1)
        a(f"""
        s_sub_u32 s30, s{S_NB}, 9
        s_lshl_b32 s30, s30, 7
        s_lshl_b32 s31, s{WN}, 6
        s_add_u32 s30, s30, s31
        s_lshl_b32 s31, s{S_MB}, 4
        s_lshl_b32 s32, s{WM}, 3
        s_add_u32 s31, s31, s32
        s_mul_i32 s31, s31, {VS}
        s_lshl_b32 s32, s30, 4
        s_add_u32 s31, s31, s32
        s_add_u32 s31, s31, {VT}
        v_mul_u32_u24 v{T+2}, {VS}, v{T+1}
        v_lshl_add_u32 v{T+2}, v1, 4, v{T+2}
        s_waitcnt lgkmcnt(0)
        s_cmp_ge_u32 s30, 576
        s_cbranch_scc1 L_a1done
        """)
        for mt in range(2):
            for m in range(2):
                for nt in range(2):
                    d = ACC + (mt * 2 + nt) * 16 + 8 * m
                    for r in range(4): a(f"v_cvt_pk_bf16_f32 v{d+r}, v{d+2*r}, v{d+2*r+1}")
                    a(f"buffer_store_dwordx4 v[{d}:{d+3}], v{T+2}, s[4:7], s31 offen offset:{nt*512} {WT}")
                a(f"s_add_u32 s31, s31, {2*VS}")
        a.label("L_a1done")
        self.stamp(2); self.stamp(59, True)
        if self.opt.get("drain1"): a("s_waitcnt vmcnt(0)"); self.stamp(7)
        a(f"s_mov_b32 s{S_HALF}, 1\ns_mov_b32 s{S_CH}, s{S_CHB}\ns_branch L_b1pre")
        a.label("L_aux_sp")
        a("s_barrier")
        AB, BF, WA, ONE, AC1, CW, RAW = 8, 16, self.WA, self.ONE, 112, 155, 164
        T = 158; BC = self.BC
        a.label("L_b1pre")
        a(f"s_mov_b32 s{BC}, 0\nv_mov_b32 v{WA}, {W_BAR}\nv_mov_b32 v{ONE}, 1\nv_mov_b32 v{CW}, {W_FULL}\ns_lshl_b32 s48, s{S_LW}, 12\ns_lshl_b32 s49, s{S_LW}, 11")
        self.swz(AB, T, 16384)
        a(f"s_sub_u32 s30, s48, 16384")
        for s in range(4): a(f"v_add_u32 v{AX+s}, s30, v{AB+s}")
        a(f"""
        s_cmp_eq_u32 s{S_TYPE}, 2
        s_cbranch_scc1 L_b1
        s_lshl_b32 s30, s{S_NB}, 7
        s_add_u32 s31, s30, 128
        s_cmp_eq_u32 s{S_TYPE}, 1
        s_cselect_b32 s32, 1152, 0
        v_mul_u32_u24 v{T+2}, 18, v2
        v_add_u32 v{T+2}, s32, v{T+2}
        v_add_u32 v{T+3}, 18, v{T+2}
        v_max_u32 v{T+2}, s30, v{T+2}
        v_min_u32 v{T+3}, s31, v{T+3}
        v_min_u32 v{T+3}, 0x6c0, v{T+3}
        v_cmp_lt_u32 vcc, v{T+2}, v{T+3}
        v_sub_u32 v{T+2}, v{T+3}, v{T+2}
        v_mul_u32_u24 v{T+3}, {F1STRIDE}, v1
        s_and_b32 s31, s{S_MB}, {NSUB-1}
        s_lshl_b32 s31, s31, 7
        s_add_u32 s31, s31, {F1}
        """)
        self.wait_ok(T)
        a(f"s_waitcnt vmcnt(0)")
        self.stamp(9); self.stamp(52, True)
        a(f"""
        s_mov_b64 exec, 1
        ds_add_rtn_u32 v{T}, v{WA}, v{ONE} offset:4
        s_mov_b64 exec, -1
        s_waitcnt lgkmcnt(0)
        v_readfirstlane_b32 s35, v{T}
        s_cmp_lg_u32 s35, 3
        s_cbranch_scc1 L_b1
        s_mov_b64 exec, vcc
        buffer_atomic_add v{T+2}, v{T+3}, s[4:7], s31 offen sc1
        s_mov_b64 exec, -1
        """)
        if self.opt.get("rt"): self.stamp(53, True); a("s_waitcnt vmcnt(0)"); self.stamp(54, True)
        a.label("L_b1")
        if self.opt.get("nob"): a("s_branch L_b1done")
        a(f"""
        s_lshl_b32 s30, s{S_CH}, 6
        v_lshl_add_u32 v{T+4}, v1, 1, s30
        global_load_ushort v{RAW}, v{T+4}, s[{P_LRE}:{P_LRE+1}]
        global_load_ushort v{RAW+1}, v{T+4}, s[{P_LIM}:{P_LIM+1}]
        global_load_ushort v{RAW+2}, v{T+4}, s[{P_LDT}:{P_LDT+1}]
        """)
        def rl(st):
            l = []; off = (st % 3) * BSLOT
            for s in range(4):
                b = BF + (st % 2) * 48 + s * 12
                l.append(f"ds_read_b128 v[{b}:{b+3}], v{AX+s} offset:{off}")
                for nt in range(2): l.append(f"ds_read_b128 v[{b+4+nt*4}:{b+7+nt*4}], v{AB+s} offset:{off + nt*4096}")
            return l
        def mfl(st):
            l = []
            for s in range(4):
                b = BF + (st % 2) * 48 + s * 12
                for nt in range(2):
                    d = AC1 + nt * 16; c = "0" if st == 0 and s == 0 else f"v[{d}:{d+15}]"
                    l.append(f"v_mfma_f32_32x32x16_bf16 v[{d}:{d+15}], v[{b}:{b+3}], v[{b+4+nt*4}:{b+7+nt*4}], {c}")
            return l
        self.gemm_cons("L_g1", 9, T, CW, rl, mfl, 9)
        a(f"v_add_u32 v{CW}, 36, v{CW}\ns_waitcnt vmcnt(0)")
        self.stamp(3)
        LT_ = 144
        for i in range(3): a(f"v_mov_b32 v{LT_+i}, v{RAW+i}")
        self.lam_calc(LT_)
        for t in range(16):
            u, w, d = AC1 + t, AC1 + 16 + t, BS + 2 * t
            a(f"""
            v_mul_f32 v{d}, v{CR}, v{u}
            v_mul_f32 v{d+1}, v{CR}, v{w}
            v_fma_f32 v{d}, -v{CI}, v{w}, v{d}
            v_fma_f32 v{d+1}, v{CI}, v{u}, v{d+1}
            """)
            if t >= 1:
                g0 = BS if t == 1 else T + 2 + 2 * (t % 2); g1 = T + 2 + 2 * ((t + 1) % 2)
                self.cmac(g1, LR, g0, d)
        GR = T + 2; TT = T + 4
        a(f"""
        s_lshl_b32 s31, s{S_WAVE}, 9
        s_add_u32 s30, s31, {LDS_SCR}
        v_lshl_add_u32 v{TT}, v2, 3, s30
        ds_write_b64 v{TT}, v[{GR}:{GR+1}]
        v_lshlrev_b32 v{TT+1}, 3, v2
        v_add_u32 v{TT+1}, {LDS_SCR - 256}, v{TT+1}
        """)
        self.bar(T)
        EV = BF
        for j in range(8): a(f"ds_read_b64 v[{EV+2*j}:{EV+2*j+1}], v{TT+1} offset:{j*256}")
        a("s_waitcnt lgkmcnt(0)")
        self.partb(EV, T)
        a(f"s_cmp_lg_u32 s{S_HALF}, 0\ns_cbranch_scc1 L_b1done")
        def spill(op):
            a(f"s_lshl_b32 s30, s2, 2\ns_add_u32 s30, s30, s{S_WAVE}\ns_mul_i32 s30, s30, {12*1024}\ns_add_u32 s30, s30, {SPILL}")
            for i in range(10):
                a(f"buffer_{op}_dwordx4 v[{BS+4*i}:{BS+4*i+3}], v3, s[4:7], s30 offen offset:{(i%4)*1024}")
                if i % 4 == 3: a("s_add_u32 s30, s30, 4096")
            a(f"buffer_{op}_dwordx2 v[{BS+40}:{BS+41}], v3, s[4:7], s30 offen offset:2048\ns_waitcnt vmcnt(0)")
        spill("store")
        a(f"s_mov_b32 s{S_HALF}, 1\ns_mov_b32 s{S_CH}, s{S_CHB}\ns_branch L_b1")
        a.label("L_b1done")
        self.stamp(4)
        VV, ONES = 12, 16
        self.poll_f1("L_pollF1x", T)
        self.kv_setup(T, VV, "3")
        for i in range(4): a(f"v_mov_b32 v{ONES+i}, 0x3f803f80")
        a("s_mov_b32 s35, 0")
        a.label("L_auxkv")
        self.k_part(); self.v_part(VV, ONES, T); self.kv_next()
        a(f"""
        s_add_u32 s35, s35, 1
        s_cmp_lt_u32 s35, 5
        s_cbranch_scc1 L_auxkv
        v_lshlrev_b32 v{T}, 2, v2
        v_add_u32 v{T}, {W_LAND + 12}, v{T}
        v_mov_b32 v{T+1}, 2
        s_waitcnt vmcnt(0)
        s_mov_b64 exec, 31
        ds_add_u32 v{T}, v{T+1}
        s_mov_b64 exec, -1
        """)
        self.stamp(5)
        if self.opt.get("nob"): a("s_branch L_exit")
        a.label("L_p2")
        self.pass2(BF, T)
        a(f"s_cmp_lg_u32 s{S_TYPE}, 2\ns_cbranch_scc1 L_p2end\ns_cmp_eq_u32 s{S_CH}, s{S_CHA}\ns_cbranch_scc1 L_p2end")
        spill("load")
        a(f"s_mov_b32 s{S_CH}, s{S_CHA}\ns_branch L_p2")
        a.label("L_p2end")
        self.stamp(6)
        self.warm([(P_CRE, 576 * 1152), (P_CIM, 576 * 1152), (P_WO, 576 * 1152)], T, 16)
        self.p3_ids()
        self.p3(T)

    def cmac(self, d, m, g, c):
        self.a(f"v_pk_fma_f32 v[{d}:{d+1}], v[{m}:{m+1}], v[{g}:{g+1}], v[{c}:{c+1}] op_sel_hi:[0,1,1]")
        self.a(f"v_pk_fma_f32 v[{d}:{d+1}], v[{m}:{m+1}], v[{g}:{g+1}], v[{d}:{d+1}] op_sel:[1,1,0] op_sel_hi:[1,0,1] neg_lo:[1,0,0]")
    def lam_calc(self, T):
        a = self.a; L2E = f32(math.log2(math.e))
        a(f"""
        v_lshlrev_b32 v{T}, 16, v{T}
        v_lshlrev_b32 v{T+1}, 16, v{T+1}
        v_lshlrev_b32 v{T+2}, 16, v{T+2}
        v_mul_f32 v{T+2}, {L2E}, v{T+2}
        v_exp_f32 v{T+2}, v{T+2}
        s_nop 0
        v_cvt_pk_bf16_f32 v{T+2}, v{T+2}, v{T+2}
        v_lshlrev_b32 v{T+2}, 16, v{T+2}
        v_mul_f32 v{T+3}, v{T+2}, v{T}
        v_mul_f32 v{T+4}, v{T+2}, v{T+1}
        v_mul_f32 v{T+3}, {L2E}, v{T+3}
        v_mul_f32 v{T+4}, {f32(1/(2*math.pi))}, v{T+4}
        v_exp_f32 v{T+3}, v{T+3}
        v_fract_f32 v{T+4}, v{T+4}
        v_cos_f32 v{T+5}, v{T+4}
        v_sin_f32 v{T+6}, v{T+4}
        s_nop 0
        v_mul_f32 v{LR}, v{T+3}, v{T+5}
        v_mul_f32 v{LI}, v{T+3}, v{T+6}
        v_mul_f32 v{T+3}, v{T}, v{T}
        v_fmac_f32 v{T+3}, v{T+1}, v{T+1}
        v_rcp_f32 v{T+3}, v{T+3}
        v_add_f32 v{T+4}, -1.0, v{LR}
        v_mul_f32 v{T+5}, v{T+4}, v{T}
        v_fmac_f32 v{T+5}, v{LI}, v{T+1}
        v_mul_f32 v{T+6}, v{LI}, v{T}
        v_fma_f32 v{T+6}, -v{T+4}, v{T+1}, v{T+6}
        v_add_f32 v{T+3}, v{T+3}, v{T+3}
        v_mul_f32 v{CR}, v{T+5}, v{T+3}
        v_mul_f32 v{CI}, v{T+6}, v{T+3}
        v_mov_b32 v{MUR}, v{LR}
        v_mov_b32 v{MUI}, v{LI}
        """)
        for i in range(4):
            a(f"""
            v_mul_f32 v{T+3}, v{MUI}, v{MUI}
            v_mul_f32 v{T+4}, v{MUR}, v{MUI}
            v_fma_f32 v{MUR}, v{MUR}, v{MUR}, -v{T+3}
            v_add_f32 v{MUI}, v{T+4}, v{T+4}
            """)

    def partb(self, EV, TT):
        a = self.a
        a(f"""
        v_cndmask_b32 v{LCR}, 0, v{EV}, s[62:63]
        v_cndmask_b32 v{LCI}, 0, v{EV+1}, s[62:63]
        v_cndmask_b32 v{PWR}, 1.0, v{MUR}, s[62:63]
        v_cndmask_b32 v{PWI}, 0, v{MUI}, s[62:63]
        """)
        for j in range(1, 7):
            if j % 2 == 1: a(f"s_cmp_lt_u32 s{S_WAVE}, {(j+1)//2}\ns_cbranch_scc1 L_pbne")
            a(f"""
            v_mul_f32 v{TT}, v{MUR}, v{PWR}
            v_mul_f32 v{TT+1}, v{MUR}, v{PWI}
            v_fma_f32 v{TT+2}, v{MUR}, v{LCR}, v{EV+2*j}
            v_fma_f32 v{TT+3}, v{MUR}, v{LCI}, v{EV+2*j+1}
            v_fma_f32 v{TT}, -v{MUI}, v{PWI}, v{TT}
            v_fma_f32 v{PWI}, v{MUI}, v{PWR}, v{TT+1}
            v_fma_f32 v{TT+2}, -v{MUI}, v{LCI}, v{TT+2}
            v_fma_f32 v{LCI}, v{MUI}, v{LCR}, v{TT+3}
            v_mov_b32 v{PWR}, v{TT}
            v_mov_b32 v{LCR}, v{TT+2}
            """)
        EB = EV + 14
        a(f"""
        s_mul_i32 s30, s{S_MB}, {576*8}
        s_lshl_b32 s31, s{S_CH}, 8
        s_add_u32 s30, s30, s31
        s_add_u32 s30, s30, {EE - 256}
        v_lshlrev_b32 v{TT+2}, 3, v2
        v_fma_f32 v{TT}, v{MUR}, v{LCR}, v{EB}
        v_fma_f32 v{TT+1}, v{MUR}, v{LCI}, v{EB+1}
        v_fma_f32 v{TT}, -v{MUI}, v{LCI}, v{TT}
        v_fma_f32 v{TT+1}, v{MUI}, v{LCR}, v{TT+1}
        s_mov_b32 exec_lo, 0
        buffer_store_dwordx2 v[{TT}:{TT+1}], v{TT+2}, s[4:7], s30 offen {WT}
        s_mov_b32 exec_lo, -1
        s_lshl_b32 s30, s{S_CH}, 5
        s_add_u32 s30, s30, s{S_MB}
        s_lshl_b32 s30, s30, 2
        s_add_u32 s30, s30, {F2}
        s_waitcnt vmcnt(0)
        """)
        self.wait_ok(TT)
        self.flag_store([30], TT)
        a.label("L_pbne")
        for i in range(3):
            a(f"""
            v_mul_f32 v{TT+4}, v{MUI}, v{MUI}
            v_mul_f32 v{TT+5}, v{MUR}, v{MUI}
            v_fma_f32 v{MUR}, v{MUR}, v{MUR}, -v{TT+4}
            v_add_f32 v{MUI}, v{TT+5}, v{TT+5}
            """)

    def pass2(self, EV, T):
        a = self.a
        GR, GI, TT, AD, M2R, M2I = T, T + 1, T + 2, T + 4, T + 6, T + 7
        a(f"""
        s_cmp_eq_u32 s{S_MB}, 0
        s_cbranch_scc1 L_pollF2_x
        s_sub_u32 s35, s{S_MB}, 1
        v_min_u32 v{AD}, s35, v2
        v_lshlrev_b32 v{AD}, 2, v{AD}
        s_lshl_b32 s34, s{S_CH}, 7
        s_add_u32 s34, s34, {F2}
        """)
        self.poll("L_pollF2", TT, AD, "s34", sleep=8)
        a(f"""
        s_add_u32 s8, s{P_WS}, {EE}
        s_addc_u32 s9, s{P_WS+1}, 0
        s_and_b32 s9, s9, 0xffff
        s_mov_b32 s10, {16*576*8}
        s_mov_b32 s11, 0x20000
        v_lshrrev_b32 v{TT}, 5, v2
        v_mul_u32_u24 v{TT}, {576*8}, v{TT}
        v_lshlrev_b32 v{AD}, 3, v1
        v_sub_u32 v{AD}, v{AD}, v{TT}
        s_sub_u32 s34, s{S_MB}, 1
        s_mul_i32 s34, s34, {576*8}
        v_add_u32 v{AD}, s34, v{AD}
        s_lshl_b32 s34, s{S_CH}, 8
        """)
        for i in range(8):
            a(f"buffer_load_dwordx2 v[{EV+2*i}:{EV+2*i+1}], v{AD}, s[8:11], s34 offen sc0 sc1")
            if i < 7: a(f"v_subrev_u32 v{AD}, {2*576*8}, v{AD}")
        a(f"""
        v_mul_f32 v{TT}, v{MUI}, v{MUI}
        v_mul_f32 v{TT+1}, v{MUR}, v{MUI}
        v_fma_f32 v{M2R}, v{MUR}, v{MUR}, -v{TT}
        v_add_f32 v{M2I}, v{TT+1}, v{TT+1}
        s_waitcnt vmcnt(0)
        """)
        for i in range(6, -1, -1): self.cmac(EV + 2 * i, M2R, EV + 2 * i + 2, EV + 2 * i)
        a(f"""
        v_mov_b32 v{AD}, v{EV}
        v_mov_b32 v{AD+1}, v{EV+1}
        s_nop 1
        v_permlane32_swap_b32 v{EV}, v{AD}
        v_permlane32_swap_b32 v{EV+1}, v{AD+1}
        s_nop 1
        """)
        self.cmac(EV, MUR, AD, EV)
        self.cmac(GR, PWR, EV, LCR)
        for t in range(16): self.cmac(BS + 2 * t, LR, GR if t == 0 else BS + 2 * t - 2, BS + 2 * t)
        a(f"""
        s_lshl_b32 s34, s{S_MB}, 2
        s_add_u32 s34, s34, s{S_WAVE}
        s_mul_i32 s34, s34, {HS}
        s_add_u32 s34, s34, s{S_CH}
        s_lshl_b32 s34, s34, 11
        s_add_u32 s34, s34, {HH}
        s_add_u32 s35, s34, {18*2048}
        v_lshrrev_b32 v{TT}, 5, v2
        v_lshlrev_b32 v{AD}, 4, v1
        v_mul_u32_u24 v{TT}, {1024+128}, v{TT}
        v_xor_b32 v{AD}, v{AD}, v{TT}
        v_xor_b32 v{AD+1}, {512+64}, v{AD}
        """)
        for c in range(2):
            for jj in range(2):
                d = EV + 16 + 8 * c + 4 * jj; n = "-" if c else ""
                for r in range(4): a(f"v_cvt_pk_bf16_f32 v{d+r}, {n}v{BS+16*jj+4*r+c}, {n}v{BS+16*jj+4*r+2+c}")
                a(f"buffer_store_dwordx4 v[{d}:{d+3}], v{AD+jj}, s[4:7], s{34+c} offen {WT}")
        a(f"""
        s_mul_i32 s30, s{S_MB}, 24
        s_add_u32 s31, s30, s{S_CH}
        s_lshl_b32 s31, s31, 2
        s_add_u32 s31, s31, s{S_WAVE}
        s_lshl_b32 s31, s31, 2
        s_add_u32 s31, s31, {F3}
        s_waitcnt vmcnt(0)
        """)
        self.flag_store([31], TT)

    def b3_loader_setup(self, PB, T, st0):
        a = self.a
        self.make_vx(PB, 2, "4", "1", "16", "8", T)
        self.srd(12, P_CRE, 576 * 1152)
        a(f"""
        s_mul_i32 s{S_HB}, s{S_P3T}, {HS*2048}
        s_add_u32 s{S_HB}, s{S_HB}, {HH + st0*4096}
        s_lshl_b32 s30, s{S_P3NB}, 6
        s_lshl_b32 s31, s{S_LW}, 4
        s_add_u32 s30, s30, s31
        s_mul_i32 s{S_CB}, s30, 1152
        s_add_u32 s{S_CB}, s{S_CB}, {st0*128}
        s_mov_b32 s{S_SL3}, {R6[st0]}
        """)
        def issue():
            lab = a.newlabel("L_b3i")
            a(f"s_lshl_b32 s30, s{S_LW}, 12\ns_add_u32 m0, s30, s{S_SL3}\ns_cmp_lg_u32 s40, 9")
            for n in range(4): a(f"buffer_load_dwordx4 v3, s[4:7], s{S_HB} offen offset:{n*1024} {LDF} lds")
            a(f"s_cbranch_scc1 {lab}\ns_mov_b32 s12, s{P_CIM}\ns_and_b32 s13, s{P_CIM+1}, 0xffff\ns_sub_u32 s{S_CB}, s{S_CB}, {9*128}")
            a.label(lab)
            a(f"s_lshl_b32 s30, s{S_LW}, 11\ns_add_u32 s30, s30, s{S_SL3}\ns_add_u32 m0, s30, 16384\ns_add_u32 s{S_HB}, s{S_HB}, 4096")
            for n in range(2): a(f"buffer_load_dwordx4 v{PB+n}, s[12:15], s{S_CB} offen offset:{n*1024} lds")
            a(f"""
            s_add_u32 s{S_CB}, s{S_CB}, 128
            s_add_u32 s{S_SL3}, s{S_SL3}, {BSLOT}
            s_cmp_eq_u32 s{S_SL3}, {2048 + 6*BSLOT}
            s_cselect_b32 s{S_SL3}, 2048, s{S_SL3}
            """)
        return issue
    def a3_setup(self, PB, T):
        a = self.a
        a(f"""
        v_lshrrev_b32 v{T}, 2, v2
        v_and_b32 v{T+1}, 3, v2
        v_and_b32 v{T+2}, 3, v{T}
        v_bfe_u32 v{T+3}, v{T}, 2, 1
        v_lshl_add_u32 v{T+2}, v{T+3}, 3, v{T+2}
        v_lshrrev_b32 v{T+3}, 3, v{T}
        v_lshl_add_u32 v{T+2}, v{T+3}, 2, v{T+2}
        v_mul_u32_u24 v{T+2}, 1152, v{T+2}
        v_lshl_add_u32 v{PB}, v{T+1}, 4, v{T+2}
        v_lshrrev_b32 v{T+2}, 1, v{T}
        v_mul_u32_u24 v{T+2}, 18, v{T+2}
        v_and_b32 v{T+3}, 1, v{T}
        v_add3_u32 v{T+2}, v{T+2}, v{T+3}, 16
        v_mul_u32_u24 v{T+2}, 1152, v{T+2}
        v_lshl_add_u32 v{PB+1}, v{T+1}, 4, v{T+2}
        s_sub_u32 s30, s{S_P3NB}, 9
        s_mul_i32 s{S_CB}, s30, 192
        s_mov_b32 s{S_ST3}, s{S_LW}
        """)
        self.srd(12, P_WO, 576 * 1152)
    def a3_issue(self, PB, cnt):
        a = self.a; lab = a.newlabel("L_a3i")
        a("s_mov_b32 s35, 0")
        a.label(lab)
        a(f"""
        s_mul_i32 s30, s{S_ST3}, 3072
        s_add_u32 s31, s30, {WO2}
        s_sub_u32 s30, s30, {18*3072}
        s_add_u32 s32, s{S_ST3}, 18
        s_sub_u32 s34, s{S_ST3}, 18
        s_cmp_lt_u32 s{S_ST3}, 18
        s_cselect_b32 s30, s31, s30
        s_cselect_b32 s32, s32, s34
        s_mul_i32 s31, s32, {18*1152}
        v_mov_b32 v{PB+2}, v{PB}
        s_cmp_lt_u32 s32, 32
        s_cbranch_scc1 {lab}m
        s_sub_u32 s32, s32, 32
        s_mul_i32 s31, s32, {8*18*1152}
        v_mov_b32 v{PB+2}, v{PB+1}
        """)
        a.label(lab + "m")
        a(f"s_add_u32 s31, s31, s{S_CB}")
        for nt in range(3):
            a(f"s_add_u32 m0, s30, {nt*1024}\ns_add_u32 s32, s31, {nt*64}\nbuffer_load_dwordx4 v{PB+2}, s[12:15], s32 offen lds")
        a(f"s_add_u32 s{S_ST3}, s{S_ST3}, 4\ns_add_u32 s35, s35, 1\ns_cmp_lt_u32 s35, {cnt}\ns_cbranch_scc1 {lab}")
    def xd(self, T, XD, ACC):
        a = self.a
        a(f"""
        v_lshrrev_b32 v{T+1}, 5, v2
        v_mul_u32_u24 v{T}, 1152, v1
        v_lshl_add_u32 v{T}, v{T+1}, 3, v{T}
        s_mul_i32 s30, s{S_P3T}, {32*1152}
        s_lshl_b32 s31, s{S_P3NB}, 7
        s_add_u32 s30, s30, s31
        v_add_u32 v{T}, s30, v{T}
        v_lshl_add_u32 v{T+1}, v{T+1}, 3, s31
        """)
        for e in range(8):
            a(f"global_load_dwordx2 v[{XD+2*e}:{XD+2*e+1}], v{T}, s[{P_BX}:{P_BX+1}] offset:{e*16}")
            a(f"global_load_dwordx2 v[{XD+16+2*e}:{XD+16+2*e+1}], v{T+1}, s[{P_DSK}:{P_DSK+1}] offset:{e*16}")
        a("s_waitcnt vmcnt(0)")
        for e in range(8):
            d = ACC + 4 * e
            for q in range(2):
                x = XD + 2 * e + q; k = XD + 16 + 2 * e + q
                a(f"""
                v_lshlrev_b32 v{T+2}, 16, v{x}
                v_lshlrev_b32 v{T+3}, 16, v{k}
                v_and_b32 v{x}, 0xffff0000, v{x}
                v_and_b32 v{k}, 0xffff0000, v{k}
                v_fmac_f32 v{d+2*q}, v{T+2}, v{T+3}
                v_fmac_f32 v{d+2*q+1}, v{x}, v{k}
                """)

    def aux_final(self, T, restart):
        a = self.a; lab = a.newlabel("L_af")
        a(f"s_cmp_lg_u32 s{S_HALF}, 0\ns_cbranch_scc1 {lab}")
        self.wait_prog(FIN_OK, T, sleep=2)
        a(f"""
        v_cmp_eq_u32 vcc, s30, v{T+1}
        s_cbranch_vccz {lab}
        s_mov_b32 s{S_HALF}, 1
        s_waitcnt vmcnt(0) lgkmcnt(0)
        s_barrier
        s_barrier
        s_barrier
        """)
        if restart: a(f"s_branch {restart}")
        a.label(lab)

    def p3(self, T):
        a = self.a
        SS, DL = 40, 50
        PB = 4
        a(f"s_mov_b32 s{S_HALF}, 0")
        self.srd(16, P_OUT, OUT_BYTES)
        a(f"s_cmp_ge_u32 s{S_IDX}, 18\ns_cbranch_scc1 L_a3")
        AS, EA, BF, ACC, CW = [8, 144, 0], 14, 16, 112, 155
        AS[2] = 150 - 0
        A3S = [150, 151, 152, 153, 154, 15]
        a(f"""
        s_mul_i32 s34, s{S_P3MB}, 384
        s_add_u32 s34, s34, {F3}
        v_min_u32 v{T}, 17, v2
        v_lshlrev_b32 v{T}, 4, v{T}
        """)
        self.poll("L_pollF3", 20, T, "s34", n=4, sleep=16)
        self.stamp(7)
        AC, AH = 8, 12
        self.swz(AC, T, R6[0] + 16384)
        a(f"""
        v_bfe_u32 v{T+2}, v2, 2, 2
        v_lshl_add_u32 v{T+3}, v{T+1}, 3, v{T+2}
        v_bfe_u32 v{T+4}, v2, 4, 1
        v_bfe_u32 v{T+5}, v2, 1, 1
        v_lshl_add_u32 v{T+4}, v{T+4}, 1, v{T+5}
        v_lshlrev_b32 v{T+5}, 2, v{T+4}
        v_xor_b32 v{T+6}, v{T+3}, v{T+5}
        v_and_b32 v{T+5}, 1, v2
        v_lshlrev_b32 v{T+5}, 3, v{T+5}
        v_lshl_add_u32 v{T+5}, v{T+4}, 9, v{T+5}
        s_add_u32 s30, s48, {R6[0]}
        v_add_u32 v{T+5}, s30, v{T+5}
        v_lshl_add_u32 v{AH}, v{T+6}, 4, v{T+5}
        v_xor_b32 v{AH+1}, 64, v{AH}
        v_mul_u32_u24 v{EA}, 4608, v1
        v_lshl_add_u32 v{EA}, v{T+1}, 4, v{EA}
        v_mov_b32 v{CW}, {W_FULL + 72}
        """)
        sets = [list(range(8, 14)), list(range(144, 150)), A3S]
        for i in range(6):
            a(f"v_subrev_u32 v{sets[1][i]}, {R6[0]-R6[2]}, v{AC+i}\nv_subrev_u32 v{sets[2][i]}, {R6[0]-R6[4]}, v{AC+i}")
        pc = lambda c: 2 * (c + 1) + 1
        a.label("L_b3pf")
        iss = self.b3_loader_setup(PB, T, 0)
        a("s_mov_b32 s40, 0")
        self.wait_prog(pc(2), T, 16); iss(); iss()
        self.wait_prog(pc(4), T, 16); iss()
        self.wait_prog(pc(5), T, 16); iss()
        self.aux_final(T, "L_b3pf")
        a(f"v_lshl_add_u32 v{T}, v2, 2, v{CW}\ns_waitcnt vmcnt(0)\ns_mov_b64 exec, 15\nds_add_u32 v{T}, v{self.ONE}\ns_mov_b64 exec, -1")
        self.stamp(8)
        def rl(st):
            l = []; A = sets[(st % 6) // 2]; off = (st % 2) * BSLOT
            for s in range(4):
                b = BF + (st % 2) * 48 + s * 12
                if s == 3: l.append("s_waitcnt lgkmcnt(8)")
                for hf in range(2): l.append(f"ds_read_b64_tr_b16 v[{b+hf*2}:{b+hf*2+1}], v{A[4+hf]} offset:{off + (s>>1)*2048 + (s&1)*256}")
                for nt in range(2): l.append(f"ds_read_b128 v[{b+4+nt*4}:{b+7+nt*4}], v{A[s]} offset:{off + nt*4096}")
            return l
        def mfl(st):
            l = []
            for s in range(4):
                b = BF + (st % 2) * 48 + s * 12
                for nt in range(2):
                    d = ACC + nt * 16; c = "0" if st == 0 and s == 0 else f"v[{d}:{d+15}]"
                    l.append(f"v_mfma_f32_32x32x16_bf16 v[{d}:{d+15}], v[{b+4+nt*4}:{b+7+nt*4}], v[{b}:{b+3}], {c}")
            return l
        self.gemm_cons("L_g3", 18, T, CW, rl, mfl, 12)
        self.stamp(10)
        self.xd(T, BF, ACC)
        a(f"""
        s_mul_i32 s30, s{S_P3T}, {32*4608}
        s_lshl_b32 s31, s{S_P3NB}, 8
        s_add_u32 s30, s30, s31
        s_add_u32 s30, s30, {576*4}
        """)
        self.stamp(11)
        for e in range(8):
            d = ACC + 4 * e
            a(f"buffer_store_dwordx4 v[{d}:{d+3}], v{EA}, s[16:19], s30 offen offset:{e*32} {self.opt.get('outf', '').replace('_', ' ')}")
        a("s_branch L_exit")
        a.label("L_b3l")
        a(f"s_cmp_ge_u32 s{S_WAVE}, 8\ns_cbranch_scc1 L_exit\ns_cmp_ge_u32 s{S_IDX}, 18\ns_cbranch_scc1 L_exit")
        self.p3_ids()
        iss2 = self.b3_loader_setup(4, 8, 4)
        a(f"v_mov_b32 v6, {W_FULL + 72}\nv_mov_b32 v7, 1")
        self.gemm_load("L_l3", 4, 18, 6, 3, 6, 7, 8, iss2)
        a("s_branch L_exit")
        a.label("L_p3idle")
        self.aux_final(T, None)
        a("s_branch L_exit")
        a.label("L_a3")
        a(f"s_cmp_ge_u32 s{S_IDX}, 30\ns_cbranch_scc1 L_p3idle")
        a.label("L_a3pf")
        self.a3_setup(PB, T)
        self.wait_prog(pc(2), T, 16); self.a3_issue(PB, 4)
        self.wait_prog(pc(5), T, 16); self.a3_issue(PB, 5)
        a("s_waitcnt vmcnt(0)")
        self.bar(T)
        self.stamp(8)
        self.aux_final(T, "L_a3pf")
        AW, EA, T, FW, ACC, FO = 4, 6, 8, 16, 52, 100
        D = 16
        a(f"""
        s_lshl_b32 s34, s{S_P3T}, 7
        s_add_u32 s34, s34, {F4}
        v_lshlrev_b32 v{T+4}, 2, v1
        v_lshrrev_b32 v{T+1}, 5, v2
        v_bfe_u32 v{T+2}, v2, 2, 2
        v_lshl_add_u32 v{T+3}, v{T+1}, 3, v{T+2}
        v_lshlrev_b32 v{T+3}, 6, v{T+3}
        v_bfe_u32 v{T+2}, v2, 4, 1
        v_lshl_add_u32 v{T+3}, v{T+2}, 5, v{T+3}
        v_and_b32 v{T+2}, 3, v2
        v_lshl_add_u32 v{AW}, v{T+2}, 3, v{T+3}
        v_add_u32 v{AW+1}, {WO2}, v{AW}
        v_mul_u32_u24 v{EA}, 4608, v1
        v_lshl_add_u32 v{EA}, v{T+1}, 4, v{EA}
        v_lshl_add_u32 v{EA+1}, v{T+1}, 9, v{T+4}
        """)
        def rl3(s):
            st, off = (0, s * 3072) if s < 18 else (1, (s - 18) * 3072)
            l = []
            for nt in range(3):
                for hf in range(2):
                    r = FW + (s % 3) * 12 + nt * 4 + hf * 2
                    l.append(f"ds_read_b64_tr_b16 v[{r}:{r+1}], v{AW+st} offset:{off + nt*1024 + hf*256}")
            return l
        for x in rl3(0) + rl3(1): a(x)
        self.poll("L_pollF4", T + 5, T + 4, "s34", sleep=1)
        self.stamp(10); self.stamp(58, True)
        a(f"s_mul_i32 s30, s{S_P3T}, {OS}\ns_add_u32 s30, s30, {OW}")
        def oload(s):
            r = FO + 4 * (s % D)
            if s < 32:
                l = [f"buffer_load_dwordx4 v[{r}:{r+3}], v3, s[4:7], s30 offen offset:{(s%4)*1024} {LDF}"]
                if s % 4 == 3: l.append("s_add_u32 s30, s30, 4096")
                return l
            return [f"buffer_load_dword v{r+j}, v{EA+1}, s[4:7], s30 offen offset:{(s-32)*1024 + j*128} {LDF}" for j in range(4)]
        cnt = [1] * 32 + [4] * 4
        for s in range(D):
            for x in oload(s): a(x)
        for s in range(36):
            out = sum(cnt[s + 1:min(36, s + D)])
            a(f"s_waitcnt vmcnt({out}) lgkmcnt({6 if s < 35 else 0})")
            mf = []
            for nt in range(3):
                d = ACC + nt * 16; w = FW + (s % 3) * 12 + nt * 4; o = FO + 4 * (s % D)
                c = "0" if s == 0 else f"v[{d}:{d+15}]"
                mf.append(f"v_mfma_f32_32x32x16_bf16 v[{d}:{d+15}], v[{w}:{w+3}], v[{o}:{o+3}], {c}")
            ilv(a, mf, rl3(s + 2) if s + 2 < 36 else [])
            if s + D < 36:
                for x in oload(s + D): a(x)
        a(f"""
        s_mul_i32 s30, s{S_P3T}, {32*4608}
        s_sub_u32 s31, s{S_P3NB}, 9
        s_mul_i32 s31, s31, 384
        s_add_u32 s30, s30, s31
        s_nop 8
        """)
        self.stamp(11)
        for e in range(12):
            d = ACC + 4 * e
            a(f"buffer_store_dwordx4 v[{d}:{d+3}], v{EA}, s[16:19], s30 offen offset:{e*32} {self.opt.get('outf', '').replace('_', ' ')}")

    def finish(self):
        a = self.a
        a.label("L_exit")
        if self.stamp_on:
            self.stamp(12)
            a("s_waitcnt vmcnt(0)")
            self.stamp(13); self.stamp(15, True)
            a(f"""
            s_lshl_b32 s30, s2, 4
            s_add_u32 s30, s30, s{S_WAVE}
            s_lshl_b32 s30, s30, 8
            s_add_u32 s30, s30, {STB}
            v_lshlrev_b32 v3, 2, v2
            buffer_store_dword v{VST}, v3, s[4:7], s30 offen
            """)
            if "probe" in self.opt:
                k = int(self.opt["probe"])
                a(f"""
                v_readlane_b32 s30, v{VST}, 14
                v_readlane_b32 s31, v{VST}, {k}
                s_nop 3
                s_sub_u32 s32, s31, s30
                s_cmp_eq_u32 s31, 0
                s_cselect_b32 s32, 0, s32
                s_min_u32 s32, s32, 8000
                s_lshl_b32 s32, s32, 1
                s_add_u32 s32, s32, 7000
                """)
                a.label("L_probe")
                a("s_sleep 4\ns_memrealtime s[94:95]\ns_waitcnt lgkmcnt(0)\ns_sub_u32 s33, s94, s30\ns_cmp_lt_u32 s33, s32\ns_cbranch_scc1 L_probe")
        a("s_endpgm")
        self.emit_stubs()
        a.label("L_end")
        a("s_endpgm")

def gen_mega(name, stamp=False, opt=None):
    g = G(stamp, opt)
    g.a.raw(kernel_header(name))
    g.prologue(); g.p1_loader(); g.attention(); g.aux(); g.finish()
    return g.a.text(), kernel_desc(name, NV, 98)

if __name__ == "__main__":
    import sys
    from build import *
    KN = NAME + "_kernel"
    out = sys.argv[1]; stamp = len(sys.argv) > 2 and sys.argv[2] == "1"
    opt = dict((kv.split("=") + ["1"])[:2] for kv in sys.argv[3:])
    if "f1s" in opt: F1STRIDE = int(opt["f1s"])
    if "scld" in opt: LDF = "sc0 sc1"
    if "wt" in opt: WT = opt["wt"].replace("_", " ")
    compose([gen_mega(KN, stamp, opt)], [(KN, 256, 768, LDS_TOTAL)], out)
    assemble(out)
```

```python
from asmlib import *
from lay2 import *
import math, struct
def f32(x): return "0x%08x" % struct.unpack("<I", struct.pack("<f", x))[0]
QSCALE = f32(18 ** -0.5 * math.log2(math.e))
WT = "sc0 sc1"
LDF = "sc0 sc1"
SPIN_MAX = 20000
P_AX, P_WQKV, P_WO, P_BX, P_LRE, P_LIM, P_BRE, P_BIM, P_CRE, P_CIM, P_LDT, P_DSK, P_OUT, P_DBG, P_WS = range(64, 94, 2)
S_WAVE, S_XCD, S_IDX, S_MB, S_NB, S_TYPE, S_CHB, S_CHA, S_HALF, S_CH = 3, 20, 21, 22, 23, 24, 25, 26, 27, 29
S_P3MB, S_P3NB, S_HD, S_LW, S_P3T = 37, 38, 39, 51, 57
S_GK, S_K4, S_GV, S_LP = 52, 54, 55, 56
S_HB, S_CB, S_SL3, S_ST3 = 52, 53, 54, 55
NV = 168
VST = 167
BS = 64
SPILL = 0x1200000
LR, LI, CR, CI, LCR, LCI, PWR, PWI, MUR, MUI = range(BS + 32, BS + 42)
C0, CHB = 5, 19968
LDS_W = 8 * CHB
W_LAND, W_PROG, W_UNS, W_BAR, W_DRN = LDS_W, LDS_W + 64, LDS_W + 96, LDS_W + 100, LDS_W + 104
W_F1 = LDS_W + 108
LDS_SCR = LDS_W + 512
B1BASE, BSLOT = 0, 24576
R3 = [100352, 124928, 2048, 26624]
W_OK = 8 * 19968 + 112
FIN_OK, FIN_BAD = 0x40000000, 0x50000000
R3BASE = 2048
WO2 = 100352
QS, VS, OS, HS = 289, 9344, 37 * 1024, 37
def pad_touch():
    pads = [QKP + (q * QS + 288) * 1024 for q in range(16)] + [VT + o * VS + 9216 for o in range(256)]
    pads += [OW + t * OS + 36 * 1024 for t in range(64)] + [HH + (t * HS + 36) * 2048 for t in range(64)] + [EE + 0x80000, FL + 0x80000]
    G = 1 << 20
    seen = {}
    for p in pads: seen.setdefault(p // G, p)
    return sorted(seen.values())
F1STRIDE = 128 * NSUB
W_FULL, W_FREE = 8 * 19968 + 2560, 8 * 19968 + 2816
R6 = [100352, 124928, 2048, 26624, 51200, 75776]

def ilv(a, mf, other):
    n = len(mf); k = 0
    for i, m in enumerate(mf):
        a(m)
        upto = (len(other) * (i + 1) + n - 2) // (n - 1) if i < n - 1 else len(other)
        upto = min(upto, len(other))
        while k < upto: a(other[k]); k += 1

class G:
    def __init__(self, stamp=False, opt=None):
        self.a = Asm(); self.stamp_on = stamp; self.opt = opt or {}; self.stubs = []
    def stamp(self, k, real=False):
        if not self.stamp_on: return
        op = "s_memrealtime" if real else "s_memtime"
        self.a(f"{op} s[94:95]\ns_waitcnt lgkmcnt(0)\nv_writelane_b32 v{VST}, s94, {k}")
    def stampx(self, base, force=False):
        if not self.stamp_on or not (force or self.opt.get("stx")): return
        self.a(f"s_memtime s[94:95]\ns_add_u32 m0, s96, {base}\ns_add_u32 s96, s96, 1\ns_waitcnt lgkmcnt(0)\nv_writelane_b32 v{VST}, s94, m0")
    def srd(self, d, p, n):
        self.a(f"s_mov_b32 s{d}, s{p}\ns_and_b32 s{d+1}, s{p+1}, 0xffff\ns_mov_b32 s{d+2}, {n}\ns_mov_b32 s{d+3}, 0x20000")
    def poll(self, lab, vdst, voff, soff, n=1, want="1", sleep=2):
        a = self.a
        ld = f"buffer_load_dword v{vdst}, v{voff}, s[4:7], {soff} offen sc0 sc1" if n == 1 else f"buffer_load_dwordx4 v[{vdst}:{vdst+3}], v{voff}, s[4:7], {soff} offen sc0 sc1"
        a("s_mov_b32 s33, 0")
        a.label(lab)
        a(ld + "\ns_waitcnt vmcnt(0)")
        if n == 4:
            a(f"v_and_b32 v{vdst}, v{vdst}, v{vdst+1}\nv_and_b32 v{vdst+2}, v{vdst+2}, v{vdst+3}\nv_and_b32 v{vdst}, v{vdst}, v{vdst+2}")
        a(f"""
        v_cmp_ne_u32 vcc, {want}, v{vdst}
        s_add_u32 s33, s33, 1
        s_cmp_gt_u32 s33, {SPIN_MAX}
        s_cbranch_scc1 {lab}_x
        s_cbranch_vccz {lab}_x
        s_sleep {sleep}
        s_branch {lab}
        """)
        a.label(lab + "_x")
    def lds_spin(self, vaddr, vtmp, want, off=0, sleep=0):
        a = self.a; lab = a.newlabel("L_sp")
        a("s_mov_b32 s33, 0")
        a.label(lab)
        a(f"""
        ds_read_b32 v{vtmp}, v{vaddr} offset:{off}
        s_add_u32 s33, s33, 1
        s_waitcnt lgkmcnt(0)
        v_readfirstlane_b32 s32, v{vtmp}
        s_cmp_ge_u32 s32, {want}
        s_cbranch_scc1 {lab}x
        {f"s_sleep {sleep}" if sleep else ""}
        s_cmp_lt_u32 s33, {SPIN_MAX*16}
        s_cbranch_scc1 {lab}
        """)
        a.label(lab + "x")
    def lds_add1(self, vaddr, vone, off=0):
        self.a(f"s_mov_b64 exec, 1\nds_add_u32 v{vaddr}, v{vone} offset:{off}\ns_mov_b64 exec, -1")
    def flag_store(self, sregs, T):
        a = self.a
        a(f"v_mov_b32 v{T}, 0\nv_mov_b32 v{T+1}, 1\ns_mov_b64 exec, 1")
        for r in sregs: a(f"buffer_store_dword v{T+1}, v{T}, s[4:7], s{r} offen {WT}")
        a("s_mov_b64 exec, -1")
    def warm(self, items, T, dst):
        a = self.a
        if self.opt.get("nowarm"): return
        a(f"s_lshl_b32 s30, s{S_LW}, 8\ns_add_u32 s30, s30, s2\ns_lshl_b32 s30, s30, 10\nv_add_u32 v{T}, s30, v3")
        for (p, n) in items:
            self.srd(8, p, n)
            for r in range((n + (1 << 20) - 1) >> 20):
                a(f"s_mov_b32 s30, {r << 20}\nbuffer_load_dwordx4 v[{dst}:{dst+3}], v{T}, s[8:11], s30 offen")
    def make_vx(self, dst, n, sa, sb, sc1, sc0, T):
        a = self.a
        a(f"""
        v_lshrrev_b32 v{T}, 3, v2
        v_and_b32 v{T+1}, 7, v2
        v_lshrrev_b32 v{T+2}, 1, v{T}
        v_xor_b32 v{T+1}, v{T+1}, v{T+2}
        v_lshrrev_b32 v{T+2}, 2, v{T}
        v_and_b32 v{T}, 3, v{T}
        v_mul_u32_u24 v{T+2}, {sa}, v{T+2}
        v_mul_u32_u24 v{T}, {sb}, v{T}
        v_add_u32 v{T}, v{T}, v{T+2}
        v_mul_u32_u24 v{T}, 1152, v{T}
        v_lshl_add_u32 v{dst}, v{T+1}, 4, v{T}
        v_xor_b32 v{T+1}, 4, v{T+1}
        v_lshl_add_u32 v{dst+1}, v{T+1}, 4, v{T}
        s_mul_i32 s34, {sc0}, 1152
        s_sub_u32 s34, s34, 1024
        v_add_u32 v{dst+1}, s34, v{dst+1}
        """)
        if n == 4:
            a(f"s_mul_i32 s34, {sc1}, 1152\ns_sub_u32 s34, s34, 2048\nv_add_u32 v{dst+2}, s34, v{dst}\nv_add_u32 v{dst+3}, s34, v{dst+1}")
    def swz(self, Z, T, add=0):
        a = self.a
        a(f"""
        v_lshrrev_b32 v{T+1}, 5, v2
        v_bfe_u32 v{T+2}, v1, 1, 3
        v_xor_b32 v{T+2}, v{T+2}, v{T+1}
        v_lshlrev_b32 v{T+3}, 7, v1
        v_add_u32 v{T+3}, {add}, v{T+3}
        """)
        for s in range(4): a(f"v_xor_b32 v{T+4}, {2*s}, v{T+2}\nv_lshl_add_u32 v{Z+s}, v{T+4}, 4, v{T+3}")

    def prologue(self):
        a = self.a
        a(f"""
        s_cmp_ge_u32 s2, 256
        s_cbranch_scc1 L_end
        s_load_dwordx16 s[64:79], s[0:1], 0
        s_load_dwordx8 s[80:87], s[0:1], 64
        s_load_dwordx4 s[88:91], s[0:1], 96
        s_load_dwordx2 s[92:93], s[0:1], 112
        v_lshrrev_b32 v1, 6, v0
        v_and_b32 v2, 63, v0
        v_readfirstlane_b32 s{S_WAVE}, v1
        v_lshlrev_b32 v3, 4, v2
        v_and_b32 v1, 31, v0
        v_mov_b32 v144, 0
        s_and_b32 s{S_XCD}, s2, 7
        s_lshr_b32 s{S_IDX}, s2, 3
        """)
        if self.stamp_on: a(f"v_mov_b32 v{VST}, 0\ns_mov_b32 s96, 0")
        self.stamp(0); self.stamp(14, True)
        a(f"""
        s_and_b32 s30, s{S_XCD}, 3
        s_lshl_b32 s30, s30, 2
        s_and_b32 s31, s{S_IDX}, 3
        s_add_u32 s{S_MB}, s30, s31
        s_lshl_b32 s{S_HD}, s{S_XCD}, 2
        s_add_u32 s{S_HD}, s{S_HD}, s31
        s_lshr_b32 s30, s{S_XCD}, 2
        s_lshr_b32 s31, s{S_IDX}, 2
        s_mul_i32 s32, s30, 7
        s_add_u32 s{S_NB}, s32, s31
        s_mul_i32 s32, s30, 9
        s_add_u32 s{S_CHB}, s32, s31
        s_add_u32 s{S_CHA}, s32, 8
        s_cmp_ge_u32 s{S_NB}, 9
        s_cselect_b32 s{S_TYPE}, 1, 0
        s_cmp_ge_u32 s{S_IDX}, 28
        s_cselect_b32 s{S_TYPE}, 2, s{S_TYPE}
        s_and_b32 s{S_LW}, s{S_WAVE}, 3
        s_cmp_lt_u32 s{S_WAVE}, 4
        s_cbranch_scc1 L_aux
        s_cmp_ge_u32 s{S_WAVE}, 8
        s_cbranch_scc1 L_idle
        """)

    def p3_ids(self):
        self.a(f"""
        s_lshl_b32 s{S_P3MB}, s{S_XCD}, 1
        s_and_b32 s30, s{S_IDX}, 1
        s_add_u32 s{S_P3MB}, s{S_P3MB}, s30
        s_lshr_b32 s{S_P3NB}, s{S_IDX}, 1
        s_lshl_b32 s{S_P3T}, s{S_P3MB}, 2
        s_add_u32 s{S_P3T}, s{S_P3T}, s{S_LW}
        """)

    def p1_loader(self):
        a = self.a
        VX, VW, T = 4, 8, 12
        SI, XB, WB, SL = 41, 43, 44, 45
        a(f"""
        s_cmp_eq_u32 s{S_TYPE}, 2
        s_cbranch_scc1 L_p1l_sp
        s_mov_b32 s{SI}, 0
        s_lshl_b32 s{SL}, s{S_LW}, 12
        s_cmp_eq_u32 s{S_TYPE}, 0
        s_cselect_b32 s46, 2, 1
        s_cselect_b32 s47, 32, 16
        s_cselect_b32 s48, 16, 4
        s_lshr_b32 s30, s{S_LW}, 1
        s_lshl_b32 s30, s30, 6
        s_and_b32 s31, s{S_LW}, 1
        s_add_u32 s30, s30, s31
        s_lshl_b32 s31, s{S_LW}, 5
        s_cmp_eq_u32 s{S_TYPE}, 0
        s_cselect_b32 s30, s30, s31
        s_lshl_b32 s31, s{S_MB}, 7
        s_add_u32 s30, s30, s31
        s_mul_i32 s{XB}, s30, 1152
        s_mul_i32 s30, s{S_LW}, {16*3456}
        s_lshl_b32 s31, s{S_NB}, 8
        s_add_u32 s{WB}, s30, s31
        """)
        self.make_vx(VX, 4, "8", "s46", "s47", "s48", T)
        a(f"""
        v_lshrrev_b32 v{T}, 4, v2
        v_and_b32 v{T+1}, 15, v2
        v_lshlrev_b32 v{T+2}, 2, v{T}
        v_xor_b32 v{T+1}, v{T+1}, v{T+2}
        v_mul_u32_u24 v{T}, 3456, v{T}
        v_lshl_add_u32 v{VW}, v{T+1}, 4, v{T}
        v_add_u32 v{VW+1}, {4*3456-1024}, v{VW}
        v_add_u32 v{VW+2}, {2*(4*3456-1024)}, v{VW}
        v_add_u32 v{VW+3}, {3*(4*3456-1024)}, v{VW}
        s_waitcnt lgkmcnt(0)
        """)
        self.srd(8, P_AX, 2048 * 1152); self.srd(12, P_WQKV, 576 * 3456)
        a.label("L_p1l_issue")
        a(f"s_mov_b32 m0, s{SL}\ns_add_u32 s{SI}, s{SI}, 1")
        for n in range(4): a(f"buffer_load_dwordx4 v{VX+n}, s[8:11], s{XB} offen offset:{n*1024} lds")
        a(f"s_add_u32 m0, s{SL}, 16384\ns_add_u32 s{XB}, s{XB}, 128")
        for n in range(4): a(f"buffer_load_dwordx4 v{VW+n}, s[12:15], s{WB} offen offset:{n*1024} lds")
        a(f"""
        s_add_u32 s{WB}, s{WB}, {64*3456}
        s_add_u32 s{SL}, s{SL}, 32768
        s_sub_u32 s30, s{SL}, 163840
        s_cmp_ge_u32 s{SL}, 163840
        s_cselect_b32 s{SL}, s30, s{SL}
        s_cmp_lt_u32 s{SI}, 3
        s_cbranch_scc1 L_p1l_issue
        s_waitcnt vmcnt(16)
        s_barrier
        s_cmp_lt_u32 s{SI}, 9
        s_cbranch_scc1 L_p1l_issue
        """)
        a.label("L_p1l_sp")
        a("s_waitcnt lgkmcnt(0)")
        self.b1_loader()
        a(f"s_mov_b32 s40, 0\ns_cmp_eq_u32 s{S_TYPE}, 2\ns_cbranch_scc1 L_p1l_sp2\ns_waitcnt vmcnt(8)\ns_barrier")
        a.label("L_p1l_sp2")
        if not self.opt.get("nob"): self.b1_issue()
        a(f"s_cmp_eq_u32 s{S_TYPE}, 2\ns_cbranch_scc1 L_p1l_sp3\ns_waitcnt vmcnt({0 if self.opt.get('nob') else 6})\ns_barrier")
        a.label("L_p1l_sp3")
        if not self.opt.get("nob"): self.b1_issue()
        a("s_barrier")
        if not self.opt.get("nob"): self.b1_run()
        a("s_branch L_p1_fin")
        a.label("L_idle")
        a(f"""
        s_cmp_lg_u32 s{S_WAVE}, 11
        s_cbranch_scc1 L_nopf
        s_getpc_b64 s[30:31]
        """)
        a.label("L_pc")
        a(f"""
        s_lshl_b32 s32, s{S_IDX}, 10
        s_cmp_ge_u32 s32, L_end-L_pc-1024
        s_cbranch_scc1 L_nopf
        s_add_u32 s30, s30, s32
        s_addc_u32 s31, s31, 0
        v_mov_b32 v5, s31
        v_add_co_u32 v4, vcc, s30, v3
        s_nop 1
        v_addc_co_u32 v5, vcc, 0, v5, vcc
        global_load_dwordx4 v[140:143], v[4:5], off
        """)
        a.label("L_nopf")
        a("s_waitcnt lgkmcnt(0)")
        self.warm([(P_AX, 2048 * 1152), (P_WQKV, 576 * 3456)], 6, 140)
        self.srd(4, P_WS, WS_BYTES)
        a(f"""
        v_mov_b32 v8, 0
        v_mov_b32 v9, 0
        v_mov_b32 v10, 0
        v_mov_b32 v11, 0
        """)
        if not self.opt.get("notlb"):
            a(f"s_cmp_lg_u32 s{S_WAVE}, 10\ns_cbranch_scc1 L_notlb")
            pt = pad_touch()
            for i, p in enumerate(pt): a(f"s_mov_b32 s30, {p}\nv_writelane_b32 v9, s30, {i}")
            a(f"s_mov_b64 exec, {(1 << len(pt)) - 1}\nbuffer_load_dword v140, v9, s[4:7], 0 offen\ns_mov_b64 exec, 0x1ff\nv_lshlrev_b32 v9, 20, v2")
            a(f"global_load_dword v141, v9, s[{P_OUT}:{P_OUT+1}]\ns_mov_b64 exec, 7\nglobal_load_dword v141, v9, s[{P_BX}:{P_BX+1}]\ns_mov_b64 exec, 1")
            for p in (P_WO, P_LRE, P_LIM, P_BRE, P_BIM, P_CRE, P_CIM, P_LDT, P_DSK): a(f"global_load_dword v141, v8, s[{p}:{p+1}]")
            a("s_mov_b64 exec, -1")
            a.label("L_notlb")
        a(f"v_mov_b32 v13, 0\ns_cmp_eq_u32 s{S_TYPE}, 2\ns_cbranch_scc1 L_idle_sp")
        a("s_barrier\ns_barrier\ns_barrier")
        self.warm([(P_BX, 2048 * 1152), (P_BRE, 576 * 1152), (P_BIM, 576 * 1152)], 6, 140)
        a(f"s_barrier\ns_barrier\ns_barrier\ns_barrier\nglobal_load_dword v13, v8, s[{P_DBG}:{P_DBG+1}]\ns_barrier\ns_barrier\ns_waitcnt vmcnt(0)")
        a.label("L_idle_sp")
        a(f"""
        s_cmp_lg_u32 s{S_WAVE}, 8
        s_cbranch_scc1 L_idle_b
        v_lshlrev_b32 v9, 2, v2
        v_add_u32 v9, {LDS_W}, v9
        v_cmp_eq_u32 vcc, 8, v2
        v_mov_b32 v10, 8
        v_mov_b32 v144, v13
        v_cndmask_b32 v10, v8, v10, vcc
        ds_write_b32 v9, v10
        ds_write_b32 v9, v8 offset:2560
        ds_write_b32 v9, v8 offset:2816
        s_waitcnt lgkmcnt(0)
        """)
        a.label("L_idle_b")
        a("s_barrier")
        a(f"""
        s_lshl_b32 s30, s2, 4
        s_add_u32 s30, s30, s{S_WAVE}
        s_cmp_lg_u32 s30, {255*16+9}
        s_cbranch_scc1 L_idle_nz
        s_mov_b32 s30, {FL}
        """)
        for i in range(FLBYTES // 1024):
            a(f"buffer_store_dwordx4 v[8:11], v3, s[4:7], s30 offen offset:{(i%4)*1024} {WT}")
            if i % 4 == 3: a("s_add_u32 s30, s30, 4096")
        a(f"""
        s_waitcnt vmcnt(0)
        v_mov_b32 v12, 1
        s_mov_b64 exec, 1
        global_store_dword v8, v12, s[{P_DBG}:{P_DBG+1}] {WT}
        s_mov_b64 exec, -1
        """)
        a.label("L_idle_nz")
        self.dbg_check(20)

    def dbg_check(self, T):
        a = self.a
        a(f"s_cmp_lg_u32 s{S_WAVE}, 8\ns_cbranch_scc1 L_dbg_x\ns_mov_b32 s33, 0\nv_mov_b32 v{T}, 0")
        a.label("L_dbg_chk")
        a(f"""
        s_waitcnt vmcnt(0)
        v_readfirstlane_b32 s30, v144
        s_cmp_eq_u32 s30, 1
        s_cbranch_scc1 L_dbg_ok
        s_add_u32 s33, s33, 1
        s_cmp_gt_u32 s33, {SPIN_MAX}
        s_cbranch_scc1 L_dbg_ok
        s_sleep 8
        global_load_dword v144, v{T}, s[{P_DBG}:{P_DBG+1}] sc0 sc1
        s_branch L_dbg_chk
        """)
        a.label("L_dbg_ok")
        a(f"v_mov_b32 v{T}, {W_OK}\nv_mov_b32 v{T+1}, 1\nds_write_b32 v{T}, v{T+1}")
        a.label("L_dbg_x")
    def wait_ok(self, T):
        self.a(f"v_mov_b32 v{T}, {W_OK}")
        self.lds_spin(T, T + 1, 1, sleep=2)

    def kv_setup(self, T, VV, first):
        a = self.a
        a(f"""
        s_lshr_b32 s30, s{S_HD}, 1
        s_mul_i32 s30, s30, 9
        s_and_b32 s31, s{S_HD}, 1
        s_lshl_b32 s31, s31, 2
        s_add_u32 s36, s30, s31                  ; f
        s_add_u32 s30, s36, s{S_LW}
        s_lshl_b32 s30, s30, 10
        s_mul_i32 s31, {first}, {2*QS*1024}
        s_add_u32 s30, s30, s31
        s_add_u32 s{S_GK}, s30, {QKP + 144*1024}
        s_cmp_eq_u32 s{S_LW}, 0
        s_cselect_b32 s{S_K4}, 0, {(QS-5)*1024}
        s_add_u32 s{S_K4}, s{S_K4}, 4096
        s_mul_i32 s30, s{S_HD}, 288
        s_mul_i32 s31, s{S_LW}, {3*VS}
        s_add_u32 s30, s30, s31
        s_mul_i32 s31, {first}, {32*VS}
        s_add_u32 s30, s30, s31
        s_add_u32 s{S_GV}, s30, {VT}
        v_mul_u32_u24 v{T}, 27, v2
        v_lshrrev_b32 v{T}, 9, v{T}
        v_mul_u32_u24 v{VV}, 19, v{T}
        v_sub_u32 v{VV}, v2, v{VV}
        v_cmp_gt_u32 vcc, 18, v{VV}
        v_cmp_gt_u32 s[58:59], 3, v{T}
        v_cmp_gt_u32 s[60:61], 2, v{T}
        v_mul_u32_u24 v{T}, {VS}, v{T}
        v_lshl_add_u32 v{VV}, v{VV}, 4, v{T}
        s_and_b64 s[58:59], s[58:59], vcc
        s_and_b64 s[60:61], s[60:61], vcc
        s_cmp_eq_u32 s{S_LW}, 2
        s_cselect_b64 s[60:61], s[60:61], s[58:59]
        s_add_u32 s30, {first}, {C0}
        s_and_b32 s30, s30, 7
        s_mul_i32 s{S_LP}, s30, {CHB}
        v_mul_u32_u24 v{VV+1}, {VROW}, v1
        v_add_u32 v{VV+1}, {10240 + 288}, v{VV+1}
        """)
    def k_part(self):
        a = self.a; l1 = a.newlabel("L_kd")
        a(f"""
        s_lshl_b32 s31, s{S_LW}, 10
        s_add_u32 s31, s31, s{S_LP}
        s_mov_b32 m0, s31
        s_add_u32 s30, s{S_GK}, s{S_K4}
        buffer_load_dwordx4 v3, s[4:7], s{S_GK} offen {LDF} lds
        s_add_u32 m0, s31, 4096
        s_cmp_ge_u32 s{S_LW}, 2
        buffer_load_dwordx4 v3, s[4:7], s30 offen {LDF} lds
        s_cbranch_scc1 {l1}
        s_add_u32 m0, s31, 8192
        s_add_u32 s30, s{S_GK}, {(QS+3)*1024}
        buffer_load_dwordx4 v3, s[4:7], s30 offen {LDF} lds
        """)
        a.label(l1)
    def v_part(self, VV, ONES, T):
        a = self.a; l2 = a.newlabel("L_vd")
        a(f"""
        s_mul_i32 s31, s{S_LW}, {3*VROW}
        s_add_u32 s31, s31, s{S_LP}
        s_add_u32 m0, s31, 10240
        s_mov_b64 exec, s[58:59]
        buffer_load_dwordx4 v{VV}, s[4:7], s{S_GV} offen {LDF} lds
        s_add_u32 m0, s31, {10240 + 12*VROW}
        s_add_u32 s30, s{S_GV}, {12*VS}
        buffer_load_dwordx4 v{VV}, s[4:7], s30 offen {LDF} lds
        s_cmp_eq_u32 s{S_LW}, 3
        s_cbranch_scc1 {l2}
        s_add_u32 m0, s31, {10240 + 24*VROW}
        s_add_u32 s30, s{S_GV}, {24*VS}
        s_mov_b64 exec, s[60:61]
        buffer_load_dwordx4 v{VV}, s[4:7], s30 offen {LDF} lds
        """)
        a.label(l2)
        a(f"s_mov_b64 exec, -1\nv_add_u32 v{T}, s{S_LP}, v{VV+1}\nds_write_b128 v{T}, v[{ONES}:{ONES+3}]")
    def kv_next(self):
        self.a(f"""
        s_add_u32 s{S_GK}, s{S_GK}, {2*QS*1024}
        s_add_u32 s{S_GV}, s{S_GV}, {32*VS}
        s_add_u32 s{S_LP}, s{S_LP}, {CHB}
        s_cmp_eq_u32 s{S_LP}, {8*CHB}
        s_cselect_b32 s{S_LP}, 0, s{S_LP}
        """)
    def kv_half(self, grp, VV, ONES, T):
        a = self.a; l = a.newlabel("L_kh")
        a(f"s_cmp_lg_u32 s{grp}, 0\ns_cbranch_scc1 {l}v")
        self.k_part()
        a(f"s_branch {l}e")
        a.label(l + "v")
        self.v_part(VV, ONES, T)
        a.label(l + "e")
        self.kv_next()
    def poll_f1(self, lab, T, poller=False):
        a = self.a
        a(f"v_mov_b32 v{T+2}, {W_F1}")
        if poller:
            a(f"s_cmp_lg_u32 s{S_WAVE}, 8\ns_cbranch_scc1 {lab}_w")
            self.wait_ok(T)
            a(f"s_mul_i32 s34, s{S_HD}, {F1STRIDE}\ns_add_u32 s34, s34, {F1}\nv_and_b32 v{T}, {NSUB-1}, v2\nv_lshlrev_b32 v{T}, 7, v{T}")
            self.poll(lab, T + 1, T, "s34", want=str(864 // NSUB), sleep=int(self.opt.get("f1sleep", 4)))
            a(f"v_mov_b32 v{T}, 1\nds_write_b32 v{T+2}, v{T}")
            a.label(lab + "_w")
        self.lds_spin(T + 2, T + 1, 1, sleep=1)

    def wait_prog(self, val, T, sleep=4):
        a = self.a; lab = a.newlabel("L_pg")
        a(f"v_and_b32 v{T}, 7, v2\nv_lshlrev_b32 v{T}, 2, v{T}\nv_add_u32 v{T}, {W_PROG}, v{T}\ns_mov_b32 s33, 0\ns_mov_b32 s30, {FIN_BAD}")
        a.label(lab)
        a(f"""
        ds_read_b32 v{T+1}, v{T}
        s_add_u32 s33, s33, 1
        s_waitcnt lgkmcnt(0)
        v_cmp_gt_u32 vcc, {val}, v{T+1}
        s_cmp_gt_u32 s33, {SPIN_MAX*8}
        s_cbranch_scc1 {lab}x
        s_cbranch_vccz {lab}x
        s_sleep {sleep}
        s_branch {lab}
        """)
        a.label(lab + "x")
    def f4(self, n, T):
        a = self.a; lab = a.newlabel("L_f4")
        a(f"s_cmp_eq_u32 s50, 0\ns_cbranch_scc1 {lab}\ns_waitcnt vmcnt({n})")
        self.flag_store([36], T)
        a.label(lab)

    def attention(self):
        a = self.a
        QM, QL, IDX, AK, AV, AL, T0, T1 = 4, 8, 10, 11, 12, 13, 14, 15
        KM, KL, VF, O, S0, S1 = 16, 24, 28, 44, 60, 92
        LK, LV, LL, CA, CK, PW, VV, PC, PP, PV = 124, 125, 126, 127, 128, 129, 130, 132, 133, 134
        TQ, PAR, CH, IT, DK, GRP, FB, MC, MB_, MI, PM = 41, 42, 43, 44, 45, 46, 47, 48, 49, 50, 40
        HD = S_HD
        PR = {}
        a.label("L_p1_fin")
        a("s_waitcnt lgkmcnt(0)")
        self.srd(4, P_WS, WS_BYTES)
        a(f"s_lshr_b32 s{GRP}, s{S_WAVE}, 3\ns_xor_b32 s{GRP}, s{GRP}, 1")
        self.kv_setup(T0, VV, "0")
        a(f"""
        s_lshr_b32 s{TQ}, s{S_IDX}, 2
        s_lshl_b32 s{TQ}, s{TQ}, 3
        s_add_u32 s{TQ}, s{TQ}, s{S_WAVE}
        s_sub_u32 s{TQ}, s{TQ}, 4
        s_and_b32 s{PAR}, s{HD}, 1
        v_lshrrev_b32 v{T1}, 5, v2
        v_lshlrev_b32 v{T0}, 3, v1
        v_lshl_add_u32 v{LK}, v{T1}, 11, v{T0}
        s_lshl_b32 s30, s{PAR}, 10
        v_add_u32 v{LK}, s30, v{LK}
        s_mul_i32 s31, s{PAR}, 4092
        s_sub_u32 s31, 4096, s31
        v_lshl_add_u32 v{LL}, v2, 3, s31
        v_add_u32 v{AL}, s31, v{T0}              ; Q left voffset
        s_lshr_b32 s32, s{TQ}, 2
        s_mul_i32 s32, s32, {QS}
        s_add_u32 s32, s32, s36
        s_lshl_b32 s32, s32, 10
        s_lshl_b32 s30, s{S_LW}, 8
        s_add_u32 s32, s32, s30
        s_add_u32 s35, s32, {QKP}                ; Q soffset
        v_min_u32 v{AV}, 18, v1
        v_mul_u32_u24 v{T1}, {VROW}, v{T1}
        v_lshl_add_u32 v{LV}, v{AV}, 4, v{T1}
        v_add_u32 v{LV}, 10240, v{LV}
        v_cmp_lt_u32 vcc, 18, v1
        v_cmp_ne_u32 s[30:31], 28, v1
        s_and_b64 vcc, vcc, s[30:31]
        v_mov_b32 v{T1}, 0x100000
        v_mov_b32 v{IDX}, 0xdddd
        v_cndmask_b32 v{LV}, v{LV}, v{T1}, vcc
        v_mov_b32 v{KL}, 0x3f803f80
        v_mov_b32 v{KL+1}, 0x3f803f80
        v_mov_b32 v{KL+2}, 0x3f803f80
        v_mov_b32 v{KL+3}, 0x3f803f80
        s_lshl_b32 s30, s{S_WAVE}, 2
        s_add_u32 s30, s30, {W_PROG - 16}
        v_mov_b32 v{PW}, s30
        s_xor_b32 s30, s30, 16
        v_mov_b32 v{PP}, s30
        s_mov_b32 s62, 0
        s_mov_b32 s63, -1
        s_mov_b32 s{FB}, 0
        s_mov_b32 s{MC}, 1
        s_mov_b32 s{MB_}, {C0*CHB}
        """)
        a(f"s_xor_b32 s{PM}, s{GRP}, 1")
        self.stamp(4)
        self.poll_f1("L_pollF1a", S0, True)
        self.stamp(5); self.stamp(55, True)
        a(f"""
        buffer_load_dwordx2 v[{QM}:{QM+1}], v{LK}, s[4:7], s35 offen {LDF}
        buffer_load_dwordx2 v[{QM+2}:{QM+3}], v{LK}, s[4:7], s35 offen offset:1024 {LDF}
        buffer_load_dword v{QL}, v{AL}, s[4:7], s35 offen {LDF}
        """)
        a(f"v_mov_b32 v{CA}, {W_LAND}\nv_mov_b32 v{T1}, 2\ns_setprio 2\ns_cmp_lg_u32 s{GRP}, 0\ns_cbranch_scc1 L_kvd")
        self.k_part(); self.v_part(VV, KL, T0); self.kv_next()
        a("s_waitcnt vmcnt(0)")
        self.lds_add1(CA, T1)
        a("s_mov_b32 s35, 0")
        a.label("L_kv12")
        self.k_part(); self.v_part(VV, KL, T0); self.kv_next()
        a("s_add_u32 s35, s35, 1\ns_cmp_lt_u32 s35, 2\ns_cbranch_scc1 L_kv12\ns_branch L_kve")
        a.label("L_kvd")
        a("s_waitcnt vmcnt(0)")
        a.label("L_kve")
        self.lds_spin(CA, T0, 8)
        self.stamp(6)
        a.label("L_maxpass")
        MX = T1
        a(f"""
        v_add_u32 v{AK}, s{MB_}, v{LK}
        v_add_u32 v{AL}, s{MB_}, v{LL}
        v_mov_b32 v{QL+1}, 0
        v_mov_b32 v{MX}, 0xff800000
        s_mov_b32 s{MI}, 0
        """)
        def rdKm(t, p):
            off = (p // 2) * 5120 + (2 * (p % 2) + t) * 256
            a(f"ds_read_b64 v[{KM+4*t}:{KM+4*t+1}], v{AK} offset:{off}\nds_read_b64 v[{KM+4*t+2}:{KM+4*t+3}], v{AK} offset:{off+1024}")
        def rdKl(p): a(f"ds_read_b32 v{KL+2*(p%2)}, v{AL} offset:{(p//2)*5120 + (p%2)*512}")
        def rdV(n, p): a(f"ds_read_b128 v[{VF+4*n}:{VF+4*n+3}], v{AV} offset:{(p*8+n*2)*VROW}")
        def b2(N, p): a(f"v_mfma_f32_32x32x4_2b_bf16 v[{N}:{N+31}], v[{KL+2*(p%2)}:{KL+2*(p%2)+1}], v[{QL}:{QL+1}], 0")
        def mainm(N, t): a(f"v_mfma_f32_32x32x16_bf16 v[{N+16*t}:{N+16*t+15}], v[{KM+4*t}:{KM+4*t+3}], v[{QM}:{QM+3}], v[{N+16*t}:{N+16*t+15}]")
        def smf(n, S): a(f"v_smfmac_f32_32x32x32_bf16 v[{O}:{O+15}], v[{VF+4*n}:{VF+4*n+3}], v[{S+8*n}:{S+8*n+7}], v{IDX}")
        def E(S, lo, hi):
            for r in range(lo, hi): a(f"v_exp_f32 v{S+r}, v{S+r}")
        a.label("L_maxloop")
        rdKl(0); rdKm(0, 0); rdKm(1, 0)
        a(f"""
        s_and_b32 s30, s{MI}, 1
        s_mul_i32 s30, s30, 4096
        s_add_u32 s30, s30, 512
        s_and_b32 s31, s{MI}, 3
        s_cmp_eq_u32 s31, 3
        s_cselect_b32 s30, {CHB-5632}, s30
        s_add_u32 s{MI}, s{MI}, 1
        s_waitcnt lgkmcnt(0)
        """)
        b2(S0, 0)
        a(f"v_add_u32 v{AK}, s30, v{AK}\nv_add_u32 v{AL}, s30, v{AL}")
        for i in range(16): a(f"v_mov_b32 v{O+i}, 0")
        mainm(S0, 0); mainm(S0, 1)
        for i in range(8): a(f"v_mov_b32 v{S1+24+i}, 0")
        for i in range(4): a(f"v_mov_b32 v{VF+12+i}, 0")
        for i in range(16): a(f"v_max3_f32 v{MX}, v{S0+2*i}, v{S0+2*i+1}, v{MX}")
        a(f"""
        s_cmp_lt_u32 s{MI}, s{MC}
        s_cbranch_scc1 L_maxloop
        v_add_u32 v{AK}, {C0*CHB}, v{LK}
        v_add_u32 v{AL}, {C0*CHB}, v{LL}
        v_add_u32 v{AV}, {C0*CHB}, v{LV}
        v_mov_b32 v{T0}, v{MX}
        """)
        rdKl(0); rdKm(0, 0); rdKm(1, 0); rdKl(1)
        rdV(0, 0); rdV(1, 0); rdV(2, 0)
        a(f"""
        v_permlane32_swap_b32 v{T0}, v{MX}
        s_mov_b32 s{CH}, {C0}
        s_mov_b32 s{IT}, 0
        v_max_f32 v{MX}, v{T0}, v{MX}
        v_cvt_pk_bf16_f32 v{T0}, -v{MX}, 0
        v_lshlrev_b32 v{T0}, 16, v{T0}
        v_sub_f32 v{T0}, -v{MX}, v{T0}
        v_cvt_pk_bf16_f32 v{QL+1}, -v{MX}, v{T0}
        v_mov_b32 v{CA}, {W_LAND}
        v_mov_b32 v{PC}, 0
        v_mov_b32 v{PV}, 0
        s_waitcnt lgkmcnt(3)
        """)
        b2(S0, 0)
        a("s_nop 15\ns_nop 1")
        mainm(S0, 0); mainm(S0, 1)
        rdKm(0, 1); rdKm(1, 1)
        a("s_nop 5\ns_waitcnt lgkmcnt(0)")
        self.stamp(7)
        a.raw(".p2align 6")
        a.label("L_loop")
        for i in range(4):
            C, N = (S0, S1) if i % 2 == 0 else (S1, S0)
            if i == 0:
                a(f"""
                s_add_u32 s30, s{CH}, 1
                s_and_b32 s30, s30, 7
                s_sub_u32 s31, s30, s{CH}
                s_mul_i32 s{DK}, s31, {CHB}
                s_mov_b32 s{CH}, s30
                """)
            E(C, 0, 2)
            a("s_waitcnt lgkmcnt(5)")
            smf(3, N); rdV(3, i)
            extra = 0
            if i == 1:
                a(f"s_bitcmp1_b32 s{PM}, s{IT}\ns_cbranch_scc1 L_prio")
                a.label("L_prioret")
                a(f"ds_read_b32 v{CK}, v{CA} offset:4"); extra = 1
            if i % 2 == 1:
                a(f"v_add_u32 v{PC}, 1, v{PC}\nds_read_b32 v{PV}, v{PP}\nds_write_b32 v{PW}, v{PC}"); extra += 2
            if i % 2 == 0 and self.opt.get("ladder") != "off":
                a(f"v_cmp_gt_u32 vcc, v{PC}, v{PV}\ns_setprio 2\ns_cbranch_vccz L_pp{i}\ns_setprio 1")
                a.label(f"L_pp{i}")
            if i == 3: a(f"v_add_u32 v{AV}, s{DK}, v{AV}")
            if i == 2:
                a(f"""
                v_readfirstlane_b32 s30, v{CK}
                v_add_u32 v{AK}, s{DK}, v{AK}
                v_add_u32 v{AL}, s{DK}, v{AL}
                v_add_u32 v{CA}, 4, v{CA}
                s_cmp_lt_u32 s30, 8
                s_cbranch_scc1 L_wait
                """)
                a.label("L_waitret")
            E(C, 2, 6)
            b2(N, i + 1)
            rdKl((i + 2) % 4)
            E(C, 6, 12)
            smf(0, C); rdV(0, (i + 1) % 4)
            E(C, 12, 18)
            smf(1, C); rdV(1, (i + 1) % 4)
            E(C, 18, 22)
            a(f"s_waitcnt lgkmcnt({4 + extra})")
            mainm(N, 0); rdKm(0, (i + 2) % 4)
            E(C, 22, 26)
            smf(2, C); rdV(2, (i + 1) % 4)
            E(C, 26, 30)
            mainm(N, 1); rdKm(1, (i + 2) % 4)
            if i == 3: a(f"s_add_u32 s{IT}, s{IT}, 1\ns_cmp_lt_u32 s{IT}, 8")
            E(C, 30, 32)
        a("s_cbranch_scc1 L_loop")
        a("s_waitcnt lgkmcnt(0)\ns_nop 0")
        smf(3, S1)
        self.stamp(8); self.stamp(56, True)
        L, SUM = T0, T1
        a(f"s_nop 11\nv_cndmask_b32 v{L}, v{O+10}, v{O+12}, s[62:63]\nv_add_f32 v{SUM}, |v{O}|, |v{O+1}|")
        for r in range(2, 10): a(f"v_add_f32 v{SUM}, v{SUM}, |v{O+r}|")
        a(f"""
        s_mov_b32 s30, 0x5d800000
        s_mov_b32 s31, 0x7f7fffff
        v_cmp_nge_f32 vcc, s30, v{L}
        v_cmp_nge_f32 s[34:35], s31, v{SUM}
        s_or_b64 vcc, vcc, s[34:35]
        s_cmp_lg_u32 s{FB}, 0
        s_cbranch_scc1 L_fin
        s_cmp_lg_u64 vcc, 0
        s_cbranch_scc1 L_unsafe
        """)
        a.label("L_fin")
        a(f"v_rcp_f32 v{L}, v{L}\ns_nop 0")
        for r in range(10): a(f"v_mul_f32 v{O+r}, v{O+r}, v{L}")
        for r in range(5): a(f"v_cvt_pk_bf16_f32 v{S0+r}, v{O+2*r}, v{O+2*r+1}")
        a(f"""
        s_mul_i32 s30, s{TQ}, {OS}
        s_add_u32 s30, s30, {OW}
        s_lshl_b32 s31, s{HD}, 10
        s_add_u32 s31, s31, s30
        buffer_store_dwordx4 v[{S0}:{S0+3}], v3, s[4:7], s31 offen {WT}
        s_lshl_b32 s31, s{HD}, 7
        s_add_u32 s31, s31, s30
        s_add_u32 s31, s31, 32768
        v_lshlrev_b32 v{T0}, 2, v2
        s_mov_b32 exec_hi, 0
        buffer_store_dword v{S0+4}, v{T0}, s[4:7], s31 offen {WT}
        s_mov_b32 exec_hi, -1
        v_mov_b32 v{T1}, {FIN_OK}
        ds_write_b32 v{PW}, v{T1}
        s_lshl_b32 s36, s{TQ}, 5
        s_add_u32 s36, s36, s{HD}
        s_lshl_b32 s36, s36, 2
        s_add_u32 s36, s36, {F4}
        s_waitcnt vmcnt(0)
        """)
        self.flag_store([36], AK)
        self.stamp(9); self.stamp(57, True)
        a(f"s_cmp_lg_u32 s{FB}, 0\ns_cbranch_scc1 L_redo_end")
        a.label("L_att_end")
        self.wait_prog(FIN_OK, AK)
        a(f"v_cmp_eq_u32 vcc, s30, v{AK+1}\ns_cbranch_vccz L_b3l\ns_branch L_redo")
        a.label("L_prio")
        a(f"s_cmp_lg_u32 s{IT}, 0\ns_cbranch_scc1 L_prio1")
        a(f"""
        v_lshl_add_u32 v{T0}, v2, 2, v{CA}
        v_mov_b32 v{T1}, 2
        s_waitcnt vmcnt(0)
        s_mov_b64 exec, 6
        ds_add_u32 v{T0}, v{T1}
        s_mov_b64 exec, -1
        s_waitcnt lgkmcnt(0)
        s_branch L_prioret
        """)
        a.label("L_prio1")
        for k, p in PR.items():
            a(f"s_setprio {p}\ns_cmp_eq_u32 s{IT}, {k}\ns_cbranch_scc1 L_prioret")
        a("s_branch L_prioret")
        a.label("L_wait")
        self.lds_spin(CA, CK, 8)
        a("s_branch L_waitret")
        a.label("L_unsafe")
        a(f"s_mov_b32 s{FB}, 1\nv_mov_b32 v{T1}, {FIN_BAD}\nds_write_b32 v{PW}, v{T1}")
        a.label("L_redo")
        a("s_waitcnt lgkmcnt(0)\ns_barrier")
        self.kv_setup(T0, VV, "0")
        for i in range(4): a(f"v_mov_b32 v{S0+i}, 0x3f803f80")
        a("s_mov_b32 s35, 0")
        a.label("L_redo1")
        self.kv_half(GRP, VV, S0, T0)
        a(f"""
        s_add_u32 s35, s35, 1
        s_cmp_lt_u32 s35, 8
        s_cbranch_scc1 L_redo1
        s_waitcnt vmcnt(0) lgkmcnt(0)
        s_barrier
        s_cmp_eq_u32 s{FB}, 0
        s_cbranch_scc1 L_redo_end
        s_mov_b32 s{MC}, 32
        s_mov_b32 s{MB_}, 0
        s_mov_b32 s{PM}, 0
        v_mov_b32 v{PW}, {LDS_W + 128}
        s_branch L_maxpass
        """)
        a.label("L_redo_end")
        a("s_waitcnt lgkmcnt(0)\ns_barrier\ns_branch L_b3l")

    WA, ONE, BC = 156, 157, 47
    def arrive(self, T):
        a = self.a
        a(f"s_add_u32 s{self.BC}, s{self.BC}, 4")
        self.lds_add1(self.WA, self.ONE)
    def bar(self, T):
        self.arrive(T)
        self.lds_spin(self.WA, T, f"s{self.BC}")
    def gemm_cons(self, name, N, T, CW, rl, mfl, nfree, hooks={}):
        a = self.a
        self.lds_spin(CW, T, 4)
        a(f"ds_read_b32 v{T}, v{CW} offset:4")
        for x in rl(0): a(x)
        for s in range(N - 1):
            mf = mfl(s); p = f"{name}_{s}"
            a("s_waitcnt lgkmcnt(0)")
            a(f"v_readfirstlane_b32 s32, v{T}")
            a(mf[0])
            self.stampx(16)
            if s < nfree: self.lds_add1(CW, self.ONE, 256 + 4 * s)
            a(f"s_cmp_lt_u32 s32, 4\ns_cbranch_scc1 {p}s")
            a.label(p + "r")
            self.stubs.append((p, CW, T, 4 * (s + 1)))
            oth = rl(s + 1) + ([f"ds_read_b32 v{T}, v{CW} offset:{4*(s+2)}"] if s + 2 < N else [])
            ilv(a, mf[1:8], oth)
            if s in hooks: hooks[s]()
        a("s_waitcnt lgkmcnt(0)")
        if N - 1 < nfree: self.lds_add1(CW, self.ONE, 256 + 4 * (N - 1))
        for m in mfl(N - 1): a(m)
    def emit_stubs(self):
        a = self.a
        for p, CW, T, off in self.stubs:
            a.label(p + "s")
            self.lds_spin(CW, T, 4, off)
            a(f"s_branch {p}r")
    def gemm_load(self, name, first, N, nslot, lag, CW, ONE, T, issue, sig0=None):
        a = self.a
        a(f"s_mov_b32 s40, {first}\nv_add_u32 v{CW}, {4*(first-lag)}, v{CW}")
        a.label(name)
        sig0 = first if sig0 is None else sig0
        a(f"s_cmp_lt_u32 s40, {sig0 + lag}\ns_cbranch_scc1 {name}n\ns_waitcnt vmcnt({6*(lag-1)})")
        self.lds_add1(CW, ONE)
        a.label(name + "n")
        a(f"s_cmp_lt_u32 s40, {nslot}\ns_cbranch_scc1 {name}i")
        self.lds_spin(CW, T, 4, 256 - 4 * (nslot - lag))
        a.label(name + "i")
        issue()
        a(f"s_add_u32 s40, s40, 1\nv_add_u32 v{CW}, 4, v{CW}\ns_cmp_lt_u32 s40, {N}\ns_cbranch_scc1 {name}")
        for j in range(lag):
            a(f"s_waitcnt vmcnt({6*(lag-1-j)})")
            self.lds_add1(CW, ONE, 4 * j)
    def b1_loader(self):
        a = self.a
        VX, VB, CW, ONE, T = 60, 64, 66, 67, 68
        XB, WB, SL, NS = 16, 17, 18, 19
        self.make_vx(VX, 4, "16", "1", "8", "4", T)
        self.make_vx(VB, 2, "4", "1", "16", "8", T)
        self.srd(8, P_BX, 2048 * 1152)
        a(f"""
        s_cmp_lt_u32 s{S_LW}, 2
        s_cselect_b32 s12, s{P_BRE}, s{P_BIM}
        s_cselect_b32 s13, s{P_BRE+1}, s{P_BIM+1}
        s_and_b32 s13, s13, 0xffff
        s_mov_b32 s14, {576*1152}
        s_mov_b32 s15, 0x20000
        s_lshl_b32 s30, s{S_MB}, 7
        s_lshl_b32 s31, s{S_LW}, 5
        s_add_u32 s30, s30, s31
        s_mul_i32 s{XB}, s30, 1152
        s_cmp_eq_u32 s{S_TYPE}, 2
        s_cselect_b32 s30, s{S_CHA}, s{S_CHB}
        s_cselect_b32 s{NS}, 18, 9
        s_lshl_b32 s30, s30, 5
        s_and_b32 s31, s{S_LW}, 1
        s_lshl_b32 s31, s31, 4
        s_add_u32 s30, s30, s31
        s_mul_i32 s{WB}, s30, 1152
        s_mov_b32 s{SL}, 0
        v_mov_b32 v{CW}, {W_FULL}
        v_mov_b32 v{ONE}, 1
        """)
        def issue():
            a(f"s_lshl_b32 s30, s{S_LW}, 12\ns_add_u32 m0, s30, s{SL}\ns_lshl_b32 s30, s{S_LW}, 11")
            for n in range(4): a(f"buffer_load_dwordx4 v{VX+n}, s[8:11], s{XB} offen offset:{n*1024} lds")
            a(f"s_add_u32 s30, s30, s{SL}\ns_add_u32 m0, s30, 16384\ns_add_u32 s{XB}, s{XB}, 128")
            for n in range(2): a(f"buffer_load_dwordx4 v{VB+n}, s[12:15], s{WB} offen offset:{n*1024} lds")
            a(f"""
            s_add_u32 s{WB}, s{WB}, 128
            s_add_u32 s{SL}, s{SL}, {BSLOT}
            s_cmp_eq_u32 s{SL}, {4*BSLOT}
            s_cselect_b32 s{SL}, 0, s{SL}
            """)
        self.b1_issue = issue
        def run():
            a.label("L_l1job")
            self.gemm_load("L_l1", 2, 9, 4, 3, CW, ONE, T, issue, sig0=0)
            a(f"""
            s_cmp_eq_u32 s{NS}, 9
            s_cbranch_scc1 L_l1end
            s_mov_b32 s{NS}, 9
            s_sub_u32 s{XB}, s{XB}, {9*128}
            s_sub_u32 s30, s{S_CHA}, s{S_CHB}
            s_mul_i32 s30, s30, {32*1152}
            s_add_u32 s30, s30, {9*128}
            s_sub_u32 s{WB}, s{WB}, s30
            s_mov_b32 s{SL}, 0
            v_mov_b32 v{CW}, {W_FULL + 36}
            """)
            self.lds_spin(CW, T, 4, 252)
            issue(); issue()
            a("s_branch L_l1job")
            a.label("L_l1end")
        self.b1_run = run

    def aux(self):
        a = self.a
        AX, AW, FX, ACC, T = 4, 8, 16, 80, 148
        SS, SLOT, DL, WM, WN = 40, 41, 42, 43, 44
        a.label("L_aux")
        a(f"""
        s_setprio 3
        s_mov_b32 s{S_HALF}, 0
        s_mov_b32 s{S_CH}, s{S_CHA}
        s_mov_b32 s62, 0
        s_mov_b32 s63, -1
        s_waitcnt lgkmcnt(0)
        """)
        self.srd(4, P_WS, WS_BYTES)
        a(f"s_cmp_eq_u32 s{S_TYPE}, 2\ns_cbranch_scc1 L_aux_sp")
        a(f"s_lshr_b32 s{WM}, s{S_WAVE}, 1\ns_and_b32 s{WN}, s{S_WAVE}, 1\ns_lshl_b32 s30, s{WM}, 13")
        self.swz(AX, T, "s30")
        a(f"""
        v_bfe_u32 v{T+2}, v2, 2, 2
        v_lshl_add_u32 v{T+3}, v{T+1}, 3, v{T+2}
        v_lshlrev_b32 v{T+3}, 8, v{T+3}
        v_bfe_u32 v{T+4}, v2, 4, 1
        v_lshl_add_u32 v{T+3}, v{T+4}, 5, v{T+3}
        v_and_b32 v{T+4}, 3, v2
        v_lshl_add_u32 v{T+3}, v{T+4}, 3, v{T+3}
        v_add_u32 v{T+3}, 16384, v{T+3}
        s_lshl_b32 s30, s{WN}, 1
        v_xor_b32 v{T+4}, s30, v{T+2}
        v_lshl_add_u32 v{AW}, v{T+4}, 6, v{T+3}
        v_xor_b32 v{AW+1}, 64, v{AW}
        """)
        for i in range(64): a(f"v_mov_b32 v{ACC+i}, 0")
        a(f"s_mov_b32 s{SS}, 0\ns_mov_b32 s{SLOT}, 0\ns_barrier")
        self.stampx(16, True); self.stamp(60, True)
        def nextslot(stride, total):
            a(f"""
            s_add_u32 s30, s{SLOT}, {stride}
            s_cmp_eq_u32 s30, {total}
            s_cselect_b32 s30, 0, s30
            s_sub_u32 s{DL}, s30, s{SLOT}
            s_mov_b32 s{SLOT}, s30
            s_add_u32 s{SS}, s{SS}, 1
            """)
        def reads(s):
            l = [f"ds_read_b128 v[{FX+s*16+mt*4}:{FX+s*16+mt*4+3}], v{AX+s} offset:{mt*4096}" for mt in range(2)]
            for nt in range(2):
                for hf in range(2):
                    r = FX + s * 16 + 8 + nt * 4 + hf * 2
                    l.append(f"ds_read_b64_tr_b16 v[{r}:{r+1}], v{AW+nt} offset:{s*4096 + hf*1024}")
            return l
        for x in reads(0) + reads(1): a(x)
        a(f"s_cmp_eq_u32 s{S_TYPE}, 1\ns_cbranch_scc1 L_a1v")
        def a1loop(vtype, lab):
            a.label(lab)
            for s in range(4):
                a("s_waitcnt lgkmcnt(6)")
                if s == 2:
                    a(f"s_cmp_lt_u32 s{SS}, 9\ns_cbranch_scc1 {lab}b\ns_waitcnt lgkmcnt(0)")
                    a.label(lab + "b")
                    a("s_barrier")
                    self.stampx(16)
                mf = []
                for mt in range(2):
                    for nt in range(2):
                        d = ACC + (mt * 2 + nt) * 16
                        x = f"v[{FX+s*16+mt*4}:{FX+s*16+mt*4+3}]"; w = f"v[{FX+s*16+8+nt*4}:{FX+s*16+8+nt*4+3}]"
                        A, B = (x, w) if vtype else (w, x)
                        mf.append(f"v_mfma_f32_32x32x16_bf16 v[{d}:{d+15}], {A}, {B}, v[{d}:{d+15}]")
                ilv(a, mf, reads((s + 2) % 4))
                if s == 0: nextslot(32768, 163840)
                if s == 1:
                    for r in (AX, AX + 1, AX + 2, AX + 3, AW, AW + 1): a(f"v_add_u32 v{r}, s{DL}, v{r}")
            a(f"s_cmp_lt_u32 s{SS}, 9\ns_cbranch_scc1 {lab}")
        a1loop(False, "L_a1qk")
        self.stamp(1)
        a(f"""
        s_lshl_b32 s30, s{S_NB}, 5
        s_lshl_b32 s31, s{WN}, 4
        s_add_u32 s30, s30, s31
        s_mul_i32 s31, s{S_MB}, {QS}
        s_add_u32 s31, s31, s30
        s_lshl_b32 s31, s31, 10
        s_lshl_b32 s32, s{WM}, 9
        s_add_u32 s31, s31, s32
        s_add_u32 s31, s31, {QKP}
        v_lshlrev_b32 v{T+2}, 4, v1
        v_lshl_add_u32 v{T+2}, v{T+1}, 10, v{T+2}
        s_mov_b32 s32, {QSCALE}
        s_cmp_ge_u32 s30, 144
        s_cselect_b32 s32, 1.0, s32
        s_mov_b32 s33, s32
        s_waitcnt lgkmcnt(0)
        """)
        for nt in range(2):
            for g in range(4):
                o = FX + (nt * 4 + g) * 4
                for mt in range(2):
                    d = ACC + (mt * 2 + nt) * 16 + 4 * g
                    a(f"v_pk_mul_f32 v[{d}:{d+1}], v[{d}:{d+1}], s[32:33]\nv_pk_mul_f32 v[{d+2}:{d+3}], v[{d+2}:{d+3}], s[32:33]")
                for mt in range(2):
                    d = ACC + (mt * 2 + nt) * 16 + 4 * g
                    a(f"v_cvt_pk_bf16_f32 v{o+2*mt}, v{d}, v{d+1}\nv_cvt_pk_bf16_f32 v{o+2*mt+1}, v{d+2}, v{d+3}")
                a(f"buffer_store_dwordx4 v[{o}:{o+3}], v{T+2}, s[4:7], s31 offen offset:{(g%2)*2048} {WT}")
                if g % 2 == 1: a("s_add_u32 s31, s31, 4096")
        a("s_branch L_a1done")
        a1loop(True, "L_a1v")
        self.stamp(1)
        a(f"""
        s_sub_u32 s30, s{S_NB}, 9
        s_lshl_b32 s30, s30, 7
        s_lshl_b32 s31, s{WN}, 6
        s_add_u32 s30, s30, s31
        s_lshl_b32 s31, s{S_MB}, 4
        s_lshl_b32 s32, s{WM}, 3
        s_add_u32 s31, s31, s32
        s_mul_i32 s31, s31, {VS}
        s_lshl_b32 s32, s30, 4
        s_add_u32 s31, s31, s32
        s_add_u32 s31, s31, {VT}
        v_mul_u32_u24 v{T+2}, {VS}, v{T+1}
        v_lshl_add_u32 v{T+2}, v1, 4, v{T+2}
        s_waitcnt lgkmcnt(0)
        s_cmp_ge_u32 s30, 576
        s_cbranch_scc1 L_a1done
        """)
        for mt in range(2):
            for m in range(2):
                for nt in range(2):
                    d = ACC + (mt * 2 + nt) * 16 + 8 * m
                    for r in range(4): a(f"v_cvt_pk_bf16_f32 v{d+r}, v{d+2*r}, v{d+2*r+1}")
                    a(f"buffer_store_dwordx4 v[{d}:{d+3}], v{T+2}, s[4:7], s31 offen offset:{nt*512} {WT}")
                a(f"s_add_u32 s31, s31, {2*VS}")
        a.label("L_a1done")
        self.stamp(2); self.stamp(59, True)
        if self.opt.get("drain1"): a("s_waitcnt vmcnt(0)"); self.stamp(7)
        a(f"s_mov_b32 s{S_HALF}, 1\ns_mov_b32 s{S_CH}, s{S_CHB}\ns_branch L_b1pre")
        a.label("L_aux_sp")
        a("s_barrier")
        AB, BF, WA, ONE, AC1, CW, RAW, AX2, AB2 = 8, 16, self.WA, self.ONE, 112, 155, 164, 144, 148
        T = 158; BC = self.BC
        a.label("L_b1pre")
        a(f"s_mov_b32 s{BC}, 0\nv_mov_b32 v{WA}, {W_BAR}\nv_mov_b32 v{ONE}, 1\nv_mov_b32 v{CW}, {W_FULL}\ns_lshl_b32 s48, s{S_LW}, 12\ns_lshl_b32 s49, s{S_LW}, 11")
        self.swz(AB, T, 16384)
        a(f"s_sub_u32 s30, s48, 16384")
        for s in range(4): a(f"v_add_u32 v{AX+s}, s30, v{AB+s}")
        def publish():
            a(f"""
            s_cmp_eq_u32 s{S_TYPE}, 2
            s_cbranch_scc1 L_pubx
            s_lshl_b32 s30, s{S_NB}, 7
            s_add_u32 s31, s30, 128
            s_cmp_eq_u32 s{S_TYPE}, 1
            s_cselect_b32 s32, 1152, 0
            v_mul_u32_u24 v{T+2}, 18, v2
            v_add_u32 v{T+2}, s32, v{T+2}
            v_add_u32 v{T+3}, 18, v{T+2}
            v_max_u32 v{T+2}, s30, v{T+2}
            v_min_u32 v{T+3}, s31, v{T+3}
            v_min_u32 v{T+3}, 0x6c0, v{T+3}
            v_cmp_lt_u32 vcc, v{T+2}, v{T+3}
            v_sub_u32 v{T+2}, v{T+3}, v{T+2}
            v_mul_u32_u24 v{T+3}, {F1STRIDE}, v1
            s_and_b32 s31, s{S_MB}, {NSUB-1}
            s_lshl_b32 s31, s31, 7
            s_add_u32 s31, s31, {F1}
            """)
            self.wait_ok(T + 4)
            a(f"s_waitcnt vmcnt(3)")
            self.stamp(9); self.stamp(52, True)
            a(f"""
            s_mov_b64 exec, 1
            ds_add_rtn_u32 v{T+1}, v{WA}, v{ONE} offset:4
            s_mov_b64 exec, -1
            s_waitcnt lgkmcnt(0)
            v_readfirstlane_b32 s35, v{T+1}
            s_cmp_lg_u32 s35, 3
            s_cbranch_scc1 L_pubx
            s_mov_b64 exec, vcc
            buffer_atomic_add v{T+2}, v{T+3}, s[4:7], s31 offen sc1
            s_mov_b64 exec, -1
            """)
            if self.opt.get("rt"): self.stamp(53, True); a("s_waitcnt vmcnt(0)"); self.stamp(54, True)
            a.label("L_pubx")
        a.label("L_b1")
        for s in range(4): a(f"v_add_u32 v{AB2+s}, {2*BSLOT}, v{AB+s}\nv_add_u32 v{AX2+s}, {2*BSLOT}, v{AX+s}")
        a(f"""
        s_lshl_b32 s30, s{S_CH}, 6
        v_lshl_add_u32 v{T+4}, v1, 1, s30
        global_load_ushort v{RAW}, v{T+4}, s[{P_LRE}:{P_LRE+1}]
        global_load_ushort v{RAW+1}, v{T+4}, s[{P_LIM}:{P_LIM+1}]
        global_load_ushort v{RAW+2}, v{T+4}, s[{P_LDT}:{P_LDT+1}]
        """)
        if self.opt.get("nob"): publish(); a("s_branch L_b1done")
        def rl(st):
            l = []; ax, ab = (AX, AB) if st % 4 < 2 else (AX2, AB2); off = (st % 2) * BSLOT
            for s in range(4):
                b = BF + (st % 2) * 48 + s * 12
                l.append(f"ds_read_b128 v[{b}:{b+3}], v{ax+s} offset:{off}")
                for nt in range(2): l.append(f"ds_read_b128 v[{b+4+nt*4}:{b+7+nt*4}], v{ab+s} offset:{off + nt*4096}")
            return l
        def mfl(st):
            l = []
            for s in range(4):
                b = BF + (st % 2) * 48 + s * 12
                for nt in range(2):
                    d = AC1 + nt * 16; c = "0" if st == 0 and s == 0 else f"v[{d}:{d+15}]"
                    l.append(f"v_mfma_f32_32x32x16_bf16 v[{d}:{d+15}], v[{b}:{b+3}], v[{b+4+nt*4}:{b+7+nt*4}], {c}")
            return l
        self.gemm_cons("L_g1", 9, T, CW, rl, mfl, 9, {} if self.opt.get("nob") else {int(self.opt.get("pubat", 0)): publish})
        a(f"v_add_u32 v{CW}, 36, v{CW}\ns_waitcnt vmcnt(0)")
        self.stamp(3)
        LT_ = 144
        for i in range(3): a(f"v_mov_b32 v{LT_+i}, v{RAW+i}")
        self.lam_calc(LT_)
        for t in range(16):
            u, w, d = AC1 + t, AC1 + 16 + t, BS + 2 * t
            a(f"""
            v_mul_f32 v{d}, v{CR}, v{u}
            v_mul_f32 v{d+1}, v{CR}, v{w}
            v_fma_f32 v{d}, -v{CI}, v{w}, v{d}
            v_fma_f32 v{d+1}, v{CI}, v{u}, v{d+1}
            """)
            if t >= 1:
                g0 = BS if t == 1 else T + 2 + 2 * (t % 2); g1 = T + 2 + 2 * ((t + 1) % 2)
                self.cmac(g1, LR, g0, d)
        GR = T + 2; TT = T + 4
        a(f"""
        s_lshl_b32 s31, s{S_WAVE}, 9
        s_add_u32 s30, s31, {LDS_SCR}
        v_lshl_add_u32 v{TT}, v2, 3, s30
        ds_write_b64 v{TT}, v[{GR}:{GR+1}]
        v_lshlrev_b32 v{TT+1}, 3, v2
        v_add_u32 v{TT+1}, {LDS_SCR - 256}, v{TT+1}
        """)
        self.bar(T)
        EV = BF
        for j in range(8): a(f"ds_read_b64 v[{EV+2*j}:{EV+2*j+1}], v{TT+1} offset:{j*256}")
        a("s_waitcnt lgkmcnt(0)")
        self.partb(EV, T)
        a(f"s_cmp_lg_u32 s{S_HALF}, 0\ns_cbranch_scc1 L_b1done")
        def spill(op):
            a(f"s_lshl_b32 s30, s2, 2\ns_add_u32 s30, s30, s{S_WAVE}\ns_mul_i32 s30, s30, {12*1024}\ns_add_u32 s30, s30, {SPILL}")
            for i in range(10):
                a(f"buffer_{op}_dwordx4 v[{BS+4*i}:{BS+4*i+3}], v3, s[4:7], s30 offen offset:{(i%4)*1024}")
                if i % 4 == 3: a("s_add_u32 s30, s30, 4096")
            a(f"buffer_{op}_dwordx2 v[{BS+40}:{BS+41}], v3, s[4:7], s30 offen offset:2048\ns_waitcnt vmcnt(0)")
        spill("store")
        a(f"s_mov_b32 s{S_HALF}, 1\ns_mov_b32 s{S_CH}, s{S_CHB}\ns_branch L_b1")
        a.label("L_b1done")
        self.stamp(4)
        VV, ONES = 12, 16
        self.poll_f1("L_pollF1x", T)
        self.kv_setup(T, VV, "3")
        for i in range(4): a(f"v_mov_b32 v{ONES+i}, 0x3f803f80")
        a("s_mov_b32 s35, 0")
        a.label("L_auxkv")
        self.k_part(); self.v_part(VV, ONES, T); self.kv_next()
        a(f"""
        s_add_u32 s35, s35, 1
        s_cmp_lt_u32 s35, 5
        s_cbranch_scc1 L_auxkv
        v_lshlrev_b32 v{T}, 2, v2
        v_add_u32 v{T}, {W_LAND + 12}, v{T}
        v_mov_b32 v{T+1}, 2
        s_waitcnt vmcnt(0)
        s_mov_b64 exec, 31
        ds_add_u32 v{T}, v{T+1}
        s_mov_b64 exec, -1
        """)
        self.stamp(5)
        if self.opt.get("nob"): a("s_branch L_exit")
        a.label("L_p2")
        self.pass2(BF, T)
        a(f"s_cmp_lg_u32 s{S_TYPE}, 2\ns_cbranch_scc1 L_p2end\ns_cmp_eq_u32 s{S_CH}, s{S_CHA}\ns_cbranch_scc1 L_p2end")
        spill("load")
        a(f"s_mov_b32 s{S_CH}, s{S_CHA}\ns_branch L_p2")
        a.label("L_p2end")
        self.stamp(6)
        self.warm([(P_CRE, 576 * 1152), (P_CIM, 576 * 1152), (P_WO, 576 * 1152)], T, 16)
        self.p3_ids()
        self.p3(T)

    def cmac(self, d, m, g, c):
        self.a(f"v_pk_fma_f32 v[{d}:{d+1}], v[{m}:{m+1}], v[{g}:{g+1}], v[{c}:{c+1}] op_sel_hi:[0,1,1]")
        self.a(f"v_pk_fma_f32 v[{d}:{d+1}], v[{m}:{m+1}], v[{g}:{g+1}], v[{d}:{d+1}] op_sel:[1,1,0] op_sel_hi:[1,0,1] neg_lo:[1,0,0]")
    def lam_calc(self, T):
        a = self.a; L2E = f32(math.log2(math.e))
        a(f"""
        v_lshlrev_b32 v{T}, 16, v{T}
        v_lshlrev_b32 v{T+1}, 16, v{T+1}
        v_lshlrev_b32 v{T+2}, 16, v{T+2}
        v_mul_f32 v{T+2}, {L2E}, v{T+2}
        v_exp_f32 v{T+2}, v{T+2}
        s_nop 0
        v_cvt_pk_bf16_f32 v{T+2}, v{T+2}, v{T+2}
        v_lshlrev_b32 v{T+2}, 16, v{T+2}
        v_mul_f32 v{T+3}, v{T+2}, v{T}
        v_mul_f32 v{T+4}, v{T+2}, v{T+1}
        v_mul_f32 v{T+3}, {L2E}, v{T+3}
        v_mul_f32 v{T+4}, {f32(1/(2*math.pi))}, v{T+4}
        v_exp_f32 v{T+3}, v{T+3}
        v_fract_f32 v{T+4}, v{T+4}
        v_cos_f32 v{T+5}, v{T+4}
        v_sin_f32 v{T+6}, v{T+4}
        s_nop 0
        v_mul_f32 v{LR}, v{T+3}, v{T+5}
        v_mul_f32 v{LI}, v{T+3}, v{T+6}
        v_mul_f32 v{T+3}, v{T}, v{T}
        v_fmac_f32 v{T+3}, v{T+1}, v{T+1}
        v_rcp_f32 v{T+3}, v{T+3}
        v_add_f32 v{T+4}, -1.0, v{LR}
        v_mul_f32 v{T+5}, v{T+4}, v{T}
        v_fmac_f32 v{T+5}, v{LI}, v{T+1}
        v_mul_f32 v{T+6}, v{LI}, v{T}
        v_fma_f32 v{T+6}, -v{T+4}, v{T+1}, v{T+6}
        v_add_f32 v{T+3}, v{T+3}, v{T+3}
        v_mul_f32 v{CR}, v{T+5}, v{T+3}
        v_mul_f32 v{CI}, v{T+6}, v{T+3}
        v_mov_b32 v{MUR}, v{LR}
        v_mov_b32 v{MUI}, v{LI}
        """)
        for i in range(4):
            a(f"""
            v_mul_f32 v{T+3}, v{MUI}, v{MUI}
            v_mul_f32 v{T+4}, v{MUR}, v{MUI}
            v_fma_f32 v{MUR}, v{MUR}, v{MUR}, -v{T+3}
            v_add_f32 v{MUI}, v{T+4}, v{T+4}
            """)

    def partb(self, EV, TT):
        a = self.a
        a(f"""
        v_cndmask_b32 v{LCR}, 0, v{EV}, s[62:63]
        v_cndmask_b32 v{LCI}, 0, v{EV+1}, s[62:63]
        v_cndmask_b32 v{PWR}, 1.0, v{MUR}, s[62:63]
        v_cndmask_b32 v{PWI}, 0, v{MUI}, s[62:63]
        """)
        for j in range(1, 7):
            if j % 2 == 1: a(f"s_cmp_lt_u32 s{S_WAVE}, {(j+1)//2}\ns_cbranch_scc1 L_pbne")
            a(f"""
            v_mul_f32 v{TT}, v{MUR}, v{PWR}
            v_mul_f32 v{TT+1}, v{MUR}, v{PWI}
            v_fma_f32 v{TT+2}, v{MUR}, v{LCR}, v{EV+2*j}
            v_fma_f32 v{TT+3}, v{MUR}, v{LCI}, v{EV+2*j+1}
            v_fma_f32 v{TT}, -v{MUI}, v{PWI}, v{TT}
            v_fma_f32 v{PWI}, v{MUI}, v{PWR}, v{TT+1}
            v_fma_f32 v{TT+2}, -v{MUI}, v{LCI}, v{TT+2}
            v_fma_f32 v{LCI}, v{MUI}, v{LCR}, v{TT+3}
            v_mov_b32 v{PWR}, v{TT}
            v_mov_b32 v{LCR}, v{TT+2}
            """)
        EB = EV + 14
        a(f"""
        s_mul_i32 s30, s{S_MB}, {576*8}
        s_lshl_b32 s31, s{S_CH}, 8
        s_add_u32 s30, s30, s31
        s_add_u32 s30, s30, {EE - 256}
        v_lshlrev_b32 v{TT+2}, 3, v2
        v_fma_f32 v{TT}, v{MUR}, v{LCR}, v{EB}
        v_fma_f32 v{TT+1}, v{MUR}, v{LCI}, v{EB+1}
        v_fma_f32 v{TT}, -v{MUI}, v{LCI}, v{TT}
        v_fma_f32 v{TT+1}, v{MUI}, v{LCR}, v{TT+1}
        s_mov_b32 exec_lo, 0
        buffer_store_dwordx2 v[{TT}:{TT+1}], v{TT+2}, s[4:7], s30 offen {WT}
        s_mov_b32 exec_lo, -1
        s_lshl_b32 s30, s{S_CH}, 5
        s_add_u32 s30, s30, s{S_MB}
        s_lshl_b32 s30, s30, 2
        s_add_u32 s30, s30, {F2}
        s_waitcnt vmcnt(0)
        """)
        self.wait_ok(TT)
        self.flag_store([30], TT)
        a.label("L_pbne")
        for i in range(3):
            a(f"""
            v_mul_f32 v{TT+4}, v{MUI}, v{MUI}
            v_mul_f32 v{TT+5}, v{MUR}, v{MUI}
            v_fma_f32 v{MUR}, v{MUR}, v{MUR}, -v{TT+4}
            v_add_f32 v{MUI}, v{TT+5}, v{TT+5}
            """)

    def pass2(self, EV, T):
        a = self.a
        GR, GI, TT, AD, M2R, M2I = T, T + 1, T + 2, T + 4, T + 6, T + 7
        a(f"""
        s_cmp_eq_u32 s{S_MB}, 0
        s_cbranch_scc1 L_pollF2_x
        s_sub_u32 s35, s{S_MB}, 1
        v_min_u32 v{AD}, s35, v2
        v_lshlrev_b32 v{AD}, 2, v{AD}
        s_lshl_b32 s34, s{S_CH}, 7
        s_add_u32 s34, s34, {F2}
        """)
        self.poll("L_pollF2", TT, AD, "s34", sleep=8)
        a(f"""
        s_add_u32 s8, s{P_WS}, {EE}
        s_addc_u32 s9, s{P_WS+1}, 0
        s_and_b32 s9, s9, 0xffff
        s_mov_b32 s10, {16*576*8}
        s_mov_b32 s11, 0x20000
        v_lshrrev_b32 v{TT}, 5, v2
        v_mul_u32_u24 v{TT}, {576*8}, v{TT}
        v_lshlrev_b32 v{AD}, 3, v1
        v_sub_u32 v{AD}, v{AD}, v{TT}
        s_sub_u32 s34, s{S_MB}, 1
        s_mul_i32 s34, s34, {576*8}
        v_add_u32 v{AD}, s34, v{AD}
        s_lshl_b32 s34, s{S_CH}, 8
        """)
        for i in range(8):
            a(f"buffer_load_dwordx2 v[{EV+2*i}:{EV+2*i+1}], v{AD}, s[8:11], s34 offen sc0 sc1")
            if i < 7: a(f"v_subrev_u32 v{AD}, {2*576*8}, v{AD}")
        a(f"""
        v_mul_f32 v{TT}, v{MUI}, v{MUI}
        v_mul_f32 v{TT+1}, v{MUR}, v{MUI}
        v_fma_f32 v{M2R}, v{MUR}, v{MUR}, -v{TT}
        v_add_f32 v{M2I}, v{TT+1}, v{TT+1}
        s_waitcnt vmcnt(0)
        """)
        for i in range(6, -1, -1): self.cmac(EV + 2 * i, M2R, EV + 2 * i + 2, EV + 2 * i)
        a(f"""
        v_mov_b32 v{AD}, v{EV}
        v_mov_b32 v{AD+1}, v{EV+1}
        s_nop 1
        v_permlane32_swap_b32 v{EV}, v{AD}
        v_permlane32_swap_b32 v{EV+1}, v{AD+1}
        s_nop 1
        """)
        self.cmac(EV, MUR, AD, EV)
        self.cmac(GR, PWR, EV, LCR)
        for t in range(16): self.cmac(BS + 2 * t, LR, GR if t == 0 else BS + 2 * t - 2, BS + 2 * t)
        a(f"""
        s_lshl_b32 s34, s{S_MB}, 2
        s_add_u32 s34, s34, s{S_WAVE}
        s_mul_i32 s34, s34, {HS}
        s_add_u32 s34, s34, s{S_CH}
        s_lshl_b32 s34, s34, 11
        s_add_u32 s34, s34, {HH}
        s_add_u32 s35, s34, {18*2048}
        v_lshrrev_b32 v{TT}, 5, v2
        v_lshlrev_b32 v{AD}, 4, v1
        v_mul_u32_u24 v{TT}, {1024+128}, v{TT}
        v_xor_b32 v{AD}, v{AD}, v{TT}
        v_xor_b32 v{AD+1}, {512+64}, v{AD}
        """)
        for c in range(2):
            for jj in range(2):
                d = EV + 16 + 8 * c + 4 * jj; n = "-" if c else ""
                for r in range(4): a(f"v_cvt_pk_bf16_f32 v{d+r}, {n}v{BS+16*jj+4*r+c}, {n}v{BS+16*jj+4*r+2+c}")
                a(f"buffer_store_dwordx4 v[{d}:{d+3}], v{AD+jj}, s[4:7], s{34+c} offen {WT}")
        a(f"""
        s_mul_i32 s30, s{S_MB}, 24
        s_add_u32 s31, s30, s{S_CH}
        s_lshl_b32 s31, s31, 2
        s_add_u32 s31, s31, s{S_WAVE}
        s_lshl_b32 s31, s31, 2
        s_add_u32 s31, s31, {F3}
        s_waitcnt vmcnt(0)
        """)
        self.flag_store([31], TT)

    def b3_loader_setup(self, PB, T, st0):
        a = self.a
        self.make_vx(PB, 2, "4", "1", "16", "8", T)
        self.srd(12, P_CRE, 576 * 1152)
        a(f"""
        s_mul_i32 s{S_HB}, s{S_P3T}, {HS*2048}
        s_add_u32 s{S_HB}, s{S_HB}, {HH + st0*4096}
        s_lshl_b32 s30, s{S_P3NB}, 6
        s_lshl_b32 s31, s{S_LW}, 4
        s_add_u32 s30, s30, s31
        s_mul_i32 s{S_CB}, s30, 1152
        s_add_u32 s{S_CB}, s{S_CB}, {st0*128}
        s_mov_b32 s{S_SL3}, {R6[st0 % 6]}
        """)
        def issue():
            lab = a.newlabel("L_b3i")
            a(f"s_lshl_b32 s30, s{S_LW}, 12\ns_add_u32 m0, s30, s{S_SL3}\ns_cmp_lg_u32 s40, 9")
            for n in range(4): a(f"buffer_load_dwordx4 v3, s[4:7], s{S_HB} offen offset:{n*1024} {LDF} lds")
            a(f"s_cbranch_scc1 {lab}\ns_mov_b32 s12, s{P_CIM}\ns_and_b32 s13, s{P_CIM+1}, 0xffff\ns_sub_u32 s{S_CB}, s{S_CB}, {9*128}")
            a.label(lab)
            a(f"s_lshl_b32 s30, s{S_LW}, 11\ns_add_u32 s30, s30, s{S_SL3}\ns_add_u32 m0, s30, 16384\ns_add_u32 s{S_HB}, s{S_HB}, 4096")
            for n in range(2): a(f"buffer_load_dwordx4 v{PB+n}, s[12:15], s{S_CB} offen offset:{n*1024} lds")
            a(f"""
            s_add_u32 s{S_CB}, s{S_CB}, 128
            s_add_u32 s{S_SL3}, s{S_SL3}, {BSLOT}
            s_cmp_eq_u32 s{S_SL3}, {2048 + 6*BSLOT}
            s_cselect_b32 s{S_SL3}, 2048, s{S_SL3}
            """)
        return issue
    def a3_setup(self, PB, T):
        a = self.a
        a(f"""
        v_lshrrev_b32 v{T}, 2, v2
        v_and_b32 v{T+1}, 3, v2
        v_and_b32 v{T+2}, 3, v{T}
        v_bfe_u32 v{T+3}, v{T}, 2, 1
        v_lshl_add_u32 v{T+2}, v{T+3}, 3, v{T+2}
        v_lshrrev_b32 v{T+3}, 3, v{T}
        v_lshl_add_u32 v{T+2}, v{T+3}, 2, v{T+2}
        v_mul_u32_u24 v{T+2}, 1152, v{T+2}
        v_lshl_add_u32 v{PB}, v{T+1}, 4, v{T+2}
        v_lshrrev_b32 v{T+2}, 1, v{T}
        v_mul_u32_u24 v{T+2}, 18, v{T+2}
        v_and_b32 v{T+3}, 1, v{T}
        v_add3_u32 v{T+2}, v{T+2}, v{T+3}, 16
        v_mul_u32_u24 v{T+2}, 1152, v{T+2}
        v_lshl_add_u32 v{PB+1}, v{T+1}, 4, v{T+2}
        s_sub_u32 s30, s{S_P3NB}, 9
        s_mul_i32 s{S_CB}, s30, 192
        s_mov_b32 s{S_ST3}, s{S_LW}
        """)
        self.srd(12, P_WO, 576 * 1152)
    def a3_issue(self, PB, cnt):
        a = self.a; lab = a.newlabel("L_a3i")
        a("s_mov_b32 s35, 0")
        a.label(lab)
        a(f"""
        s_mul_i32 s30, s{S_ST3}, 3072
        s_add_u32 s31, s30, {WO2}
        s_sub_u32 s30, s30, {18*3072}
        s_add_u32 s32, s{S_ST3}, 18
        s_sub_u32 s34, s{S_ST3}, 18
        s_cmp_lt_u32 s{S_ST3}, 18
        s_cselect_b32 s30, s31, s30
        s_cselect_b32 s32, s32, s34
        s_mul_i32 s31, s32, {18*1152}
        v_mov_b32 v{PB+2}, v{PB}
        s_cmp_lt_u32 s32, 32
        s_cbranch_scc1 {lab}m
        s_sub_u32 s32, s32, 32
        s_mul_i32 s31, s32, {8*18*1152}
        v_mov_b32 v{PB+2}, v{PB+1}
        """)
        a.label(lab + "m")
        a(f"s_add_u32 s31, s31, s{S_CB}")
        for nt in range(3):
            a(f"s_add_u32 m0, s30, {nt*1024}\ns_add_u32 s32, s31, {nt*64}\nbuffer_load_dwordx4 v{PB+2}, s[12:15], s32 offen lds")
        a(f"s_add_u32 s{S_ST3}, s{S_ST3}, 4\ns_add_u32 s35, s35, 1\ns_cmp_lt_u32 s35, {cnt}\ns_cbranch_scc1 {lab}")
    def xd(self, T, XD, ACC):
        a = self.a
        a(f"""
        v_lshrrev_b32 v{T+1}, 5, v2
        v_mul_u32_u24 v{T}, 1152, v1
        v_lshl_add_u32 v{T}, v{T+1}, 3, v{T}
        s_mul_i32 s30, s{S_P3T}, {32*1152}
        s_lshl_b32 s31, s{S_P3NB}, 7
        s_add_u32 s30, s30, s31
        v_add_u32 v{T}, s30, v{T}
        v_lshl_add_u32 v{T+1}, v{T+1}, 3, s31
        """)
        for e in range(8):
            a(f"global_load_dwordx2 v[{XD+2*e}:{XD+2*e+1}], v{T}, s[{P_BX}:{P_BX+1}] offset:{e*16}")
            a(f"global_load_dwordx2 v[{XD+16+2*e}:{XD+16+2*e+1}], v{T+1}, s[{P_DSK}:{P_DSK+1}] offset:{e*16}")
    def xd_math(self, T, XD, ACC):
        a = self.a
        for e in range(8):
            d = ACC + 4 * e
            for q in range(2):
                x = XD + 2 * e + q; k = XD + 16 + 2 * e + q
                a(f"""
                v_lshlrev_b32 v{T+2}, 16, v{x}
                v_lshlrev_b32 v{T+3}, 16, v{k}
                v_and_b32 v{x}, 0xffff0000, v{x}
                v_and_b32 v{k}, 0xffff0000, v{k}
                v_mul_f32 v{d+2*q}, v{T+2}, v{T+3}
                v_mul_f32 v{d+2*q+1}, v{x}, v{k}
                """)

    def aux_final(self, T, restart):
        a = self.a; lab = a.newlabel("L_af")
        a(f"s_cmp_lg_u32 s{S_HALF}, 0\ns_cbranch_scc1 {lab}")
        self.wait_prog(FIN_OK, T, sleep=2)
        a(f"""
        v_cmp_eq_u32 vcc, s30, v{T+1}
        s_cbranch_vccz {lab}
        s_mov_b32 s{S_HALF}, 1
        s_waitcnt vmcnt(0) lgkmcnt(0)
        s_barrier
        s_barrier
        s_barrier
        """)
        if restart: a(f"s_branch {restart}")
        a.label(lab)

    def p3(self, T):
        a = self.a
        SS, DL = 40, 50
        PB = 4
        a(f"s_mov_b32 s{S_HALF}, 0")
        self.srd(16, P_OUT, OUT_BYTES)
        a(f"s_cmp_ge_u32 s{S_IDX}, 18\ns_cbranch_scc1 L_a3")
        AS, EA, BF, ACC, CW = [8, 144, 0], 14, 16, 112, 155
        AS[2] = 150 - 0
        A3S = [150, 151, 152, 153, 154, 15]
        a(f"""
        s_mul_i32 s34, s{S_P3MB}, 384
        s_add_u32 s34, s34, {F3}
        v_min_u32 v{T}, 17, v2
        v_lshlrev_b32 v{T}, 4, v{T}
        """)
        self.poll("L_pollF3", 20, T, "s34", n=4, sleep=16)
        self.stamp(7)
        AC, AH = 8, 12
        self.swz(AC, T, R6[0] + 16384)
        a(f"""
        v_bfe_u32 v{T+2}, v2, 2, 2
        v_lshl_add_u32 v{T+3}, v{T+1}, 3, v{T+2}
        v_bfe_u32 v{T+4}, v2, 4, 1
        v_bfe_u32 v{T+5}, v2, 1, 1
        v_lshl_add_u32 v{T+4}, v{T+4}, 1, v{T+5}
        v_lshlrev_b32 v{T+5}, 2, v{T+4}
        v_xor_b32 v{T+6}, v{T+3}, v{T+5}
        v_and_b32 v{T+5}, 1, v2
        v_lshlrev_b32 v{T+5}, 3, v{T+5}
        v_lshl_add_u32 v{T+5}, v{T+4}, 9, v{T+5}
        s_add_u32 s30, s48, {R6[0]}
        v_add_u32 v{T+5}, s30, v{T+5}
        v_lshl_add_u32 v{AH}, v{T+6}, 4, v{T+5}
        v_xor_b32 v{AH+1}, 64, v{AH}
        v_mul_u32_u24 v{EA}, 4608, v1
        v_lshl_add_u32 v{EA}, v{T+1}, 4, v{EA}
        v_mov_b32 v{CW}, {W_FULL + 72}
        """)
        sets = [list(range(8, 14)), list(range(144, 150)), A3S]
        for i in range(6):
            a(f"v_subrev_u32 v{sets[1][i]}, {R6[0]-R6[2]}, v{AC+i}\nv_subrev_u32 v{sets[2][i]}, {R6[0]-R6[4]}, v{AC+i}")
        pc = lambda c: 2 * (c + 1) + 1
        self.xd(T, 64, ACC)
        a.label("L_b3pf")
        iss = self.b3_loader_setup(PB, T, 0)
        a("s_mov_b32 s40, 0")
        self.wait_prog(pc(2), T, 16); iss(); iss()
        self.wait_prog(pc(4), T, 16); iss()
        self.wait_prog(pc(5), T, 16); iss()
        self.aux_final(T, "L_b3pf")
        iss(); iss()
        a(f"v_lshl_add_u32 v{T+1}, v2, 2, v{CW}\ns_waitcnt vmcnt(12)\ns_mov_b64 exec, 15\nds_add_u32 v{T+1}, v{self.ONE}\ns_mov_b64 exec, -1")
        self.stamp(8)
        self.xd_math(T, 64, ACC)
        def sig45():
            a(f"s_waitcnt vmcnt(0)\ns_mov_b64 exec, 48\nds_add_u32 v{T+1}, v{self.ONE}\ns_mov_b64 exec, -1")
        def rl(st):
            l = []; A = sets[(st % 6) // 2]; off = (st % 2) * BSLOT
            for s in range(4):
                b = BF + (st % 2) * 48 + s * 12
                if s == 3: l.append("s_waitcnt lgkmcnt(8)")
                for hf in range(2): l.append(f"ds_read_b64_tr_b16 v[{b+hf*2}:{b+hf*2+1}], v{A[4+hf]} offset:{off + (s>>1)*2048 + (s&1)*256}")
                for nt in range(2): l.append(f"ds_read_b128 v[{b+4+nt*4}:{b+7+nt*4}], v{A[s]} offset:{off + nt*4096}")
            return l
        def mfl(st):
            l = []
            for s in range(4):
                b = BF + (st % 2) * 48 + s * 12
                for nt in range(2):
                    d = ACC + nt * 16; c = f"v[{d}:{d+15}]"
                    l.append(f"v_mfma_f32_32x32x16_bf16 v[{d}:{d+15}], v[{b+4+nt*4}:{b+7+nt*4}], v[{b}:{b+3}], {c}")
            return l
        self.gemm_cons("L_g3", 18, T, CW, rl, mfl, 12, {1: sig45})
        self.stamp(10)
        a(f"""
        s_mul_i32 s30, s{S_P3T}, {32*4608}
        s_lshl_b32 s31, s{S_P3NB}, 8
        s_add_u32 s30, s30, s31
        s_add_u32 s30, s30, {576*4}
        s_nop 8
        """)
        self.stamp(11)
        for e in range(8):
            d = ACC + 4 * e
            a(f"buffer_store_dwordx4 v[{d}:{d+3}], v{EA}, s[16:19], s30 offen offset:{e*32} {self.opt.get('outf', '').replace('_', ' ')}")
        a("s_branch L_exit")
        a.label("L_b3l")
        a(f"s_cmp_ge_u32 s{S_WAVE}, 8\ns_cbranch_scc1 L_exit\ns_cmp_ge_u32 s{S_IDX}, 18\ns_cbranch_scc1 L_exit")
        self.p3_ids()
        iss2 = self.b3_loader_setup(4, 8, 6)
        a(f"v_mov_b32 v6, {W_FULL + 72}\nv_mov_b32 v7, 1")
        self.gemm_load("L_l3", 6, 18, 6, 3, 6, 7, 8, iss2)
        a("s_branch L_exit")
        a.label("L_p3idle")
        self.aux_final(T, None)
        a("s_branch L_exit")
        a.label("L_a3")
        a(f"s_cmp_ge_u32 s{S_IDX}, 30\ns_cbranch_scc1 L_p3idle")
        a.label("L_a3pf")
        self.a3_setup(PB, T)
        self.wait_prog(pc(2), T, 16); self.a3_issue(PB, 4)
        self.wait_prog(pc(5), T, 16); self.a3_issue(PB, 5)
        a("s_waitcnt vmcnt(0)")
        self.bar(T)
        self.stamp(8)
        self.aux_final(T, "L_a3pf")
        AW, EA, T, FW, ACC, FO = 4, 6, 8, 16, 52, 100
        D = 16
        a(f"""
        s_lshl_b32 s34, s{S_P3T}, 7
        s_add_u32 s34, s34, {F4}
        v_lshlrev_b32 v{T+4}, 2, v1
        v_lshrrev_b32 v{T+1}, 5, v2
        v_bfe_u32 v{T+2}, v2, 2, 2
        v_lshl_add_u32 v{T+3}, v{T+1}, 3, v{T+2}
        v_lshlrev_b32 v{T+3}, 6, v{T+3}
        v_bfe_u32 v{T+2}, v2, 4, 1
        v_lshl_add_u32 v{T+3}, v{T+2}, 5, v{T+3}
        v_and_b32 v{T+2}, 3, v2
        v_lshl_add_u32 v{AW}, v{T+2}, 3, v{T+3}
        v_add_u32 v{AW+1}, {WO2}, v{AW}
        v_mul_u32_u24 v{EA}, 4608, v1
        v_lshl_add_u32 v{EA}, v{T+1}, 4, v{EA}
        v_lshl_add_u32 v{EA+1}, v{T+1}, 9, v{T+4}
        """)
        def rl3(s):
            st, off = (0, s * 3072) if s < 18 else (1, (s - 18) * 3072)
            l = []
            for nt in range(3):
                for hf in range(2):
                    r = FW + (s % 3) * 12 + nt * 4 + hf * 2
                    l.append(f"ds_read_b64_tr_b16 v[{r}:{r+1}], v{AW+st} offset:{off + nt*1024 + hf*256}")
            return l
        for x in rl3(0) + rl3(1): a(x)
        self.poll("L_pollF4", T + 5, T + 4, "s34", sleep=1)
        self.stamp(10); self.stamp(58, True)
        a(f"s_mul_i32 s30, s{S_P3T}, {OS}\ns_add_u32 s30, s30, {OW}")
        def oload(s):
            r = FO + 4 * (s % D)
            if s < 32:
                l = [f"buffer_load_dwordx4 v[{r}:{r+3}], v3, s[4:7], s30 offen offset:{(s%4)*1024} {LDF}"]
                if s % 4 == 3: l.append("s_add_u32 s30, s30, 4096")
                return l
            return [f"buffer_load_dword v{r+j}, v{EA+1}, s[4:7], s30 offen offset:{(s-32)*1024 + j*128} {LDF}" for j in range(4)]
        cnt = [1] * 32 + [4] * 4
        for s in range(D):
            for x in oload(s): a(x)
        for s in range(36):
            out = sum(cnt[s + 1:min(36, s + D)])
            a(f"s_waitcnt vmcnt({out}) lgkmcnt({6 if s < 35 else 0})")
            mf = []
            for nt in range(3):
                d = ACC + nt * 16; w = FW + (s % 3) * 12 + nt * 4; o = FO + 4 * (s % D)
                c = "0" if s == 0 else f"v[{d}:{d+15}]"
                mf.append(f"v_mfma_f32_32x32x16_bf16 v[{d}:{d+15}], v[{w}:{w+3}], v[{o}:{o+3}], {c}")
            ilv(a, mf, rl3(s + 2) if s + 2 < 36 else [])
            if s + D < 36:
                for x in oload(s + D): a(x)
        a(f"""
        s_mul_i32 s30, s{S_P3T}, {32*4608}
        s_sub_u32 s31, s{S_P3NB}, 9
        s_mul_i32 s31, s31, 384
        s_add_u32 s30, s30, s31
        s_nop 8
        """)
        self.stamp(11)
        for e in range(12):
            d = ACC + 4 * e
            a(f"buffer_store_dwordx4 v[{d}:{d+3}], v{EA}, s[16:19], s30 offen offset:{e*32} {self.opt.get('outf', '').replace('_', ' ')}")

    def finish(self):
        a = self.a
        a.label("L_exit")
        if self.stamp_on:
            self.stamp(12)
            a("s_waitcnt vmcnt(0)")
            self.stamp(13); self.stamp(15, True)
            a(f"""
            s_lshl_b32 s30, s2, 4
            s_add_u32 s30, s30, s{S_WAVE}
            s_lshl_b32 s30, s30, 8
            s_add_u32 s30, s30, {STB}
            v_lshlrev_b32 v3, 2, v2
            buffer_store_dword v{VST}, v3, s[4:7], s30 offen
            """)
            if "probe" in self.opt:
                k = int(self.opt["probe"])
                a(f"""
                v_readlane_b32 s30, v{VST}, 14
                v_readlane_b32 s31, v{VST}, {k}
                s_nop 3
                s_sub_u32 s32, s31, s30
                s_cmp_eq_u32 s31, 0
                s_cselect_b32 s32, 0, s32
                s_min_u32 s32, s32, 8000
                s_lshl_b32 s32, s32, 1
                s_add_u32 s32, s32, 7000
                """)
                a.label("L_probe")
                a("s_sleep 4\ns_memrealtime s[94:95]\ns_waitcnt lgkmcnt(0)\ns_sub_u32 s33, s94, s30\ns_cmp_lt_u32 s33, s32\ns_cbranch_scc1 L_probe")
        a("s_endpgm")
        self.emit_stubs()
        a.label("L_end")
        a("s_endpgm")

def gen_mega(name, stamp=False, opt=None):
    g = G(stamp, opt)
    g.a.raw(kernel_header(name))
    g.prologue(); g.p1_loader(); g.attention(); g.aux(); g.finish()
    return g.a.text(), kernel_desc(name, NV, 98)

if __name__ == "__main__":
    import sys
    from build import *
    KN = NAME + "_kernel"
    out = sys.argv[1]; stamp = len(sys.argv) > 2 and sys.argv[2] == "1"
    opt = dict((kv.split("=") + ["1"])[:2] for kv in sys.argv[3:])
    if "f1s" in opt: F1STRIDE = int(opt["f1s"])
    if "ldf" in opt: LDF = opt["ldf"].replace("_", " ").strip()
    if "wt" in opt: WT = opt["wt"].replace("_", " ")
    compose([gen_mega(KN, stamp, opt)], [(KN, 256, 768, LDS_TOTAL)], out)
    assemble(out)
```

```python
from asmlib import *
from lay2 import *
import math, struct
def f32(x): return "0x%08x" % struct.unpack("<I", struct.pack("<f", x))[0]
QSCALE = f32(18 ** -0.5 * math.log2(math.e))
WT = "sc0 sc1"
SPIN_MAX = 20000
P_AX, P_WQKV, P_WO, P_BX, P_LRE, P_LIM, P_BRE, P_BIM, P_CRE, P_CIM, P_LDT, P_DSK, P_OUT, P_DBG, P_WS = range(64, 94, 2)
S_WAVE, S_XCD, S_IDX, S_MB, S_NB, S_TYPE, S_CHB, S_CHA, S_HALF, S_ROT = 3, 20, 21, 22, 23, 24, 25, 26, 27, 28
BS, BSA = 192, 144
LR, LI, CR, CI, LCR, LCI, PWR, PWI, MUR, MUI = range(BS + 32, BS + 42)
VST = 255
S_HD, S_LW, S_GK, S_GQ, S_K4, S_GV, S_LP = 39, 51, 52, 53, 54, 55, 56
V_VV, V_GID = 127, 234
DUMMY = 188
S_PF, S_P3MB, S_P3NB, S_P3T, S_HB, S_CB, S_SL3, S_ST3, S_HM, S_HI = 36, 37, 38, 57, 52, 53, 54, 55, 46, 40
V_PB = 128
EV1, EV2 = 236, 128
R3BASE, R3SLOT = 2048, 24576
WO2 = 100352
LDS_UNS = 8 * 19968 + 4092
C0, CHB = 5, 19968
LDS_Q = 7 * CHB
LDS_SCR = 8 * CHB
LDF = "sc0 sc1"

def ilv(a, mf, other):
    n = len(mf); k = 0
    for i, m in enumerate(mf):
        a(m)
        upto = (len(other) * (i + 1) + n - 2) // (n - 1) if i < n - 1 else len(other)
        upto = min(upto, len(other))
        while k < upto: a(other[k]); k += 1

class G:
    def __init__(self, stamp=False, stop=99, opt=None):
        self.a = Asm(); self.stamp_on = stamp; self.stop = stop; self.opt = opt or {}
    def stamp(self, k, real=False):
        if not self.stamp_on: return
        op = "s_memrealtime" if real else "s_memtime"
        self.a(f"{op} s[94:95]\ns_waitcnt lgkmcnt(0)\nv_writelane_b32 v{VST}, s94, {k}")
    def stampx(self, base, force=False):
        if not self.stamp_on or not (force or self.opt.get("stx")): return
        self.a(f"s_memtime s[94:95]\ns_add_u32 m0, s96, {base}\ns_add_u32 s96, s96, 1\ns_waitcnt lgkmcnt(0)\nv_writelane_b32 v{VST}, s94, m0")
    def srd(self, d, p, n):
        self.a(f"s_mov_b32 s{d}, s{p}\ns_and_b32 s{d+1}, s{p+1}, 0xffff\ns_mov_b32 s{d+2}, {n}\ns_mov_b32 s{d+3}, 0x20000")

    def prologue(self):
        a = self.a
        a(f"""
        s_cmp_ge_u32 s2, 256
        s_cbranch_scc1 L_end
        s_load_dwordx16 s[64:79], s[0:1], 0
        s_load_dwordx8 s[80:87], s[0:1], 64
        s_load_dwordx4 s[88:91], s[0:1], 96
        s_load_dwordx2 s[92:93], s[0:1], 112
        v_lshrrev_b32 v1, 6, v0
        v_and_b32 v2, 63, v0
        v_readfirstlane_b32 s{S_WAVE}, v1
        v_lshlrev_b32 v3, 4, v2
        s_and_b32 s{S_XCD}, s2, 7
        s_lshr_b32 s{S_IDX}, s2, 3
        """)
        a(f"""
        s_cmp_lg_u32 s{S_WAVE}, 3
        s_cbranch_scc1 L_nopf
        s_getpc_b64 s[30:31]
        """)
        a.label("L_pc")
        a(f"""
        s_lshl_b32 s32, s{S_IDX}, 10
        s_cmp_ge_u32 s32, L_end-L_pc-1024
        s_cbranch_scc1 L_nopf
        s_add_u32 s30, s30, s32
        s_addc_u32 s31, s31, 0
        v_mov_b32 v5, s31
        v_add_co_u32 v4, vcc, s30, v3
        s_nop 1
        v_addc_co_u32 v5, vcc, 0, v5, vcc
        global_load_dwordx4 v[{DUMMY}:{DUMMY+3}], v[4:5], off
        """)
        a.label("L_nopf")
        if self.stamp_on: a(f"v_mov_b32 v{VST}, 0\ns_mov_b32 s96, 0")
        self.stamp(0); self.stamp(14, True)
        a(f"""
        s_and_b32 s30, s{S_XCD}, 3
        s_lshl_b32 s30, s30, 2
        s_and_b32 s31, s{S_IDX}, 3
        s_add_u32 s{S_MB}, s30, s31
        s_lshr_b32 s30, s{S_XCD}, 2            ; hg
        s_lshr_b32 s31, s{S_IDX}, 2
        s_mul_i32 s32, s30, 7
        s_add_u32 s{S_NB}, s32, s31
        s_mul_i32 s32, s30, 9
        s_add_u32 s{S_CHB}, s32, s31
        s_add_u32 s{S_CHA}, s32, 8
        s_cmp_ge_u32 s{S_NB}, 9
        s_cselect_b32 s{S_TYPE}, 1, 0
        s_cmp_ge_u32 s{S_IDX}, 28
        s_cselect_b32 s{S_TYPE}, 2, s{S_TYPE}
        s_mov_b32 s{S_ROT}, 0
        s_lshl_b32 s{S_HD}, s{S_XCD}, 2
        s_and_b32 s30, s{S_IDX}, 3
        s_add_u32 s{S_HD}, s{S_HD}, s30
        s_and_b32 s{S_LW}, s{S_WAVE}, 3
        """)
        for r in (12, 13, 14, 15, 16, 17, V_VV, V_GID, 128, 129, 130, 252): a(f"v_mov_b32 v{r}, 0")
        a(f"s_cmp_lt_u32 s{S_WAVE}, 4\ns_cbranch_scc1 L_p1_compute")

    def make_vx(self, dst, n, sa, sb, sc1, sc0, T):
        a = self.a
        a(f"""
        v_lshrrev_b32 v{T}, 3, v2
        v_and_b32 v{T+1}, 7, v2
        v_lshrrev_b32 v{T+2}, 1, v{T}
        v_xor_b32 v{T+1}, v{T+1}, v{T+2}
        v_lshrrev_b32 v{T+2}, 2, v{T}
        v_and_b32 v{T}, 3, v{T}
        v_mul_u32_u24 v{T+2}, {sa}, v{T+2}
        v_mul_u32_u24 v{T}, {sb}, v{T}
        v_add_u32 v{T}, v{T}, v{T+2}
        v_mul_u32_u24 v{T}, 1152, v{T}
        v_lshl_add_u32 v{dst}, v{T+1}, 4, v{T}
        v_xor_b32 v{T+1}, 4, v{T+1}
        v_lshl_add_u32 v{dst+1}, v{T+1}, 4, v{T}
        s_mul_i32 s34, {sc0}, 1152
        s_sub_u32 s34, s34, 1024
        v_add_u32 v{dst+1}, s34, v{dst+1}
        """)
        if n == 4:
            a(f"""
            s_mul_i32 s34, {sc1}, 1152
            s_sub_u32 s34, s34, 2048
            v_add_u32 v{dst+2}, s34, v{dst}
            v_add_u32 v{dst+3}, s34, v{dst+1}
            """)

    def kv_setup(self, T):
        a = self.a
        a(f"""
        s_lshr_b32 s30, s{S_HD}, 1
        s_mul_i32 s30, s30, 9
        s_and_b32 s31, s{S_HD}, 1
        s_lshl_b32 s31, s31, 2
        s_add_u32 s30, s30, s31                  ; f
        s_add_u32 s30, s30, s{S_LW}
        s_lshl_b32 s30, s30, 10
        s_add_u32 s{S_GK}, s30, {QKP + 144*1024}
        s_lshr_b32 s31, s{S_IDX}, 2
        s_mul_i32 s31, s31, {2*288*1024}
        s_add_u32 s{S_GQ}, s30, s31
        s_add_u32 s{S_GQ}, s{S_GQ}, {QKP}
        s_cmp_eq_u32 s{S_LW}, 0
        s_cselect_b32 s{S_K4}, 0, {283*1024}
        s_add_u32 s{S_K4}, s{S_K4}, 4096
        s_mul_i32 s30, s{S_HD}, 288
        s_mul_i32 s31, s{S_LW}, {3*9216}
        s_add_u32 s30, s30, s31
        s_add_u32 s{S_GV}, s30, {VT}
        v_mul_u32_u24 v{T}, 27, v2
        v_lshrrev_b32 v{T}, 9, v{T}
        v_mul_u32_u24 v{V_VV}, 19, v{T}
        v_sub_u32 v{V_VV}, v2, v{V_VV}
        v_cmp_gt_u32 vcc, 18, v{V_VV}
        v_cmp_gt_u32 s[58:59], 3, v{T}
        v_cmp_gt_u32 s[60:61], 2, v{T}
        v_mul_u32_u24 v{T}, 9216, v{T}
        v_lshl_add_u32 v{V_VV}, v{V_VV}, 4, v{T}
        s_and_b64 s[58:59], s[58:59], vcc
        s_and_b64 s[60:61], s[60:61], vcc
        s_cmp_eq_u32 s{S_LW}, 2
        s_cselect_b64 s[60:61], s[60:61], s[58:59]
        s_mov_b32 s{S_LP}, {C0*CHB}
        """)
    def k_dma(self, src, ldsbase):
        a = self.a; lab = a.newlabel("L_kd")
        a(f"""
        s_lshl_b32 s31, s{S_LW}, 10
        s_add_u32 s31, s31, {ldsbase}
        s_mov_b32 m0, s31
        s_add_u32 s30, s{src}, s{S_K4}
        buffer_load_dwordx4 v3, s[4:7], s{src} offen {LDF} lds
        s_add_u32 m0, s31, 4096
        s_cmp_ge_u32 s{S_LW}, 2
        buffer_load_dwordx4 v3, s[4:7], s30 offen {LDF} lds
        s_cbranch_scc1 {lab}
        s_add_u32 m0, s31, 8192
        s_add_u32 s30, s{src}, {(283+8)*1024}
        buffer_load_dwordx4 v3, s[4:7], s30 offen {LDF} lds
        """)
        a.label(lab)
    def kv_chunk(self):
        a = self.a; lab = a.newlabel("L_vd")
        self.k_dma(S_GK, f"s{S_LP}")
        a(f"""
        s_mul_i32 s31, s{S_LW}, {3*VROW}
        s_add_u32 s31, s31, s{S_LP}
        s_add_u32 m0, s31, 10240
        s_mov_b64 exec, s[58:59]
        buffer_load_dwordx4 v{V_VV}, s[4:7], s{S_GV} offen {LDF} lds
        s_add_u32 m0, s31, {10240 + 12*VROW}
        s_add_u32 s30, s{S_GV}, {12*9216}
        buffer_load_dwordx4 v{V_VV}, s[4:7], s30 offen {LDF} lds
        s_cmp_eq_u32 s{S_LW}, 3
        s_cbranch_scc1 {lab}
        s_add_u32 m0, s31, {10240 + 24*VROW}
        s_add_u32 s30, s{S_GV}, {24*9216}
        s_mov_b64 exec, s[60:61]
        buffer_load_dwordx4 v{V_VV}, s[4:7], s30 offen {LDF} lds
        """)
        a.label(lab)
        a(f"""
        s_mov_b64 exec, -1
        s_add_u32 s{S_GK}, s{S_GK}, {2*288*1024}
        s_add_u32 s{S_GV}, s{S_GV}, {32*9216}
        s_add_u32 s{S_LP}, s{S_LP}, {CHB}
        s_cmp_eq_u32 s{S_LP}, {8*CHB}
        s_cselect_b32 s{S_LP}, 0, s{S_LP}
        """)

    def p1_loader(self):
        a = self.a
        VX, VW, VB, T, VD = 4, 12, 16, 20, 28
        LW = S_LW
        SI, KK, XB, WB, SL, LT = 41, 42, 43, 44, 45, 46
        a.label("L_p1_loader")
        a(f"v_mov_b32 v{VD+1}, 0\nv_mov_b32 v{VD}, 0")
        def setup_b1(chs):
            self.make_vx(VX, 4, "16", "1", "8", "4", T)
            self.make_vx(VB, 2, "4", "1", "16", "8", T)
            self.srd(8, P_BX, 2048 * 1152)
            a(f"""
            s_cmp_lt_u32 s{LW}, 2
            s_cselect_b32 s12, s{P_BRE}, s{P_BIM}
            s_cselect_b32 s13, s{P_BRE+1}, s{P_BIM+1}
            s_and_b32 s13, s13, 0xffff
            s_mov_b32 s14, {576*1152}
            s_mov_b32 s15, 0x20000
            s_lshl_b32 s30, s{S_MB}, 7
            s_lshl_b32 s31, s{LW}, 5
            s_add_u32 s30, s30, s31
            s_mul_i32 s{XB}, s30, 1152
            s_lshl_b32 s30, {chs}, 5
            s_and_b32 s31, s{LW}, 1
            s_lshl_b32 s31, s31, 4
            s_add_u32 s30, s30, s31
            s_mul_i32 s{WB}, s30, 1152
            s_mov_b32 s{LT}, 1
            """)
        a(f"""
        s_mov_b32 s{SI}, 0
        s_lshl_b32 s{SL}, s{LW}, 12
        s_mov_b32 s{KK}, s{S_CHA}
        s_cmp_eq_u32 s{S_TYPE}, 2
        s_cbranch_scc1 L_p1l_setb
        s_cmp_eq_u32 s{S_TYPE}, 0
        s_cselect_b32 s36, 2, 1
        s_cselect_b32 s37, 32, 16
        s_cselect_b32 s38, 16, 4
        s_lshr_b32 s30, s{LW}, 1
        s_lshl_b32 s30, s30, 6
        s_and_b32 s31, s{LW}, 1
        s_add_u32 s30, s30, s31
        s_lshl_b32 s31, s{LW}, 5
        s_cmp_eq_u32 s{S_TYPE}, 0
        s_cselect_b32 s30, s30, s31
        s_lshl_b32 s31, s{S_MB}, 7
        s_add_u32 s30, s30, s31
        s_mul_i32 s{XB}, s30, 1152
        s_mul_i32 s30, s{LW}, {16*3456}
        s_lshl_b32 s31, s{S_NB}, 8
        s_add_u32 s{WB}, s30, s31
        s_mov_b32 s{LT}, 0
        """)
        self.make_vx(VX, 4, "8", "s36", "s37", "s38", T)
        a(f"""
        v_lshrrev_b32 v{T}, 4, v2
        v_and_b32 v{T+1}, 15, v2
        v_lshlrev_b32 v{T+2}, 2, v{T}
        v_xor_b32 v{T+1}, v{T+1}, v{T+2}
        v_mul_u32_u24 v{T}, 3456, v{T}
        v_lshl_add_u32 v{VW}, v{T+1}, 4, v{T}
        v_add_u32 v{VW+1}, {4*3456-1024}, v{VW}
        v_add_u32 v{VW+2}, {2*(4*3456-1024)}, v{VW}
        v_add_u32 v{VW+3}, {3*(4*3456-1024)}, v{VW}
        s_waitcnt lgkmcnt(0)
        """)
        self.srd(8, P_AX, 2048 * 1152); self.srd(12, P_WQKV, 576 * 3456); self.srd(4, P_WS, WS_BYTES)
        a.label("L_p1l_issue")
        a(f"s_mov_b32 m0, s{SL}\ns_cmp_lg_u32 s{LT}, 0")
        for n in range(4): a(f"buffer_load_dwordx4 v{VX+n}, s[8:11], s{XB} offen offset:{n*1024} lds")
        a(f"""
        s_cbranch_scc1 L_p1l_b
        s_add_u32 m0, s{SL}, 16384
        s_add_u32 s{XB}, s{XB}, 128
        """)
        for n in range(4): a(f"buffer_load_dwordx4 v{VW+n}, s[12:15], s{WB} offen offset:{n*1024} lds")
        a(f"s_add_u32 s{WB}, s{WB}, {64*3456}\ns_branch L_p1l_next")
        a.label("L_p1l_b")
        a(f"""
        s_lshl_b32 s32, s{LW}, 11
        s_sub_u32 s32, s{SL}, s32
        s_add_u32 m0, s32, 16384
        s_add_u32 s{XB}, s{XB}, 128
        """)
        for n in range(2): a(f"buffer_load_dwordx4 v{VB+n}, s[12:15], s{WB} offen offset:{n*1024} lds")
        a(f"s_add_u32 s{WB}, s{WB}, 128")
        a.label("L_p1l_next")
        a(f"""
        s_add_u32 s{SL}, s{SL}, 32768
        s_sub_u32 s30, s{SL}, 163840
        s_cmp_ge_u32 s{SL}, 163840
        s_cselect_b32 s{SL}, s30, s{SL}
        s_add_u32 s{SI}, s{SI}, 1
        s_cmp_lt_u32 s{SI}, 3
        s_cbranch_scc1 L_p1l_issue
        s_cmp_eq_u32 s{SI}, 14
        s_cbranch_scc1 L_p1l_issue
        s_cmp_eq_u32 s{SI}, 18
        s_cbranch_scc1 L_p1l_tail
        s_cmp_gt_u32 s{SI}, 14
        s_cbranch_scc1 L_p1l_w18
        s_cmp_lg_u32 s{LT}, 0
        s_cbranch_scc1 L_p1l_w12
        s_waitcnt vmcnt(16)
        s_branch L_p1l_bar
        """)
        a.label("L_p1l_w12")
        a("s_waitcnt vmcnt(12)\ns_branch L_p1l_bar")
        a.label("L_p1l_w18")
        a(f"s_waitcnt vmcnt(18)")
        a.label("L_p1l_bar")
        a(f"""
        s_barrier
        s_cmp_lg_u32 s{SI}, 9
        s_cbranch_scc1 L_p1l_issue
        s_mov_b32 s{KK}, s{S_CHB}
        """)
        a.label("L_p1l_setb")
        a("s_waitcnt lgkmcnt(0)")
        self.srd(4, P_WS, WS_BYTES)
        setup_b1(f"s{KK}")
        a("s_branch L_p1l_issue")
        a.label("L_p1l_tail")
        FV = 32
        a(f"s_lshl_b32 s34, s{S_HD}, 7\ns_add_u32 s34, s34, {F1}\nbuffer_load_dword v{FV}, v{VD+1}, s[4:7], s34 offen sc0 sc1")
        self.kv_setup(T)
        a(f"""
        s_waitcnt vmcnt(19)
        s_barrier
        s_waitcnt vmcnt(13)
        s_barrier
        v_mov_b32 v{T+4}, 0x3f803f80
        v_mov_b32 v{T+5}, 0x3f803f80
        v_mov_b32 v{T+6}, 0x3f803f80
        v_mov_b32 v{T+7}, 0x3f803f80
        v_and_b32 v{T}, 31, v2
        v_lshrrev_b32 v{T+1}, 5, v2
        v_mul_u32_u24 v{T}, {VROW}, v{T}
        v_mul_u32_u24 v{T+1}, {CHB}, v{T+1}
        v_add_u32 v{T}, v{T}, v{T+1}
        v_add_u32 v{T}, {C0*CHB + 10240 + 288}, v{T}
        ds_write_b128 v{T}, v[{T+4}:{T+7}]
        s_waitcnt vmcnt(7)
        s_barrier
        s_waitcnt vmcnt(0)
        s_barrier
        """)
        self.poll("L_pollF1", FV, VD + 1, "s34", n=1, first_issued=True, want="0x360")
        self.stamp(5)
        self.k_dma(S_GQ, str(LDS_Q))
        self.kv_chunk(); self.kv_chunk()
        a("s_branch L_att")

    def warm(self, items, T):
        a = self.a
        for j, (p, n) in enumerate(items):
            self.srd(8, p, n)
            for r in range((n + (1 << 20) - 1) >> 20):
                a(f"s_mov_b32 s30, {r << 20}\nbuffer_load_dwordx4 v[{DUMMY}:{DUMMY+3}], v{T}, s[8:11], s30 offen")

    def p1_compute(self):
        a = self.a
        AX, AW, AB, Z = 4, 8, 8, 12
        FX, ACC, T = 16, 80, 236
        BF = 16
        SS, SLOT, DL, WM, WN = 40, 41, 42, 43, 44
        a.label("L_p1_compute")
        a(f"""
        s_lshl_b32 s30, s{S_WAVE}, 8
        s_add_u32 s30, s30, s2
        s_lshl_b32 s30, s30, 10
        v_add_u32 v{V_GID}, s30, v3
        s_waitcnt lgkmcnt(0)
        """)
        if not self.opt.get("nowarm"): self.warm([(P_AX, 2048 * 1152), (P_WQKV, 576 * 3456)], V_GID)
        self.srd(4, P_WS, WS_BYTES)
        a(f"""
        s_or_b32 s30, s2, s{S_WAVE}
        s_cmp_lg_u32 s30, 0
        s_cbranch_scc1 L_p1c_nz
        v_mov_b32 v{T}, 0
        v_mov_b32 v{T+1}, 0
        v_mov_b32 v{T+2}, 0
        v_mov_b32 v{T+3}, 0
        s_mov_b32 s30, {FL}
        """)
        for i in range(FLBYTES // 1024):
            a(f"buffer_store_dwordx4 v[{T}:{T+3}], v3, s[4:7], s30 offen offset:{(i%4)*1024} {WT}")
            if i % 4 == 3: a("s_add_u32 s30, s30, 4096")
        a(f"""
        s_waitcnt vmcnt(0)
        v_mov_b32 v{T+4}, 1
        s_mov_b64 exec, 1
        global_store_dword v{T}, v{T+4}, s[{P_DBG}:{P_DBG+1}] {WT}
        s_mov_b64 exec, -1
        """)
        a.label("L_p1c_nz")
        a(f"""
        v_and_b32 v{T}, 31, v2
        v_lshrrev_b32 v{T+1}, 5, v2
        v_bfe_u32 v{T+2}, v{T}, 1, 3
        v_xor_b32 v{T+2}, v{T+2}, v{T+1}
        v_lshlrev_b32 v{T+3}, 7, v{T}
        """)
        for s in range(4): a(f"v_xor_b32 v{T+4}, {2*s}, v{T+2}\nv_lshl_add_u32 v{Z+s}, v{T+4}, 4, v{T+3}")
        for i in range(32): a(f"v_mov_b32 v{BS+i}, 0")
        a(f"""
        s_mov_b32 s{SLOT}, 0
        s_mov_b32 s{S_HALF}, 0
        s_mov_b32 s29, s{S_CHA}
        s_lshr_b32 s{WM}, s{S_WAVE}, 1
        s_and_b32 s{WN}, s{S_WAVE}, 1
        s_lshl_b32 s30, s{WM}, 13
        """)
        for s in range(4): a(f"v_add_u32 v{AX+s}, s30, v{Z+s}")
        a(f"""
        v_bfe_u32 v{T+2}, v2, 2, 2
        v_lshl_add_u32 v{T+3}, v{T+1}, 3, v{T+2}
        v_lshlrev_b32 v{T+3}, 8, v{T+3}
        v_bfe_u32 v{T+4}, v2, 4, 1
        v_lshl_add_u32 v{T+3}, v{T+4}, 5, v{T+3}
        v_and_b32 v{T+4}, 3, v2
        v_lshl_add_u32 v{T+3}, v{T+4}, 3, v{T+3}
        v_add_u32 v{T+3}, 16384, v{T+3}
        s_lshl_b32 s30, s{WN}, 1
        v_xor_b32 v{T+4}, s30, v{T+2}
        v_lshl_add_u32 v{AW}, v{T+4}, 6, v{T+3}
        v_xor_b32 v{AW+1}, 64, v{AW}
        """)
        for i in range(64): a(f"v_mov_b32 v{ACC+i}, 0")
        a(f"s_mov_b32 s{SS}, 0\ns_barrier")
        self.stampx(16, True)
        if not self.opt.get("nowarm"): self.warm([(P_BX, 2048 * 1152), (P_BRE, 576 * 1152), (P_BIM, 576 * 1152)], V_GID)
        a(f"s_cmp_eq_u32 s{S_TYPE}, 2\ns_cbranch_scc1 L_b1")
        def nextslot():
            a(f"""
            s_add_u32 s30, s{SLOT}, 32768
            s_cmp_eq_u32 s30, 163840
            s_cselect_b32 s30, 0, s30
            s_sub_u32 s{DL}, s30, s{SLOT}
            s_mov_b32 s{SLOT}, s30
            s_add_u32 s{SS}, s{SS}, 1
            """)
        def reads(s):
            l = [f"ds_read_b128 v[{FX+s*16+mt*4}:{FX+s*16+mt*4+3}], v{AX+s} offset:{mt*4096}" for mt in range(2)]
            for nt in range(2):
                for hf in range(2):
                    r = FX + s * 16 + 8 + nt * 4 + hf * 2
                    l.append(f"ds_read_b64_tr_b16 v[{r}:{r+1}], v{AW+nt} offset:{s*4096 + hf*1024}")
            return l
        for x in reads(0) + reads(1): a(x)
        a(f"s_cmp_eq_u32 s{S_TYPE}, 1\ns_cbranch_scc1 L_a1v")
        def a1loop(vtype, lab):
            a.label(lab)
            for s in range(4):
                a("s_waitcnt lgkmcnt(6)")
                if s == 2:
                    a("s_barrier")
                    self.stampx(16)
                mf = []
                for mt in range(2):
                    for nt in range(2):
                        d = ACC + (mt * 2 + nt) * 16
                        x = f"v[{FX+s*16+mt*4}:{FX+s*16+mt*4+3}]"; w = f"v[{FX+s*16+8+nt*4}:{FX+s*16+8+nt*4+3}]"
                        A, B = (x, w) if vtype else (w, x)
                        mf.append(f"v_mfma_f32_32x32x16_bf16 v[{d}:{d+15}], {A}, {B}, v[{d}:{d+15}]")
                ilv(a, mf, reads((s + 2) % 4))
                if s == 0: nextslot()
                if s == 1:
                    for r in (AX, AX + 1, AX + 2, AX + 3, AW, AW + 1): a(f"v_add_u32 v{r}, s{DL}, v{r}")
            a(f"s_cmp_lt_u32 s{SS}, 9\ns_cbranch_scc1 {lab}")
        a1loop(False, "L_a1qk")
        self.stamp(1)
        a(f"""
        s_lshl_b32 s30, s{S_NB}, 5
        s_lshl_b32 s31, s{WN}, 4
        s_add_u32 s30, s30, s31
        s_mul_i32 s31, s{S_MB}, 288
        s_add_u32 s31, s31, s30
        s_lshl_b32 s31, s31, 10
        s_lshl_b32 s32, s{WM}, 9
        s_add_u32 s31, s31, s32
        s_add_u32 s31, s31, {QKP}
        v_lshlrev_b32 v{T+2}, 4, v{T}
        v_lshl_add_u32 v{T+2}, v{T+1}, 10, v{T+2}
        s_mov_b32 s32, {QSCALE}
        s_waitcnt lgkmcnt(0)
        s_cmp_ge_u32 s30, 144
        s_cbranch_scc1 L_a1qk_ns
        """)
        for i in range(64): a(f"v_mul_f32 v{ACC+i}, s32, v{ACC+i}")
        a.label("L_a1qk_ns")
        for nt in range(2):
            for g in range(4):
                o = FX + ((nt * 4 + g) % 8) * 4
                for mt in range(2):
                    d = ACC + (mt * 2 + nt) * 16 + 4 * g
                    a(f"v_cvt_pk_bf16_f32 v{o+2*mt}, v{d}, v{d+1}\nv_cvt_pk_bf16_f32 v{o+2*mt+1}, v{d+2}, v{d+3}")
                a(f"buffer_store_dwordx4 v[{o}:{o+3}], v{T+2}, s[4:7], s31 offen offset:{(g%2)*2048} {WT}")
                if g % 2 == 1: a("s_add_u32 s31, s31, 4096")
        a("s_branch L_a1done")
        a1loop(True, "L_a1v")
        self.stamp(1)
        a(f"""
        s_sub_u32 s30, s{S_NB}, 9
        s_lshl_b32 s30, s30, 7
        s_lshl_b32 s31, s{WN}, 6
        s_add_u32 s30, s30, s31
        s_lshl_b32 s31, s{S_MB}, 4
        s_lshl_b32 s32, s{WM}, 3
        s_add_u32 s31, s31, s32
        s_mul_i32 s31, s31, 9216
        s_lshl_b32 s32, s30, 4
        s_add_u32 s31, s31, s32
        s_add_u32 s31, s31, {VT}
        v_mul_u32_u24 v{T+2}, 9216, v{T+1}
        v_lshl_add_u32 v{T+2}, v{T}, 4, v{T+2}
        s_waitcnt lgkmcnt(0)
        s_cmp_ge_u32 s30, 576
        s_cbranch_scc1 L_a1done
        """)
        for mt in range(2):
            for m in range(2):
                for nt in range(2):
                    d = ACC + (mt * 2 + nt) * 16 + 8 * m
                    for r in range(4): a(f"v_cvt_pk_bf16_f32 v{d+r}, v{d+2*r}, v{d+2*r+1}")
                    a(f"buffer_store_dwordx4 v[{d}:{d+3}], v{T+2}, s[4:7], s31 offen offset:{nt*512} {WT}")
                a(f"s_add_u32 s31, s31, {2*9216}")
        a.label("L_a1done")
        self.stamp(2)
        a(f"s_mov_b32 s{S_HALF}, 1\ns_mov_b32 s29, s{S_CHB}")
        a.label("L_b1")
        LT_ = T + 8
        a(f"""
        s_lshl_b32 s30, s{S_WAVE}, 12
        s_add_u32 s30, s30, s{SLOT}
        s_add_u32 s31, s{SLOT}, 16384
        """)
        for s in range(4): a(f"v_add_u32 v{AX+s}, s30, v{Z+s}\nv_add_u32 v{AB+s}, s31, v{Z+s}")
        def breadl(buf):
            l = []
            for s in range(4):
                b = BF + buf * 48 + s * 12
                l.append(f"ds_read_b128 v[{b}:{b+3}], v{AX+s}")
                for nt in range(2): l.append(f"ds_read_b128 v[{b+4+nt*4}:{b+7+nt*4}], v{AB+s} offset:{nt*4096}")
            return l
        def breads(buf):
            for x in breadl(buf): a(x)
        breads(0)
        a(f"""
        s_lshl_b32 s30, s29, 6
        v_lshl_add_u32 v{T+2}, v{T}, 1, s30
        global_load_ushort v{LT_}, v{T+2}, s[{P_LRE}:{P_LRE+1}]
        global_load_ushort v{LT_+1}, v{T+2}, s[{P_LIM}:{P_LIM+1}]
        global_load_ushort v{LT_+2}, v{T+2}, s[{P_LDT}:{P_LDT+1}]
        v_mov_b32 v{T+17}, 0
        s_mov_b32 s{SS}, 0
        s_cmp_eq_u32 s{S_HALF}, 0
        s_cbranch_scc1 L_b1go
        global_load_dword v{T+16}, v{T+17}, s[{P_DBG}:{P_DBG+1}]
        """)
        def adv():
            nextslot()
            for r in range(AX, AX + 8): a(f"v_add_u32 v{r}, s{DL}, v{r}")
        def bmf(buf):
            mf = []
            for s in range(4):
                b = BF + buf * 48 + s * 12
                for nt in range(2):
                    d = BS + nt * 16
                    mf.append(f"v_mfma_f32_32x32x16_bf16 v[{d}:{d+15}], v[{b}:{b+3}], v[{b+4+nt*4}:{b+7+nt*4}], v[{d}:{d+15}]")
            return mf
        a.label("L_b1go")
        adv()
        a.label("L_b1loop")
        for buf in range(2):
            if buf == 0:
                a(f"s_cmp_eq_u32 s{SS}, 9\ns_cbranch_scc1 L_b1last")
                a(f"s_cmp_eq_u32 s{SS}, 3\ns_cbranch_scc1 L_b1w")
                a.label("L_b1nw")
            else:
                a(f"s_cmp_eq_u32 s{SS}, 4\ns_cbranch_scc1 L_b1f")
                a.label("L_b1nf")
            a("s_waitcnt lgkmcnt(0)\ns_barrier")
            self.stampx(16)
            mf = bmf(buf)
            ilv(a, mf[:7], breadl(1 - buf))
            adv()
            a(mf[7])
        a("s_branch L_b1loop")
        a.label("L_b1w")
        a(f"s_waitcnt vmcnt(0)\ns_cmp_eq_u32 s{S_HALF}, 0\ns_cbranch_scc1 L_b1nw\ns_mov_b32 s33, 0")
        a.label("L_b1chk")
        a(f"""
        v_readfirstlane_b32 s30, v{T+16}
        s_cmp_eq_u32 s30, 1
        s_cbranch_scc1 L_b1nw
        s_add_u32 s33, s33, 1
        s_cmp_gt_u32 s33, {SPIN_MAX}
        s_cbranch_scc1 L_b1nw
        s_sleep 4
        global_load_dword v{T+16}, v{T+17}, s[{P_DBG}:{P_DBG+1}] sc0 sc1
        s_waitcnt vmcnt(0)
        s_branch L_b1chk
        """)
        a.label("L_b1f")
        a(f"""
        s_cmp_eq_u32 s{S_TYPE}, 2
        s_cbranch_scc1 L_b1nf
        s_cmp_lg_u32 s{S_WAVE}, 0
        s_cbranch_scc1 L_b1nf
        s_lshl_b32 s30, s{S_NB}, 7
        s_add_u32 s31, s30, 128
        s_cmp_eq_u32 s{S_TYPE}, 1
        s_cselect_b32 s32, 1152, 0
        v_mul_u32_u24 v{T+16}, 18, v2
        v_add_u32 v{T+16}, s32, v{T+16}
        v_add_u32 v{T+17}, 18, v{T+16}
        v_max_u32 v{T+16}, s30, v{T+16}
        v_min_u32 v{T+17}, s31, v{T+17}
        v_min_u32 v{T+17}, 0x6c0, v{T+17}
        v_cmp_lt_u32 vcc, v{T+16}, v{T+17}
        v_sub_u32 v{T+16}, v{T+17}, v{T+16}
        v_lshlrev_b32 v{T+17}, 7, v{T}
        s_mov_b32 s30, {F1}
        s_mov_b64 exec, vcc
        buffer_atomic_add v{T+16}, v{T+17}, s[4:7], s30 offen sc1
        s_mov_b64 exec, -1
        s_branch L_b1nf
        """)
        a.label("L_b1last")
        a(f"s_waitcnt lgkmcnt(0)\ns_cmp_lg_u32 s{S_HALF}, 0\ns_cbranch_scc1 L_b1nb\ns_barrier")
        a.label("L_b1nb")
        for m in bmf(0): a(m)
        self.stamp(3)
        self.lam_calc(LT_)
        GR, GI, TT = T + 4, T + 5, T + 6
        a(f"v_mov_b32 v{GR}, v{BS}\nv_mov_b32 v{GI}, v{BS+16}")
        for t in range(1, 16):
            a(f"""
            v_fma_f32 v{TT}, v{LR}, v{GR}, v{BS+t}
            v_fma_f32 v{TT+1}, v{LR}, v{GI}, v{BS+16+t}
            v_fma_f32 v{TT}, -v{LI}, v{GI}, v{TT}
            v_fma_f32 v{GI}, v{LI}, v{GR}, v{TT+1}
            v_mov_b32 v{GR}, v{TT}
            """)
        a(f"""
        s_lshl_b32 s30, s{S_HALF}, 11
        s_lshl_b32 s31, s{S_WAVE}, 9
        s_add_u32 s30, s30, s31
        s_add_u32 s30, s30, {LDS_SCR}
        v_lshl_add_u32 v{TT}, v2, 3, s30
        ds_write_b64 v{TT}, v[{GR}:{GI}]
        s_cmp_lg_u32 s{S_HALF}, 0
        s_cbranch_scc1 L_b1done
        """)
        for i in range(42): a(f"v_mov_b32 v{BSA+i}, v{BS+i}")
        for i in range(32): a(f"v_mov_b32 v{BS+i}, 0")
        a(f"s_mov_b32 s{S_HALF}, 1\ns_mov_b32 s29, s{S_CHB}\ns_branch L_b1")
        a.label("L_b1done")
        self.stamp(4)

    def partb(self, T):
        a = self.a
        TT, EB = T, T + 4
        a.label("L_pb")
        a(f"""
        s_lshl_b32 s30, s{S_HALF}, 11
        s_add_u32 s30, s30, {LDS_SCR - 256}
        v_lshl_add_u32 v{TT+2}, v2, 3, s30
        v_mov_b32 v{LCR}, 0
        v_mov_b32 v{LCI}, 0
        v_mov_b32 v{PWR}, 1.0
        v_mov_b32 v{PWI}, 0
        s_lshl_b32 s31, s{S_WAVE}, 1
        s_mov_b32 s32, 0
        s_mov_b32 exec_lo, 0
        """)
        a.label("L_pbloop")
        a(f"""
        ds_read_b64 v[{EB}:{EB+1}], v{TT+2}
        v_mul_f32 v{TT}, v{MUR}, v{PWR}
        v_mul_f32 v{TT+1}, v{MUR}, v{PWI}
        v_fma_f32 v{TT}, -v{MUI}, v{PWI}, v{TT}
        v_fma_f32 v{PWI}, v{MUI}, v{PWR}, v{TT+1}
        v_mov_b32 v{PWR}, v{TT}
        s_waitcnt lgkmcnt(0)
        v_fma_f32 v{TT}, v{MUR}, v{LCR}, v{EB}
        v_fma_f32 v{TT+1}, v{MUR}, v{LCI}, v{EB+1}
        v_fma_f32 v{TT}, -v{MUI}, v{LCI}, v{TT}
        v_fma_f32 v{LCI}, v{MUI}, v{LCR}, v{TT+1}
        v_mov_b32 v{LCR}, v{TT}
        s_mov_b32 exec_lo, -1
        v_add_u32 v{TT+2}, 256, v{TT+2}
        s_add_u32 s32, s32, 1
        s_cmp_le_u32 s32, s31
        s_cbranch_scc1 L_pbloop
        s_cmp_lg_u32 s{S_WAVE}, 3
        s_cbranch_scc1 L_pbne
        ds_read_b64 v[{EB}:{EB+1}], v{TT+2}
        s_mul_i32 s30, s{S_MB}, {576*8}
        s_lshl_b32 s31, s29, 8
        s_add_u32 s30, s30, s31
        s_add_u32 s30, s30, {EE - 256}
        v_lshlrev_b32 v{TT+2}, 3, v2
        s_waitcnt lgkmcnt(0)
        v_fma_f32 v{EB}, v{MUR}, v{LCR}, v{EB}
        v_fma_f32 v{EB+1}, v{MUR}, v{LCI}, v{EB+1}
        v_fma_f32 v{EB}, -v{MUI}, v{LCI}, v{EB}
        v_fma_f32 v{EB+1}, v{MUI}, v{LCR}, v{EB+1}
        s_mov_b32 exec_lo, 0
        buffer_store_dwordx2 v[{EB}:{EB+1}], v{TT+2}, s[4:7], s30 offen {WT}
        s_mov_b32 exec_lo, -1
        """)
        a.label("L_pbne")
        for i in range(3):
            a(f"""
            v_mul_f32 v{TT}, v{MUI}, v{MUI}
            v_mul_f32 v{TT+1}, v{MUR}, v{MUI}
            v_fma_f32 v{MUR}, v{MUR}, v{MUR}, -v{TT}
            v_add_f32 v{MUI}, v{TT+1}, v{TT+1}
            """)
        a(f"""
        s_cmp_lg_u32 s{S_TYPE}, 2
        s_cbranch_scc1 L_pb_end
        s_cmp_eq_u32 s{S_HALF}, 0
        s_cbranch_scc1 L_pb_end
        """)
        for i in range(42): a(f"v_swap_b32 v{BSA+i}, v{BS+i}")
        a(f"s_mov_b32 s{S_HALF}, 0\ns_mov_b32 s29, s{S_CHA}\ns_branch L_pb")
        a.label("L_pb_end")

    def lam_calc(self, T):
        a = self.a; L2E = f32(math.log2(math.e))
        a(f"""
        v_lshlrev_b32 v{T}, 16, v{T}
        v_lshlrev_b32 v{T+1}, 16, v{T+1}
        v_lshlrev_b32 v{T+2}, 16, v{T+2}
        v_mul_f32 v{T+2}, {L2E}, v{T+2}
        v_exp_f32 v{T+2}, v{T+2}
        s_nop 0
        v_cvt_pk_bf16_f32 v{T+2}, v{T+2}, v{T+2}
        v_lshlrev_b32 v{T+2}, 16, v{T+2}
        v_mul_f32 v{T+3}, v{T+2}, v{T}
        v_mul_f32 v{T+4}, v{T+2}, v{T+1}
        v_mul_f32 v{T+3}, {L2E}, v{T+3}
        v_mul_f32 v{T+4}, {f32(1/(2*math.pi))}, v{T+4}
        v_exp_f32 v{T+3}, v{T+3}
        v_fract_f32 v{T+4}, v{T+4}
        v_cos_f32 v{T+5}, v{T+4}
        v_sin_f32 v{T+6}, v{T+4}
        s_nop 0
        v_mul_f32 v{LR}, v{T+3}, v{T+5}
        v_mul_f32 v{LI}, v{T+3}, v{T+6}
        v_mul_f32 v{T+3}, v{T}, v{T}
        v_fmac_f32 v{T+3}, v{T+1}, v{T+1}
        v_rcp_f32 v{T+3}, v{T+3}
        v_add_f32 v{T+4}, -1.0, v{LR}
        v_mul_f32 v{T+5}, v{T+4}, v{T}
        v_fmac_f32 v{T+5}, v{LI}, v{T+1}
        v_mul_f32 v{T+6}, v{LI}, v{T}
        v_fma_f32 v{T+6}, -v{T+4}, v{T+1}, v{T+6}
        v_add_f32 v{T+3}, v{T+3}, v{T+3}
        v_mul_f32 v{CR}, v{T+5}, v{T+3}
        v_mul_f32 v{CI}, v{T+6}, v{T+3}
        v_mov_b32 v{MUR}, v{LR}
        v_mov_b32 v{MUI}, v{LI}
        """)
        for i in range(4):
            a(f"""
            v_mul_f32 v{T+3}, v{MUI}, v{MUI}
            v_mul_f32 v{T+4}, v{MUR}, v{MUI}
            v_fma_f32 v{MUR}, v{MUR}, v{MUR}, -v{T+3}
            v_add_f32 v{MUI}, v{T+4}, v{T+4}
            """)

    def poll(self, lab, vdst, voff, soff, n=1, first_issued=False, want="1"):
        a = self.a
        ld = f"buffer_load_dword v{vdst}, v{voff}, s[4:7], {soff} offen sc0 sc1" if n == 1 else f"buffer_load_dwordx4 v[{vdst}:{vdst+3}], v{voff}, s[4:7], {soff} offen sc0 sc1"
        a("s_mov_b32 s33, 0")
        if first_issued: a(f"s_branch {lab}_c")
        a.label(lab)
        a(ld + "\ns_waitcnt vmcnt(0)")
        a.label(lab + "_c")
        if n == 4:
            a(f"v_and_b32 v{vdst}, v{vdst}, v{vdst+1}\nv_and_b32 v{vdst+2}, v{vdst+2}, v{vdst+3}\nv_and_b32 v{vdst}, v{vdst}, v{vdst+2}")
        a(f"""
        v_cmp_ne_u32 vcc, {want}, v{vdst}
        s_add_u32 s33, s33, 1
        s_cmp_gt_u32 s33, {SPIN_MAX}
        s_cbranch_scc1 {lab}_x
        s_cbranch_vccz {lab}_x
        s_sleep 1
        s_branch {lab}
        """)
        a.label(lab + "_x")

    def flag_store(self, sregs, T):
        a = self.a
        a(f"v_mov_b32 v{T}, 0\nv_mov_b32 v{T+1}, 1\ns_mov_b64 exec, 1")
        for r in sregs: a(f"buffer_store_dword v{T+1}, v{T}, s[4:7], s{r} offen {WT}")
        a("s_mov_b64 exec, -1")

    def attention(self):
        a = self.a
        QM, QL, IDX, AK, AV, AL, T0, T1 = 4, 8, 10, 11, 12, 13, 14, 15
        KM, KL, VF, O, S0, S1 = 16, 24, 28, 44, 60, 92
        LK, LV, LL, PT = 124, 125, 126, 132
        TQ, PAR, CH, IT, DK, FB, MC, MB_, MI = 41, 42, 43, 44, 45, 47, 48, 49, 50
        HD = S_HD
        HC = [1, 2, 3, 4, 5, 6, 7, 12, 13]
        HL = [1, 3, 5, 7, 11, 13, 14, 15]
        HMASK_C = sum(1 << h for h in HC); HMASK_L = sum(1 << h for h in HL)
        a.label("L_att")
        if self.opt.get("sth"): a("s_mov_b32 s96, 0")
        a(f"""
        s_lshr_b32 s{TQ}, s{S_IDX}, 2
        s_lshl_b32 s{TQ}, s{TQ}, 3
        s_add_u32 s{TQ}, s{TQ}, s{S_WAVE}
        s_and_b32 s{PAR}, s{HD}, 1
        v_and_b32 v1, 31, v2
        v_lshrrev_b32 v{T1}, 5, v2
        v_lshlrev_b32 v{T0}, 3, v1
        v_lshl_add_u32 v{LK}, v{T1}, 11, v{T0}
        s_lshl_b32 s30, s{PAR}, 10
        v_add_u32 v{LK}, s30, v{LK}
        s_mul_i32 s31, s{PAR}, 4092
        s_sub_u32 s31, 4096, s31
        v_lshl_add_u32 v{LL}, v2, 3, s31
        s_lshr_b32 s30, s{S_WAVE}, 2
        s_mul_i32 s30, s30, 5120
        s_lshl_b32 s32, s{S_LW}, 8
        s_add_u32 s30, s30, s32
        s_add_u32 s30, s30, {LDS_Q}
        v_add_u32 v{AK}, s30, v{LK}
        s_add_u32 s30, s30, s31
        v_add_u32 v{AL}, s30, v{T0}
        v_min_u32 v{AV}, 18, v1
        v_mul_u32_u24 v{T1}, {VROW}, v{T1}
        v_lshl_add_u32 v{LV}, v{AV}, 4, v{T1}
        v_add_u32 v{LV}, 10240, v{LV}
        v_cmp_lt_u32 vcc, 18, v1
        v_cmp_ne_u32 s[30:31], 28, v1
        s_and_b64 vcc, vcc, s[30:31]
        v_mov_b32 v{T1}, 0x100000
        v_mov_b32 v{IDX}, 0xdddd
        v_cndmask_b32 v{LV}, v{LV}, v{T1}, vcc
        v_mov_b32 v{KL+1}, 0x3f803f80
        v_mov_b32 v{KL+3}, 0x3f803f80
        v_mov_b32 v{KL}, 0x3f803f80
        v_mov_b32 v{KL+2}, 0x3f803f80
        v_mul_u32_u24 v{T0}, {VROW}, v1
        s_mul_i32 s30, s{S_WAVE}, {CHB}
        s_add_u32 s30, s30, {10240 + 288}
        v_add_u32 v{T0}, s30, v{T0}
        s_mov_b32 s62, 0
        s_mov_b32 s63, -1
        s_mov_b32 s{FB}, 0
        s_mov_b32 s{MC}, 1
        s_mov_b32 s{MB_}, {C0*CHB}
        s_mov_b32 s{S_PF}, 0
        s_lshl_b32 s{S_P3MB}, s{S_XCD}, 1
        s_and_b32 s30, s{S_IDX}, 1
        s_add_u32 s{S_P3MB}, s{S_P3MB}, s30
        s_lshr_b32 s{S_P3NB}, s{S_IDX}, 1
        s_lshl_b32 s{S_P3T}, s{S_P3MB}, 2
        s_add_u32 s{S_P3T}, s{S_P3T}, s{S_LW}
        s_mov_b32 s30, {HMASK_C}
        s_cmp_lt_u32 s{S_WAVE}, 4
        s_cselect_b32 s{S_HM}, s30, {HMASK_L}
        s_waitcnt vmcnt(4) lgkmcnt(0)
        s_barrier
        ds_write_b128 v{T0}, v[{KL}:{KL+3}]
        ds_read_b64 v[{QM}:{QM+1}], v{AK}
        ds_read_b64 v[{QM+2}:{QM+3}], v{AK} offset:1024
        ds_read_b32 v{QL}, v{AL}
        """)
        self.stamp(6)
        a.label("L_maxpass")
        MX = T1
        a(f"""
        v_add_u32 v{AK}, s{MB_}, v{LK}
        v_add_u32 v{AL}, s{MB_}, v{LL}
        v_mov_b32 v{QL+1}, 0
        v_mov_b32 v{MX}, 0xff800000
        s_mov_b32 s{MI}, 0
        """)
        def rdKm(t, p, A=AK):
            off = (p // 2) * 5120 + (2 * (p % 2) + t) * 256
            a(f"ds_read_b64 v[{KM+4*t}:{KM+4*t+1}], v{A} offset:{off}\nds_read_b64 v[{KM+4*t+2}:{KM+4*t+3}], v{A} offset:{off+1024}")
        def rdKl(p): a(f"ds_read_b32 v{KL+2*(p%2)}, v{AL} offset:{(p//2)*5120 + (p%2)*512}")
        def rdV(n, p): a(f"ds_read_b128 v[{VF+4*n}:{VF+4*n+3}], v{AV} offset:{(p*8+n*2)*VROW}")
        def b2(N, p): a(f"v_mfma_f32_32x32x4_2b_bf16 v[{N}:{N+31}], v[{KL+2*(p%2)}:{KL+2*(p%2)+1}], v[{QL}:{QL+1}], 0")
        def mainm(N, t): a(f"v_mfma_f32_32x32x16_bf16 v[{N+16*t}:{N+16*t+15}], v[{KM+4*t}:{KM+4*t+3}], v[{QM}:{QM+3}], v[{N+16*t}:{N+16*t+15}]")
        def smf(n, S): a(f"v_smfmac_f32_32x32x32_bf16 v[{O}:{O+15}], v[{VF+4*n}:{VF+4*n+3}], v[{S+8*n}:{S+8*n+7}], v{IDX}")
        def E(S, lo, hi):
            for r in range(lo, hi): a(f"v_exp_f32 v{S+r}, v{S+r}")
        a.label("L_maxloop")
        rdKl(0); rdKm(0, 0); rdKm(1, 0)
        a(f"""
        s_and_b32 s30, s{MI}, 1
        s_mul_i32 s30, s30, 4096
        s_add_u32 s30, s30, 512
        s_and_b32 s31, s{MI}, 3
        s_cmp_eq_u32 s31, 3
        s_cselect_b32 s30, {CHB-5632}, s30
        s_add_u32 s{MI}, s{MI}, 1
        s_waitcnt lgkmcnt(0)
        """)
        b2(S0, 0)
        a(f"v_add_u32 v{AK}, s30, v{AK}\nv_add_u32 v{AL}, s30, v{AL}")
        for i in range(16): a(f"v_mov_b32 v{O+i}, 0")
        mainm(S0, 0); mainm(S0, 1)
        for i in range(8): a(f"v_mov_b32 v{S1+24+i}, 0")
        for i in range(4): a(f"v_mov_b32 v{VF+12+i}, 0")
        for i in range(16): a(f"v_max3_f32 v{MX}, v{S0+2*i}, v{S0+2*i+1}, v{MX}")
        a(f"""
        s_cmp_lt_u32 s{MI}, s{MC}
        s_cbranch_scc1 L_maxloop
        v_add_u32 v{AK}, {C0*CHB}, v{LK}
        v_add_u32 v{AL}, {C0*CHB}, v{LL}
        v_add_u32 v{AV}, {C0*CHB}, v{LV}
        v_mov_b32 v{T0}, v{MX}
        """)
        rdKl(0); rdKm(0, 0); rdKm(1, 0); rdKl(1)
        rdV(0, 0); rdV(1, 0); rdV(2, 0)
        a(f"""
        v_permlane32_swap_b32 v{T0}, v{MX}
        s_mov_b32 s{CH}, {C0}
        s_mov_b32 s{S_HI}, 0
        v_max_f32 v{MX}, v{T0}, v{MX}
        v_cvt_pk_bf16_f32 v{T0}, -v{MX}, 0
        v_lshlrev_b32 v{T0}, 16, v{T0}
        v_sub_f32 v{T0}, -v{MX}, v{T0}
        v_cvt_pk_bf16_f32 v{QL+1}, -v{MX}, v{T0}
        s_waitcnt lgkmcnt(3)
        s_nop 0
        """)
        b2(S0, 0)
        a("s_nop 15\ns_nop 1")
        mainm(S0, 0); mainm(S0, 1)
        rdKm(0, 1); rdKm(1, 1)
        a("s_nop 5\ns_waitcnt lgkmcnt(0)")
        self.stamp(7)
        prio = self.opt.get("prio", "")
        a.raw(".p2align 6")
        a.label("L_loop")
        for i in range(4):
            C, N = (S0, S1) if i % 2 == 0 else (S1, S0)
            if i == 0:
                a(f"""
                s_add_u32 s30, s{CH}, 1
                s_and_b32 s30, s30, 7
                s_sub_u32 s31, s30, s{CH}
                s_mul_i32 s{DK}, s31, {CHB}
                s_mov_b32 s{CH}, s30
                """)
            E(C, 0, 2)
            a("s_waitcnt lgkmcnt(5)")
            smf(3, N); rdV(3, i)
            if i == 3: a(f"v_add_u32 v{AV}, s{DK}, v{AV}")
            if i == 2:
                a(f"""
                v_add_u32 v{AK}, s{DK}, v{AK}
                v_add_u32 v{AL}, s{DK}, v{AL}
                """)
            if i % 2 == 0:
                if self.opt.get("sth"): self.stampx(17, True)
                a(f"s_bitcmp1_b32 s{S_HM}, s{S_HI}\ns_cbranch_scc1 L_hook")
                a.label(f"L_hookret{i//2}")
                if self.opt.get("sth"): self.stampx(17, True)
                a(f"s_add_u32 s{S_HI}, s{S_HI}, 1")
            E(C, 2, 6)
            b2(N, i + 1)
            rdKl((i + 2) % 4)
            E(C, 6, 12)
            smf(0, C); rdV(0, (i + 1) % 4)
            E(C, 12, 18)
            smf(1, C); rdV(1, (i + 1) % 4)
            E(C, 18, 22)
            a("s_waitcnt lgkmcnt(4)")
            mainm(N, 0); rdKm(0, (i + 2) % 4)
            E(C, 22, 26)
            smf(2, C); rdV(2, (i + 1) % 4)
            E(C, 26, 30)
            mainm(N, 1); rdKm(1, (i + 2) % 4)
            if i == 3: a(f"s_cmp_lt_u32 s{S_HI}, 16")
            E(C, 30, 32)
        a("s_cbranch_scc1 L_loop")
        a("s_waitcnt lgkmcnt(0)\ns_nop 0")
        smf(3, S1)
        self.stamp(8)
        L, SUM = T0, T1
        a(f"s_nop 11\nv_cndmask_b32 v{L}, v{O+10}, v{O+12}, s[62:63]\nv_add_f32 v{SUM}, |v{O}|, |v{O+1}|")
        for r in range(2, 10): a(f"v_add_f32 v{SUM}, v{SUM}, |v{O+r}|")
        a(f"""
        s_mov_b32 s30, 0x5d800000
        s_mov_b32 s31, 0x7f7fffff
        v_cmp_nge_f32 vcc, s30, v{L}
        v_cmp_nge_f32 s[34:35], s31, v{SUM}
        s_or_b64 vcc, vcc, s[34:35]
        s_cmp_lg_u32 s{FB}, 0
        s_cbranch_scc1 L_fin
        s_cmp_eq_u64 vcc, 0
        s_cbranch_scc1 L_fin
        s_mov_b32 s{FB}, 1
        v_mov_b32 v{T0}, {LDS_UNS}
        v_mov_b32 v{T1}, 1
        ds_write_b32 v{T0}, v{T1}
        s_branch L_att_end
        """)
        a.label("L_hret")
        a(f"s_bitcmp1_b32 s{S_HI}, 0\ns_cbranch_scc1 L_hookret1\ns_branch L_hookret0")
        a.label("L_hook")
        a(f"s_cmp_lt_u32 s{S_WAVE}, 4\ns_cbranch_scc1 L_hookc")
        for h in HL:
            if h > 7: a(f"s_cmp_eq_u32 s{S_HI}, {h}\ns_cbranch_scc1 L_hl{h}")
        a(f"""
        s_cmp_eq_u32 s{S_HI}, 5
        s_cbranch_scc1 L_hookl2
        s_waitcnt vmcnt(0)
        s_barrier
        s_cmp_eq_u32 s{S_HI}, 7
        s_cbranch_scc1 L_hret
        """)
        a.label("L_hookl2")
        a("s_mov_b32 s35, 0")
        a.label("L_hookl3")
        self.kv_chunk()
        a("s_add_u32 s35, s35, 1\ns_cmp_lt_u32 s35, 2\ns_cbranch_scc1 L_hookl3\ns_branch L_hret")
        a.label("L_hl11")
        self.p3_setup_loader()
        a("s_branch L_hret")
        a.label("L_hl13")
        a(f"""
        s_barrier
        s_cmp_ge_u32 s{S_IDX}, 18
        s_cbranch_scc1 L_hl14
        s_waitcnt vmcnt(0)
        v_and_b32 v{V_PB+4}, v{V_PB+4}, v{V_PB+5}
        v_and_b32 v{V_PB+6}, v{V_PB+6}, v{V_PB+7}
        v_and_b32 v{V_PB+4}, v{V_PB+4}, v{V_PB+6}
        v_cmp_ne_u32 vcc, 1, v{V_PB+4}
        s_cbranch_vccz L_hl14
        s_mov_b32 s{S_HM}, 0
        s_branch L_hret
        """)
        a.label("L_hl15")
        a(f"s_cmp_lt_u32 s{S_IDX}, 18\ns_cbranch_scc1 L_hret")
        a.label("L_hl14")
        a(f"s_cmp_ge_u32 s{S_IDX}, 30\ns_cbranch_scc1 L_hret\ns_add_u32 s{S_PF}, s{S_PF}, 1")
        a(f"s_cmp_ge_u32 s{S_IDX}, 18\ns_cbranch_scc1 L_hl14a")
        self.b3_issue(); self.b3_issue()
        a("s_branch L_hret")
        a.label("L_hl14a")
        self.a3_issue()
        a("s_branch L_hret")
        a.label("L_hookc")
        for h in HC[1:]: a(f"s_cmp_eq_u32 s{S_HI}, {h}\ns_cbranch_scc1 L_hc{h}")
        self.partb(128)
        a.label("L_hc13")
        a("s_barrier\ns_branch L_hret")
        a.label("L_hc2")
        a(f"""
        s_cmp_lg_u32 s{S_WAVE}, 3
        s_cbranch_scc1 L_hret
        s_lshl_b32 s30, s{S_CHB}, 5
        s_add_u32 s30, s30, s{S_MB}
        s_lshl_b32 s30, s30, 2
        s_add_u32 s30, s30, {F2}
        s_lshl_b32 s31, s29, 5
        s_add_u32 s31, s31, s{S_MB}
        s_lshl_b32 s31, s31, 2
        s_add_u32 s31, s31, {F2}
        s_waitcnt vmcnt(0)
        """)
        self.flag_store([30, 31], 128)
        a("s_branch L_hret")
        a.label("L_hc3")
        a(f"s_barrier\nv_mov_b32 v128, {LDS_UNS}\nv_mov_b32 v129, 0\nds_write_b32 v128, v129\ns_waitcnt lgkmcnt(0)\ns_branch L_hret")
        a.label("L_hc4")
        if not self.opt.get("nowarm"): self.warm([(P_CRE, 576 * 1152), (P_CIM, 576 * 1152), (P_WO, 576 * 1152)], V_GID)
        self.b2_flagload()
        a("s_branch L_hret")
        a.label("L_hc5")
        self.b2_eload()
        a("s_branch L_hret")
        a.label("L_hc6")
        self.pass2()
        a("s_branch L_hret")
        a.label("L_hc7")
        a(f"""
        s_barrier
        s_mul_i32 s30, s{S_MB}, 24
        s_add_u32 s31, s30, s{S_CHB}
        s_lshl_b32 s31, s31, 2
        s_add_u32 s31, s31, s{S_WAVE}
        s_lshl_b32 s31, s31, 2
        s_add_u32 s31, s31, {F3}
        s_cmp_eq_u32 s{S_TYPE}, 2
        s_cselect_b32 s32, s{S_CHA}, s{S_CHB}
        s_add_u32 s32, s30, s32
        s_lshl_b32 s32, s32, 2
        s_add_u32 s32, s32, s{S_WAVE}
        s_lshl_b32 s32, s32, 2
        s_add_u32 s32, s32, {F3}
        s_waitcnt vmcnt(0)
        """)
        self.flag_store([31, 32], 128)
        a("s_branch L_hret")
        a.label("L_hc12")
        a(f"s_cmp_ge_u32 s{S_IDX}, 18\ns_cbranch_scc1 L_hret")
        self.xd_load()
        a("s_branch L_hret")
        a.label("L_redo")
        a(f"s_waitcnt vmcnt(0)\ns_barrier\ns_mov_b32 s{S_PF}, 0\ns_mov_b32 s{S_HM}, 0\ns_cmp_lt_u32 s{S_WAVE}, 4\ns_cbranch_scc1 L_redo2")
        self.kv_setup(T0)
        a("s_mov_b32 s35, 0")
        a.label("L_redo1")
        self.kv_chunk()
        a("s_add_u32 s35, s35, 1\ns_cmp_lt_u32 s35, 8\ns_cbranch_scc1 L_redo1")
        a.label("L_redo2")
        a(f"""
        v_mov_b32 v{S0}, 0x3f803f80
        v_mov_b32 v{S0+1}, 0x3f803f80
        v_mov_b32 v{S0+2}, 0x3f803f80
        v_mov_b32 v{S0+3}, 0x3f803f80
        v_mul_u32_u24 v{T0}, {VROW}, v1
        s_mul_i32 s30, s{S_WAVE}, {CHB}
        s_add_u32 s30, s30, {10240 + 288}
        v_add_u32 v{T0}, s30, v{T0}
        ds_write_b128 v{T0}, v[{S0}:{S0+3}]
        v_mov_b32 v{T0}, {LDS_UNS}
        v_mov_b32 v{T1}, 0
        ds_write_b32 v{T0}, v{T1}
        s_waitcnt vmcnt(0) lgkmcnt(0)
        s_barrier
        s_cmp_eq_u32 s{FB}, 0
        s_cbranch_scc1 L_att_end
        s_mov_b32 s{MC}, 32
        s_mov_b32 s{MB_}, 0
        s_branch L_maxpass
        """)
        a.label("L_fin")
        a(f"v_rcp_f32 v{L}, v{L}\ns_nop 0")
        for r in range(10): a(f"v_mul_f32 v{O+r}, v{O+r}, v{L}")
        for r in range(5): a(f"v_cvt_pk_bf16_f32 v{S0+r}, v{O+2*r}, v{O+2*r+1}")
        a(f"""
        s_mul_i32 s30, s{TQ}, {36*1024}
        s_add_u32 s30, s30, {OW}
        s_lshl_b32 s31, s{HD}, 10
        s_add_u32 s31, s31, s30
        buffer_store_dwordx4 v[{S0}:{S0+3}], v3, s[4:7], s31 offen {WT}
        s_lshl_b32 s31, s{HD}, 7
        s_add_u32 s31, s31, s30
        s_add_u32 s31, s31, 32768
        v_lshlrev_b32 v{T0}, 2, v2
        s_mov_b32 exec_hi, 0
        buffer_store_dword v{S0+4}, v{T0}, s[4:7], s31 offen {WT}
        s_lshl_b32 s31, s{TQ}, 5
        s_add_u32 s31, s31, s{HD}
        s_lshl_b32 s31, s31, 2
        s_add_u32 s31, s31, {F4}
        v_mov_b32 v{T1}, 1
        s_mov_b64 exec, 1
        s_waitcnt vmcnt(0)
        buffer_store_dword v{T1}, v{T0}, s[4:7], s31 offen {WT}
        s_mov_b64 exec, -1
        """)
        a.label("L_att_end")
        self.stamp(9)
        a(f"""
        v_mov_b32 v{T0}, {LDS_UNS}
        s_waitcnt lgkmcnt(0)
        s_barrier
        ds_read_b32 v{T1}, v{T0}
        s_waitcnt lgkmcnt(0)
        v_readfirstlane_b32 s30, v{T1}
        s_cmp_lg_u32 s30, 0
        s_cbranch_scc1 L_redo
        """)

    def b2_flagload(self):
        a = self.a
        a(f"""
        s_max_u32 s35, s{S_MB}, 1
        s_sub_u32 s35, s35, 1
        v_and_b32 v252, 15, v2
        v_min_u32 v252, s35, v252
        v_lshlrev_b32 v252, 2, v252
        s_lshl_b32 s34, s29, 7
        s_lshl_b32 s35, s{S_CHB}, 7
        v_mov_b32 v253, s34
        v_mov_b32 v254, s35
        v_cndmask_b32 v253, v253, v254, s[62:63]
        v_add_u32 v252, v252, v253
        s_mov_b32 s34, {F2}
        buffer_load_dword v253, v252, s[4:7], s34 offen sc0 sc1
        """)
    def b2_eload(self):
        a = self.a
        a(f"s_waitcnt vmcnt(0)\ns_mov_b32 s34, {F2}\ns_cmp_eq_u32 s{S_MB}, 0\ns_cbranch_scc1 L_pollF2_x")
        self.poll("L_pollF2", 253, 252, "s34", n=1, first_issued=True)
        a(f"""
        s_add_u32 s8, s{P_WS}, {EE}
        s_addc_u32 s9, s{P_WS+1}, 0
        s_and_b32 s9, s9, 0xffff
        s_mov_b32 s10, {16*576*8}
        s_mov_b32 s11, 0x20000
        v_lshrrev_b32 v253, 5, v2
        v_mul_u32_u24 v253, {576*8}, v253
        v_and_b32 v252, 31, v2
        v_lshlrev_b32 v252, 3, v252
        v_sub_u32 v252, v252, v253
        s_sub_u32 s34, s{S_MB}, 1
        s_mul_i32 s34, s34, {576*8}
        v_add_u32 v252, s34, v252
        s_lshl_b32 s34, s29, 8
        s_lshl_b32 s35, s{S_CHB}, 8
        """)
        for i in range(8):
            a(f"buffer_load_dwordx2 v[{EV1+2*i}:{EV1+2*i+1}], v252, s[8:11], s34 offen sc0 sc1")
            a(f"s_cmp_lg_u32 s{S_TYPE}, 2\ns_cbranch_scc1 L_el{i}")
            a(f"buffer_load_dwordx2 v[{EV2+2*i}:{EV2+2*i+1}], v252, s[8:11], s35 offen sc0 sc1")
            a.label(f"L_el{i}")
            if i < 7: a(f"v_subrev_u32 v252, {2*576*8}, v252")
    def pass2(self):
        a = self.a
        GR, GI, TT, AD, M2R, M2I = 186, 187, 188, 190, 252, 253
        a("s_waitcnt vmcnt(0)")
        a.label("L_p2")
        a(f"""
        v_mul_f32 v{TT}, v{MUI}, v{MUI}
        v_mul_f32 v{TT+1}, v{MUR}, v{MUI}
        v_fma_f32 v{M2R}, v{MUR}, v{MUR}, -v{TT}
        v_add_f32 v{M2I}, v{TT+1}, v{TT+1}
        v_mov_b32 v{GR}, v{EV1+14}
        v_mov_b32 v{GI}, v{EV1+15}
        """)
        for i in range(6, -1, -1):
            a(f"""
            v_fma_f32 v{TT}, v{M2R}, v{GR}, v{EV1+2*i}
            v_fma_f32 v{TT+1}, v{M2R}, v{GI}, v{EV1+2*i+1}
            v_fma_f32 v{TT}, -v{M2I}, v{GI}, v{TT}
            v_fma_f32 v{GI}, v{M2I}, v{GR}, v{TT+1}
            v_mov_b32 v{GR}, v{TT}
            """)
        a(f"""
        v_mov_b32 v{AD}, v{GR}
        v_mov_b32 v{AD+1}, v{GI}
        s_nop 1
        v_permlane32_swap_b32 v{GR}, v{AD}
        v_permlane32_swap_b32 v{GI}, v{AD+1}
        s_nop 1
        v_fma_f32 v{GR}, v{MUR}, v{AD}, v{GR}
        v_fma_f32 v{GI}, v{MUR}, v{AD+1}, v{GI}
        v_fma_f32 v{GR}, -v{MUI}, v{AD+1}, v{GR}
        v_fma_f32 v{GI}, v{MUI}, v{AD}, v{GI}
        v_fma_f32 v{TT}, v{PWR}, v{GR}, v{LCR}
        v_fma_f32 v{TT+1}, v{PWR}, v{GI}, v{LCI}
        v_fma_f32 v{TT}, -v{PWI}, v{GI}, v{TT}
        v_fma_f32 v{GI}, v{PWI}, v{GR}, v{TT+1}
        v_mov_b32 v{GR}, v{TT}
        """)
        for t in range(16):
            g0, g1 = (GR, TT) if t % 2 == 0 else (TT, GR)
            a(f"""
            v_fma_f32 v{g1}, v{LR}, v{g0}, v{BS+t}
            v_fma_f32 v{TT+1}, v{LR}, v{GI}, v{BS+16+t}
            v_fma_f32 v{g1}, -v{LI}, v{GI}, v{g1}
            v_fma_f32 v{GI}, v{LI}, v{g0}, v{TT+1}
            v_mul_f32 v{BS+t}, v{CR}, v{g1}
            v_mul_f32 v{BS+16+t}, v{CR}, v{GI}
            v_fma_f32 v{BS+t}, -v{CI}, v{GI}, v{BS+t}
            v_fma_f32 v{BS+16+t}, -v{CI}, v{g1}, -v{BS+16+t}
            """)
        a(f"""
        s_lshl_b32 s34, s{S_MB}, 2
        s_add_u32 s34, s34, s{S_WAVE}
        s_mul_i32 s34, s34, 36
        s_add_u32 s34, s34, s29
        s_lshl_b32 s34, s34, 11
        s_add_u32 s34, s34, {HH}
        s_add_u32 s35, s34, {18*2048}
        v_lshrrev_b32 v{TT}, 5, v2
        v_and_b32 v{AD}, 31, v2
        v_lshlrev_b32 v{AD}, 4, v{AD}
        v_mul_u32_u24 v{TT}, {1024+128}, v{TT}
        v_xor_b32 v{AD}, v{AD}, v{TT}
        v_xor_b32 v{AD+1}, {512+64}, v{AD}
        """)
        for c in range(2):
            for jj in range(2):
                d = BS + 16 * c + 8 * jj
                for r in range(4): a(f"v_cvt_pk_bf16_f32 v{d+r}, v{d+2*r}, v{d+2*r+1}")
                a(f"buffer_store_dwordx4 v[{d}:{d+3}], v{AD+jj}, s[4:7], s{34+c} offen {WT}")
        a(f"s_cmp_eq_u32 s29, s{S_CHB}\ns_cbranch_scc1 L_p2end\ns_nop 1")
        for i in range(42): a(f"v_mov_b32 v{BS+i}, v{BSA+i}")
        for i in range(16): a(f"v_mov_b32 v{EV1+i}, v{EV2+i}")
        a(f"s_mov_b32 s29, s{S_CHB}\ns_branch L_p2")
        a.label("L_p2end")

    def p3_setup_loader(self):
        a = self.a; T = V_PB + 8; lab = a.newlabel("L_p3s")
        a(f"s_cmp_ge_u32 s{S_IDX}, 18\ns_cbranch_scc1 {lab}a")
        self.make_vx(V_PB, 2, "4", "1", "16", "8", T)
        a(f"""
        s_mul_i32 s34, s{S_P3MB}, 384
        s_add_u32 s34, s34, {F3}
        v_min_u32 v{V_PB+2}, 17, v2
        v_lshlrev_b32 v{V_PB+2}, 4, v{V_PB+2}
        buffer_load_dwordx4 v[{V_PB+4}:{V_PB+7}], v{V_PB+2}, s[4:7], s34 offen sc0 sc1
        s_mul_i32 s{S_HB}, s{S_P3T}, 73728
        s_add_u32 s{S_HB}, s{S_HB}, {HH}
        s_lshl_b32 s30, s{S_P3NB}, 6
        s_lshl_b32 s31, s{S_LW}, 4
        s_add_u32 s30, s30, s31
        s_mul_i32 s{S_CB}, s30, 1152
        s_mov_b32 s{S_SL3}, {R3BASE + 4*R3SLOT}
        s_mov_b32 s{S_ST3}, 0
        """)
        self.srd(12, P_CRE, 576 * 1152)
        a(f"s_branch {lab}b")
        a.label(lab + "a")
        a(f"""
        v_lshrrev_b32 v{T}, 2, v2
        v_and_b32 v{T+1}, 3, v2
        v_and_b32 v{T+2}, 3, v{T}
        v_bfe_u32 v{T+3}, v{T}, 2, 1
        v_lshl_add_u32 v{T+2}, v{T+3}, 3, v{T+2}
        v_lshrrev_b32 v{T+3}, 3, v{T}
        v_lshl_add_u32 v{T+2}, v{T+3}, 2, v{T+2}
        v_mul_u32_u24 v{T+2}, 1152, v{T+2}
        v_lshl_add_u32 v{V_PB}, v{T+1}, 4, v{T+2}
        v_lshrrev_b32 v{T+2}, 1, v{T}
        v_mul_u32_u24 v{T+2}, 18, v{T+2}
        v_and_b32 v{T+3}, 1, v{T}
        v_add3_u32 v{T+2}, v{T+2}, v{T+3}, 16
        v_mul_u32_u24 v{T+2}, 1152, v{T+2}
        v_lshl_add_u32 v{V_PB+1}, v{T+1}, 4, v{T+2}
        s_sub_u32 s30, s{S_P3NB}, 9
        s_mul_i32 s{S_CB}, s30, 192
        s_mov_b32 s{S_ST3}, s{S_LW}
        """)
        self.srd(12, P_WO, 576 * 1152)
        a.label(lab + "b")
    def b3_issue(self):
        a = self.a; lab = a.newlabel("L_b3i")
        a(f"""
        s_lshl_b32 s30, s{S_LW}, 12
        s_add_u32 m0, s30, s{S_SL3}
        s_cmp_lg_u32 s{S_ST3}, 9
        """)
        for n in range(4): a(f"buffer_load_dwordx4 v3, s[4:7], s{S_HB} offen offset:{n*1024} {LDF} lds")
        a(f"""
        s_cbranch_scc1 {lab}
        s_mov_b32 s12, s{P_CIM}
        s_and_b32 s13, s{P_CIM+1}, 0xffff
        s_sub_u32 s{S_CB}, s{S_CB}, {9*128}
        """)
        a.label(lab)
        a(f"""
        s_lshl_b32 s30, s{S_LW}, 11
        s_add_u32 s30, s30, s{S_SL3}
        s_add_u32 m0, s30, 16384
        s_add_u32 s{S_HB}, s{S_HB}, 4096
        """)
        for n in range(2): a(f"buffer_load_dwordx4 v{V_PB+n}, s[12:15], s{S_CB} offen offset:{n*1024} lds")
        a(f"""
        s_add_u32 s{S_CB}, s{S_CB}, 128
        s_add_u32 s{S_SL3}, s{S_SL3}, {R3SLOT}
        s_cmp_eq_u32 s{S_SL3}, {R3BASE + 6*R3SLOT}
        s_cselect_b32 s{S_SL3}, {R3BASE}, s{S_SL3}
        s_add_u32 s{S_ST3}, s{S_ST3}, 1
        """)
    def a3_issue(self):
        a = self.a; lab = a.newlabel("L_a3i")
        a("s_mov_b32 s35, 0")
        a.label(lab)
        a(f"""
        s_mul_i32 s30, s{S_ST3}, 3072
        s_add_u32 s31, s30, {WO2 - 18*3072}
        s_cmp_ge_u32 s{S_ST3}, 18
        s_cselect_b32 s30, s31, s30
        s_mul_i32 s31, s{S_ST3}, {18*1152}
        s_cmp_lt_u32 s{S_ST3}, 32
        s_cbranch_scc1 {lab}m
        s_mul_i32 s31, s{S_LW}, {8*18*1152}
        v_mov_b32 v{V_PB}, v{V_PB+1}
        """)
        a.label(lab + "m")
        a(f"s_add_u32 s31, s31, s{S_CB}")
        for nt in range(3):
            a(f"s_add_u32 m0, s30, {nt*1024}\ns_add_u32 s32, s31, {nt*64}\nbuffer_load_dwordx4 v{V_PB}, s[12:15], s32 offen lds")
        a(f"""
        s_add_u32 s{S_ST3}, s{S_ST3}, 4
        s_add_u32 s35, s35, 1
        s_cmp_lt_u32 s35, 3
        s_cbranch_scc1 {lab}
        """)
    def xd_load(self):
        a = self.a; XD = BS
        a(f"""
        v_lshrrev_b32 v253, 5, v2
        v_mul_u32_u24 v252, 1152, v1
        v_lshl_add_u32 v252, v253, 3, v252
        s_mul_i32 s30, s{S_P3T}, {32*1152}
        s_lshl_b32 s31, s{S_P3NB}, 7
        s_add_u32 s30, s30, s31
        v_add_u32 v252, s30, v252
        v_lshl_add_u32 v253, v253, 3, s31
        """)
        for e in range(8):
            a(f"global_load_dwordx2 v[{XD+2*e}:{XD+2*e+1}], v252, s[{P_BX}:{P_BX+1}] offset:{e*16}")
            a(f"global_load_dwordx2 v[{XD+16+2*e}:{XD+16+2*e+1}], v253, s[{P_DSK}:{P_DSK+1}] offset:{e*16}")

    def p3(self):
        a = self.a
        SS, SLOT, DL = 48, 49, 50
        a(f"s_cmp_ge_u32 s{S_IDX}, 30\ns_cbranch_scc1 L_exit")
        self.srd(16, P_OUT, OUT_BYTES)
        a(f"s_cmp_lt_u32 s{S_WAVE}, 4\ns_cbranch_scc1 L_p3c")
        a(f"s_cmp_lg_u32 s{S_PF}, 0\ns_cbranch_scc1 L_p3l_pf")
        self.p3_setup_loader()
        a(f"s_cmp_ge_u32 s{S_IDX}, 18\ns_cbranch_scc1 L_p3l_a")
        a("s_waitcnt vmcnt(0)")
        self.poll("L_pollF3", V_PB + 4, V_PB + 2, "s34", n=4, first_issued=True)
        a.label("L_p3l_b4")
        self.b3_issue()
        a(f"s_cmp_lt_u32 s{S_ST3}, 4\ns_cbranch_scc1 L_p3l_b4\ns_waitcnt vmcnt(0)\ns_branch L_p3l_pf")
        a.label("L_p3l_a")
        self.a3_issue()
        a(f"s_cmp_lt_u32 s{S_ST3}, 36\ns_cbranch_scc1 L_p3l_a\ns_waitcnt vmcnt(0)")
        a.label("L_p3l_pf")
        a(f"s_barrier\ns_cmp_ge_u32 s{S_IDX}, 18\ns_cbranch_scc1 L_exit")
        a.label("L_b3l_loop")
        self.b3_issue()
        a(f"""
        s_cmp_eq_u32 s{S_ST3}, 5
        s_cbranch_scc1 L_b3l_loop
        s_waitcnt vmcnt(24)
        s_barrier
        s_cmp_lt_u32 s{S_ST3}, 18
        s_cbranch_scc1 L_b3l_loop
        s_waitcnt vmcnt(18)
        s_barrier
        s_waitcnt vmcnt(12)
        s_barrier
        s_waitcnt vmcnt(6)
        s_barrier
        s_waitcnt vmcnt(0)
        s_barrier
        s_branch L_exit
        """)
        a.label("L_p3c")
        a(f"s_cmp_ge_u32 s{S_IDX}, 18\ns_cbranch_scc1 L_a3c")
        AC, AH, EA, BF, ACC, T, XD = 4, 8, 10, 16, 112, 144, BS
        B0 = R3BASE + 4 * R3SLOT
        a(f"""
        v_lshrrev_b32 v{T+1}, 5, v2
        v_bfe_u32 v{T+2}, v2, 2, 2
        v_lshl_add_u32 v{T+3}, v{T+1}, 3, v{T+2}
        v_bfe_u32 v{T+4}, v2, 4, 1
        v_bfe_u32 v{T+5}, v2, 1, 1
        v_lshl_add_u32 v{T+4}, v{T+4}, 1, v{T+5}
        v_lshlrev_b32 v{T+5}, 2, v{T+4}
        v_xor_b32 v{T+6}, v{T+3}, v{T+5}
        v_and_b32 v{T+5}, 1, v2
        v_lshlrev_b32 v{T+5}, 3, v{T+5}
        v_lshl_add_u32 v{T+5}, v{T+4}, 9, v{T+5}
        s_lshl_b32 s30, s{S_LW}, 12
        s_add_u32 s30, s30, {B0}
        v_add_u32 v{T+5}, s30, v{T+5}
        v_lshl_add_u32 v{AH}, v{T+6}, 4, v{T+5}
        v_xor_b32 v{AH+1}, 64, v{AH}
        v_bfe_u32 v{T+2}, v1, 1, 3
        v_xor_b32 v{T+2}, v{T+2}, v{T+1}
        v_lshlrev_b32 v{T+3}, 7, v1
        v_add_u32 v{T+3}, {B0 + 16384}, v{T+3}
        """)
        for s in range(4): a(f"v_xor_b32 v{T+4}, {2*s}, v{T+2}\nv_lshl_add_u32 v{AC+s}, v{T+4}, 4, v{T+3}")
        def rl(buf):
            l = []
            for s in range(4):
                b = BF + buf * 48 + s * 12
                for hf in range(2): l.append(f"ds_read_b64_tr_b16 v[{b+hf*2}:{b+hf*2+1}], v{AH+hf} offset:{(s>>1)*2048 + (s&1)*256}")
                for nt in range(2): l.append(f"ds_read_b128 v[{b+4+nt*4}:{b+7+nt*4}], v{AC+s} offset:{nt*4096}")
            return l
        def mfl(buf):
            mf = []
            for s in range(4):
                b = BF + buf * 48 + s * 12
                for nt in range(2):
                    d = ACC + nt * 16
                    mf.append(f"v_mfma_f32_32x32x16_bf16 v[{d}:{d+15}], v[{b+4+nt*4}:{b+7+nt*4}], v[{b}:{b+3}], v[{d}:{d+15}]")
            return mf
        def adv():
            a(f"""
            s_add_u32 s30, s{SLOT}, {R3SLOT}
            s_cmp_eq_u32 s30, {6*R3SLOT}
            s_cselect_b32 s30, 0, s30
            s_sub_u32 s{DL}, s30, s{SLOT}
            s_mov_b32 s{SLOT}, s30
            s_add_u32 s{SS}, s{SS}, 1
            """)
            for r in (AC, AC + 1, AC + 2, AC + 3, AH, AH + 1): a(f"v_add_u32 v{r}, s{DL}, v{r}")
        a(f"s_mov_b32 s{SS}, 0\ns_mov_b32 s{SLOT}, {4*R3SLOT}\ns_barrier")
        self.stamp(10)
        for x in rl(0): a(x)
        adv()
        a(f"v_mul_u32_u24 v{EA}, 4608, v1\nv_lshl_add_u32 v{EA}, v{T+1}, 4, v{EA}")
        for e in range(8):
            d = ACC + 4 * e
            for q in range(2):
                x = XD + 2 * e + q; k = XD + 16 + 2 * e + q
                a(f"""
                v_lshlrev_b32 v{T+2}, 16, v{x}
                v_lshlrev_b32 v{T+3}, 16, v{k}
                v_and_b32 v{x}, 0xffff0000, v{x}
                v_and_b32 v{k}, 0xffff0000, v{k}
                v_mul_f32 v{d+2*q}, v{T+2}, v{T+3}
                v_mul_f32 v{d+2*q+1}, v{x}, v{k}
                """)
        a.label("L_b3c_loop")
        for buf in range(2):
            if buf == 1: a(f"s_cmp_eq_u32 s{SS}, 18\ns_cbranch_scc1 L_b3c_last")
            a("s_waitcnt lgkmcnt(0)\ns_barrier")
            self.stampx(16)
            mf = mfl(buf)
            ilv(a, mf[:7], rl(1 - buf))
            adv()
            a(mf[7])
        a("s_branch L_b3c_loop")
        a.label("L_b3c_last")
        a("s_waitcnt lgkmcnt(0)")
        for m in mfl(1): a(m)
        a(f"""
        s_mul_i32 s30, s{S_P3T}, {32*4608}
        s_lshl_b32 s31, s{S_P3NB}, 8
        s_add_u32 s30, s30, s31
        s_add_u32 s30, s30, {576*4}
        s_nop 7
        """)
        self.stamp(11)
        for e in range(8):
            d = ACC + 4 * e
            a(f"buffer_store_dwordx4 v[{d}:{d+3}], v{EA}, s[16:19], s30 offen offset:{e*32}")
        a("s_branch L_exit")
        a.label("L_a3c")
        AW, EA, T, FW, ACC, FO = 4, 6, 8, 16, 52, 100
        a(f"""
        s_lshl_b32 s34, s{S_P3T}, 7
        s_add_u32 s34, s34, {F4}
        v_lshlrev_b32 v{T+4}, 2, v1
        v_lshrrev_b32 v{T+1}, 5, v2
        v_bfe_u32 v{T+2}, v2, 2, 2
        v_lshl_add_u32 v{T+3}, v{T+1}, 3, v{T+2}
        v_lshlrev_b32 v{T+3}, 6, v{T+3}
        v_bfe_u32 v{T+2}, v2, 4, 1
        v_lshl_add_u32 v{T+3}, v{T+2}, 5, v{T+3}
        v_and_b32 v{T+2}, 3, v2
        v_lshl_add_u32 v{AW}, v{T+2}, 3, v{T+3}
        v_add_u32 v{AW+1}, {WO2}, v{AW}
        v_mul_u32_u24 v{EA}, 4608, v1
        v_lshl_add_u32 v{EA}, v{T+1}, 4, v{EA}
        v_lshl_add_u32 v{EA+1}, v{T+1}, 9, v{T+4}
        s_barrier
        """)
        def rl3(s):
            st, off = (0, s * 3072) if s < 18 else (1, (s - 18) * 3072)
            l = []
            for nt in range(3):
                for hf in range(2):
                    r = FW + (s % 3) * 12 + nt * 4 + hf * 2
                    l.append(f"ds_read_b64_tr_b16 v[{r}:{r+1}], v{AW+st} offset:{off + nt*1024 + hf*256}")
            return l
        for x in rl3(0) + rl3(1): a(x)
        self.poll("L_pollF4", T + 5, T + 4, "s34", n=1)
        self.stamp(10)
        a(f"s_mul_i32 s30, s{S_P3T}, {36*1024}\ns_add_u32 s30, s30, {OW}")
        def oload(s):
            r = FO + 4 * s
            if s < 32:
                l = [f"buffer_load_dwordx4 v[{r}:{r+3}], v3, s[4:7], s30 offen offset:{(s%4)*1024} {LDF}"]
                if s % 4 == 3: l.append("s_add_u32 s30, s30, 4096")
                return l
            return [f"buffer_load_dword v{r+j}, v{EA+1}, s[4:7], s30 offen offset:{(s-32)*1024 + j*128} {LDF}" for j in range(4)]
        D = int(self.opt.get('a3d', 12))
        cnt = [1] * 32 + [4] * 4
        for s in range(D):
            for x in oload(s): a(x)
        for s in range(36):
            out = sum(cnt[s + 1:min(36, s + D)])
            a(f"s_waitcnt vmcnt({out}) lgkmcnt({6 if s < 35 else 0})")
            mf = []
            for nt in range(3):
                d = ACC + nt * 16; w = FW + (s % 3) * 12 + nt * 4; o = FO + 4 * s
                c = "0" if s == 0 else f"v[{d}:{d+15}]"
                mf.append(f"v_mfma_f32_32x32x16_bf16 v[{d}:{d+15}], v[{w}:{w+3}], v[{o}:{o+3}], {c}")
            oth = (rl3(s + 2) if s + 2 < 36 else [])
            ilv(a, mf, oth)
            if s + D < 36:
                for x in oload(s + D): a(x)
        a(f"""
        s_mul_i32 s30, s{S_P3T}, {32*4608}
        s_sub_u32 s31, s{S_P3NB}, 9
        s_mul_i32 s31, s31, 384
        s_add_u32 s30, s30, s31
        s_nop 8
        """)
        self.stamp(11)
        for e in range(12):
            d = ACC + 4 * e
            a(f"buffer_store_dwordx4 v[{d}:{d+3}], v{EA}, s[16:19], s30 offen offset:{e*32}")

    def finish(self):
        a = self.a
        a.label("L_exit")
        if self.stamp_on:
            self.stamp(12)
            a("s_waitcnt vmcnt(0)")
            self.stamp(13); self.stamp(15, True)
            a(f"""
            s_lshl_b32 s30, s2, 3
            s_add_u32 s30, s30, s{S_WAVE}
            s_lshl_b32 s30, s30, 8
            s_add_u32 s30, s30, {STB}
            v_lshlrev_b32 v3, 2, v2
            buffer_store_dword v{VST}, v3, s[4:7], s30 offen
            s_cmp_lg_u32 s30, {STB + (int(self.opt.get("dbgwg", 13))*8 + int(self.opt.get("dbgwave", 0)))*256}
            s_cbranch_scc1 L_end
            v_readlane_b32 s31, v{VST}, 0
            v_readlane_b32 s32, v{VST}, 14
            v_readlane_b32 s33, v{VST}, 15
            v_readlane_b32 s34, v{VST}, 16
            s_sub_u32 s33, s33, s32
            s_add_u32 s33, s33, s31
            s_nop 0
            v_writelane_b32 v{VST}, s33, 14
            v_writelane_b32 v{VST}, s34, 15
            v_subrev_u32 v{VST}, s31, v{VST}
            s_mov_b64 exec, 0xfffe
            global_store_dword v3, v{VST}, s[{P_DBG}:{P_DBG+1}]
            """)
        a.label("L_end")
        a("s_endpgm")

def gen_mega(name, stamp=False, stop=99, opt=None):
    g = G(stamp, stop, opt)
    g.a.raw(kernel_header(name))
    g.prologue(); g.p1_loader(); g.p1_compute()
    if stop >= 2: g.attention()
    if stop >= 3: g.p3()
    g.finish()
    return g.a.text(), kernel_desc(name, 256, 98)

if __name__ == "__main__":
    import sys
    from build import *
    KN = NAME + "_kernel"
    out = sys.argv[1]; stamp = len(sys.argv) > 2 and sys.argv[2] == "1"; stop = 99
    opt = dict((kv.split("=") + ["1"])[:2] for kv in sys.argv[3:])
    if "plain" in opt: LDF = ""
    compose([gen_mega(KN, stamp, stop, opt)], [(KN, 256, 512, LDS_TOTAL)], out)
    assemble(out)
```

```python
from asmlib import *
from lay2 import *
import math, struct
def f32(x): return "0x%08x" % struct.unpack("<I", struct.pack("<f", x))[0]
QSCALE = f32(18 ** -0.5 * math.log2(math.e))
WT = "sc0 sc1"
LDF = "sc0 sc1"
SPIN_MAX = 20000
P_AX, P_WQKV, P_WO, P_BX, P_LRE, P_LIM, P_BRE, P_BIM, P_CRE, P_CIM, P_LDT, P_DSK, P_OUT, P_DBG, P_WS = range(64, 94, 2)
S_WAVE, S_XCD, S_IDX, S_MB, S_NB, S_TYPE, S_CHB, S_CHA, S_HALF, S_CH = 3, 20, 21, 22, 23, 24, 25, 26, 27, 29
S_P3MB, S_P3NB, S_HD, S_LW, S_P3T = 37, 38, 39, 51, 57
S_GK, S_K4, S_GV, S_LP = 52, 54, 55, 56
S_HB, S_CB, S_SL3, S_ST3 = 52, 53, 54, 55
NV = 168
VST = 167
BS = 64
SPILL = 0x1200000
LR, LI, CR, CI, LCR, LCI, PWR, PWI, MUR, MUI = range(BS + 32, BS + 42)
C0, CHB = 5, 19968
LDS_W = 8 * CHB
W_LAND, W_PROG, W_UNS, W_BAR, W_DRN = LDS_W, LDS_W + 64, LDS_W + 96, LDS_W + 100, LDS_W + 104
W_F1 = LDS_W + 108
LDS_SCR = LDS_W + 512
B1BASE, BSLOT = 0, 24576
R3 = [100352, 124928, 2048, 26624]
W_OK = 8 * 19968 + 112
W_P2, W_G2, W_G3 = 8 * 19968 + 116, 8 * 19968 + 120, 8 * 19968 + 124
TSCR = 100352
FIN_OK, FIN_BAD = 0x40000000, 0x50000000
R3BASE = 2048
WO2 = 100352
QS, VS, OS, HS = 289, 9344, 37 * 1024, 37
def pad_touch():
    pads = [QKP + (q * QS + 288) * 1024 for q in range(16)] + [VT + o * VS + 9216 for o in range(256)]
    pads += [OW + t * OS + 36 * 1024 for t in range(64)] + [HH + (t * HS + 36) * 2048 for t in range(64)] + [EE + 0x80000, FL + 0x80000]
    G = 1 << 20
    seen = {}
    for p in pads: seen.setdefault(p // G, p)
    return sorted(seen.values())
F1STRIDE = 128 * NSUB
W_FULL, W_FREE = 8 * 19968 + 2560, 8 * 19968 + 2816
R6 = [100352, 124928, 2048, 26624, 51200, 75776]

def ilv(a, mf, other):
    n = len(mf); k = 0
    for i, m in enumerate(mf):
        a(m)
        upto = (len(other) * (i + 1) + n - 2) // (n - 1) if i < n - 1 else len(other)
        upto = min(upto, len(other))
        while k < upto: a(other[k]); k += 1

class G:
    def __init__(self, stamp=False, opt=None):
        self.a = Asm(); self.stamp_on = stamp; self.opt = opt or {}; self.stubs = []
    def stamp(self, k, real=False):
        if not self.stamp_on: return
        op = "s_memrealtime" if (real or k not in (62, 61)) else "s_memtime"
        self.a(f"{op} s[94:95]\ns_waitcnt lgkmcnt(0)\nv_writelane_b32 v{VST}, s94, {k}")
    def stampx(self, base, force=False):
        if not self.stamp_on or not (force or self.opt.get("stx")): return
        self.a(f"s_memrealtime s[94:95]\ns_add_u32 m0, s96, {base}\ns_add_u32 s96, s96, 1\ns_waitcnt lgkmcnt(0)\nv_writelane_b32 v{VST}, s94, m0")
    def srd(self, d, p, n):
        self.a(f"s_mov_b32 s{d}, s{p}\ns_and_b32 s{d+1}, s{p+1}, 0xffff\ns_mov_b32 s{d+2}, {n}\ns_mov_b32 s{d+3}, 0x20000")
    def poll(self, lab, vdst, voff, soff, n=1, want="1", sleep=2):
        a = self.a
        ld = f"buffer_load_dword v{vdst}, v{voff}, s[4:7], {soff} offen sc0 sc1" if n == 1 else f"buffer_load_dwordx4 v[{vdst}:{vdst+3}], v{voff}, s[4:7], {soff} offen sc0 sc1"
        a("s_mov_b32 s33, 0")
        a.label(lab)
        a(ld + "\ns_waitcnt vmcnt(0)")
        if n == 4:
            a(f"v_and_b32 v{vdst}, v{vdst}, v{vdst+1}\nv_and_b32 v{vdst+2}, v{vdst+2}, v{vdst+3}\nv_and_b32 v{vdst}, v{vdst}, v{vdst+2}")
        a(f"""
        v_cmp_ne_u32 vcc, {want}, v{vdst}
        s_add_u32 s33, s33, 1
        s_cmp_gt_u32 s33, {SPIN_MAX}
        s_cbranch_scc1 {lab}_x
        s_cbranch_vccz {lab}_x
        s_sleep {sleep}
        s_branch {lab}
        """)
        a.label(lab + "_x")
    def lds_spin(self, vaddr, vtmp, want, off=0, sleep=0):
        a = self.a; lab = a.newlabel("L_sp")
        a("s_mov_b32 s33, 0")
        a.label(lab)
        a(f"""
        ds_read_b32 v{vtmp}, v{vaddr} offset:{off}
        s_add_u32 s33, s33, 1
        s_waitcnt lgkmcnt(0)
        v_readfirstlane_b32 s32, v{vtmp}
        s_cmp_ge_u32 s32, {want}
        s_cbranch_scc1 {lab}x
        {f"s_sleep {sleep}" if sleep else ""}
        s_cmp_lt_u32 s33, {SPIN_MAX*16}
        s_cbranch_scc1 {lab}
        """)
        a.label(lab + "x")
    def lds_add1(self, vaddr, vone, off=0):
        self.a(f"s_mov_b64 exec, 1\nds_add_u32 v{vaddr}, v{vone} offset:{off}\ns_mov_b64 exec, -1")
    def flag_store(self, sregs, T):
        a = self.a
        a(f"v_mov_b32 v{T}, 0\nv_mov_b32 v{T+1}, 1\ns_mov_b64 exec, 1")
        for r in sregs: a(f"buffer_store_dword v{T+1}, v{T}, s[4:7], s{r} offen {WT}")
        a("s_mov_b64 exec, -1")
    def warm(self, items, T, dst):
        a = self.a
        if self.opt.get("nowarm"): return
        a(f"s_lshl_b32 s30, s{S_LW}, 8\ns_add_u32 s30, s30, s2\ns_lshl_b32 s30, s30, 10\nv_add_u32 v{T}, s30, v3")
        for (p, n) in items:
            self.srd(8, p, n)
            for r in range((n + (1 << 20) - 1) >> 20):
                a(f"s_mov_b32 s30, {r << 20}\nbuffer_load_dwordx4 v[{dst}:{dst+3}], v{T}, s[8:11], s30 offen")
    def warmx(self, items, T, dst):
        a = self.a
        a(f"s_lshl_b32 s30, s{S_IDX}, 2\ns_add_u32 s30, s30, s{S_LW}\ns_lshl_b32 s30, s30, 10\nv_add_u32 v{T}, s30, v3")
        for (p, n) in items:
            self.srd(8, p, n)
            for r in range((n + (1 << 17) - 1) >> 17):
                a(f"s_mov_b32 s30, {r << 17}\nbuffer_load_dwordx4 v[{dst}:{dst+3}], v{T}, s[8:11], s30 offen")
    def make_vx(self, dst, n, sa, sb, sc1, sc0, T):
        a = self.a
        a(f"""
        v_lshrrev_b32 v{T}, 3, v2
        v_and_b32 v{T+1}, 7, v2
        v_lshrrev_b32 v{T+2}, 1, v{T}
        v_xor_b32 v{T+1}, v{T+1}, v{T+2}
        v_lshrrev_b32 v{T+2}, 2, v{T}
        v_and_b32 v{T}, 3, v{T}
        v_mul_u32_u24 v{T+2}, {sa}, v{T+2}
        v_mul_u32_u24 v{T}, {sb}, v{T}
        v_add_u32 v{T}, v{T}, v{T+2}
        v_mul_u32_u24 v{T}, 1152, v{T}
        v_lshl_add_u32 v{dst}, v{T+1}, 4, v{T}
        v_xor_b32 v{T+1}, 4, v{T+1}
        v_lshl_add_u32 v{dst+1}, v{T+1}, 4, v{T}
        s_mul_i32 s34, {sc0}, 1152
        s_sub_u32 s34, s34, 1024
        v_add_u32 v{dst+1}, s34, v{dst+1}
        """)
        if n == 4:
            a(f"s_mul_i32 s34, {sc1}, 1152\ns_sub_u32 s34, s34, 2048\nv_add_u32 v{dst+2}, s34, v{dst}\nv_add_u32 v{dst+3}, s34, v{dst+1}")
    def swz(self, Z, T, add=0):
        a = self.a
        a(f"""
        v_lshrrev_b32 v{T+1}, 5, v2
        v_bfe_u32 v{T+2}, v1, 1, 3
        v_xor_b32 v{T+2}, v{T+2}, v{T+1}
        v_lshlrev_b32 v{T+3}, 7, v1
        v_add_u32 v{T+3}, {add}, v{T+3}
        """)
        for s in range(4): a(f"v_xor_b32 v{T+4}, {2*s}, v{T+2}\nv_lshl_add_u32 v{Z+s}, v{T+4}, 4, v{T+3}")

    def prologue(self):
        a = self.a
        a(f"""
        s_cmp_ge_u32 s2, 256
        s_cbranch_scc1 L_end
        {"s_memrealtime s[98:99]" if self.stamp_on else ""}
        s_load_dwordx16 s[64:79], s[0:1], 0
        s_load_dwordx8 s[80:87], s[0:1], 64
        s_load_dwordx4 s[88:91], s[0:1], 96
        s_load_dwordx2 s[92:93], s[0:1], 112
        v_lshrrev_b32 v1, 6, v0
        v_and_b32 v2, 63, v0
        v_readfirstlane_b32 s{S_WAVE}, v1
        v_lshlrev_b32 v3, 4, v2
        v_and_b32 v1, 31, v0
        s_and_b32 s{S_XCD}, s2, 7
        s_lshr_b32 s{S_IDX}, s2, 3
        """)
        if self.stamp_on: a(f"v_mov_b32 v{VST}, 0\ns_mov_b32 s96, 0")
        if self.stamp_on and self.opt.get("st0"): a(f"s_waitcnt lgkmcnt(0)"); self.stamp(2)
        a(f"""
        s_and_b32 s30, s{S_XCD}, 3
        s_lshl_b32 s30, s30, 2
        s_and_b32 s31, s{S_IDX}, 3
        s_add_u32 s{S_MB}, s30, s31
        s_lshl_b32 s{S_HD}, s{S_XCD}, 2
        s_add_u32 s{S_HD}, s{S_HD}, s31
        s_lshr_b32 s30, s{S_XCD}, 2
        s_lshr_b32 s31, s{S_IDX}, 2
        s_mul_i32 s32, s30, 7
        s_add_u32 s{S_NB}, s32, s31
        s_mul_i32 s32, s30, 9
        s_add_u32 s{S_CHB}, s32, s31
        s_add_u32 s{S_CHA}, s32, 8
        s_cmp_ge_u32 s{S_NB}, 9
        s_cselect_b32 s{S_TYPE}, 1, 0
        s_cmp_ge_u32 s{S_IDX}, 28
        s_cselect_b32 s{S_TYPE}, 2, s{S_TYPE}
        s_and_b32 s{S_LW}, s{S_WAVE}, 3
        """)
        G_ = int(self.opt.get("rotg", 3))
        a(f"s_and_b32 s30, s{S_IDX}, 3\ns_lshr_b32 s31, s{S_IDX}, 2\ns_add_u32 s30, s30, s31")
        if G_ == 1: a("s_mov_b32 s28, 0")
        elif G_ == 2: a("s_and_b32 s30, s30, 1\ns_mul_i32 s28, s30, 5")
        elif G_ == 3: a("s_mul_i32 s31, s30, 43\ns_lshr_b32 s31, s31, 7\ns_mul_i32 s31, s31, 3\ns_sub_u32 s30, s30, s31\ns_mul_i32 s28, s30, 3")
        elif G_ == 4: a("s_and_b32 s30, s30, 3\ns_mul_i32 s28, s30, 9\ns_lshr_b32 s28, s28, 2")
        a(f"""
        s_cmp_lt_u32 s{S_WAVE}, 4
        s_cbranch_scc1 L_aux
        """)

    def p3_ids(self):
        self.a(f"""
        s_lshl_b32 s{S_P3MB}, s{S_XCD}, 1
        s_and_b32 s30, s{S_IDX}, 1
        s_add_u32 s{S_P3MB}, s{S_P3MB}, s30
        s_lshr_b32 s{S_P3NB}, s{S_IDX}, 1
        s_lshl_b32 s{S_P3T}, s{S_P3MB}, 2
        s_add_u32 s{S_P3T}, s{S_P3T}, s{S_LW}
        """)

    def p1_loader(self):
        a = self.a
        VX, T = 4, 12
        SI, SB, ST, SL = 41, 43, 44, 45
        a(f"""
        s_cmp_eq_u32 s{S_TYPE}, 2
        s_cbranch_scc1 L_p1l_sp
        s_mov_b32 s{SI}, 0
        s_sub_u32 s42, 9, s28
        s_lshl_b32 s{SL}, s{S_LW}, 12
        s_cmp_ge_u32 s{S_WAVE}, 8
        s_cbranch_scc1 L_p1l_w
        s_cmp_eq_u32 s{S_TYPE}, 0
        s_cselect_b32 s46, 2, 1
        s_cselect_b32 s47, 32, 16
        s_cselect_b32 s48, 16, 4
        s_lshr_b32 s30, s{S_LW}, 1
        s_lshl_b32 s30, s30, 6
        s_and_b32 s31, s{S_LW}, 1
        s_add_u32 s30, s30, s31
        s_lshl_b32 s31, s{S_LW}, 5
        s_cmp_eq_u32 s{S_TYPE}, 0
        s_cselect_b32 s30, s30, s31
        s_lshl_b32 s31, s{S_MB}, 7
        s_add_u32 s30, s30, s31
        s_mul_i32 s{SB}, s30, 1152
        s_mov_b32 s{ST}, 128
        """)
        self.make_vx(VX, 4, "8", "s46", "s47", "s48", T)
        a("s_waitcnt lgkmcnt(0)")
        self.srd(8, P_AX, 2048 * 1152)
        a("s_branch L_p1l_go")
        a.label("L_p1l_w")
        a(f"""
        s_mul_i32 s30, s{S_LW}, {16*3456}
        s_lshl_b32 s31, s{S_NB}, 8
        s_add_u32 s{SB}, s30, s31
        s_mov_b32 s{ST}, {64*3456}
        s_add_u32 s{SL}, s{SL}, 16384
        v_lshrrev_b32 v{T}, 4, v2
        v_and_b32 v{T+1}, 15, v2
        v_lshlrev_b32 v{T+2}, 2, v{T}
        v_xor_b32 v{T+1}, v{T+1}, v{T+2}
        v_mul_u32_u24 v{T}, 3456, v{T}
        v_lshl_add_u32 v{VX}, v{T+1}, 4, v{T}
        v_add_u32 v{VX+1}, {4*3456-1024}, v{VX}
        v_add_u32 v{VX+2}, {2*(4*3456-1024)}, v{VX}
        v_add_u32 v{VX+3}, {3*(4*3456-1024)}, v{VX}
        s_waitcnt lgkmcnt(0)
        """)
        self.srd(8, P_WQKV, 576 * 3456)
        a.label("L_p1l_go")
        a(f"s_mul_i32 s30, s28, s{ST}\ns_add_u32 s{SB}, s{SB}, s30\ns_mul_i32 s46, s{ST}, 9")
        self.stamp(1)
        a.label("L_p1l_issue")
        a(f"s_mov_b32 m0, s{SL}\ns_add_u32 s{SI}, s{SI}, 1")
        for n in range(4): a(f"buffer_load_dwordx4 v{VX+n}, s[8:11], s{SB} offen offset:{n*1024} lds")
        a(f"""
        s_add_u32 s{SB}, s{SB}, s{ST}
        s_cmp_eq_u32 s{SI}, s42
        s_cselect_b32 s30, s46, 0
        s_sub_u32 s{SB}, s{SB}, s30
        s_add_u32 s{SL}, s{SL}, 32768
        s_sub_u32 s30, s{SL}, 163840
        s_cmp_ge_u32 s{SL}, 163840
        s_cselect_b32 s{SL}, s30, s{SL}
        s_cmp_lt_u32 s{SI}, 3
        s_cbranch_scc1 L_p1l_issue
        s_waitcnt vmcnt(8)
        s_barrier
        """)
        a(f"s_cmp_lt_u32 s{SI}, 9\ns_cbranch_scc1 L_p1l_issue")
        a.label("L_p1l_sp")
        a("s_waitcnt lgkmcnt(0)")
        self.b1_loader()
        a(f"s_cmp_eq_u32 s{S_TYPE}, 2\ns_cbranch_scc1 L_p1l_sp2")
        nw = 0
        if not self.opt.get("nowarmb"):
            nw = 3
            a(f"""
            s_lshl_b32 s30, s{S_IDX}, 2
            s_and_b32 s31, s{S_LW}, 1
            s_add_u32 s30, s30, s31
            s_lshr_b32 s31, s{S_WAVE}, 3
            s_lshl_b32 s31, s31, 1
            s_add_u32 s30, s30, s31
            s_mul_i32 s30, s30, 3072
            s_lshr_b32 s31, s{S_XCD}, 2
            s_mul_i32 s31, s31, {288*1152}
            s_add_u32 s30, s30, s31
            """)
            for n in range(3): a(f"buffer_load_dwordx4 v[80:83], v3, s[12:15], s30 offen offset:{n*1024}")
        a(f"s_waitcnt vmcnt({4+nw})\ns_barrier\ns_waitcnt vmcnt({nw})\ns_barrier")
        a.label("L_p1l_sp2")
        a(f"""
        s_cmp_lg_u32 s{S_WAVE}, 8
        s_cbranch_scc1 L_p1l_b
        v_lshlrev_b32 v9, 2, v2
        v_add_u32 v9, {LDS_W}, v9
        v_cmp_eq_u32 vcc, 8, v2
        v_mov_b32 v10, 4
        v_mov_b32 v8, 0
        v_cndmask_b32 v10, v8, v10, vcc
        ds_write_b32 v9, v10
        ds_write_b32 v9, v8 offset:2560
        ds_write_b32 v9, v8 offset:2816
        s_waitcnt lgkmcnt(0)
        """)
        a.label("L_p1l_b")
        a("s_barrier")
        self.srd(4, P_WS, WS_BYTES)
        if self.opt.get("drn"):
            a(f"s_cmp_eq_u32 s{S_TYPE}, 2\ns_cbranch_scc1 L_p1l_sp4\nv_mov_b32 v70, {W_DRN}")
            self.lds_spin(70, 71, int(self.opt["drn"]), sleep=1)
            a.label("L_p1l_sp4")
        self.b1_run()
        self.helper()

    def aux_start(self):
        a = self.a
        a(f"s_cmp_lg_u32 s{S_WAVE}, 3\ns_cbranch_scc1 L_nopf\ns_getpc_b64 s[30:31]")
        a.label("L_pc")
        a(f"""
        s_sub_u32 s30, s30, L_pc-L_code0
        s_subb_u32 s31, s31, 0
        s_lshl_b32 s32, s{S_IDX}, 10
        s_cmp_ge_u32 s32, L_end-L_code0-1024
        s_cbranch_scc1 L_nopf
        s_add_u32 s30, s30, s32
        s_addc_u32 s31, s31, 0
        v_mov_b32 v5, s31
        v_add_co_u32 v4, vcc, s30, v3
        s_nop 1
        v_addc_co_u32 v5, vcc, 0, v5, vcc
        global_load_dword v154, v[4:5], off
        """)
        a.label("L_nopf")
        a("s_waitcnt lgkmcnt(0)")
        self.srd(4, P_WS, WS_BYTES)
        for r in (8, 9, 10, 11, 152): a(f"v_mov_b32 v{r}, 0")
        if not self.opt.get("notlb"):
            a(f"s_cmp_lg_u32 s{S_WAVE}, 2\ns_cbranch_scc1 L_notlb")
            pt = pad_touch()
            for i, p in enumerate(pt): a(f"s_mov_b32 s30, {p}\nv_writelane_b32 v9, s30, {i}")
            a(f"s_mov_b64 exec, {(1 << len(pt)) - 1}\nbuffer_load_dword v154, v9, s[4:7], 0 offen\ns_mov_b64 exec, 0x1ff\nv_lshlrev_b32 v9, 20, v2")
            a(f"global_load_dword v154, v9, s[{P_OUT}:{P_OUT+1}]\ns_mov_b64 exec, 7\nglobal_load_dword v154, v9, s[{P_BX}:{P_BX+1}]\ns_mov_b64 exec, 1")
            for p in (P_WO, P_LRE, P_LIM, P_BRE, P_BIM, P_CRE, P_CIM, P_LDT, P_DSK): a(f"global_load_dword v154, v8, s[{p}:{p+1}]")
            a("s_mov_b64 exec, -1")
            a.label("L_notlb")
    def zero_flags(self):
        a = self.a
        a(f"s_lshl_b32 s30, s2, 4\ns_add_u32 s30, s30, s{S_WAVE}\ns_cmp_lg_u32 s30, {255*16}\ns_cbranch_scc1 L_nz\ns_mov_b32 s30, {FL}\nv_mov_b32 v24, 0\nv_mov_b32 v25, 0\nv_mov_b32 v26, 0\nv_mov_b32 v27, 0")
        for i in range(FLBYTES // 1024):
            a(f"buffer_store_dwordx4 v[24:27], v3, s[4:7], s30 offen offset:{(i%4)*1024} {WT}")
            if i % 4 == 3: a("s_add_u32 s30, s30, 4096")
        a(f"""
        s_waitcnt vmcnt(0)
        v_mov_b32 v28, 1
        s_mov_b64 exec, 1
        global_store_dword v8, v28, s[{P_DBG}:{P_DBG+1}] {WT}
        s_mov_b64 exec, -1
        """)
        a.label("L_nz")
    def dbg_load(self):
        self.a(f"v_mov_b32 v152, 0\nglobal_load_dword v153, v152, s[{P_DBG}:{P_DBG+1}]")
    def dbg_verify(self):
        a = self.a; l = a.newlabel("L_dv")
        a("s_mov_b32 s33, 0")
        a.label(l)
        a(f"""
        v_readfirstlane_b32 s32, v153
        s_cmp_eq_u32 s32, 1
        s_cbranch_scc1 {l}x
        s_add_u32 s33, s33, 1
        s_cmp_gt_u32 s33, {SPIN_MAX}
        s_cbranch_scc1 {l}x
        s_sleep 8
        global_load_dword v153, v152, s[{P_DBG}:{P_DBG+1}] sc0 sc1
        s_waitcnt vmcnt(0)
        s_branch {l}
        """)
        a.label(l + "x")
        a(f"ds_write_b32 v{self.WA}, v{self.ONE} offset:{W_OK - W_BAR}")
    def wait_ok(self, T):
        self.a(f"v_mov_b32 v{T}, {W_OK}")
        self.lds_spin(T, T + 1, 1, sleep=2)

    def kv_setup(self, T, VV, first):
        a = self.a
        a(f"""
        s_lshr_b32 s30, s{S_HD}, 1
        s_mul_i32 s30, s30, 9
        s_and_b32 s31, s{S_HD}, 1
        s_lshl_b32 s31, s31, 2
        s_add_u32 s36, s30, s31                  ; f
        s_add_u32 s30, s36, s{S_LW}
        s_lshl_b32 s30, s30, 10
        s_mul_i32 s31, {first}, {2*QS*1024}
        s_add_u32 s30, s30, s31
        s_add_u32 s{S_GK}, s30, {QKP + 144*1024}
        s_cmp_eq_u32 s{S_LW}, 0
        s_cselect_b32 s{S_K4}, 0, {(QS-5)*1024}
        s_add_u32 s{S_K4}, s{S_K4}, 4096
        s_mul_i32 s30, s{S_HD}, 288
        s_mul_i32 s31, s{S_LW}, {3*VS}
        s_add_u32 s30, s30, s31
        s_mul_i32 s31, {first}, {32*VS}
        s_add_u32 s30, s30, s31
        s_add_u32 s{S_GV}, s30, {VT}
        v_mul_u32_u24 v{T}, 27, v2
        v_lshrrev_b32 v{T}, 9, v{T}
        v_mul_u32_u24 v{VV}, 19, v{T}
        v_sub_u32 v{VV}, v2, v{VV}
        v_cmp_gt_u32 vcc, 18, v{VV}
        v_cmp_gt_u32 s[58:59], 3, v{T}
        v_cmp_gt_u32 s[60:61], 2, v{T}
        v_mul_u32_u24 v{T}, {VS}, v{T}
        v_lshl_add_u32 v{VV}, v{VV}, 4, v{T}
        s_and_b64 s[58:59], s[58:59], vcc
        s_and_b64 s[60:61], s[60:61], vcc
        s_cmp_eq_u32 s{S_LW}, 2
        s_cselect_b64 s[60:61], s[60:61], s[58:59]
        s_add_u32 s30, {first}, {C0}
        s_and_b32 s30, s30, 7
        s_mul_i32 s{S_LP}, s30, {CHB}
        v_mul_u32_u24 v{VV+1}, {VROW}, v1
        v_add_u32 v{VV+1}, {10240 + 288}, v{VV+1}
        """)
    def k_part(self):
        a = self.a; l1 = a.newlabel("L_kd")
        a(f"""
        s_lshl_b32 s31, s{S_LW}, 10
        s_add_u32 s31, s31, s{S_LP}
        s_mov_b32 m0, s31
        s_add_u32 s30, s{S_GK}, s{S_K4}
        buffer_load_dwordx4 v3, s[4:7], s{S_GK} offen {LDF} lds
        s_add_u32 m0, s31, 4096
        s_cmp_ge_u32 s{S_LW}, 2
        buffer_load_dwordx4 v3, s[4:7], s30 offen {LDF} lds
        s_cbranch_scc1 {l1}
        s_add_u32 m0, s31, 8192
        s_add_u32 s30, s{S_GK}, {(QS+3)*1024}
        buffer_load_dwordx4 v3, s[4:7], s30 offen {LDF} lds
        """)
        a.label(l1)
    def v_part(self, VV, ONES, T):
        a = self.a; l2 = a.newlabel("L_vd")
        a(f"""
        s_mul_i32 s31, s{S_LW}, {3*VROW}
        s_add_u32 s31, s31, s{S_LP}
        s_add_u32 m0, s31, 10240
        s_mov_b64 exec, s[58:59]
        buffer_load_dwordx4 v{VV}, s[4:7], s{S_GV} offen {LDF} lds
        s_add_u32 m0, s31, {10240 + 12*VROW}
        s_add_u32 s30, s{S_GV}, {12*VS}
        buffer_load_dwordx4 v{VV}, s[4:7], s30 offen {LDF} lds
        s_cmp_eq_u32 s{S_LW}, 3
        s_cbranch_scc1 {l2}
        s_add_u32 m0, s31, {10240 + 24*VROW}
        s_add_u32 s30, s{S_GV}, {24*VS}
        s_mov_b64 exec, s[60:61]
        buffer_load_dwordx4 v{VV}, s[4:7], s30 offen {LDF} lds
        """)
        a.label(l2)
        a(f"s_mov_b64 exec, -1\nv_add_u32 v{T}, s{S_LP}, v{VV+1}\nds_write_b128 v{T}, v[{ONES}:{ONES+3}]")
    def kv_next(self):
        self.a(f"""
        s_add_u32 s{S_GK}, s{S_GK}, {2*QS*1024}
        s_add_u32 s{S_GV}, s{S_GV}, {32*VS}
        s_add_u32 s{S_LP}, s{S_LP}, {CHB}
        s_cmp_eq_u32 s{S_LP}, {8*CHB}
        s_cselect_b32 s{S_LP}, 0, s{S_LP}
        """)
    def kv_half(self, grp, VV, ONES, T):
        a = self.a; l = a.newlabel("L_kh")
        a(f"s_cmp_lg_u32 s{grp}, 0\ns_cbranch_scc1 {l}v")
        self.k_part()
        a(f"s_branch {l}e")
        a.label(l + "v")
        self.v_part(VV, ONES, T)
        a.label(l + "e")
        self.kv_next()
    def poll_f1(self, lab, T, poller=False):
        a = self.a
        a(f"v_mov_b32 v{T+2}, {W_F1}")
        if poller:
            a(f"s_cmp_lg_u32 s{S_WAVE}, 4\ns_cbranch_scc1 {lab}_w")
            self.wait_ok(T)
            a(f"s_mul_i32 s34, s{S_HD}, {F1STRIDE}\ns_add_u32 s34, s34, {F1}\nv_and_b32 v{T}, {NSUB-1}, v2\nv_lshlrev_b32 v{T}, 7, v{T}")
            self.poll(lab, T + 1, T, "s34", want=str(864 // NSUB), sleep=int(self.opt.get("f1sleep", 4)))
            a(f"v_mov_b32 v{T}, 1\nds_write_b32 v{T+2}, v{T}")
            a.label(lab + "_w")
        self.lds_spin(T + 2, T + 1, 1, sleep=1)

    def wait_prog(self, val, T, sleep=4):
        a = self.a; lab = a.newlabel("L_pg")
        a(f"v_and_b32 v{T}, 3, v2\nv_lshlrev_b32 v{T}, 2, v{T}\nv_add_u32 v{T}, {W_PROG}, v{T}\ns_mov_b32 s33, 0\ns_mov_b32 s30, {FIN_BAD}")
        a.label(lab)
        a(f"""
        ds_read_b32 v{T+1}, v{T}
        s_add_u32 s33, s33, 1
        s_waitcnt lgkmcnt(0)
        v_cmp_gt_u32 vcc, {val}, v{T+1}
        s_cmp_gt_u32 s33, {SPIN_MAX*8}
        s_cbranch_scc1 {lab}x
        s_cbranch_vccz {lab}x
        s_sleep {sleep}
        s_branch {lab}
        """)
        a.label(lab + "x")
    def f4(self, n, T):
        a = self.a; lab = a.newlabel("L_f4")
        a(f"s_cmp_eq_u32 s50, 0\ns_cbranch_scc1 {lab}\ns_waitcnt vmcnt({n})")
        self.flag_store([36], T)
        a.label(lab)

    def final_check(self, T, lab_bad, sleep=2):
        self.wait_prog(FIN_OK, T, sleep)
        self.a(f"v_cmp_eq_u32 vcc, s30, v{T+1}\ns_cbranch_vccnz {lab_bad}")

    def attention(self):
        a = self.a
        QM, QL, IDX, AK, AV, AL, T0, T1 = 4, 12, 14, 15, 16, 17, 18, 19
        KM, KL, VF, O, S0, S1 = 20, 24, 28, 44, 76, 108
        LK, LV, LL, CA, CK, PW, VV, AK2, KM2 = 140, 141, 142, 143, 144, 145, 146, 151, 152
        TQ, PAR, CH, IT, DK, FB, MC, MB_, MI = 41, 42, 43, 44, 45, 47, 48, 49, 50
        HD = S_HD
        a.label("L_p1_fin")
        self.srd(4, P_WS, WS_BYTES)
        self.kv_setup(T0, VV, "0")
        a(f"""
        s_lshr_b32 s{TQ}, s{S_IDX}, 2
        s_lshl_b32 s{TQ}, s{TQ}, 3
        s_lshl_b32 s30, s{S_LW}, 1
        s_add_u32 s{TQ}, s{TQ}, s30
        s_lshr_b32 s32, s{TQ}, 2
        s_mul_i32 s32, s32, {QS}
        s_add_u32 s32, s32, s36
        s_lshl_b32 s32, s32, 10
        s_and_b32 s30, s{TQ}, 3
        s_lshl_b32 s30, s30, 8
        s_add_u32 s32, s32, s30
        s_add_u32 s35, s32, {QKP}
        s_and_b32 s{PAR}, s{HD}, 1
        v_lshrrev_b32 v{T1}, 5, v2
        v_lshlrev_b32 v{T0}, 3, v1
        v_lshl_add_u32 v{LK}, v{T1}, 11, v{T0}
        s_lshl_b32 s30, s{PAR}, 10
        v_add_u32 v{LK}, s30, v{LK}
        s_mul_i32 s31, s{PAR}, 4092
        s_sub_u32 s31, 4096, s31
        v_add_u32 v{LL}, s31, v{T0}
        v_lshl_add_u32 v{AL}, v2, 3, s31
        v_min_u32 v{AV}, 18, v1
        v_mul_u32_u24 v{T1}, {VROW}, v{T1}
        v_lshl_add_u32 v{LV}, v{AV}, 4, v{T1}
        v_add_u32 v{LV}, {10240 + C0*CHB}, v{LV}
        v_cmp_lt_u32 vcc, 18, v1
        v_cmp_ne_u32 s[30:31], 28, v1
        s_and_b64 vcc, vcc, s[30:31]
        v_mov_b32 v{T1}, 0x100000
        v_mov_b32 v{IDX}, 0xdddd
        v_cndmask_b32 v{LV}, v{LV}, v{T1}, vcc
        v_mov_b32 v{KL}, 0x3f803f80
        v_mov_b32 v{KL+1}, 0x3f803f80
        v_mov_b32 v{KL+2}, 0x3f803f80
        v_mov_b32 v{KL+3}, 0x3f803f80
        s_lshl_b32 s30, s{S_LW}, 2
        s_add_u32 s30, s30, {W_PROG}
        v_mov_b32 v{PW}, s30
        s_mov_b32 s62, 0
        s_mov_b32 s63, -1
        s_mov_b32 s{FB}, 0
        s_mov_b32 s{MC}, 1
        s_mov_b32 s{MB_}, {C0*CHB}
        """)
        self.stamp(4)
        self.poll_f1("L_pollF1a", S0, True)
        self.stamp(5)
        a("s_setprio 3")
        self.k_part()
        for q in range(2):
            a(f"buffer_load_dwordx2 v[{QM+4*q}:{QM+4*q+1}], v{LK}, s[4:7], s35 offen offset:{q*256} {LDF}")
            a(f"buffer_load_dwordx2 v[{QM+4*q+2}:{QM+4*q+3}], v{LK}, s[4:7], s35 offen offset:{q*256+1024} {LDF}")
        a(f"buffer_load_dword v{QL}, v{AL}, s[4:7], s35 offen {LDF}")
        self.v_part(VV, KL, T0); self.kv_next()
        self.k_part(); self.v_part(VV, KL, T0)
        a(f"v_mov_b32 v{CA}, {W_LAND}\nv_mov_b32 v{T1}, 1\ns_waitcnt vmcnt(4)")
        self.lds_add1(CA, T1)
        self.lds_spin(CA, T0, 4)
        self.stamp(6)
        a.label("L_maxpass")
        MX0, MX1 = T0, T1
        a(f"""
        v_add_u32 v{AK}, s{MB_}, v{LK}
        v_add_u32 v{AL}, s{MB_}, v{LL}
        v_mov_b32 v{QL+1}, 0
        v_mov_b32 v{MX0}, 0xff800000
        v_mov_b32 v{MX1}, 0xff800000
        s_mov_b32 s{MI}, 0
        """)
        def rdKm(t): o = (t // 4) * 10 + (t % 4) // 2; k = KM2 if t % 2 else KM; a(f"ds_read2st64_b64 v[{k}:{k+3}], v{AK2 if t % 2 else AK} offset0:{o} offset1:{o+2}")
        def rdKl(t): a(f"ds_read_b32 v{KL+2*(t%2)}, v{AL} offset:{(t//4)*5120 + (t%4)*256}")
        def rdV(m, t): a(f"ds_read_b128 v[{VF+8*(t%2)+4*m}:{VF+8*(t%2)+4*m+3}], v{AV} offset:{(t*4+m*2)*VROW}")
        def b2(N, t): a(f"v_mfma_f32_32x32x4_2b_bf16 v[{N}:{N+31}], v[{KL+2*(t%2)}:{KL+2*(t%2)+1}], v[{QL}:{QL+1}], 0")
        def mainm(N, q, t=0): k = KM2 if t % 2 else KM; a(f"v_mfma_f32_32x32x16_bf16 v[{N+16*q}:{N+16*q+15}], v[{k}:{k+3}], v[{QM+4*q}:{QM+4*q+3}], v[{N+16*q}:{N+16*q+15}]")
        def smf(n, S, t):
            o = O + 16 * (n // 2); v = VF + 8 * (t % 2) + 4 * (n % 2)
            a(f"v_smfmac_f32_32x32x32_bf16 v[{o}:{o+15}], v[{v}:{v+3}], v[{S+8*n}:{S+8*n+7}], v{IDX}")
        def E(S, lo, hi):
            for r in range(lo, hi): a(f"v_exp_f32 v{S+r}, v{S+r}")
        a.label("L_maxloop")
        rdKl(0); rdKm(0)
        a(f"""
        s_mov_b32 s30, 256
        s_and_b32 s31, s{MI}, 3
        s_cmp_eq_u32 s31, 3
        s_cselect_b32 s30, {5120-768}, s30
        s_and_b32 s31, s{MI}, 7
        s_cmp_eq_u32 s31, 7
        s_cselect_b32 s30, {CHB-5120-768}, s30
        s_add_u32 s{MI}, s{MI}, 1
        s_waitcnt lgkmcnt(0)
        """)
        b2(S0, 0)
        a(f"v_add_u32 v{AK}, s30, v{AK}\nv_add_u32 v{AL}, s30, v{AL}")
        for i in range(16): a(f"v_mov_b32 v{O+i}, 0")
        mainm(S0, 0); mainm(S0, 1)
        for i in range(16): a(f"v_mov_b32 v{O+16+i}, 0")
        for i in range(8): a(f"v_max3_f32 v{MX0}, v{S0+2*i}, v{S0+2*i+1}, v{MX0}\nv_max3_f32 v{MX1}, v{S0+16+2*i}, v{S0+16+2*i+1}, v{MX1}")
        a(f"""
        s_cmp_lt_u32 s{MI}, s{MC}
        s_cbranch_scc1 L_maxloop
        v_add_u32 v{AK}, {C0*CHB}, v{LK}
        v_add_u32 v{AL}, {C0*CHB}, v{LL}
        v_mov_b32 v{AV}, v{LV}
        v_add_u32 v{AK2}, 256, v{AK}
        """)
        rdKl(0); rdKm(0); rdKl(1); rdV(0, 0); rdV(1, 0)
        a(f"""
        v_permlane32_swap_b32 v{MX0}, v{MX1}
        s_mov_b32 s{CH}, {(-7*CHB) & 0xffffffff}
        s_mov_b32 s{IT}, 0
        v_max_f32 v{MX1}, v{MX0}, v{MX1}
        v_cvt_pk_bf16_f32 v{T0}, -v{MX1}, 0
        v_lshlrev_b32 v{T0}, 16, v{T0}
        v_sub_f32 v{T0}, -v{MX1}, v{T0}
        v_cvt_pk_bf16_f32 v{QL+1}, -v{MX1}, v{T0}
        v_mov_b32 v{CA}, {W_LAND}
        v_mov_b32 v{T1}, 1
        s_waitcnt lgkmcnt(3)
        """)
        b2(S0, 0)
        for i in range(8): a(f"v_mov_b32 v{S1+24+i}, 0")
        for i in range(4): a(f"v_mov_b32 v{VF+12+i}, 0")
        a("s_nop 5")
        mainm(S0, 0); mainm(S0, 1)
        rdKm(1)
        a("s_nop 8\ns_waitcnt lgkmcnt(0)")
        self.stamp(7); self.stamp(61)
        a.raw(".p2align 6")
        a.label("L_loop")
        for i in range(8):
            C, N = (S0, S1) if i % 2 == 0 else (S1, S0)
            E(C, 0, 2)
            smf(3, N, i + 1)
            if i == 7: a(f"v_add_u32 v{AV}, s{DK}, v{AV}")
            rdV(0, (i + 1) % 8)
            E(C, 2, 6)
            b2(N, i + 1)
            rdV(1, (i + 1) % 8)
            if i == 1: a(f"ds_write_b32 v{PW}, v{CA}")
            if i == 5: a(f"ds_read_b32 v{CK}, v{CA} offset:4")
            if i == 0:
                a(f"s_cmp_eq_u32 s{IT}, {7-C0}\ns_cselect_b32 s{DK}, s{CH}, {CHB}")
            if i == 3:
                a(f"s_cmp_eq_u32 s{IT}, s{FB}\ns_cbranch_scc1 L_sig1")
                a.label("L_sig1r")
            if i == 6:
                a(f"""
                v_readfirstlane_b32 s30, v{CK}
                v_add_u32 v{AK}, s{DK}, v{AK}
                v_add_u32 v{AL}, s{DK}, v{AL}
                v_add_u32 v{AK2}, s{DK}, v{AK2}
                v_add_u32 v{CA}, 4, v{CA}
                s_cmp_lt_u32 s30, 4
                s_cbranch_scc1 L_wait
                """)
                a.label("L_waitret")
            E(C, 6, 14)
            smf(0, C, i)
            rdKl((i + 2) % 8)
            E(C, 14, 18)
            smf(1, C, i)
            rdKm((i + 2) % 8)
            E(C, 18, 22)
            mainm(N, 0, i + 1)
            E(C, 22, 26)
            smf(2, C, i)
            if i == 7: a(f"s_add_u32 s{IT}, s{IT}, 1\ns_cmp_lt_u32 s{IT}, 8")
            E(C, 26, 30)
            mainm(N, 1, i + 1)
            a(f"s_waitcnt lgkmcnt(0)")
            E(C, 30, 32)
        a("s_cbranch_scc1 L_loop")
        a("s_waitcnt lgkmcnt(0)\ns_nop 0")
        smf(3, S1, 7)
        self.stamp(8); self.stamp(62)
        SUM = T1
        a(f"s_mov_b32 s30, 0x5d800000\ns_mov_b32 s31, 0x7f7fffff\ns_mov_b64 s[16:17], 0\nv_mov_b32 v{SUM}, 0")
        for q in range(2):
            o = O + 16 * q
            a(f"v_cndmask_b32 v{o+10}, v{o+10}, v{o+12}, s[62:63]")
            for r in range(10): a(f"v_add_f32 v{SUM}, v{SUM}, |v{o+r}|")
            a(f"v_cmp_nge_f32 vcc, s30, v{o+10}\nv_rcp_f32 v{o+10}, v{o+10}\ns_or_b64 s[16:17], s[16:17], vcc")
        a(f"""
        v_cmp_nge_f32 vcc, s31, v{SUM}
        s_mul_i32 s30, s{TQ}, {OS}
        s_add_u32 s30, s30, {OW}
        s_or_b64 vcc, vcc, s[16:17]
        s_cmp_lg_u32 s{FB}, 0
        s_cbranch_scc1 L_fin
        s_cmp_lg_u64 vcc, 0
        s_cbranch_scc1 L_unsafe
        """)
        a.label("L_fin")
        a(f"""
        s_lshl_b32 s31, s{HD}, 10
        s_add_u32 s31, s31, s30
        s_lshl_b32 s32, s{HD}, 7
        s_add_u32 s32, s32, s30
        s_add_u32 s32, s32, 32768
        v_lshlrev_b32 v{T0}, 2, v2
        """)
        for q in range(2):
            o = O + 16 * q; d = S0 + 8 * q
            for r in range(10): a(f"v_mul_f32 v{o+r}, v{o+r}, v{o+10}")
            for r in range(5): a(f"v_cvt_pk_bf16_f32 v{d+r}, v{o+2*r}, v{o+2*r+1}")
            a(f"""
            buffer_store_dwordx4 v[{d}:{d+3}], v3, s[4:7], s31 offen {WT}
            s_mov_b32 exec_hi, 0
            buffer_store_dword v{d+4}, v{T0}, s[4:7], s32 offen {WT}
            s_mov_b32 exec_hi, -1
            s_add_u32 s31, s31, {OS}
            s_add_u32 s32, s32, {OS}
            """)
        a(f"""
        v_mov_b32 v{T1}, {FIN_OK}
        s_lshl_b32 s36, s{TQ}, 5
        s_add_u32 s36, s36, s{HD}
        s_lshl_b32 s36, s36, 2
        s_add_u32 s36, s36, {F4}
        s_add_u32 s35, s36, 128
        s_waitcnt vmcnt(0)
        """)
        self.flag_store([36, 35], AK)
        a(f"ds_write_b32 v{PW}, v{T1}")
        self.stamp(9)
        a(f"s_cmp_lg_u32 s{FB}, 0\ns_cbranch_scc1 L_redo_end")
        self.final_check(AK, "L_redo", 4)
        a("s_branch L_exit")
        a.label("L_sig1")
        a("s_waitcnt vmcnt(0)")
        self.lds_add1(CA, T1, 4)
        a("s_waitcnt lgkmcnt(0)\ns_branch L_sig1r")
        a.label("L_wait")
        self.lds_spin(CA, CK, 4)
        a("s_branch L_waitret")
        a.label("L_unsafe")
        a(f"s_mov_b32 s{FB}, 100\nv_mov_b32 v{T1}, {FIN_BAD}\nds_write_b32 v{PW}, v{T1}")
        a.label("L_redo")
        a(f"""
        s_waitcnt lgkmcnt(0)
        s_barrier
        s_barrier
        s_cmp_eq_u32 s{FB}, 0
        s_cbranch_scc1 L_redo_end
        s_mov_b32 s{MC}, 64
        s_mov_b32 s{MB_}, 0
        v_mov_b32 v{PW}, {LDS_W + 128}
        s_branch L_maxpass
        """)
        a.label("L_redo_end")
        a("s_waitcnt lgkmcnt(0)\ns_barrier\ns_branch L_exit")

    def helper(self):
        a = self.a
        VV, ONES, T, ONE, WB_, PB = 12, 16, 24, 67, 20, 4
        pc = lambda c: W_LAND + 4 * (c + 1)
        self.stamp(4)
        a(f"v_mov_b32 v{WB_}, {LDS_W}\nv_mov_b32 v{PB}, 0\nv_mov_b32 v{PB+1}, 0")
        for i in range(4): a(f"v_mov_b32 v{ONES+i}, 0x3f803f80")
        self.kv_setup(T, VV, "2")
        self.lds_spin(WB_, T, 4, sleep=2)
        self.k_part(); self.v_part(VV, ONES, T); self.kv_next()
        a(f"s_mov_b32 s35, 0\nv_mov_b32 v{WB_+1}, {W_LAND + 8}")
        a.label("L_hkv")
        self.k_part(); self.v_part(VV, ONES, T); self.kv_next()
        a("s_waitcnt vmcnt(4)")
        self.lds_add1(WB_ + 1, ONE)
        a(f"v_add_u32 v{WB_+1}, 4, v{WB_+1}\ns_add_u32 s35, s35, 1\ns_cmp_lt_u32 s35, 5\ns_cbranch_scc1 L_hkv\ns_waitcnt vmcnt(0)")
        self.lds_add1(WB_ + 1, ONE)
        self.stamp(5)
        self.p3_ids()
        a(f"s_mov_b32 s{S_HALF}, 0")
        self.lds_spin(WB_, T, 4, W_P2 - LDS_W, sleep=16)
        a.label("L_hpf")
        a(f"s_cmp_ge_u32 s{S_IDX}, 30\ns_cbranch_scc1 L_hfin\ns_cmp_ge_u32 s{S_IDX}, 18\ns_cbranch_scc1 L_hpfa")
        self.make_vx(PB, 2, "4", "1", "16", "8", T)
        self.srd(12, P_CRE, 576 * 1152)
        a(f"""
        s_lshl_b32 s30, s{S_P3NB}, 6
        s_lshl_b32 s31, s{S_LW}, 4
        s_add_u32 s30, s30, s31
        s_mul_i32 s{S_CB}, s30, 1152
        s_mov_b32 s40, 0
        """)
        def cload(upto):
            lab = a.newlabel("L_cl")
            a.label(lab)
            a(f"""
            s_lshl_b32 s30, s40, 13
            s_add_u32 s31, s30, {TSCR}
            s_sub_u32 s30, s30, {7*8192}
            s_cmp_lt_u32 s40, 7
            s_cselect_b32 s30, s31, s30
            s_lshl_b32 s31, s{S_LW}, 11
            s_add_u32 m0, s30, s31
            s_cmp_lt_u32 s40, 9
            s_cselect_b32 s12, s{P_CRE}, s{P_CIM}
            s_cselect_b32 s13, s{P_CRE+1}, s{P_CIM+1}
            s_cselect_b32 s31, 0, 9
            s_and_b32 s13, s13, 0xffff
            s_sub_u32 s31, s40, s31
            s_lshl_b32 s31, s31, 7
            s_add_u32 s32, s31, s{S_CB}
            buffer_load_dwordx4 v{PB}, s[12:15], s32 offen lds
            buffer_load_dwordx4 v{PB+1}, s[12:15], s32 offen offset:1024 lds
            s_add_u32 s40, s40, 1
            s_cmp_lt_u32 s40, {upto}
            s_cbranch_scc1 {lab}
            """)
        self.wait_prog(pc(2), T, 16); cload(7)
        self.wait_prog(pc(5), T, 16); cload(14)
        self.wait_prog(pc(6), T, 8); cload(16)
        a("s_branch L_hpfd")
        a.label("L_hpfa")
        self.a3_setup(PB, T)
        self.wait_prog(pc(2), T, 16); self.a3_issue(PB, 4)
        self.wait_prog(pc(5), T, 16); self.a3_issue(PB, 5)
        a.label("L_hpfd")
        a("s_waitcnt vmcnt(0)")
        self.lds_add1(WB_, ONE, W_G2 - LDS_W)
        self.stamp(6)
        a.label("L_hfin")
        a(f"s_cmp_lg_u32 s{S_HALF}, 0\ns_cbranch_scc1 L_hok")
        self.wait_prog(W_LAND + 28, T, sleep=32)
        self.final_check(T, "L_hredo", 4)
        a.label("L_hok")
        a(f"s_cmp_ge_u32 s{S_IDX}, 18\ns_cbranch_scc1 L_exit")
        cload(18)
        a("s_waitcnt vmcnt(0)")
        self.lds_add1(WB_, ONE, W_G3 - LDS_W)
        a("s_branch L_exit")
        a.label("L_hredo")
        a(f"s_mov_b32 s{S_HALF}, 1\ns_waitcnt vmcnt(0) lgkmcnt(0)\ns_barrier")
        self.kv_setup(T, VV, "0")
        a("s_mov_b32 s35, 0")
        a.label("L_hredo1")
        self.k_part(); self.v_part(VV, ONES, T); self.kv_next()
        a("s_add_u32 s35, s35, 1\ns_cmp_lt_u32 s35, 8\ns_cbranch_scc1 L_hredo1\ns_waitcnt vmcnt(0) lgkmcnt(0)\ns_barrier\ns_barrier\ns_branch L_hpf")

    WA, ONE, BC = 156, 157, 47
    def arrive(self, T):
        a = self.a
        a(f"s_add_u32 s{self.BC}, s{self.BC}, 4")
        self.lds_add1(self.WA, self.ONE)
    def bar(self, T):
        self.arrive(T)
        self.lds_spin(self.WA, T, f"s{self.BC}")
    def gemm_cons(self, name, N, T, CW, rl, mfl, nfree, hooks={}):
        a = self.a
        self.lds_spin(CW, T, 4)
        a(f"ds_read_b32 v{T}, v{CW} offset:4")
        for x in rl(0): a(x)
        for s in range(N - 1):
            mf = mfl(s); p = f"{name}_{s}"
            a("s_waitcnt lgkmcnt(0)")
            a(f"v_readfirstlane_b32 s32, v{T}")
            a(mf[0])
            self.stampx(16)
            if s < nfree: self.lds_add1(CW, self.ONE, 256 + 4 * s)
            a(f"s_cmp_lt_u32 s32, 4\ns_cbranch_scc1 {p}s")
            a.label(p + "r")
            self.stubs.append((p, CW, T, 4 * (s + 1)))
            oth = rl(s + 1) + ([f"ds_read_b32 v{T}, v{CW} offset:{4*(s+2)}"] if s + 2 < N else [])
            ilv(a, mf[1:8], oth)
            if s in hooks: hooks[s]()
        a("s_waitcnt lgkmcnt(0)")
        if N - 1 < nfree: self.lds_add1(CW, self.ONE, 256 + 4 * (N - 1))
        for m in mfl(N - 1): a(m)
    def emit_stubs(self):
        a = self.a
        for p, CW, T, off in self.stubs:
            a.label(p + "s")
            self.lds_spin(CW, T, 4, off)
            a(f"s_branch {p}r")
    def gemm_load(self, name, nslot, CB, ONE, T, issue):
        a = self.a
        a("s_mov_b32 s41, 0")
        a.label(name + "w")
        a(f"s_cmp_lt_u32 s40, {nslot}\ns_cbranch_scc1 {name}")
        self.lds_spin(T + 1, T, 4)
        a.label(name)
        issue()
        a(f"""
        s_cmp_lt_u32 s40, s45
        s_cselect_b32 s44, 2, 1
        s_add_u32 s44, s44, s40
        s_lshl_b32 s30, s44, 2
        s_add_u32 s30, s30, s43
        s_add_u32 s30, s30, {256 - 4*nslot}
        v_mov_b32 v{T+1}, s30
        ds_read_b32 v{T}, v{T+1}
        s_cmp_eq_u32 s41, 0
        s_cbranch_scc1 {name}n
        s_waitcnt vmcnt(6)
        """)
        self.lds_add1(CB, ONE)
        a.label(name + "n")
        a(f"""
        s_lshl_b32 s30, s40, 2
        s_add_u32 s30, s30, s43
        v_mov_b32 v{CB}, s30
        s_mov_b32 s40, s44
        s_mov_b32 s41, 1
        s_waitcnt lgkmcnt(0)
        v_readfirstlane_b32 s32, v{T}
        s_cmp_lt_u32 s40, {nslot}
        s_cselect_b32 s32, 4, s32
        s_cmp_ge_u32 s40, s42
        s_cselect_b32 s32, 0, s32
        s_cmp_ge_u32 s32, 4
        s_cbranch_scc1 {name}
        s_waitcnt vmcnt(0)
        """)
        self.lds_add1(CB, ONE)
        a(f"s_mov_b32 s41, 0\ns_cmp_lt_u32 s40, s42\ns_cbranch_scc1 {name}w")
    def b1_loader(self):
        a = self.a
        VX, VB, CW, ONE, T = 60, 64, 66, 67, 68
        XB, WB, SL, NS = 16, 17, 18, 19
        self.make_vx(VX, 4, "16", "1", "8", "4", T)
        self.make_vx(VB, 2, "4", "1", "16", "8", T)
        self.srd(8, P_BX, 2048 * 1152)
        a(f"""
        s_cmp_lt_u32 s{S_LW}, 2
        s_cselect_b32 s12, s{P_BRE}, s{P_BIM}
        s_cselect_b32 s13, s{P_BRE+1}, s{P_BIM+1}
        s_and_b32 s13, s13, 0xffff
        s_mov_b32 s14, {576*1152}
        s_mov_b32 s15, 0x20000
        s_lshl_b32 s30, s{S_MB}, 7
        s_lshl_b32 s31, s{S_LW}, 5
        s_add_u32 s30, s30, s31
        s_mul_i32 s{XB}, s30, 1152
        s_cmp_eq_u32 s{S_TYPE}, 2
        s_cselect_b32 s30, s{S_CHA}, s{S_CHB}
        s_cselect_b32 s{NS}, 18, 9
        s_lshl_b32 s30, s30, 5
        s_and_b32 s31, s{S_LW}, 1
        s_lshl_b32 s31, s31, 4
        s_add_u32 s30, s30, s31
        s_mul_i32 s{WB}, s30, 1152
        v_mov_b32 v{CW}, {W_FULL}
        v_mov_b32 v{ONE}, 1
        s_lshr_b32 s27, s{S_WAVE}, 3
        """)
        def issue():
            a(f"""
            s_add_u32 s31, s40, s28
            s_sub_u32 s30, s31, 9
            s_cmp_ge_u32 s31, 9
            s_cselect_b32 s31, s30, s31
            s_lshl_b32 s31, s31, 7
            s_and_b32 s{SL}, s40, 3
            s_mul_i32 s{SL}, s{SL}, {BSLOT}
            s_lshl_b32 s30, s{S_LW}, 12
            s_add_u32 m0, s30, s{SL}
            s_add_u32 s32, s31, s{XB}
            """)
            for n in range(4): a(f"buffer_load_dwordx4 v{VX+n}, s[8:11], s32 offen offset:{n*1024} lds")
            a(f"s_lshl_b32 s30, s{S_LW}, 11\ns_add_u32 s30, s30, s{SL}\ns_add_u32 m0, s30, 16384\ns_add_u32 s32, s31, s{WB}")
            for n in range(2): a(f"buffer_load_dwordx4 v{VB+n}, s[12:15], s32 offen offset:{n*1024} lds")
        def run():
            a(f"s_mov_b32 s43, {W_FULL}\ns_mov_b32 s45, {self.opt.get('ashare', 6)}")
            a.label("L_l1job")
            a(f"s_xor_b32 s40, s27, 1\ns_cmp_eq_u32 s27, 0\ns_cselect_b32 s42, {self.opt.get('ashare', 6)}, 9")
            self.gemm_load("L_l1", 4, CW, ONE, T, issue)
            a(f"""
            s_add_u32 s30, s43, {256 + 32}
            v_mov_b32 v{T+1}, s30
            s_cmp_lt_u32 s{S_WAVE}, 8
            s_cbranch_scc1 L_p1_fin
            s_cmp_eq_u32 s{NS}, 9
            s_cbranch_scc1 L_l1end
            s_mov_b32 s45, 0
            s_mov_b32 s{NS}, 9
            s_sub_u32 s30, s{S_CHA}, s{S_CHB}
            s_mul_i32 s30, s30, {32*1152}
            s_sub_u32 s{WB}, s{WB}, s30
            s_add_u32 s43, s43, 36
            """)
            self.lds_spin(T + 1, T, 4, sleep=1)
            a("s_branch L_l1job")
            a.label("L_l1end")
            self.lds_spin(T + 1, T, 4, sleep=1)
        self.b1_run = run

    def aux(self):
        a = self.a
        AX, AW, FX, ACC, T = 4, 8, 16, 80, 148
        SS, SLOT, DL, WM, WN = 40, 41, 42, 43, 44
        a.label("L_aux")
        a(f"""
        s_setprio 3
        s_mov_b32 s{S_HALF}, 0
        s_mov_b32 s{S_CH}, s{S_CHA}
        s_mov_b32 s62, 0
        s_mov_b32 s63, -1
        """)
        self.aux_start()
        a(f"s_cmp_eq_u32 s{S_TYPE}, 2\ns_cbranch_scc1 L_aux_sp")
        self.lam_early(f"s{S_CHB}")
        if not self.opt.get("nowarmx"):
            self.srd(12, P_BX, 2048 * 1152)
            a(f"""
            s_and_b32 s30, s{S_XCD}, 3
            s_mul_i32 s30, s30, 589824
            s_lshr_b32 s31, s{S_XCD}, 2
            s_mul_i32 s31, s31, 28
            s_add_u32 s31, s31, s{S_IDX}
            s_lshl_b32 s31, s31, 2
            s_add_u32 s31, s31, s{S_WAVE}
            s_mul_i32 s31, s31, 2688
            s_add_u32 s30, s30, s31
            v_lshlrev_b32 v16, 6, v2
            s_mov_b32 exec_hi, 0x3ff
            buffer_load_dword v154, v16, s[12:15], s30 offen
            s_mov_b32 exec_hi, -1
            """)
        a(f"s_lshr_b32 s{WM}, s{S_WAVE}, 1\ns_and_b32 s{WN}, s{S_WAVE}, 1\ns_lshl_b32 s30, s{WM}, 13")
        self.swz(AX, T, "s30")
        a(f"""
        v_bfe_u32 v{T+2}, v2, 2, 2
        v_lshl_add_u32 v{T+3}, v{T+1}, 3, v{T+2}
        v_lshlrev_b32 v{T+3}, 8, v{T+3}
        v_bfe_u32 v{T+4}, v2, 4, 1
        v_lshl_add_u32 v{T+3}, v{T+4}, 5, v{T+3}
        v_and_b32 v{T+4}, 3, v2
        v_lshl_add_u32 v{T+3}, v{T+4}, 3, v{T+3}
        v_add_u32 v{T+3}, 16384, v{T+3}
        s_lshl_b32 s30, s{WN}, 1
        v_xor_b32 v{T+4}, s30, v{T+2}
        v_lshl_add_u32 v{AW}, v{T+4}, 6, v{T+3}
        v_xor_b32 v{AW+1}, 64, v{AW}
        """)
        for i in range(64): a(f"v_mov_b32 v{ACC+i}, 0")
        a(f"s_mov_b32 s{SS}, 0\ns_mov_b32 s{SLOT}, 0\ns_barrier")
        self.stampx(16, True); self.stamp(61)
        def nextslot(stride, total):
            a(f"""
            s_add_u32 s30, s{SLOT}, {stride}
            s_cmp_eq_u32 s30, {total}
            s_cselect_b32 s30, 0, s30
            s_sub_u32 s{DL}, s30, s{SLOT}
            s_mov_b32 s{SLOT}, s30
            s_add_u32 s{SS}, s{SS}, 1
            """)
        def reads(s):
            l = [f"ds_read_b128 v[{FX+s*16+mt*4}:{FX+s*16+mt*4+3}], v{AX+s} offset:{mt*4096}" for mt in range(2)]
            for nt in range(2):
                for hf in range(2):
                    r = FX + s * 16 + 8 + nt * 4 + hf * 2
                    l.append(f"ds_read_b64_tr_b16 v[{r}:{r+1}], v{AW+nt} offset:{s*4096 + hf*1024}")
            return l
        for x in reads(0) + reads(1): a(x)
        a(f"s_cmp_eq_u32 s{S_TYPE}, 1\ns_cbranch_scc1 L_a1v")
        def a1loop(vtype, lab):
            a.label(lab)
            for s in range(4):
                a("s_waitcnt lgkmcnt(6)")
                if s == 2:
                    a(f"s_cmp_lt_u32 s{SS}, 9\ns_cbranch_scc1 {lab}b\ns_waitcnt lgkmcnt(0)")
                    a.label(lab + "b")
                    a("s_barrier")
                    self.stampx(16)
                mf = []
                for mt in range(2):
                    for nt in range(2):
                        d = ACC + (mt * 2 + nt) * 16
                        x = f"v[{FX+s*16+mt*4}:{FX+s*16+mt*4+3}]"; w = f"v[{FX+s*16+8+nt*4}:{FX+s*16+8+nt*4+3}]"
                        A, B = (x, w) if vtype else (w, x)
                        mf.append(f"v_mfma_f32_32x32x16_bf16 v[{d}:{d+15}], {A}, {B}, v[{d}:{d+15}]")
                ilv(a, mf, reads((s + 2) % 4))
                if s == 0: nextslot(32768, 163840)
                if s == 1:
                    for r in (AX, AX + 1, AX + 2, AX + 3, AW, AW + 1): a(f"v_add_u32 v{r}, s{DL}, v{r}")
            a(f"s_cmp_lt_u32 s{SS}, 9\ns_cbranch_scc1 {lab}")
        a1loop(False, "L_a1qk")
        self.stamp(1); self.stamp(62)
        self.dbg_load()
        a(f"""
        s_lshl_b32 s30, s{S_NB}, 5
        s_lshl_b32 s31, s{WN}, 4
        s_add_u32 s30, s30, s31
        s_mul_i32 s31, s{S_MB}, {QS}
        s_add_u32 s31, s31, s30
        s_lshl_b32 s31, s31, 10
        s_lshl_b32 s32, s{WM}, 9
        s_add_u32 s31, s31, s32
        s_add_u32 s31, s31, {QKP}
        v_lshlrev_b32 v{T+2}, 4, v1
        v_lshl_add_u32 v{T+2}, v{T+1}, 10, v{T+2}
        s_mov_b32 s32, {QSCALE}
        s_cmp_ge_u32 s30, 144
        s_cselect_b32 s32, 1.0, s32
        s_mov_b32 s33, s32
        s_waitcnt lgkmcnt(0)
        """)
        for nt in range(2):
            for g in range(4):
                o = FX + (nt * 4 + g) * 4
                for mt in range(2):
                    d = ACC + (mt * 2 + nt) * 16 + 4 * g
                    a(f"v_pk_mul_f32 v[{d}:{d+1}], v[{d}:{d+1}], s[32:33]\nv_pk_mul_f32 v[{d+2}:{d+3}], v[{d+2}:{d+3}], s[32:33]")
                for mt in range(2):
                    d = ACC + (mt * 2 + nt) * 16 + 4 * g
                    a(f"v_cvt_pk_bf16_f32 v{o+2*mt}, v{d}, v{d+1}\nv_cvt_pk_bf16_f32 v{o+2*mt+1}, v{d+2}, v{d+3}")
                a(f"buffer_store_dwordx4 v[{o}:{o+3}], v{T+2}, s[4:7], s31 offen offset:{(g%2)*2048} {WT}")
                if g % 2 == 1: a("s_add_u32 s31, s31, 4096")
        a("s_branch L_a1done")
        a1loop(True, "L_a1v")
        self.stamp(1); self.stamp(62)
        self.dbg_load()
        a(f"""
        s_sub_u32 s30, s{S_NB}, 9
        s_lshl_b32 s30, s30, 7
        s_lshl_b32 s31, s{WN}, 6
        s_add_u32 s30, s30, s31
        s_lshl_b32 s31, s{S_MB}, 4
        s_lshl_b32 s32, s{WM}, 3
        s_add_u32 s31, s31, s32
        s_mul_i32 s31, s31, {VS}
        s_lshl_b32 s32, s30, 4
        s_add_u32 s31, s31, s32
        s_add_u32 s31, s31, {VT}
        v_mul_u32_u24 v{T+2}, {VS}, v{T+1}
        v_lshl_add_u32 v{T+2}, v1, 4, v{T+2}
        s_waitcnt lgkmcnt(0)
        s_cmp_ge_u32 s30, 576
        s_cbranch_scc1 L_a1done
        """)
        for mt in range(2):
            for m in range(2):
                for nt in range(2):
                    d = ACC + (mt * 2 + nt) * 16 + 8 * m
                    for r in range(4): a(f"v_cvt_pk_bf16_f32 v{d+r}, v{d+2*r}, v{d+2*r+1}")
                    a(f"buffer_store_dwordx4 v[{d}:{d+3}], v{T+2}, s[4:7], s31 offen offset:{nt*512} {WT}")
                a(f"s_add_u32 s31, s31, {2*VS}")
        a.label("L_a1done")
        self.stamp(2)
        if self.opt.get("drain1"): a("s_waitcnt vmcnt(0)"); self.stamp(7)
        a(f"s_mov_b32 s{S_HALF}, 1\ns_mov_b32 s{S_CH}, s{S_CHB}\ns_branch L_b1pre")
        a.label("L_aux_sp")
        a("s_barrier")
        self.zero_flags()
        self.lam_early(f"s{S_CHA}")
        a(f"""
        s_lshl_b32 s30, s{S_CHB}, 6
        v_lshl_add_u32 v23, v1, 1, s30
        global_load_ushort v166, v23, s[{P_LRE}:{P_LRE+1}]
        global_load_ushort v24, v23, s[{P_LIM}:{P_LIM+1}]
        global_load_ushort v154, v23, s[{P_LDT}:{P_LDT+1}]
        s_waitcnt vmcnt(0)
        v_lshl_or_b32 v166, v24, 16, v166
        """)
        AB, BF, WA, ONE, AC1, CW, RAW, AX2, AB2 = 8, 16, self.WA, self.ONE, 112, 155, 164, 144, 148
        T = 158; BC = self.BC
        PA = [164, 165, 12, 13, 14, 15]
        a.label("L_b1pre")
        for i in range(2): a(f"v_mov_b32 v{164+i}, v{10+i}")
        a(f"s_mov_b32 s{BC}, 0\nv_mov_b32 v{WA}, {W_BAR}\nv_mov_b32 v{ONE}, 1\nv_mov_b32 v{CW}, {W_FULL}\ns_lshl_b32 s48, s{S_LW}, 12\ns_lshl_b32 s49, s{S_LW}, 11")
        self.swz(AB, T, 16384)
        a(f"s_sub_u32 s30, s48, 16384")
        for s in range(4): a(f"v_add_u32 v{AX+s}, s30, v{AB+s}")
        def publish():
            a(f"""
            s_cmp_eq_u32 s{S_TYPE}, 2
            s_cbranch_scc1 L_pubx
            s_lshl_b32 s30, s{S_NB}, 7
            s_add_u32 s31, s30, 128
            s_cmp_eq_u32 s{S_TYPE}, 1
            s_cselect_b32 s32, 1152, 0
            v_mul_u32_u24 v{T+2}, 18, v2
            v_add_u32 v{T+2}, s32, v{T+2}
            v_add_u32 v{T+3}, 18, v{T+2}
            v_max_u32 v{T+2}, s30, v{T+2}
            v_min_u32 v{T+3}, s31, v{T+3}
            v_min_u32 v{T+3}, 0x6c0, v{T+3}
            v_cmp_lt_u32 vcc, v{T+2}, v{T+3}
            v_sub_u32 v{T+2}, v{T+3}, v{T+2}
            v_mul_u32_u24 v{T+3}, {F1STRIDE}, v1
            s_and_b32 s31, s{S_MB}, {NSUB-1}
            s_lshl_b32 s31, s31, 7
            s_add_u32 s31, s31, {F1}
            """)
            a(f"s_waitcnt vmcnt(0)")
            self.dbg_verify()
            self.stamp(9)
            a(f"""
            s_mov_b64 exec, 1
            ds_add_rtn_u32 v{T+1}, v{WA}, v{ONE} offset:4
            s_mov_b64 exec, -1
            s_waitcnt lgkmcnt(0)
            v_readfirstlane_b32 s35, v{T+1}
            s_cmp_lg_u32 s35, 3
            s_cbranch_scc1 L_pubx
            s_mov_b64 exec, vcc
            buffer_atomic_add v{T+2}, v{T+3}, s[4:7], s31 offen sc1
            s_mov_b64 exec, -1
            """)
            if self.opt.get("rt"): self.stamp(53, True); a("s_waitcnt vmcnt(0)"); self.stamp(54, True)
            a.label("L_pubx")
        a.label("L_b1")
        for s in range(4): a(f"v_add_u32 v{AB2+s}, {2*BSLOT}, v{AB+s}\nv_add_u32 v{AX2+s}, {2*BSLOT}, v{AX+s}")
        publish()
        def rl(st):
            l = []; ax, ab = (AX, AB) if st % 4 < 2 else (AX2, AB2); off = (st % 2) * BSLOT
            for s in range(4):
                b = BF + (st % 2) * 48 + s * 12
                l.append(f"ds_read_b128 v[{b}:{b+3}], v{ax+s} offset:{off}")
                for nt in range(2): l.append(f"ds_read_b128 v[{b+4+nt*4}:{b+7+nt*4}], v{ab+s} offset:{off + nt*4096}")
            return l
        def mfl(st):
            l = []
            for s in range(4):
                b = BF + (st % 2) * 48 + s * 12
                for nt in range(2):
                    d = AC1 + nt * 16; c = "0" if st == 0 and s == 0 else f"v[{d}:{d+15}]"
                    l.append(f"v_mfma_f32_32x32x16_bf16 v[{d}:{d+15}], v[{b}:{b+3}], v[{b+4+nt*4}:{b+7+nt*4}], {c}")
            return l
        def sp_hook():
            a(f"s_add_u32 s30, s{S_TYPE}, s{S_HALF}\ns_cmp_lg_u32 s30, 3\ns_cbranch_scc1 L_sph")
            a(f"s_cmp_lg_u32 s{S_WAVE}, 3\ns_cbranch_scc1 L_sph")
            self.f2flag(S_CHA, T + 2)
            a.label("L_sph")
        def h5():
            a(f"s_cmp_lg_u32 s{S_HALF}, 0\ns_cbranch_scc1 L_h5")
            self.dbg_load()
            a.label("L_h5")
        def h7():
            a(f"s_cmp_lg_u32 s{S_HALF}, 0\ns_cbranch_scc1 L_h7\ns_waitcnt vmcnt(0)")
            self.dbg_verify()
            self.stamp(1)
            a.label("L_h7")
        self.gemm_cons("L_g1", 9, T, CW, rl, mfl, 9, {2: sp_hook, 5: h5, 7: h7})
        a(f"v_add_u32 v{CW}, 36, v{CW}\ns_nop 4")
        pass
        self.stamp(3)
        for i, r in enumerate((LR, LI, CR, CI, MUR, MUI)): a(f"v_mov_b32 v{r}, v{PA[i]}")
        for t in range(16):
            u, w, d = AC1 + t, AC1 + 16 + t, BS + 2 * t
            a(f"""
            v_mul_f32 v{d}, v{CR}, v{u}
            v_mul_f32 v{d+1}, v{CR}, v{w}
            v_fma_f32 v{d}, -v{CI}, v{w}, v{d}
            v_fma_f32 v{d+1}, v{CI}, v{u}, v{d+1}
            """)
            if t >= 1:
                g0 = BS if t == 1 else T + 2 + 2 * (t % 2); g1 = T + 2 + 2 * ((t + 1) % 2)
                self.cmac(g1, LR, g0, d)
        GR = T + 2; TT = T + 4
        a(f"""
        s_lshl_b32 s31, s{S_WAVE}, 9
        s_add_u32 s30, s31, {LDS_SCR}
        v_lshl_add_u32 v{TT}, v2, 3, s30
        ds_write_b64 v{TT}, v[{GR}:{GR+1}]
        v_lshlrev_b32 v{TT+1}, 3, v2
        v_add_u32 v{TT+1}, {LDS_SCR - 256}, v{TT+1}
        """)
        self.bar(T)
        EV = BF
        for j in range(8): a(f"ds_read_b64 v[{EV+2*j}:{EV+2*j+1}], v{TT+1} offset:{j*256}")
        a("s_waitcnt lgkmcnt(0)")
        self.partb(EV, T)
        def spill(op, base):
            a(f"s_lshl_b32 s30, s2, 2\ns_add_u32 s30, s30, s{S_WAVE}\ns_mul_i32 s30, s30, {12*1024}\ns_add_u32 s30, s30, {SPILL}")
            for i in range(10):
                a(f"buffer_{op}_dwordx4 v[{base+4*i}:{base+4*i+3}], v3, s[4:7], s30 offen offset:{(i%4)*1024}")
                if i % 4 == 3: a("s_add_u32 s30, s30, 4096")
            a(f"buffer_{op}_dwordx2 v[{base+40}:{base+41}], v3, s[4:7], s30 offen offset:2048")
        a(f"s_cmp_lg_u32 s{S_HALF}, 0\ns_cbranch_scc1 L_b1done")
        spill("store", BS)
        a("v_and_b32 v16, 0xffff, v166\nv_lshrrev_b32 v17, 16, v166\nv_mov_b32 v18, v154")
        self.lam_calc(16, 10)
        for i in range(2): a(f"v_mov_b32 v{164+i}, v{10+i}")
        self.swz(AB, T, 16384)
        a(f"s_mov_b32 s{S_HALF}, 1\ns_mov_b32 s{S_CH}, s{S_CHB}\ns_branch L_b1")
        a.label("L_b1done")
        self.stamp(4)
        a(f"s_add_u32 s46, s48, {TSCR}\ns_cmp_lg_u32 s{S_TYPE}, 2\ns_cbranch_scc1 L_nsp")
        spill("load", 108)
        a.label("L_nsp")
        self.wait_prog(W_LAND + 4, T, 4)
        a.label("L_p2")
        self.pass2(BF, T)
        a(f"s_cmp_lg_u32 s{S_TYPE}, 2\ns_cbranch_scc1 L_p2end\ns_cmp_eq_u32 s{S_CH}, s{S_CHA}\ns_cbranch_scc1 L_p2end")
        for i in range(21): a(f"v_pk_mov_b32 v[{BS+2*i}:{BS+2*i+1}], v[{108+2*i}:{109+2*i}], v[{108+2*i}:{109+2*i}] op_sel:[0,1]")
        a(f"s_mov_b32 s{S_CH}, s{S_CHA}\ns_branch L_p2")
        a.label("L_p2end")
        self.stamp(6)
        self.lds_add1(WA, ONE, W_P2 - W_BAR)
        self.p3_ids()
        self.p3(T)

    def lam_early(self, ch):
        a = self.a
        a(f"""
        s_lshl_b32 s30, {ch}, 6
        v_lshl_add_u32 v23, v1, 1, s30
        global_load_ushort v16, v23, s[{P_LRE}:{P_LRE+1}]
        global_load_ushort v17, v23, s[{P_LIM}:{P_LIM+1}]
        global_load_ushort v18, v23, s[{P_LDT}:{P_LDT+1}]
        s_waitcnt vmcnt(0)
        """)
        self.lam_calc(16, 10)
    def cmac(self, d, m, g, c):
        self.a(f"v_pk_fma_f32 v[{d}:{d+1}], v[{m}:{m+1}], v[{g}:{g+1}], v[{c}:{c+1}] op_sel_hi:[0,1,1]")
        self.a(f"v_pk_fma_f32 v[{d}:{d+1}], v[{m}:{m+1}], v[{g}:{g+1}], v[{d}:{d+1}] op_sel:[1,1,0] op_sel_hi:[1,0,1] neg_lo:[1,0,0]")
    def lam_calc(self, T, P):
        a = self.a; L2E = f32(math.log2(math.e))
        LR, LI, CR, CI, MUR, MUI = range(P, P + 6)
        a(f"""
        v_lshlrev_b32 v{T}, 16, v{T}
        v_lshlrev_b32 v{T+1}, 16, v{T+1}
        v_lshlrev_b32 v{T+2}, 16, v{T+2}
        v_mul_f32 v{T+2}, {L2E}, v{T+2}
        v_exp_f32 v{T+2}, v{T+2}
        s_nop 0
        v_cvt_pk_bf16_f32 v{T+2}, v{T+2}, v{T+2}
        v_lshlrev_b32 v{T+2}, 16, v{T+2}
        v_mul_f32 v{T+3}, v{T+2}, v{T}
        v_mul_f32 v{T+4}, v{T+2}, v{T+1}
        v_mul_f32 v{T+3}, {L2E}, v{T+3}
        v_mul_f32 v{T+4}, {f32(1/(2*math.pi))}, v{T+4}
        v_exp_f32 v{T+3}, v{T+3}
        v_fract_f32 v{T+4}, v{T+4}
        v_cos_f32 v{T+5}, v{T+4}
        v_sin_f32 v{T+6}, v{T+4}
        s_nop 0
        v_mul_f32 v{LR}, v{T+3}, v{T+5}
        v_mul_f32 v{LI}, v{T+3}, v{T+6}
        v_mul_f32 v{T+3}, v{T}, v{T}
        v_fmac_f32 v{T+3}, v{T+1}, v{T+1}
        v_rcp_f32 v{T+3}, v{T+3}
        v_add_f32 v{T+4}, -1.0, v{LR}
        v_mul_f32 v{T+5}, v{T+4}, v{T}
        v_fmac_f32 v{T+5}, v{LI}, v{T+1}
        v_mul_f32 v{T+6}, v{LI}, v{T}
        v_fma_f32 v{T+6}, -v{T+4}, v{T+1}, v{T+6}
        v_add_f32 v{T+3}, v{T+3}, v{T+3}
        v_mul_f32 v{CR}, v{T+5}, v{T+3}
        v_mul_f32 v{CI}, v{T+6}, v{T+3}
        v_mov_b32 v{MUR}, v{LR}
        v_mov_b32 v{MUI}, v{LI}
        """)
        for i in range(4):
            a(f"""
            v_mul_f32 v{T+3}, v{MUI}, v{MUI}
            v_mul_f32 v{T+4}, v{MUR}, v{MUI}
            v_fma_f32 v{MUR}, v{MUR}, v{MUR}, -v{T+3}
            v_add_f32 v{MUI}, v{T+4}, v{T+4}
            """)

    def f2flag(self, ch, TT):
        self.a(f"""
        s_lshl_b32 s30, s{ch}, 5
        s_add_u32 s30, s30, s{S_MB}
        s_lshl_b32 s30, s30, 2
        s_add_u32 s30, s30, {F2}
        s_waitcnt vmcnt(0)
        """)
        self.flag_store([30], TT)
    def partb(self, EV, TT):
        a = self.a
        a(f"""
        v_cndmask_b32 v{LCR}, 0, v{EV}, s[62:63]
        v_cndmask_b32 v{LCI}, 0, v{EV+1}, s[62:63]
        v_cndmask_b32 v{PWR}, 1.0, v{MUR}, s[62:63]
        v_cndmask_b32 v{PWI}, 0, v{MUI}, s[62:63]
        """)
        for j in range(1, 7):
            if j % 2 == 1: a(f"s_cmp_lt_u32 s{S_WAVE}, {(j+1)//2}\ns_cbranch_scc1 L_pbne")
            a(f"""
            v_mul_f32 v{TT}, v{MUR}, v{PWR}
            v_mul_f32 v{TT+1}, v{MUR}, v{PWI}
            v_fma_f32 v{TT+2}, v{MUR}, v{LCR}, v{EV+2*j}
            v_fma_f32 v{TT+3}, v{MUR}, v{LCI}, v{EV+2*j+1}
            v_fma_f32 v{TT}, -v{MUI}, v{PWI}, v{TT}
            v_fma_f32 v{PWI}, v{MUI}, v{PWR}, v{TT+1}
            v_fma_f32 v{TT+2}, -v{MUI}, v{LCI}, v{TT+2}
            v_fma_f32 v{LCI}, v{MUI}, v{LCR}, v{TT+3}
            v_mov_b32 v{PWR}, v{TT}
            v_mov_b32 v{LCR}, v{TT+2}
            """)
        EB = EV + 14
        a(f"""
        s_mul_i32 s30, s{S_MB}, {576*8}
        s_lshl_b32 s31, s{S_CH}, 8
        s_add_u32 s30, s30, s31
        s_add_u32 s30, s30, {EE - 256}
        v_lshlrev_b32 v{TT+2}, 3, v2
        v_fma_f32 v{TT}, v{MUR}, v{LCR}, v{EB}
        v_fma_f32 v{TT+1}, v{MUR}, v{LCI}, v{EB+1}
        v_fma_f32 v{TT}, -v{MUI}, v{LCI}, v{TT}
        v_fma_f32 v{TT+1}, v{MUI}, v{LCR}, v{TT+1}
        s_mov_b32 exec_lo, 0
        buffer_store_dwordx2 v[{TT}:{TT+1}], v{TT+2}, s[4:7], s30 offen {WT}
        s_mov_b32 exec_lo, -1
        s_cmp_eq_u32 s{S_HALF}, 0
        s_cbranch_scc1 L_pbne
        """)
        self.f2flag(S_CH, TT)
        a.label("L_pbne")
        for i in range(3):
            a(f"""
            v_mul_f32 v{TT+4}, v{MUI}, v{MUI}
            v_mul_f32 v{TT+5}, v{MUR}, v{MUI}
            v_fma_f32 v{MUR}, v{MUR}, v{MUR}, -v{TT+4}
            v_add_f32 v{MUI}, v{TT+5}, v{TT+5}
            """)

    def pass2(self, EV, T):
        a = self.a
        GR, GI, TT, AD, M2R, M2I = T, T + 1, T + 2, T + 4, T + 6, T + 7
        a(f"""
        s_cmp_eq_u32 s{S_MB}, 0
        s_cbranch_scc1 L_pollF2_x
        s_sub_u32 s35, s{S_MB}, 1
        v_min_u32 v{AD}, s35, v2
        v_lshlrev_b32 v{AD}, 2, v{AD}
        s_lshl_b32 s34, s{S_CH}, 7
        s_add_u32 s34, s34, {F2}
        """)
        self.poll("L_pollF2", TT, AD, "s34", sleep=4)
        a(f"""
        s_add_u32 s8, s{P_WS}, {EE}
        s_addc_u32 s9, s{P_WS+1}, 0
        s_and_b32 s9, s9, 0xffff
        s_mov_b32 s10, {16*576*8}
        s_mov_b32 s11, 0x20000
        v_lshrrev_b32 v{TT}, 5, v2
        v_mul_u32_u24 v{TT}, {576*8}, v{TT}
        v_lshlrev_b32 v{AD}, 3, v1
        v_sub_u32 v{AD}, v{AD}, v{TT}
        s_sub_u32 s34, s{S_MB}, 1
        s_mul_i32 s34, s34, {576*8}
        v_add_u32 v{AD}, s34, v{AD}
        s_lshl_b32 s34, s{S_CH}, 8
        """)
        for i in range(8):
            a(f"buffer_load_dwordx2 v[{EV+2*i}:{EV+2*i+1}], v{AD}, s[8:11], s34 offen sc0 sc1")
            if i < 7: a(f"v_subrev_u32 v{AD}, {2*576*8}, v{AD}")
        a(f"""
        v_mul_f32 v{TT}, v{MUI}, v{MUI}
        v_mul_f32 v{TT+1}, v{MUR}, v{MUI}
        v_fma_f32 v{M2R}, v{MUR}, v{MUR}, -v{TT}
        v_add_f32 v{M2I}, v{TT+1}, v{TT+1}
        s_waitcnt vmcnt(0)
        """)
        for i in range(6, -1, -1): self.cmac(EV + 2 * i, M2R, EV + 2 * i + 2, EV + 2 * i)
        a(f"""
        v_mov_b32 v{AD}, v{EV}
        v_mov_b32 v{AD+1}, v{EV+1}
        s_nop 1
        v_permlane32_swap_b32 v{EV}, v{AD}
        v_permlane32_swap_b32 v{EV+1}, v{AD+1}
        s_nop 1
        """)
        self.cmac(EV, MUR, AD, EV)
        self.cmac(GR, PWR, EV, LCR)
        for t in range(16): self.cmac(BS + 2 * t, LR, GR if t == 0 else BS + 2 * t - 2, BS + 2 * t)
        a(f"""
        s_lshl_b32 s34, s{S_MB}, 2
        s_add_u32 s34, s34, s{S_WAVE}
        s_mul_i32 s34, s34, {HS}
        s_add_u32 s34, s34, s{S_CH}
        s_lshl_b32 s34, s34, 11
        s_add_u32 s34, s34, {HH}
        s_add_u32 s35, s34, {18*2048}
        v_lshrrev_b32 v{TT}, 5, v2
        v_lshlrev_b32 v{AD}, 4, v1
        v_mul_u32_u24 v{TT}, {1024+128}, v{TT}
        v_xor_b32 v{AD}, v{AD}, v{TT}
        v_xor_b32 v{AD+1}, {512+64}, v{AD}
        """)
        a(f"s_mov_b32 s30, s46\nv_add_u32 v{AD}, s30, v{AD}\nv_add_u32 v{AD+1}, s30, v{AD+1}")
        for c in range(2):
            for jj in range(2):
                d = EV + 16 + 8 * c + 4 * jj; n = "-" if c else ""
                for r in range(4): a(f"v_cvt_pk_bf16_f32 v{d+r}, {n}v{BS+16*jj+4*r+c}, {n}v{BS+16*jj+4*r+2+c}")
                a(f"ds_write_b128 v{AD+jj}, v[{d}:{d+3}] offset:{c*2048}")
        m = EV
        a(f"""
        v_lshrrev_b32 v{m}, 5, v2
        v_bfe_u32 v{m+1}, v2, 2, 2
        v_lshl_add_u32 v{m+1}, v{m}, 3, v{m+1}
        v_bfe_u32 v{m+2}, v2, 4, 1
        v_bfe_u32 v{m+3}, v2, 1, 1
        v_lshl_add_u32 v{m+2}, v{m+2}, 1, v{m+3}
        v_lshlrev_b32 v{m+3}, 2, v{m+2}
        v_xor_b32 v{m+1}, v{m+1}, v{m+3}
        v_and_b32 v{m+3}, 1, v2
        v_lshlrev_b32 v{m+3}, 3, v{m+3}
        v_lshl_add_u32 v{m+3}, v{m+2}, 9, v{m+3}
        v_add_u32 v{m+3}, s30, v{m+3}
        v_lshl_add_u32 v{m}, v{m+1}, 4, v{m+3}
        v_xor_b32 v{m+1}, 64, v{m}
        """)
        for c in range(2):
            for j in range(2):
                d = EV + 32 + 8 * c + 4 * j
                for hf in range(2): a(f"ds_read_b64_tr_b16 v[{d+2*hf}:{d+2*hf+1}], v{m+hf} offset:{c*2048 + j*256}")
        a("s_waitcnt lgkmcnt(0)")
        for c in range(2):
            for j in range(2):
                d = EV + 32 + 8 * c + 4 * j
                a(f"buffer_store_dwordx4 v[{d}:{d+3}], v3, s[4:7], s{34+c} offen offset:{j*1024} {WT}")
        a(f"""
        s_mul_i32 s30, s{S_MB}, 24
        s_add_u32 s31, s30, s{S_CH}
        s_lshl_b32 s31, s31, 2
        s_add_u32 s31, s31, s{S_WAVE}
        s_lshl_b32 s31, s31, 2
        s_add_u32 s31, s31, {F3}
        s_waitcnt vmcnt(0)
        """)
        self.flag_store([31], TT)

    def a3_setup(self, PB, T):
        a = self.a
        a(f"""
        v_lshrrev_b32 v{T}, 2, v2
        v_and_b32 v{T+1}, 3, v2
        v_and_b32 v{T+2}, 3, v{T}
        v_bfe_u32 v{T+3}, v{T}, 2, 1
        v_lshl_add_u32 v{T+2}, v{T+3}, 3, v{T+2}
        v_lshrrev_b32 v{T+3}, 3, v{T}
        v_lshl_add_u32 v{T+2}, v{T+3}, 2, v{T+2}
        v_mul_u32_u24 v{T+2}, 1152, v{T+2}
        v_lshl_add_u32 v{PB}, v{T+1}, 4, v{T+2}
        v_lshrrev_b32 v{T+2}, 1, v{T}
        v_mul_u32_u24 v{T+2}, 18, v{T+2}
        v_and_b32 v{T+3}, 1, v{T}
        v_add3_u32 v{T+2}, v{T+2}, v{T+3}, 16
        v_mul_u32_u24 v{T+2}, 1152, v{T+2}
        v_lshl_add_u32 v{PB+1}, v{T+1}, 4, v{T+2}
        s_sub_u32 s30, s{S_P3NB}, 9
        s_mul_i32 s{S_CB}, s30, 192
        s_mov_b32 s{S_ST3}, s{S_LW}
        """)
        self.srd(12, P_WO, 576 * 1152)
    def a3_issue(self, PB, cnt):
        a = self.a; lab = a.newlabel("L_a3i")
        a("s_mov_b32 s35, 0")
        a.label(lab)
        a(f"""
        s_mul_i32 s30, s{S_ST3}, 3072
        s_add_u32 s31, s30, {WO2}
        s_sub_u32 s30, s30, {18*3072}
        s_add_u32 s32, s{S_ST3}, 18
        s_sub_u32 s34, s{S_ST3}, 18
        s_cmp_lt_u32 s{S_ST3}, 18
        s_cselect_b32 s30, s31, s30
        s_cselect_b32 s32, s32, s34
        s_mul_i32 s31, s32, {18*1152}
        v_mov_b32 v{PB+2}, v{PB}
        s_cmp_lt_u32 s32, 32
        s_cbranch_scc1 {lab}m
        s_sub_u32 s32, s32, 32
        s_mul_i32 s31, s32, {8*18*1152}
        v_mov_b32 v{PB+2}, v{PB+1}
        """)
        a.label(lab + "m")
        a(f"s_add_u32 s31, s31, s{S_CB}")
        for nt in range(3):
            a(f"s_add_u32 m0, s30, {nt*1024}\ns_add_u32 s32, s31, {nt*64}\nbuffer_load_dwordx4 v{PB+2}, s[12:15], s32 offen lds")
        a(f"s_add_u32 s{S_ST3}, s{S_ST3}, 4\ns_add_u32 s35, s35, 1\ns_cmp_lt_u32 s35, {cnt}\ns_cbranch_scc1 {lab}")
    def xd(self, T, XD, ACC):
        a = self.a
        a(f"""
        v_lshrrev_b32 v{T+1}, 5, v2
        v_mul_u32_u24 v{T}, 1152, v1
        v_lshl_add_u32 v{T}, v{T+1}, 3, v{T}
        s_mul_i32 s30, s{S_P3T}, {32*1152}
        s_lshl_b32 s31, s{S_P3NB}, 7
        s_add_u32 s30, s30, s31
        v_add_u32 v{T}, s30, v{T}
        v_lshl_add_u32 v{T+1}, v{T+1}, 3, s31
        """)
        for e in range(8):
            a(f"global_load_dwordx2 v[{XD+2*e}:{XD+2*e+1}], v{T}, s[{P_BX}:{P_BX+1}] offset:{e*16}")
            a(f"global_load_dwordx2 v[{XD+16+2*e}:{XD+16+2*e+1}], v{T+1}, s[{P_DSK}:{P_DSK+1}] offset:{e*16}")
    def xd_math(self, T, XD, ACC):
        a = self.a
        for e in range(8):
            d = ACC + 4 * e
            for q in range(2):
                x = XD + 2 * e + q; k = XD + 16 + 2 * e + q
                a(f"""
                v_lshlrev_b32 v{T+2}, 16, v{x}
                v_lshlrev_b32 v{T+3}, 16, v{k}
                v_and_b32 v{x}, 0xffff0000, v{x}
                v_and_b32 v{k}, 0xffff0000, v{k}
                v_fmac_f32 v{d+2*q}, v{T+2}, v{T+3}
                v_fmac_f32 v{d+2*q+1}, v{x}, v{k}
                """)

    def aux_final(self, T):
        a = self.a; lab = a.newlabel("L_af")
        a("s_mov_b32 s34, 4")
        self.wait_prog(W_LAND + 28, T, sleep=32)
        self.wait_prog(FIN_OK, T, sleep=3)
        a(f"v_cmp_eq_u32 vcc, s30, v{T+1}\ns_cbranch_vccz {lab}\ns_barrier\ns_barrier\ns_barrier\ns_mov_b32 s34, 8")
        a.label(lab)
        a("s_setprio 3")

    def p3(self, T):
        a = self.a
        self.srd(16, P_OUT, OUT_BYTES)
        a(f"s_cmp_ge_u32 s{S_IDX}, 18\ns_cbranch_scc1 L_a3")
        EA, FC, FH, ACC, D = 155, 16, 48, 120, 18
        sets = [4, 8, 12]
        self.swz(sets[1], T, 0)
        for i in range(4): a(f"v_add_u32 v{sets[0]+i}, {TSCR}, v{sets[1]+i}\nv_add_u32 v{sets[2]+i}, 65536, v{sets[1]+i}")
        a(f"""
        s_mul_i32 s34, s{S_P3MB}, 384
        s_lshl_b32 s30, s{S_LW}, 2
        s_add_u32 s34, s34, s30
        s_add_u32 s34, s34, {F3}
        v_min_u32 v{T}, 17, v2
        v_lshlrev_b32 v{T}, 4, v{T}
        """)
        self.poll("L_pollF3", T + 1, T, "s34", sleep=16)
        self.stamp(7)
        a(f"s_mul_i32 s35, s{S_P3T}, {HS*2048}\ns_add_u32 s35, s35, {HH}")
        if not self.opt.get("nowarmh"):
            a(f"s_lshl_b32 s31, s{S_P3NB}, 13\ns_add_u32 s30, s35, s31\ns_add_u32 s31, s30, 4096")
            for n in range(8): a(f"buffer_load_dwordx4 v[{FC}:{FC+3}], v3, s[4:7], s{30 + n//4} offen offset:{(n%4)*1024}")
        def hload(k):
            r = FH + 4 * (k % D)
            l = [f"buffer_load_dwordx4 v[{r}:{r+3}], v3, s[4:7], s35 offen offset:{(k%4)*1024}"]
            if k % 4 == 3: l.append("s_add_u32 s35, s35, 4096")
            return l
        for k in range(D):
            for x in hload(k): a(x)
        self.aux_final(T)
        self.lds_spin(self.WA, T, "s34", W_G2 - W_BAR)
        self.stamp(8)
        def crd(k):
            st, s = k // 4, k % 4
            if st < 7: A, off = sets[0], st * 8192
            elif st < 15: A, off = sets[1], (st - 7) * 8192
            else: A, off = sets[2], (st - 15) * 8192
            return [f"ds_read_b128 v[{FC+8*s+4*nt}:{FC+8*s+4*nt+3}], v{A+s} offset:{off + nt*4096}" for nt in range(2)]
        a(f"s_waitcnt vmcnt({D})")
        for k in range(3):
            for x in crd(k): a(x)
        for k in range(72):
            if k + 3 == 64: self.lds_spin(self.WA, T, 4, W_G3 - W_BAR)
            if k == 40: self.arrive(T); a("s_waitcnt lgkmcnt(0)")
            if k == 60:
                a(f"""
                v_lshrrev_b32 v{T+2}, 4, v2
                v_and_b32 v{T+3}, 15, v2
                v_mul_u32_u24 v{T+4}, 1152, v{T+2}
                v_lshl_add_u32 v{T+4}, v{T+3}, 3, v{T+4}
                s_lshl_b32 s31, s{S_P3NB}, 7
                v_lshl_add_u32 v{T+5}, v{T+3}, 3, s31
                global_load_dwordx2 v[{FH+16}:{FH+17}], v{T+5}, s[{P_DSK}:{P_DSK+1}]
                s_mul_i32 s30, s{S_P3T}, {32*1152}
                s_add_u32 s30, s30, s31
                """)
                self.srd(8, P_BX, 2048 * 1152)
                for n in range(8): a(f"buffer_load_dwordx2 v[{FH+2*n}:{FH+2*n+1}], v{T+4}, s[8:11], s30 offen\ns_add_u32 s30, s30, {4*1152}")
            a(f"s_waitcnt vmcnt({min(D-1, 71-k) + (9 if k >= 60 else 0)}) lgkmcnt({min(4, 2*(71-k))})")
            h = FH + 4 * (k % D); r = crd(k + 3) if k + 3 < 72 else []
            for nt in range(2):
                c = FC + 8 * (k % 4) + 4 * nt; d = ACC + 16 * nt
                a(f"v_mfma_f32_32x32x16_bf16 v[{d}:{d+15}], v[{c}:{c+3}], v[{h}:{h+3}], " + ("0" if k == 0 else f"v[{d}:{d+15}]"))
                if nt == 0:
                    for x in r: a(x)
            if k + D < 72:
                for x in hload(k + D): a(x)
        self.stamp(10)
        OF = self.opt.get('outf', 'sc0_sc1').replace('_', ' ')
        self.lds_spin(self.WA, T, f"s{self.BC}")
        a(f"""
        s_mul_i32 s31, s{S_LW}, {32*272}
        s_add_u32 s31, s31, {TSCR}
        v_lshrrev_b32 v{T+1}, 5, v2
        v_mul_u32_u24 v{T}, 272, v1
        v_lshl_add_u32 v{T}, v{T+1}, 4, v{T}
        v_add_u32 v{T}, s31, v{T}
        v_mul_u32_u24 v{T+1}, 272, v{T+2}
        v_lshl_add_u32 v{T+1}, v{T+3}, 4, v{T+1}
        v_add_u32 v{T+1}, s31, v{T+1}
        v_mul_u32_u24 v{EA}, 4608, v{T+2}
        v_lshl_add_u32 v{EA}, v{T+3}, 4, v{EA}
        s_mul_i32 s30, s{S_P3T}, {32*4608}
        s_lshl_b32 s31, s{S_P3NB}, 8
        s_add_u32 s30, s30, s31
        s_add_u32 s30, s30, {576*4}
        """)
        for e in range(8): a(f"ds_write_b128 v{T}, v[{ACC+4*e}:{ACC+4*e+3}] offset:{e*32}")
        a("s_waitcnt lgkmcnt(4)")
        for n in range(8): a(f"ds_read_b128 v[{FC+4*n}:{FC+4*n+3}], v{T+1} offset:{n*4*272}")
        DD = FH + 20
        a(f"""
        s_waitcnt vmcnt(0)
        v_lshlrev_b32 v{DD}, 16, v{FH+16}
        v_and_b32 v{DD+1}, 0xffff0000, v{FH+16}
        v_lshlrev_b32 v{DD+2}, 16, v{FH+17}
        v_and_b32 v{DD+3}, 0xffff0000, v{FH+17}
        """)
        self.stamp(11)
        for n in range(8):
            x = FH + 2 * n; d = FC + 4 * n; t = DD + 4 + 4 * (n % 2)
            a(f"""
            v_lshlrev_b32 v{t}, 16, v{x}
            v_and_b32 v{t+1}, 0xffff0000, v{x}
            v_lshlrev_b32 v{t+2}, 16, v{x+1}
            v_and_b32 v{t+3}, 0xffff0000, v{x+1}
            s_waitcnt lgkmcnt({7-n})
            v_pk_fma_f32 v[{d}:{d+1}], v[{t}:{t+1}], v[{DD}:{DD+1}], v[{d}:{d+1}]
            v_pk_fma_f32 v[{d+2}:{d+3}], v[{t+2}:{t+3}], v[{DD+2}:{DD+3}], v[{d+2}:{d+3}]
            buffer_store_dwordx4 v[{d}:{d+3}], v{EA}, s[16:19], s30 offen {OF}
            s_add_u32 s30, s30, {4*4608}
            """)
        a("s_branch L_exit")
        a.label("L_a3")
        self.aux_final(T)
        a(f"s_cmp_ge_u32 s{S_IDX}, 30\ns_cbranch_scc1 L_exit")
        self.lds_spin(self.WA, T, "s34", W_G2 - W_BAR)
        self.stamp(8)
        AW, EA, T, FW, ACC, FO = 4, 6, 8, 16, 52, 100
        D = 14
        a(f"""
        s_lshl_b32 s34, s{S_P3T}, 7
        s_add_u32 s34, s34, {F4}
        v_lshlrev_b32 v{T+4}, 2, v1
        v_lshrrev_b32 v{T+1}, 5, v2
        v_bfe_u32 v{T+2}, v2, 2, 2
        v_lshl_add_u32 v{T+3}, v{T+1}, 3, v{T+2}
        v_lshlrev_b32 v{T+3}, 6, v{T+3}
        v_bfe_u32 v{T+2}, v2, 4, 1
        v_lshl_add_u32 v{T+3}, v{T+2}, 5, v{T+3}
        v_and_b32 v{T+2}, 3, v2
        v_lshl_add_u32 v{AW}, v{T+2}, 3, v{T+3}
        v_add_u32 v{AW+1}, {WO2}, v{AW}
        v_mul_u32_u24 v{EA}, 4608, v1
        v_lshl_add_u32 v{EA}, v{T+1}, 4, v{EA}
        v_lshl_add_u32 v{EA+1}, v{T+1}, 9, v{T+4}
        """)
        def rl3(s):
            st, off = (0, s * 3072) if s < 18 else (1, (s - 18) * 3072)
            l = []
            for nt in range(3):
                for hf in range(2):
                    r = FW + (s % 3) * 12 + nt * 4 + hf * 2
                    l.append(f"ds_read_b64_tr_b16 v[{r}:{r+1}], v{AW+st} offset:{off + nt*1024 + hf*256}")
            return l
        for x in rl3(0) + rl3(1): a(x)
        self.poll("L_pollF4", T + 5, T + 4, "s34", sleep=1)
        self.stamp(10)
        a(f"s_mul_i32 s30, s{S_P3T}, {OS}\ns_add_u32 s30, s30, {OW}")
        def oload(s):
            r = FO + 4 * (s % D)
            if s < 32:
                l = [f"buffer_load_dwordx4 v[{r}:{r+3}], v3, s[4:7], s30 offen offset:{(s%4)*1024} {LDF}"]
                if s % 4 == 3: l.append("s_add_u32 s30, s30, 4096")
                return l
            return [f"buffer_load_dword v{r+j}, v{EA+1}, s[4:7], s30 offen offset:{(s-32)*1024 + j*128} {LDF}" for j in range(4)]
        cnt = [1] * 32 + [4] * 4
        for s in range(D):
            for x in oload(s): a(x)
        for s in range(36):
            if s == 22: self.arrive(T); a("s_waitcnt lgkmcnt(0)")
            out = sum(cnt[s + 1:min(36, s + D)])
            a(f"s_waitcnt vmcnt({out}) lgkmcnt({6 if s < 35 else 0})")
            mf = []
            for nt in range(3):
                d = ACC + nt * 16; w = FW + (s % 3) * 12 + nt * 4; o = FO + 4 * (s % D)
                c = "0" if s == 0 else f"v[{d}:{d+15}]"
                mf.append(f"v_mfma_f32_32x32x16_bf16 v[{d}:{d+15}], v[{w}:{w+3}], v[{o}:{o+3}], {c}")
            ilv(a, mf, rl3(s + 2) if s + 2 < 36 else [])
            if s + D < 36:
                for x in oload(s + D): a(x)
        self.stamp(11)
        self.lds_spin(self.WA, T, f"s{self.BC}")
        a(f"""
        s_mul_i32 s31, s{S_LW}, {32*400}
        v_lshrrev_b32 v{T+1}, 5, v2
        v_mul_u32_u24 v{T}, 400, v1
        v_lshl_add_u32 v{T}, v{T+1}, 4, v{T}
        v_add_u32 v{T}, s31, v{T}
        """)
        for e in range(12): a(f"ds_write_b128 v{T}, v[{ACC+4*e}:{ACC+4*e+3}] offset:{e*32}")
        for j in range(3):
            a(f"""
            v_add_u32 v{FW}, {64*j}, v2
            v_mul_u32_u24 v{FW+1}, 171, v{FW}
            v_lshrrev_b32 v{FW+1}, 12, v{FW+1}
            v_mul_u32_u24 v{FW+2}, 24, v{FW+1}
            v_sub_u32 v{FW}, v{FW}, v{FW+2}
            v_mul_u32_u24 v{FW+2}, 400, v{FW+1}
            v_lshl_add_u32 v{FW+2}, v{FW}, 4, v{FW+2}
            v_add_u32 v{FW+4+j}, s31, v{FW+2}
            v_mul_u32_u24 v{FW+2}, 4608, v{FW+1}
            v_lshl_add_u32 v{FW+8+j}, v{FW}, 4, v{FW+2}
            """)
        a(f"""
        s_mul_i32 s30, s{S_P3T}, {32*4608}
        s_sub_u32 s31, s{S_P3NB}, 9
        s_mul_i32 s31, s31, 384
        s_add_u32 s30, s30, s31
        s_waitcnt lgkmcnt(0)
        """)
        for n in range(12): a(f"ds_read_b128 v[{FO+4*n}:{FO+4*n+3}], v{FW+4+n%3} offset:{(n//3)*8*400}")
        for n in range(12):
            a(f"s_waitcnt lgkmcnt({11-n})\nbuffer_store_dwordx4 v[{FO+4*n}:{FO+4*n+3}], v{FW+8+n%3}, s[16:19], s30 offen {OF}")
            if n % 3 == 2: a(f"s_add_u32 s30, s30, {8*4608}")

    def finish(self):
        a = self.a
        a.label("L_exit")
        if self.stamp_on:
            self.stamp(12)
            a("s_waitcnt vmcnt(0)")
            self.stamp(13); a(f"v_writelane_b32 v{VST}, s98, 0\nv_writelane_b32 v{VST}, s98, 14")
            a(f"""
            s_lshl_b32 s30, s2, 4
            s_add_u32 s30, s30, s{S_WAVE}
            s_lshl_b32 s30, s30, 8
            s_add_u32 s30, s30, {STB}
            v_lshlrev_b32 v3, 2, v2
            buffer_store_dword v{VST}, v3, s[4:7], s30 offen
            """)
            if "probe" in self.opt:
                k = int(self.opt["probe"])
                a(f"""
                v_readlane_b32 s30, v{VST}, 14
                v_readlane_b32 s31, v{VST}, {k}
                s_nop 3
                s_sub_u32 s32, s31, s30
                s_cmp_eq_u32 s31, 0
                s_cselect_b32 s32, 0, s32
                s_min_u32 s32, s32, 8000
                s_lshl_b32 s32, s32, 1
                s_add_u32 s32, s32, 7000
                """)
                a.label("L_probe")
                a("s_sleep 4\ns_memrealtime s[94:95]\ns_waitcnt lgkmcnt(0)\ns_sub_u32 s33, s94, s30\ns_cmp_lt_u32 s33, s32\ns_cbranch_scc1 L_probe")
        a("s_endpgm")
        self.emit_stubs()
        a.label("L_end")
        a("s_endpgm")

def gen_mega(name, stamp=False, opt=None):
    g = G(stamp, opt)
    g.a.raw(kernel_header(name))
    g.a.label('L_code0')
    g.prologue(); g.p1_loader(); g.attention(); g.aux(); g.finish()
    return g.a.text(), kernel_desc(name, NV, 100)

if __name__ == "__main__":
    import sys
    from build import *
    KN = NAME + "_kernel"
    out = sys.argv[1]; stamp = len(sys.argv) > 2 and sys.argv[2] == "1"
    opt = dict((kv.split("=") + ["1"])[:2] for kv in sys.argv[3:])
    if "f1s" in opt: F1STRIDE = int(opt["f1s"])
    if "ldf" in opt: LDF = opt["ldf"].replace("_", " ").strip()
    if "wt" in opt: WT = opt["wt"].replace("_", " ")
    compose([gen_mega(KN, stamp, opt)], [(KN, 256, 768, LDS_TOTAL)], out)
    assemble(out)
```

```python
import re

class Asm:
    def __init__(self):
        self.lines = []
        self.uid = 0
    pad = None
    def pad_begin(self, name, every=7):
        self.pad = [name, every, 0, 0]
        self._emit_pad()
    def _emit_pad(self):
        n, ev, cnt, idx = self.pad
        self.lines.append(f"{n}_{idx}:")
        self.lines.append(f"  s_cbranch_execz {n}_{idx+1} ; PAD")
        self.pad[2] = 0; self.pad[3] = idx + 1
    def pad_end(self, ret):
        n, ev, cnt, idx = self.pad
        self.pad = None
        self.lines.append(f"{n}_{idx}:")
        self.lines.append(f"  s_branch {ret}")
    def __call__(self, s):
        for l in s.split("\n"):
            l = l.strip()
            if l:
                self.lines.append("  " + l)
                if self.pad:
                    self.pad[2] += 1
                    if self.pad[2] >= self.pad[1] and not l.startswith(("s_branch", "s_cbranch")): self._emit_pad()
    def label(self, n):
        self.lines.append(n + ":")
    def raw(self, s):
        self.lines.append(s)
    def comment(self, s):
        self.lines.append("  ; " + s)
    def newlabel(self, p="L"):
        self.uid += 1
        return f"{p}_{self.uid}"
    def text(self):
        return "\n".join(self.lines) + "\n"

def vr(a, n=1):
    return f"v{a}" if n == 1 else f"v[{a}:{a+n-1}]"
def sr(a, n=1):
    return f"s{a}" if n == 1 else f"s[{a}:{a+n-1}]"

_reg = re.compile(r"^(-|\|)?(abs\()?([vsa])(\d+|\[(\d+):(\d+)\])\)?\|?$")
def parse_operand(o):
    o = o.strip()
    if o in ("vcc",): return {("s", 106), ("s", 107)}
    if o == "vcc_lo": return {("s", 106)}
    if o == "vcc_hi": return {("s", 107)}
    if o == "exec": return {("s", 126), ("s", 127)}
    if o == "m0": return {("s", 124)}
    m = _reg.match(o)
    if not m: return set()
    k = m.group(3)
    if m.group(5) is not None:
        return {(k, i) for i in range(int(m.group(5)), int(m.group(6)) + 1)}
    return {(k, int(m.group(4)))}

TRANS = ("v_exp_f32", "v_log_f32", "v_rcp_f32", "v_rsq_f32", "v_sqrt_f32", "v_sin_f32", "v_cos_f32", "v_rcp_iflag_f32", "v_exp_f16")
def mfma_passes(op):
    if "32x32x4_2b" in op: return 16
    if "32x32x" in op: return 8
    if "16x16x" in op: return 4
    raise ValueError(op)

class Ins:
    def __init__(self, text, idx):
        self.text = text; self.idx = idx
        t = text.split(";")[0].strip()
        parts = t.split(None, 1)
        self.op = parts[0]
        rest = parts[1] if len(parts) > 1 else ""
        ops = []; cur = ""; depth = 0
        for ch in rest:
            if ch == "[": depth += 1
            if ch == "]": depth -= 1
            if ch == "," and depth == 0:
                ops.append(cur.strip()); cur = ""
            else: cur += ch
        if cur.strip(): ops.append(cur.strip())
        self.mods = ""
        if ops:
            lp = ops[-1].split(None, 1)
            ops[-1] = lp[0]
            if len(lp) > 1: self.mods = lp[1]
        self.ops = ops
        op = self.op
        self.is_mfma = op.startswith("v_mfma") or op.startswith("v_smfmac")
        self.is_valu = op.startswith("v_") and not self.is_mfma
        self.is_trans = any(op.startswith(x) for x in TRANS)
        self.is_ds = op.startswith("ds_")
        self.is_vmem = op.startswith("buffer_") or op.startswith("global_")
        self.is_salu = op.startswith("s_")
        self.wr = set(); self.rd = set(); self.srcC = set(); self.srcAB = set(); self.store_data=set()
        P = [parse_operand(o) for o in ops]
        if self.is_mfma:
            self.passes = mfma_passes(op)
            self.wr = P[0]
            if op.startswith("v_smfmac"):
                self.srcC = P[0]; self.srcAB = P[1] | P[2] | P[3]
            else:
                self.srcC = P[3]; self.srcAB = P[1] | P[2]
            self.rd = self.srcC | self.srcAB
        elif self.is_valu:
            if op.startswith("v_cmp"):
                self.wr = P[0]; self.rd = set().union(*P[1:])
            elif op.startswith("v_permlane") and "swap" in op:
                self.wr = P[0] | P[1]; self.rd = P[0] | P[1]
            elif op.startswith(("v_add_co", "v_sub_co", "v_addc_co", "v_subb_co", "v_mad_u64_u32")):
                self.wr = P[0] | P[1]; self.rd = set().union(*P[2:])
            else:
                self.wr = P[0]; self.rd = set().union(*P[1:]) if len(P) > 1 else set()
                if op.startswith(("v_fmac", "v_pk_fmac", "v_writelane")) or "UNUSED_PRESERVE" in self.mods:
                    self.rd |= P[0]
        elif self.is_ds:
            if op.startswith(("ds_read", "ds_bpermute", "ds_permute", "ds_swizzle")) or "_rtn" in op:
                self.wr = P[0]; self.rd = set().union(*P[1:])
            else:
                self.rd = set().union(*P)
        elif self.is_vmem:
            lds = " lds" in (" " + self.mods) or "load_lds" in op
            if "load" in op and not lds:
                self.wr = P[0]; self.rd = set().union(*P[1:])
            elif "atomic" in op and "sc0" in self.mods and op.startswith("global"):
                self.wr = P[0]; self.rd = set().union(*P[1:])
            else:
                self.rd = set().union(*P)
                if "store" in op and ("x4" in op or "x3" in op):
                    self.store_data = P[0] if op.startswith("buffer") else P[1]
            if lds: self.rd |= {("s", 124)}
            self.is_ldsdma = lds
        elif self.is_salu:
            if op.startswith(("s_cmp", "s_cbranch", "s_branch", "s_waitcnt", "s_nop", "s_barrier", "s_endpgm", "s_setprio", "s_sleep", "s_bitcmp")):
                self.rd = set().union(*P) if P else set()
            else:
                self.wr = P[0] if P else set(); self.rd = set().union(*P[1:]) if len(P) > 1 else set()
        self.states = 1
        if op == "s_nop": self.states = int(ops[0], 0) + 1

def required(p, c):
    need = 0; why = ""
    def up(n, w):
        nonlocal need, why
        if n > need: need = n; why = w
    pv = {r for r in p.wr if r[0] in "va"}; ps = {r for r in p.wr if r[0] == "s"}
    if p.is_valu:
        if c.is_mfma and pv & c.rd: up(2, "VALU->MFMA read")
        if p.is_trans and c.is_valu and not c.is_trans and pv & c.rd: up(1, "trans->VALU")
        if c.op.startswith(("v_readfirstlane", "v_readlane")) and pv & c.rd: up(1, "VALU->readlane")
        if c.op.startswith("v_permlane") and pv & c.rd: up(2, "VALU->permlane")
        if c.is_valu and ("dpp" in c.op or "row_" in c.mods or "quad_perm" in c.mods) and pv & c.rd: up(2, "VALU->DPP")
        if ps:
            if c.is_valu and ps & c.rd: up(2, "VALU sgpr->VALU const")
            if c.op.startswith(("v_readlane", "v_writelane")) and ps & c.rd: up(4, "VALU sgpr->lanesel")
            if c.is_vmem and ps & c.rd: up(5, "VALU sgpr->VMEM")
            if c.op.startswith("v_cndmask") and len(c.ops) == 3 and ("s",106) in ps: up(2, "vcc->cndmask")
            if c.op.startswith("v_div_fmas") and ("s",106) in ps: up(4, "vcc->div_fmas")
        if ("sdwa" in p.op or ("op_sel" in p.mods and not p.op.startswith("v_pk_"))) and c.is_valu and pv & (c.rd | c.wr): up(1, "opsel/sdwa->VALU")
    if p.is_mfma:
        n = p.passes
        if c.is_mfma:
            if pv & c.srcAB: up(n + 4, "MFMA D->MFMA A/B")
            if pv & c.srcC:
                if pv == c.srcC and c.passes == n: up(0, "")
                else: up(n + 2, "MFMA D->MFMA C overlap")
            elif pv & c.wr: up(n + 2, "MFMA D->MFMA D WAW(conservative)")
        elif c.is_valu or c.is_ds or c.is_vmem:
            if pv & (c.rd | c.wr): up(n + 4, "MFMA D->VALU/mem")
        if c.is_valu and p.srcC & c.wr: up(n - 1, "MFMA C read->VALU write")
    if p.is_salu and ("s", 124) in p.wr and c.is_vmem and getattr(c, "is_ldsdma", False): up(1, "m0->ldsdma")
    if p.store_data and (c.is_valu or c.is_ds or c.is_vmem or c.is_mfma) and p.store_data & c.wr: up(2, "wide store WAR")
    return need, why

def check_hazards(text, verbose=True):
    ins = []; labels = {}
    for l in text.split("\n"):
        s = l.split(";")[0].strip()
        if "; PAD" in l: s = "s_nop 0"
        if not s or s.startswith("."): continue
        if s.endswith(":"):
            labels[s[:-1]] = len(ins); continue
        if not re.match(r"^(v_|s_|ds_|buffer_|global_)", s): continue
        ins.append(Ins(s, len(ins)))
    def succ(i):
        I = ins[i]
        if I.op == "s_endpgm": return []
        if I.op == "s_branch": return [labels[I.ops[0]]]
        r = [i + 1] if i + 1 < len(ins) else []
        if I.op.startswith("s_cbranch"): r.append(labels[I.ops[0]])
        return r
    errs = []
    MAXD = 21
    for i, p in enumerate(ins):
        if not (p.is_valu or p.is_mfma or p.store_data or (p.is_salu and ("s",124) in p.wr)): continue
        lim = MAXD if p.is_mfma else 5
        seen = {}
        stack = [(j, 0) for j in succ(i)]
        while stack:
            j, d = stack.pop()
            if j >= len(ins) or d >= lim: continue
            if seen.get(j, 99) <= d: continue
            seen[j] = d
            c = ins[j]
            need, why = required(p, c)
            if need > d:
                errs.append(f"HAZARD {why}: need {need} have {d}\n    P[{i}]: {p.text}\n    C[{j}]: {c.text}")
            for k in succ(j): stack.append((k, d + c.states))
    if verbose:
        for e in errs[:40]: print(e)
        print(f"hazard check: {len(ins)} instrs, {len(errs)} problems")
    return errs

def kernel_header(name):
    return f""".text
.globl {name}
.p2align 8
.type {name},@function
{name}:"""

def kernel_desc(name, nv, ns=96, acc=None):
    acc = acc if acc is not None else (nv + 3) // 4 * 4
    return f""".section .rodata,"a"
.p2align 6
.amdhsa_kernel {name}
  .amdhsa_next_free_vgpr {nv}
  .amdhsa_next_free_sgpr {ns}
  .amdhsa_accum_offset {acc}
  .amdhsa_group_segment_fixed_size 0
  .amdhsa_kernarg_size 120
  .amdhsa_user_sgpr_count 2
  .amdhsa_user_sgpr_kernarg_segment_ptr 1
  .amdhsa_system_sgpr_workgroup_id_x 1
.end_amdhsa_kernel"""
```

```python
from asmlib import *
from lay2 import *
import math, struct
def f32(x): return "0x%08x" % struct.unpack("<I", struct.pack("<f", x))[0]
QSCALE = f32(18 ** -0.5 * math.log2(math.e))
WT = "sc0 sc1"
LDF = "sc0 sc1"
SPIN_MAX = 20000
P_AX, P_WQKV, P_WO, P_BX, P_LRE, P_LIM, P_BRE, P_BIM, P_CRE, P_CIM, P_LDT, P_DSK, P_OUT, P_DBG, P_WS = range(64, 94, 2)
S_WAVE, S_XCD, S_IDX, S_MB, S_NB, S_TYPE, S_CHB, S_CHA, S_HALF, S_CH = 3, 20, 21, 22, 23, 24, 25, 26, 27, 29
S_P3MB, S_P3NB, S_HD, S_LW, S_P3T = 37, 38, 39, 51, 57
S_GK, S_K4, S_GV, S_LP = 52, 54, 55, 56
S_HB, S_CB, S_SL3, S_ST3 = 52, 53, 54, 55
NV = 168
VST = 167
BS = 64
SPILL = 0x1200000
LR, LI, CR, CI, LCR, LCI, PWR, PWI, MUR, MUI = range(BS + 32, BS + 42)
C0, CHB = 5, 19968
LDS_W = 8 * CHB
W_LAND, W_PROG, W_UNS, W_BAR, W_DRN = LDS_W, LDS_W + 64, LDS_W + 96, LDS_W + 100, LDS_W + 104
W_F1 = LDS_W + 108
LDS_SCR = LDS_W + 512
B1BASE, BSLOT = 0, 24576
R3 = [100352, 124928, 2048, 26624]
W_OK = 8 * 19968 + 112
W_P2, W_G2, W_G3 = 8 * 19968 + 116, 8 * 19968 + 120, 8 * 19968 + 124
TSCR = 100352
W_B8 = 8 * 19968 + 132
W_F4 = 8 * 19968 + 144
FIN_OK, FIN_BAD = 0x40000000, 0x50000000
R3BASE = 2048
WO2 = 100352
QS, VS, OS, HS = 289, 9344, 37 * 1024, 37
def pad_touch():
    pads = [QKP + (q * QS + 288) * 1024 for q in range(16)] + [VT + o * VS + 9216 for o in range(256)]
    pads += [OW + t * OS + 36 * 1024 for t in range(64)] + [HH + (t * HS + 36) * 2048 for t in range(64)] + [EE + 0x80000, FL + 0x80000]
    G = 1 << 20
    seen = {}
    for p in pads: seen.setdefault(p // G, p)
    return sorted(seen.values())
F1STRIDE = 128 * NSUB
W_FULL, W_FREE = 8 * 19968 + 2560, 8 * 19968 + 2816
R6 = [100352, 124928, 2048, 26624, 51200, 75776]

def ilv(a, mf, other):
    n = len(mf); k = 0
    for i, m in enumerate(mf):
        a(m)
        upto = (len(other) * (i + 1) + n - 2) // (n - 1) if i < n - 1 else len(other)
        upto = min(upto, len(other))
        while k < upto: a(other[k]); k += 1

class G:
    def __init__(self, stamp=False, opt=None):
        self.a = Asm(); self.stamp_on = stamp; self.opt = opt or {}; self.stubs = []
    def stamp(self, k, real=False):
        if not self.stamp_on: return
        op = "s_memrealtime" if (real or k not in (62, 61, 60, 59)) else "s_memtime"
        self.a(f"{op} s[94:95]\ns_waitcnt lgkmcnt(0)\nv_writelane_b32 v{VST}, s94, {k}")
    def stampx(self, base, force=False):
        if not self.stamp_on or not (force or self.opt.get("stx")): return
        self.a(f"s_memrealtime s[94:95]\ns_add_u32 m0, s96, {base}\ns_add_u32 s96, s96, 1\ns_waitcnt lgkmcnt(0)\nv_writelane_b32 v{VST}, s94, m0")
    def srd(self, d, p, n):
        self.a(f"s_mov_b32 s{d}, s{p}\ns_and_b32 s{d+1}, s{p+1}, 0xffff\ns_mov_b32 s{d+2}, {n}\ns_mov_b32 s{d+3}, 0x20000")
    def poll(self, lab, vdst, voff, soff, n=1, want="1", sleep=2):
        a = self.a
        ld = f"buffer_load_dword v{vdst}, v{voff}, s[4:7], {soff} offen sc0 sc1" if n == 1 else f"buffer_load_dwordx4 v[{vdst}:{vdst+3}], v{voff}, s[4:7], {soff} offen sc0 sc1"
        a("s_mov_b32 s33, 0")
        a.label(lab)
        a(ld + "\ns_waitcnt vmcnt(0)")
        if n == 4:
            a(f"v_and_b32 v{vdst}, v{vdst}, v{vdst+1}\nv_and_b32 v{vdst+2}, v{vdst+2}, v{vdst+3}\nv_and_b32 v{vdst}, v{vdst}, v{vdst+2}")
        a(f"""
        v_cmp_ne_u32 vcc, {want}, v{vdst}
        s_add_u32 s33, s33, 1
        s_cmp_gt_u32 s33, {SPIN_MAX}
        s_cbranch_scc1 {lab}_x
        s_cbranch_vccz {lab}_x
        s_sleep {sleep}
        s_branch {lab}
        """)
        a.label(lab + "_x")
    def lds_spin(self, vaddr, vtmp, want, off=0, sleep=0):
        a = self.a; lab = a.newlabel("L_sp")
        a("s_mov_b32 s33, 0")
        a.label(lab)
        a(f"""
        ds_read_b32 v{vtmp}, v{vaddr} offset:{off}
        s_add_u32 s33, s33, 1
        s_waitcnt lgkmcnt(0)
        v_readfirstlane_b32 s32, v{vtmp}
        s_cmp_ge_u32 s32, {want}
        s_cbranch_scc1 {lab}x
        {f"s_sleep {sleep}" if sleep else ""}
        s_cmp_lt_u32 s33, {SPIN_MAX*16}
        s_cbranch_scc1 {lab}
        """)
        a.label(lab + "x")
    def lds_add1(self, vaddr, vone, off=0):
        self.a(f"s_mov_b64 exec, 1\nds_add_u32 v{vaddr}, v{vone} offset:{off}\ns_mov_b64 exec, -1")
    def flag_store(self, sregs, T):
        a = self.a
        a(f"v_mov_b32 v{T}, 0\nv_mov_b32 v{T+1}, 1\ns_mov_b64 exec, 1")
        for r in sregs: a(f"buffer_store_dword v{T+1}, v{T}, s[4:7], s{r} offen {WT}")
        a("s_mov_b64 exec, -1")
    def warm(self, items, T, dst):
        a = self.a
        if self.opt.get("nowarm"): return
        a(f"s_lshl_b32 s30, s{S_LW}, 8\ns_add_u32 s30, s30, s2\ns_lshl_b32 s30, s30, 10\nv_add_u32 v{T}, s30, v3")
        for (p, n) in items:
            self.srd(8, p, n)
            for r in range((n + (1 << 20) - 1) >> 20):
                a(f"s_mov_b32 s30, {r << 20}\nbuffer_load_dwordx4 v[{dst}:{dst+3}], v{T}, s[8:11], s30 offen")
    def warmx(self, items, T, dst):
        a = self.a
        a(f"s_lshl_b32 s30, s{S_IDX}, 2\ns_add_u32 s30, s30, s{S_LW}\ns_lshl_b32 s30, s30, 10\nv_add_u32 v{T}, s30, v3")
        for (p, n) in items:
            self.srd(8, p, n)
            for r in range((n + (1 << 17) - 1) >> 17):
                a(f"s_mov_b32 s30, {r << 17}\nbuffer_load_dwordx4 v[{dst}:{dst+3}], v{T}, s[8:11], s30 offen")
    def make_vx(self, dst, n, sa, sb, sc1, sc0, T):
        a = self.a
        a(f"""
        v_lshrrev_b32 v{T}, 3, v2
        v_and_b32 v{T+1}, 7, v2
        v_lshrrev_b32 v{T+2}, 1, v{T}
        v_xor_b32 v{T+1}, v{T+1}, v{T+2}
        v_lshrrev_b32 v{T+2}, 2, v{T}
        v_and_b32 v{T}, 3, v{T}
        v_mul_u32_u24 v{T+2}, {sa}, v{T+2}
        v_mul_u32_u24 v{T}, {sb}, v{T}
        v_add_u32 v{T}, v{T}, v{T+2}
        v_mul_u32_u24 v{T}, 1152, v{T}
        v_lshl_add_u32 v{dst}, v{T+1}, 4, v{T}
        v_xor_b32 v{T+1}, 4, v{T+1}
        v_lshl_add_u32 v{dst+1}, v{T+1}, 4, v{T}
        s_mul_i32 s34, {sc0}, 1152
        s_sub_u32 s34, s34, 1024
        v_add_u32 v{dst+1}, s34, v{dst+1}
        """)
        if n == 4:
            a(f"s_mul_i32 s34, {sc1}, 1152\ns_sub_u32 s34, s34, 2048\nv_add_u32 v{dst+2}, s34, v{dst}\nv_add_u32 v{dst+3}, s34, v{dst+1}")
    def swz(self, Z, T, add=0):
        a = self.a
        a(f"""
        v_lshrrev_b32 v{T+1}, 5, v2
        v_bfe_u32 v{T+2}, v1, 1, 3
        v_xor_b32 v{T+2}, v{T+2}, v{T+1}
        v_lshlrev_b32 v{T+3}, 7, v1
        v_add_u32 v{T+3}, {add}, v{T+3}
        """)
        for s in range(4): a(f"v_xor_b32 v{T+4}, {2*s}, v{T+2}\nv_lshl_add_u32 v{Z+s}, v{T+4}, 4, v{T+3}")

    def prologue(self):
        a = self.a
        a(f"""
        s_cmp_ge_u32 s2, 256
        s_cbranch_scc1 L_end
        {"s_memrealtime s[98:99]" if self.stamp_on else ""}
        s_load_dwordx16 s[64:79], s[0:1], 0
        s_load_dwordx8 s[80:87], s[0:1], 64
        s_load_dwordx4 s[88:91], s[0:1], 96
        s_load_dwordx2 s[92:93], s[0:1], 112
        v_lshrrev_b32 v1, 6, v0
        v_and_b32 v2, 63, v0
        v_readfirstlane_b32 s{S_WAVE}, v1
        v_lshlrev_b32 v3, 4, v2
        v_and_b32 v1, 31, v0
        s_and_b32 s{S_XCD}, s2, 7
        s_lshr_b32 s{S_IDX}, s2, 3
        """)
        if self.stamp_on: a(f"v_mov_b32 v{VST}, 0\ns_mov_b32 s96, 0")
        if self.stamp_on and self.opt.get("st0"): a(f"s_waitcnt lgkmcnt(0)"); self.stamp(2)
        a(f"""
        s_and_b32 s30, s{S_XCD}, 3
        s_lshl_b32 s30, s30, 2
        s_and_b32 s31, s{S_IDX}, 3
        s_add_u32 s{S_MB}, s30, s31
        s_lshl_b32 s{S_HD}, s{S_XCD}, 2
        s_add_u32 s{S_HD}, s{S_HD}, s31
        s_lshr_b32 s30, s{S_XCD}, 2
        s_lshr_b32 s31, s{S_IDX}, 2
        s_mul_i32 s32, s30, 7
        s_add_u32 s{S_NB}, s32, s31
        s_mul_i32 s32, s30, 9
        s_add_u32 s{S_CHB}, s32, s31
        s_add_u32 s{S_CHA}, s32, 8
        s_cmp_ge_u32 s{S_NB}, 9
        s_cselect_b32 s{S_TYPE}, 1, 0
        s_cmp_ge_u32 s{S_IDX}, 28
        s_cselect_b32 s{S_TYPE}, 2, s{S_TYPE}
        s_and_b32 s{S_LW}, s{S_WAVE}, 3
        """)
        G_ = int(self.opt.get("rotg", 3))
        a(f"s_and_b32 s30, s{S_IDX}, 3\ns_lshr_b32 s31, s{S_IDX}, 2\ns_add_u32 s30, s30, s31")
        if G_ == 1: a("s_mov_b32 s28, 0")
        elif G_ == 2: a("s_and_b32 s30, s30, 1\ns_mul_i32 s28, s30, 5")
        elif G_ == 3: a("s_mul_i32 s31, s30, 43\ns_lshr_b32 s31, s31, 7\ns_mul_i32 s31, s31, 3\ns_sub_u32 s30, s30, s31\ns_mul_i32 s28, s30, 3")
        elif G_ == 4: a("s_and_b32 s30, s30, 3\ns_mul_i32 s28, s30, 9\ns_lshr_b32 s28, s28, 2")
        a(f"""
        s_cmp_lt_u32 s{S_WAVE}, 4
        s_cbranch_scc1 L_aux
        """)

    def p3_ids(self):
        self.a(f"""
        s_lshl_b32 s{S_P3MB}, s{S_XCD}, 1
        s_and_b32 s30, s{S_IDX}, 1
        s_add_u32 s{S_P3MB}, s{S_P3MB}, s30
        s_lshr_b32 s{S_P3NB}, s{S_IDX}, 1
        s_lshl_b32 s{S_P3T}, s{S_P3MB}, 2
        s_add_u32 s{S_P3T}, s{S_P3T}, s{S_LW}
        """)

    def p1_loader(self):
        a = self.a
        VX, T = 4, 12
        SI, SB, ST, SL = 41, 43, 44, 45
        a(f"""
        s_cmp_eq_u32 s{S_TYPE}, 2
        s_cbranch_scc1 L_p1l_sp
        s_mov_b32 s{SI}, 0
        s_sub_u32 s42, 9, s28
        s_lshl_b32 s{SL}, s{S_LW}, 12
        s_cmp_ge_u32 s{S_WAVE}, 8
        s_cbranch_scc1 L_p1l_w
        s_cmp_eq_u32 s{S_TYPE}, 0
        s_cselect_b32 s46, 2, 1
        s_cselect_b32 s47, 32, 16
        s_cselect_b32 s48, 16, 4
        s_lshr_b32 s30, s{S_LW}, 1
        s_lshl_b32 s30, s30, 6
        s_and_b32 s31, s{S_LW}, 1
        s_add_u32 s30, s30, s31
        s_lshl_b32 s31, s{S_LW}, 5
        s_cmp_eq_u32 s{S_TYPE}, 0
        s_cselect_b32 s30, s30, s31
        s_lshl_b32 s31, s{S_MB}, 7
        s_add_u32 s30, s30, s31
        s_mul_i32 s{SB}, s30, 1152
        s_mov_b32 s{ST}, 128
        """)
        self.make_vx(VX, 4, "8", "s46", "s47", "s48", T)
        a("s_waitcnt lgkmcnt(0)")
        self.srd(8, P_AX, 2048 * 1152)
        a("s_branch L_p1l_go")
        a.label("L_p1l_w")
        a(f"""
        s_mul_i32 s30, s{S_LW}, {16*3456}
        s_lshl_b32 s31, s{S_NB}, 8
        s_add_u32 s{SB}, s30, s31
        s_mov_b32 s{ST}, {64*3456}
        s_add_u32 s{SL}, s{SL}, 16384
        v_lshrrev_b32 v{T}, 4, v2
        v_and_b32 v{T+1}, 15, v2
        v_lshlrev_b32 v{T+2}, 2, v{T}
        v_xor_b32 v{T+1}, v{T+1}, v{T+2}
        v_mul_u32_u24 v{T}, 3456, v{T}
        v_lshl_add_u32 v{VX}, v{T+1}, 4, v{T}
        v_add_u32 v{VX+1}, {4*3456-1024}, v{VX}
        v_add_u32 v{VX+2}, {2*(4*3456-1024)}, v{VX}
        v_add_u32 v{VX+3}, {3*(4*3456-1024)}, v{VX}
        s_waitcnt lgkmcnt(0)
        """)
        self.srd(8, P_WQKV, 576 * 3456)
        a.label("L_p1l_go")
        a(f"s_mul_i32 s30, s28, s{ST}\ns_add_u32 s{SB}, s{SB}, s30\ns_mul_i32 s46, s{ST}, 9")
        self.stamp(1)
        a.label("L_p1l_issue")
        a(f"s_mov_b32 m0, s{SL}\ns_add_u32 s{SI}, s{SI}, 1")
        for n in range(4): a(f"buffer_load_dwordx4 v{VX+n}, s[8:11], s{SB} offen offset:{n*1024} lds")
        a(f"""
        s_add_u32 s{SB}, s{SB}, s{ST}
        s_cmp_eq_u32 s{SI}, s42
        s_cselect_b32 s30, s46, 0
        s_sub_u32 s{SB}, s{SB}, s30
        s_add_u32 s{SL}, s{SL}, 32768
        s_sub_u32 s30, s{SL}, 163840
        s_cmp_ge_u32 s{SL}, 163840
        s_cselect_b32 s{SL}, s30, s{SL}
        s_cmp_lt_u32 s{SI}, 3
        s_cbranch_scc1 L_p1l_issue
        s_waitcnt vmcnt(8)
        s_barrier
        """)
        a(f"s_cmp_lt_u32 s{SI}, 9\ns_cbranch_scc1 L_p1l_issue")
        a.label("L_p1l_sp")
        a("s_waitcnt lgkmcnt(0)")
        self.b1_loader()
        a(f"s_cmp_eq_u32 s{S_TYPE}, 2\ns_cbranch_scc1 L_p1l_sp2")
        nw = 0
        if not self.opt.get("nowarmb"):
            nw = 3
            a(f"""
            s_lshl_b32 s30, s{S_IDX}, 2
            s_and_b32 s31, s{S_LW}, 1
            s_add_u32 s30, s30, s31
            s_lshr_b32 s31, s{S_WAVE}, 3
            s_lshl_b32 s31, s31, 1
            s_add_u32 s30, s30, s31
            s_mul_i32 s30, s30, 3072
            s_lshr_b32 s31, s{S_XCD}, 2
            s_mul_i32 s31, s31, {288*1152}
            s_add_u32 s30, s30, s31
            """)
            for n in range(3): a(f"buffer_load_dwordx4 v[80:83], v3, s[12:15], s30 offen offset:{n*1024}")
        a(f"s_waitcnt vmcnt({4+nw})\ns_barrier\ns_waitcnt vmcnt({nw})\ns_barrier")
        a.label("L_p1l_sp2")
        a(f"""
        s_cmp_lg_u32 s{S_WAVE}, 8
        s_cbranch_scc1 L_p1l_b
        v_lshlrev_b32 v9, 2, v2
        v_add_u32 v9, {LDS_W}, v9
        v_cmp_eq_u32 vcc, 8, v2
        v_mov_b32 v10, 4
        v_mov_b32 v8, 0
        v_cndmask_b32 v10, v8, v10, vcc
        ds_write_b32 v9, v10
        ds_write_b32 v9, v8 offset:2560
        ds_write_b32 v9, v8 offset:2816
        s_waitcnt lgkmcnt(0)
        """)
        a.label("L_p1l_b")
        a("s_barrier")
        self.srd(4, P_WS, WS_BYTES)
        if self.opt.get("drn"):
            a(f"s_cmp_eq_u32 s{S_TYPE}, 2\ns_cbranch_scc1 L_p1l_sp4\nv_mov_b32 v70, {W_DRN}")
            self.lds_spin(70, 71, int(self.opt["drn"]), sleep=1)
            a.label("L_p1l_sp4")
        self.b1_run()
        self.helper()

    def aux_start(self):
        a = self.a
        a(f"s_cmp_lg_u32 s{S_WAVE}, 3\ns_cbranch_scc1 L_nopf\ns_getpc_b64 s[30:31]")
        a.label("L_pc")
        a(f"""
        s_sub_u32 s30, s30, L_pc-L_code0
        s_subb_u32 s31, s31, 0
        s_lshl_b32 s32, s{S_IDX}, 10
        s_cmp_ge_u32 s32, L_end-L_code0-1024
        s_cbranch_scc1 L_nopf
        s_add_u32 s30, s30, s32
        s_addc_u32 s31, s31, 0
        v_mov_b32 v5, s31
        v_add_co_u32 v4, vcc, s30, v3
        s_nop 1
        v_addc_co_u32 v5, vcc, 0, v5, vcc
        global_load_dword v154, v[4:5], off
        """)
        a.label("L_nopf")
        a("s_waitcnt lgkmcnt(0)")
        self.srd(4, P_WS, WS_BYTES)
        for r in (8, 9, 10, 11, 152): a(f"v_mov_b32 v{r}, 0")
        if not self.opt.get("notlb"):
            a(f"s_cmp_lg_u32 s{S_WAVE}, 2\ns_cbranch_scc1 L_notlb")
            pt = pad_touch()
            for i, p in enumerate(pt): a(f"s_mov_b32 s30, {p}\nv_writelane_b32 v9, s30, {i}")
            a(f"s_mov_b64 exec, {(1 << len(pt)) - 1}\nbuffer_load_dword v154, v9, s[4:7], 0 offen\ns_mov_b64 exec, 0x1ff\nv_lshlrev_b32 v9, 20, v2")
            a(f"global_load_dword v154, v9, s[{P_OUT}:{P_OUT+1}]\ns_mov_b64 exec, 7\nglobal_load_dword v154, v9, s[{P_BX}:{P_BX+1}]\ns_mov_b64 exec, 1")
            for p in (P_WO, P_LRE, P_LIM, P_BRE, P_BIM, P_CRE, P_CIM, P_LDT, P_DSK): a(f"global_load_dword v154, v8, s[{p}:{p+1}]")
            a("s_mov_b64 exec, -1")
            a.label("L_notlb")
    def zero_flags(self):
        a = self.a
        a(f"s_lshl_b32 s30, s2, 4\ns_add_u32 s30, s30, s{S_WAVE}\ns_cmp_lg_u32 s30, {255*16}\ns_cbranch_scc1 L_nz\ns_mov_b32 s30, {FL}\nv_mov_b32 v24, 0\nv_mov_b32 v25, 0\nv_mov_b32 v26, 0\nv_mov_b32 v27, 0")
        for i in range(FLBYTES // 1024):
            a(f"buffer_store_dwordx4 v[24:27], v3, s[4:7], s30 offen offset:{(i%4)*1024} {WT}")
            if i % 4 == 3: a("s_add_u32 s30, s30, 4096")
        a(f"""
        s_waitcnt vmcnt(0)
        v_mov_b32 v28, 1
        s_mov_b64 exec, 1
        global_store_dword v8, v28, s[{P_DBG}:{P_DBG+1}] {WT}
        s_mov_b64 exec, -1
        """)
        a.label("L_nz")
    def dbg_load(self):
        self.a(f"v_mov_b32 v152, 0\nglobal_load_dword v153, v152, s[{P_DBG}:{P_DBG+1}]")
    def dbg_verify(self):
        a = self.a; l = a.newlabel("L_dv")
        a("s_mov_b32 s33, 0")
        a.label(l)
        a(f"""
        v_readfirstlane_b32 s32, v153
        s_cmp_eq_u32 s32, 1
        s_cbranch_scc1 {l}x
        s_add_u32 s33, s33, 1
        s_cmp_gt_u32 s33, {SPIN_MAX}
        s_cbranch_scc1 {l}x
        s_sleep 8
        global_load_dword v153, v152, s[{P_DBG}:{P_DBG+1}] sc0 sc1
        s_waitcnt vmcnt(0)
        s_branch {l}
        """)
        a.label(l + "x")
        a(f"ds_write_b32 v{self.WA}, v{self.ONE} offset:{W_OK - W_BAR}")
    def wait_ok(self, T):
        self.a(f"v_mov_b32 v{T}, {W_OK}")
        self.lds_spin(T, T + 1, 1, sleep=2)

    def kv_setup(self, T, VV, first):
        a = self.a
        a(f"""
        s_lshr_b32 s30, s{S_HD}, 1
        s_mul_i32 s30, s30, 9
        s_and_b32 s31, s{S_HD}, 1
        s_lshl_b32 s31, s31, 2
        s_add_u32 s36, s30, s31                  ; f
        s_add_u32 s30, s36, s{S_LW}
        s_lshl_b32 s30, s30, 10
        s_mul_i32 s31, {first}, {2*QS*1024}
        s_add_u32 s30, s30, s31
        s_add_u32 s{S_GK}, s30, {QKP + 144*1024}
        s_cmp_eq_u32 s{S_LW}, 0
        s_cselect_b32 s{S_K4}, 0, {(QS-5)*1024}
        s_add_u32 s{S_K4}, s{S_K4}, 4096
        s_mul_i32 s30, s{S_HD}, 288
        s_mul_i32 s31, s{S_LW}, {3*VS}
        s_add_u32 s30, s30, s31
        s_mul_i32 s31, {first}, {32*VS}
        s_add_u32 s30, s30, s31
        s_add_u32 s{S_GV}, s30, {VT}
        v_mul_u32_u24 v{T}, 27, v2
        v_lshrrev_b32 v{T}, 9, v{T}
        v_mul_u32_u24 v{VV}, 19, v{T}
        v_sub_u32 v{VV}, v2, v{VV}
        v_cmp_gt_u32 vcc, 18, v{VV}
        v_cmp_gt_u32 s[58:59], 3, v{T}
        v_cmp_gt_u32 s[60:61], 2, v{T}
        v_mul_u32_u24 v{T}, {VS}, v{T}
        v_lshl_add_u32 v{VV}, v{VV}, 4, v{T}
        s_and_b64 s[58:59], s[58:59], vcc
        s_and_b64 s[60:61], s[60:61], vcc
        s_cmp_eq_u32 s{S_LW}, 2
        s_cselect_b64 s[60:61], s[60:61], s[58:59]
        s_add_u32 s30, {first}, {C0}
        s_and_b32 s30, s30, 7
        s_mul_i32 s{S_LP}, s30, {CHB}
        v_mul_u32_u24 v{VV+1}, {VROW}, v1
        v_add_u32 v{VV+1}, {10240 + 288}, v{VV+1}
        """)
    def k_part(self):
        a = self.a; l1 = a.newlabel("L_kd")
        a(f"""
        s_lshl_b32 s31, s{S_LW}, 10
        s_add_u32 s31, s31, s{S_LP}
        s_mov_b32 m0, s31
        s_add_u32 s30, s{S_GK}, s{S_K4}
        buffer_load_dwordx4 v3, s[4:7], s{S_GK} offen {LDF} lds
        s_add_u32 m0, s31, 4096
        s_cmp_ge_u32 s{S_LW}, 2
        buffer_load_dwordx4 v3, s[4:7], s30 offen {LDF} lds
        s_cbranch_scc1 {l1}
        s_add_u32 m0, s31, 8192
        s_add_u32 s30, s{S_GK}, {(QS+3)*1024}
        buffer_load_dwordx4 v3, s[4:7], s30 offen {LDF} lds
        """)
        a.label(l1)
    def v_part(self, VV, ONES, T):
        a = self.a; l2 = a.newlabel("L_vd")
        a(f"""
        s_mul_i32 s31, s{S_LW}, {3*VROW}
        s_add_u32 s31, s31, s{S_LP}
        s_add_u32 m0, s31, 10240
        s_mov_b64 exec, s[58:59]
        buffer_load_dwordx4 v{VV}, s[4:7], s{S_GV} offen {LDF} lds
        s_add_u32 m0, s31, {10240 + 12*VROW}
        s_add_u32 s30, s{S_GV}, {12*VS}
        buffer_load_dwordx4 v{VV}, s[4:7], s30 offen {LDF} lds
        s_cmp_eq_u32 s{S_LW}, 3
        s_cbranch_scc1 {l2}
        s_add_u32 m0, s31, {10240 + 24*VROW}
        s_add_u32 s30, s{S_GV}, {24*VS}
        s_mov_b64 exec, s[60:61]
        buffer_load_dwordx4 v{VV}, s[4:7], s30 offen {LDF} lds
        """)
        a.label(l2)
        a(f"s_mov_b64 exec, -1\nv_add_u32 v{T}, s{S_LP}, v{VV+1}\nds_write_b128 v{T}, v[{ONES}:{ONES+3}]")
    def kv_next(self):
        self.a(f"""
        s_add_u32 s{S_GK}, s{S_GK}, {2*QS*1024}
        s_add_u32 s{S_GV}, s{S_GV}, {32*VS}
        s_add_u32 s{S_LP}, s{S_LP}, {CHB}
        s_cmp_eq_u32 s{S_LP}, {8*CHB}
        s_cselect_b32 s{S_LP}, 0, s{S_LP}
        """)
    def kv_half(self, grp, VV, ONES, T):
        a = self.a; l = a.newlabel("L_kh")
        a(f"s_cmp_lg_u32 s{grp}, 0\ns_cbranch_scc1 {l}v")
        self.k_part()
        a(f"s_branch {l}e")
        a.label(l + "v")
        self.v_part(VV, ONES, T)
        a.label(l + "e")
        self.kv_next()
    def poll_f1(self, lab, T, poller=False):
        a = self.a
        a(f"v_mov_b32 v{T+2}, {W_F1}")
        if poller:
            a(f"s_cmp_lg_u32 s{S_WAVE}, 4\ns_cbranch_scc1 {lab}_w")
            self.wait_ok(T)
            a(f"s_mul_i32 s34, s{S_HD}, {F1STRIDE}\ns_add_u32 s34, s34, {F1}\nv_and_b32 v{T}, {NSUB-1}, v2\nv_lshlrev_b32 v{T}, 7, v{T}")
            self.poll(lab, T + 1, T, "s34", want=str(864 // NSUB), sleep=int(self.opt.get("f1sleep", 4)))
            a(f"v_mov_b32 v{T}, 1\nds_write_b32 v{T+2}, v{T}")
            a.label(lab + "_w")
        self.lds_spin(T + 2, T + 1, 1, sleep=1)

    def wait_prog(self, val, T, sleep=4):
        a = self.a; lab = a.newlabel("L_pg")
        a(f"v_and_b32 v{T}, 3, v2\nv_lshlrev_b32 v{T}, 2, v{T}\nv_add_u32 v{T}, {W_PROG}, v{T}\ns_mov_b32 s33, 0\ns_mov_b32 s30, {FIN_BAD}")
        a.label(lab)
        a(f"""
        ds_read_b32 v{T+1}, v{T}
        s_add_u32 s33, s33, 1
        s_waitcnt lgkmcnt(0)
        v_cmp_gt_u32 vcc, {val}, v{T+1}
        s_cmp_gt_u32 s33, {SPIN_MAX*8}
        s_cbranch_scc1 {lab}x
        s_cbranch_vccz {lab}x
        s_sleep {sleep}
        s_branch {lab}
        """)
        a.label(lab + "x")
    def f4(self, n, T):
        a = self.a; lab = a.newlabel("L_f4")
        a(f"s_cmp_eq_u32 s50, 0\ns_cbranch_scc1 {lab}\ns_waitcnt vmcnt({n})")
        self.flag_store([36], T)
        a.label(lab)

    def final_check(self, T, lab_bad, sleep=2):
        self.wait_prog(FIN_OK, T, sleep)
        self.a(f"v_cmp_eq_u32 vcc, s30, v{T+1}\ns_cbranch_vccnz {lab_bad}")

    def attention(self):
        a = self.a
        QM, QL, IDX, AK, AV, AL, T0, T1 = 4, 12, 14, 15, 16, 17, 18, 19
        KM, KL, VF, O, S0, S1 = 20, 24, 28, 44, 76, 108
        LK, LV, LL, CA, CK, PW, VV, AK2, KM2 = 140, 141, 142, 143, 144, 145, 146, 151, 152
        TQ, PAR, CH, IT, DK, FB, MC, MB_, MI = 41, 42, 43, 44, 45, 47, 48, 49, 50
        HD = S_HD
        a.label("L_p1_fin")
        self.srd(4, P_WS, WS_BYTES)
        self.kv_setup(T0, VV, "0")
        a(f"""
        s_lshr_b32 s{TQ}, s{S_IDX}, 2
        s_lshl_b32 s{TQ}, s{TQ}, 3
        s_lshl_b32 s30, s{S_LW}, 1
        s_add_u32 s{TQ}, s{TQ}, s30
        s_lshr_b32 s32, s{TQ}, 2
        s_mul_i32 s32, s32, {QS}
        s_add_u32 s32, s32, s36
        s_lshl_b32 s32, s32, 10
        s_and_b32 s30, s{TQ}, 3
        s_lshl_b32 s30, s30, 8
        s_add_u32 s32, s32, s30
        s_add_u32 s35, s32, {QKP}
        s_and_b32 s{PAR}, s{HD}, 1
        v_lshrrev_b32 v{T1}, 5, v2
        v_lshlrev_b32 v{T0}, 3, v1
        v_lshl_add_u32 v{LK}, v{T1}, 11, v{T0}
        s_lshl_b32 s30, s{PAR}, 10
        v_add_u32 v{LK}, s30, v{LK}
        s_mul_i32 s31, s{PAR}, 4092
        s_sub_u32 s31, 4096, s31
        v_add_u32 v{LL}, s31, v{T0}
        v_lshl_add_u32 v{AL}, v2, 3, s31
        v_min_u32 v{AV}, 18, v1
        v_mul_u32_u24 v{T1}, {VROW}, v{T1}
        v_lshl_add_u32 v{LV}, v{AV}, 4, v{T1}
        v_add_u32 v{LV}, {10240 + C0*CHB}, v{LV}
        v_cmp_lt_u32 vcc, 18, v1
        v_cmp_ne_u32 s[30:31], 28, v1
        s_and_b64 vcc, vcc, s[30:31]
        v_mov_b32 v{T1}, 0x100000
        v_mov_b32 v{IDX}, 0xdddd
        v_cndmask_b32 v{LV}, v{LV}, v{T1}, vcc
        v_mov_b32 v{KL}, 0x3f803f80
        v_mov_b32 v{KL+1}, 0x3f803f80
        v_mov_b32 v{KL+2}, 0x3f803f80
        v_mov_b32 v{KL+3}, 0x3f803f80
        s_lshl_b32 s30, s{S_LW}, 2
        s_add_u32 s30, s30, {W_PROG}
        v_mov_b32 v{PW}, s30
        s_mov_b32 s62, 0
        s_mov_b32 s63, -1
        s_mov_b32 s{FB}, 0
        s_mov_b32 s{MC}, 1
        s_mov_b32 s{MB_}, {C0*CHB}
        """)
        self.stamp(4)
        self.poll_f1("L_pollF1a", S0, True)
        self.stamp(5)
        a("s_setprio 3")
        self.k_part()
        for q in range(2):
            a(f"buffer_load_dwordx2 v[{QM+4*q}:{QM+4*q+1}], v{LK}, s[4:7], s35 offen offset:{q*256} {LDF}")
            a(f"buffer_load_dwordx2 v[{QM+4*q+2}:{QM+4*q+3}], v{LK}, s[4:7], s35 offen offset:{q*256+1024} {LDF}")
        a(f"buffer_load_dword v{QL}, v{AL}, s[4:7], s35 offen {LDF}")
        self.v_part(VV, KL, T0); self.kv_next()
        self.k_part(); self.v_part(VV, KL, T0)
        a(f"v_mov_b32 v{CA}, {W_LAND}\nv_mov_b32 v{T1}, 1\ns_waitcnt vmcnt(4)")
        self.lds_add1(CA, T1)
        self.lds_spin(CA, T0, 4)
        self.stamp(6)
        a.label("L_maxpass")
        MX0, MX1 = T0, T1
        a(f"""
        v_add_u32 v{AK}, s{MB_}, v{LK}
        v_add_u32 v{AL}, s{MB_}, v{LL}
        v_mov_b32 v{QL+1}, 0
        v_mov_b32 v{MX0}, 0xff800000
        v_mov_b32 v{MX1}, 0xff800000
        s_mov_b32 s{MI}, 0
        """)
        def rdKm(t): o = (t // 4) * 10 + (t % 4) // 2; k = KM2 if t % 2 else KM; a(f"ds_read2st64_b64 v[{k}:{k+3}], v{AK2 if t % 2 else AK} offset0:{o} offset1:{o+2}")
        def rdKl(t): a(f"ds_read_b32 v{KL+2*(t%2)}, v{AL} offset:{(t//4)*5120 + (t%4)*256}")
        def rdV(m, t): a(f"ds_read_b128 v[{VF+8*(t%2)+4*m}:{VF+8*(t%2)+4*m+3}], v{AV} offset:{(t*4+m*2)*VROW}")
        def b2(N, t): a(f"v_mfma_f32_32x32x4_2b_bf16 v[{N}:{N+31}], v[{KL+2*(t%2)}:{KL+2*(t%2)+1}], v[{QL}:{QL+1}], 0")
        def mainm(N, q, t=0): k = KM2 if t % 2 else KM; a(f"v_mfma_f32_32x32x16_bf16 v[{N+16*q}:{N+16*q+15}], v[{k}:{k+3}], v[{QM+4*q}:{QM+4*q+3}], v[{N+16*q}:{N+16*q+15}]")
        def smf(n, S, t):
            o = O + 16 * (n // 2); v = VF + 8 * (t % 2) + 4 * (n % 2)
            a(f"v_smfmac_f32_32x32x32_bf16 v[{o}:{o+15}], v[{v}:{v+3}], v[{S+8*n}:{S+8*n+7}], v{IDX}")
        def E(S, lo, hi):
            for r in range(lo, hi): a(f"v_exp_f32 v{S+r}, v{S+r}")
        a.label("L_maxloop")
        rdKl(0); rdKm(0)
        a(f"""
        s_mov_b32 s30, 256
        s_and_b32 s31, s{MI}, 3
        s_cmp_eq_u32 s31, 3
        s_cselect_b32 s30, {5120-768}, s30
        s_and_b32 s31, s{MI}, 7
        s_cmp_eq_u32 s31, 7
        s_cselect_b32 s30, {CHB-5120-768}, s30
        s_add_u32 s{MI}, s{MI}, 1
        s_waitcnt lgkmcnt(0)
        """)
        b2(S0, 0)
        a(f"v_add_u32 v{AK}, s30, v{AK}\nv_add_u32 v{AL}, s30, v{AL}")
        for i in range(16): a(f"v_mov_b32 v{O+i}, 0")
        mainm(S0, 0); mainm(S0, 1)
        for i in range(16): a(f"v_mov_b32 v{O+16+i}, 0")
        for i in range(8): a(f"v_max3_f32 v{MX0}, v{S0+2*i}, v{S0+2*i+1}, v{MX0}\nv_max3_f32 v{MX1}, v{S0+16+2*i}, v{S0+16+2*i+1}, v{MX1}")
        a(f"""
        s_cmp_lt_u32 s{MI}, s{MC}
        s_cbranch_scc1 L_maxloop
        v_add_u32 v{AK}, {C0*CHB}, v{LK}
        v_add_u32 v{AL}, {C0*CHB}, v{LL}
        v_mov_b32 v{AV}, v{LV}
        v_add_u32 v{AK2}, 256, v{AK}
        """)
        rdKl(0); rdKm(0); rdKl(1); rdV(0, 0); rdV(1, 0)
        a(f"""
        v_permlane32_swap_b32 v{MX0}, v{MX1}
        s_mov_b32 s{CH}, {(-7*CHB) & 0xffffffff}
        s_mov_b32 s{IT}, 0
        v_max_f32 v{MX1}, v{MX0}, v{MX1}
        v_cvt_pk_bf16_f32 v{T0}, -v{MX1}, 0
        v_lshlrev_b32 v{T0}, 16, v{T0}
        v_sub_f32 v{T0}, -v{MX1}, v{T0}
        v_cvt_pk_bf16_f32 v{QL+1}, -v{MX1}, v{T0}
        v_mov_b32 v{CA}, {W_LAND}
        v_mov_b32 v{T1}, 1
        s_waitcnt lgkmcnt(3)
        """)
        b2(S0, 0)
        for i in range(8): a(f"v_mov_b32 v{S1+24+i}, 0")
        for i in range(4): a(f"v_mov_b32 v{VF+12+i}, 0")
        a("s_nop 5")
        mainm(S0, 0); mainm(S0, 1)
        rdKm(1)
        a("s_nop 8\ns_waitcnt lgkmcnt(0)")
        self.stamp(7); self.stamp(61)
        a.raw(".p2align 6")
        a.label("L_loop")
        for i in range(8):
            C, N = (S0, S1) if i % 2 == 0 else (S1, S0)
            E(C, 0, 2)
            smf(3, N, i + 1)
            if i == 7: a(f"v_add_u32 v{AV}, s{DK}, v{AV}")
            rdV(0, (i + 1) % 8)
            if not self.opt.get("w0"): a("s_waitcnt lgkmcnt(1)")
            E(C, 2, 6)
            b2(N, i + 1)
            rdV(1, (i + 1) % 8)
            if i == 1: a(f"ds_write_b32 v{PW}, v{CA}")
            if i == 5: a(f"ds_read_b32 v{CK}, v{CA} offset:4")
            if i == 0:
                a(f"s_cmp_eq_u32 s{IT}, {7-C0}\ns_cselect_b32 s{DK}, s{CH}, {CHB}")
            if i == 3:
                a(f"s_cmp_eq_u32 s{IT}, s{FB}\ns_cbranch_scc1 L_sig1")
                a.label("L_sig1r")
            if i == 6:
                a(f"""
                v_readfirstlane_b32 s30, v{CK}
                v_add_u32 v{AK}, s{DK}, v{AK}
                v_add_u32 v{AL}, s{DK}, v{AL}
                v_add_u32 v{AK2}, s{DK}, v{AK2}
                v_add_u32 v{CA}, 4, v{CA}
                s_cmp_lt_u32 s30, 4
                s_cbranch_scc1 L_wait
                """)
                a.label("L_waitret")
            E(C, 6, 14)
            smf(0, C, i)
            rdKl((i + 2) % 8)
            E(C, 14, 18)
            smf(1, C, i)
            rdKm((i + 2) % 8)
            E(C, 18, 22)
            mainm(N, 0, i + 1)
            E(C, 22, 26)
            smf(2, C, i)
            if i == 7: a(f"s_add_u32 s{IT}, s{IT}, 1\ns_cmp_lt_u32 s{IT}, 8")
            E(C, 26, 30)
            mainm(N, 1, i + 1)
            if self.opt.get("w0"): a(f"s_waitcnt lgkmcnt(0)")
            E(C, 30, 32)
        a("s_cbranch_scc1 L_loop")
        a("s_waitcnt lgkmcnt(0)\ns_nop 0")
        smf(3, S1, 7)
        self.stamp(8); self.stamp(62)
        SUM = T1
        a(f"s_mov_b32 s30, 0x5d800000\ns_mov_b32 s31, 0x7f7fffff\ns_mov_b64 s[16:17], 0\nv_mov_b32 v{SUM}, 0")
        for q in range(2):
            o = O + 16 * q
            a(f"v_cndmask_b32 v{o+10}, v{o+10}, v{o+12}, s[62:63]")
            for r in range(10): a(f"v_add_f32 v{SUM}, v{SUM}, |v{o+r}|")
            a(f"v_cmp_nge_f32 vcc, s30, v{o+10}\nv_rcp_f32 v{o+10}, v{o+10}\ns_or_b64 s[16:17], s[16:17], vcc")
        a(f"""
        v_cmp_nge_f32 vcc, s31, v{SUM}
        s_mul_i32 s30, s{TQ}, {OS}
        s_add_u32 s30, s30, {OW}
        s_or_b64 vcc, vcc, s[16:17]
        s_cmp_lg_u32 s{FB}, 0
        s_cbranch_scc1 L_fin
        s_cmp_lg_u64 vcc, 0
        s_cbranch_scc1 L_unsafe
        """)
        a.label("L_fin")
        a(f"""
        s_lshl_b32 s31, s{HD}, 10
        s_add_u32 s31, s31, s30
        s_lshl_b32 s32, s{HD}, 7
        s_add_u32 s32, s32, s30
        s_add_u32 s32, s32, 32768
        v_lshlrev_b32 v{T0}, 2, v2
        """)
        for q in range(2):
            o = O + 16 * q; d = S0 + 8 * q
            for r in range(10): a(f"v_mul_f32 v{o+r}, v{o+r}, v{o+10}")
            for r in range(5): a(f"v_cvt_pk_bf16_f32 v{d+r}, v{o+2*r}, v{o+2*r+1}")
            a(f"""
            buffer_store_dwordx4 v[{d}:{d+3}], v3, s[4:7], s31 offen {WT}
            s_mov_b32 exec_hi, 0
            buffer_store_dword v{d+4}, v{T0}, s[4:7], s32 offen {WT}
            s_mov_b32 exec_hi, -1
            s_add_u32 s31, s31, {OS}
            s_add_u32 s32, s32, {OS}
            """)
        a(f"""
        v_mov_b32 v{T1}, {FIN_OK}
        s_lshl_b32 s36, s{TQ}, 5
        s_add_u32 s36, s36, s{HD}
        s_lshl_b32 s36, s36, 2
        s_add_u32 s36, s36, {F4}
        s_add_u32 s35, s36, 128
        s_waitcnt vmcnt(0)
        """)
        self.flag_store([36, 35], AK)
        a(f"ds_write_b32 v{PW}, v{T1}")
        self.stamp(9)
        a(f"s_cmp_lg_u32 s{FB}, 0\ns_cbranch_scc1 L_redo_end")
        self.final_check(AK, "L_redo", 4)
        a("s_branch L_exit")
        a.label("L_sig1")
        a("s_waitcnt vmcnt(0)")
        self.lds_add1(CA, T1, 4)
        a("s_waitcnt lgkmcnt(0)\ns_branch L_sig1r")
        a.label("L_wait")
        self.lds_spin(CA, CK, 4)
        a("s_branch L_waitret")
        a.label("L_unsafe")
        a(f"s_mov_b32 s{FB}, 100\nv_mov_b32 v{T1}, {FIN_BAD}\nds_write_b32 v{PW}, v{T1}")
        a.label("L_redo")
        a(f"""
        s_waitcnt lgkmcnt(0)
        s_barrier
        s_barrier
        s_cmp_eq_u32 s{FB}, 0
        s_cbranch_scc1 L_redo_end
        s_mov_b32 s{MC}, 64
        s_mov_b32 s{MB_}, 0
        v_mov_b32 v{PW}, {LDS_W + 128}
        s_branch L_maxpass
        """)
        a.label("L_redo_end")
        a("s_waitcnt lgkmcnt(0)\ns_barrier\ns_branch L_exit")

    def helper(self):
        a = self.a
        VV, ONES, T, ONE, WB_, PB = 22, 16, 24, 157, 20, 12
        pc = lambda c: W_LAND + 4 * (c + 1)
        self.stamp(4)
        if "hprio" in self.opt: a(f"s_setprio {self.opt['hprio']}")
        a(f"v_mov_b32 v{self.WA}, {W_BAR}\nv_mov_b32 v{ONE}, 1\nv_mov_b32 v155, 0")
        a(f"v_mov_b32 v{WB_}, {LDS_W}\nv_mov_b32 v{PB}, 0\nv_mov_b32 v{PB+1}, 0")
        for i in range(4): a(f"v_mov_b32 v{ONES+i}, 0x3f803f80")
        self.kv_setup(T, VV, "2")
        self.lds_spin(WB_, T, 4, sleep=2)
        self.k_part(); self.v_part(VV, ONES, T); self.kv_next()
        a(f"s_mov_b32 s35, 0\nv_mov_b32 v{WB_+1}, {W_LAND + 8}")
        a.label("L_hkv")
        self.k_part(); self.v_part(VV, ONES, T); self.kv_next()
        a("s_waitcnt vmcnt(4)")
        self.lds_add1(WB_ + 1, ONE)
        a(f"v_add_u32 v{WB_+1}, 4, v{WB_+1}\ns_add_u32 s35, s35, 1\ns_cmp_lt_u32 s35, 5\ns_cbranch_scc1 L_hkv\ns_waitcnt vmcnt(0)")
        self.lds_add1(WB_ + 1, ONE)
        self.stamp(5)
        self.p3_ids()
        a(f"s_mov_b32 s{S_HALF}, 0")
        self.lds_spin(WB_, T, 4, W_P2 - LDS_W, sleep=16)
        a.label("L_hpf")
        a(f"s_cmp_ge_u32 s{S_IDX}, 30\ns_cbranch_scc1 L_hfin\ns_cmp_ge_u32 s{S_IDX}, 18\ns_cbranch_scc1 L_hpfa")
        self.make_vx(PB, 2, "4", "1", "16", "8", T)
        self.srd(12, P_CRE, 576 * 1152)
        a(f"""
        s_lshl_b32 s30, s{S_P3NB}, 6
        s_lshl_b32 s31, s{S_LW}, 4
        s_add_u32 s30, s30, s31
        s_mul_i32 s{S_CB}, s30, 1152
        s_mov_b32 s40, 0
        """)
        def cload(first, upto, lds0):
            lab = a.newlabel("L_cl"); ldsadj = lds0 - first * 8192
            a(f"s_mov_b32 s40, {first}")
            a.label(lab)
            a(f"""
            s_lshl_b32 s30, s40, 13
            s_add_u32 s30, s30, {ldsadj & 0xffffffff}
            s_lshl_b32 s31, s{S_LW}, 11
            s_add_u32 m0, s30, s31
            s_cmp_lt_u32 s40, 9
            s_cselect_b32 s12, s{P_CRE}, s{P_CIM}
            s_cselect_b32 s13, s{P_CRE+1}, s{P_CIM+1}
            s_cselect_b32 s31, 0, 9
            s_and_b32 s13, s13, 0xffff
            s_sub_u32 s31, s40, s31
            s_lshl_b32 s31, s31, 7
            s_add_u32 s32, s31, s{S_CB}
            buffer_load_dwordx4 v{PB}, s[12:15], s32 offen lds
            buffer_load_dwordx4 v{PB+1}, s[12:15], s32 offen offset:1024 lds
            s_add_u32 s40, s40, 1
            s_cmp_lt_u32 s40, {upto}
            s_cbranch_scc1 {lab}
            """)
        self.wait_prog(pc(2), T, 16); cload(0, 7, TSCR)
        a(f"s_cmp_lg_u32 s{S_HALF}, 0\ns_cbranch_scc1 L_hnp")
        self.b3_pre(158, 1)
        a.label("L_hnp")
        self.wait_prog(pc(5), T, 16); cload(9, 16, 0)
        a(f"s_add_u32 s32, s{S_CB}, {7*128}")
        for j in range(2):
            a(f"buffer_load_dwordx4 v[124:127], v{PB}, s[12:15], s32 offen offset:{j*128}\nbuffer_load_dwordx4 v[124:127], v{PB+1}, s[12:15], s32 offen offset:{1024+j*128}")
        self.wait_prog(pc(6), T, 8); cload(7, 9, 57344)
        a("s_branch L_hpfd")
        a.label("L_hpfa")
        self.a3_setup(PB, T)
        self.wait_prog(pc(2), T, 16); self.a3_issue(PB, 4)
        self.wait_prog(pc(5), T, 16); self.a3_issue(PB, 5)
        a.label("L_hpfd")
        a("s_waitcnt vmcnt(0)")
        self.lds_add1(WB_, ONE, W_G2 - LDS_W)
        self.stamp(6)
        a.label("L_hfin")
        a(f"s_cmp_lg_u32 s{S_HALF}, 0\ns_cbranch_scc1 L_hok")
        self.wait_prog(W_LAND + 28, T, sleep=32)
        self.final_check(T, "L_hredo", 4)
        a.label("L_hok")
        a(f"s_cmp_ge_u32 s{S_IDX}, 18\ns_cbranch_scc1 L_hopf")
        cload(16, 18, 73728)
        a(f"s_lshl_b32 s34, s{S_HALF}, 2\ns_add_u32 s34, s34, 4\ns_setprio 3\ns_branch L_b3main")
        a.label("L_hopf")
        if self.opt.get("opf"):
            a(f"""
            s_cmp_ge_u32 s{S_IDX}, 30
            s_cbranch_scc1 L_exit
            s_lshl_b32 s30, s{S_LW}, 2
            s_add_u32 s30, s30, {W_F4}
            v_mov_b32 v{T+2}, s30
            s_mul_i32 s34, s{S_P3T}, {OS}
            s_sub_u32 s31, s{S_P3NB}, 9
            s_lshl_b32 s31, s31, 12
            s_add_u32 s34, s34, s31
            s_add_u32 s34, s34, {OW + 12*1024}
            """)
            self.lds_spin(T + 2, T, 1)
            for n in range(4): a(f"buffer_load_dwordx4 v[32:35], v3, s[4:7], s34 offen offset:{n*1024}")
        a("s_branch L_exit")
        a.label("L_hredo")
        a(f"s_mov_b32 s{S_HALF}, 1\ns_waitcnt vmcnt(0) lgkmcnt(0)\ns_barrier")
        self.kv_setup(T, VV, "0")
        a("s_mov_b32 s35, 0")
        a.label("L_hredo1")
        self.k_part(); self.v_part(VV, ONES, T); self.kv_next()
        a("s_add_u32 s35, s35, 1\ns_cmp_lt_u32 s35, 8\ns_cbranch_scc1 L_hredo1\ns_waitcnt vmcnt(0) lgkmcnt(0)\ns_barrier\ns_barrier\ns_branch L_hpf")

    WA, ONE, BC = 156, 157, 47
    def arrive(self, T):
        a = self.a
        a(f"s_add_u32 s{self.BC}, s{self.BC}, 4")
        self.lds_add1(self.WA, self.ONE)
    def bar(self, T):
        self.arrive(T)
        self.lds_spin(self.WA, T, f"s{self.BC}")
    def gemm_cons(self, name, N, T, CW, rl, mfl, nfree, hooks={}):
        a = self.a
        self.lds_spin(CW, T, 4)
        a(f"ds_read_b32 v{T}, v{CW} offset:4")
        for x in rl(0): a(x)
        for s in range(N - 1):
            mf = mfl(s); p = f"{name}_{s}"
            a("s_waitcnt lgkmcnt(0)")
            a(f"v_readfirstlane_b32 s32, v{T}")
            a(mf[0])
            self.stampx(16)
            if s < nfree: self.lds_add1(CW, self.ONE, 256 + 4 * s)
            a(f"s_cmp_lt_u32 s32, 4\ns_cbranch_scc1 {p}s")
            a.label(p + "r")
            self.stubs.append((p, CW, T, 4 * (s + 1)))
            oth = rl(s + 1) + ([f"ds_read_b32 v{T}, v{CW} offset:{4*(s+2)}"] if s + 2 < N else [])
            ilv(a, mf[1:8], oth)
            if s in hooks: hooks[s]()
        a("s_waitcnt lgkmcnt(0)")
        if N - 1 < nfree: self.lds_add1(CW, self.ONE, 256 + 4 * (N - 1))
        for m in mfl(N - 1): a(m)
    def emit_stubs(self):
        a = self.a
        for p, CW, T, off in self.stubs:
            a.label(p + "s")
            self.lds_spin(CW, T, 4, off)
            a(f"s_branch {p}r")
    def gemm_load(self, name, nslot, CB, ONE, T, issue):
        a = self.a
        a("s_mov_b32 s41, 0")
        a.label(name + "w")
        a(f"s_cmp_lt_u32 s40, {nslot}\ns_cbranch_scc1 {name}")
        self.lds_spin(T + 1, T, 4)
        a.label(name)
        issue()
        a(f"""
        s_cmp_lt_u32 s40, s45
        s_cselect_b32 s44, 2, 1
        s_add_u32 s44, s44, s40
        s_lshl_b32 s30, s44, 2
        s_add_u32 s30, s30, s43
        s_add_u32 s30, s30, {256 - 4*nslot}
        v_mov_b32 v{T+1}, s30
        ds_read_b32 v{T}, v{T+1}
        s_cmp_eq_u32 s41, 0
        s_cbranch_scc1 {name}n
        s_waitcnt vmcnt(6)
        """)
        self.lds_add1(CB, ONE)
        a.label(name + "n")
        a(f"""
        s_lshl_b32 s30, s40, 2
        s_add_u32 s30, s30, s43
        v_mov_b32 v{CB}, s30
        s_mov_b32 s40, s44
        s_mov_b32 s41, 1
        s_waitcnt lgkmcnt(0)
        v_readfirstlane_b32 s32, v{T}
        s_cmp_lt_u32 s40, {nslot}
        s_cselect_b32 s32, 4, s32
        s_cmp_ge_u32 s40, s42
        s_cselect_b32 s32, 0, s32
        s_cmp_ge_u32 s32, 4
        s_cbranch_scc1 {name}
        s_waitcnt vmcnt(0)
        """)
        self.lds_add1(CB, ONE)
        a(f"s_mov_b32 s41, 0\ns_cmp_lt_u32 s40, s42\ns_cbranch_scc1 {name}w")
    def b1_loader(self):
        a = self.a
        VX, VB, CW, ONE, T = 60, 64, 66, 67, 68
        XB, WB, SL, NS = 16, 17, 18, 19
        self.make_vx(VX, 4, "16", "1", "8", "4", T)
        self.make_vx(VB, 2, "4", "1", "16", "8", T)
        self.srd(8, P_BX, 2048 * 1152)
        a(f"""
        s_cmp_lt_u32 s{S_LW}, 2
        s_cselect_b32 s12, s{P_BRE}, s{P_BIM}
        s_cselect_b32 s13, s{P_BRE+1}, s{P_BIM+1}
        s_and_b32 s13, s13, 0xffff
        s_mov_b32 s14, {576*1152}
        s_mov_b32 s15, 0x20000
        s_lshl_b32 s30, s{S_MB}, 7
        s_lshl_b32 s31, s{S_LW}, 5
        s_add_u32 s30, s30, s31
        s_mul_i32 s{XB}, s30, 1152
        s_cmp_eq_u32 s{S_TYPE}, 2
        s_cselect_b32 s30, s{S_CHA}, s{S_CHB}
        s_cselect_b32 s{NS}, 18, 9
        s_lshl_b32 s30, s30, 5
        s_and_b32 s31, s{S_LW}, 1
        s_lshl_b32 s31, s31, 4
        s_add_u32 s30, s30, s31
        s_mul_i32 s{WB}, s30, 1152
        v_mov_b32 v{CW}, {W_FULL}
        v_mov_b32 v{ONE}, 1
        s_lshr_b32 s27, s{S_WAVE}, 3
        """)
        def issue():
            a(f"""
            s_add_u32 s31, s40, s28
            s_sub_u32 s30, s31, 9
            s_cmp_ge_u32 s31, 9
            s_cselect_b32 s31, s30, s31
            s_lshl_b32 s31, s31, 7
            s_and_b32 s{SL}, s40, 3
            s_mul_i32 s{SL}, s{SL}, {BSLOT}
            s_lshl_b32 s30, s{S_LW}, 12
            s_add_u32 m0, s30, s{SL}
            s_add_u32 s32, s31, s{XB}
            """)
            for n in range(4): a(f"buffer_load_dwordx4 v{VX+n}, s[8:11], s32 offen offset:{n*1024} lds")
            a(f"s_lshl_b32 s30, s{S_LW}, 11\ns_add_u32 s30, s30, s{SL}\ns_add_u32 m0, s30, 16384\ns_add_u32 s32, s31, s{WB}")
            for n in range(2): a(f"buffer_load_dwordx4 v{VB+n}, s[12:15], s32 offen offset:{n*1024} lds")
        def run():
            a(f"s_mov_b32 s43, {W_FULL}\ns_mov_b32 s45, {self.opt.get('ashare', 6)}")
            a.label("L_l1job")
            a(f"s_xor_b32 s40, s27, 1\ns_cmp_eq_u32 s27, 0\ns_cselect_b32 s42, {self.opt.get('ashare', 6)}, 9")
            self.gemm_load("L_l1", 4, CW, ONE, T, issue)
            a(f"""
            s_add_u32 s30, s43, {256 + 32}
            v_mov_b32 v{T+1}, s30
            s_cmp_lt_u32 s{S_WAVE}, 8
            s_cbranch_scc1 L_p1_fin
            s_cmp_eq_u32 s{NS}, 9
            s_cbranch_scc1 L_l1end
            s_mov_b32 s45, 0
            s_mov_b32 s{NS}, 9
            s_sub_u32 s30, s{S_CHA}, s{S_CHB}
            s_mul_i32 s30, s30, {32*1152}
            s_sub_u32 s{WB}, s{WB}, s30
            s_add_u32 s43, s43, 36
            """)
            self.lds_spin(T + 1, T, 4, sleep=1)
            a("s_branch L_l1job")
            a.label("L_l1end")
            self.lds_spin(T + 1, T, 4, sleep=1)
        self.b1_run = run

    def aux(self):
        a = self.a
        AX, AW, FX, ACC, T = 4, 8, 16, 80, 148
        SS, SLOT, DL, WM, WN = 40, 41, 42, 43, 44
        a.label("L_aux")
        a(f"""
        s_setprio 3
        s_mov_b32 s{S_HALF}, 0
        s_mov_b32 s{S_CH}, s{S_CHA}
        s_mov_b32 s62, 0
        s_mov_b32 s63, -1
        """)
        self.aux_start()
        a(f"s_cmp_eq_u32 s{S_TYPE}, 2\ns_cbranch_scc1 L_aux_sp")
        self.lam_early(f"s{S_CHB}")
        if not self.opt.get("nowarmx"):
            self.srd(12, P_BX, 2048 * 1152)
            a(f"""
            s_and_b32 s30, s{S_XCD}, 3
            s_mul_i32 s30, s30, 589824
            s_lshr_b32 s31, s{S_XCD}, 2
            s_mul_i32 s31, s31, 28
            s_add_u32 s31, s31, s{S_IDX}
            s_lshl_b32 s31, s31, 2
            s_add_u32 s31, s31, s{S_WAVE}
            s_mul_i32 s31, s31, 2688
            s_add_u32 s30, s30, s31
            v_lshlrev_b32 v16, 6, v2
            s_mov_b32 exec_hi, 0x3ff
            buffer_load_dword v154, v16, s[12:15], s30 offen
            s_mov_b32 exec_hi, -1
            """)
        a(f"s_lshr_b32 s{WM}, s{S_WAVE}, 1\ns_and_b32 s{WN}, s{S_WAVE}, 1\ns_lshl_b32 s30, s{WM}, 13")
        self.swz(AX, T, "s30")
        a(f"""
        v_bfe_u32 v{T+2}, v2, 2, 2
        v_lshl_add_u32 v{T+3}, v{T+1}, 3, v{T+2}
        v_lshlrev_b32 v{T+3}, 8, v{T+3}
        v_bfe_u32 v{T+4}, v2, 4, 1
        v_lshl_add_u32 v{T+3}, v{T+4}, 5, v{T+3}
        v_and_b32 v{T+4}, 3, v2
        v_lshl_add_u32 v{T+3}, v{T+4}, 3, v{T+3}
        v_add_u32 v{T+3}, 16384, v{T+3}
        s_lshl_b32 s30, s{WN}, 1
        v_xor_b32 v{T+4}, s30, v{T+2}
        v_lshl_add_u32 v{AW}, v{T+4}, 6, v{T+3}
        v_xor_b32 v{AW+1}, 64, v{AW}
        """)
        for i in range(64): a(f"v_mov_b32 v{ACC+i}, 0")
        a(f"s_mov_b32 s{SS}, 0\ns_mov_b32 s{SLOT}, 0\ns_barrier")
        self.stampx(16, True); self.stamp(61)
        def nextslot(stride, total):
            a(f"""
            s_add_u32 s30, s{SLOT}, {stride}
            s_cmp_eq_u32 s30, {total}
            s_cselect_b32 s30, 0, s30
            s_sub_u32 s{DL}, s30, s{SLOT}
            s_mov_b32 s{SLOT}, s30
            s_add_u32 s{SS}, s{SS}, 1
            """)
        def reads(s):
            l = [f"ds_read_b128 v[{FX+s*16+mt*4}:{FX+s*16+mt*4+3}], v{AX+s} offset:{mt*4096}" for mt in range(2)]
            for nt in range(2):
                for hf in range(2):
                    r = FX + s * 16 + 8 + nt * 4 + hf * 2
                    l.append(f"ds_read_b64_tr_b16 v[{r}:{r+1}], v{AW+nt} offset:{s*4096 + hf*1024}")
            return l
        for x in reads(0) + reads(1): a(x)
        a(f"s_cmp_eq_u32 s{S_TYPE}, 1\ns_cbranch_scc1 L_a1v")
        def a1loop(vtype, lab):
            a.label(lab)
            for s in range(4):
                a("s_waitcnt lgkmcnt(6)")
                if s == 2:
                    a(f"s_cmp_lt_u32 s{SS}, 9\ns_cbranch_scc1 {lab}b\ns_waitcnt lgkmcnt(0)")
                    a.label(lab + "b")
                    a("s_barrier")
                    self.stampx(16)
                mf = []
                for mt in range(2):
                    for nt in range(2):
                        d = ACC + (mt * 2 + nt) * 16
                        x = f"v[{FX+s*16+mt*4}:{FX+s*16+mt*4+3}]"; w = f"v[{FX+s*16+8+nt*4}:{FX+s*16+8+nt*4+3}]"
                        A, B = (x, w) if vtype else (w, x)
                        mf.append(f"v_mfma_f32_32x32x16_bf16 v[{d}:{d+15}], {A}, {B}, v[{d}:{d+15}]")
                ilv(a, mf, reads((s + 2) % 4))
                if s == 0: nextslot(32768, 163840)
                if s == 1:
                    for r in (AX, AX + 1, AX + 2, AX + 3, AW, AW + 1): a(f"v_add_u32 v{r}, s{DL}, v{r}")
            a(f"s_cmp_lt_u32 s{SS}, 9\ns_cbranch_scc1 {lab}")
        a1loop(False, "L_a1qk")
        self.stamp(1); self.stamp(62)
        self.dbg_load()
        a(f"""
        s_lshl_b32 s30, s{S_NB}, 5
        s_lshl_b32 s31, s{WN}, 4
        s_add_u32 s30, s30, s31
        s_mul_i32 s31, s{S_MB}, {QS}
        s_add_u32 s31, s31, s30
        s_lshl_b32 s31, s31, 10
        s_lshl_b32 s32, s{WM}, 9
        s_add_u32 s31, s31, s32
        s_add_u32 s31, s31, {QKP}
        v_lshlrev_b32 v{T+2}, 4, v1
        v_lshl_add_u32 v{T+2}, v{T+1}, 10, v{T+2}
        s_mov_b32 s32, {QSCALE}
        s_cmp_ge_u32 s30, 144
        s_cselect_b32 s32, 1.0, s32
        s_mov_b32 s33, s32
        s_waitcnt lgkmcnt(0)
        """)
        for nt in range(2):
            for g in range(4):
                o = FX + (nt * 4 + g) * 4
                for mt in range(2):
                    d = ACC + (mt * 2 + nt) * 16 + 4 * g
                    a(f"v_pk_mul_f32 v[{d}:{d+1}], v[{d}:{d+1}], s[32:33]\nv_pk_mul_f32 v[{d+2}:{d+3}], v[{d+2}:{d+3}], s[32:33]")
                for mt in range(2):
                    d = ACC + (mt * 2 + nt) * 16 + 4 * g
                    a(f"v_cvt_pk_bf16_f32 v{o+2*mt}, v{d}, v{d+1}\nv_cvt_pk_bf16_f32 v{o+2*mt+1}, v{d+2}, v{d+3}")
                a(f"buffer_store_dwordx4 v[{o}:{o+3}], v{T+2}, s[4:7], s31 offen offset:{(g%2)*2048} {WT}")
                if g % 2 == 1: a("s_add_u32 s31, s31, 4096")
        a("s_branch L_a1done")
        a1loop(True, "L_a1v")
        self.stamp(1); self.stamp(62)
        self.dbg_load()
        a(f"""
        s_sub_u32 s30, s{S_NB}, 9
        s_lshl_b32 s30, s30, 7
        s_lshl_b32 s31, s{WN}, 6
        s_add_u32 s30, s30, s31
        s_lshl_b32 s31, s{S_MB}, 4
        s_lshl_b32 s32, s{WM}, 3
        s_add_u32 s31, s31, s32
        s_mul_i32 s31, s31, {VS}
        s_lshl_b32 s32, s30, 4
        s_add_u32 s31, s31, s32
        s_add_u32 s31, s31, {VT}
        v_mul_u32_u24 v{T+2}, {VS}, v{T+1}
        v_lshl_add_u32 v{T+2}, v1, 4, v{T+2}
        s_waitcnt lgkmcnt(0)
        s_cmp_ge_u32 s30, 576
        s_cbranch_scc1 L_a1done
        """)
        for mt in range(2):
            for m in range(2):
                for nt in range(2):
                    d = ACC + (mt * 2 + nt) * 16 + 8 * m
                    for r in range(4): a(f"v_cvt_pk_bf16_f32 v{d+r}, v{d+2*r}, v{d+2*r+1}")
                    a(f"buffer_store_dwordx4 v[{d}:{d+3}], v{T+2}, s[4:7], s31 offen offset:{nt*512} {WT}")
                a(f"s_add_u32 s31, s31, {2*VS}")
        a.label("L_a1done")
        self.stamp(2)
        if self.opt.get("drain1"): a("s_waitcnt vmcnt(0)"); self.stamp(7)
        a(f"s_mov_b32 s{S_HALF}, 1\ns_mov_b32 s{S_CH}, s{S_CHB}\ns_branch L_b1pre")
        a.label("L_aux_sp")
        a("s_barrier")
        self.zero_flags()
        self.lam_early(f"s{S_CHA}")
        a(f"""
        s_lshl_b32 s30, s{S_CHB}, 6
        v_lshl_add_u32 v23, v1, 1, s30
        global_load_ushort v166, v23, s[{P_LRE}:{P_LRE+1}]
        global_load_ushort v24, v23, s[{P_LIM}:{P_LIM+1}]
        global_load_ushort v154, v23, s[{P_LDT}:{P_LDT+1}]
        s_waitcnt vmcnt(0)
        v_lshl_or_b32 v166, v24, 16, v166
        """)
        AB, BF, WA, ONE, AC1, CW, RAW, AX2, AB2 = 8, 16, self.WA, self.ONE, 112, 155, 164, 144, 148
        T = 158; BC = self.BC
        PA = [164, 165, 12, 13, 14, 15]
        a.label("L_b1pre")
        for i in range(2): a(f"v_mov_b32 v{164+i}, v{10+i}")
        a(f"s_mov_b32 s{BC}, 0\nv_mov_b32 v{WA}, {W_BAR}\nv_mov_b32 v{ONE}, 1\nv_mov_b32 v{CW}, {W_FULL}\ns_lshl_b32 s48, s{S_LW}, 12\ns_lshl_b32 s49, s{S_LW}, 11")
        self.swz(AB, T, 16384)
        a(f"s_sub_u32 s30, s48, 16384")
        for s in range(4): a(f"v_add_u32 v{AX+s}, s30, v{AB+s}")
        def publish():
            a(f"""
            s_cmp_eq_u32 s{S_TYPE}, 2
            s_cbranch_scc1 L_pubx
            s_lshl_b32 s30, s{S_NB}, 7
            s_add_u32 s31, s30, 128
            s_cmp_eq_u32 s{S_TYPE}, 1
            s_cselect_b32 s32, 1152, 0
            v_mul_u32_u24 v{T+2}, 18, v2
            v_add_u32 v{T+2}, s32, v{T+2}
            v_add_u32 v{T+3}, 18, v{T+2}
            v_max_u32 v{T+2}, s30, v{T+2}
            v_min_u32 v{T+3}, s31, v{T+3}
            v_min_u32 v{T+3}, 0x6c0, v{T+3}
            v_cmp_lt_u32 vcc, v{T+2}, v{T+3}
            v_sub_u32 v{T+2}, v{T+3}, v{T+2}
            v_mul_u32_u24 v{T+3}, {F1STRIDE}, v1
            s_and_b32 s31, s{S_MB}, {NSUB-1}
            s_lshl_b32 s31, s31, 7
            s_add_u32 s31, s31, {F1}
            """)
            a(f"s_waitcnt vmcnt(0)")
            self.dbg_verify()
            self.stamp(9)
            a(f"""
            s_mov_b64 exec, 1
            ds_add_rtn_u32 v{T+1}, v{WA}, v{ONE} offset:4
            s_mov_b64 exec, -1
            s_waitcnt lgkmcnt(0)
            v_readfirstlane_b32 s35, v{T+1}
            s_cmp_lg_u32 s35, 3
            s_cbranch_scc1 L_pubx
            s_mov_b64 exec, vcc
            buffer_atomic_add v{T+2}, v{T+3}, s[4:7], s31 offen sc1
            s_mov_b64 exec, -1
            """)
            if self.opt.get("rt"): self.stamp(53, True); a("s_waitcnt vmcnt(0)"); self.stamp(54, True)
            a.label("L_pubx")
        a.label("L_b1")
        for s in range(4): a(f"v_add_u32 v{AB2+s}, {2*BSLOT}, v{AB+s}\nv_add_u32 v{AX2+s}, {2*BSLOT}, v{AX+s}")
        publish()
        def rl(st):
            l = []; ax, ab = (AX, AB) if st % 4 < 2 else (AX2, AB2); off = (st % 2) * BSLOT
            for s in range(4):
                b = BF + (st % 2) * 48 + s * 12
                l.append(f"ds_read_b128 v[{b}:{b+3}], v{ax+s} offset:{off}")
                for nt in range(2): l.append(f"ds_read_b128 v[{b+4+nt*4}:{b+7+nt*4}], v{ab+s} offset:{off + nt*4096}")
            return l
        def mfl(st):
            l = []
            for s in range(4):
                b = BF + (st % 2) * 48 + s * 12
                for nt in range(2):
                    d = AC1 + nt * 16; c = "0" if st == 0 and s == 0 else f"v[{d}:{d+15}]"
                    l.append(f"v_mfma_f32_32x32x16_bf16 v[{d}:{d+15}], v[{b}:{b+3}], v[{b+4+nt*4}:{b+7+nt*4}], {c}")
            return l
        def sp_hook():
            a(f"s_add_u32 s30, s{S_TYPE}, s{S_HALF}\ns_cmp_lg_u32 s30, 3\ns_cbranch_scc1 L_sph")
            a(f"s_cmp_lg_u32 s{S_WAVE}, 3\ns_cbranch_scc1 L_sph")
            self.f2flag(S_CHA, T + 2)
            a.label("L_sph")
        def h5():
            a(f"s_cmp_lg_u32 s{S_HALF}, 0\ns_cbranch_scc1 L_h5")
            self.dbg_load()
            a.label("L_h5")
        def h7():
            a(f"s_cmp_lg_u32 s{S_HALF}, 0\ns_cbranch_scc1 L_h7\ns_waitcnt vmcnt(0)")
            self.dbg_verify()
            self.stamp(1)
            a.label("L_h7")
        self.gemm_cons("L_g1", 9, T, CW, rl, mfl, 9, {2: sp_hook, 5: h5, 7: h7})
        a(f"v_add_u32 v{CW}, 36, v{CW}\ns_nop 4")
        pass
        self.stamp(3)
        for i, r in enumerate((LR, LI, CR, CI, MUR, MUI)): a(f"v_mov_b32 v{r}, v{PA[i]}")
        for t in range(16):
            u, w, d = AC1 + t, AC1 + 16 + t, BS + 2 * t
            a(f"""
            v_mul_f32 v{d}, v{CR}, v{u}
            v_mul_f32 v{d+1}, v{CR}, v{w}
            v_fma_f32 v{d}, -v{CI}, v{w}, v{d}
            v_fma_f32 v{d+1}, v{CI}, v{u}, v{d+1}
            """)
            if t >= 1:
                g0 = BS if t == 1 else T + 2 + 2 * (t % 2); g1 = T + 2 + 2 * ((t + 1) % 2)
                self.cmac(g1, LR, g0, d)
        GR = T + 2; TT = T + 4
        a(f"""
        s_lshl_b32 s31, s{S_WAVE}, 9
        s_add_u32 s30, s31, {LDS_SCR}
        v_lshl_add_u32 v{TT}, v2, 3, s30
        ds_write_b64 v{TT}, v[{GR}:{GR+1}]
        v_lshlrev_b32 v{TT+1}, 3, v2
        v_add_u32 v{TT+1}, {LDS_SCR - 256}, v{TT+1}
        """)
        self.bar(T)
        EV = BF
        for j in range(8): a(f"ds_read_b64 v[{EV+2*j}:{EV+2*j+1}], v{TT+1} offset:{j*256}")
        a("s_waitcnt lgkmcnt(0)")
        self.partb(EV, T)
        def spill(op, base):
            a(f"s_lshl_b32 s30, s2, 2\ns_add_u32 s30, s30, s{S_WAVE}\ns_mul_i32 s30, s30, {12*1024}\ns_add_u32 s30, s30, {SPILL}")
            for i in range(10):
                a(f"buffer_{op}_dwordx4 v[{base+4*i}:{base+4*i+3}], v3, s[4:7], s30 offen offset:{(i%4)*1024}")
                if i % 4 == 3: a("s_add_u32 s30, s30, 4096")
            a(f"buffer_{op}_dwordx2 v[{base+40}:{base+41}], v3, s[4:7], s30 offen offset:2048")
        a(f"s_cmp_lg_u32 s{S_HALF}, 0\ns_cbranch_scc1 L_b1done")
        spill("store", BS)
        a("v_and_b32 v16, 0xffff, v166\nv_lshrrev_b32 v17, 16, v166\nv_mov_b32 v18, v154")
        self.lam_calc(16, 10)
        for i in range(2): a(f"v_mov_b32 v{164+i}, v{10+i}")
        self.swz(AB, T, 16384)
        a(f"s_mov_b32 s{S_HALF}, 1\ns_mov_b32 s{S_CH}, s{S_CHB}\ns_branch L_b1")
        a.label("L_b1done")
        self.stamp(4)
        a(f"s_add_u32 s46, s48, {TSCR}\ns_cmp_lg_u32 s{S_TYPE}, 2\ns_cbranch_scc1 L_nsp")
        spill("load", 108)
        a.label("L_nsp")
        self.wait_prog(W_LAND + 4, T, 4)
        if self.opt.get("nop2"): a("s_setprio 0")
        a.label("L_p2")
        self.pass2(BF, T)
        a(f"s_cmp_lg_u32 s{S_TYPE}, 2\ns_cbranch_scc1 L_p2end\ns_cmp_eq_u32 s{S_CH}, s{S_CHA}\ns_cbranch_scc1 L_p2end")
        for i in range(21): a(f"v_pk_mov_b32 v[{BS+2*i}:{BS+2*i+1}], v[{108+2*i}:{109+2*i}], v[{108+2*i}:{109+2*i}] op_sel:[0,1]")
        a(f"s_mov_b32 s{S_CH}, s{S_CHA}\ns_branch L_p2")
        a.label("L_p2end")
        self.stamp(6)
        self.lds_add1(WA, ONE, W_P2 - W_BAR)
        self.p3_ids()
        self.p3(T)

    def lam_early(self, ch):
        a = self.a
        a(f"""
        s_lshl_b32 s30, {ch}, 6
        v_lshl_add_u32 v23, v1, 1, s30
        global_load_ushort v16, v23, s[{P_LRE}:{P_LRE+1}]
        global_load_ushort v17, v23, s[{P_LIM}:{P_LIM+1}]
        global_load_ushort v18, v23, s[{P_LDT}:{P_LDT+1}]
        s_waitcnt vmcnt(0)
        """)
        self.lam_calc(16, 10)
    def cmac(self, d, m, g, c):
        self.a(f"v_pk_fma_f32 v[{d}:{d+1}], v[{m}:{m+1}], v[{g}:{g+1}], v[{c}:{c+1}] op_sel_hi:[0,1,1]")
        self.a(f"v_pk_fma_f32 v[{d}:{d+1}], v[{m}:{m+1}], v[{g}:{g+1}], v[{d}:{d+1}] op_sel:[1,1,0] op_sel_hi:[1,0,1] neg_lo:[1,0,0]")
    def lam_calc(self, T, P):
        a = self.a; L2E = f32(math.log2(math.e))
        LR, LI, CR, CI, MUR, MUI = range(P, P + 6)
        a(f"""
        v_lshlrev_b32 v{T}, 16, v{T}
        v_lshlrev_b32 v{T+1}, 16, v{T+1}
        v_lshlrev_b32 v{T+2}, 16, v{T+2}
        v_mul_f32 v{T+2}, {L2E}, v{T+2}
        v_exp_f32 v{T+2}, v{T+2}
        s_nop 0
        v_cvt_pk_bf16_f32 v{T+2}, v{T+2}, v{T+2}
        v_lshlrev_b32 v{T+2}, 16, v{T+2}
        v_mul_f32 v{T+3}, v{T+2}, v{T}
        v_mul_f32 v{T+4}, v{T+2}, v{T+1}
        v_mul_f32 v{T+3}, {L2E}, v{T+3}
        v_mul_f32 v{T+4}, {f32(1/(2*math.pi))}, v{T+4}
        v_exp_f32 v{T+3}, v{T+3}
        v_fract_f32 v{T+4}, v{T+4}
        v_cos_f32 v{T+5}, v{T+4}
        v_sin_f32 v{T+6}, v{T+4}
        s_nop 0
        v_mul_f32 v{LR}, v{T+3}, v{T+5}
        v_mul_f32 v{LI}, v{T+3}, v{T+6}
        v_mul_f32 v{T+3}, v{T}, v{T}
        v_fmac_f32 v{T+3}, v{T+1}, v{T+1}
        v_rcp_f32 v{T+3}, v{T+3}
        v_add_f32 v{T+4}, -1.0, v{LR}
        v_mul_f32 v{T+5}, v{T+4}, v{T}
        v_fmac_f32 v{T+5}, v{LI}, v{T+1}
        v_mul_f32 v{T+6}, v{LI}, v{T}
        v_fma_f32 v{T+6}, -v{T+4}, v{T+1}, v{T+6}
        v_add_f32 v{T+3}, v{T+3}, v{T+3}
        v_mul_f32 v{CR}, v{T+5}, v{T+3}
        v_mul_f32 v{CI}, v{T+6}, v{T+3}
        v_mov_b32 v{MUR}, v{LR}
        v_mov_b32 v{MUI}, v{LI}
        """)
        for i in range(4):
            a(f"""
            v_mul_f32 v{T+3}, v{MUI}, v{MUI}
            v_mul_f32 v{T+4}, v{MUR}, v{MUI}
            v_fma_f32 v{MUR}, v{MUR}, v{MUR}, -v{T+3}
            v_add_f32 v{MUI}, v{T+4}, v{T+4}
            """)

    def f2flag(self, ch, TT):
        self.a(f"""
        s_lshl_b32 s30, s{ch}, 5
        s_add_u32 s30, s30, s{S_MB}
        s_lshl_b32 s30, s30, 2
        s_add_u32 s30, s30, {F2}
        s_waitcnt vmcnt(0)
        """)
        self.flag_store([30], TT)
    def partb(self, EV, TT):
        a = self.a
        a(f"""
        v_cndmask_b32 v{LCR}, 0, v{EV}, s[62:63]
        v_cndmask_b32 v{LCI}, 0, v{EV+1}, s[62:63]
        v_cndmask_b32 v{PWR}, 1.0, v{MUR}, s[62:63]
        v_cndmask_b32 v{PWI}, 0, v{MUI}, s[62:63]
        """)
        for j in range(1, 7):
            if j % 2 == 1: a(f"s_cmp_lt_u32 s{S_WAVE}, {(j+1)//2}\ns_cbranch_scc1 L_pbne")
            a(f"""
            v_mul_f32 v{TT}, v{MUR}, v{PWR}
            v_mul_f32 v{TT+1}, v{MUR}, v{PWI}
            v_fma_f32 v{TT+2}, v{MUR}, v{LCR}, v{EV+2*j}
            v_fma_f32 v{TT+3}, v{MUR}, v{LCI}, v{EV+2*j+1}
            v_fma_f32 v{TT}, -v{MUI}, v{PWI}, v{TT}
            v_fma_f32 v{PWI}, v{MUI}, v{PWR}, v{TT+1}
            v_fma_f32 v{TT+2}, -v{MUI}, v{LCI}, v{TT+2}
            v_fma_f32 v{LCI}, v{MUI}, v{LCR}, v{TT+3}
            v_mov_b32 v{PWR}, v{TT}
            v_mov_b32 v{LCR}, v{TT+2}
            """)
        EB = EV + 14
        a(f"""
        s_mul_i32 s30, s{S_MB}, {576*8}
        s_lshl_b32 s31, s{S_CH}, 8
        s_add_u32 s30, s30, s31
        s_add_u32 s30, s30, {EE - 256}
        v_lshlrev_b32 v{TT+2}, 3, v2
        v_fma_f32 v{TT}, v{MUR}, v{LCR}, v{EB}
        v_fma_f32 v{TT+1}, v{MUR}, v{LCI}, v{EB+1}
        v_fma_f32 v{TT}, -v{MUI}, v{LCI}, v{TT}
        v_fma_f32 v{TT+1}, v{MUI}, v{LCR}, v{TT+1}
        s_mov_b32 exec_lo, 0
        buffer_store_dwordx2 v[{TT}:{TT+1}], v{TT+2}, s[4:7], s30 offen {WT}
        s_mov_b32 exec_lo, -1
        s_cmp_eq_u32 s{S_HALF}, 0
        s_cbranch_scc1 L_pbne
        """)
        self.f2flag(S_CH, TT)
        a.label("L_pbne")
        for i in range(3):
            a(f"""
            v_mul_f32 v{TT+4}, v{MUI}, v{MUI}
            v_mul_f32 v{TT+5}, v{MUR}, v{MUI}
            v_fma_f32 v{MUR}, v{MUR}, v{MUR}, -v{TT+4}
            v_add_f32 v{MUI}, v{TT+5}, v{TT+5}
            """)

    def pass2(self, EV, T):
        a = self.a
        GR, GI, TT, AD, M2R, M2I = T, T + 1, T + 2, T + 4, T + 6, T + 7
        a(f"""
        s_cmp_eq_u32 s{S_MB}, 0
        s_cbranch_scc1 L_pollF2_x
        s_sub_u32 s35, s{S_MB}, 1
        v_min_u32 v{AD}, s35, v2
        v_lshlrev_b32 v{AD}, 2, v{AD}
        s_lshl_b32 s34, s{S_CH}, 7
        s_add_u32 s34, s34, {F2}
        """)
        self.poll("L_pollF2", TT, AD, "s34", sleep=4)
        a(f"""
        s_add_u32 s8, s{P_WS}, {EE}
        s_addc_u32 s9, s{P_WS+1}, 0
        s_and_b32 s9, s9, 0xffff
        s_mov_b32 s10, {16*576*8}
        s_mov_b32 s11, 0x20000
        v_lshrrev_b32 v{TT}, 5, v2
        v_mul_u32_u24 v{TT}, {576*8}, v{TT}
        v_lshlrev_b32 v{AD}, 3, v1
        v_sub_u32 v{AD}, v{AD}, v{TT}
        s_sub_u32 s34, s{S_MB}, 1
        s_mul_i32 s34, s34, {576*8}
        v_add_u32 v{AD}, s34, v{AD}
        s_lshl_b32 s34, s{S_CH}, 8
        """)
        for i in range(8):
            a(f"buffer_load_dwordx2 v[{EV+2*i}:{EV+2*i+1}], v{AD}, s[8:11], s34 offen sc0 sc1")
            if i < 7: a(f"v_subrev_u32 v{AD}, {2*576*8}, v{AD}")
        a(f"""
        v_mul_f32 v{TT}, v{MUI}, v{MUI}
        v_mul_f32 v{TT+1}, v{MUR}, v{MUI}
        v_fma_f32 v{M2R}, v{MUR}, v{MUR}, -v{TT}
        v_add_f32 v{M2I}, v{TT+1}, v{TT+1}
        s_waitcnt vmcnt(0)
        """)
        for i in range(6, -1, -1): self.cmac(EV + 2 * i, M2R, EV + 2 * i + 2, EV + 2 * i)
        a(f"""
        v_mov_b32 v{AD}, v{EV}
        v_mov_b32 v{AD+1}, v{EV+1}
        s_nop 1
        v_permlane32_swap_b32 v{EV}, v{AD}
        v_permlane32_swap_b32 v{EV+1}, v{AD+1}
        s_nop 1
        """)
        self.cmac(EV, MUR, AD, EV)
        self.cmac(GR, PWR, EV, LCR)
        for t in range(16): self.cmac(BS + 2 * t, LR, GR if t == 0 else BS + 2 * t - 2, BS + 2 * t)
        a(f"""
        s_lshl_b32 s34, s{S_MB}, 2
        s_add_u32 s34, s34, s{S_WAVE}
        s_mul_i32 s34, s34, {HS}
        s_add_u32 s34, s34, s{S_CH}
        s_lshl_b32 s34, s34, 11
        s_add_u32 s34, s34, {HH}
        s_add_u32 s35, s34, {18*2048}
        v_lshrrev_b32 v{TT}, 5, v2
        v_lshlrev_b32 v{AD}, 4, v1
        v_mul_u32_u24 v{TT}, {1024+128}, v{TT}
        v_xor_b32 v{AD}, v{AD}, v{TT}
        v_xor_b32 v{AD+1}, {512+64}, v{AD}
        """)
        a(f"s_mov_b32 s30, s46\nv_add_u32 v{AD}, s30, v{AD}\nv_add_u32 v{AD+1}, s30, v{AD+1}")
        for c in range(2):
            for jj in range(2):
                d = EV + 16 + 8 * c + 4 * jj; n = "-" if c else ""
                for r in range(4): a(f"v_cvt_pk_bf16_f32 v{d+r}, {n}v{BS+16*jj+4*r+c}, {n}v{BS+16*jj+4*r+2+c}")
                a(f"ds_write_b128 v{AD+jj}, v[{d}:{d+3}] offset:{c*2048}")
        m = EV
        a(f"""
        v_lshrrev_b32 v{m}, 5, v2
        v_bfe_u32 v{m+1}, v2, 2, 2
        v_lshl_add_u32 v{m+1}, v{m}, 3, v{m+1}
        v_bfe_u32 v{m+2}, v2, 4, 1
        v_bfe_u32 v{m+3}, v2, 1, 1
        v_lshl_add_u32 v{m+2}, v{m+2}, 1, v{m+3}
        v_lshlrev_b32 v{m+3}, 2, v{m+2}
        v_xor_b32 v{m+1}, v{m+1}, v{m+3}
        v_and_b32 v{m+3}, 1, v2
        v_lshlrev_b32 v{m+3}, 3, v{m+3}
        v_lshl_add_u32 v{m+3}, v{m+2}, 9, v{m+3}
        v_add_u32 v{m+3}, s30, v{m+3}
        v_lshl_add_u32 v{m}, v{m+1}, 4, v{m+3}
        v_xor_b32 v{m+1}, 64, v{m}
        """)
        for c in range(2):
            for j in range(2):
                d = EV + 32 + 8 * c + 4 * j
                for hf in range(2): a(f"ds_read_b64_tr_b16 v[{d+2*hf}:{d+2*hf+1}], v{m+hf} offset:{c*2048 + j*256}")
        a("s_waitcnt lgkmcnt(0)")
        for c in range(2):
            for j in range(2):
                d = EV + 32 + 8 * c + 4 * j
                a(f"buffer_store_dwordx4 v[{d}:{d+3}], v3, s[4:7], s{34+c} offen offset:{j*1024} {WT}")
        a(f"""
        s_mul_i32 s30, s{S_MB}, 24
        s_add_u32 s31, s30, s{S_CH}
        s_lshl_b32 s31, s31, 2
        s_add_u32 s31, s31, s{S_WAVE}
        s_lshl_b32 s31, s31, 2
        s_add_u32 s31, s31, {F3}
        s_waitcnt vmcnt(0)
        """)
        self.flag_store([31], TT)

    def a3_setup(self, PB, T):
        a = self.a
        a(f"""
        v_lshrrev_b32 v{T}, 2, v2
        v_and_b32 v{T+1}, 3, v2
        v_and_b32 v{T+2}, 3, v{T}
        v_bfe_u32 v{T+3}, v{T}, 2, 1
        v_lshl_add_u32 v{T+2}, v{T+3}, 3, v{T+2}
        v_lshrrev_b32 v{T+3}, 3, v{T}
        v_lshl_add_u32 v{T+2}, v{T+3}, 2, v{T+2}
        v_mul_u32_u24 v{T+2}, 1152, v{T+2}
        v_lshl_add_u32 v{PB}, v{T+1}, 4, v{T+2}
        v_lshrrev_b32 v{T+2}, 1, v{T}
        v_mul_u32_u24 v{T+2}, 18, v{T+2}
        v_and_b32 v{T+3}, 1, v{T}
        v_add3_u32 v{T+2}, v{T+2}, v{T+3}, 16
        v_mul_u32_u24 v{T+2}, 1152, v{T+2}
        v_lshl_add_u32 v{PB+1}, v{T+1}, 4, v{T+2}
        s_sub_u32 s30, s{S_P3NB}, 9
        s_mul_i32 s{S_CB}, s30, 192
        s_mov_b32 s{S_ST3}, s{S_LW}
        """)
        self.srd(12, P_WO, 576 * 1152)
    def a3_issue(self, PB, cnt):
        a = self.a; lab = a.newlabel("L_a3i")
        a("s_mov_b32 s35, 0")
        a.label(lab)
        a(f"""
        s_mul_i32 s30, s{S_ST3}, 3072
        s_add_u32 s31, s30, {WO2}
        s_sub_u32 s30, s30, {18*3072}
        s_add_u32 s32, s{S_ST3}, 18
        s_sub_u32 s34, s{S_ST3}, 18
        s_cmp_lt_u32 s{S_ST3}, 18
        s_cselect_b32 s30, s31, s30
        s_cselect_b32 s32, s32, s34
        s_mul_i32 s31, s32, {18*1152}
        v_mov_b32 v{PB+2}, v{PB}
        s_cmp_lt_u32 s32, 32
        s_cbranch_scc1 {lab}m
        s_sub_u32 s32, s32, 32
        s_mul_i32 s31, s32, {8*18*1152}
        v_mov_b32 v{PB+2}, v{PB+1}
        """)
        a.label(lab + "m")
        a(f"s_add_u32 s31, s31, s{S_CB}")
        for nt in range(3):
            a(f"s_add_u32 m0, s30, {nt*1024}\ns_add_u32 s32, s31, {nt*64}\nbuffer_load_dwordx4 v{PB+2}, s[12:15], s32 offen lds")
        a(f"s_add_u32 s{S_ST3}, s{S_ST3}, 4\ns_add_u32 s35, s35, 1\ns_cmp_lt_u32 s35, {cnt}\ns_cbranch_scc1 {lab}")
    def xd(self, T, XD, ACC):
        a = self.a
        a(f"""
        v_lshrrev_b32 v{T+1}, 5, v2
        v_mul_u32_u24 v{T}, 1152, v1
        v_lshl_add_u32 v{T}, v{T+1}, 3, v{T}
        s_mul_i32 s30, s{S_P3T}, {32*1152}
        s_lshl_b32 s31, s{S_P3NB}, 7
        s_add_u32 s30, s30, s31
        v_add_u32 v{T}, s30, v{T}
        v_lshl_add_u32 v{T+1}, v{T+1}, 3, s31
        """)
        for e in range(8):
            a(f"global_load_dwordx2 v[{XD+2*e}:{XD+2*e+1}], v{T}, s[{P_BX}:{P_BX+1}] offset:{e*16}")
            a(f"global_load_dwordx2 v[{XD+16+2*e}:{XD+16+2*e+1}], v{T+1}, s[{P_DSK}:{P_DSK+1}] offset:{e*16}")
    def xd_math(self, T, XD, ACC):
        a = self.a
        for e in range(8):
            d = ACC + 4 * e
            for q in range(2):
                x = XD + 2 * e + q; k = XD + 16 + 2 * e + q
                a(f"""
                v_lshlrev_b32 v{T+2}, 16, v{x}
                v_lshlrev_b32 v{T+3}, 16, v{k}
                v_and_b32 v{x}, 0xffff0000, v{x}
                v_and_b32 v{k}, 0xffff0000, v{k}
                v_fmac_f32 v{d+2*q}, v{T+2}, v{T+3}
                v_fmac_f32 v{d+2*q+1}, v{x}, v{k}
                """)

    def iwarm(self, name):
        if self.opt.get("noiw"): return
        a = self.a
        a(f"s_mov_b64 vcc, -1\ns_branch {name}_0")
        a.label(name + "_ret")
    def aux_final(self, T):
        a = self.a; lab = a.newlabel("L_af")
        a("s_mov_b32 s34, 4")
        self.wait_prog(W_LAND + 28, T, sleep=32)
        self.wait_prog(FIN_OK, T, sleep=3)
        a(f"v_cmp_eq_u32 vcc, s30, v{T+1}\ns_cbranch_vccz {lab}\ns_barrier\ns_barrier\ns_barrier\ns_mov_b32 s34, 8")
        a.label(lab)
        a("s_setprio 3")

    B3R = dict(EA=155, FC=16, FH=48, ACC=120, D=18)
    def hload(self, k):
        FH, D = self.B3R["FH"], self.B3R["D"]
        r = FH + 4 * (k % D)
        l = [f"buffer_load_dwordx4 v[{r}:{r+3}], v3, s[4:7], s50 offen offset:{(k%4)*1024}"]
        if k % 4 == 3: l.append("s_add_u32 s50, s50, 4096")
        return l
    def b3_pre(self, T, half):
        a = self.a; ACC, D = self.B3R["ACC"], self.B3R["D"]
        self.srd(16, P_OUT, OUT_BYTES)
        self.swz(4, T, [TSCR, 0][half])
        for i in range(4): a(f"v_add_u32 v{8+i}, {([57344, 73728][half] - [TSCR, 0][half]) & 0xffffffff}, v{4+i}")
        a(f"""
        s_mov_b32 s49, {half}
        s_mul_i32 s34, s{S_P3MB}, 384
        s_lshl_b32 s30, s{S_LW}, 2
        s_add_u32 s34, s34, s30
        s_add_u32 s34, s34, {F3}
        v_min_u32 v{T}, 17, v2
        v_lshlrev_b32 v{T}, 4, v{T}
        """)
        self.poll(f"L_pollF3{half}", T + 1, T, "s34", sleep=16)
        self.stamp(7)
        a(f"s_mul_i32 s50, s{S_P3T}, {HS*2048}\ns_add_u32 s50, s50, {HH + half*36*1024}")
        a(f"s_lshl_b32 s31, s{S_P3NB}, 11\ns_add_u32 s30, s50, s31\ns_add_u32 s30, s30, {18*1024}")
        for n in range(2): a(f"buffer_load_dwordx4 v[{ACC}:{ACC+3}], v3, s[4:7], s30 offen offset:{n*1024}")
        for k in range(D):
            for x in self.hload(k): a(x)
    def b3_main(self, T):
        a = self.a; EA, FC, FH, ACC, D = (self.B3R[k] for k in ("EA", "FC", "FH", "ACC", "D"))
        self.lds_spin(self.WA, T, "s34", W_G2 - W_BAR)
        self.stamp(8); self.stamp(59)
        a("s_mov_b64 vcc, 0")
        if not self.opt.get("noiw"): a.pad_begin("PB3", int(self.opt.get("padn", 14)))
        def crd(k):
            st, s = k // 4, k % 4
            A, off = (4, st * 8192) if st < 7 else (8, (st - 7) * 8192)
            return [f"ds_read_b128 v[{FC+8*s+4*nt}:{FC+8*s+4*nt+3}], v{A+s} offset:{off + nt*4096}" for nt in range(2)]
        for k in range(3):
            for x in crd(k): a(x)
        NK = 36
        for k in range(NK):
            if k in (9, 18, 27): a(f"s_setprio {3 - k//9}")
            if self.opt.get("stb") and k % 3 == 0: self.stamp(30 + k // 3)
            if k == 12:
                a(f"s_cmp_eq_u32 s49, 0\ns_cbranch_scc1 L_b3g\ns_waitcnt vmcnt(12)")
                self.lds_add1(self.WA, self.ONE, W_G3 - W_BAR)
                a("s_waitcnt lgkmcnt(0)")
                a.label("L_b3g")
            if k == 24: self.lds_add1(self.WA, self.ONE, W_B8 - W_BAR); a("s_waitcnt lgkmcnt(0)")
            if k + 3 == 28:
                a("s_lshl_b32 s31, s49, 2")
                self.lds_spin(self.WA, T, "s31", W_G3 - W_BAR)
            if k == 22:
                a(f"""
                v_lshrrev_b32 v{T+2}, 4, v2
                v_and_b32 v{T+3}, 15, v2
                v_mul_u32_u24 v{T+4}, 1152, v{T+2}
                v_lshl_add_u32 v{T+4}, v{T+3}, 3, v{T+4}
                s_lshl_b32 s31, s{S_P3NB}, 7
                v_lshl_add_u32 v{T+5}, v{T+3}, 3, s31
                global_load_dwordx2 v[{FH+8}:{FH+9}], v{T+5}, s[{P_DSK}:{P_DSK+1}]
                s_lshl_b32 s30, s{S_P3T}, 1
                s_add_u32 s30, s30, s49
                s_mul_i32 s30, s30, {16*1152}
                s_add_u32 s30, s30, s31
                """)
                self.srd(8, P_BX, 2048 * 1152)
                for n in range(4): a(f"buffer_load_dwordx2 v[{FH+2*n}:{FH+2*n+1}], v{T+4}, s[8:11], s30 offen\ns_add_u32 s30, s30, {4*1152}")
            a(f"s_waitcnt vmcnt({min(D-1, NK-1-k) + (5 if k >= 22 else 0)}) lgkmcnt({min(4, 2*(NK-1-k))})")
            h = FH + 4 * (k % D); r = crd(k + 3) if k + 3 < NK else []
            for nt in range(2):
                c = FC + 8 * (k % 4) + 4 * nt; d = ACC + 16 * nt
                a(f"v_mfma_f32_32x32x16_bf16 v[{d}:{d+15}], v[{c}:{c+3}], v[{h}:{h+3}], " + ("0" if k == 0 else f"v[{d}:{d+15}]"))
                if nt == 0:
                    for x in r: a(x)
            if k + D < NK:
                for x in self.hload(k + D): a(x)
        self.stamp(10)
        OF = self.opt.get('outf', 'sc0_sc1').replace('_', ' ')
        a(f"""
        s_mul_i32 s31, s{S_LW}, {32*272}
        s_cmp_eq_u32 s49, 0
        s_cselect_b32 s30, {TSCR}, 0
        s_add_u32 s30, s30, s31
        v_lshrrev_b32 v{T+1}, 5, v2
        v_mul_u32_u24 v{T+6}, 272, v1
        v_lshl_add_u32 v{T+6}, v{T+1}, 4, v{T+6}
        v_add_u32 v{T+6}, s30, v{T+6}
        s_mul_i32 s30, s49, {16*272}
        s_add_u32 s31, s31, s30
        v_mul_u32_u24 v{T+1}, 272, v{T+2}
        v_lshl_add_u32 v{T+1}, v{T+3}, 4, v{T+1}
        v_add_u32 v{T+1}, s31, v{T+1}
        v_add_u32 v{T+4}, {TSCR}, v{T+1}
        v_mul_u32_u24 v{EA}, 4608, v{T+2}
        v_lshl_add_u32 v{EA}, v{T+3}, 4, v{EA}
        """)
        self.lds_spin(self.WA, T, 8, W_B8 - W_BAR)
        for e in range(8): a(f"ds_write_b128 v{T+6}, v[{ACC+4*e}:{ACC+4*e+3}] offset:{e*32}")
        self.lds_add1(self.WA, self.ONE, W_B8 - W_BAR)
        DD = FH + 12
        a(f"""
        s_lshl_b32 s30, s{S_P3T}, 1
        s_add_u32 s30, s30, s49
        s_mul_i32 s30, s30, {16*4608}
        s_lshl_b32 s31, s{S_P3NB}, 8
        s_add_u32 s30, s30, s31
        s_add_u32 s30, s30, {576*4}
        s_waitcnt vmcnt(0)
        v_lshlrev_b32 v{DD}, 16, v{FH+8}
        v_and_b32 v{DD+1}, 0xffff0000, v{FH+8}
        v_lshlrev_b32 v{DD+2}, 16, v{FH+9}
        v_and_b32 v{DD+3}, 0xffff0000, v{FH+9}
        """)
        for n in range(4):
            x = FH + 2 * n; t = DD + 4 + 4 * n
            a(f"v_lshlrev_b32 v{t}, 16, v{x}\nv_and_b32 v{t+1}, 0xffff0000, v{x}\nv_lshlrev_b32 v{t+2}, 16, v{x+1}\nv_and_b32 v{t+3}, 0xffff0000, v{x+1}")
        self.lds_spin(self.WA, T, 16, W_B8 - W_BAR)
        self.stamp(11); self.stamp(60)
        for n in range(4):
            a(f"ds_read_b128 v[{FC+8*n}:{FC+8*n+3}], v{T+1} offset:{n*4*272}\nds_read_b128 v[{FC+8*n+4}:{FC+8*n+7}], v{T+4} offset:{n*4*272}")
        for n in range(4):
            d = FC + 8 * n; t = DD + 4 + 4 * n
            a(f"""
            s_waitcnt lgkmcnt({6-2*n})
            v_pk_fma_f32 v[{d}:{d+1}], v[{t}:{t+1}], v[{DD}:{DD+1}], v[{d}:{d+1}]
            v_pk_fma_f32 v[{d+2}:{d+3}], v[{t+2}:{t+3}], v[{DD+2}:{DD+3}], v[{d+2}:{d+3}]
            v_pk_add_f32 v[{d}:{d+1}], v[{d}:{d+1}], v[{d+4}:{d+5}]
            v_pk_add_f32 v[{d+2}:{d+3}], v[{d+2}:{d+3}], v[{d+6}:{d+7}]
            buffer_store_dwordx4 v[{d}:{d+3}], v{EA}, s[16:19], s30 offen {OF}
            s_add_u32 s30, s30, {4*4608}
            """)
        a("s_branch L_exit")
        if a.pad: a.pad_end("PB3_ret")

    def p3(self, T):
        a = self.a
        self.srd(16, P_OUT, OUT_BYTES)
        a(f"s_cmp_ge_u32 s{S_IDX}, 18\ns_cbranch_scc1 L_a3")
        self.iwarm("PB3")
        self.b3_pre(T, 0)
        self.aux_final(T)
        a.label("L_b3main")
        self.b3_main(T)
        a.label("L_a3")
        OF = self.opt.get('outf', 'sc0_sc1').replace('_', ' ')
        self.iwarm("PA3")
        self.aux_final(T)
        a(f"s_cmp_ge_u32 s{S_IDX}, 30\ns_cbranch_scc1 L_exit")
        self.lds_spin(self.WA, T, "s34", W_G2 - W_BAR)
        self.stamp(8)
        AW, EA, T, FW, ACC, FO = 4, 6, 8, 16, 52, 100
        D = 14
        a(f"""
        s_lshl_b32 s34, s{S_P3T}, 7
        s_add_u32 s34, s34, {F4}
        v_lshlrev_b32 v{T+4}, 2, v1
        v_lshrrev_b32 v{T+1}, 5, v2
        v_bfe_u32 v{T+2}, v2, 2, 2
        v_lshl_add_u32 v{T+3}, v{T+1}, 3, v{T+2}
        v_lshlrev_b32 v{T+3}, 6, v{T+3}
        v_bfe_u32 v{T+2}, v2, 4, 1
        v_lshl_add_u32 v{T+3}, v{T+2}, 5, v{T+3}
        v_and_b32 v{T+2}, 3, v2
        v_lshl_add_u32 v{AW}, v{T+2}, 3, v{T+3}
        v_add_u32 v{AW+1}, {WO2}, v{AW}
        v_mul_u32_u24 v{EA}, 4608, v1
        v_lshl_add_u32 v{EA}, v{T+1}, 4, v{EA}
        v_lshl_add_u32 v{EA+1}, v{T+1}, 9, v{T+4}
        """)
        def rl3(s):
            st, off = (0, s * 3072) if s < 18 else (1, (s - 18) * 3072)
            l = []
            for nt in range(3):
                for hf in range(2):
                    r = FW + (s % 3) * 12 + nt * 4 + hf * 2
                    l.append(f"ds_read_b64_tr_b16 v[{r}:{r+1}], v{AW+st} offset:{off + nt*1024 + hf*256}")
            return l
        for x in rl3(0) + rl3(1): a(x)
        a(f"s_lshl_b32 s30, s{S_LW}, 2\ns_add_u32 s30, s30, {W_F4}\nv_mov_b32 v{T+6}, s30")
        self.poll("L_pollF4", T + 5, T + 4, "s34", sleep=1)
        if self.opt.get("opf"): a(f"ds_write_b32 v{T+6}, v{self.ONE}\ns_waitcnt lgkmcnt(0)")
        OLD = self.opt.get("oldf", "sc0_sc1").replace("_", " ")
        self.stamp(10); self.stamp(59)
        a("s_mov_b64 vcc, 0")
        if not self.opt.get("noiw"): a.pad_begin("PA3", int(self.opt.get("padn", 14)))
        a(f"s_mul_i32 s30, s{S_P3T}, {OS}\ns_add_u32 s30, s30, {OW}")
        def oload(s):
            r = FO + 4 * (s % D)
            if s < 32:
                l = [f"buffer_load_dwordx4 v[{r}:{r+3}], v3, s[4:7], s30 offen offset:{(s%4)*1024} {OLD}"]
                if s % 4 == 3: l.append("s_add_u32 s30, s30, 4096")
                return l
            return [f"buffer_load_dword v{r+j}, v{EA+1}, s[4:7], s30 offen offset:{(s-32)*1024 + j*128} {OLD}" for j in range(4)]
        cnt = [1] * 32 + [4] * 4
        for s in range(D):
            for x in oload(s): a(x)
        for s in range(36):
            if self.opt.get("stb") and s % 3 == 0: self.stamp(30 + s // 3)
            if s == 22: self.arrive(T); a("s_waitcnt lgkmcnt(0)")
            out = sum(cnt[s + 1:min(36, s + D)])
            a(f"s_waitcnt vmcnt({out}) lgkmcnt({6 if s < 35 else 0})")
            mf = []
            for nt in range(3):
                d = ACC + nt * 16; w = FW + (s % 3) * 12 + nt * 4; o = FO + 4 * (s % D)
                c = "0" if s == 0 else f"v[{d}:{d+15}]"
                mf.append(f"v_mfma_f32_32x32x16_bf16 v[{d}:{d+15}], v[{w}:{w+3}], v[{o}:{o+3}], {c}")
            ilv(a, mf, rl3(s + 2) if s + 2 < 36 else [])
            if s + D < 36:
                for x in oload(s + D): a(x)
        self.stamp(11); self.stamp(60)
        self.lds_spin(self.WA, T, f"s{self.BC}")
        a(f"""
        s_mul_i32 s31, s{S_LW}, {32*400}
        v_lshrrev_b32 v{T+1}, 5, v2
        v_mul_u32_u24 v{T}, 400, v1
        v_lshl_add_u32 v{T}, v{T+1}, 4, v{T}
        v_add_u32 v{T}, s31, v{T}
        """)
        for e in range(12): a(f"ds_write_b128 v{T}, v[{ACC+4*e}:{ACC+4*e+3}] offset:{e*32}")
        for j in range(3):
            a(f"""
            v_add_u32 v{FW}, {64*j}, v2
            v_mul_u32_u24 v{FW+1}, 171, v{FW}
            v_lshrrev_b32 v{FW+1}, 12, v{FW+1}
            v_mul_u32_u24 v{FW+2}, 24, v{FW+1}
            v_sub_u32 v{FW}, v{FW}, v{FW+2}
            v_mul_u32_u24 v{FW+2}, 400, v{FW+1}
            v_lshl_add_u32 v{FW+2}, v{FW}, 4, v{FW+2}
            v_add_u32 v{FW+4+j}, s31, v{FW+2}
            v_mul_u32_u24 v{FW+2}, 4608, v{FW+1}
            v_lshl_add_u32 v{FW+8+j}, v{FW}, 4, v{FW+2}
            """)
        a(f"""
        s_mul_i32 s30, s{S_P3T}, {32*4608}
        s_sub_u32 s31, s{S_P3NB}, 9
        s_mul_i32 s31, s31, 384
        s_add_u32 s30, s30, s31
        s_waitcnt lgkmcnt(0)
        """)
        for n in range(12): a(f"ds_read_b128 v[{FO+4*n}:{FO+4*n+3}], v{FW+4+n%3} offset:{(n//3)*8*400}")
        for n in range(12):
            a(f"s_waitcnt lgkmcnt({11-n})\nbuffer_store_dwordx4 v[{FO+4*n}:{FO+4*n+3}], v{FW+8+n%3}, s[16:19], s30 offen {OF}")
            if n % 3 == 2: a(f"s_add_u32 s30, s30, {8*4608}")
        a("s_branch L_exit")
        if a.pad: a.pad_end("PA3_ret")

    def finish(self):
        a = self.a
        a.label("L_exit")
        if self.stamp_on:
            self.stamp(12)
            a("s_waitcnt vmcnt(0)")
            self.stamp(13); a(f"v_writelane_b32 v{VST}, s98, 0\nv_writelane_b32 v{VST}, s98, 14")
            a(f"""
            s_lshl_b32 s30, s2, 4
            s_add_u32 s30, s30, s{S_WAVE}
            s_lshl_b32 s30, s30, 8
            s_add_u32 s30, s30, {STB}
            v_lshlrev_b32 v3, 2, v2
            buffer_store_dword v{VST}, v3, s[4:7], s30 offen
            """)
            if "probe" in self.opt:
                k = int(self.opt["probe"])
                a(f"""
                v_readlane_b32 s30, v{VST}, 14
                v_readlane_b32 s31, v{VST}, {k}
                s_nop 3
                s_sub_u32 s32, s31, s30
                s_cmp_eq_u32 s31, 0
                s_cselect_b32 s32, 0, s32
                s_min_u32 s32, s32, 8000
                s_lshl_b32 s32, s32, 1
                s_add_u32 s32, s32, 7000
                """)
                a.label("L_probe")
                a("s_sleep 4\ns_memrealtime s[94:95]\ns_waitcnt lgkmcnt(0)\ns_sub_u32 s33, s94, s30\ns_cmp_lt_u32 s33, s32\ns_cbranch_scc1 L_probe")
        a("s_endpgm")
        self.emit_stubs()
        a.label("L_end")
        a("s_endpgm")

def gen_mega(name, stamp=False, opt=None):
    g = G(stamp, opt)
    g.a.raw(kernel_header(name))
    g.a.label('L_code0')
    g.prologue(); g.p1_loader(); g.attention(); g.aux(); g.finish()
    return g.a.text(), kernel_desc(name, NV, 100)

if __name__ == "__main__":
    import sys
    from build import *
    KN = NAME + "_kernel"
    out = sys.argv[1]; stamp = len(sys.argv) > 2 and sys.argv[2] == "1"
    opt = dict((kv.split("=") + ["1"])[:2] for kv in sys.argv[3:])
    if "f1s" in opt: F1STRIDE = int(opt["f1s"])
    if "ldf" in opt: LDF = opt["ldf"].replace("_", " ").strip()
    if "wt" in opt: WT = opt["wt"].replace("_", " ")
    compose([gen_mega(KN, stamp, opt)], [(KN, 256, 768, LDS_TOTAL)], out)
    assemble(out)
```

```python
from asmlib import *
from lay2 import *
import math, struct
def f32(x): return "0x%08x" % struct.unpack("<I", struct.pack("<f", x))[0]
QSCALE = f32(18 ** -0.5 * math.log2(math.e))
WT = "sc0 sc1"
LDF = "sc0 sc1"
SPIN_MAX = 20000
P_AX, P_WQKV, P_WO, P_BX, P_LRE, P_LIM, P_BRE, P_BIM, P_CRE, P_CIM, P_LDT, P_DSK, P_OUT, P_DBG, P_WS = range(64, 94, 2)
S_WAVE, S_XCD, S_IDX, S_MB, S_NB, S_TYPE, S_CHB, S_CHA, S_HALF, S_CH = 3, 20, 21, 22, 23, 24, 25, 26, 27, 29
S_P3MB, S_P3NB, S_HD, S_LW, S_P3T = 37, 38, 39, 51, 57
S_GK, S_K4, S_GV, S_LP = 52, 54, 55, 56
S_HB, S_CB, S_SL3, S_ST3 = 52, 53, 54, 55
NV = 168
VST = 167
BS = 64
SPILL = 0x1200000
LR, LI, CR, CI, LCR, LCI, PWR, PWI, MUR, MUI = range(BS + 32, BS + 42)
C0, CHB = 5, 19968
LDS_W = 8 * CHB
W_LAND, W_PROG, W_UNS, W_BAR, W_DRN = LDS_W, LDS_W + 64, LDS_W + 96, LDS_W + 100, LDS_W + 104
W_F1 = LDS_W + 108
LDS_SCR = LDS_W + 512
B1BASE, BSLOT = 0, 24576
NS1 = 4
R3 = [100352, 124928, 2048, 26624]
W_OK = 8 * 19968 + 112
W_P2, W_G2, W_G3 = 8 * 19968 + 116, 8 * 19968 + 120, 8 * 19968 + 124
TSCR = 100352
W_B8 = 8 * 19968 + 132
W_F4 = 8 * 19968 + 144
W_ISS = 8 * 19968 + 136
FIN_OK, FIN_BAD = 0x40000000, 0x50000000
R3BASE = 2048
WO2 = 100352
QS, VS, OS, HS = 289, 9344, 37 * 1024, 37
def pad_touch():
    pads = [QKP + (q * QS + 288) * 1024 for q in range(16)] + [VT + o * VS + 9216 for o in range(256)]
    pads += [OW + t * OS + 36 * 1024 for t in range(64)] + [HH + (t * HS + 36) * 2048 for t in range(64)] + [EE + 0x80000, FL + 0x80000]
    G = 1 << 20
    seen = {}
    for p in pads: seen.setdefault(p // G, p)
    return sorted(seen.values())
F1STRIDE = 128 * NSUB
W_FULL, W_FREE = 8 * 19968 + 2560, 8 * 19968 + 2816
R6 = [100352, 124928, 2048, 26624, 51200, 75776]

def ilv(a, mf, other):
    n = len(mf); k = 0
    for i, m in enumerate(mf):
        a(m)
        upto = (len(other) * (i + 1) + n - 2) // (n - 1) if i < n - 1 else len(other)
        upto = min(upto, len(other))
        while k < upto: a(other[k]); k += 1

class G:
    def __init__(self, stamp=False, opt=None):
        self.a = Asm(); self.stamp_on = stamp; self.opt = opt or {}; self.stubs = []
    def stamp(self, k, real=False):
        if not self.stamp_on: return
        op = "s_memrealtime" if (real or k not in (62, 61, 60, 59)) else "s_memtime"
        self.a(f"{op} s[94:95]\ns_waitcnt lgkmcnt(0)\nv_writelane_b32 v{VST}, s94, {k}")
    def stampx(self, base, force=False):
        if not self.stamp_on or not (force or self.opt.get("stx")): return
        self.a(f"s_memrealtime s[94:95]\ns_add_u32 m0, s96, {base}\ns_add_u32 s96, s96, 1\ns_waitcnt lgkmcnt(0)\nv_writelane_b32 v{VST}, s94, m0")
    def srd(self, d, p, n):
        self.a(f"s_mov_b32 s{d}, s{p}\ns_and_b32 s{d+1}, s{p+1}, 0xffff\ns_mov_b32 s{d+2}, {n}\ns_mov_b32 s{d+3}, 0x20000")
    def poll(self, lab, vdst, voff, soff, n=1, want="1", sleep=2):
        a = self.a
        ld = f"buffer_load_dword v{vdst}, v{voff}, s[4:7], {soff} offen sc0 sc1" if n == 1 else f"buffer_load_dwordx4 v[{vdst}:{vdst+3}], v{voff}, s[4:7], {soff} offen sc0 sc1"
        a("s_mov_b32 s33, 0")
        a.label(lab)
        a(ld + "\ns_waitcnt vmcnt(0)")
        if n == 4:
            a(f"v_and_b32 v{vdst}, v{vdst}, v{vdst+1}\nv_and_b32 v{vdst+2}, v{vdst+2}, v{vdst+3}\nv_and_b32 v{vdst}, v{vdst}, v{vdst+2}")
        a(f"""
        v_cmp_ne_u32 vcc, {want}, v{vdst}
        s_add_u32 s33, s33, 1
        s_cmp_gt_u32 s33, {SPIN_MAX}
        s_cbranch_scc1 {lab}_x
        s_cbranch_vccz {lab}_x
        s_sleep {sleep}
        s_branch {lab}
        """)
        a.label(lab + "_x")
    def lds_spin(self, vaddr, vtmp, want, off=0, sleep=0):
        a = self.a; lab = a.newlabel("L_sp")
        a("s_mov_b32 s33, 0")
        a.label(lab)
        a(f"""
        ds_read_b32 v{vtmp}, v{vaddr} offset:{off}
        s_add_u32 s33, s33, 1
        s_waitcnt lgkmcnt(0)
        v_readfirstlane_b32 s32, v{vtmp}
        s_cmp_ge_u32 s32, {want}
        s_cbranch_scc1 {lab}x
        {f"s_sleep {sleep}" if sleep else ""}
        s_cmp_lt_u32 s33, {SPIN_MAX*16}
        s_cbranch_scc1 {lab}
        """)
        a.label(lab + "x")
    def lds_add1(self, vaddr, vone, off=0):
        self.a(f"s_mov_b64 exec, 1\nds_add_u32 v{vaddr}, v{vone} offset:{off}\ns_mov_b64 exec, -1")
    def flag_store(self, sregs, T):
        a = self.a
        a(f"v_mov_b32 v{T}, 0\nv_mov_b32 v{T+1}, 1\ns_mov_b64 exec, 1")
        for r in sregs: a(f"buffer_store_dword v{T+1}, v{T}, s[4:7], s{r} offen {WT}")
        a("s_mov_b64 exec, -1")
    def warm(self, items, T, dst):
        a = self.a
        if self.opt.get("nowarm"): return
        a(f"s_lshl_b32 s30, s{S_LW}, 8\ns_add_u32 s30, s30, s2\ns_lshl_b32 s30, s30, 10\nv_add_u32 v{T}, s30, v3")
        for (p, n) in items:
            self.srd(8, p, n)
            for r in range((n + (1 << 20) - 1) >> 20):
                a(f"s_mov_b32 s30, {r << 20}\nbuffer_load_dwordx4 v[{dst}:{dst+3}], v{T}, s[8:11], s30 offen")
    def warmx(self, items, T, dst):
        a = self.a
        a(f"s_lshl_b32 s30, s{S_IDX}, 2\ns_add_u32 s30, s30, s{S_LW}\ns_lshl_b32 s30, s30, 10\nv_add_u32 v{T}, s30, v3")
        for (p, n) in items:
            self.srd(8, p, n)
            for r in range((n + (1 << 17) - 1) >> 17):
                a(f"s_mov_b32 s30, {r << 17}\nbuffer_load_dwordx4 v[{dst}:{dst+3}], v{T}, s[8:11], s30 offen")
    def make_vx(self, dst, n, sa, sb, sc1, sc0, T):
        a = self.a
        a(f"""
        v_lshrrev_b32 v{T}, 3, v2
        v_and_b32 v{T+1}, 7, v2
        v_lshrrev_b32 v{T+2}, 1, v{T}
        v_xor_b32 v{T+1}, v{T+1}, v{T+2}
        v_lshrrev_b32 v{T+2}, 2, v{T}
        v_and_b32 v{T}, 3, v{T}
        v_mul_u32_u24 v{T+2}, {sa}, v{T+2}
        v_mul_u32_u24 v{T}, {sb}, v{T}
        v_add_u32 v{T}, v{T}, v{T+2}
        v_mul_u32_u24 v{T}, 1152, v{T}
        v_lshl_add_u32 v{dst}, v{T+1}, 4, v{T}
        v_xor_b32 v{T+1}, 4, v{T+1}
        v_lshl_add_u32 v{dst+1}, v{T+1}, 4, v{T}
        s_mul_i32 s34, {sc0}, 1152
        s_sub_u32 s34, s34, 1024
        v_add_u32 v{dst+1}, s34, v{dst+1}
        """)
        if n == 4:
            a(f"s_mul_i32 s34, {sc1}, 1152\ns_sub_u32 s34, s34, 2048\nv_add_u32 v{dst+2}, s34, v{dst}\nv_add_u32 v{dst+3}, s34, v{dst+1}")
    def swz(self, Z, T, add=0):
        a = self.a
        a(f"""
        v_lshrrev_b32 v{T+1}, 5, v2
        v_bfe_u32 v{T+2}, v1, 1, 3
        v_xor_b32 v{T+2}, v{T+2}, v{T+1}
        v_lshlrev_b32 v{T+3}, 7, v1
        v_add_u32 v{T+3}, {add}, v{T+3}
        """)
        for s in range(4): a(f"v_xor_b32 v{T+4}, {2*s}, v{T+2}\nv_lshl_add_u32 v{Z+s}, v{T+4}, 4, v{T+3}")

    def prologue(self):
        a = self.a
        a(f"""
        s_cmp_ge_u32 s2, 256
        s_cbranch_scc1 L_end
        {"s_memrealtime s[98:99]" if self.stamp_on else ""}
        s_load_dwordx16 s[64:79], s[0:1], 0
        s_load_dwordx8 s[80:87], s[0:1], 64
        s_load_dwordx4 s[88:91], s[0:1], 96
        s_load_dwordx2 s[92:93], s[0:1], 112
        v_lshrrev_b32 v1, 6, v0
        v_and_b32 v2, 63, v0
        v_readfirstlane_b32 s{S_WAVE}, v1
        v_lshlrev_b32 v3, 4, v2
        v_and_b32 v1, 31, v0
        s_and_b32 s{S_XCD}, s2, 7
        s_lshr_b32 s{S_IDX}, s2, 3
        """)
        if self.stamp_on: a(f"v_mov_b32 v{VST}, 0\ns_mov_b32 s96, 0")
        if self.stamp_on and self.opt.get("st0"): a(f"s_waitcnt lgkmcnt(0)"); self.stamp(2)
        a(f"""
        s_and_b32 s30, s{S_XCD}, 3
        s_lshl_b32 s30, s30, 2
        s_and_b32 s31, s{S_IDX}, 3
        s_add_u32 s{S_MB}, s30, s31
        s_lshl_b32 s{S_HD}, s{S_XCD}, 2
        s_add_u32 s{S_HD}, s{S_HD}, s31
        s_lshr_b32 s30, s{S_XCD}, 2
        s_lshr_b32 s31, s{S_IDX}, 2
        s_mul_i32 s32, s30, 7
        s_add_u32 s{S_NB}, s32, s31
        s_mul_i32 s32, s30, 9
        s_add_u32 s{S_CHB}, s32, s31
        s_add_u32 s{S_CHA}, s32, 8
        s_cmp_ge_u32 s{S_NB}, 9
        s_cselect_b32 s{S_TYPE}, 1, 0
        s_cmp_ge_u32 s{S_IDX}, 28
        s_cselect_b32 s{S_TYPE}, 2, s{S_TYPE}
        s_and_b32 s{S_LW}, s{S_WAVE}, 3
        """)
        G_ = int(self.opt.get("rotg", 3))
        a(f"s_and_b32 s30, s{S_IDX}, 3\ns_lshr_b32 s31, s{S_IDX}, 2\ns_add_u32 s30, s30, s31")
        if G_ == 1: a("s_mov_b32 s28, 0")
        elif G_ == 2: a("s_and_b32 s30, s30, 1\ns_mul_i32 s28, s30, 5")
        elif G_ == 3: a("s_mul_i32 s31, s30, 43\ns_lshr_b32 s31, s31, 7\ns_mul_i32 s31, s31, 3\ns_sub_u32 s30, s30, s31\ns_mul_i32 s28, s30, 3")
        elif G_ == 4: a("s_and_b32 s30, s30, 3\ns_mul_i32 s28, s30, 9\ns_lshr_b32 s28, s28, 2")
        a(f"""
        s_cmp_lt_u32 s{S_WAVE}, 4
        s_cbranch_scc1 L_aux
        """)

    def p3_ids(self):
        self.a(f"""
        s_lshl_b32 s{S_P3MB}, s{S_XCD}, 1
        s_and_b32 s30, s{S_IDX}, 1
        s_add_u32 s{S_P3MB}, s{S_P3MB}, s30
        s_lshr_b32 s{S_P3NB}, s{S_IDX}, 1
        s_lshl_b32 s{S_P3T}, s{S_P3MB}, 2
        s_add_u32 s{S_P3T}, s{S_P3T}, s{S_LW}
        """)

    def p1_loader(self):
        a = self.a
        VX, T = 4, 12
        SI, SB, ST, SL = 41, 43, 44, 45
        a(f"""
        s_cmp_eq_u32 s{S_TYPE}, 2
        s_cbranch_scc1 L_p1l_sp
        s_mov_b32 s{SI}, 0
        s_sub_u32 s42, 9, s28
        s_lshl_b32 s{SL}, s{S_LW}, 12
        s_cmp_ge_u32 s{S_WAVE}, 8
        s_cbranch_scc1 L_p1l_w
        s_cmp_eq_u32 s{S_TYPE}, 0
        s_cselect_b32 s46, 2, 1
        s_cselect_b32 s47, 32, 16
        s_cselect_b32 s48, 16, 4
        s_lshr_b32 s30, s{S_LW}, 1
        s_lshl_b32 s30, s30, 6
        s_and_b32 s31, s{S_LW}, 1
        s_add_u32 s30, s30, s31
        s_lshl_b32 s31, s{S_LW}, 5
        s_cmp_eq_u32 s{S_TYPE}, 0
        s_cselect_b32 s30, s30, s31
        s_lshl_b32 s31, s{S_MB}, 7
        s_add_u32 s30, s30, s31
        s_mul_i32 s{SB}, s30, 1152
        s_mov_b32 s{ST}, 128
        """)
        self.make_vx(VX, 4, "8", "s46", "s47", "s48", T)
        a("s_waitcnt lgkmcnt(0)")
        self.srd(8, P_AX, 2048 * 1152)
        a("s_branch L_p1l_go")
        a.label("L_p1l_w")
        a(f"""
        s_mul_i32 s30, s{S_LW}, {16*3456}
        s_lshl_b32 s31, s{S_NB}, 8
        s_add_u32 s{SB}, s30, s31
        s_mov_b32 s{ST}, {64*3456}
        s_add_u32 s{SL}, s{SL}, 16384
        v_lshrrev_b32 v{T}, 4, v2
        v_and_b32 v{T+1}, 15, v2
        v_lshlrev_b32 v{T+2}, 2, v{T}
        v_xor_b32 v{T+1}, v{T+1}, v{T+2}
        v_mul_u32_u24 v{T}, 3456, v{T}
        v_lshl_add_u32 v{VX}, v{T+1}, 4, v{T}
        v_add_u32 v{VX+1}, {4*3456-1024}, v{VX}
        v_add_u32 v{VX+2}, {2*(4*3456-1024)}, v{VX}
        v_add_u32 v{VX+3}, {3*(4*3456-1024)}, v{VX}
        s_waitcnt lgkmcnt(0)
        """)
        self.srd(8, P_WQKV, 576 * 3456)
        a.label("L_p1l_go")
        a(f"s_mul_i32 s30, s28, s{ST}\ns_add_u32 s{SB}, s{SB}, s30\ns_mul_i32 s46, s{ST}, 9")
        self.stamp(1)
        a.label("L_p1l_issue")
        a(f"s_mov_b32 m0, s{SL}\ns_add_u32 s{SI}, s{SI}, 1")
        for n in range(4): a(f"buffer_load_dwordx4 v{VX+n}, s[8:11], s{SB} offen offset:{n*1024} lds")
        a(f"""
        s_add_u32 s{SB}, s{SB}, s{ST}
        s_cmp_eq_u32 s{SI}, s42
        s_cselect_b32 s30, s46, 0
        s_sub_u32 s{SB}, s{SB}, s30
        s_add_u32 s{SL}, s{SL}, 32768
        s_sub_u32 s30, s{SL}, 163840
        s_cmp_ge_u32 s{SL}, 163840
        s_cselect_b32 s{SL}, s30, s{SL}
        s_cmp_lt_u32 s{SI}, 3
        s_cbranch_scc1 L_p1l_issue
        s_waitcnt vmcnt(8)
        s_barrier
        """)
        a(f"s_cmp_lt_u32 s{SI}, 9\ns_cbranch_scc1 L_p1l_issue")
        a.label("L_p1l_sp")
        a("s_waitcnt lgkmcnt(0)")
        self.b1_loader()
        a(f"s_cmp_eq_u32 s{S_TYPE}, 2\ns_cbranch_scc1 L_p1l_sp2")
        nw = 0
        if self.opt.get("warmb_old"):
            nw = 3
            a(f"""
            s_lshl_b32 s30, s{S_IDX}, 2
            s_and_b32 s31, s{S_LW}, 1
            s_add_u32 s30, s30, s31
            s_lshr_b32 s31, s{S_WAVE}, 3
            s_lshl_b32 s31, s31, 1
            s_add_u32 s30, s30, s31
            s_mul_i32 s30, s30, 3072
            s_lshr_b32 s31, s{S_XCD}, 2
            s_mul_i32 s31, s31, {288*1152}
            s_add_u32 s30, s30, s31
            """)
            for n in range(3): a(f"buffer_load_dwordx4 v[80:83], v3, s[12:15], s30 offen offset:{n*1024}")
            if self.opt.get("warmx2"):
                nw = 6
                a(f"""
                s_lshl_b32 s30, s{S_IDX}, 3
                s_add_u32 s30, s30, s{S_WAVE}
                s_sub_u32 s30, s30, 4
                s_mul_i32 s30, s30, 2688
                s_and_b32 s31, s{S_XCD}, 3
                s_mul_i32 s31, s31, 589824
                s_add_u32 s30, s30, s31
                """)
                for n in range(3): a(f"buffer_load_dwordx4 v[80:83], v3, s[8:11], s30 offen offset:{n*1024}")
        a(f"s_waitcnt vmcnt({4+nw})\ns_barrier\ns_xor_b32 s40, s27, 1")
        if self.opt.get("early"):
            a(f"s_cmp_eq_u32 s27, 0\ns_cbranch_scc1 L_e1")
            self.b1_issue()
            a(f"s_waitcnt vmcnt({nw+6})\ns_barrier\ns_branch L_e2")
            a.label("L_e1")
            a(f"s_waitcnt vmcnt({nw})\ns_barrier")
            self.b1_issue()
            a.label("L_e2")
        else:
            a(f"s_waitcnt vmcnt({nw})\ns_barrier")
        a.label("L_p1l_sp2")
        a(f"""
        s_cmp_lg_u32 s{S_WAVE}, 8
        s_cbranch_scc1 L_p1l_b
        v_lshlrev_b32 v9, 2, v2
        v_add_u32 v9, {LDS_W}, v9
        v_cmp_eq_u32 vcc, 8, v2
        v_mov_b32 v10, 4
        v_mov_b32 v8, 0
        v_cndmask_b32 v10, v8, v10, vcc
        ds_write_b32 v9, v10
        ds_write_b32 v9, v8 offset:2560
        ds_write_b32 v9, v8 offset:2816
        s_waitcnt lgkmcnt(0)
        """)
        a.label("L_p1l_b")
        a("s_barrier")
        self.srd(4, P_WS, WS_BYTES)
        if self.opt.get("iss"):
            a(f"s_cmp_eq_u32 s{S_TYPE}, 2\ns_cbranch_scc1 L_p1l_sp5\nv_mov_b32 v70, {W_ISS}")
            self.lds_spin(70, 71, 4)
            a.label("L_p1l_sp5")
        if self.opt.get("drn"):
            a(f"s_cmp_eq_u32 s{S_TYPE}, 2\ns_cbranch_scc1 L_p1l_sp4\nv_mov_b32 v70, {W_DRN}")
            self.lds_spin(70, 71, int(self.opt["drn"]), sleep=1)
            a.label("L_p1l_sp4")
        self.b1_run()
        self.helper()

    def aux_start(self):
        a = self.a
        sp = self.opt.get("sponly")
        if sp: a(f"s_cmp_lg_u32 s{S_TYPE}, 2\ns_cbranch_scc1 L_nopf\ns_getpc_b64 s[30:31]")
        else: a(f"s_cmp_lg_u32 s{S_WAVE}, 3\ns_cbranch_scc1 L_nopf\ns_getpc_b64 s[30:31]")
        a.label("L_pc")
        a(f"s_sub_u32 s30, s30, L_pc-L_code0\ns_subb_u32 s31, s31, 0")
        if sp: a(f"s_and_b32 s32, s{S_IDX}, 3\ns_lshl_b32 s32, s32, 2\ns_add_u32 s32, s32, s{S_WAVE}\ns_lshl_b32 s32, s32, 11\nv_lshlrev_b32 v6, 5, v2\ns_cmp_ge_u32 s32, L_end-L_code0-2048")
        else: a(f"s_lshl_b32 s32, s{S_IDX}, 10\nv_mov_b32 v6, v3\ns_cmp_ge_u32 s32, L_end-L_code0-1024")
        a(f"""
        s_cbranch_scc1 L_nopf
        s_add_u32 s30, s30, s32
        s_addc_u32 s31, s31, 0
        v_mov_b32 v5, s31
        v_add_co_u32 v4, vcc, s30, v6
        s_nop 1
        v_addc_co_u32 v5, vcc, 0, v5, vcc
        global_load_dword v154, v[4:5], off
        """)
        a.label("L_nopf")
        a("s_waitcnt lgkmcnt(0)")
        self.srd(4, P_WS, WS_BYTES)
        for r in (8, 9, 10, 11, 152): a(f"v_mov_b32 v{r}, 0")
        if not self.opt.get("notlb"):
            a(f"s_cmp_lg_u32 s{S_WAVE}, 2\ns_cbranch_scc1 L_notlb")
            if self.opt.get("sponly"): a(f"s_cmp_lg_u32 s{S_TYPE}, 2\ns_cbranch_scc1 L_notlb")
            pt = pad_touch()
            for i, p in enumerate(pt): a(f"s_mov_b32 s30, {p}\nv_writelane_b32 v9, s30, {i}")
            a(f"s_mov_b64 exec, {(1 << len(pt)) - 1}\nbuffer_load_dword v154, v9, s[4:7], 0 offen\ns_mov_b64 exec, 0x1ff\nv_lshlrev_b32 v9, 20, v2")
            a(f"global_load_dword v154, v9, s[{P_OUT}:{P_OUT+1}]\ns_mov_b64 exec, 7\nglobal_load_dword v154, v9, s[{P_BX}:{P_BX+1}]\ns_mov_b64 exec, 1")
            for p in (P_WO, P_LRE, P_LIM, P_BRE, P_BIM, P_CRE, P_CIM, P_LDT, P_DSK): a(f"global_load_dword v154, v8, s[{p}:{p+1}]")
            a("s_mov_b64 exec, -1")
            a.label("L_notlb")
    def zero_flags(self):
        a = self.a
        a(f"s_lshl_b32 s30, s2, 4\ns_add_u32 s30, s30, s{S_WAVE}\ns_cmp_lg_u32 s30, {255*16}\ns_cbranch_scc1 L_nz\ns_mov_b32 s30, {FL}\nv_mov_b32 v24, 0\nv_mov_b32 v25, 0\nv_mov_b32 v26, 0\nv_mov_b32 v27, 0")
        for i in range(FLBYTES // 1024):
            a(f"buffer_store_dwordx4 v[24:27], v3, s[4:7], s30 offen offset:{(i%4)*1024} {WT}")
            if i % 4 == 3: a("s_add_u32 s30, s30, 4096")
        a(f"""
        s_waitcnt vmcnt(0)
        v_mov_b32 v28, 1
        s_mov_b64 exec, 1
        global_store_dword v8, v28, s[{P_DBG}:{P_DBG+1}] {WT}
        s_mov_b64 exec, -1
        """)
        a.label("L_nz")
    def dbg_load(self):
        self.a(f"v_mov_b32 v152, 0\nglobal_load_dword v153, v152, s[{P_DBG}:{P_DBG+1}]")
    def dbg_verify(self):
        a = self.a; l = a.newlabel("L_dv")
        a("s_mov_b32 s33, 0")
        a.label(l)
        a(f"""
        v_readfirstlane_b32 s32, v153
        s_cmp_eq_u32 s32, 1
        s_cbranch_scc1 {l}x
        s_add_u32 s33, s33, 1
        s_cmp_gt_u32 s33, {SPIN_MAX}
        s_cbranch_scc1 {l}x
        s_sleep 8
        global_load_dword v153, v152, s[{P_DBG}:{P_DBG+1}] sc0 sc1
        s_waitcnt vmcnt(0)
        s_branch {l}
        """)
        a.label(l + "x")
        a(f"ds_write_b32 v{self.WA}, v{self.ONE} offset:{W_OK - W_BAR}")
    def wait_ok(self, T):
        self.a(f"v_mov_b32 v{T}, {W_OK}")
        self.lds_spin(T, T + 1, 1, sleep=2)

    def kv_setup(self, T, VV, first):
        a = self.a
        a(f"""
        s_lshr_b32 s30, s{S_HD}, 1
        s_mul_i32 s30, s30, 9
        s_and_b32 s31, s{S_HD}, 1
        s_lshl_b32 s31, s31, 2
        s_add_u32 s36, s30, s31                  ; f
        s_add_u32 s30, s36, s{S_LW}
        s_lshl_b32 s30, s30, 10
        s_mul_i32 s31, {first}, {2*QS*1024}
        s_add_u32 s30, s30, s31
        s_add_u32 s{S_GK}, s30, {QKP + 144*1024}
        s_cmp_eq_u32 s{S_LW}, 0
        s_cselect_b32 s{S_K4}, 0, {(QS-5)*1024}
        s_add_u32 s{S_K4}, s{S_K4}, 4096
        s_mul_i32 s30, s{S_HD}, 288
        s_mul_i32 s31, s{S_LW}, {3*VS}
        s_add_u32 s30, s30, s31
        s_mul_i32 s31, {first}, {32*VS}
        s_add_u32 s30, s30, s31
        s_add_u32 s{S_GV}, s30, {VT}
        v_mul_u32_u24 v{T}, 27, v2
        v_lshrrev_b32 v{T}, 9, v{T}
        v_mul_u32_u24 v{VV}, 19, v{T}
        v_sub_u32 v{VV}, v2, v{VV}
        v_cmp_gt_u32 vcc, 18, v{VV}
        v_cmp_gt_u32 s[58:59], 3, v{T}
        v_cmp_gt_u32 s[60:61], 2, v{T}
        v_mul_u32_u24 v{T}, {VS}, v{T}
        v_lshl_add_u32 v{VV}, v{VV}, 4, v{T}
        s_and_b64 s[58:59], s[58:59], vcc
        s_and_b64 s[60:61], s[60:61], vcc
        s_cmp_eq_u32 s{S_LW}, 2
        s_cselect_b64 s[60:61], s[60:61], s[58:59]
        s_add_u32 s30, {first}, {C0}
        s_and_b32 s30, s30, 7
        s_mul_i32 s{S_LP}, s30, {CHB}
        v_mul_u32_u24 v{VV+1}, {VROW}, v1
        v_add_u32 v{VV+1}, {10240 + 288}, v{VV+1}
        """)
    def k_part(self):
        a = self.a; l1 = a.newlabel("L_kd")
        a(f"""
        s_lshl_b32 s31, s{S_LW}, 10
        s_add_u32 s31, s31, s{S_LP}
        s_mov_b32 m0, s31
        s_add_u32 s30, s{S_GK}, s{S_K4}
        buffer_load_dwordx4 v3, s[4:7], s{S_GK} offen {LDF} lds
        s_add_u32 m0, s31, 4096
        s_cmp_ge_u32 s{S_LW}, 2
        buffer_load_dwordx4 v3, s[4:7], s30 offen {LDF} lds
        s_cbranch_scc1 {l1}
        s_add_u32 m0, s31, 8192
        s_add_u32 s30, s{S_GK}, {(QS+3)*1024}
        buffer_load_dwordx4 v3, s[4:7], s30 offen {LDF} lds
        """)
        a.label(l1)
    def v_part(self, VV, ONES, T):
        a = self.a; l2 = a.newlabel("L_vd")
        a(f"""
        s_mul_i32 s31, s{S_LW}, {3*VROW}
        s_add_u32 s31, s31, s{S_LP}
        s_add_u32 m0, s31, 10240
        s_mov_b64 exec, s[58:59]
        buffer_load_dwordx4 v{VV}, s[4:7], s{S_GV} offen {LDF} lds
        s_add_u32 m0, s31, {10240 + 12*VROW}
        s_add_u32 s30, s{S_GV}, {12*VS}
        buffer_load_dwordx4 v{VV}, s[4:7], s30 offen {LDF} lds
        s_cmp_eq_u32 s{S_LW}, 3
        s_cbranch_scc1 {l2}
        s_add_u32 m0, s31, {10240 + 24*VROW}
        s_add_u32 s30, s{S_GV}, {24*VS}
        s_mov_b64 exec, s[60:61]
        buffer_load_dwordx4 v{VV}, s[4:7], s30 offen {LDF} lds
        """)
        a.label(l2)
        a(f"s_mov_b64 exec, -1\nv_add_u32 v{T}, s{S_LP}, v{VV+1}\nds_write_b128 v{T}, v[{ONES}:{ONES+3}]")
    def kv_next(self):
        self.a(f"""
        s_add_u32 s{S_GK}, s{S_GK}, {2*QS*1024}
        s_add_u32 s{S_GV}, s{S_GV}, {32*VS}
        s_add_u32 s{S_LP}, s{S_LP}, {CHB}
        s_cmp_eq_u32 s{S_LP}, {8*CHB}
        s_cselect_b32 s{S_LP}, 0, s{S_LP}
        """)
    def kv_half(self, grp, VV, ONES, T):
        a = self.a; l = a.newlabel("L_kh")
        a(f"s_cmp_lg_u32 s{grp}, 0\ns_cbranch_scc1 {l}v")
        self.k_part()
        a(f"s_branch {l}e")
        a.label(l + "v")
        self.v_part(VV, ONES, T)
        a.label(l + "e")
        self.kv_next()
    def poll_f1(self, lab, T, poller=False):
        a = self.a
        a(f"v_mov_b32 v{T+2}, {W_F1}")
        if poller:
            a(f"s_cmp_lg_u32 s{S_WAVE}, 4\ns_cbranch_scc1 {lab}_w")
            self.wait_ok(T)
            a(f"s_mul_i32 s34, s{S_HD}, {F1STRIDE}\ns_add_u32 s34, s34, {F1}\nv_and_b32 v{T}, {NSUB-1}, v2\nv_lshlrev_b32 v{T}, 7, v{T}")
            self.poll(lab, T + 1, T, "s34", want=str(864 // NSUB), sleep=int(self.opt.get("f1sleep", 4)))
            a(f"v_mov_b32 v{T}, 1\nds_write_b32 v{T+2}, v{T}")
            a.label(lab + "_w")
        self.lds_spin(T + 2, T + 1, 1, sleep=1)

    def wait_prog(self, val, T, sleep=4):
        a = self.a; lab = a.newlabel("L_pg")
        a(f"v_and_b32 v{T}, 3, v2\nv_lshlrev_b32 v{T}, 2, v{T}\nv_add_u32 v{T}, {W_PROG}, v{T}\ns_mov_b32 s33, 0\ns_mov_b32 s30, {FIN_BAD}")
        a.label(lab)
        a(f"""
        ds_read_b32 v{T+1}, v{T}
        s_add_u32 s33, s33, 1
        s_waitcnt lgkmcnt(0)
        v_cmp_gt_u32 vcc, {val}, v{T+1}
        s_cmp_gt_u32 s33, {SPIN_MAX*8}
        s_cbranch_scc1 {lab}x
        s_cbranch_vccz {lab}x
        s_sleep {sleep}
        s_branch {lab}
        """)
        a.label(lab + "x")
    def f4(self, n, T):
        a = self.a; lab = a.newlabel("L_f4")
        a(f"s_cmp_eq_u32 s50, 0\ns_cbranch_scc1 {lab}\ns_waitcnt vmcnt({n})")
        self.flag_store([36], T)
        a.label(lab)

    def final_check(self, T, lab_bad, sleep=2):
        self.wait_prog(FIN_OK, T, sleep)
        self.a(f"v_cmp_eq_u32 vcc, s30, v{T+1}\ns_cbranch_vccnz {lab_bad}")

    def attention(self, part):
        a = self.a
        QM, QL, IDX, AK, AV, AL, T0, T1 = 4, 12, 14, 15, 16, 17, 18, 19
        KM, KL, VF, O, S0, S1 = 20, 24, 28, 44, 76, 108
        LK, LV, LL, CA, CK, PW, VV, AK2, KM2 = 140, 141, 142, 143, 144, 145, 146, 151, 152
        TQ, PAR, CH, IT, DK, FB, MC, MB_, MI = 29, 33, 43, 44, 45, 47, 48, 49, 50
        HD = S_HD
        if part == 0: self.kv_setup(T0, VV, "0")
        if part == 0: a(f"""
        s_lshr_b32 s{TQ}, s{S_IDX}, 2
        s_lshl_b32 s{TQ}, s{TQ}, 3
        s_lshl_b32 s30, s{S_LW}, 1
        s_add_u32 s{TQ}, s{TQ}, s30
        s_lshr_b32 s32, s{TQ}, 2
        s_mul_i32 s32, s32, {QS}
        s_add_u32 s32, s32, s36
        s_lshl_b32 s32, s32, 10
        s_and_b32 s30, s{TQ}, 3
        s_lshl_b32 s30, s30, 8
        s_add_u32 s32, s32, s30
        s_add_u32 s35, s32, {QKP}
        s_and_b32 s{PAR}, s{HD}, 1
        v_lshrrev_b32 v{T1}, 5, v2
        v_lshlrev_b32 v{T0}, 3, v1
        v_lshl_add_u32 v{LK}, v{T1}, 11, v{T0}
        s_lshl_b32 s30, s{PAR}, 10
        v_add_u32 v{LK}, s30, v{LK}
        s_mul_i32 s31, s{PAR}, 4092
        s_sub_u32 s31, 4096, s31
        v_add_u32 v{LL}, s31, v{T0}
        v_lshl_add_u32 v{AL}, v2, 3, s31
        v_min_u32 v{AV}, 18, v1
        v_mul_u32_u24 v{T1}, {VROW}, v{T1}
        v_lshl_add_u32 v{LV}, v{AV}, 4, v{T1}
        v_add_u32 v{LV}, {10240 + C0*CHB}, v{LV}
        v_cmp_lt_u32 vcc, 18, v1
        v_cmp_ne_u32 s[30:31], 28, v1
        s_and_b64 vcc, vcc, s[30:31]
        v_mov_b32 v{T1}, 0x100000
        v_mov_b32 v{IDX}, 0xdddd
        v_cndmask_b32 v{LV}, v{LV}, v{T1}, vcc
        v_mov_b32 v{KL}, 0x3f803f80
        v_mov_b32 v{KL+1}, 0x3f803f80
        v_mov_b32 v{KL+2}, 0x3f803f80
        v_mov_b32 v{KL+3}, 0x3f803f80
        s_lshl_b32 s30, s{S_LW}, 2
        s_add_u32 s30, s30, {W_PROG}
        v_mov_b32 v{PW}, s30
        s_mov_b32 s62, 0
        s_mov_b32 s63, -1
        s_mov_b32 s{FB}, 0
        s_mov_b32 s{MC}, 1
        s_mov_b32 s{MB_}, {C0*CHB}
        """)
        if part == 0: return
        self.stamp(4)
        self.poll_f1("L_pollF1a", S0, True)
        self.stamp(5)
        a("s_setprio 3")
        self.k_part()
        for q in range(2):
            a(f"buffer_load_dwordx2 v[{QM+4*q}:{QM+4*q+1}], v{LK}, s[4:7], s35 offen offset:{q*256} {LDF}")
            a(f"buffer_load_dwordx2 v[{QM+4*q+2}:{QM+4*q+3}], v{LK}, s[4:7], s35 offen offset:{q*256+1024} {LDF}")
        a(f"buffer_load_dword v{QL}, v{AL}, s[4:7], s35 offen {LDF}")
        self.v_part(VV, KL, T0); self.kv_next()
        self.k_part(); self.v_part(VV, KL, T0)
        a(f"v_mov_b32 v{CA}, {W_LAND}\nv_mov_b32 v{T1}, 1\ns_waitcnt vmcnt(4)")
        self.lds_add1(CA, T1)
        self.lds_spin(CA, T0, 4)
        self.stamp(6)
        a.label("L_maxpass")
        MX0, MX1 = T0, T1
        a(f"""
        v_add_u32 v{AK}, s{MB_}, v{LK}
        v_add_u32 v{AL}, s{MB_}, v{LL}
        v_mov_b32 v{QL+1}, 0
        v_mov_b32 v{MX0}, 0xff800000
        v_mov_b32 v{MX1}, 0xff800000
        s_mov_b32 s{MI}, 0
        """)
        def rdKm(t): o = (t // 4) * 10 + (t % 4) // 2; k = KM2 if t % 2 else KM; a(f"ds_read2st64_b64 v[{k}:{k+3}], v{AK2 if t % 2 else AK} offset0:{o} offset1:{o+2}")
        def rdKl(t): a(f"ds_read_b32 v{KL+2*(t%2)}, v{AL} offset:{(t//4)*5120 + (t%4)*256}")
        def rdV(m, t): a(f"ds_read_b128 v[{VF+8*(t%2)+4*m}:{VF+8*(t%2)+4*m+3}], v{AV} offset:{(t*4+m*2)*VROW}")
        def b2(N, t): a(f"v_mfma_f32_32x32x4_2b_bf16 v[{N}:{N+31}], v[{KL+2*(t%2)}:{KL+2*(t%2)+1}], v[{QL}:{QL+1}], 0")
        def mainm(N, q, t=0): k = KM2 if t % 2 else KM; a(f"v_mfma_f32_32x32x16_bf16 v[{N+16*q}:{N+16*q+15}], v[{k}:{k+3}], v[{QM+4*q}:{QM+4*q+3}], v[{N+16*q}:{N+16*q+15}]")
        def smf(n, S, t):
            o = O + 16 * (n // 2); v = VF + 8 * (t % 2) + 4 * (n % 2)
            a(f"v_smfmac_f32_32x32x32_bf16 v[{o}:{o+15}], v[{v}:{v+3}], v[{S+8*n}:{S+8*n+7}], v{IDX}")
        def E(S, lo, hi):
            for r in range(lo, hi): a(f"v_exp_f32 v{S+r}, v{S+r}")
        a.label("L_maxloop")
        rdKl(0); rdKm(0)
        a(f"""
        s_mov_b32 s30, 256
        s_and_b32 s31, s{MI}, 3
        s_cmp_eq_u32 s31, 3
        s_cselect_b32 s30, {5120-768}, s30
        s_and_b32 s31, s{MI}, 7
        s_cmp_eq_u32 s31, 7
        s_cselect_b32 s30, {CHB-5120-768}, s30
        s_add_u32 s{MI}, s{MI}, 1
        s_waitcnt lgkmcnt(0)
        """)
        b2(S0, 0)
        a(f"v_add_u32 v{AK}, s30, v{AK}\nv_add_u32 v{AL}, s30, v{AL}")
        for i in range(16): a(f"v_mov_b32 v{O+i}, 0")
        mainm(S0, 0); mainm(S0, 1)
        for i in range(16): a(f"v_mov_b32 v{O+16+i}, 0")
        for i in range(8): a(f"v_max3_f32 v{MX0}, v{S0+2*i}, v{S0+2*i+1}, v{MX0}\nv_max3_f32 v{MX1}, v{S0+16+2*i}, v{S0+16+2*i+1}, v{MX1}")
        a(f"""
        s_cmp_lt_u32 s{MI}, s{MC}
        s_cbranch_scc1 L_maxloop
        v_add_u32 v{AK}, {C0*CHB}, v{LK}
        v_add_u32 v{AL}, {C0*CHB}, v{LL}
        v_mov_b32 v{AV}, v{LV}
        v_add_u32 v{AK2}, 256, v{AK}
        """)
        rdKl(0); rdKm(0); rdKl(1); rdV(0, 0); rdV(1, 0)
        a(f"""
        v_permlane32_swap_b32 v{MX0}, v{MX1}
        s_mov_b32 s{CH}, {(-7*CHB) & 0xffffffff}
        s_mov_b32 s{IT}, 0
        v_max_f32 v{MX1}, v{MX0}, v{MX1}
        v_cvt_pk_bf16_f32 v{T0}, -v{MX1}, 0
        v_lshlrev_b32 v{T0}, 16, v{T0}
        v_sub_f32 v{T0}, -v{MX1}, v{T0}
        v_cvt_pk_bf16_f32 v{QL+1}, -v{MX1}, v{T0}
        v_mov_b32 v{CA}, {W_LAND}
        v_mov_b32 v{T1}, 1
        s_waitcnt lgkmcnt(3)
        """)
        b2(S0, 0)
        for i in range(8): a(f"v_mov_b32 v{S1+24+i}, 0")
        for i in range(4): a(f"v_mov_b32 v{VF+12+i}, 0")
        a("s_nop 5")
        mainm(S0, 0); mainm(S0, 1)
        rdKm(1)
        a("s_nop 8\ns_waitcnt lgkmcnt(0)")
        self.stamp(7); self.stamp(61)
        a.raw(".p2align 6")
        a.label("L_loop")
        for i in range(8):
            C, N = (S0, S1) if i % 2 == 0 else (S1, S0)
            E(C, 0, 2)
            smf(3, N, i + 1)
            if i == 7: a(f"v_add_u32 v{AV}, s{DK}, v{AV}")
            rdV(0, (i + 1) % 8)
            if not self.opt.get("w0"): a("s_waitcnt lgkmcnt(1)")
            E(C, 2, 6)
            b2(N, i + 1)
            rdV(1, (i + 1) % 8)
            if i == 1: a(f"ds_write_b32 v{PW}, v{CA}")
            if i == 5: a(f"ds_read_b32 v{CK}, v{CA} offset:4")
            if i == 0:
                a(f"s_cmp_eq_u32 s{IT}, {7-C0}\ns_cselect_b32 s{DK}, s{CH}, {CHB}")
            if i == 3:
                a(f"s_cmp_eq_u32 s{IT}, s{FB}\ns_cbranch_scc1 L_sig1")
                a.label("L_sig1r")
            if i == 6:
                a(f"""
                v_readfirstlane_b32 s30, v{CK}
                v_add_u32 v{AK}, s{DK}, v{AK}
                v_add_u32 v{AL}, s{DK}, v{AL}
                v_add_u32 v{AK2}, s{DK}, v{AK2}
                v_add_u32 v{CA}, 4, v{CA}
                s_cmp_lt_u32 s30, 4
                s_cbranch_scc1 L_wait
                """)
                a.label("L_waitret")
            E(C, 6, 14)
            smf(0, C, i)
            rdKl((i + 2) % 8)
            E(C, 14, 18)
            smf(1, C, i)
            rdKm((i + 2) % 8)
            E(C, 18, 22)
            mainm(N, 0, i + 1)
            E(C, 22, 26)
            smf(2, C, i)
            if i == 7: a(f"s_add_u32 s{IT}, s{IT}, 1\ns_cmp_lt_u32 s{IT}, 8")
            E(C, 26, 30)
            mainm(N, 1, i + 1)
            if self.opt.get("w0"): a(f"s_waitcnt lgkmcnt(0)")
            E(C, 30, 32)
        a("s_cbranch_scc1 L_loop")
        a("s_waitcnt lgkmcnt(0)\ns_nop 0")
        smf(3, S1, 7)
        self.stamp(8); self.stamp(62)
        SUM = T1
        a(f"s_mov_b32 s30, 0x5d800000\ns_mov_b32 s31, 0x7f7fffff\ns_mov_b64 s[16:17], 0\nv_mov_b32 v{SUM}, 0")
        for q in range(2):
            o = O + 16 * q
            a(f"v_cndmask_b32 v{o+10}, v{o+10}, v{o+12}, s[62:63]")
            for r in range(10): a(f"v_add_f32 v{SUM}, v{SUM}, |v{o+r}|")
            a(f"v_cmp_nge_f32 vcc, s30, v{o+10}\nv_rcp_f32 v{o+10}, v{o+10}\ns_or_b64 s[16:17], s[16:17], vcc")
        a(f"""
        v_cmp_nge_f32 vcc, s31, v{SUM}
        s_mul_i32 s30, s{TQ}, {OS}
        s_add_u32 s30, s30, {OW}
        s_or_b64 vcc, vcc, s[16:17]
        s_cmp_lg_u32 s{FB}, 0
        s_cbranch_scc1 L_fin
        s_cmp_lg_u64 vcc, 0
        s_cbranch_scc1 L_unsafe
        """)
        a.label("L_fin")
        a(f"""
        s_lshl_b32 s31, s{HD}, 10
        s_add_u32 s31, s31, s30
        s_lshl_b32 s32, s{HD}, 7
        s_add_u32 s32, s32, s30
        s_add_u32 s32, s32, 32768
        v_lshlrev_b32 v{T0}, 2, v2
        """)
        for q in range(2):
            o = O + 16 * q; d = S0 + 8 * q
            for r in range(10): a(f"v_mul_f32 v{o+r}, v{o+r}, v{o+10}")
            for r in range(5): a(f"v_cvt_pk_bf16_f32 v{d+r}, v{o+2*r}, v{o+2*r+1}")
            a(f"""
            buffer_store_dwordx4 v[{d}:{d+3}], v3, s[4:7], s31 offen {WT}
            s_mov_b32 exec_hi, 0
            buffer_store_dword v{d+4}, v{T0}, s[4:7], s32 offen {WT}
            s_mov_b32 exec_hi, -1
            s_add_u32 s31, s31, {OS}
            s_add_u32 s32, s32, {OS}
            """)
        a(f"""
        v_mov_b32 v{T1}, {FIN_OK}
        s_lshl_b32 s36, s{TQ}, 5
        s_add_u32 s36, s36, s{HD}
        s_lshl_b32 s36, s36, 2
        s_add_u32 s36, s36, {F4}
        s_add_u32 s35, s36, 128
        s_waitcnt vmcnt(0)
        """)
        self.flag_store([36, 35], AK)
        a(f"ds_write_b32 v{PW}, v{T1}")
        self.stamp(9)
        a(f"s_cmp_lg_u32 s{FB}, 0\ns_cbranch_scc1 L_redo_end")
        self.final_check(AK, "L_redo", 4)
        a("s_branch L_exit")
        a.label("L_sig1")
        a("s_waitcnt vmcnt(0)")
        self.lds_add1(CA, T1, 4)
        a("s_waitcnt lgkmcnt(0)\ns_branch L_sig1r")
        a.label("L_wait")
        self.lds_spin(CA, CK, 4)
        a("s_branch L_waitret")
        a.label("L_unsafe")
        a(f"s_mov_b32 s{FB}, 100\nv_mov_b32 v{T1}, {FIN_BAD}\nds_write_b32 v{PW}, v{T1}")
        a.label("L_redo")
        a(f"""
        s_waitcnt lgkmcnt(0)
        s_barrier
        s_barrier
        s_cmp_eq_u32 s{FB}, 0
        s_cbranch_scc1 L_redo_end
        s_mov_b32 s{MC}, 64
        s_mov_b32 s{MB_}, 0
        v_mov_b32 v{PW}, {LDS_W + 128}
        s_branch L_maxpass
        """)
        a.label("L_redo_end")
        a("s_waitcnt lgkmcnt(0)\ns_barrier\ns_branch L_exit")

    def helper_kv(self, first, n):
        a = self.a
        VV, ONES, T, ONE, WB_ = 22, 16, 24, 157, 20
        lab = a.newlabel("L_hkv")
        a(f"v_mov_b32 v{ONE}, 1\nv_mov_b32 v{WB_}, {LDS_W}")
        for i in range(4): a(f"v_mov_b32 v{ONES+i}, 0x3f803f80")
        self.kv_setup(T, VV, str(first))
        self.lds_spin(WB_, T, 4, sleep=2)
        self.k_part(); self.v_part(VV, ONES, T); self.kv_next()
        a(f"s_mov_b32 s35, 0\nv_mov_b32 v{WB_+1}, {W_LAND + 4*first}")
        a.label(lab)
        self.k_part(); self.v_part(VV, ONES, T); self.kv_next()
        a("s_waitcnt vmcnt(4)")
        self.lds_add1(WB_ + 1, ONE)
        a(f"v_add_u32 v{WB_+1}, 4, v{WB_+1}\ns_add_u32 s35, s35, 1\ns_cmp_lt_u32 s35, {n-1}\ns_cbranch_scc1 {lab}\ns_waitcnt vmcnt(0)")
        self.lds_add1(WB_ + 1, ONE)
    def helper(self):
        a = self.a
        VV, ONES, T, ONE, WB_, PB = 22, 16, 24, 157, 20, 12
        pc = lambda c: W_LAND + 4 * (c + 1)
        self.stamp(4)
        if "hprio" in self.opt: a(f"s_setprio {self.opt['hprio']}")
        a(f"v_mov_b32 v{self.WA}, {W_BAR}\nv_mov_b32 v{ONE}, 1\nv_mov_b32 v155, 0")
        a(f"v_mov_b32 v{WB_}, {LDS_W}\nv_mov_b32 v{PB}, 0\nv_mov_b32 v{PB+1}, 0")
        for i in range(4): a(f"v_mov_b32 v{ONES+i}, 0x3f803f80")
        if self.opt.get("late"): self.helper_kv(4, 4)
        else: self.helper_kv(2, 6)
        self.stamp(5)
        self.p3_ids()
        a(f"s_mov_b32 s{S_HALF}, 0")
        self.lds_spin(WB_, T, 4, W_P2 - LDS_W, sleep=16)
        a.label("L_hpf")
        a(f"s_cmp_ge_u32 s{S_IDX}, 30\ns_cbranch_scc1 L_hfin\ns_cmp_ge_u32 s{S_IDX}, 18\ns_cbranch_scc1 L_hpfa")
        self.make_vx(PB, 2, "4", "1", "16", "8", T)
        self.srd(12, P_CRE, 576 * 1152)
        a(f"""
        s_lshl_b32 s30, s{S_P3NB}, 6
        s_lshl_b32 s31, s{S_LW}, 4
        s_add_u32 s30, s30, s31
        s_mul_i32 s{S_CB}, s30, 1152
        s_mov_b32 s40, 0
        """)
        def cload(first, upto, lds0):
            lab = a.newlabel("L_cl"); ldsadj = lds0 - first * 8192
            a(f"s_mov_b32 s40, {first}")
            a.label(lab)
            a(f"""
            s_lshl_b32 s30, s40, 13
            s_add_u32 s30, s30, {ldsadj & 0xffffffff}
            s_lshl_b32 s31, s{S_LW}, 11
            s_add_u32 m0, s30, s31
            s_cmp_lt_u32 s40, 9
            s_cselect_b32 s12, s{P_CRE}, s{P_CIM}
            s_cselect_b32 s13, s{P_CRE+1}, s{P_CIM+1}
            s_cselect_b32 s31, 0, 9
            s_and_b32 s13, s13, 0xffff
            s_sub_u32 s31, s40, s31
            s_lshl_b32 s31, s31, 7
            s_add_u32 s32, s31, s{S_CB}
            buffer_load_dwordx4 v{PB}, s[12:15], s32 offen lds
            buffer_load_dwordx4 v{PB+1}, s[12:15], s32 offen offset:1024 lds
            s_add_u32 s40, s40, 1
            s_cmp_lt_u32 s40, {upto}
            s_cbranch_scc1 {lab}
            """)
        self.wait_prog(pc(2), T, 16); cload(0, 7, TSCR)
        a(f"s_cmp_lg_u32 s{S_HALF}, 0\ns_cbranch_scc1 L_hnp")
        self.b3_pre(158, 1)
        a.label("L_hnp")
        self.wait_prog(pc(5), T, 16); cload(9, 16, 0)
        a(f"s_add_u32 s32, s{S_CB}, {7*128}")
        for j in range(2):
            a(f"buffer_load_dwordx4 v[124:127], v{PB}, s[12:15], s32 offen offset:{j*128}\nbuffer_load_dwordx4 v[124:127], v{PB+1}, s[12:15], s32 offen offset:{1024+j*128}")
        self.wait_prog(pc(6), T, 8); cload(7, 9, 57344)
        a("s_branch L_hpfd")
        a.label("L_hpfa")
        self.a3_setup(PB, T)
        self.wait_prog(pc(2), T, 16); self.a3_issue(PB, 4)
        self.wait_prog(pc(5), T, 16); self.a3_issue(PB, 5)
        a.label("L_hpfd")
        a("s_waitcnt vmcnt(0)")
        self.lds_add1(WB_, ONE, W_G2 - LDS_W)
        self.stamp(6)
        a.label("L_hfin")
        a(f"s_cmp_lg_u32 s{S_HALF}, 0\ns_cbranch_scc1 L_hok")
        self.wait_prog(W_LAND + 28, T, sleep=32)
        self.final_check(T, "L_hredo", 4)
        a.label("L_hok")
        a(f"s_cmp_ge_u32 s{S_IDX}, 18\ns_cbranch_scc1 L_hopf")
        cload(16, 18, 73728)
        a(f"s_lshl_b32 s34, s{S_HALF}, 2\ns_add_u32 s34, s34, 4\ns_setprio 3\ns_branch L_b3main")
        a.label("L_hopf")
        if self.opt.get("opf"):
            a(f"""
            s_cmp_ge_u32 s{S_IDX}, 30
            s_cbranch_scc1 L_exit
            s_lshl_b32 s30, s{S_LW}, 2
            s_add_u32 s30, s30, {W_F4}
            v_mov_b32 v{T+2}, s30
            s_mul_i32 s34, s{S_P3T}, {OS}
            s_sub_u32 s31, s{S_P3NB}, 9
            s_lshl_b32 s31, s31, 12
            s_add_u32 s34, s34, s31
            s_add_u32 s34, s34, {OW + 12*1024}
            """)
            self.lds_spin(T + 2, T, 1)
            for n in range(4): a(f"buffer_load_dwordx4 v[32:35], v3, s[4:7], s34 offen offset:{n*1024}")
        a("s_branch L_exit")
        a.label("L_hredo")
        a(f"s_mov_b32 s{S_HALF}, 1\ns_waitcnt vmcnt(0) lgkmcnt(0)\ns_barrier")
        self.kv_setup(T, VV, "0")
        a("s_mov_b32 s35, 0")
        a.label("L_hredo1")
        self.k_part(); self.v_part(VV, ONES, T); self.kv_next()
        a("s_add_u32 s35, s35, 1\ns_cmp_lt_u32 s35, 8\ns_cbranch_scc1 L_hredo1\ns_waitcnt vmcnt(0) lgkmcnt(0)\ns_barrier\ns_barrier\ns_branch L_hpf")

    WA, ONE, BC = 156, 157, 47
    def arrive(self, T):
        a = self.a
        a(f"s_add_u32 s{self.BC}, s{self.BC}, 4")
        self.lds_add1(self.WA, self.ONE)
    def bar(self, T):
        self.arrive(T)
        self.lds_spin(self.WA, T, f"s{self.BC}")
    def gemm_cons(self, name, N, T, CW, rl, mfl, nfree, hooks={}):
        a = self.a
        self.lds_spin(CW, T, 4, sleep=1)
        a(f"ds_read_b32 v{T}, v{CW} offset:4")
        for x in rl(0): a(x)
        for s in range(N - 1):
            mf = mfl(s); p = f"{name}_{s}"
            a("s_waitcnt lgkmcnt(0)")
            a(f"v_readfirstlane_b32 s32, v{T}")
            a(mf[0])
            self.stampx(16)
            if s < nfree: self.lds_add1(CW, self.ONE, 256 + 4 * s)
            a(f"s_cmp_lt_u32 s32, 4\ns_cbranch_scc1 {p}s")
            a.label(p + "r")
            self.stubs.append((p, CW, T, 4 * (s + 1)))
            oth = rl(s + 1) + ([f"ds_read_b32 v{T}, v{CW} offset:{4*(s+2)}"] if s + 2 < N else [])
            ilv(a, mf[1:8], oth)
            if s in hooks: hooks[s]()
        a("s_waitcnt lgkmcnt(0)")
        if N - 1 < nfree: self.lds_add1(CW, self.ONE, 256 + 4 * (N - 1))
        for m in mfl(N - 1): a(m)
    def emit_stubs(self):
        a = self.a
        for p, CW, T, off in self.stubs:
            a.label(p + "s")
            self.lds_spin(CW, T, 4, off, sleep=int(self.opt.get('cslp', 0)))
            a(f"s_branch {p}r")
    def gemm_load(self, name, nslot, CB, ONE, T, issue):
        a = self.a
        a("s_mov_b32 s41, 0")
        if self.opt.get("early"): a(f"s_cmp_lg_u32 s{S_TYPE}, 2\ns_cbranch_scc1 {name}e")
        a.label(name + "w")
        a(f"s_cmp_lt_u32 s40, {nslot}\ns_cbranch_scc1 {name}")
        self.lds_spin(T + 1, T, 4)
        a.label(name)
        if self.opt.get("pause"):
            a(f"v_mov_b32 v{T+2}, {LDS_W}\nds_read_b32 v{T+3}, v{T+2} offset:{W_F1 - LDS_W}\ns_waitcnt lgkmcnt(0)\nv_readfirstlane_b32 s32, v{T+3}\ns_cmp_eq_u32 s32, 0\ns_cbranch_scc1 {name}p\ns_cmp_lt_u32 s{S_WAVE}, 8\ns_cbranch_scc1 {name}p")
            self.lds_spin(T + 2, T + 3, 4, sleep=1)
            a.label(name + "p")
        issue()
        a.label(name + "e")
        a(f"""
        s_cmp_lt_u32 s40, s45
        s_cselect_b32 s44, 2, 1
        s_add_u32 s44, s44, s40
        s_lshl_b32 s30, s44, 2
        s_add_u32 s30, s30, s43
        s_add_u32 s30, s30, {256 - 4*nslot}
        v_mov_b32 v{T+1}, s30
        ds_read_b32 v{T}, v{T+1}
        s_cmp_eq_u32 s41, 0
        s_cbranch_scc1 {name}n
        s_waitcnt vmcnt(6)
        """)
        self.lds_add1(CB, ONE)
        a.label(name + "n")
        a(f"""
        s_lshl_b32 s30, s40, 2
        s_add_u32 s30, s30, s43
        v_mov_b32 v{CB}, s30
        s_mov_b32 s40, s44
        s_mov_b32 s41, 1
        s_waitcnt lgkmcnt(0)
        v_readfirstlane_b32 s32, v{T}
        s_cmp_lt_u32 s40, s46
        s_cselect_b32 s32, 4, s32
        s_cmp_ge_u32 s40, s42
        s_cselect_b32 s32, 0, s32
        s_cmp_ge_u32 s32, 4
        s_cbranch_scc1 {name}
        s_waitcnt vmcnt(0)
        """)
        self.lds_add1(CB, ONE)
        a(f"s_mov_b32 s41, 0\ns_cmp_lt_u32 s40, s42\ns_cbranch_scc1 {name}w")
    def b1_loader(self):
        a = self.a
        VX, VB, CW, ONE, T = 60, 64, 66, 67, 68
        XB, WB, SL, NS = 16, 17, 18, 19
        self.make_vx(VX, 4, "16", "1", "8", "4", T)
        self.make_vx(VB, 2, "4", "1", "16", "8", T)
        self.srd(8, P_BX, 2048 * 1152)
        a(f"""
        s_cmp_lt_u32 s{S_LW}, 2
        s_cselect_b32 s12, s{P_BRE}, s{P_BIM}
        s_cselect_b32 s13, s{P_BRE+1}, s{P_BIM+1}
        s_and_b32 s13, s13, 0xffff
        s_mov_b32 s14, {576*1152}
        s_mov_b32 s15, 0x20000
        s_lshl_b32 s30, s{S_MB}, 7
        s_lshl_b32 s31, s{S_LW}, 5
        s_add_u32 s30, s30, s31
        s_mul_i32 s{XB}, s30, 1152
        s_cmp_eq_u32 s{S_TYPE}, 2
        s_cselect_b32 s30, s{S_CHA}, s{S_CHB}
        s_cselect_b32 s{NS}, 18, 9
        s_lshl_b32 s30, s30, 5
        s_and_b32 s31, s{S_LW}, 1
        s_lshl_b32 s31, s31, 4
        s_add_u32 s30, s30, s31
        s_mul_i32 s{WB}, s30, 1152
        v_mov_b32 v{CW}, {W_FULL}
        v_mov_b32 v{ONE}, 1
        s_lshr_b32 s27, s{S_WAVE}, 3
        """)
        def issue():
            a(f"""
            s_add_u32 s31, s40, s28
            s_sub_u32 s30, s31, 9
            s_cmp_ge_u32 s31, 9
            s_cselect_b32 s31, s30, s31
            s_lshl_b32 s31, s31, 7
            {"s_and_b32 s%d, s40, 3" % SL if NS1 == 4 else "s_mul_i32 s30, s40, 43" + chr(10) + "s_lshr_b32 s30, s30, 7" + chr(10) + "s_mul_i32 s30, s30, 3" + chr(10) + "s_sub_u32 s%d, s40, s30" % SL}
            s_mul_i32 s{SL}, s{SL}, {BSLOT}
            s_add_u32 s{SL}, s{SL}, {B1BASE}
            s_lshl_b32 s30, s{S_LW}, 12
            s_add_u32 m0, s30, s{SL}
            s_add_u32 s32, s31, s{XB}
            """)
            for n in range(4): a(f"buffer_load_dwordx4 v{VX+n}, s[8:11], s32 offen offset:{n*1024} lds")
            a(f"s_lshl_b32 s30, s{S_LW}, 11\ns_add_u32 s30, s30, s{SL}\ns_add_u32 m0, s30, 16384\ns_add_u32 s32, s31, s{WB}")
            for n in range(2): a(f"buffer_load_dwordx4 v{VB+n}, s[12:15], s32 offen offset:{n*1024} lds")
        def run():
            a(f"s_mov_b32 s43, {W_FULL}\ns_mov_b32 s45, {self.opt.get('ashare', 6)}")
            a(f"s_cmp_eq_u32 s{S_TYPE}, 2\ns_cselect_b32 s46, {NS1}, {0 if self.opt.get('sig1', '1') == '1' else NS1}")
            a.label("L_l1job")
            if self.opt.get("late"):
                a(f"s_cmp_lg_u32 s{NS}, 9\ns_cbranch_scc1 L_l1go\ns_cmp_lt_u32 s{S_WAVE}, 8\ns_cbranch_scc1 L_p1_fin\ns_mov_b32 s45, 0")
                self.helper_kv(2, 2)
                a.label("L_l1go")
            a(f"s_xor_b32 s40, s27, 1\ns_cmp_eq_u32 s27, 0\ns_cselect_b32 s42, {self.opt.get('ashare', 6)}, 9")
            self.gemm_load("L_l1", NS1, CW, ONE, T, issue)
            a(f"""
            s_add_u32 s30, s43, {256 + 32}
            v_mov_b32 v{T+1}, s30
            s_cmp_lt_u32 s{S_WAVE}, 8
            s_cbranch_scc1 L_p1_fin
            s_cmp_eq_u32 s{NS}, 9
            s_cbranch_scc1 L_l1end
            s_mov_b32 s45, 0
            s_mov_b32 s{NS}, 9
            s_sub_u32 s30, s{S_CHA}, s{S_CHB}
            s_mul_i32 s30, s30, {32*1152}
            s_sub_u32 s{WB}, s{WB}, s30
            s_add_u32 s43, s43, 36
            """)
            self.lds_spin(T + 1, T, 4, sleep=1)
            a("s_branch L_l1job")
            a.label("L_l1end")
            self.lds_spin(T + 1, T, 4, sleep=1)
        self.b1_run = run; self.b1_issue = issue

    def aux(self):
        a = self.a
        AX, AW, FX, ACC, T = 4, 8, 16, 80, 148
        SS, SLOT, DL, WM, WN = 40, 41, 42, 43, 44
        a.label("L_aux")
        a(f"""
        s_setprio 3
        s_mov_b32 s{S_HALF}, 0
        s_mov_b32 s{S_CH}, s{S_CHA}
        s_mov_b32 s62, 0
        s_mov_b32 s63, -1
        """)
        self.aux_start()
        a(f"s_cmp_eq_u32 s{S_TYPE}, 2\ns_cbranch_scc1 L_aux_sp")
        self.lam_early(f"s{S_CHB}")
        if not self.opt.get("nowarmx"):
            self.srd(12, P_BX, 2048 * 1152)
            a(f"""
            s_and_b32 s30, s{S_XCD}, 3
            s_mul_i32 s30, s30, 589824
            s_lshr_b32 s31, s{S_XCD}, 2
            s_mul_i32 s31, s31, 28
            s_add_u32 s31, s31, s{S_IDX}
            s_lshl_b32 s31, s31, 2
            s_add_u32 s31, s31, s{S_WAVE}
            s_mul_i32 s31, s31, 2688
            s_add_u32 s30, s30, s31
            v_lshlrev_b32 v16, 6, v2
            s_mov_b32 exec_hi, 0x3ff
            buffer_load_dword v154, v16, s[12:15], s30 offen
            s_mov_b32 exec_hi, -1
            """)
        a(f"""
        s_cmp_lt_u32 s{S_LW}, 2
        s_cselect_b32 s12, s{P_BRE}, s{P_BIM}
        s_cselect_b32 s13, s{P_BRE+1}, s{P_BIM+1}
        s_and_b32 s13, s13, 0xffff
        s_mov_b32 s14, {576*1152}
        s_mov_b32 s15, 0x20000
        s_lshl_b32 s30, s{S_IDX}, 1
        s_and_b32 s31, s{S_LW}, 1
        s_add_u32 s30, s30, s31
        s_mul_i32 s30, s30, 5952
        s_lshr_b32 s31, s{S_XCD}, 2
        s_mul_i32 s31, s31, {288*1152}
        s_add_u32 s45, s30, s31
        s_add_u32 s46, s45, 4096
        v_lshlrev_b32 v155, 6, v2
        """)
        if self.opt.get("wbat") == "0": a("buffer_load_dword v154, v155, s[12:15], s45 offen\ns_mov_b32 exec_hi, 0\nbuffer_load_dword v154, v155, s[12:15], s46 offen\ns_mov_b32 exec_hi, -1")
        a(f"s_lshr_b32 s{WM}, s{S_WAVE}, 1\ns_and_b32 s{WN}, s{S_WAVE}, 1\ns_lshl_b32 s30, s{WM}, 13")
        self.swz(AX, T, "s30")
        a(f"""
        v_bfe_u32 v{T+2}, v2, 2, 2
        v_lshl_add_u32 v{T+3}, v{T+1}, 3, v{T+2}
        v_lshlrev_b32 v{T+3}, 8, v{T+3}
        v_bfe_u32 v{T+4}, v2, 4, 1
        v_lshl_add_u32 v{T+3}, v{T+4}, 5, v{T+3}
        v_and_b32 v{T+4}, 3, v2
        v_lshl_add_u32 v{T+3}, v{T+4}, 3, v{T+3}
        v_add_u32 v{T+3}, 16384, v{T+3}
        s_lshl_b32 s30, s{WN}, 1
        v_xor_b32 v{T+4}, s30, v{T+2}
        v_lshl_add_u32 v{AW}, v{T+4}, 6, v{T+3}
        v_xor_b32 v{AW+1}, 64, v{AW}
        """)
        for i in range(64): a(f"v_mov_b32 v{ACC+i}, 0")
        a(f"s_mov_b32 s{SS}, 0\ns_mov_b32 s{SLOT}, 0\ns_barrier")
        self.stampx(16, True); self.stamp(61)
        def nextslot(stride, total):
            a(f"""
            s_add_u32 s30, s{SLOT}, {stride}
            s_cmp_eq_u32 s30, {total}
            s_cselect_b32 s30, 0, s30
            s_sub_u32 s{DL}, s30, s{SLOT}
            s_mov_b32 s{SLOT}, s30
            s_add_u32 s{SS}, s{SS}, 1
            """)
        def reads(s):
            l = [f"ds_read_b128 v[{FX+s*16+mt*4}:{FX+s*16+mt*4+3}], v{AX+s} offset:{mt*4096}" for mt in range(2)]
            for nt in range(2):
                for hf in range(2):
                    r = FX + s * 16 + 8 + nt * 4 + hf * 2
                    l.append(f"ds_read_b64_tr_b16 v[{r}:{r+1}], v{AW+nt} offset:{s*4096 + hf*1024}")
            return l
        for x in reads(0) + reads(1): a(x)
        a(f"s_cmp_eq_u32 s{S_TYPE}, 1\ns_cbranch_scc1 L_a1v")
        def a1loop(vtype, lab):
            a.label(lab)
            for s in range(4):
                a("s_waitcnt lgkmcnt(6)")
                if s == 2:
                    a(f"s_cmp_lt_u32 s{SS}, 9\ns_cbranch_scc1 {lab}b\ns_waitcnt lgkmcnt(0)")
                    a.label(lab + "b")
                    a("s_barrier")
                    self.stampx(16)
                mf = []
                for mt in range(2):
                    for nt in range(2):
                        d = ACC + (mt * 2 + nt) * 16
                        x = f"v[{FX+s*16+mt*4}:{FX+s*16+mt*4+3}]"; w = f"v[{FX+s*16+8+nt*4}:{FX+s*16+8+nt*4+3}]"
                        A, B = (x, w) if vtype else (w, x)
                        mf.append(f"v_mfma_f32_32x32x16_bf16 v[{d}:{d+15}], {A}, {B}, v[{d}:{d+15}]")
                ilv(a, mf, reads((s + 2) % 4))
                if s == 0: nextslot(32768, 163840)
                if s == 3 and not self.opt.get("warmb_old") and self.opt.get("wbat") != "0":
                    a(f"s_cmp_lg_u32 s{SS}, {self.opt.get('wbat', 2)}\ns_cbranch_scc1 {lab}w")
                    a("buffer_load_dword v154, v155, s[12:15], s45 offen\ns_mov_b32 exec_hi, 0\nbuffer_load_dword v154, v155, s[12:15], s46 offen\ns_mov_b32 exec_hi, -1\ns_nop 3")
                    a.label(lab + "w")
                if s == 1:
                    for r in (AX, AX + 1, AX + 2, AX + 3, AW, AW + 1): a(f"v_add_u32 v{r}, s{DL}, v{r}")
            a(f"s_cmp_lt_u32 s{SS}, 9\ns_cbranch_scc1 {lab}")
        a1loop(False, "L_a1qk")
        self.stamp(1); self.stamp(62)
        self.dbg_load()
        a(f"""
        s_lshl_b32 s30, s{S_NB}, 5
        s_lshl_b32 s31, s{WN}, 4
        s_add_u32 s30, s30, s31
        s_mul_i32 s31, s{S_MB}, {QS}
        s_add_u32 s31, s31, s30
        s_lshl_b32 s31, s31, 10
        s_lshl_b32 s32, s{WM}, 9
        s_add_u32 s31, s31, s32
        s_add_u32 s31, s31, {QKP}
        v_lshlrev_b32 v{T+2}, 4, v1
        v_lshl_add_u32 v{T+2}, v{T+1}, 10, v{T+2}
        s_mov_b32 s32, {QSCALE}
        s_cmp_ge_u32 s30, 144
        s_cselect_b32 s32, 1.0, s32
        s_mov_b32 s33, s32
        s_waitcnt lgkmcnt(0)
        """)
        for nt in range(2):
            for g in range(4):
                o = FX + (nt * 4 + g) * 4
                for mt in range(2):
                    d = ACC + (mt * 2 + nt) * 16 + 4 * g
                    a(f"v_pk_mul_f32 v[{d}:{d+1}], v[{d}:{d+1}], s[32:33]\nv_pk_mul_f32 v[{d+2}:{d+3}], v[{d+2}:{d+3}], s[32:33]")
                for mt in range(2):
                    d = ACC + (mt * 2 + nt) * 16 + 4 * g
                    a(f"v_cvt_pk_bf16_f32 v{o+2*mt}, v{d}, v{d+1}\nv_cvt_pk_bf16_f32 v{o+2*mt+1}, v{d+2}, v{d+3}")
                a(f"buffer_store_dwordx4 v[{o}:{o+3}], v{T+2}, s[4:7], s31 offen offset:{(g%2)*2048} {WT}")
                if g % 2 == 1: a("s_add_u32 s31, s31, 4096")
        a("s_branch L_a1done")
        a1loop(True, "L_a1v")
        self.stamp(1); self.stamp(62)
        self.dbg_load()
        a(f"""
        s_sub_u32 s30, s{S_NB}, 9
        s_lshl_b32 s30, s30, 7
        s_lshl_b32 s31, s{WN}, 6
        s_add_u32 s30, s30, s31
        s_lshl_b32 s31, s{S_MB}, 4
        s_lshl_b32 s32, s{WM}, 3
        s_add_u32 s31, s31, s32
        s_mul_i32 s31, s31, {VS}
        s_lshl_b32 s32, s30, 4
        s_add_u32 s31, s31, s32
        s_add_u32 s31, s31, {VT}
        v_mul_u32_u24 v{T+2}, {VS}, v{T+1}
        v_lshl_add_u32 v{T+2}, v1, 4, v{T+2}
        s_waitcnt lgkmcnt(0)
        s_cmp_ge_u32 s30, 576
        s_cbranch_scc1 L_a1done
        """)
        for mt in range(2):
            for m in range(2):
                for nt in range(2):
                    d = ACC + (mt * 2 + nt) * 16 + 8 * m
                    for r in range(4): a(f"v_cvt_pk_bf16_f32 v{d+r}, v{d+2*r}, v{d+2*r+1}")
                    a(f"buffer_store_dwordx4 v[{d}:{d+3}], v{T+2}, s[4:7], s31 offen offset:{nt*512} {WT}")
                a(f"s_add_u32 s31, s31, {2*VS}")
        a.label("L_a1done")
        self.stamp(2)
        if self.opt.get("drain1"): a("s_waitcnt vmcnt(0)"); self.stamp(7)
        a(f"s_mov_b32 s{S_HALF}, 1\ns_mov_b32 s{S_CH}, s{S_CHB}\ns_branch L_b1pre")
        a.label("L_aux_sp")
        a("s_barrier")
        self.zero_flags()
        self.lam_early(f"s{S_CHA}")
        a(f"""
        s_lshl_b32 s30, s{S_CHB}, 6
        v_lshl_add_u32 v23, v1, 1, s30
        global_load_ushort v166, v23, s[{P_LRE}:{P_LRE+1}]
        global_load_ushort v24, v23, s[{P_LIM}:{P_LIM+1}]
        global_load_ushort v154, v23, s[{P_LDT}:{P_LDT+1}]
        s_waitcnt vmcnt(0)
        v_lshl_or_b32 v166, v24, 16, v166
        """)
        AB, BF, WA, ONE, AC1, CW, RAW, AX2, AB2 = 8, 16, self.WA, self.ONE, 112, 155, 164, 144, 148
        T = 158; BC = self.BC
        PA = [164, 165, 12, 13, 14, 15]
        a.label("L_b1pre")
        for i in range(2): a(f"v_mov_b32 v{164+i}, v{10+i}")
        a(f"s_mov_b32 s{BC}, 0\nv_mov_b32 v{WA}, {W_BAR}\nv_mov_b32 v{ONE}, 1\nv_mov_b32 v{CW}, {W_FULL}\ns_lshl_b32 s48, s{S_LW}, 12\ns_lshl_b32 s49, s{S_LW}, 11")
        if self.opt.get("iss"): self.lds_add1(WA, ONE, W_ISS - W_BAR)
        self.swz(AB, T, B1BASE + 16384)
        a(f"s_sub_u32 s30, s48, 16384")
        for s in range(4): a(f"v_add_u32 v{AX+s}, s30, v{AB+s}")
        def publish():
            a(f"""
            s_cmp_eq_u32 s{S_TYPE}, 2
            s_cbranch_scc1 L_pubx
            s_lshl_b32 s30, s{S_NB}, 7
            s_add_u32 s31, s30, 128
            s_cmp_eq_u32 s{S_TYPE}, 1
            s_cselect_b32 s32, 1152, 0
            v_mul_u32_u24 v{T+2}, 18, v2
            v_add_u32 v{T+2}, s32, v{T+2}
            v_add_u32 v{T+3}, 18, v{T+2}
            v_max_u32 v{T+2}, s30, v{T+2}
            v_min_u32 v{T+3}, s31, v{T+3}
            v_min_u32 v{T+3}, 0x6c0, v{T+3}
            v_cmp_lt_u32 vcc, v{T+2}, v{T+3}
            v_sub_u32 v{T+2}, v{T+3}, v{T+2}
            v_mul_u32_u24 v{T+3}, {F1STRIDE}, v1
            s_and_b32 s31, s{S_MB}, {NSUB-1}
            s_lshl_b32 s31, s31, 7
            s_add_u32 s31, s31, {F1}
            """)
            a(f"s_waitcnt vmcnt(0)")
            self.dbg_verify()
            self.stamp(9)
            a(f"""
            s_mov_b64 exec, 1
            ds_add_rtn_u32 v{T+1}, v{WA}, v{ONE} offset:4
            s_mov_b64 exec, -1
            s_waitcnt lgkmcnt(0)
            v_readfirstlane_b32 s35, v{T+1}
            s_cmp_lg_u32 s35, 3
            s_cbranch_scc1 L_pubx
            s_mov_b64 exec, vcc
            buffer_atomic_add v{T+2}, v{T+3}, s[4:7], s31 offen sc1
            s_mov_b64 exec, -1
            """)
            if self.opt.get("rt"): self.stamp(53, True); a("s_waitcnt vmcnt(0)"); self.stamp(54, True)
            a.label("L_pubx")
        a.label("L_b1")
        for s in range(4): a(f"v_add_u32 v{AB2+s}, {2*BSLOT}, v{AB+s}\nv_add_u32 v{AX2+s}, {2*BSLOT}, v{AX+s}")
        PUB = int(self.opt.get("pubat", -1))
        if PUB < 0: publish()
        def rl(st):
            l = []; ax, ab = (AX, AB) if st % NS1 < 2 else (AX2, AB2); off = ((st % NS1) % 2) * BSLOT
            for s in range(4):
                b = BF + (st % 2) * 48 + s * 12
                l.append(f"ds_read_b128 v[{b}:{b+3}], v{ax+s} offset:{off}")
                for nt in range(2): l.append(f"ds_read_b128 v[{b+4+nt*4}:{b+7+nt*4}], v{ab+s} offset:{off + nt*4096}")
            return l
        def mfl(st):
            l = []
            for s in range(4):
                b = BF + (st % 2) * 48 + s * 12
                for nt in range(2):
                    d = AC1 + nt * 16; c = "0" if st == 0 and s == 0 else f"v[{d}:{d+15}]"
                    l.append(f"v_mfma_f32_32x32x16_bf16 v[{d}:{d+15}], v[{b}:{b+3}], v[{b+4+nt*4}:{b+7+nt*4}], {c}")
            return l
        def sp_hook():
            a(f"s_add_u32 s30, s{S_TYPE}, s{S_HALF}\ns_cmp_lg_u32 s30, 3\ns_cbranch_scc1 L_sph")
            a(f"s_cmp_lg_u32 s{S_WAVE}, 3\ns_cbranch_scc1 L_sph")
            self.f2flag(S_CHA, T + 2)
            a.label("L_sph")
        def h5():
            a(f"s_cmp_lg_u32 s{S_HALF}, 0\ns_cbranch_scc1 L_h5")
            self.dbg_load()
            a.label("L_h5")
        def h7():
            a(f"s_cmp_lg_u32 s{S_HALF}, 0\ns_cbranch_scc1 L_h7\ns_waitcnt vmcnt(0)")
            self.dbg_verify()
            self.stamp(1)
            a.label("L_h7")
        self.gemm_cons("L_g1", 9, T, CW, rl, mfl, 9, {3: sp_hook, 5: h5, 7: h7, PUB: publish})
        a(f"v_add_u32 v{CW}, 36, v{CW}\ns_nop 4")
        pass
        self.stamp(3)
        for i, r in enumerate((LR, LI, CR, CI, MUR, MUI)): a(f"v_mov_b32 v{r}, v{PA[i]}")
        for t in range(16):
            u, w, d = AC1 + t, AC1 + 16 + t, BS + 2 * t
            a(f"""
            v_mul_f32 v{d}, v{CR}, v{u}
            v_mul_f32 v{d+1}, v{CR}, v{w}
            v_fma_f32 v{d}, -v{CI}, v{w}, v{d}
            v_fma_f32 v{d+1}, v{CI}, v{u}, v{d+1}
            """)
            if t >= 1:
                g0 = BS if t == 1 else T + 2 + 2 * (t % 2); g1 = T + 2 + 2 * ((t + 1) % 2)
                self.cmac(g1, LR, g0, d)
        GR = T + 2; TT = T + 4
        a(f"""
        s_lshl_b32 s31, s{S_WAVE}, 9
        s_add_u32 s30, s31, {LDS_SCR}
        v_lshl_add_u32 v{TT}, v2, 3, s30
        ds_write_b64 v{TT}, v[{GR}:{GR+1}]
        v_lshlrev_b32 v{TT+1}, 3, v2
        v_add_u32 v{TT+1}, {LDS_SCR - 256}, v{TT+1}
        """)
        self.bar(T)
        EV = BF
        for j in range(8): a(f"ds_read_b64 v[{EV+2*j}:{EV+2*j+1}], v{TT+1} offset:{j*256}")
        a("s_waitcnt lgkmcnt(0)")
        self.partb(EV, T)
        def spill(op, base):
            a(f"s_lshl_b32 s30, s2, 2\ns_add_u32 s30, s30, s{S_WAVE}\ns_mul_i32 s30, s30, {12*1024}\ns_add_u32 s30, s30, {SPILL}")
            for i in range(10):
                a(f"buffer_{op}_dwordx4 v[{base+4*i}:{base+4*i+3}], v3, s[4:7], s30 offen offset:{(i%4)*1024}")
                if i % 4 == 3: a("s_add_u32 s30, s30, 4096")
            a(f"buffer_{op}_dwordx2 v[{base+40}:{base+41}], v3, s[4:7], s30 offen offset:2048")
        a(f"s_cmp_lg_u32 s{S_HALF}, 0\ns_cbranch_scc1 L_b1done")
        spill("store", BS)
        a("v_and_b32 v16, 0xffff, v166\nv_lshrrev_b32 v17, 16, v166\nv_mov_b32 v18, v154")
        self.lam_calc(16, 10)
        for i in range(2): a(f"v_mov_b32 v{164+i}, v{10+i}")
        self.swz(AB, T, B1BASE + 16384)
        a(f"s_mov_b32 s{S_HALF}, 1\ns_mov_b32 s{S_CH}, s{S_CHB}\ns_branch L_b1")
        a.label("L_b1done")
        self.stamp(4)
        a(f"s_add_u32 s46, s48, {TSCR}\ns_cmp_lg_u32 s{S_TYPE}, 2\ns_cbranch_scc1 L_nsp")
        spill("load", 108)
        a.label("L_nsp")
        self.wait_prog(W_LAND + 4, T, 4)
        if self.opt.get("nop2"): a("s_setprio 0")
        a.label("L_p2")
        self.pass2(BF, T)
        a(f"s_cmp_lg_u32 s{S_TYPE}, 2\ns_cbranch_scc1 L_p2end\ns_cmp_eq_u32 s{S_CH}, s{S_CHA}\ns_cbranch_scc1 L_p2end")
        for i in range(21): a(f"v_pk_mov_b32 v[{BS+2*i}:{BS+2*i+1}], v[{108+2*i}:{109+2*i}], v[{108+2*i}:{109+2*i}] op_sel:[0,1]")
        a(f"s_mov_b32 s{S_CH}, s{S_CHA}\ns_branch L_p2")
        a.label("L_p2end")
        self.stamp(6)
        self.lds_add1(WA, ONE, W_P2 - W_BAR)
        self.p3_ids()
        self.p3(T)

    def lam_early(self, ch):
        a = self.a
        a(f"""
        s_lshl_b32 s30, {ch}, 6
        v_lshl_add_u32 v23, v1, 1, s30
        global_load_ushort v16, v23, s[{P_LRE}:{P_LRE+1}]
        global_load_ushort v17, v23, s[{P_LIM}:{P_LIM+1}]
        global_load_ushort v18, v23, s[{P_LDT}:{P_LDT+1}]
        s_waitcnt vmcnt(0)
        """)
        self.lam_calc(16, 10)
    def cmac(self, d, m, g, c):
        self.a(f"v_pk_fma_f32 v[{d}:{d+1}], v[{m}:{m+1}], v[{g}:{g+1}], v[{c}:{c+1}] op_sel_hi:[0,1,1]")
        self.a(f"v_pk_fma_f32 v[{d}:{d+1}], v[{m}:{m+1}], v[{g}:{g+1}], v[{d}:{d+1}] op_sel:[1,1,0] op_sel_hi:[1,0,1] neg_lo:[1,0,0]")
    def lam_calc(self, T, P):
        a = self.a; L2E = f32(math.log2(math.e))
        LR, LI, CR, CI, MUR, MUI = range(P, P + 6)
        a(f"""
        v_lshlrev_b32 v{T}, 16, v{T}
        v_lshlrev_b32 v{T+1}, 16, v{T+1}
        v_lshlrev_b32 v{T+2}, 16, v{T+2}
        v_mul_f32 v{T+2}, {L2E}, v{T+2}
        v_exp_f32 v{T+2}, v{T+2}
        s_nop 0
        v_cvt_pk_bf16_f32 v{T+2}, v{T+2}, v{T+2}
        v_lshlrev_b32 v{T+2}, 16, v{T+2}
        v_mul_f32 v{T+3}, v{T+2}, v{T}
        v_mul_f32 v{T+4}, v{T+2}, v{T+1}
        v_mul_f32 v{T+3}, {L2E}, v{T+3}
        v_mul_f32 v{T+4}, {f32(1/(2*math.pi))}, v{T+4}
        v_exp_f32 v{T+3}, v{T+3}
        v_fract_f32 v{T+4}, v{T+4}
        v_cos_f32 v{T+5}, v{T+4}
        v_sin_f32 v{T+6}, v{T+4}
        s_nop 0
        v_mul_f32 v{LR}, v{T+3}, v{T+5}
        v_mul_f32 v{LI}, v{T+3}, v{T+6}
        v_mul_f32 v{T+3}, v{T}, v{T}
        v_fmac_f32 v{T+3}, v{T+1}, v{T+1}
        v_rcp_f32 v{T+3}, v{T+3}
        v_add_f32 v{T+4}, -1.0, v{LR}
        v_mul_f32 v{T+5}, v{T+4}, v{T}
        v_fmac_f32 v{T+5}, v{LI}, v{T+1}
        v_mul_f32 v{T+6}, v{LI}, v{T}
        v_fma_f32 v{T+6}, -v{T+4}, v{T+1}, v{T+6}
        v_add_f32 v{T+3}, v{T+3}, v{T+3}
        v_mul_f32 v{CR}, v{T+5}, v{T+3}
        v_mul_f32 v{CI}, v{T+6}, v{T+3}
        v_mov_b32 v{MUR}, v{LR}
        v_mov_b32 v{MUI}, v{LI}
        """)
        for i in range(4):
            a(f"""
            v_mul_f32 v{T+3}, v{MUI}, v{MUI}
            v_mul_f32 v{T+4}, v{MUR}, v{MUI}
            v_fma_f32 v{MUR}, v{MUR}, v{MUR}, -v{T+3}
            v_add_f32 v{MUI}, v{T+4}, v{T+4}
            """)

    def f2flag(self, ch, TT):
        self.a(f"""
        s_lshl_b32 s30, s{ch}, 5
        s_add_u32 s30, s30, s{S_MB}
        s_lshl_b32 s30, s30, 2
        s_add_u32 s30, s30, {F2}
        s_waitcnt vmcnt(0)
        """)
        self.flag_store([30], TT)
    def partb(self, EV, TT):
        a = self.a
        a(f"""
        v_cndmask_b32 v{LCR}, 0, v{EV}, s[62:63]
        v_cndmask_b32 v{LCI}, 0, v{EV+1}, s[62:63]
        v_cndmask_b32 v{PWR}, 1.0, v{MUR}, s[62:63]
        v_cndmask_b32 v{PWI}, 0, v{MUI}, s[62:63]
        """)
        for j in range(1, 7):
            if j % 2 == 1: a(f"s_cmp_lt_u32 s{S_WAVE}, {(j+1)//2}\ns_cbranch_scc1 L_pbne")
            a(f"""
            v_mul_f32 v{TT}, v{MUR}, v{PWR}
            v_mul_f32 v{TT+1}, v{MUR}, v{PWI}
            v_fma_f32 v{TT+2}, v{MUR}, v{LCR}, v{EV+2*j}
            v_fma_f32 v{TT+3}, v{MUR}, v{LCI}, v{EV+2*j+1}
            v_fma_f32 v{TT}, -v{MUI}, v{PWI}, v{TT}
            v_fma_f32 v{PWI}, v{MUI}, v{PWR}, v{TT+1}
            v_fma_f32 v{TT+2}, -v{MUI}, v{LCI}, v{TT+2}
            v_fma_f32 v{LCI}, v{MUI}, v{LCR}, v{TT+3}
            v_mov_b32 v{PWR}, v{TT}
            v_mov_b32 v{LCR}, v{TT+2}
            """)
        EB = EV + 14
        a(f"""
        s_mul_i32 s30, s{S_MB}, {576*8}
        s_lshl_b32 s31, s{S_CH}, 8
        s_add_u32 s30, s30, s31
        s_add_u32 s30, s30, {EE - 256}
        v_lshlrev_b32 v{TT+2}, 3, v2
        v_fma_f32 v{TT}, v{MUR}, v{LCR}, v{EB}
        v_fma_f32 v{TT+1}, v{MUR}, v{LCI}, v{EB+1}
        v_fma_f32 v{TT}, -v{MUI}, v{LCI}, v{TT}
        v_fma_f32 v{TT+1}, v{MUI}, v{LCR}, v{TT+1}
        s_mov_b32 exec_lo, 0
        buffer_store_dwordx2 v[{TT}:{TT+1}], v{TT+2}, s[4:7], s30 offen {WT}
        s_mov_b32 exec_lo, -1
        s_cmp_eq_u32 s{S_HALF}, 0
        s_cbranch_scc1 L_pbne
        """)
        self.f2flag(S_CH, TT)
        a.label("L_pbne")
        for i in range(3):
            a(f"""
            v_mul_f32 v{TT+4}, v{MUI}, v{MUI}
            v_mul_f32 v{TT+5}, v{MUR}, v{MUI}
            v_fma_f32 v{MUR}, v{MUR}, v{MUR}, -v{TT+4}
            v_add_f32 v{MUI}, v{TT+5}, v{TT+5}
            """)

    def pass2(self, EV, T):
        a = self.a
        GR, GI, TT, AD, M2R, M2I = T, T + 1, T + 2, T + 4, T + 6, T + 7
        a(f"""
        s_cmp_eq_u32 s{S_MB}, 0
        s_cbranch_scc1 L_pollF2_x
        s_sub_u32 s35, s{S_MB}, 1
        v_min_u32 v{AD}, s35, v2
        v_lshlrev_b32 v{AD}, 2, v{AD}
        s_lshl_b32 s34, s{S_CH}, 7
        s_add_u32 s34, s34, {F2}
        """)
        self.poll("L_pollF2", TT, AD, "s34", sleep=4)
        a(f"""
        s_add_u32 s8, s{P_WS}, {EE}
        s_addc_u32 s9, s{P_WS+1}, 0
        s_and_b32 s9, s9, 0xffff
        s_mov_b32 s10, {16*576*8}
        s_mov_b32 s11, 0x20000
        v_lshrrev_b32 v{TT}, 5, v2
        v_mul_u32_u24 v{TT}, {576*8}, v{TT}
        v_lshlrev_b32 v{AD}, 3, v1
        v_sub_u32 v{AD}, v{AD}, v{TT}
        s_sub_u32 s34, s{S_MB}, 1
        s_mul_i32 s34, s34, {576*8}
        v_add_u32 v{AD}, s34, v{AD}
        s_lshl_b32 s34, s{S_CH}, 8
        """)
        for i in range(8):
            a(f"buffer_load_dwordx2 v[{EV+2*i}:{EV+2*i+1}], v{AD}, s[8:11], s34 offen sc0 sc1")
            if i < 7: a(f"v_subrev_u32 v{AD}, {2*576*8}, v{AD}")
        a(f"""
        v_mul_f32 v{TT}, v{MUI}, v{MUI}
        v_mul_f32 v{TT+1}, v{MUR}, v{MUI}
        v_fma_f32 v{M2R}, v{MUR}, v{MUR}, -v{TT}
        v_add_f32 v{M2I}, v{TT+1}, v{TT+1}
        s_waitcnt vmcnt(0)
        """)
        for i in range(6, -1, -1): self.cmac(EV + 2 * i, M2R, EV + 2 * i + 2, EV + 2 * i)
        a(f"""
        v_mov_b32 v{AD}, v{EV}
        v_mov_b32 v{AD+1}, v{EV+1}
        s_nop 1
        v_permlane32_swap_b32 v{EV}, v{AD}
        v_permlane32_swap_b32 v{EV+1}, v{AD+1}
        s_nop 1
        """)
        self.cmac(EV, MUR, AD, EV)
        self.cmac(GR, PWR, EV, LCR)
        for t in range(16): self.cmac(BS + 2 * t, LR, GR if t == 0 else BS + 2 * t - 2, BS + 2 * t)
        a(f"""
        s_lshl_b32 s34, s{S_MB}, 2
        s_add_u32 s34, s34, s{S_WAVE}
        s_mul_i32 s34, s34, {HS}
        s_add_u32 s34, s34, s{S_CH}
        s_lshl_b32 s34, s34, 11
        s_add_u32 s34, s34, {HH}
        s_add_u32 s35, s34, {18*2048}
        v_lshrrev_b32 v{TT}, 5, v2
        v_lshlrev_b32 v{AD}, 4, v1
        v_mul_u32_u24 v{TT}, {1024+128}, v{TT}
        v_xor_b32 v{AD}, v{AD}, v{TT}
        v_xor_b32 v{AD+1}, {512+64}, v{AD}
        """)
        a(f"s_mov_b32 s30, s46\nv_add_u32 v{AD}, s30, v{AD}\nv_add_u32 v{AD+1}, s30, v{AD+1}")
        for c in range(2):
            for jj in range(2):
                d = EV + 16 + 8 * c + 4 * jj; n = "-" if c else ""
                for r in range(4): a(f"v_cvt_pk_bf16_f32 v{d+r}, {n}v{BS+16*jj+4*r+c}, {n}v{BS+16*jj+4*r+2+c}")
                a(f"ds_write_b128 v{AD+jj}, v[{d}:{d+3}] offset:{c*2048}")
        m = EV
        a(f"""
        v_lshrrev_b32 v{m}, 5, v2
        v_bfe_u32 v{m+1}, v2, 2, 2
        v_lshl_add_u32 v{m+1}, v{m}, 3, v{m+1}
        v_bfe_u32 v{m+2}, v2, 4, 1
        v_bfe_u32 v{m+3}, v2, 1, 1
        v_lshl_add_u32 v{m+2}, v{m+2}, 1, v{m+3}
        v_lshlrev_b32 v{m+3}, 2, v{m+2}
        v_xor_b32 v{m+1}, v{m+1}, v{m+3}
        v_and_b32 v{m+3}, 1, v2
        v_lshlrev_b32 v{m+3}, 3, v{m+3}
        v_lshl_add_u32 v{m+3}, v{m+2}, 9, v{m+3}
        v_add_u32 v{m+3}, s30, v{m+3}
        v_lshl_add_u32 v{m}, v{m+1}, 4, v{m+3}
        v_xor_b32 v{m+1}, 64, v{m}
        """)
        for c in range(2):
            for j in range(2):
                d = EV + 32 + 8 * c + 4 * j
                for hf in range(2): a(f"ds_read_b64_tr_b16 v[{d+2*hf}:{d+2*hf+1}], v{m+hf} offset:{c*2048 + j*256}")
        a("s_waitcnt lgkmcnt(0)")
        for c in range(2):
            for j in range(2):
                d = EV + 32 + 8 * c + 4 * j
                a(f"buffer_store_dwordx4 v[{d}:{d+3}], v3, s[4:7], s{34+c} offen offset:{j*1024} {WT}")
        a(f"""
        s_mul_i32 s30, s{S_MB}, 24
        s_add_u32 s31, s30, s{S_CH}
        s_lshl_b32 s31, s31, 2
        s_add_u32 s31, s31, s{S_WAVE}
        s_lshl_b32 s31, s31, 2
        s_add_u32 s31, s31, {F3}
        s_waitcnt vmcnt(0)
        """)
        self.flag_store([31], TT)

    def a3_setup(self, PB, T):
        a = self.a
        a(f"""
        v_lshrrev_b32 v{T}, 2, v2
        v_and_b32 v{T+1}, 3, v2
        v_and_b32 v{T+2}, 3, v{T}
        v_bfe_u32 v{T+3}, v{T}, 2, 1
        v_lshl_add_u32 v{T+2}, v{T+3}, 3, v{T+2}
        v_lshrrev_b32 v{T+3}, 3, v{T}
        v_lshl_add_u32 v{T+2}, v{T+3}, 2, v{T+2}
        v_mul_u32_u24 v{T+2}, 1152, v{T+2}
        v_lshl_add_u32 v{PB}, v{T+1}, 4, v{T+2}
        v_lshrrev_b32 v{T+2}, 1, v{T}
        v_mul_u32_u24 v{T+2}, 18, v{T+2}
        v_and_b32 v{T+3}, 1, v{T}
        v_add3_u32 v{T+2}, v{T+2}, v{T+3}, 16
        v_mul_u32_u24 v{T+2}, 1152, v{T+2}
        v_lshl_add_u32 v{PB+1}, v{T+1}, 4, v{T+2}
        s_sub_u32 s30, s{S_P3NB}, 9
        s_mul_i32 s{S_CB}, s30, 192
        s_mov_b32 s{S_ST3}, s{S_LW}
        """)
        self.srd(12, P_WO, 576 * 1152)
    def a3_issue(self, PB, cnt):
        a = self.a; lab = a.newlabel("L_a3i")
        a("s_mov_b32 s35, 0")
        a.label(lab)
        a(f"""
        s_mul_i32 s30, s{S_ST3}, 3072
        s_add_u32 s31, s30, {WO2}
        s_sub_u32 s30, s30, {18*3072}
        s_add_u32 s32, s{S_ST3}, 18
        s_sub_u32 s34, s{S_ST3}, 18
        s_cmp_lt_u32 s{S_ST3}, 18
        s_cselect_b32 s30, s31, s30
        s_cselect_b32 s32, s32, s34
        s_mul_i32 s31, s32, {18*1152}
        v_mov_b32 v{PB+2}, v{PB}
        s_cmp_lt_u32 s32, 32
        s_cbranch_scc1 {lab}m
        s_sub_u32 s32, s32, 32
        s_mul_i32 s31, s32, {8*18*1152}
        v_mov_b32 v{PB+2}, v{PB+1}
        """)
        a.label(lab + "m")
        a(f"s_add_u32 s31, s31, s{S_CB}")
        for nt in range(3):
            a(f"s_add_u32 m0, s30, {nt*1024}\ns_add_u32 s32, s31, {nt*64}\nbuffer_load_dwordx4 v{PB+2}, s[12:15], s32 offen lds")
        a(f"s_add_u32 s{S_ST3}, s{S_ST3}, 4\ns_add_u32 s35, s35, 1\ns_cmp_lt_u32 s35, {cnt}\ns_cbranch_scc1 {lab}")
    def xd(self, T, XD, ACC):
        a = self.a
        a(f"""
        v_lshrrev_b32 v{T+1}, 5, v2
        v_mul_u32_u24 v{T}, 1152, v1
        v_lshl_add_u32 v{T}, v{T+1}, 3, v{T}
        s_mul_i32 s30, s{S_P3T}, {32*1152}
        s_lshl_b32 s31, s{S_P3NB}, 7
        s_add_u32 s30, s30, s31
        v_add_u32 v{T}, s30, v{T}
        v_lshl_add_u32 v{T+1}, v{T+1}, 3, s31
        """)
        for e in range(8):
            a(f"global_load_dwordx2 v[{XD+2*e}:{XD+2*e+1}], v{T}, s[{P_BX}:{P_BX+1}] offset:{e*16}")
            a(f"global_load_dwordx2 v[{XD+16+2*e}:{XD+16+2*e+1}], v{T+1}, s[{P_DSK}:{P_DSK+1}] offset:{e*16}")
    def xd_math(self, T, XD, ACC):
        a = self.a
        for e in range(8):
            d = ACC + 4 * e
            for q in range(2):
                x = XD + 2 * e + q; k = XD + 16 + 2 * e + q
                a(f"""
                v_lshlrev_b32 v{T+2}, 16, v{x}
                v_lshlrev_b32 v{T+3}, 16, v{k}
                v_and_b32 v{x}, 0xffff0000, v{x}
                v_and_b32 v{k}, 0xffff0000, v{k}
                v_fmac_f32 v{d+2*q}, v{T+2}, v{T+3}
                v_fmac_f32 v{d+2*q+1}, v{x}, v{k}
                """)

    def iwarm(self, name):
        if self.opt.get("noiw"): return
        a = self.a
        a(f"s_mov_b64 vcc, -1\ns_branch {name}_0")
        a.label(name + "_ret")
    def aux_final(self, T):
        a = self.a; lab = a.newlabel("L_af")
        a("s_mov_b32 s34, 4")
        self.wait_prog(W_LAND + 28, T, sleep=32)
        self.wait_prog(FIN_OK, T, sleep=3)
        a(f"v_cmp_eq_u32 vcc, s30, v{T+1}\ns_cbranch_vccz {lab}\ns_barrier\ns_barrier\ns_barrier\ns_mov_b32 s34, 8")
        a.label(lab)
        a("s_setprio 3")

    B3R = dict(EA=155, FC=16, FH=48, ACC=120, D=18)
    def hload(self, k):
        FH, D = self.B3R["FH"], self.B3R["D"]
        r = FH + 4 * (k % D)
        l = [f"buffer_load_dwordx4 v[{r}:{r+3}], v3, s[4:7], s50 offen offset:{(k%4)*1024}"]
        if k % 4 == 3: l.append("s_add_u32 s50, s50, 4096")
        return l
    def b3_pre(self, T, half):
        a = self.a; ACC, D = self.B3R["ACC"], self.B3R["D"]
        self.srd(16, P_OUT, OUT_BYTES)
        self.swz(4, T, [TSCR, 0][half])
        for i in range(4): a(f"v_add_u32 v{8+i}, {([57344, 73728][half] - [TSCR, 0][half]) & 0xffffffff}, v{4+i}")
        a(f"""
        s_mov_b32 s49, {half}
        s_mul_i32 s34, s{S_P3MB}, 384
        s_lshl_b32 s30, s{S_LW}, 2
        s_add_u32 s34, s34, s30
        s_add_u32 s34, s34, {F3}
        v_min_u32 v{T}, 17, v2
        v_lshlrev_b32 v{T}, 4, v{T}
        """)
        self.poll(f"L_pollF3{half}", T + 1, T, "s34", sleep=16)
        self.stamp(7)
        a(f"s_mul_i32 s50, s{S_P3T}, {HS*2048}\ns_add_u32 s50, s50, {HH + half*36*1024}")
        a(f"s_lshl_b32 s31, s{S_P3NB}, 11\ns_add_u32 s30, s50, s31\ns_add_u32 s30, s30, {18*1024}")
        for n in range(2): a(f"buffer_load_dwordx4 v[{ACC}:{ACC+3}], v3, s[4:7], s30 offen offset:{n*1024}")
        for k in range(D):
            for x in self.hload(k): a(x)
    def b3_main(self, T):
        a = self.a; EA, FC, FH, ACC, D = (self.B3R[k] for k in ("EA", "FC", "FH", "ACC", "D"))
        self.lds_spin(self.WA, T, "s34", W_G2 - W_BAR)
        self.stamp(8); self.stamp(59)
        a("s_mov_b64 vcc, 0")
        if not self.opt.get("noiw"): a.pad_begin("PB3", int(self.opt.get("padn", 7)))
        def crd(k):
            st, s = k // 4, k % 4
            A, off = (4, st * 8192) if st < 7 else (8, (st - 7) * 8192)
            return [f"ds_read_b128 v[{FC+8*s+4*nt}:{FC+8*s+4*nt+3}], v{A+s} offset:{off + nt*4096}" for nt in range(2)]
        for k in range(3):
            for x in crd(k): a(x)
        NK = 36
        for k in range(NK):
            if k in (9, 18, 27): a(f"s_setprio {3 - k//9}")
            if self.opt.get("stb") and k % 3 == 0: self.stamp(30 + k // 3)
            if k == 12:
                a(f"s_cmp_eq_u32 s49, 0\ns_cbranch_scc1 L_b3g\ns_waitcnt vmcnt(12)")
                self.lds_add1(self.WA, self.ONE, W_G3 - W_BAR)
                a("s_waitcnt lgkmcnt(0)")
                a.label("L_b3g")
            if k == 24: self.lds_add1(self.WA, self.ONE, W_B8 - W_BAR); a("s_waitcnt lgkmcnt(0)")
            if k + 3 == 28:
                a("s_lshl_b32 s31, s49, 2")
                self.lds_spin(self.WA, T, "s31", W_G3 - W_BAR)
            if k == 22:
                a(f"""
                v_lshrrev_b32 v{T+2}, 4, v2
                v_and_b32 v{T+3}, 15, v2
                v_mul_u32_u24 v{T+4}, 1152, v{T+2}
                v_lshl_add_u32 v{T+4}, v{T+3}, 3, v{T+4}
                s_lshl_b32 s31, s{S_P3NB}, 7
                v_lshl_add_u32 v{T+5}, v{T+3}, 3, s31
                global_load_dwordx2 v[{FH+8}:{FH+9}], v{T+5}, s[{P_DSK}:{P_DSK+1}]
                s_lshl_b32 s30, s{S_P3T}, 1
                s_add_u32 s30, s30, s49
                s_mul_i32 s30, s30, {16*1152}
                s_add_u32 s30, s30, s31
                """)
                self.srd(8, P_BX, 2048 * 1152)
                for n in range(4): a(f"buffer_load_dwordx2 v[{FH+2*n}:{FH+2*n+1}], v{T+4}, s[8:11], s30 offen\ns_add_u32 s30, s30, {4*1152}")
            a(f"s_waitcnt vmcnt({min(D-1, NK-1-k) + (5 if k >= 22 else 0)}) lgkmcnt({min(4, 2*(NK-1-k))})")
            h = FH + 4 * (k % D); r = crd(k + 3) if k + 3 < NK else []
            for nt in range(2):
                c = FC + 8 * (k % 4) + 4 * nt; d = ACC + 16 * nt
                a(f"v_mfma_f32_32x32x16_bf16 v[{d}:{d+15}], v[{c}:{c+3}], v[{h}:{h+3}], " + ("0" if k == 0 else f"v[{d}:{d+15}]"))
                if nt == 0:
                    for x in r: a(x)
            if k + D < NK:
                for x in self.hload(k + D): a(x)
        self.stamp(10)
        OF = self.opt.get('outf', 'sc0_sc1').replace('_', ' ')
        a(f"""
        s_mul_i32 s31, s{S_LW}, {32*272}
        s_cmp_eq_u32 s49, 0
        s_cselect_b32 s30, {TSCR}, 0
        s_add_u32 s30, s30, s31
        v_lshrrev_b32 v{T+1}, 5, v2
        v_mul_u32_u24 v{T+6}, 272, v1
        v_lshl_add_u32 v{T+6}, v{T+1}, 4, v{T+6}
        v_add_u32 v{T+6}, s30, v{T+6}
        s_mul_i32 s30, s49, {16*272}
        s_add_u32 s31, s31, s30
        v_mul_u32_u24 v{T+1}, 272, v{T+2}
        v_lshl_add_u32 v{T+1}, v{T+3}, 4, v{T+1}
        v_add_u32 v{T+1}, s31, v{T+1}
        v_add_u32 v{T+4}, {TSCR}, v{T+1}
        v_mul_u32_u24 v{EA}, 4608, v{T+2}
        v_lshl_add_u32 v{EA}, v{T+3}, 4, v{EA}
        """)
        self.lds_spin(self.WA, T, 8, W_B8 - W_BAR)
        for e in range(8): a(f"ds_write_b128 v{T+6}, v[{ACC+4*e}:{ACC+4*e+3}] offset:{e*32}")
        self.lds_add1(self.WA, self.ONE, W_B8 - W_BAR)
        DD = FH + 12
        a(f"""
        s_lshl_b32 s30, s{S_P3T}, 1
        s_add_u32 s30, s30, s49
        s_mul_i32 s30, s30, {16*4608}
        s_lshl_b32 s31, s{S_P3NB}, 8
        s_add_u32 s30, s30, s31
        s_add_u32 s30, s30, {576*4}
        s_waitcnt vmcnt(0)
        v_lshlrev_b32 v{DD}, 16, v{FH+8}
        v_and_b32 v{DD+1}, 0xffff0000, v{FH+8}
        v_lshlrev_b32 v{DD+2}, 16, v{FH+9}
        v_and_b32 v{DD+3}, 0xffff0000, v{FH+9}
        """)
        for n in range(4):
            x = FH + 2 * n; t = DD + 4 + 4 * n
            a(f"v_lshlrev_b32 v{t}, 16, v{x}\nv_and_b32 v{t+1}, 0xffff0000, v{x}\nv_lshlrev_b32 v{t+2}, 16, v{x+1}\nv_and_b32 v{t+3}, 0xffff0000, v{x+1}")
        self.lds_spin(self.WA, T, 16, W_B8 - W_BAR)
        self.stamp(11); self.stamp(60)
        for n in range(4):
            a(f"ds_read_b128 v[{FC+8*n}:{FC+8*n+3}], v{T+1} offset:{n*4*272}\nds_read_b128 v[{FC+8*n+4}:{FC+8*n+7}], v{T+4} offset:{n*4*272}")
        for n in range(4):
            d = FC + 8 * n; t = DD + 4 + 4 * n
            a(f"""
            s_waitcnt lgkmcnt({6-2*n})
            v_pk_fma_f32 v[{d}:{d+1}], v[{t}:{t+1}], v[{DD}:{DD+1}], v[{d}:{d+1}]
            v_pk_fma_f32 v[{d+2}:{d+3}], v[{t+2}:{t+3}], v[{DD+2}:{DD+3}], v[{d+2}:{d+3}]
            v_pk_add_f32 v[{d}:{d+1}], v[{d}:{d+1}], v[{d+4}:{d+5}]
            v_pk_add_f32 v[{d+2}:{d+3}], v[{d+2}:{d+3}], v[{d+6}:{d+7}]
            buffer_store_dwordx4 v[{d}:{d+3}], v{EA}, s[16:19], s30 offen {OF}
            s_add_u32 s30, s30, {4*4608}
            """)
        a("s_branch L_exit")
        if a.pad: a.pad_end("PB3_ret")

    def p3(self, T):
        a = self.a
        self.srd(16, P_OUT, OUT_BYTES)
        a(f"s_cmp_ge_u32 s{S_IDX}, 18\ns_cbranch_scc1 L_a3")
        self.iwarm("PB3")
        self.b3_pre(T, 0)
        self.aux_final(T)
        a.label("L_b3main")
        self.b3_main(T)
        a.label("L_a3")
        OF = self.opt.get('outf', 'sc0_sc1').replace('_', ' ')
        self.iwarm("PA3")
        self.aux_final(T)
        a(f"s_cmp_ge_u32 s{S_IDX}, 30\ns_cbranch_scc1 L_exit")
        self.lds_spin(self.WA, T, "s34", W_G2 - W_BAR)
        self.stamp(8)
        AW, EA, T, FW, ACC, FO = 4, 6, 8, 16, 52, 100
        D = 14
        a(f"""
        s_lshl_b32 s34, s{S_P3T}, 7
        s_add_u32 s34, s34, {F4}
        v_lshlrev_b32 v{T+4}, 2, v1
        v_lshrrev_b32 v{T+1}, 5, v2
        v_bfe_u32 v{T+2}, v2, 2, 2
        v_lshl_add_u32 v{T+3}, v{T+1}, 3, v{T+2}
        v_lshlrev_b32 v{T+3}, 6, v{T+3}
        v_bfe_u32 v{T+2}, v2, 4, 1
        v_lshl_add_u32 v{T+3}, v{T+2}, 5, v{T+3}
        v_and_b32 v{T+2}, 3, v2
        v_lshl_add_u32 v{AW}, v{T+2}, 3, v{T+3}
        v_add_u32 v{AW+1}, {WO2}, v{AW}
        v_mul_u32_u24 v{EA}, 4608, v1
        v_lshl_add_u32 v{EA}, v{T+1}, 4, v{EA}
        v_lshl_add_u32 v{EA+1}, v{T+1}, 9, v{T+4}
        """)
        def rl3(s):
            st, off = (0, s * 3072) if s < 18 else (1, (s - 18) * 3072)
            l = []
            for nt in range(3):
                for hf in range(2):
                    r = FW + (s % 3) * 12 + nt * 4 + hf * 2
                    l.append(f"ds_read_b64_tr_b16 v[{r}:{r+1}], v{AW+st} offset:{off + nt*1024 + hf*256}")
            return l
        for x in rl3(0) + rl3(1): a(x)
        a(f"s_lshl_b32 s30, s{S_LW}, 2\ns_add_u32 s30, s30, {W_F4}\nv_mov_b32 v{T+6}, s30")
        self.poll("L_pollF4", T + 5, T + 4, "s34", sleep=1)
        if self.opt.get("opf"): a(f"ds_write_b32 v{T+6}, v{self.ONE}\ns_waitcnt lgkmcnt(0)")
        OLD = self.opt.get("oldf", "sc0_sc1").replace("_", " ")
        self.stamp(10); self.stamp(59)
        a("s_mov_b64 vcc, 0")
        if not self.opt.get("noiw"): a.pad_begin("PA3", int(self.opt.get("padn", 7)))
        a(f"s_mul_i32 s30, s{S_P3T}, {OS}\ns_add_u32 s30, s30, {OW}")
        def oload(s):
            r = FO + 4 * (s % D)
            if s < 32:
                l = [f"buffer_load_dwordx4 v[{r}:{r+3}], v3, s[4:7], s30 offen offset:{(s%4)*1024} {OLD}"]
                if s % 4 == 3: l.append("s_add_u32 s30, s30, 4096")
                return l
            return [f"buffer_load_dword v{r+j}, v{EA+1}, s[4:7], s30 offen offset:{(s-32)*1024 + j*128} {OLD}" for j in range(4)]
        cnt = [1] * 32 + [4] * 4
        for s in range(D):
            for x in oload(s): a(x)
        for s in range(36):
            if self.opt.get("stb") and s % 3 == 0: self.stamp(30 + s // 3)
            if s == 22: self.arrive(T); a("s_waitcnt lgkmcnt(0)")
            out = sum(cnt[s + 1:min(36, s + D)])
            a(f"s_waitcnt vmcnt({out}) lgkmcnt({6 if s < 35 else 0})")
            mf = []
            for nt in range(3):
                d = ACC + nt * 16; w = FW + (s % 3) * 12 + nt * 4; o = FO + 4 * (s % D)
                c = "0" if s == 0 else f"v[{d}:{d+15}]"
                mf.append(f"v_mfma_f32_32x32x16_bf16 v[{d}:{d+15}], v[{w}:{w+3}], v[{o}:{o+3}], {c}")
            ilv(a, mf, rl3(s + 2) if s + 2 < 36 else [])
            if s + D < 36:
                for x in oload(s + D): a(x)
        self.stamp(11); self.stamp(60)
        self.lds_spin(self.WA, T, f"s{self.BC}")
        a(f"""
        s_mul_i32 s31, s{S_LW}, {32*400}
        v_lshrrev_b32 v{T+1}, 5, v2
        v_mul_u32_u24 v{T}, 400, v1
        v_lshl_add_u32 v{T}, v{T+1}, 4, v{T}
        v_add_u32 v{T}, s31, v{T}
        """)
        for e in range(12): a(f"ds_write_b128 v{T}, v[{ACC+4*e}:{ACC+4*e+3}] offset:{e*32}")
        for j in range(3):
            a(f"""
            v_add_u32 v{FW}, {64*j}, v2
            v_mul_u32_u24 v{FW+1}, 171, v{FW}
            v_lshrrev_b32 v{FW+1}, 12, v{FW+1}
            v_mul_u32_u24 v{FW+2}, 24, v{FW+1}
            v_sub_u32 v{FW}, v{FW}, v{FW+2}
            v_mul_u32_u24 v{FW+2}, 400, v{FW+1}
            v_lshl_add_u32 v{FW+2}, v{FW}, 4, v{FW+2}
            v_add_u32 v{FW+4+j}, s31, v{FW+2}
            v_mul_u32_u24 v{FW+2}, 4608, v{FW+1}
            v_lshl_add_u32 v{FW+8+j}, v{FW}, 4, v{FW+2}
            """)
        a(f"""
        s_mul_i32 s30, s{S_P3T}, {32*4608}
        s_sub_u32 s31, s{S_P3NB}, 9
        s_mul_i32 s31, s31, 384
        s_add_u32 s30, s30, s31
        s_waitcnt lgkmcnt(0)
        """)
        for n in range(12): a(f"ds_read_b128 v[{FO+4*n}:{FO+4*n+3}], v{FW+4+n%3} offset:{(n//3)*8*400}")
        for n in range(12):
            a(f"s_waitcnt lgkmcnt({11-n})\nbuffer_store_dwordx4 v[{FO+4*n}:{FO+4*n+3}], v{FW+8+n%3}, s[16:19], s30 offen {OF}")
            if n % 3 == 2: a(f"s_add_u32 s30, s30, {8*4608}")
        a("s_branch L_exit")
        if a.pad: a.pad_end("PA3_ret")

    def finish(self):
        a = self.a
        a.label("L_exit")
        if self.stamp_on:
            self.stamp(12)
            a("s_waitcnt vmcnt(0)")
            self.stamp(13); a(f"v_writelane_b32 v{VST}, s98, 0\nv_writelane_b32 v{VST}, s98, 14")
            a(f"""
            s_lshl_b32 s30, s2, 4
            s_add_u32 s30, s30, s{S_WAVE}
            s_lshl_b32 s30, s30, 8
            s_add_u32 s30, s30, {STB}
            v_lshlrev_b32 v3, 2, v2
            buffer_store_dword v{VST}, v3, s[4:7], s30 offen
            """)
            if "probe" in self.opt:
                k = int(self.opt["probe"])
                a(f"""
                v_readlane_b32 s30, v{VST}, 14
                v_readlane_b32 s31, v{VST}, {k}
                s_nop 3
                s_sub_u32 s32, s31, s30
                s_cmp_eq_u32 s31, 0
                s_cselect_b32 s32, 0, s32
                s_min_u32 s32, s32, 8000
                s_lshl_b32 s32, s32, 1
                s_add_u32 s32, s32, 7000
                """)
                a.label("L_probe")
                a("s_sleep 4\ns_memrealtime s[94:95]\ns_waitcnt lgkmcnt(0)\ns_sub_u32 s33, s94, s30\ns_cmp_lt_u32 s33, s32\ns_cbranch_scc1 L_probe")
        a("s_endpgm")
        self.emit_stubs()
        a.label("L_end")
        a("s_endpgm")

def gen_mega(name, stamp=False, opt=None):
    g = G(stamp, opt)
    g.a.raw(kernel_header(name))
    g.a.label('L_code0')
    g.prologue(); g.p1_loader(); g.a.label('L_p1_fin'); g.attention(0); g.attention(1); g.aux(); g.finish()
    return g.a.text(), kernel_desc(name, NV, 100)

if __name__ == "__main__":
    import sys
    from build import *
    KN = NAME + "_kernel"
    out = sys.argv[1]; stamp = len(sys.argv) > 2 and sys.argv[2] == "1"
    opt = dict((kv.split("=") + ["1"])[:2] for kv in sys.argv[3:])
    for k, v in (("early", "1"), ("pubat", "0"), ("warmb_old", "1")): opt.setdefault(k, v)
    if "late" in opt:
        opt.update(early="off", pubat="-1", sig1="0", sponly="1", nowarmx="1"); NS1 = 3; B1BASE = 20480
    opt = {k: v for k, v in opt.items() if v != "off"}
    if "f1s" in opt: F1STRIDE = int(opt["f1s"])
    if "ldf" in opt: LDF = opt["ldf"].replace("_", " ").strip()
    if "wt" in opt: WT = opt["wt"].replace("_", " ")
    compose([gen_mega(KN, stamp, opt)], [(KN, 256, 768, LDS_TOTAL)], out)
    assemble(out)
```

```python
from asmlib import *
from lay2 import *
import math, struct
def f32(x): return "0x%08x" % struct.unpack("<I", struct.pack("<f", x))[0]
QSCALE = f32(18 ** -0.5 * math.log2(math.e))
WT = "sc0 sc1"
LDF = "sc0 sc1"
SPIN_MAX = 20000
P_AX, P_WQKV, P_WO, P_BX, P_LRE, P_LIM, P_BRE, P_BIM, P_CRE, P_CIM, P_LDT, P_DSK, P_OUT, P_DBG, P_WS = range(64, 94, 2)
S_WAVE, S_XCD, S_IDX, S_MB, S_NB, S_TYPE, S_CHB, S_CHA, S_HALF, S_CH = 3, 20, 21, 22, 23, 24, 25, 26, 27, 29
S_P3MB, S_P3NB, S_HD, S_LW, S_P3T = 37, 38, 39, 51, 57
S_GK, S_K4, S_GV, S_LP = 52, 54, 55, 56
S_HB, S_CB, S_SL3, S_ST3 = 52, 53, 54, 55
NV = 168
VST = 167
BS = 64
SPILL = 0x1200000
LR, LI, CR, CI, LCR, LCI, PWR, PWI, MUR, MUI = range(BS + 32, BS + 42)
C0, CHB = 5, 19968
LDS_W = 8 * CHB
W_LAND, W_PROG, W_UNS, W_BAR, W_DRN = LDS_W, LDS_W + 64, LDS_W + 96, LDS_W + 100, LDS_W + 104
W_F1 = LDS_W + 108
LDS_SCR = LDS_W + 512
B1BASE, BSLOT = 0, 24576
NS1 = 4
R3 = [100352, 124928, 2048, 26624]
W_OK = 8 * 19968 + 112
W_P2, W_G2, W_G3 = 8 * 19968 + 116, 8 * 19968 + 120, 8 * 19968 + 124
TSCR = 100352
W_B8 = 8 * 19968 + 132
W_F4 = 8 * 19968 + 144
W_ISS = 8 * 19968 + 136
FIN_OK, FIN_BAD = 0x40000000, 0x50000000
R3BASE = 2048
WO2 = 100352
QS, VS, OS, HS = 289, 9344, 37 * 1024, 37
def pad_touch():
    pads = [QKP + (q * QS + 288) * 1024 for q in range(16)] + [VT + o * VS + 9216 for o in range(256)]
    pads += [OW + t * OS + 36 * 1024 for t in range(64)] + [HH + (t * HS + 36) * 2048 for t in range(64)] + [EE + 0x80000, FL + 0x80000]
    G = 1 << 20
    seen = {}
    for p in pads: seen.setdefault(p // G, p)
    return sorted(seen.values())
F1STRIDE = 128 * NSUB
W_FULL, W_FREE = 8 * 19968 + 2560, 8 * 19968 + 2816
R6 = [100352, 124928, 2048, 26624, 51200, 75776]

def ilv(a, mf, other):
    n = len(mf); k = 0
    for i, m in enumerate(mf):
        a(m)
        upto = (len(other) * (i + 1) + n - 2) // (n - 1) if i < n - 1 else len(other)
        upto = min(upto, len(other))
        while k < upto: a(other[k]); k += 1

class G:
    def __init__(self, stamp=False, opt=None):
        self.a = Asm(); self.stamp_on = stamp; self.opt = opt or {}; self.stubs = []
    def stamp(self, k, real=False):
        if not self.stamp_on: return
        op = "s_memrealtime" if (real or k not in (62, 61, 60, 59)) else "s_memtime"
        self.a(f"{op} s[94:95]\ns_waitcnt lgkmcnt(0)\nv_writelane_b32 v{VST}, s94, {k}")
    def stampx(self, base, force=False):
        if not self.stamp_on or not (force or self.opt.get("stx")): return
        self.a(f"s_memrealtime s[94:95]\ns_add_u32 m0, s96, {base}\ns_add_u32 s96, s96, 1\ns_waitcnt lgkmcnt(0)\nv_writelane_b32 v{VST}, s94, m0")
    def srd(self, d, p, n):
        self.a(f"s_mov_b32 s{d}, s{p}\ns_and_b32 s{d+1}, s{p+1}, 0xffff\ns_mov_b32 s{d+2}, {n}\ns_mov_b32 s{d+3}, 0x20000")
    def poll(self, lab, vdst, voff, soff, n=1, want="1", sleep=2):
        a = self.a
        ld = f"buffer_load_dword v{vdst}, v{voff}, s[4:7], {soff} offen sc0 sc1" if n == 1 else f"buffer_load_dwordx4 v[{vdst}:{vdst+3}], v{voff}, s[4:7], {soff} offen sc0 sc1"
        a("s_mov_b32 s33, 0")
        a.label(lab)
        a(ld + "\ns_waitcnt vmcnt(0)")
        if n == 4:
            a(f"v_and_b32 v{vdst}, v{vdst}, v{vdst+1}\nv_and_b32 v{vdst+2}, v{vdst+2}, v{vdst+3}\nv_and_b32 v{vdst}, v{vdst}, v{vdst+2}")
        a(f"""
        v_cmp_ne_u32 vcc, {want}, v{vdst}
        s_add_u32 s33, s33, 1
        s_cmp_gt_u32 s33, {SPIN_MAX}
        s_cbranch_scc1 {lab}_x
        s_cbranch_vccz {lab}_x
        s_sleep {sleep}
        s_branch {lab}
        """)
        a.label(lab + "_x")
    def lds_spin(self, vaddr, vtmp, want, off=0, sleep=0):
        a = self.a; lab = a.newlabel("L_sp")
        a("s_mov_b32 s33, 0")
        a.label(lab)
        a(f"""
        ds_read_b32 v{vtmp}, v{vaddr} offset:{off}
        s_add_u32 s33, s33, 1
        s_waitcnt lgkmcnt(0)
        v_readfirstlane_b32 s32, v{vtmp}
        s_cmp_ge_u32 s32, {want}
        s_cbranch_scc1 {lab}x
        {f"s_sleep {sleep}" if sleep else ""}
        s_cmp_lt_u32 s33, {SPIN_MAX*16}
        s_cbranch_scc1 {lab}
        """)
        a.label(lab + "x")
    def lds_add1(self, vaddr, vone, off=0):
        self.a(f"s_mov_b64 exec, 1\nds_add_u32 v{vaddr}, v{vone} offset:{off}\ns_mov_b64 exec, -1")
    def flag_store(self, sregs, T):
        a = self.a
        a(f"v_mov_b32 v{T}, 0\nv_mov_b32 v{T+1}, 1\ns_mov_b64 exec, 1")
        for r in sregs: a(f"buffer_store_dword v{T+1}, v{T}, s[4:7], s{r} offen {WT}")
        a("s_mov_b64 exec, -1")
    def warm(self, items, T, dst):
        a = self.a
        if self.opt.get("nowarm"): return
        a(f"s_lshl_b32 s30, s{S_LW}, 8\ns_add_u32 s30, s30, s2\ns_lshl_b32 s30, s30, 10\nv_add_u32 v{T}, s30, v3")
        for (p, n) in items:
            self.srd(8, p, n)
            for r in range((n + (1 << 20) - 1) >> 20):
                a(f"s_mov_b32 s30, {r << 20}\nbuffer_load_dwordx4 v[{dst}:{dst+3}], v{T}, s[8:11], s30 offen")
    def warmx(self, items, T, dst):
        a = self.a
        a(f"s_lshl_b32 s30, s{S_IDX}, 2\ns_add_u32 s30, s30, s{S_LW}\ns_lshl_b32 s30, s30, 10\nv_add_u32 v{T}, s30, v3")
        for (p, n) in items:
            self.srd(8, p, n)
            for r in range((n + (1 << 17) - 1) >> 17):
                a(f"s_mov_b32 s30, {r << 17}\nbuffer_load_dwordx4 v[{dst}:{dst+3}], v{T}, s[8:11], s30 offen")
    def make_vx(self, dst, n, sa, sb, sc1, sc0, T):
        a = self.a
        a(f"""
        v_lshrrev_b32 v{T}, 3, v2
        v_and_b32 v{T+1}, 7, v2
        v_lshrrev_b32 v{T+2}, 1, v{T}
        v_xor_b32 v{T+1}, v{T+1}, v{T+2}
        v_lshrrev_b32 v{T+2}, 2, v{T}
        v_and_b32 v{T}, 3, v{T}
        v_mul_u32_u24 v{T+2}, {sa}, v{T+2}
        v_mul_u32_u24 v{T}, {sb}, v{T}
        v_add_u32 v{T}, v{T}, v{T+2}
        v_mul_u32_u24 v{T}, 1152, v{T}
        v_lshl_add_u32 v{dst}, v{T+1}, 4, v{T}
        v_xor_b32 v{T+1}, 4, v{T+1}
        v_lshl_add_u32 v{dst+1}, v{T+1}, 4, v{T}
        s_mul_i32 s34, {sc0}, 1152
        s_sub_u32 s34, s34, 1024
        v_add_u32 v{dst+1}, s34, v{dst+1}
        """)
        if n == 4:
            a(f"s_mul_i32 s34, {sc1}, 1152\ns_sub_u32 s34, s34, 2048\nv_add_u32 v{dst+2}, s34, v{dst}\nv_add_u32 v{dst+3}, s34, v{dst+1}")
    def swz(self, Z, T, add=0):
        a = self.a
        a(f"""
        v_lshrrev_b32 v{T+1}, 5, v2
        v_bfe_u32 v{T+2}, v1, 1, 3
        v_xor_b32 v{T+2}, v{T+2}, v{T+1}
        v_lshlrev_b32 v{T+3}, 7, v1
        v_add_u32 v{T+3}, {add}, v{T+3}
        """)
        for s in range(4): a(f"v_xor_b32 v{T+4}, {2*s}, v{T+2}\nv_lshl_add_u32 v{Z+s}, v{T+4}, 4, v{T+3}")

    def prologue(self):
        a = self.a
        a(f"""
        s_cmp_ge_u32 s2, 256
        s_cbranch_scc1 L_end
        {"s_memrealtime s[98:99]" if self.stamp_on else ""}
        s_load_dwordx16 s[64:79], s[0:1], 0
        s_load_dwordx8 s[80:87], s[0:1], 64
        s_load_dwordx4 s[88:91], s[0:1], 96
        s_load_dwordx2 s[92:93], s[0:1], 112
        v_lshrrev_b32 v1, 6, v0
        v_and_b32 v2, 63, v0
        v_readfirstlane_b32 s{S_WAVE}, v1
        v_lshlrev_b32 v3, 4, v2
        v_and_b32 v1, 31, v0
        s_and_b32 s{S_XCD}, s2, 7
        s_lshr_b32 s{S_IDX}, s2, 3
        """)
        if self.stamp_on: a(f"v_mov_b32 v{VST}, 0\ns_mov_b32 s96, 0")
        if self.stamp_on and self.opt.get("st0"): a(f"s_waitcnt lgkmcnt(0)"); self.stamp(2)
        a(f"""
        s_and_b32 s30, s{S_XCD}, 3
        s_lshl_b32 s30, s30, 2
        s_and_b32 s31, s{S_IDX}, 3
        s_add_u32 s{S_MB}, s30, s31
        s_lshl_b32 s{S_HD}, s{S_XCD}, 2
        s_add_u32 s{S_HD}, s{S_HD}, s31
        s_lshr_b32 s30, s{S_XCD}, 2
        s_lshr_b32 s31, s{S_IDX}, 2
        s_mul_i32 s32, s30, 7
        s_add_u32 s{S_NB}, s32, s31
        s_mul_i32 s32, s30, 9
        s_add_u32 s{S_CHB}, s32, s31
        s_add_u32 s{S_CHA}, s32, 8
        s_cmp_ge_u32 s{S_NB}, 9
        s_cselect_b32 s{S_TYPE}, 1, 0
        s_cmp_ge_u32 s{S_IDX}, 28
        s_cselect_b32 s{S_TYPE}, 2, s{S_TYPE}
        s_and_b32 s{S_LW}, s{S_WAVE}, 3
        """)
        G_ = int(self.opt.get("rotg", 3))
        a(f"s_and_b32 s30, s{S_IDX}, 3\ns_lshr_b32 s31, s{S_IDX}, 2\ns_add_u32 s30, s30, s31")
        if G_ == 1: a("s_mov_b32 s28, 0")
        elif G_ == 2: a("s_and_b32 s30, s30, 1\ns_mul_i32 s28, s30, 5")
        elif G_ == 3: a("s_mul_i32 s31, s30, 43\ns_lshr_b32 s31, s31, 7\ns_mul_i32 s31, s31, 3\ns_sub_u32 s30, s30, s31\ns_mul_i32 s28, s30, 3")
        elif G_ == 4: a("s_and_b32 s30, s30, 3\ns_mul_i32 s28, s30, 9\ns_lshr_b32 s28, s28, 2")
        a(f"""
        s_cmp_lt_u32 s{S_WAVE}, 4
        s_cbranch_scc1 L_aux
        """)

    def p3_ids(self):
        self.a(f"""
        s_lshl_b32 s{S_P3MB}, s{S_XCD}, 1
        s_and_b32 s30, s{S_IDX}, 1
        s_add_u32 s{S_P3MB}, s{S_P3MB}, s30
        s_lshr_b32 s{S_P3NB}, s{S_IDX}, 1
        s_lshl_b32 s{S_P3T}, s{S_P3MB}, 2
        s_add_u32 s{S_P3T}, s{S_P3T}, s{S_LW}
        """)

    def p1_loader(self):
        a = self.a
        VX, T = 4, 12
        SI, SB, ST, SL = 41, 43, 44, 45
        a(f"""
        s_cmp_eq_u32 s{S_TYPE}, 2
        s_cbranch_scc1 L_p1l_sp
        s_mov_b32 s{SI}, 0
        s_sub_u32 s42, 9, s28
        s_lshl_b32 s{SL}, s{S_LW}, 12
        s_cmp_ge_u32 s{S_WAVE}, 8
        s_cbranch_scc1 L_p1l_w
        s_cmp_eq_u32 s{S_TYPE}, 0
        s_cselect_b32 s46, 2, 1
        s_cselect_b32 s47, 32, 16
        s_cselect_b32 s48, 16, 4
        s_lshr_b32 s30, s{S_LW}, 1
        s_lshl_b32 s30, s30, 6
        s_and_b32 s31, s{S_LW}, 1
        s_add_u32 s30, s30, s31
        s_lshl_b32 s31, s{S_LW}, 5
        s_cmp_eq_u32 s{S_TYPE}, 0
        s_cselect_b32 s30, s30, s31
        s_lshl_b32 s31, s{S_MB}, 7
        s_add_u32 s30, s30, s31
        s_mul_i32 s{SB}, s30, 1152
        s_mov_b32 s{ST}, 128
        """)
        self.make_vx(VX, 4, "8", "s46", "s47", "s48", T)
        a("s_waitcnt lgkmcnt(0)")
        self.srd(8, P_AX, 2048 * 1152)
        a("s_branch L_p1l_go")
        a.label("L_p1l_w")
        a(f"""
        s_mul_i32 s30, s{S_LW}, {16*3456}
        s_lshl_b32 s31, s{S_NB}, 8
        s_add_u32 s{SB}, s30, s31
        s_mov_b32 s{ST}, {64*3456}
        s_add_u32 s{SL}, s{SL}, 16384
        v_lshrrev_b32 v{T}, 4, v2
        v_and_b32 v{T+1}, 15, v2
        v_lshlrev_b32 v{T+2}, 2, v{T}
        v_xor_b32 v{T+1}, v{T+1}, v{T+2}
        v_mul_u32_u24 v{T}, 3456, v{T}
        v_lshl_add_u32 v{VX}, v{T+1}, 4, v{T}
        v_add_u32 v{VX+1}, {4*3456-1024}, v{VX}
        v_add_u32 v{VX+2}, {2*(4*3456-1024)}, v{VX}
        v_add_u32 v{VX+3}, {3*(4*3456-1024)}, v{VX}
        s_waitcnt lgkmcnt(0)
        """)
        self.srd(8, P_WQKV, 576 * 3456)
        a.label("L_p1l_go")
        a(f"s_mul_i32 s30, s28, s{ST}\ns_add_u32 s{SB}, s{SB}, s30\ns_mul_i32 s46, s{ST}, 9")
        self.stamp(1)
        a.label("L_p1l_issue")
        a(f"s_mov_b32 m0, s{SL}\ns_add_u32 s{SI}, s{SI}, 1")
        for n in range(4): a(f"buffer_load_dwordx4 v{VX+n}, s[8:11], s{SB} offen offset:{n*1024} lds")
        a(f"""
        s_add_u32 s{SB}, s{SB}, s{ST}
        s_cmp_eq_u32 s{SI}, s42
        s_cselect_b32 s30, s46, 0
        s_sub_u32 s{SB}, s{SB}, s30
        s_add_u32 s{SL}, s{SL}, 32768
        s_sub_u32 s30, s{SL}, 163840
        s_cmp_ge_u32 s{SL}, 163840
        s_cselect_b32 s{SL}, s30, s{SL}
        s_cmp_lt_u32 s{SI}, 3
        s_cbranch_scc1 L_p1l_issue
        s_waitcnt vmcnt(8)
        s_barrier
        """)
        a(f"s_cmp_lt_u32 s{SI}, 9\ns_cbranch_scc1 L_p1l_issue")
        a.label("L_p1l_sp")
        a("s_waitcnt lgkmcnt(0)")
        self.b1_loader()
        a(f"s_cmp_eq_u32 s{S_TYPE}, 2\ns_cbranch_scc1 L_p1l_sp2")
        nw = 0
        if self.opt.get("warmb_old"):
            nw = 3
            a(f"""
            s_lshl_b32 s30, s{S_IDX}, 2
            s_and_b32 s31, s{S_LW}, 1
            s_add_u32 s30, s30, s31
            s_lshr_b32 s31, s{S_WAVE}, 3
            s_lshl_b32 s31, s31, 1
            s_add_u32 s30, s30, s31
            s_mul_i32 s30, s30, 3072
            s_lshr_b32 s31, s{S_XCD}, 2
            s_mul_i32 s31, s31, {288*1152}
            s_add_u32 s30, s30, s31
            """)
            for n in range(3): a(f"buffer_load_dwordx4 v[80:83], v3, s[12:15], s30 offen offset:{n*1024}")
            if self.opt.get("warmx2"):
                nw = 6
                a(f"""
                s_lshl_b32 s30, s{S_IDX}, 3
                s_add_u32 s30, s30, s{S_WAVE}
                s_sub_u32 s30, s30, 4
                s_mul_i32 s30, s30, 2688
                s_and_b32 s31, s{S_XCD}, 3
                s_mul_i32 s31, s31, 589824
                s_add_u32 s30, s30, s31
                """)
                for n in range(3): a(f"buffer_load_dwordx4 v[80:83], v3, s[8:11], s30 offen offset:{n*1024}")
        a(f"s_waitcnt vmcnt({4+nw})\ns_barrier\ns_xor_b32 s40, s27, 1")
        if self.opt.get("early"):
            a(f"s_cmp_eq_u32 s27, 0\ns_cbranch_scc1 L_e1")
            self.b1_issue()
            a(f"s_waitcnt vmcnt({nw+6})\ns_barrier\ns_branch L_e2")
            a.label("L_e1")
            a(f"s_waitcnt vmcnt({nw})\ns_barrier")
            self.b1_issue()
            a.label("L_e2")
        else:
            a(f"s_waitcnt vmcnt({nw})\ns_barrier")
        a.label("L_p1l_sp2")
        a(f"""
        s_cmp_lg_u32 s{S_WAVE}, 8
        s_cbranch_scc1 L_p1l_b
        v_lshlrev_b32 v9, 2, v2
        v_add_u32 v9, {LDS_W}, v9
        v_cmp_eq_u32 vcc, 8, v2
        v_mov_b32 v10, 4
        v_mov_b32 v8, 0
        v_cndmask_b32 v10, v8, v10, vcc
        ds_write_b32 v9, v10
        ds_write_b32 v9, v8 offset:2560
        ds_write_b32 v9, v8 offset:2816
        s_waitcnt lgkmcnt(0)
        """)
        a.label("L_p1l_b")
        a("s_barrier")
        self.srd(4, P_WS, WS_BYTES)
        if self.opt.get("iss"):
            a(f"s_cmp_eq_u32 s{S_TYPE}, 2\ns_cbranch_scc1 L_p1l_sp5\nv_mov_b32 v70, {W_ISS}")
            self.lds_spin(70, 71, 4)
            a.label("L_p1l_sp5")
        if self.opt.get("drn"):
            a(f"s_cmp_eq_u32 s{S_TYPE}, 2\ns_cbranch_scc1 L_p1l_sp4\nv_mov_b32 v70, {W_DRN}")
            self.lds_spin(70, 71, int(self.opt["drn"]), sleep=1)
            a.label("L_p1l_sp4")
        self.b1_run()
        self.helper()

    def aux_start(self):
        a = self.a
        sp = self.opt.get("sponly")
        if sp: a(f"s_cmp_lg_u32 s{S_TYPE}, 2\ns_cbranch_scc1 L_nopf\ns_getpc_b64 s[30:31]")
        else: a(f"s_cmp_lg_u32 s{S_WAVE}, 3\ns_cbranch_scc1 L_nopf\ns_getpc_b64 s[30:31]")
        a.label("L_pc")
        a(f"s_sub_u32 s30, s30, L_pc-L_code0\ns_subb_u32 s31, s31, 0")
        if sp: a(f"s_and_b32 s32, s{S_IDX}, 3\ns_lshl_b32 s32, s32, 2\ns_add_u32 s32, s32, s{S_WAVE}\ns_lshl_b32 s32, s32, 11\nv_lshlrev_b32 v6, 5, v2\ns_cmp_ge_u32 s32, L_end-L_code0-2048")
        else: a(f"s_lshl_b32 s32, s{S_IDX}, 10\nv_mov_b32 v6, v3\ns_cmp_ge_u32 s32, L_end-L_code0-1024")
        a(f"""
        s_cbranch_scc1 L_nopf
        s_add_u32 s30, s30, s32
        s_addc_u32 s31, s31, 0
        v_mov_b32 v5, s31
        v_add_co_u32 v4, vcc, s30, v6
        s_nop 1
        v_addc_co_u32 v5, vcc, 0, v5, vcc
        global_load_dword v154, v[4:5], off
        """)
        a.label("L_nopf")
        a("s_waitcnt lgkmcnt(0)")
        self.srd(4, P_WS, WS_BYTES)
        for r in (8, 9, 10, 11, 152): a(f"v_mov_b32 v{r}, 0")
        if not self.opt.get("notlb"):
            a(f"s_cmp_lg_u32 s{S_WAVE}, 2\ns_cbranch_scc1 L_notlb")
            if self.opt.get("sponly"): a(f"s_cmp_lg_u32 s{S_TYPE}, 2\ns_cbranch_scc1 L_notlb")
            pt = pad_touch()
            for i, p in enumerate(pt): a(f"s_mov_b32 s30, {p}\nv_writelane_b32 v9, s30, {i}")
            a(f"s_mov_b64 exec, {(1 << len(pt)) - 1}\nbuffer_load_dword v154, v9, s[4:7], 0 offen\ns_mov_b64 exec, 0x1ff\nv_lshlrev_b32 v9, 20, v2")
            a(f"global_load_dword v154, v9, s[{P_OUT}:{P_OUT+1}]\ns_mov_b64 exec, 7\nglobal_load_dword v154, v9, s[{P_BX}:{P_BX+1}]\ns_mov_b64 exec, 1")
            for p in (P_WO, P_LRE, P_LIM, P_BRE, P_BIM, P_CRE, P_CIM, P_LDT, P_DSK): a(f"global_load_dword v154, v8, s[{p}:{p+1}]")
            a("s_mov_b64 exec, -1")
            a.label("L_notlb")
    def zero_flags(self):
        a = self.a
        a(f"s_lshl_b32 s30, s2, 4\ns_add_u32 s30, s30, s{S_WAVE}\ns_cmp_lg_u32 s30, {255*16}\ns_cbranch_scc1 L_nz\ns_mov_b32 s30, {FL}\nv_mov_b32 v24, 0\nv_mov_b32 v25, 0\nv_mov_b32 v26, 0\nv_mov_b32 v27, 0")
        for i in range(FLBYTES // 1024):
            a(f"buffer_store_dwordx4 v[24:27], v3, s[4:7], s30 offen offset:{(i%4)*1024} {WT}")
            if i % 4 == 3: a("s_add_u32 s30, s30, 4096")
        a(f"""
        s_waitcnt vmcnt(0)
        v_mov_b32 v28, 1
        s_mov_b64 exec, 1
        global_store_dword v8, v28, s[{P_DBG}:{P_DBG+1}] {WT}
        s_mov_b64 exec, -1
        """)
        a.label("L_nz")
    def dbg_load(self):
        self.a(f"v_mov_b32 v152, 0\nglobal_load_dword v153, v152, s[{P_DBG}:{P_DBG+1}]")
    def dbg_verify(self):
        a = self.a; l = a.newlabel("L_dv")
        a("s_mov_b32 s33, 0")
        a.label(l)
        a(f"""
        v_readfirstlane_b32 s32, v153
        s_cmp_eq_u32 s32, 1
        s_cbranch_scc1 {l}x
        s_add_u32 s33, s33, 1
        s_cmp_gt_u32 s33, {SPIN_MAX}
        s_cbranch_scc1 {l}x
        s_sleep 8
        global_load_dword v153, v152, s[{P_DBG}:{P_DBG+1}] sc0 sc1
        s_waitcnt vmcnt(0)
        s_branch {l}
        """)
        a.label(l + "x")
        a(f"ds_write_b32 v{self.WA}, v{self.ONE} offset:{W_OK - W_BAR}")
    def wait_ok(self, T):
        self.a(f"v_mov_b32 v{T}, {W_OK}")
        self.lds_spin(T, T + 1, 1, sleep=2)

    def kv_setup(self, T, VV, first):
        a = self.a
        a(f"""
        s_lshr_b32 s30, s{S_HD}, 1
        s_mul_i32 s30, s30, 9
        s_and_b32 s31, s{S_HD}, 1
        s_lshl_b32 s31, s31, 2
        s_add_u32 s36, s30, s31                  ; f
        s_add_u32 s30, s36, s{S_LW}
        s_lshl_b32 s30, s30, 10
        s_mul_i32 s31, {first}, {2*QS*1024}
        s_add_u32 s30, s30, s31
        s_add_u32 s{S_GK}, s30, {QKP + 144*1024}
        s_cmp_eq_u32 s{S_LW}, 0
        s_cselect_b32 s{S_K4}, 0, {(QS-5)*1024}
        s_add_u32 s{S_K4}, s{S_K4}, 4096
        s_mul_i32 s30, s{S_HD}, 288
        s_mul_i32 s31, s{S_LW}, {3*VS}
        s_add_u32 s30, s30, s31
        s_mul_i32 s31, {first}, {32*VS}
        s_add_u32 s30, s30, s31
        s_add_u32 s{S_GV}, s30, {VT}
        v_mul_u32_u24 v{T}, 27, v2
        v_lshrrev_b32 v{T}, 9, v{T}
        v_mul_u32_u24 v{VV}, 19, v{T}
        v_sub_u32 v{VV}, v2, v{VV}
        v_cmp_gt_u32 vcc, 18, v{VV}
        v_cmp_gt_u32 s[58:59], 3, v{T}
        v_cmp_gt_u32 s[60:61], 2, v{T}
        v_mul_u32_u24 v{T}, {VS}, v{T}
        v_lshl_add_u32 v{VV}, v{VV}, 4, v{T}
        s_and_b64 s[58:59], s[58:59], vcc
        s_and_b64 s[60:61], s[60:61], vcc
        s_cmp_eq_u32 s{S_LW}, 2
        s_cselect_b64 s[60:61], s[60:61], s[58:59]
        s_add_u32 s30, {first}, {C0}
        s_and_b32 s30, s30, 7
        s_mul_i32 s{S_LP}, s30, {CHB}
        v_mul_u32_u24 v{VV+1}, {VROW}, v1
        v_add_u32 v{VV+1}, {10240 + 288}, v{VV+1}
        """)
    def k_part(self):
        a = self.a; l1 = a.newlabel("L_kd")
        a(f"""
        s_lshl_b32 s31, s{S_LW}, 10
        s_add_u32 s31, s31, s{S_LP}
        s_mov_b32 m0, s31
        s_add_u32 s30, s{S_GK}, s{S_K4}
        buffer_load_dwordx4 v3, s[4:7], s{S_GK} offen {LDF} lds
        s_add_u32 m0, s31, 4096
        s_cmp_ge_u32 s{S_LW}, 2
        buffer_load_dwordx4 v3, s[4:7], s30 offen {LDF} lds
        s_cbranch_scc1 {l1}
        s_add_u32 m0, s31, 8192
        s_add_u32 s30, s{S_GK}, {(QS+3)*1024}
        buffer_load_dwordx4 v3, s[4:7], s30 offen {LDF} lds
        """)
        a.label(l1)
    def v_part(self, VV, ONES, T):
        a = self.a; l2 = a.newlabel("L_vd")
        a(f"""
        s_mul_i32 s31, s{S_LW}, {3*VROW}
        s_add_u32 s31, s31, s{S_LP}
        s_add_u32 m0, s31, 10240
        s_mov_b64 exec, s[58:59]
        buffer_load_dwordx4 v{VV}, s[4:7], s{S_GV} offen {LDF} lds
        s_add_u32 m0, s31, {10240 + 12*VROW}
        s_add_u32 s30, s{S_GV}, {12*VS}
        buffer_load_dwordx4 v{VV}, s[4:7], s30 offen {LDF} lds
        s_cmp_eq_u32 s{S_LW}, 3
        s_cbranch_scc1 {l2}
        s_add_u32 m0, s31, {10240 + 24*VROW}
        s_add_u32 s30, s{S_GV}, {24*VS}
        s_mov_b64 exec, s[60:61]
        buffer_load_dwordx4 v{VV}, s[4:7], s30 offen {LDF} lds
        """)
        a.label(l2)
        a(f"s_mov_b64 exec, -1\nv_add_u32 v{T}, s{S_LP}, v{VV+1}\nds_write_b128 v{T}, v[{ONES}:{ONES+3}]")
    def kv_next(self):
        self.a(f"""
        s_add_u32 s{S_GK}, s{S_GK}, {2*QS*1024}
        s_add_u32 s{S_GV}, s{S_GV}, {32*VS}
        s_add_u32 s{S_LP}, s{S_LP}, {CHB}
        s_cmp_eq_u32 s{S_LP}, {8*CHB}
        s_cselect_b32 s{S_LP}, 0, s{S_LP}
        """)
    def kv_half(self, grp, VV, ONES, T):
        a = self.a; l = a.newlabel("L_kh")
        a(f"s_cmp_lg_u32 s{grp}, 0\ns_cbranch_scc1 {l}v")
        self.k_part()
        a(f"s_branch {l}e")
        a.label(l + "v")
        self.v_part(VV, ONES, T)
        a.label(l + "e")
        self.kv_next()
    def poll_f1(self, lab, T, poller=False):
        a = self.a
        a(f"v_mov_b32 v{T+2}, {W_F1}")
        if poller:
            a(f"s_cmp_lg_u32 s{S_WAVE}, 4\ns_cbranch_scc1 {lab}_w")
            self.wait_ok(T)
            a(f"s_mul_i32 s34, s{S_HD}, {F1STRIDE}\ns_add_u32 s34, s34, {F1}\nv_and_b32 v{T}, {NSUB-1}, v2\nv_lshlrev_b32 v{T}, 7, v{T}")
            self.poll(lab, T + 1, T, "s34", want=str(864 // NSUB), sleep=int(self.opt.get("f1sleep", 4)))
            a(f"v_mov_b32 v{T}, 1\nds_write_b32 v{T+2}, v{T}")
            a.label(lab + "_w")
        self.lds_spin(T + 2, T + 1, 1, sleep=1)

    def wait_prog(self, val, T, sleep=4):
        a = self.a; lab = a.newlabel("L_pg")
        a(f"v_and_b32 v{T}, 3, v2\nv_lshlrev_b32 v{T}, 2, v{T}\nv_add_u32 v{T}, {W_PROG}, v{T}\ns_mov_b32 s33, 0\ns_mov_b32 s30, {FIN_BAD}")
        a.label(lab)
        a(f"""
        ds_read_b32 v{T+1}, v{T}
        s_add_u32 s33, s33, 1
        s_waitcnt lgkmcnt(0)
        v_cmp_gt_u32 vcc, {val}, v{T+1}
        s_cmp_gt_u32 s33, {SPIN_MAX*8}
        s_cbranch_scc1 {lab}x
        s_cbranch_vccz {lab}x
        s_sleep {sleep}
        s_branch {lab}
        """)
        a.label(lab + "x")
    def f4(self, n, T):
        a = self.a; lab = a.newlabel("L_f4")
        a(f"s_cmp_eq_u32 s50, 0\ns_cbranch_scc1 {lab}\ns_waitcnt vmcnt({n})")
        self.flag_store([36], T)
        a.label(lab)

    def final_check(self, T, lab_bad, sleep=2):
        self.wait_prog(FIN_OK, T, sleep)
        self.a(f"v_cmp_eq_u32 vcc, s30, v{T+1}\ns_cbranch_vccnz {lab_bad}")

    def attention(self, part):
        a = self.a
        QM, QL, IDX, AK, AV, AL, T0, T1 = 4, 12, 14, 15, 16, 17, 18, 19
        KM, KL, VF, O, S0, S1 = 20, 24, 28, 44, 76, 108
        LK, LV, LL, CA, CK, PW, VV, AK2, KM2 = 140, 141, 142, 143, 144, 145, 146, 151, 152
        TQ, PAR, CH, IT, DK, FB, MC, MB_, MI = 29, 33, 43, 44, 45, 47, 48, 49, 50
        HD = S_HD
        if part == 0: self.kv_setup(T0, VV, "0")
        if part == 0: a(f"""
        s_lshr_b32 s{TQ}, s{S_IDX}, 2
        s_lshl_b32 s{TQ}, s{TQ}, 3
        s_lshl_b32 s30, s{S_LW}, 1
        s_add_u32 s{TQ}, s{TQ}, s30
        s_lshr_b32 s32, s{TQ}, 2
        s_mul_i32 s32, s32, {QS}
        s_add_u32 s32, s32, s36
        s_lshl_b32 s32, s32, 10
        s_and_b32 s30, s{TQ}, 3
        s_lshl_b32 s30, s30, 8
        s_add_u32 s32, s32, s30
        s_add_u32 s35, s32, {QKP}
        s_and_b32 s{PAR}, s{HD}, 1
        v_lshrrev_b32 v{T1}, 5, v2
        v_lshlrev_b32 v{T0}, 3, v1
        v_lshl_add_u32 v{LK}, v{T1}, 11, v{T0}
        s_lshl_b32 s30, s{PAR}, 10
        v_add_u32 v{LK}, s30, v{LK}
        s_mul_i32 s31, s{PAR}, 4092
        s_sub_u32 s31, 4096, s31
        v_add_u32 v{LL}, s31, v{T0}
        v_lshl_add_u32 v{AL}, v2, 3, s31
        v_min_u32 v{AV}, 18, v1
        v_mul_u32_u24 v{T1}, {VROW}, v{T1}
        v_lshl_add_u32 v{LV}, v{AV}, 4, v{T1}
        v_add_u32 v{LV}, {10240 + C0*CHB}, v{LV}
        v_cmp_lt_u32 vcc, 18, v1
        v_cmp_ne_u32 s[30:31], 28, v1
        s_and_b64 vcc, vcc, s[30:31]
        v_mov_b32 v{T1}, 0x100000
        v_mov_b32 v{IDX}, 0xdddd
        v_cndmask_b32 v{LV}, v{LV}, v{T1}, vcc
        v_mov_b32 v{KL}, 0x3f803f80
        v_mov_b32 v{KL+1}, 0x3f803f80
        v_mov_b32 v{KL+2}, 0x3f803f80
        v_mov_b32 v{KL+3}, 0x3f803f80
        s_lshl_b32 s30, s{S_LW}, 2
        s_add_u32 s30, s30, {W_PROG}
        v_mov_b32 v{PW}, s30
        s_mov_b32 s62, 0
        s_mov_b32 s63, -1
        s_mov_b32 s{FB}, 0
        s_mov_b32 s{MC}, 1
        s_mov_b32 s{MB_}, {C0*CHB}
        """)
        if part == 0: return
        self.stamp(4)
        self.poll_f1("L_pollF1a", S0, True)
        self.stamp(5)
        a("s_setprio 3")
        self.k_part()
        for q in range(2):
            a(f"buffer_load_dwordx2 v[{QM+4*q}:{QM+4*q+1}], v{LK}, s[4:7], s35 offen offset:{q*256} {LDF}")
            a(f"buffer_load_dwordx2 v[{QM+4*q+2}:{QM+4*q+3}], v{LK}, s[4:7], s35 offen offset:{q*256+1024} {LDF}")
        a(f"buffer_load_dword v{QL}, v{AL}, s[4:7], s35 offen {LDF}")
        self.v_part(VV, KL, T0); self.kv_next()
        self.k_part(); self.v_part(VV, KL, T0)
        a(f"v_mov_b32 v{CA}, {W_LAND}\nv_mov_b32 v{T1}, 1\ns_waitcnt vmcnt(4)")
        self.lds_add1(CA, T1)
        self.lds_spin(CA, T0, 4)
        self.stamp(6)
        a.label("L_maxpass")
        MX0, MX1 = T0, T1
        a(f"""
        v_add_u32 v{AK}, s{MB_}, v{LK}
        v_add_u32 v{AL}, s{MB_}, v{LL}
        v_mov_b32 v{QL+1}, 0
        v_mov_b32 v{MX0}, 0xff800000
        v_mov_b32 v{MX1}, 0xff800000
        s_mov_b32 s{MI}, 0
        """)
        def rdKm(t): o = (t // 4) * 10 + (t % 4) // 2; k = KM2 if t % 2 else KM; a(f"ds_read2st64_b64 v[{k}:{k+3}], v{AK2 if t % 2 else AK} offset0:{o} offset1:{o+2}")
        def rdKl(t): a(f"ds_read_b32 v{KL+2*(t%2)}, v{AL} offset:{(t//4)*5120 + (t%4)*256}")
        def rdV(m, t): a(f"ds_read_b128 v[{VF+8*(t%2)+4*m}:{VF+8*(t%2)+4*m+3}], v{AV} offset:{(t*4+m*2)*VROW}")
        def b2(N, t): a(f"v_mfma_f32_32x32x4_2b_bf16 v[{N}:{N+31}], v[{KL+2*(t%2)}:{KL+2*(t%2)+1}], v[{QL}:{QL+1}], 0")
        def mainm(N, q, t=0): k = KM2 if t % 2 else KM; a(f"v_mfma_f32_32x32x16_bf16 v[{N+16*q}:{N+16*q+15}], v[{k}:{k+3}], v[{QM+4*q}:{QM+4*q+3}], v[{N+16*q}:{N+16*q+15}]")
        def smf(n, S, t):
            o = O + 16 * (n // 2); v = VF + 8 * (t % 2) + 4 * (n % 2)
            a(f"v_smfmac_f32_32x32x32_bf16 v[{o}:{o+15}], v[{v}:{v+3}], v[{S+8*n}:{S+8*n+7}], v{IDX}")
        RO = bool(self.opt.get("ro"))
        EO = (list(range(0, 8)) + list(range(16, 24)) + list(range(8, 16)) + list(range(24, 32))) if RO else list(range(32))
        def E(S, lo, hi):
            for r in range(lo, hi): a(f"v_exp_f32 v{S+EO[r]}, v{S+EO[r]}")
        a.label("L_maxloop")
        rdKl(0); rdKm(0)
        a(f"""
        s_mov_b32 s30, 256
        s_and_b32 s31, s{MI}, 3
        s_cmp_eq_u32 s31, 3
        s_cselect_b32 s30, {5120-768}, s30
        s_and_b32 s31, s{MI}, 7
        s_cmp_eq_u32 s31, 7
        s_cselect_b32 s30, {CHB-5120-768}, s30
        s_add_u32 s{MI}, s{MI}, 1
        s_waitcnt lgkmcnt(0)
        """)
        b2(S0, 0)
        a(f"v_add_u32 v{AK}, s30, v{AK}\nv_add_u32 v{AL}, s30, v{AL}")
        for i in range(16): a(f"v_mov_b32 v{O+i}, 0")
        mainm(S0, 0); mainm(S0, 1)
        for i in range(16): a(f"v_mov_b32 v{O+16+i}, 0")
        for i in range(8): a(f"v_max3_f32 v{MX0}, v{S0+2*i}, v{S0+2*i+1}, v{MX0}\nv_max3_f32 v{MX1}, v{S0+16+2*i}, v{S0+16+2*i+1}, v{MX1}")
        a(f"""
        s_cmp_lt_u32 s{MI}, s{MC}
        s_cbranch_scc1 L_maxloop
        v_add_u32 v{AK}, {C0*CHB}, v{LK}
        v_add_u32 v{AL}, {C0*CHB}, v{LL}
        v_mov_b32 v{AV}, v{LV}
        v_add_u32 v{AK2}, 256, v{AK}
        """)
        rdKl(0); rdKm(0); rdKl(1); rdV(0, 0); rdV(1, 0)
        a(f"""
        v_permlane32_swap_b32 v{MX0}, v{MX1}
        s_mov_b32 s{CH}, {(-7*CHB) & 0xffffffff}
        s_mov_b32 s{IT}, 0
        v_max_f32 v{MX1}, v{MX0}, v{MX1}
        v_cvt_pk_bf16_f32 v{T0}, -v{MX1}, 0
        v_lshlrev_b32 v{T0}, 16, v{T0}
        v_sub_f32 v{T0}, -v{MX1}, v{T0}
        v_cvt_pk_bf16_f32 v{QL+1}, -v{MX1}, v{T0}
        v_mov_b32 v{CA}, {W_LAND}
        v_mov_b32 v{T1}, 1
        s_waitcnt lgkmcnt(3)
        """)
        b2(S0, 0)
        for i in range(8): a(f"v_mov_b32 v{S1+24+i}, 0")
        for i in range(4): a(f"v_mov_b32 v{VF+12+i}, 0")
        a("s_nop 5")
        mainm(S0, 0); mainm(S0, 1)
        rdKm(1)
        a("s_nop 8\ns_waitcnt lgkmcnt(0)")
        self.stamp(7); self.stamp(61)
        a.raw(".p2align 6")
        a.label("L_loop")
        for i in range(8):
            C, N = (S0, S1) if i % 2 == 0 else (S1, S0)
            E(C, 0, 2)
            smf(3, N, i + 1)
            if i == 7: a(f"v_add_u32 v{AV}, s{DK}, v{AV}")
            rdV(0, (i + 1) % 8)
            if not self.opt.get("w0"): a("s_waitcnt lgkmcnt(1)")
            E(C, 2, 6)
            b2(N, i + 1)
            rdV(1, (i + 1) % 8)
            if i == 1: a(f"ds_write_b32 v{PW}, v{CA}")
            if i == 5: a(f"ds_read_b32 v{CK}, v{CA} offset:4")
            if i == 0:
                a(f"s_cmp_eq_u32 s{IT}, {7-C0}\ns_cselect_b32 s{DK}, s{CH}, {CHB}")
            if i == 3:
                a(f"s_cmp_eq_u32 s{IT}, s{FB}\ns_cbranch_scc1 L_sig1")
                a.label("L_sig1r")
            if i == 6:
                a(f"""
                v_readfirstlane_b32 s30, v{CK}
                v_add_u32 v{AK}, s{DK}, v{AK}
                v_add_u32 v{AL}, s{DK}, v{AL}
                v_add_u32 v{AK2}, s{DK}, v{AK2}
                v_add_u32 v{CA}, 4, v{CA}
                s_cmp_lt_u32 s30, 4
                s_cbranch_scc1 L_wait
                """)
                a.label("L_waitret")
            E(C, 6, 14)
            smf(0, C, i)
            rdKl((i + 2) % 8)
            E(C, 14, 18)
            smf(2 if RO else 1, C, i)
            rdKm((i + 2) % 8)
            E(C, 18, 22)
            mainm(N, 0, i + 1)
            E(C, 22, 26)
            if RO: mainm(N, 1, i + 1)
            else: smf(2, C, i)
            if i == 7: a(f"s_add_u32 s{IT}, s{IT}, 1\ns_cmp_lt_u32 s{IT}, 8")
            E(C, 26, 30)
            if RO: smf(1, C, i)
            else: mainm(N, 1, i + 1)
            if self.opt.get("w0"): a(f"s_waitcnt lgkmcnt(0)")
            E(C, 30, 32)
        a("s_cbranch_scc1 L_loop")
        a("s_waitcnt lgkmcnt(0)\ns_nop 0")
        smf(3, S1, 7)
        self.stamp(8); self.stamp(62)
        SUM = T1
        a(f"s_mov_b32 s30, 0x5d800000\ns_mov_b32 s31, 0x7f7fffff\ns_mov_b64 s[16:17], 0\nv_mov_b32 v{SUM}, 0")
        for q in range(2):
            o = O + 16 * q
            a(f"v_cndmask_b32 v{o+10}, v{o+10}, v{o+12}, s[62:63]")
            for r in range(10): a(f"v_add_f32 v{SUM}, v{SUM}, |v{o+r}|")
            a(f"v_cmp_nge_f32 vcc, s30, v{o+10}\nv_rcp_f32 v{o+10}, v{o+10}\ns_or_b64 s[16:17], s[16:17], vcc")
        a(f"""
        v_cmp_nge_f32 vcc, s31, v{SUM}
        s_mul_i32 s30, s{TQ}, {OS}
        s_add_u32 s30, s30, {OW}
        s_or_b64 vcc, vcc, s[16:17]
        s_cmp_lg_u32 s{FB}, 0
        s_cbranch_scc1 L_fin
        s_cmp_lg_u64 vcc, 0
        s_cbranch_scc1 L_unsafe
        """)
        a.label("L_fin")
        a(f"""
        s_lshl_b32 s31, s{HD}, 10
        s_add_u32 s31, s31, s30
        s_lshl_b32 s32, s{HD}, 7
        s_add_u32 s32, s32, s30
        s_add_u32 s32, s32, 32768
        v_lshlrev_b32 v{T0}, 2, v2
        """)
        for q in range(2):
            o = O + 16 * q; d = S0 + 8 * q
            for r in range(10): a(f"v_mul_f32 v{o+r}, v{o+r}, v{o+10}")
            for r in range(5): a(f"v_cvt_pk_bf16_f32 v{d+r}, v{o+2*r}, v{o+2*r+1}")
            a(f"""
            buffer_store_dwordx4 v[{d}:{d+3}], v3, s[4:7], s31 offen {WT}
            s_mov_b32 exec_hi, 0
            buffer_store_dword v{d+4}, v{T0}, s[4:7], s32 offen {WT}
            s_mov_b32 exec_hi, -1
            s_add_u32 s31, s31, {OS}
            s_add_u32 s32, s32, {OS}
            """)
        a(f"""
        v_mov_b32 v{T1}, {FIN_OK}
        s_lshl_b32 s36, s{TQ}, 5
        s_add_u32 s36, s36, s{HD}
        s_lshl_b32 s36, s36, 2
        s_add_u32 s36, s36, {F4}
        s_add_u32 s35, s36, 128
        s_waitcnt vmcnt(0)
        """)
        self.flag_store([36, 35], AK)
        a(f"ds_write_b32 v{PW}, v{T1}")
        self.stamp(9)
        a(f"s_cmp_lg_u32 s{FB}, 0\ns_cbranch_scc1 L_redo_end")
        self.final_check(AK, "L_redo", 4)
        a("s_branch L_exit")
        a.label("L_sig1")
        a("s_waitcnt vmcnt(0)")
        self.lds_add1(CA, T1, 4)
        a("s_waitcnt lgkmcnt(0)\ns_branch L_sig1r")
        a.label("L_wait")
        self.lds_spin(CA, CK, 4)
        a("s_branch L_waitret")
        a.label("L_unsafe")
        a(f"s_mov_b32 s{FB}, 100\nv_mov_b32 v{T1}, {FIN_BAD}\nds_write_b32 v{PW}, v{T1}")
        a.label("L_redo")
        a(f"""
        s_waitcnt lgkmcnt(0)
        s_barrier
        s_barrier
        s_cmp_eq_u32 s{FB}, 0
        s_cbranch_scc1 L_redo_end
        s_mov_b32 s{MC}, 64
        s_mov_b32 s{MB_}, 0
        v_mov_b32 v{PW}, {LDS_W + 128}
        s_branch L_maxpass
        """)
        a.label("L_redo_end")
        a("s_waitcnt lgkmcnt(0)\ns_barrier\ns_branch L_exit")

    def helper_kv(self, first, n):
        a = self.a
        VV, ONES, T, ONE, WB_ = 22, 16, 24, 157, 20
        lab = a.newlabel("L_hkv")
        a(f"v_mov_b32 v{ONE}, 1\nv_mov_b32 v{WB_}, {LDS_W}")
        for i in range(4): a(f"v_mov_b32 v{ONES+i}, 0x3f803f80")
        self.kv_setup(T, VV, str(first))
        self.lds_spin(WB_, T, 4, sleep=2)
        self.k_part(); self.v_part(VV, ONES, T); self.kv_next()
        a(f"s_mov_b32 s35, 0\nv_mov_b32 v{WB_+1}, {W_LAND + 4*first}")
        a.label(lab)
        self.k_part(); self.v_part(VV, ONES, T); self.kv_next()
        a("s_waitcnt vmcnt(4)")
        self.lds_add1(WB_ + 1, ONE)
        a(f"v_add_u32 v{WB_+1}, 4, v{WB_+1}\ns_add_u32 s35, s35, 1\ns_cmp_lt_u32 s35, {n-1}\ns_cbranch_scc1 {lab}\ns_waitcnt vmcnt(0)")
        self.lds_add1(WB_ + 1, ONE)
    def helper(self):
        a = self.a
        VV, ONES, T, ONE, WB_, PB = 22, 16, 24, 157, 20, 12
        pc = lambda c: W_LAND + 4 * (c + 1)
        self.stamp(4)
        if "hprio" in self.opt: a(f"s_setprio {self.opt['hprio']}")
        a(f"v_mov_b32 v{self.WA}, {W_BAR}\nv_mov_b32 v{ONE}, 1\nv_mov_b32 v155, 0")
        a(f"v_mov_b32 v{WB_}, {LDS_W}\nv_mov_b32 v{PB}, 0\nv_mov_b32 v{PB+1}, 0")
        for i in range(4): a(f"v_mov_b32 v{ONES+i}, 0x3f803f80")
        if self.opt.get("late"): self.helper_kv(4, 4)
        else: self.helper_kv(2, 6)
        self.stamp(5)
        self.p3_ids()
        a(f"s_mov_b32 s{S_HALF}, 0")
        self.lds_spin(WB_, T, 4, W_P2 - LDS_W, sleep=16)
        a.label("L_hpf")
        a(f"s_cmp_ge_u32 s{S_IDX}, 30\ns_cbranch_scc1 L_hfin\ns_cmp_ge_u32 s{S_IDX}, 18\ns_cbranch_scc1 L_hpfa")
        self.make_vx(PB, 2, "4", "1", "16", "8", T)
        self.srd(12, P_CRE, 576 * 1152)
        a(f"""
        s_lshl_b32 s30, s{S_P3NB}, 6
        s_lshl_b32 s31, s{S_LW}, 4
        s_add_u32 s30, s30, s31
        s_mul_i32 s{S_CB}, s30, 1152
        s_mov_b32 s40, 0
        """)
        def cload(first, upto, lds0):
            lab = a.newlabel("L_cl"); ldsadj = lds0 - first * 8192
            a(f"s_mov_b32 s40, {first}")
            a.label(lab)
            a(f"""
            s_lshl_b32 s30, s40, 13
            s_add_u32 s30, s30, {ldsadj & 0xffffffff}
            s_lshl_b32 s31, s{S_LW}, 11
            s_add_u32 m0, s30, s31
            s_cmp_lt_u32 s40, 9
            s_cselect_b32 s12, s{P_CRE}, s{P_CIM}
            s_cselect_b32 s13, s{P_CRE+1}, s{P_CIM+1}
            s_cselect_b32 s31, 0, 9
            s_and_b32 s13, s13, 0xffff
            s_sub_u32 s31, s40, s31
            s_lshl_b32 s31, s31, 7
            s_add_u32 s32, s31, s{S_CB}
            buffer_load_dwordx4 v{PB}, s[12:15], s32 offen lds
            buffer_load_dwordx4 v{PB+1}, s[12:15], s32 offen offset:1024 lds
            s_add_u32 s40, s40, 1
            s_cmp_lt_u32 s40, {upto}
            s_cbranch_scc1 {lab}
            """)
        self.wait_prog(pc(2), T, 16); cload(0, 7, TSCR)
        a(f"s_cmp_lg_u32 s{S_HALF}, 0\ns_cbranch_scc1 L_hnp")
        self.b3_pre(158, 1)
        a.label("L_hnp")
        self.wait_prog(pc(5), T, 16); cload(9, 16, 0)
        a(f"s_add_u32 s32, s{S_CB}, {7*128}")
        for j in range(2):
            a(f"buffer_load_dwordx4 v[124:127], v{PB}, s[12:15], s32 offen offset:{j*128}\nbuffer_load_dwordx4 v[124:127], v{PB+1}, s[12:15], s32 offen offset:{1024+j*128}")
        self.wait_prog(pc(6), T, 8); cload(7, 9, 57344)
        a("s_branch L_hpfd")
        a.label("L_hpfa")
        self.a3_setup(PB, T)
        self.wait_prog(pc(2), T, 16); self.a3_issue(PB, 4)
        self.wait_prog(pc(5), T, 16); self.a3_issue(PB, 5)
        a.label("L_hpfd")
        a("s_waitcnt vmcnt(0)")
        self.lds_add1(WB_, ONE, W_G2 - LDS_W)
        self.stamp(6)
        a.label("L_hfin")
        a(f"s_cmp_lg_u32 s{S_HALF}, 0\ns_cbranch_scc1 L_hok")
        self.wait_prog(W_LAND + 28, T, sleep=32)
        self.final_check(T, "L_hredo", 4)
        a.label("L_hok")
        a(f"s_cmp_ge_u32 s{S_IDX}, 18\ns_cbranch_scc1 L_hopf")
        cload(16, 18, 73728)
        a(f"s_lshl_b32 s34, s{S_HALF}, 2\ns_add_u32 s34, s34, 4\ns_setprio 3\ns_branch L_b3main")
        a.label("L_hopf")
        if self.opt.get("opf"):
            a(f"""
            s_cmp_ge_u32 s{S_IDX}, 30
            s_cbranch_scc1 L_exit
            s_lshl_b32 s30, s{S_LW}, 2
            s_add_u32 s30, s30, {W_F4}
            v_mov_b32 v{T+2}, s30
            s_mul_i32 s34, s{S_P3T}, {OS}
            s_sub_u32 s31, s{S_P3NB}, 9
            s_lshl_b32 s31, s31, 12
            s_add_u32 s34, s34, s31
            s_add_u32 s34, s34, {OW + 12*1024}
            """)
            self.lds_spin(T + 2, T, 1)
            for n in range(4): a(f"buffer_load_dwordx4 v[32:35], v3, s[4:7], s34 offen offset:{n*1024}")
        a("s_branch L_exit")
        a.label("L_hredo")
        a(f"s_mov_b32 s{S_HALF}, 1\ns_waitcnt vmcnt(0) lgkmcnt(0)\ns_barrier")
        self.kv_setup(T, VV, "0")
        a("s_mov_b32 s35, 0")
        a.label("L_hredo1")
        self.k_part(); self.v_part(VV, ONES, T); self.kv_next()
        a("s_add_u32 s35, s35, 1\ns_cmp_lt_u32 s35, 8\ns_cbranch_scc1 L_hredo1\ns_waitcnt vmcnt(0) lgkmcnt(0)\ns_barrier\ns_barrier\ns_branch L_hpf")

    WA, ONE, BC = 156, 157, 47
    def arrive(self, T):
        a = self.a
        a(f"s_add_u32 s{self.BC}, s{self.BC}, 4")
        self.lds_add1(self.WA, self.ONE)
    def bar(self, T):
        self.arrive(T)
        self.lds_spin(self.WA, T, f"s{self.BC}")
    def gemm_cons(self, name, N, T, CW, rl, mfl, nfree, hooks={}):
        a = self.a
        self.lds_spin(CW, T, 4, sleep=1)
        a(f"ds_read_b32 v{T}, v{CW} offset:4")
        for x in rl(0): a(x)
        for s in range(N - 1):
            mf = mfl(s); p = f"{name}_{s}"
            a("s_waitcnt lgkmcnt(0)")
            a(f"v_readfirstlane_b32 s32, v{T}")
            a(mf[0])
            self.stampx(16)
            if s < nfree: self.lds_add1(CW, self.ONE, 256 + 4 * s)
            a(f"s_cmp_lt_u32 s32, 4\ns_cbranch_scc1 {p}s")
            a.label(p + "r")
            self.stubs.append((p, CW, T, 4 * (s + 1)))
            oth = rl(s + 1) + ([f"ds_read_b32 v{T}, v{CW} offset:{4*(s+2)}"] if s + 2 < N else [])
            ilv(a, mf[1:8], oth)
            if s in hooks: hooks[s]()
        a("s_waitcnt lgkmcnt(0)")
        if N - 1 < nfree: self.lds_add1(CW, self.ONE, 256 + 4 * (N - 1))
        for m in mfl(N - 1): a(m)
    def emit_stubs(self):
        a = self.a
        for p, CW, T, off in self.stubs:
            a.label(p + "s")
            self.lds_spin(CW, T, 4, off, sleep=int(self.opt.get('cslp', 0)))
            a(f"s_branch {p}r")
    def gemm_load(self, name, nslot, CB, ONE, T, issue):
        a = self.a
        a("s_mov_b32 s41, 0")
        if self.opt.get("early"): a(f"s_cmp_lg_u32 s{S_TYPE}, 2\ns_cbranch_scc1 {name}e")
        a.label(name + "w")
        a(f"s_cmp_lt_u32 s40, {nslot}\ns_cbranch_scc1 {name}")
        self.lds_spin(T + 1, T, 4)
        a.label(name)
        if self.opt.get("pause"):
            a(f"v_mov_b32 v{T+2}, {LDS_W}\nds_read_b32 v{T+3}, v{T+2} offset:{W_F1 - LDS_W}\ns_waitcnt lgkmcnt(0)\nv_readfirstlane_b32 s32, v{T+3}\ns_cmp_eq_u32 s32, 0\ns_cbranch_scc1 {name}p\ns_cmp_lt_u32 s{S_WAVE}, 8\ns_cbranch_scc1 {name}p")
            self.lds_spin(T + 2, T + 3, 4, sleep=1)
            a.label(name + "p")
        issue()
        a.label(name + "e")
        a(f"""
        s_cmp_lt_u32 s40, s45
        s_cselect_b32 s44, 2, 1
        s_add_u32 s44, s44, s40
        s_lshl_b32 s30, s44, 2
        s_add_u32 s30, s30, s43
        s_add_u32 s30, s30, {256 - 4*nslot}
        v_mov_b32 v{T+1}, s30
        ds_read_b32 v{T}, v{T+1}
        s_cmp_eq_u32 s41, 0
        s_cbranch_scc1 {name}n
        s_waitcnt vmcnt(6)
        """)
        self.lds_add1(CB, ONE)
        a.label(name + "n")
        a(f"""
        s_lshl_b32 s30, s40, 2
        s_add_u32 s30, s30, s43
        v_mov_b32 v{CB}, s30
        s_mov_b32 s40, s44
        s_mov_b32 s41, 1
        s_waitcnt lgkmcnt(0)
        v_readfirstlane_b32 s32, v{T}
        s_cmp_lt_u32 s40, s46
        s_cselect_b32 s32, 4, s32
        s_cmp_ge_u32 s40, s42
        s_cselect_b32 s32, 0, s32
        s_cmp_ge_u32 s32, 4
        s_cbranch_scc1 {name}
        s_waitcnt vmcnt(0)
        """)
        self.lds_add1(CB, ONE)
        a(f"s_mov_b32 s41, 0\ns_cmp_lt_u32 s40, s42\ns_cbranch_scc1 {name}w")
    def b1_loader(self):
        a = self.a
        VX, VB, CW, ONE, T = 60, 64, 66, 67, 68
        XB, WB, SL, NS = 16, 17, 18, 19
        self.make_vx(VX, 4, "16", "1", "8", "4", T)
        self.make_vx(VB, 2, "4", "1", "16", "8", T)
        self.srd(8, P_BX, 2048 * 1152)
        a(f"""
        s_cmp_lt_u32 s{S_LW}, 2
        s_cselect_b32 s12, s{P_BRE}, s{P_BIM}
        s_cselect_b32 s13, s{P_BRE+1}, s{P_BIM+1}
        s_and_b32 s13, s13, 0xffff
        s_mov_b32 s14, {576*1152}
        s_mov_b32 s15, 0x20000
        s_lshl_b32 s30, s{S_MB}, 7
        s_lshl_b32 s31, s{S_LW}, 5
        s_add_u32 s30, s30, s31
        s_mul_i32 s{XB}, s30, 1152
        s_cmp_eq_u32 s{S_TYPE}, 2
        s_cselect_b32 s30, s{S_CHA}, s{S_CHB}
        s_cselect_b32 s{NS}, 18, 9
        s_lshl_b32 s30, s30, 5
        s_and_b32 s31, s{S_LW}, 1
        s_lshl_b32 s31, s31, 4
        s_add_u32 s30, s30, s31
        s_mul_i32 s{WB}, s30, 1152
        v_mov_b32 v{CW}, {W_FULL}
        v_mov_b32 v{ONE}, 1
        s_lshr_b32 s27, s{S_WAVE}, 3
        """)
        def issue():
            a(f"""
            s_add_u32 s31, s40, s28
            s_sub_u32 s30, s31, 9
            s_cmp_ge_u32 s31, 9
            s_cselect_b32 s31, s30, s31
            s_lshl_b32 s31, s31, 7
            {"s_and_b32 s%d, s40, 3" % SL if NS1 == 4 else "s_mul_i32 s30, s40, 43" + chr(10) + "s_lshr_b32 s30, s30, 7" + chr(10) + "s_mul_i32 s30, s30, 3" + chr(10) + "s_sub_u32 s%d, s40, s30" % SL}
            s_mul_i32 s{SL}, s{SL}, {BSLOT}
            s_add_u32 s{SL}, s{SL}, {B1BASE}
            s_lshl_b32 s30, s{S_LW}, 12
            s_add_u32 m0, s30, s{SL}
            s_add_u32 s32, s31, s{XB}
            """)
            for n in range(4): a(f"buffer_load_dwordx4 v{VX+n}, s[8:11], s32 offen offset:{n*1024} lds")
            a(f"s_lshl_b32 s30, s{S_LW}, 11\ns_add_u32 s30, s30, s{SL}\ns_add_u32 m0, s30, 16384\ns_add_u32 s32, s31, s{WB}")
            for n in range(2): a(f"buffer_load_dwordx4 v{VB+n}, s[12:15], s32 offen offset:{n*1024} lds")
        def run():
            a(f"s_mov_b32 s43, {W_FULL}\ns_mov_b32 s45, {self.opt.get('ashare', 6)}")
            a(f"s_cmp_eq_u32 s{S_TYPE}, 2\ns_cselect_b32 s46, {NS1}, {0 if self.opt.get('sig1', '1') == '1' else NS1}")
            a.label("L_l1job")
            if self.opt.get("late"):
                a(f"s_cmp_lg_u32 s{NS}, 9\ns_cbranch_scc1 L_l1go\ns_cmp_lt_u32 s{S_WAVE}, 8\ns_cbranch_scc1 L_p1_fin\ns_mov_b32 s45, 0")
                self.helper_kv(2, 2)
                a.label("L_l1go")
            a(f"s_xor_b32 s40, s27, 1\ns_cmp_eq_u32 s27, 0\ns_cselect_b32 s42, {self.opt.get('ashare', 6)}, 9")
            self.gemm_load("L_l1", NS1, CW, ONE, T, issue)
            a(f"""
            s_add_u32 s30, s43, {256 + 32}
            v_mov_b32 v{T+1}, s30
            s_cmp_lt_u32 s{S_WAVE}, 8
            s_cbranch_scc1 L_p1_fin
            s_cmp_eq_u32 s{NS}, 9
            s_cbranch_scc1 L_l1end
            s_mov_b32 s45, 0
            s_mov_b32 s{NS}, 9
            s_sub_u32 s30, s{S_CHA}, s{S_CHB}
            s_mul_i32 s30, s30, {32*1152}
            s_sub_u32 s{WB}, s{WB}, s30
            s_add_u32 s43, s43, 36
            """)
            self.lds_spin(T + 1, T, 4, sleep=1)
            a("s_branch L_l1job")
            a.label("L_l1end")
            self.lds_spin(T + 1, T, 4, sleep=1)
        self.b1_run = run; self.b1_issue = issue

    def aux(self):
        a = self.a
        AX, AW, FX, ACC, T = 4, 8, 16, 80, 148
        SS, SLOT, DL, WM, WN = 40, 41, 42, 43, 44
        a.label("L_aux")
        a(f"""
        s_setprio 3
        s_mov_b32 s{S_HALF}, 0
        s_mov_b32 s{S_CH}, s{S_CHA}
        s_mov_b32 s62, 0
        s_mov_b32 s63, -1
        """)
        self.aux_start()
        a(f"s_cmp_eq_u32 s{S_TYPE}, 2\ns_cbranch_scc1 L_aux_sp")
        self.lam_early(f"s{S_CHB}")
        if not self.opt.get("nowarmx"):
            self.srd(12, P_BX, 2048 * 1152)
            a(f"""
            s_and_b32 s30, s{S_XCD}, 3
            s_mul_i32 s30, s30, 589824
            s_lshr_b32 s31, s{S_XCD}, 2
            s_mul_i32 s31, s31, 28
            s_add_u32 s31, s31, s{S_IDX}
            s_lshl_b32 s31, s31, 2
            s_add_u32 s31, s31, s{S_WAVE}
            s_mul_i32 s31, s31, 2688
            s_add_u32 s30, s30, s31
            v_lshlrev_b32 v16, 6, v2
            s_mov_b32 exec_hi, 0x3ff
            buffer_load_dword v154, v16, s[12:15], s30 offen
            s_mov_b32 exec_hi, -1
            """)
        a(f"""
        s_cmp_lt_u32 s{S_LW}, 2
        s_cselect_b32 s12, s{P_BRE}, s{P_BIM}
        s_cselect_b32 s13, s{P_BRE+1}, s{P_BIM+1}
        s_and_b32 s13, s13, 0xffff
        s_mov_b32 s14, {576*1152}
        s_mov_b32 s15, 0x20000
        s_lshl_b32 s30, s{S_IDX}, 1
        s_and_b32 s31, s{S_LW}, 1
        s_add_u32 s30, s30, s31
        s_mul_i32 s30, s30, 5952
        s_lshr_b32 s31, s{S_XCD}, 2
        s_mul_i32 s31, s31, {288*1152}
        s_add_u32 s45, s30, s31
        s_add_u32 s46, s45, 4096
        v_lshlrev_b32 v155, 6, v2
        """)
        if self.opt.get("wbat") == "0": a("buffer_load_dword v154, v155, s[12:15], s45 offen\ns_mov_b32 exec_hi, 0\nbuffer_load_dword v154, v155, s[12:15], s46 offen\ns_mov_b32 exec_hi, -1")
        a(f"s_lshr_b32 s{WM}, s{S_WAVE}, 1\ns_and_b32 s{WN}, s{S_WAVE}, 1\ns_lshl_b32 s30, s{WM}, 13")
        self.swz(AX, T, "s30")
        a(f"""
        v_bfe_u32 v{T+2}, v2, 2, 2
        v_lshl_add_u32 v{T+3}, v{T+1}, 3, v{T+2}
        v_lshlrev_b32 v{T+3}, 8, v{T+3}
        v_bfe_u32 v{T+4}, v2, 4, 1
        v_lshl_add_u32 v{T+3}, v{T+4}, 5, v{T+3}
        v_and_b32 v{T+4}, 3, v2
        v_lshl_add_u32 v{T+3}, v{T+4}, 3, v{T+3}
        v_add_u32 v{T+3}, 16384, v{T+3}
        s_lshl_b32 s30, s{WN}, 1
        v_xor_b32 v{T+4}, s30, v{T+2}
        v_lshl_add_u32 v{AW}, v{T+4}, 6, v{T+3}
        v_xor_b32 v{AW+1}, 64, v{AW}
        """)
        for i in range(64): a(f"v_mov_b32 v{ACC+i}, 0")
        a(f"s_mov_b32 s{SS}, 0\ns_mov_b32 s{SLOT}, 0\ns_barrier")
        self.stampx(16, True); self.stamp(61)
        def nextslot(stride, total):
            a(f"""
            s_add_u32 s30, s{SLOT}, {stride}
            s_cmp_eq_u32 s30, {total}
            s_cselect_b32 s30, 0, s30
            s_sub_u32 s{DL}, s30, s{SLOT}
            s_mov_b32 s{SLOT}, s30
            s_add_u32 s{SS}, s{SS}, 1
            """)
        def reads(s):
            l = [f"ds_read_b128 v[{FX+s*16+mt*4}:{FX+s*16+mt*4+3}], v{AX+s} offset:{mt*4096}" for mt in range(2)]
            for nt in range(2):
                for hf in range(2):
                    r = FX + s * 16 + 8 + nt * 4 + hf * 2
                    l.append(f"ds_read_b64_tr_b16 v[{r}:{r+1}], v{AW+nt} offset:{s*4096 + hf*1024}")
            return l
        for x in reads(0) + reads(1): a(x)
        a(f"s_cmp_eq_u32 s{S_TYPE}, 1\ns_cbranch_scc1 L_a1v")
        def a1loop(vtype, lab):
            a.label(lab)
            for s in range(4):
                a("s_waitcnt lgkmcnt(6)")
                if s == 2:
                    a(f"s_cmp_lt_u32 s{SS}, 9\ns_cbranch_scc1 {lab}b\ns_waitcnt lgkmcnt(0)")
                    a.label(lab + "b")
                    a("s_barrier")
                    self.stampx(16)
                mf = []
                for mt in range(2):
                    for nt in range(2):
                        d = ACC + (mt * 2 + nt) * 16
                        x = f"v[{FX+s*16+mt*4}:{FX+s*16+mt*4+3}]"; w = f"v[{FX+s*16+8+nt*4}:{FX+s*16+8+nt*4+3}]"
                        A, B = (x, w) if vtype else (w, x)
                        mf.append(f"v_mfma_f32_32x32x16_bf16 v[{d}:{d+15}], {A}, {B}, v[{d}:{d+15}]")
                ilv(a, mf, reads((s + 2) % 4))
                if s == 0: nextslot(32768, 163840)
                if s == 3 and not self.opt.get("warmb_old") and self.opt.get("wbat") != "0":
                    a(f"s_cmp_lg_u32 s{SS}, {self.opt.get('wbat', 2)}\ns_cbranch_scc1 {lab}w")
                    a("buffer_load_dword v154, v155, s[12:15], s45 offen\ns_mov_b32 exec_hi, 0\nbuffer_load_dword v154, v155, s[12:15], s46 offen\ns_mov_b32 exec_hi, -1\ns_nop 3")
                    a.label(lab + "w")
                if s == 1:
                    for r in (AX, AX + 1, AX + 2, AX + 3, AW, AW + 1): a(f"v_add_u32 v{r}, s{DL}, v{r}")
            a(f"s_cmp_lt_u32 s{SS}, 9\ns_cbranch_scc1 {lab}")
        a1loop(False, "L_a1qk")
        self.stamp(1); self.stamp(62)
        self.dbg_load()
        a(f"""
        s_lshl_b32 s30, s{S_NB}, 5
        s_lshl_b32 s31, s{WN}, 4
        s_add_u32 s30, s30, s31
        s_mul_i32 s31, s{S_MB}, {QS}
        s_add_u32 s31, s31, s30
        s_lshl_b32 s31, s31, 10
        s_lshl_b32 s32, s{WM}, 9
        s_add_u32 s31, s31, s32
        s_add_u32 s31, s31, {QKP}
        v_lshlrev_b32 v{T+2}, 4, v1
        v_lshl_add_u32 v{T+2}, v{T+1}, 10, v{T+2}
        s_mov_b32 s32, {QSCALE}
        s_cmp_ge_u32 s30, 144
        s_cselect_b32 s32, 1.0, s32
        s_mov_b32 s33, s32
        s_waitcnt lgkmcnt(0)
        """)
        for nt in range(2):
            for g in range(4):
                o = FX + (nt * 4 + g) * 4
                for mt in range(2):
                    d = ACC + (mt * 2 + nt) * 16 + 4 * g
                    a(f"v_pk_mul_f32 v[{d}:{d+1}], v[{d}:{d+1}], s[32:33]\nv_pk_mul_f32 v[{d+2}:{d+3}], v[{d+2}:{d+3}], s[32:33]")
                for mt in range(2):
                    d = ACC + (mt * 2 + nt) * 16 + 4 * g
                    a(f"v_cvt_pk_bf16_f32 v{o+2*mt}, v{d}, v{d+1}\nv_cvt_pk_bf16_f32 v{o+2*mt+1}, v{d+2}, v{d+3}")
                a(f"buffer_store_dwordx4 v[{o}:{o+3}], v{T+2}, s[4:7], s31 offen offset:{(g%2)*2048} {WT}")
                if g % 2 == 1: a("s_add_u32 s31, s31, 4096")
        a("s_branch L_a1done")
        a1loop(True, "L_a1v")
        self.stamp(1); self.stamp(62)
        self.dbg_load()
        a(f"""
        s_sub_u32 s30, s{S_NB}, 9
        s_lshl_b32 s30, s30, 7
        s_lshl_b32 s31, s{WN}, 6
        s_add_u32 s30, s30, s31
        s_lshl_b32 s31, s{S_MB}, 4
        s_lshl_b32 s32, s{WM}, 3
        s_add_u32 s31, s31, s32
        s_mul_i32 s31, s31, {VS}
        s_lshl_b32 s32, s30, 4
        s_add_u32 s31, s31, s32
        s_add_u32 s31, s31, {VT}
        v_mul_u32_u24 v{T+2}, {VS}, v{T+1}
        v_lshl_add_u32 v{T+2}, v1, 4, v{T+2}
        s_waitcnt lgkmcnt(0)
        s_cmp_ge_u32 s30, 576
        s_cbranch_scc1 L_a1done
        """)
        for mt in range(2):
            for m in range(2):
                for nt in range(2):
                    d = ACC + (mt * 2 + nt) * 16 + 8 * m
                    for r in range(4): a(f"v_cvt_pk_bf16_f32 v{d+r}, v{d+2*r}, v{d+2*r+1}")
                    a(f"buffer_store_dwordx4 v[{d}:{d+3}], v{T+2}, s[4:7], s31 offen offset:{nt*512} {WT}")
                a(f"s_add_u32 s31, s31, {2*VS}")
        a.label("L_a1done")
        self.stamp(2)
        if self.opt.get("drain1"): a("s_waitcnt vmcnt(0)"); self.stamp(7)
        a(f"s_mov_b32 s{S_HALF}, 1\ns_mov_b32 s{S_CH}, s{S_CHB}\ns_branch L_b1pre")
        a.label("L_aux_sp")
        a("s_barrier")
        self.zero_flags()
        self.lam_early(f"s{S_CHA}")
        a(f"""
        s_lshl_b32 s30, s{S_CHB}, 6
        v_lshl_add_u32 v23, v1, 1, s30
        global_load_ushort v166, v23, s[{P_LRE}:{P_LRE+1}]
        global_load_ushort v24, v23, s[{P_LIM}:{P_LIM+1}]
        global_load_ushort v154, v23, s[{P_LDT}:{P_LDT+1}]
        s_waitcnt vmcnt(0)
        v_lshl_or_b32 v166, v24, 16, v166
        """)
        AB, BF, WA, ONE, AC1, CW, RAW, AX2, AB2 = 8, 16, self.WA, self.ONE, 112, 155, 164, 144, 148
        T = 158; BC = self.BC
        PA = [164, 165, 12, 13, 14, 15]
        a.label("L_b1pre")
        for i in range(2): a(f"v_mov_b32 v{164+i}, v{10+i}")
        a(f"s_mov_b32 s{BC}, 0\nv_mov_b32 v{WA}, {W_BAR}\nv_mov_b32 v{ONE}, 1\nv_mov_b32 v{CW}, {W_FULL}\ns_lshl_b32 s48, s{S_LW}, 12\ns_lshl_b32 s49, s{S_LW}, 11")
        if self.opt.get("iss"): self.lds_add1(WA, ONE, W_ISS - W_BAR)
        self.swz(AB, T, B1BASE + 16384)
        a(f"s_sub_u32 s30, s48, 16384")
        for s in range(4): a(f"v_add_u32 v{AX+s}, s30, v{AB+s}")
        def publish():
            a(f"""
            s_cmp_eq_u32 s{S_TYPE}, 2
            s_cbranch_scc1 L_pubx
            s_lshl_b32 s30, s{S_NB}, 7
            s_add_u32 s31, s30, 128
            s_cmp_eq_u32 s{S_TYPE}, 1
            s_cselect_b32 s32, 1152, 0
            v_mul_u32_u24 v{T+2}, 18, v2
            v_add_u32 v{T+2}, s32, v{T+2}
            v_add_u32 v{T+3}, 18, v{T+2}
            v_max_u32 v{T+2}, s30, v{T+2}
            v_min_u32 v{T+3}, s31, v{T+3}
            v_min_u32 v{T+3}, 0x6c0, v{T+3}
            v_cmp_lt_u32 vcc, v{T+2}, v{T+3}
            v_sub_u32 v{T+2}, v{T+3}, v{T+2}
            v_mul_u32_u24 v{T+3}, {F1STRIDE}, v1
            s_and_b32 s31, s{S_MB}, {NSUB-1}
            s_lshl_b32 s31, s31, 7
            s_add_u32 s31, s31, {F1}
            """)
            a(f"s_waitcnt vmcnt(0)")
            self.dbg_verify()
            self.stamp(9)
            a(f"""
            s_mov_b64 exec, 1
            ds_add_rtn_u32 v{T+1}, v{WA}, v{ONE} offset:4
            s_mov_b64 exec, -1
            s_waitcnt lgkmcnt(0)
            v_readfirstlane_b32 s35, v{T+1}
            s_cmp_lg_u32 s35, 3
            s_cbranch_scc1 L_pubx
            s_mov_b64 exec, vcc
            buffer_atomic_add v{T+2}, v{T+3}, s[4:7], s31 offen sc1
            s_mov_b64 exec, -1
            """)
            if self.opt.get("rt"): self.stamp(53, True); a("s_waitcnt vmcnt(0)"); self.stamp(54, True)
            a.label("L_pubx")
        a.label("L_b1")
        for s in range(4): a(f"v_add_u32 v{AB2+s}, {2*BSLOT}, v{AB+s}\nv_add_u32 v{AX2+s}, {2*BSLOT}, v{AX+s}")
        PUB = int(self.opt.get("pubat", -1))
        if PUB < 0: publish()
        def rl(st):
            l = []; ax, ab = (AX, AB) if st % NS1 < 2 else (AX2, AB2); off = ((st % NS1) % 2) * BSLOT
            for s in range(4):
                b = BF + (st % 2) * 48 + s * 12
                l.append(f"ds_read_b128 v[{b}:{b+3}], v{ax+s} offset:{off}")
                for nt in range(2): l.append(f"ds_read_b128 v[{b+4+nt*4}:{b+7+nt*4}], v{ab+s} offset:{off + nt*4096}")
            return l
        def mfl(st):
            l = []
            for s in range(4):
                b = BF + (st % 2) * 48 + s * 12
                for nt in range(2):
                    d = AC1 + nt * 16; c = "0" if st == 0 and s == 0 else f"v[{d}:{d+15}]"
                    l.append(f"v_mfma_f32_32x32x16_bf16 v[{d}:{d+15}], v[{b}:{b+3}], v[{b+4+nt*4}:{b+7+nt*4}], {c}")
            return l
        def sp_hook():
            a(f"s_add_u32 s30, s{S_TYPE}, s{S_HALF}\ns_cmp_lg_u32 s30, 3\ns_cbranch_scc1 L_sph")
            a(f"s_cmp_lg_u32 s{S_WAVE}, 3\ns_cbranch_scc1 L_sph")
            self.f2flag(S_CHA, T + 2)
            a.label("L_sph")
        def h5():
            a(f"s_cmp_lg_u32 s{S_HALF}, 0\ns_cbranch_scc1 L_h5")
            self.dbg_load()
            a.label("L_h5")
        def h7():
            a(f"s_cmp_lg_u32 s{S_HALF}, 0\ns_cbranch_scc1 L_h7\ns_waitcnt vmcnt(0)")
            self.dbg_verify()
            self.stamp(1)
            a.label("L_h7")
        self.gemm_cons("L_g1", 9, T, CW, rl, mfl, 9, {3: sp_hook, 5: h5, 7: h7, PUB: publish})
        a(f"v_add_u32 v{CW}, 36, v{CW}\ns_nop 4")
        pass
        self.stamp(3)
        for i, r in enumerate((LR, LI, CR, CI, MUR, MUI)): a(f"v_mov_b32 v{r}, v{PA[i]}")
        for t in range(16):
            u, w, d = AC1 + t, AC1 + 16 + t, BS + 2 * t
            a(f"""
            v_mul_f32 v{d}, v{CR}, v{u}
            v_mul_f32 v{d+1}, v{CR}, v{w}
            v_fma_f32 v{d}, -v{CI}, v{w}, v{d}
            v_fma_f32 v{d+1}, v{CI}, v{u}, v{d+1}
            """)
            if t >= 1:
                g0 = BS if t == 1 else T + 2 + 2 * (t % 2); g1 = T + 2 + 2 * ((t + 1) % 2)
                self.cmac(g1, LR, g0, d)
        GR = T + 2; TT = T + 4
        a(f"""
        s_lshl_b32 s31, s{S_WAVE}, 9
        s_add_u32 s30, s31, {LDS_SCR}
        v_lshl_add_u32 v{TT}, v2, 3, s30
        ds_write_b64 v{TT}, v[{GR}:{GR+1}]
        v_lshlrev_b32 v{TT+1}, 3, v2
        v_add_u32 v{TT+1}, {LDS_SCR - 256}, v{TT+1}
        """)
        self.bar(T)
        EV = BF
        for j in range(8): a(f"ds_read_b64 v[{EV+2*j}:{EV+2*j+1}], v{TT+1} offset:{j*256}")
        a("s_waitcnt lgkmcnt(0)")
        self.partb(EV, T)
        def spill(op, base):
            a(f"s_lshl_b32 s30, s2, 2\ns_add_u32 s30, s30, s{S_WAVE}\ns_mul_i32 s30, s30, {12*1024}\ns_add_u32 s30, s30, {SPILL}")
            for i in range(10):
                a(f"buffer_{op}_dwordx4 v[{base+4*i}:{base+4*i+3}], v3, s[4:7], s30 offen offset:{(i%4)*1024}")
                if i % 4 == 3: a("s_add_u32 s30, s30, 4096")
            a(f"buffer_{op}_dwordx2 v[{base+40}:{base+41}], v3, s[4:7], s30 offen offset:2048")
        a(f"s_cmp_lg_u32 s{S_HALF}, 0\ns_cbranch_scc1 L_b1done")
        spill("store", BS)
        a("v_and_b32 v16, 0xffff, v166\nv_lshrrev_b32 v17, 16, v166\nv_mov_b32 v18, v154")
        self.lam_calc(16, 10)
        for i in range(2): a(f"v_mov_b32 v{164+i}, v{10+i}")
        self.swz(AB, T, B1BASE + 16384)
        a(f"s_mov_b32 s{S_HALF}, 1\ns_mov_b32 s{S_CH}, s{S_CHB}\ns_branch L_b1")
        a.label("L_b1done")
        self.stamp(4)
        a(f"s_add_u32 s46, s48, {TSCR}\ns_cmp_lg_u32 s{S_TYPE}, 2\ns_cbranch_scc1 L_nsp")
        spill("load", 108)
        a.label("L_nsp")
        self.wait_prog(W_LAND + 4, T, 4)
        if self.opt.get("nop2"): a("s_setprio 0")
        a.label("L_p2")
        self.pass2(BF, T)
        a(f"s_cmp_lg_u32 s{S_TYPE}, 2\ns_cbranch_scc1 L_p2end\ns_cmp_eq_u32 s{S_CH}, s{S_CHA}\ns_cbranch_scc1 L_p2end")
        for i in range(21): a(f"v_pk_mov_b32 v[{BS+2*i}:{BS+2*i+1}], v[{108+2*i}:{109+2*i}], v[{108+2*i}:{109+2*i}] op_sel:[0,1]")
        a(f"s_mov_b32 s{S_CH}, s{S_CHA}\ns_branch L_p2")
        a.label("L_p2end")
        self.stamp(6)
        self.lds_add1(WA, ONE, W_P2 - W_BAR)
        self.p3_ids()
        self.p3(T)

    def lam_early(self, ch):
        a = self.a
        a(f"""
        s_lshl_b32 s30, {ch}, 6
        v_lshl_add_u32 v23, v1, 1, s30
        global_load_ushort v16, v23, s[{P_LRE}:{P_LRE+1}]
        global_load_ushort v17, v23, s[{P_LIM}:{P_LIM+1}]
        global_load_ushort v18, v23, s[{P_LDT}:{P_LDT+1}]
        s_waitcnt vmcnt(0)
        """)
        self.lam_calc(16, 10)
    def cmac(self, d, m, g, c):
        self.a(f"v_pk_fma_f32 v[{d}:{d+1}], v[{m}:{m+1}], v[{g}:{g+1}], v[{c}:{c+1}] op_sel_hi:[0,1,1]")
        self.a(f"v_pk_fma_f32 v[{d}:{d+1}], v[{m}:{m+1}], v[{g}:{g+1}], v[{d}:{d+1}] op_sel:[1,1,0] op_sel_hi:[1,0,1] neg_lo:[1,0,0]")
    def lam_calc(self, T, P):
        a = self.a; L2E = f32(math.log2(math.e))
        LR, LI, CR, CI, MUR, MUI = range(P, P + 6)
        a(f"""
        v_lshlrev_b32 v{T}, 16, v{T}
        v_lshlrev_b32 v{T+1}, 16, v{T+1}
        v_lshlrev_b32 v{T+2}, 16, v{T+2}
        v_mul_f32 v{T+2}, {L2E}, v{T+2}
        v_exp_f32 v{T+2}, v{T+2}
        s_nop 0
        v_cvt_pk_bf16_f32 v{T+2}, v{T+2}, v{T+2}
        v_lshlrev_b32 v{T+2}, 16, v{T+2}
        v_mul_f32 v{T+3}, v{T+2}, v{T}
        v_mul_f32 v{T+4}, v{T+2}, v{T+1}
        v_mul_f32 v{T+3}, {L2E}, v{T+3}
        v_mul_f32 v{T+4}, {f32(1/(2*math.pi))}, v{T+4}
        v_exp_f32 v{T+3}, v{T+3}
        v_fract_f32 v{T+4}, v{T+4}
        v_cos_f32 v{T+5}, v{T+4}
        v_sin_f32 v{T+6}, v{T+4}
        s_nop 0
        v_mul_f32 v{LR}, v{T+3}, v{T+5}
        v_mul_f32 v{LI}, v{T+3}, v{T+6}
        v_mul_f32 v{T+3}, v{T}, v{T}
        v_fmac_f32 v{T+3}, v{T+1}, v{T+1}
        v_rcp_f32 v{T+3}, v{T+3}
        v_add_f32 v{T+4}, -1.0, v{LR}
        v_mul_f32 v{T+5}, v{T+4}, v{T}
        v_fmac_f32 v{T+5}, v{LI}, v{T+1}
        v_mul_f32 v{T+6}, v{LI}, v{T}
        v_fma_f32 v{T+6}, -v{T+4}, v{T+1}, v{T+6}
        v_add_f32 v{T+3}, v{T+3}, v{T+3}
        v_mul_f32 v{CR}, v{T+5}, v{T+3}
        v_mul_f32 v{CI}, v{T+6}, v{T+3}
        v_mov_b32 v{MUR}, v{LR}
        v_mov_b32 v{MUI}, v{LI}
        """)
        for i in range(4):
            a(f"""
            v_mul_f32 v{T+3}, v{MUI}, v{MUI}
            v_mul_f32 v{T+4}, v{MUR}, v{MUI}
            v_fma_f32 v{MUR}, v{MUR}, v{MUR}, -v{T+3}
            v_add_f32 v{MUI}, v{T+4}, v{T+4}
            """)

    def f2flag(self, ch, TT):
        self.a(f"""
        s_lshl_b32 s30, s{ch}, 5
        s_add_u32 s30, s30, s{S_MB}
        s_lshl_b32 s30, s30, 2
        s_add_u32 s30, s30, {F2}
        s_waitcnt vmcnt(0)
        """)
        self.flag_store([30], TT)
    def partb(self, EV, TT):
        a = self.a
        a(f"""
        v_cndmask_b32 v{LCR}, 0, v{EV}, s[62:63]
        v_cndmask_b32 v{LCI}, 0, v{EV+1}, s[62:63]
        v_cndmask_b32 v{PWR}, 1.0, v{MUR}, s[62:63]
        v_cndmask_b32 v{PWI}, 0, v{MUI}, s[62:63]
        """)
        for j in range(1, 7):
            if j % 2 == 1: a(f"s_cmp_lt_u32 s{S_WAVE}, {(j+1)//2}\ns_cbranch_scc1 L_pbne")
            a(f"""
            v_mul_f32 v{TT}, v{MUR}, v{PWR}
            v_mul_f32 v{TT+1}, v{MUR}, v{PWI}
            v_fma_f32 v{TT+2}, v{MUR}, v{LCR}, v{EV+2*j}
            v_fma_f32 v{TT+3}, v{MUR}, v{LCI}, v{EV+2*j+1}
            v_fma_f32 v{TT}, -v{MUI}, v{PWI}, v{TT}
            v_fma_f32 v{PWI}, v{MUI}, v{PWR}, v{TT+1}
            v_fma_f32 v{TT+2}, -v{MUI}, v{LCI}, v{TT+2}
            v_fma_f32 v{LCI}, v{MUI}, v{LCR}, v{TT+3}
            v_mov_b32 v{PWR}, v{TT}
            v_mov_b32 v{LCR}, v{TT+2}
            """)
        EB = EV + 14
        a(f"""
        s_mul_i32 s30, s{S_MB}, {576*8}
        s_lshl_b32 s31, s{S_CH}, 8
        s_add_u32 s30, s30, s31
        s_add_u32 s30, s30, {EE - 256}
        v_lshlrev_b32 v{TT+2}, 3, v2
        v_fma_f32 v{TT}, v{MUR}, v{LCR}, v{EB}
        v_fma_f32 v{TT+1}, v{MUR}, v{LCI}, v{EB+1}
        v_fma_f32 v{TT}, -v{MUI}, v{LCI}, v{TT}
        v_fma_f32 v{TT+1}, v{MUI}, v{LCR}, v{TT+1}
        s_mov_b32 exec_lo, 0
        buffer_store_dwordx2 v[{TT}:{TT+1}], v{TT+2}, s[4:7], s30 offen {WT}
        s_mov_b32 exec_lo, -1
        s_cmp_eq_u32 s{S_HALF}, 0
        s_cbranch_scc1 L_pbne
        """)
        self.f2flag(S_CH, TT)
        a.label("L_pbne")
        for i in range(3):
            a(f"""
            v_mul_f32 v{TT+4}, v{MUI}, v{MUI}
            v_mul_f32 v{TT+5}, v{MUR}, v{MUI}
            v_fma_f32 v{MUR}, v{MUR}, v{MUR}, -v{TT+4}
            v_add_f32 v{MUI}, v{TT+5}, v{TT+5}
            """)

    def pass2(self, EV, T):
        a = self.a
        GR, GI, TT, AD, M2R, M2I = T, T + 1, T + 2, T + 4, T + 6, T + 7
        a(f"""
        s_cmp_eq_u32 s{S_MB}, 0
        s_cbranch_scc1 L_pollF2_x
        s_sub_u32 s35, s{S_MB}, 1
        v_min_u32 v{AD}, s35, v2
        v_lshlrev_b32 v{AD}, 2, v{AD}
        s_lshl_b32 s34, s{S_CH}, 7
        s_add_u32 s34, s34, {F2}
        """)
        self.poll("L_pollF2", TT, AD, "s34", sleep=4)
        a(f"""
        s_add_u32 s8, s{P_WS}, {EE}
        s_addc_u32 s9, s{P_WS+1}, 0
        s_and_b32 s9, s9, 0xffff
        s_mov_b32 s10, {16*576*8}
        s_mov_b32 s11, 0x20000
        v_lshrrev_b32 v{TT}, 5, v2
        v_mul_u32_u24 v{TT}, {576*8}, v{TT}
        v_lshlrev_b32 v{AD}, 3, v1
        v_sub_u32 v{AD}, v{AD}, v{TT}
        s_sub_u32 s34, s{S_MB}, 1
        s_mul_i32 s34, s34, {576*8}
        v_add_u32 v{AD}, s34, v{AD}
        s_lshl_b32 s34, s{S_CH}, 8
        """)
        for i in range(8):
            a(f"buffer_load_dwordx2 v[{EV+2*i}:{EV+2*i+1}], v{AD}, s[8:11], s34 offen sc0 sc1")
            if i < 7: a(f"v_subrev_u32 v{AD}, {2*576*8}, v{AD}")
        a(f"""
        v_mul_f32 v{TT}, v{MUI}, v{MUI}
        v_mul_f32 v{TT+1}, v{MUR}, v{MUI}
        v_fma_f32 v{M2R}, v{MUR}, v{MUR}, -v{TT}
        v_add_f32 v{M2I}, v{TT+1}, v{TT+1}
        s_waitcnt vmcnt(0)
        """)
        for i in range(6, -1, -1): self.cmac(EV + 2 * i, M2R, EV + 2 * i + 2, EV + 2 * i)
        a(f"""
        v_mov_b32 v{AD}, v{EV}
        v_mov_b32 v{AD+1}, v{EV+1}
        s_nop 1
        v_permlane32_swap_b32 v{EV}, v{AD}
        v_permlane32_swap_b32 v{EV+1}, v{AD+1}
        s_nop 1
        """)
        self.cmac(EV, MUR, AD, EV)
        self.cmac(GR, PWR, EV, LCR)
        for t in range(16): self.cmac(BS + 2 * t, LR, GR if t == 0 else BS + 2 * t - 2, BS + 2 * t)
        a(f"""
        s_lshl_b32 s34, s{S_MB}, 2
        s_add_u32 s34, s34, s{S_WAVE}
        s_mul_i32 s34, s34, {HS}
        s_add_u32 s34, s34, s{S_CH}
        s_lshl_b32 s34, s34, 11
        s_add_u32 s34, s34, {HH}
        s_add_u32 s35, s34, {18*2048}
        v_lshrrev_b32 v{TT}, 5, v2
        v_lshlrev_b32 v{AD}, 4, v1
        v_mul_u32_u24 v{TT}, {1024+128}, v{TT}
        v_xor_b32 v{AD}, v{AD}, v{TT}
        v_xor_b32 v{AD+1}, {512+64}, v{AD}
        """)
        a(f"s_mov_b32 s30, s46\nv_add_u32 v{AD}, s30, v{AD}\nv_add_u32 v{AD+1}, s30, v{AD+1}")
        for c in range(2):
            for jj in range(2):
                d = EV + 16 + 8 * c + 4 * jj; n = "-" if c else ""
                for r in range(4): a(f"v_cvt_pk_bf16_f32 v{d+r}, {n}v{BS+16*jj+4*r+c}, {n}v{BS+16*jj+4*r+2+c}")
                a(f"ds_write_b128 v{AD+jj}, v[{d}:{d+3}] offset:{c*2048}")
        m = EV
        a(f"""
        v_lshrrev_b32 v{m}, 5, v2
        v_bfe_u32 v{m+1}, v2, 2, 2
        v_lshl_add_u32 v{m+1}, v{m}, 3, v{m+1}
        v_bfe_u32 v{m+2}, v2, 4, 1
        v_bfe_u32 v{m+3}, v2, 1, 1
        v_lshl_add_u32 v{m+2}, v{m+2}, 1, v{m+3}
        v_lshlrev_b32 v{m+3}, 2, v{m+2}
        v_xor_b32 v{m+1}, v{m+1}, v{m+3}
        v_and_b32 v{m+3}, 1, v2
        v_lshlrev_b32 v{m+3}, 3, v{m+3}
        v_lshl_add_u32 v{m+3}, v{m+2}, 9, v{m+3}
        v_add_u32 v{m+3}, s30, v{m+3}
        v_lshl_add_u32 v{m}, v{m+1}, 4, v{m+3}
        v_xor_b32 v{m+1}, 64, v{m}
        """)
        for c in range(2):
            for j in range(2):
                d = EV + 32 + 8 * c + 4 * j
                for hf in range(2): a(f"ds_read_b64_tr_b16 v[{d+2*hf}:{d+2*hf+1}], v{m+hf} offset:{c*2048 + j*256}")
        a("s_waitcnt lgkmcnt(0)")
        for c in range(2):
            for j in range(2):
                d = EV + 32 + 8 * c + 4 * j
                a(f"buffer_store_dwordx4 v[{d}:{d+3}], v3, s[4:7], s{34+c} offen offset:{j*1024} {WT}")
        a(f"""
        s_mul_i32 s30, s{S_MB}, 24
        s_add_u32 s31, s30, s{S_CH}
        s_lshl_b32 s31, s31, 2
        s_add_u32 s31, s31, s{S_WAVE}
        s_lshl_b32 s31, s31, 2
        s_add_u32 s31, s31, {F3}
        s_waitcnt vmcnt(0)
        """)
        self.flag_store([31], TT)

    def a3_setup(self, PB, T):
        a = self.a
        a(f"""
        v_lshrrev_b32 v{T}, 2, v2
        v_and_b32 v{T+1}, 3, v2
        v_and_b32 v{T+2}, 3, v{T}
        v_bfe_u32 v{T+3}, v{T}, 2, 1
        v_lshl_add_u32 v{T+2}, v{T+3}, 3, v{T+2}
        v_lshrrev_b32 v{T+3}, 3, v{T}
        v_lshl_add_u32 v{T+2}, v{T+3}, 2, v{T+2}
        v_mul_u32_u24 v{T+2}, 1152, v{T+2}
        v_lshl_add_u32 v{PB}, v{T+1}, 4, v{T+2}
        v_lshrrev_b32 v{T+2}, 1, v{T}
        v_mul_u32_u24 v{T+2}, 18, v{T+2}
        v_and_b32 v{T+3}, 1, v{T}
        v_add3_u32 v{T+2}, v{T+2}, v{T+3}, 16
        v_mul_u32_u24 v{T+2}, 1152, v{T+2}
        v_lshl_add_u32 v{PB+1}, v{T+1}, 4, v{T+2}
        s_sub_u32 s30, s{S_P3NB}, 9
        s_mul_i32 s{S_CB}, s30, 192
        s_mov_b32 s{S_ST3}, s{S_LW}
        """)
        self.srd(12, P_WO, 576 * 1152)
    def a3_issue(self, PB, cnt):
        a = self.a; lab = a.newlabel("L_a3i")
        a("s_mov_b32 s35, 0")
        a.label(lab)
        a(f"""
        s_mul_i32 s30, s{S_ST3}, 3072
        s_add_u32 s31, s30, {WO2}
        s_sub_u32 s30, s30, {18*3072}
        s_add_u32 s32, s{S_ST3}, 18
        s_sub_u32 s34, s{S_ST3}, 18
        s_cmp_lt_u32 s{S_ST3}, 18
        s_cselect_b32 s30, s31, s30
        s_cselect_b32 s32, s32, s34
        s_mul_i32 s31, s32, {18*1152}
        v_mov_b32 v{PB+2}, v{PB}
        s_cmp_lt_u32 s32, 32
        s_cbranch_scc1 {lab}m
        s_sub_u32 s32, s32, 32
        s_mul_i32 s31, s32, {8*18*1152}
        v_mov_b32 v{PB+2}, v{PB+1}
        """)
        a.label(lab + "m")
        a(f"s_add_u32 s31, s31, s{S_CB}")
        for nt in range(3):
            a(f"s_add_u32 m0, s30, {nt*1024}\ns_add_u32 s32, s31, {nt*64}\nbuffer_load_dwordx4 v{PB+2}, s[12:15], s32 offen lds")
        a(f"s_add_u32 s{S_ST3}, s{S_ST3}, 4\ns_add_u32 s35, s35, 1\ns_cmp_lt_u32 s35, {cnt}\ns_cbranch_scc1 {lab}")
    def xd(self, T, XD, ACC):
        a = self.a
        a(f"""
        v_lshrrev_b32 v{T+1}, 5, v2
        v_mul_u32_u24 v{T}, 1152, v1
        v_lshl_add_u32 v{T}, v{T+1}, 3, v{T}
        s_mul_i32 s30, s{S_P3T}, {32*1152}
        s_lshl_b32 s31, s{S_P3NB}, 7
        s_add_u32 s30, s30, s31
        v_add_u32 v{T}, s30, v{T}
        v_lshl_add_u32 v{T+1}, v{T+1}, 3, s31
        """)
        for e in range(8):
            a(f"global_load_dwordx2 v[{XD+2*e}:{XD+2*e+1}], v{T}, s[{P_BX}:{P_BX+1}] offset:{e*16}")
            a(f"global_load_dwordx2 v[{XD+16+2*e}:{XD+16+2*e+1}], v{T+1}, s[{P_DSK}:{P_DSK+1}] offset:{e*16}")
    def xd_math(self, T, XD, ACC):
        a = self.a
        for e in range(8):
            d = ACC + 4 * e
            for q in range(2):
                x = XD + 2 * e + q; k = XD + 16 + 2 * e + q
                a(f"""
                v_lshlrev_b32 v{T+2}, 16, v{x}
                v_lshlrev_b32 v{T+3}, 16, v{k}
                v_and_b32 v{x}, 0xffff0000, v{x}
                v_and_b32 v{k}, 0xffff0000, v{k}
                v_fmac_f32 v{d+2*q}, v{T+2}, v{T+3}
                v_fmac_f32 v{d+2*q+1}, v{x}, v{k}
                """)

    def iwarm(self, name):
        if self.opt.get("noiw"): return
        a = self.a
        a(f"s_mov_b64 exec, 0\ns_branch {name}_0")
        a.label(name + "_ret")
        a("s_mov_b64 exec, -1")
    def aux_final(self, T):
        a = self.a; lab = a.newlabel("L_af")
        a("s_mov_b32 s34, 4")
        self.wait_prog(W_LAND + 28, T, sleep=32)
        self.wait_prog(FIN_OK, T, sleep=3)
        a(f"v_cmp_eq_u32 vcc, s30, v{T+1}\ns_cbranch_vccz {lab}\ns_barrier\ns_barrier\ns_barrier\ns_mov_b32 s34, 8")
        a.label(lab)
        a("s_setprio 3")

    B3R = dict(EA=155, FC=16, FH=48, ACC=120, D=18)
    def hload(self, k):
        FH, D = self.B3R["FH"], self.B3R["D"]
        r = FH + 4 * (k % D)
        l = [f"buffer_load_dwordx4 v[{r}:{r+3}], v3, s[4:7], s50 offen offset:{(k%4)*1024}"]
        if k % 4 == 3: l.append("s_add_u32 s50, s50, 4096")
        return l
    def b3_pre(self, T, half):
        a = self.a; ACC, D = self.B3R["ACC"], self.B3R["D"]
        self.srd(16, P_OUT, OUT_BYTES)
        self.swz(4, T, [TSCR, 0][half])
        for i in range(4): a(f"v_add_u32 v{8+i}, {([57344, 73728][half] - [TSCR, 0][half]) & 0xffffffff}, v{4+i}")
        a(f"""
        s_mov_b32 s49, {half}
        s_mul_i32 s34, s{S_P3MB}, 384
        s_lshl_b32 s30, s{S_LW}, 2
        s_add_u32 s34, s34, s30
        s_add_u32 s34, s34, {F3}
        v_min_u32 v{T}, 17, v2
        v_lshlrev_b32 v{T}, 4, v{T}
        """)
        self.poll(f"L_pollF3{half}", T + 1, T, "s34", sleep=16)
        self.stamp(7)
        a(f"s_mul_i32 s50, s{S_P3T}, {HS*2048}\ns_add_u32 s50, s50, {HH + half*36*1024}")
        a(f"s_lshl_b32 s31, s{S_P3NB}, 11\ns_add_u32 s30, s50, s31\ns_add_u32 s30, s30, {18*1024}")
        for n in range(2): a(f"buffer_load_dwordx4 v[{ACC}:{ACC+3}], v3, s[4:7], s30 offen offset:{n*1024}")
        for k in range(D):
            for x in self.hload(k): a(x)
    def b3_main(self, T):
        a = self.a; EA, FC, FH, ACC, D = (self.B3R[k] for k in ("EA", "FC", "FH", "ACC", "D"))
        self.lds_spin(self.WA, T, "s34", W_G2 - W_BAR)
        self.stamp(8); self.stamp(59)
        if not self.opt.get("noiw"): a.pad_begin("PB3", int(self.opt.get("padn", 7)))
        def crd(k):
            st, s = k // 4, k % 4
            A, off = (4, st * 8192) if st < 7 else (8, (st - 7) * 8192)
            return [f"ds_read_b128 v[{FC+8*s+4*nt}:{FC+8*s+4*nt+3}], v{A+s} offset:{off + nt*4096}" for nt in range(2)]
        for k in range(3):
            for x in crd(k): a(x)
        NK = 36
        for k in range(NK):
            if k in (9, 18, 27): a(f"s_setprio {3 - k//9}")
            if self.opt.get("stb") and k % 3 == 0: self.stamp(30 + k // 3)
            if k == 12:
                a(f"s_cmp_eq_u32 s49, 0\ns_cbranch_scc1 L_b3g\ns_waitcnt vmcnt(12)")
                self.lds_add1(self.WA, self.ONE, W_G3 - W_BAR)
                a("s_waitcnt lgkmcnt(0)")
                a.label("L_b3g")
            if k == 24: self.lds_add1(self.WA, self.ONE, W_B8 - W_BAR); a("s_waitcnt lgkmcnt(0)")
            if k + 3 == 28:
                a("s_lshl_b32 s31, s49, 2")
                self.lds_spin(self.WA, T, "s31", W_G3 - W_BAR)
            if k == 22:
                a(f"""
                v_lshrrev_b32 v{T+2}, 4, v2
                v_and_b32 v{T+3}, 15, v2
                v_mul_u32_u24 v{T+4}, 1152, v{T+2}
                v_lshl_add_u32 v{T+4}, v{T+3}, 3, v{T+4}
                s_lshl_b32 s31, s{S_P3NB}, 7
                v_lshl_add_u32 v{T+5}, v{T+3}, 3, s31
                global_load_dwordx2 v[{FH+8}:{FH+9}], v{T+5}, s[{P_DSK}:{P_DSK+1}]
                s_lshl_b32 s30, s{S_P3T}, 1
                s_add_u32 s30, s30, s49
                s_mul_i32 s30, s30, {16*1152}
                s_add_u32 s30, s30, s31
                """)
                self.srd(8, P_BX, 2048 * 1152)
                for n in range(4): a(f"buffer_load_dwordx2 v[{FH+2*n}:{FH+2*n+1}], v{T+4}, s[8:11], s30 offen\ns_add_u32 s30, s30, {4*1152}")
            a(f"s_waitcnt vmcnt({min(D-1, NK-1-k) + (5 if k >= 22 else 0)}) lgkmcnt({min(4, 2*(NK-1-k))})")
            h = FH + 4 * (k % D); r = crd(k + 3) if k + 3 < NK else []
            for nt in range(2):
                c = FC + 8 * (k % 4) + 4 * nt; d = ACC + 16 * nt
                a(f"v_mfma_f32_32x32x16_bf16 v[{d}:{d+15}], v[{c}:{c+3}], v[{h}:{h+3}], " + ("0" if k == 0 else f"v[{d}:{d+15}]"))
                if nt == 0:
                    for x in r: a(x)
            if k + D < NK:
                for x in self.hload(k + D): a(x)
        self.stamp(10)
        OF = self.opt.get('outf', 'sc0_sc1').replace('_', ' ')
        a(f"""
        s_mul_i32 s31, s{S_LW}, {32*272}
        s_cmp_eq_u32 s49, 0
        s_cselect_b32 s30, {TSCR}, 0
        s_add_u32 s30, s30, s31
        v_lshrrev_b32 v{T+1}, 5, v2
        v_mul_u32_u24 v{T+6}, 272, v1
        v_lshl_add_u32 v{T+6}, v{T+1}, 4, v{T+6}
        v_add_u32 v{T+6}, s30, v{T+6}
        s_mul_i32 s30, s49, {16*272}
        s_add_u32 s31, s31, s30
        v_mul_u32_u24 v{T+1}, 272, v{T+2}
        v_lshl_add_u32 v{T+1}, v{T+3}, 4, v{T+1}
        v_add_u32 v{T+1}, s31, v{T+1}
        v_add_u32 v{T+4}, {TSCR}, v{T+1}
        v_mul_u32_u24 v{EA}, 4608, v{T+2}
        v_lshl_add_u32 v{EA}, v{T+3}, 4, v{EA}
        """)
        self.lds_spin(self.WA, T, 8, W_B8 - W_BAR)
        for e in range(8): a(f"ds_write_b128 v{T+6}, v[{ACC+4*e}:{ACC+4*e+3}] offset:{e*32}")
        self.lds_add1(self.WA, self.ONE, W_B8 - W_BAR)
        DD = FH + 12
        a(f"""
        s_lshl_b32 s30, s{S_P3T}, 1
        s_add_u32 s30, s30, s49
        s_mul_i32 s30, s30, {16*4608}
        s_lshl_b32 s31, s{S_P3NB}, 8
        s_add_u32 s30, s30, s31
        s_add_u32 s30, s30, {576*4}
        s_waitcnt vmcnt(0)
        v_lshlrev_b32 v{DD}, 16, v{FH+8}
        v_and_b32 v{DD+1}, 0xffff0000, v{FH+8}
        v_lshlrev_b32 v{DD+2}, 16, v{FH+9}
        v_and_b32 v{DD+3}, 0xffff0000, v{FH+9}
        """)
        for n in range(4):
            x = FH + 2 * n; t = DD + 4 + 4 * n
            a(f"v_lshlrev_b32 v{t}, 16, v{x}\nv_and_b32 v{t+1}, 0xffff0000, v{x}\nv_lshlrev_b32 v{t+2}, 16, v{x+1}\nv_and_b32 v{t+3}, 0xffff0000, v{x+1}")
        self.lds_spin(self.WA, T, 16, W_B8 - W_BAR)
        self.stamp(11); self.stamp(60)
        for n in range(4):
            a(f"ds_read_b128 v[{FC+8*n}:{FC+8*n+3}], v{T+1} offset:{n*4*272}\nds_read_b128 v[{FC+8*n+4}:{FC+8*n+7}], v{T+4} offset:{n*4*272}")
        for n in range(4):
            d = FC + 8 * n; t = DD + 4 + 4 * n
            a(f"""
            s_waitcnt lgkmcnt({6-2*n})
            v_pk_fma_f32 v[{d}:{d+1}], v[{t}:{t+1}], v[{DD}:{DD+1}], v[{d}:{d+1}]
            v_pk_fma_f32 v[{d+2}:{d+3}], v[{t+2}:{t+3}], v[{DD+2}:{DD+3}], v[{d+2}:{d+3}]
            v_pk_add_f32 v[{d}:{d+1}], v[{d}:{d+1}], v[{d+4}:{d+5}]
            v_pk_add_f32 v[{d+2}:{d+3}], v[{d+2}:{d+3}], v[{d+6}:{d+7}]
            buffer_store_dwordx4 v[{d}:{d+3}], v{EA}, s[16:19], s30 offen {OF}
            s_add_u32 s30, s30, {4*4608}
            """)
        a("s_branch L_exit")
        if a.pad: a.pad_end("PB3_ret")

    def p3(self, T):
        a = self.a
        self.srd(16, P_OUT, OUT_BYTES)
        a(f"s_cmp_ge_u32 s{S_IDX}, 18\ns_cbranch_scc1 L_a3")
        self.iwarm("PB3")
        self.b3_pre(T, 0)
        self.aux_final(T)
        a.label("L_b3main")
        self.b3_main(T)
        a.label("L_a3")
        OF = self.opt.get('outf', 'sc0_sc1').replace('_', ' ')
        self.iwarm("PA3")
        self.aux_final(T)
        a(f"s_cmp_ge_u32 s{S_IDX}, 30\ns_cbranch_scc1 L_exit")
        self.lds_spin(self.WA, T, "s34", W_G2 - W_BAR)
        self.stamp(8)
        AW, EA, T, FW, ACC, FO = 4, 6, 8, 16, 52, 100
        D = 14
        a(f"""
        s_lshl_b32 s34, s{S_P3T}, 7
        s_add_u32 s34, s34, {F4}
        v_lshlrev_b32 v{T+4}, 2, v1
        v_lshrrev_b32 v{T+1}, 5, v2
        v_bfe_u32 v{T+2}, v2, 2, 2
        v_lshl_add_u32 v{T+3}, v{T+1}, 3, v{T+2}
        v_lshlrev_b32 v{T+3}, 6, v{T+3}
        v_bfe_u32 v{T+2}, v2, 4, 1
        v_lshl_add_u32 v{T+3}, v{T+2}, 5, v{T+3}
        v_and_b32 v{T+2}, 3, v2
        v_lshl_add_u32 v{AW}, v{T+2}, 3, v{T+3}
        v_add_u32 v{AW+1}, {WO2}, v{AW}
        v_mul_u32_u24 v{EA}, 4608, v1
        v_lshl_add_u32 v{EA}, v{T+1}, 4, v{EA}
        v_lshl_add_u32 v{EA+1}, v{T+1}, 9, v{T+4}
        """)
        def rl3(s):
            st, off = (0, s * 3072) if s < 18 else (1, (s - 18) * 3072)
            l = []
            for nt in range(3):
                for hf in range(2):
                    r = FW + (s % 3) * 12 + nt * 4 + hf * 2
                    l.append(f"ds_read_b64_tr_b16 v[{r}:{r+1}], v{AW+st} offset:{off + nt*1024 + hf*256}")
            return l
        for x in rl3(0) + rl3(1): a(x)
        a(f"s_lshl_b32 s30, s{S_LW}, 2\ns_add_u32 s30, s30, {W_F4}\nv_mov_b32 v{T+6}, s30")
        self.poll("L_pollF4", T + 5, T + 4, "s34", sleep=1)
        if self.opt.get("opf"): a(f"ds_write_b32 v{T+6}, v{self.ONE}\ns_waitcnt lgkmcnt(0)")
        OLD = self.opt.get("oldf", "sc0_sc1").replace("_", " ")
        self.stamp(10); self.stamp(59)
        if not self.opt.get("noiw"): a.pad_begin("PA3", int(self.opt.get("padn", 7)))
        a(f"s_mul_i32 s30, s{S_P3T}, {OS}\ns_add_u32 s30, s30, {OW}")
        def oload(s):
            r = FO + 4 * (s % D)
            if s < 32:
                l = [f"buffer_load_dwordx4 v[{r}:{r+3}], v3, s[4:7], s30 offen offset:{(s%4)*1024} {OLD}"]
                if s % 4 == 3: l.append("s_add_u32 s30, s30, 4096")
                return l
            return [f"buffer_load_dword v{r+j}, v{EA+1}, s[4:7], s30 offen offset:{(s-32)*1024 + j*128} {OLD}" for j in range(4)]
        cnt = [1] * 32 + [4] * 4
        for s in range(D):
            for x in oload(s): a(x)
        for s in range(36):
            if self.opt.get("stb") and s % 3 == 0: self.stamp(30 + s // 3)
            if s == 22: self.arrive(T); a("s_waitcnt lgkmcnt(0)")
            out = sum(cnt[s + 1:min(36, s + D)])
            a(f"s_waitcnt vmcnt({out}) lgkmcnt({6 if s < 35 else 0})")
            mf = []
            for nt in range(3):
                d = ACC + nt * 16; w = FW + (s % 3) * 12 + nt * 4; o = FO + 4 * (s % D)
                c = "0" if s == 0 else f"v[{d}:{d+15}]"
                mf.append(f"v_mfma_f32_32x32x16_bf16 v[{d}:{d+15}], v[{w}:{w+3}], v[{o}:{o+3}], {c}")
            ilv(a, mf, rl3(s + 2) if s + 2 < 36 else [])
            if s + D < 36:
                for x in oload(s + D): a(x)
        self.stamp(11); self.stamp(60)
        self.lds_spin(self.WA, T, f"s{self.BC}")
        a(f"""
        s_mul_i32 s31, s{S_LW}, {32*400}
        v_lshrrev_b32 v{T+1}, 5, v2
        v_mul_u32_u24 v{T}, 400, v1
        v_lshl_add_u32 v{T}, v{T+1}, 4, v{T}
        v_add_u32 v{T}, s31, v{T}
        """)
        for e in range(12): a(f"ds_write_b128 v{T}, v[{ACC+4*e}:{ACC+4*e+3}] offset:{e*32}")
        for j in range(3):
            a(f"""
            v_add_u32 v{FW}, {64*j}, v2
            v_mul_u32_u24 v{FW+1}, 171, v{FW}
            v_lshrrev_b32 v{FW+1}, 12, v{FW+1}
            v_mul_u32_u24 v{FW+2}, 24, v{FW+1}
            v_sub_u32 v{FW}, v{FW}, v{FW+2}
            v_mul_u32_u24 v{FW+2}, 400, v{FW+1}
            v_lshl_add_u32 v{FW+2}, v{FW}, 4, v{FW+2}
            v_add_u32 v{FW+4+j}, s31, v{FW+2}
            v_mul_u32_u24 v{FW+2}, 4608, v{FW+1}
            v_lshl_add_u32 v{FW+8+j}, v{FW}, 4, v{FW+2}
            """)
        a(f"""
        s_mul_i32 s30, s{S_P3T}, {32*4608}
        s_sub_u32 s31, s{S_P3NB}, 9
        s_mul_i32 s31, s31, 384
        s_add_u32 s30, s30, s31
        s_waitcnt lgkmcnt(0)
        """)
        for n in range(12): a(f"ds_read_b128 v[{FO+4*n}:{FO+4*n+3}], v{FW+4+n%3} offset:{(n//3)*8*400}")
        for n in range(12):
            a(f"s_waitcnt lgkmcnt({11-n})\nbuffer_store_dwordx4 v[{FO+4*n}:{FO+4*n+3}], v{FW+8+n%3}, s[16:19], s30 offen {OF}")
            if n % 3 == 2: a(f"s_add_u32 s30, s30, {8*4608}")
        a("s_branch L_exit")
        if a.pad: a.pad_end("PA3_ret")

    def finish(self):
        a = self.a
        a.label("L_exit")
        if self.stamp_on:
            self.stamp(12)
            a("s_waitcnt vmcnt(0)")
            self.stamp(13); a(f"v_writelane_b32 v{VST}, s98, 0\nv_writelane_b32 v{VST}, s98, 14")
            a(f"""
            s_lshl_b32 s30, s2, 4
            s_add_u32 s30, s30, s{S_WAVE}
            s_lshl_b32 s30, s30, 8
            s_add_u32 s30, s30, {STB}
            v_lshlrev_b32 v3, 2, v2
            buffer_store_dword v{VST}, v3, s[4:7], s30 offen
            """)
            if "probe" in self.opt:
                k = int(self.opt["probe"])
                a(f"""
                v_readlane_b32 s30, v{VST}, 14
                v_readlane_b32 s31, v{VST}, {k}
                s_nop 3
                s_sub_u32 s32, s31, s30
                s_cmp_eq_u32 s31, 0
                s_cselect_b32 s32, 0, s32
                s_lshr_b32 s31, s{S_WAVE}, 2
                s_cmp_lg_u32 s31, {self.opt.get("pg", 0)}
                s_cselect_b32 s32, 0, s32
                s_cmp_ge_u32 s{S_IDX}, 28
                s_cselect_b32 s32, 0, s32
                s_min_u32 s32, s32, 8000
                s_lshl_b32 s32, s32, 1
                s_add_u32 s32, s32, 7000
                """)
                a.label("L_probe")
                a("s_sleep 4\ns_memrealtime s[94:95]\ns_waitcnt lgkmcnt(0)\ns_sub_u32 s33, s94, s30\ns_cmp_lt_u32 s33, s32\ns_cbranch_scc1 L_probe")
        a("s_endpgm")
        self.emit_stubs()
        a.label("L_end")
        a("s_endpgm")

def gen_mega(name, stamp=False, opt=None):
    g = G(stamp, opt)
    g.a.raw(kernel_header(name))
    g.a.label('L_code0')
    g.prologue(); g.p1_loader(); g.a.label('L_p1_fin'); g.attention(0); g.attention(1); g.aux(); g.finish()
    return g.a.text(), kernel_desc(name, NV, 100)

if __name__ == "__main__":
    import sys
    from build import *
    KN = NAME + "_kernel"
    out = sys.argv[1]; stamp = len(sys.argv) > 2 and sys.argv[2] == "1"
    opt = dict((kv.split("=") + ["1"])[:2] for kv in sys.argv[3:])
    for k, v in (("early", "1"), ("pubat", "0"), ("warmb_old", "1")): opt.setdefault(k, v)
    if "late" in opt:
        opt.update(early="off", pubat="-1", sig1="0", sponly="1", nowarmx="1"); NS1 = 3; B1BASE = 20480
    opt = {k: v for k, v in opt.items() if v != "off"}
    if "f1s" in opt: F1STRIDE = int(opt["f1s"])
    if "ldf" in opt: LDF = opt["ldf"].replace("_", " ").strip()
    if "wt" in opt: WT = opt["wt"].replace("_", " ")
    compose([gen_mega(KN, stamp, opt)], [(KN, 256, 768, LDS_TOTAL)], out)
    assemble(out)
```

```python
from asmlib import *
from lay2 import *
import math, struct
def f32(x): return "0x%08x" % struct.unpack("<I", struct.pack("<f", x))[0]
QSCALE = f32(18 ** -0.5 * math.log2(math.e))
WT = "sc0 sc1"
LDF = "sc0 sc1"
SPIN_MAX = 20000
P_AX, P_WQKV, P_WO, P_BX, P_LRE, P_LIM, P_BRE, P_BIM, P_CRE, P_CIM, P_LDT, P_DSK, P_OUT, P_DBG, P_WS = range(64, 94, 2)
S_WAVE, S_XCD, S_IDX, S_MB, S_NB, S_TYPE, S_CHB, S_CHA, S_HALF, S_CH = 3, 20, 21, 22, 23, 24, 25, 26, 27, 29
S_P3MB, S_P3NB, S_HD, S_LW, S_P3T = 37, 38, 39, 51, 57
S_GK, S_K4, S_GV, S_LP = 52, 54, 55, 56
S_HB, S_CB, S_SL3, S_ST3 = 52, 53, 54, 55
NV = 168
VST = 167
BS = 64
SPILL = 0x1200000
LR, LI, CR, CI, LCR, LCI, PWR, PWI, MUR, MUI = range(BS + 32, BS + 42)
C0, CHB = 5, 19968
LDS_W = 8 * CHB
W_LAND, W_PROG, W_UNS, W_BAR, W_DRN = LDS_W, LDS_W + 64, LDS_W + 96, LDS_W + 100, LDS_W + 104
W_F1 = LDS_W + 108
LDS_SCR = LDS_W + 512
B1BASE, BSLOT = 0, 24576
NS1 = 4
R3 = [100352, 124928, 2048, 26624]
W_OK = 8 * 19968 + 112
W_P2, W_G2, W_G3 = 8 * 19968 + 116, 8 * 19968 + 120, 8 * 19968 + 124
TSCR = 100352
W_B8 = 8 * 19968 + 132
W_F4 = 8 * 19968 + 144
W_ISS = 8 * 19968 + 136
W_K0 = 8 * 19968 + 140
FIN_OK, FIN_BAD = 0x40000000, 0x50000000
R3BASE = 2048
WO2 = 100352
QS, VS, OS, HS = 289, 9344, 37 * 1024, 37
def pad_touch():
    pads = [QKP + (q * QS + 288) * 1024 for q in range(16)] + [VT + o * VS + 9216 for o in range(256)]
    pads += [OW + t * OS + 36 * 1024 for t in range(64)] + [HH + (t * HS + 36) * 2048 for t in range(64)] + [EE + 0x80000, FL + 0x80000]
    G = 1 << 20
    seen = {}
    for p in pads: seen.setdefault(p // G, p)
    return sorted(seen.values())
F1STRIDE = 128 * NSUB
W_FULL, W_FREE = 8 * 19968 + 2560, 8 * 19968 + 2816
R6 = [100352, 124928, 2048, 26624, 51200, 75776]

def ilv(a, mf, other):
    n = len(mf); k = 0
    for i, m in enumerate(mf):
        a(m)
        upto = (len(other) * (i + 1) + n - 2) // (n - 1) if i < n - 1 else len(other)
        upto = min(upto, len(other))
        while k < upto: a(other[k]); k += 1

class G:
    def __init__(self, stamp=False, opt=None):
        self.a = Asm(); self.stamp_on = stamp; self.opt = opt or {}; self.stubs = []
    def stamp(self, k, real=False):
        if not self.stamp_on: return
        op = "s_memrealtime" if (real or k not in (62, 61, 60, 59)) else "s_memtime"
        self.a(f"{op} s[94:95]\ns_waitcnt lgkmcnt(0)\nv_writelane_b32 v{VST}, s94, {k}")
    def stampx(self, base, force=False):
        if not self.stamp_on or not (force or self.opt.get("stx")): return
        self.a(f"s_memrealtime s[94:95]\ns_add_u32 m0, s96, {base}\ns_add_u32 s96, s96, 1\ns_waitcnt lgkmcnt(0)\nv_writelane_b32 v{VST}, s94, m0")
    def srd(self, d, p, n):
        self.a(f"s_mov_b32 s{d}, s{p}\ns_and_b32 s{d+1}, s{p+1}, 0xffff\ns_mov_b32 s{d+2}, {n}\ns_mov_b32 s{d+3}, 0x20000")
    def poll(self, lab, vdst, voff, soff, n=1, want="1", sleep=2):
        a = self.a
        ld = f"buffer_load_dword v{vdst}, v{voff}, s[4:7], {soff} offen sc0 sc1" if n == 1 else f"buffer_load_dwordx4 v[{vdst}:{vdst+3}], v{voff}, s[4:7], {soff} offen sc0 sc1"
        a("s_mov_b32 s33, 0")
        a.label(lab)
        a(ld + "\ns_waitcnt vmcnt(0)")
        if n == 4:
            a(f"v_and_b32 v{vdst}, v{vdst}, v{vdst+1}\nv_and_b32 v{vdst+2}, v{vdst+2}, v{vdst+3}\nv_and_b32 v{vdst}, v{vdst}, v{vdst+2}")
        a(f"""
        v_cmp_ne_u32 vcc, {want}, v{vdst}
        s_add_u32 s33, s33, 1
        s_cmp_gt_u32 s33, {SPIN_MAX}
        s_cbranch_scc1 {lab}_x
        s_cbranch_vccz {lab}_x
        s_sleep {sleep}
        s_branch {lab}
        """)
        a.label(lab + "_x")
    def lds_spin(self, vaddr, vtmp, want, off=0, sleep=0):
        a = self.a; lab = a.newlabel("L_sp")
        a("s_mov_b32 s33, 0")
        a.label(lab)
        a(f"""
        ds_read_b32 v{vtmp}, v{vaddr} offset:{off}
        s_add_u32 s33, s33, 1
        s_waitcnt lgkmcnt(0)
        v_readfirstlane_b32 s32, v{vtmp}
        s_cmp_ge_u32 s32, {want}
        s_cbranch_scc1 {lab}x
        {f"s_sleep {sleep}" if sleep else ""}
        s_cmp_lt_u32 s33, {SPIN_MAX*16}
        s_cbranch_scc1 {lab}
        """)
        a.label(lab + "x")
    def lds_add1(self, vaddr, vone, off=0):
        self.a(f"s_mov_b64 exec, 1\nds_add_u32 v{vaddr}, v{vone} offset:{off}\ns_mov_b64 exec, -1")
    def flag_store(self, sregs, T):
        a = self.a
        a(f"v_mov_b32 v{T}, 0\nv_mov_b32 v{T+1}, 1\ns_mov_b64 exec, 1")
        for r in sregs: a(f"buffer_store_dword v{T+1}, v{T}, s[4:7], s{r} offen {WT}")
        a("s_mov_b64 exec, -1")
    def warm(self, items, T, dst):
        a = self.a
        if self.opt.get("nowarm"): return
        a(f"s_lshl_b32 s30, s{S_LW}, 8\ns_add_u32 s30, s30, s2\ns_lshl_b32 s30, s30, 10\nv_add_u32 v{T}, s30, v3")
        for (p, n) in items:
            self.srd(8, p, n)
            for r in range((n + (1 << 20) - 1) >> 20):
                a(f"s_mov_b32 s30, {r << 20}\nbuffer_load_dwordx4 v[{dst}:{dst+3}], v{T}, s[8:11], s30 offen")
    def warmx(self, items, T, dst):
        a = self.a
        a(f"s_lshl_b32 s30, s{S_IDX}, 2\ns_add_u32 s30, s30, s{S_LW}\ns_lshl_b32 s30, s30, 10\nv_add_u32 v{T}, s30, v3")
        for (p, n) in items:
            self.srd(8, p, n)
            for r in range((n + (1 << 17) - 1) >> 17):
                a(f"s_mov_b32 s30, {r << 17}\nbuffer_load_dwordx4 v[{dst}:{dst+3}], v{T}, s[8:11], s30 offen")
    def make_vx(self, dst, n, sa, sb, sc1, sc0, T):
        a = self.a
        a(f"""
        v_lshrrev_b32 v{T}, 3, v2
        v_and_b32 v{T+1}, 7, v2
        v_lshrrev_b32 v{T+2}, 1, v{T}
        v_xor_b32 v{T+1}, v{T+1}, v{T+2}
        v_lshrrev_b32 v{T+2}, 2, v{T}
        v_and_b32 v{T}, 3, v{T}
        v_mul_u32_u24 v{T+2}, {sa}, v{T+2}
        v_mul_u32_u24 v{T}, {sb}, v{T}
        v_add_u32 v{T}, v{T}, v{T+2}
        v_mul_u32_u24 v{T}, 1152, v{T}
        v_lshl_add_u32 v{dst}, v{T+1}, 4, v{T}
        v_xor_b32 v{T+1}, 4, v{T+1}
        v_lshl_add_u32 v{dst+1}, v{T+1}, 4, v{T}
        s_mul_i32 s34, {sc0}, 1152
        s_sub_u32 s34, s34, 1024
        v_add_u32 v{dst+1}, s34, v{dst+1}
        """)
        if n == 4:
            a(f"s_mul_i32 s34, {sc1}, 1152\ns_sub_u32 s34, s34, 2048\nv_add_u32 v{dst+2}, s34, v{dst}\nv_add_u32 v{dst+3}, s34, v{dst+1}")
    def swz(self, Z, T, add=0):
        a = self.a
        a(f"""
        v_lshrrev_b32 v{T+1}, 5, v2
        v_bfe_u32 v{T+2}, v1, 1, 3
        v_xor_b32 v{T+2}, v{T+2}, v{T+1}
        v_lshlrev_b32 v{T+3}, 7, v1
        v_add_u32 v{T+3}, {add}, v{T+3}
        """)
        for s in range(4): a(f"v_xor_b32 v{T+4}, {2*s}, v{T+2}\nv_lshl_add_u32 v{Z+s}, v{T+4}, 4, v{T+3}")

    def prologue(self):
        a = self.a
        a(f"""
        s_cmp_ge_u32 s2, 256
        s_cbranch_scc1 L_end
        {"s_memrealtime s[98:99]" if self.stamp_on else ""}
        s_load_dwordx16 s[64:79], s[0:1], 0
        s_load_dwordx8 s[80:87], s[0:1], 64
        s_load_dwordx4 s[88:91], s[0:1], 96
        s_load_dwordx2 s[92:93], s[0:1], 112
        v_lshrrev_b32 v1, 6, v0
        v_and_b32 v2, 63, v0
        v_readfirstlane_b32 s{S_WAVE}, v1
        v_lshlrev_b32 v3, 4, v2
        v_and_b32 v1, 31, v0
        s_and_b32 s{S_XCD}, s2, 7
        s_lshr_b32 s{S_IDX}, s2, 3
        """)
        if self.stamp_on: a(f"v_mov_b32 v{VST}, 0\ns_mov_b32 s96, 0")
        if self.stamp_on and self.opt.get("st0"): a(f"s_waitcnt lgkmcnt(0)"); self.stamp(2)
        a(f"""
        s_and_b32 s30, s{S_XCD}, 3
        s_lshl_b32 s30, s30, 2
        s_and_b32 s31, s{S_IDX}, 3
        s_add_u32 s{S_MB}, s30, s31
        s_lshl_b32 s{S_HD}, s{S_XCD}, 2
        s_add_u32 s{S_HD}, s{S_HD}, s31
        s_lshr_b32 s30, s{S_XCD}, 2
        s_lshr_b32 s31, s{S_IDX}, 2
        s_mul_i32 s32, s30, 7
        s_add_u32 s{S_NB}, s32, s31
        s_mul_i32 s32, s30, 9
        s_add_u32 s{S_CHB}, s32, s31
        s_add_u32 s{S_CHA}, s32, 8
        s_cmp_ge_u32 s{S_NB}, 9
        s_cselect_b32 s{S_TYPE}, 1, 0
        s_cmp_ge_u32 s{S_IDX}, 28
        s_cselect_b32 s{S_TYPE}, 2, s{S_TYPE}
        s_and_b32 s{S_LW}, s{S_WAVE}, 3
        """)
        G_ = int(self.opt.get("rotg", 3))
        a(f"s_and_b32 s30, s{S_IDX}, 3\ns_lshr_b32 s31, s{S_IDX}, 2\ns_add_u32 s30, s30, s31")
        if G_ == 1: a("s_mov_b32 s28, 0")
        elif G_ == 2: a("s_and_b32 s30, s30, 1\ns_mul_i32 s28, s30, 5")
        elif G_ == 3: a("s_mul_i32 s31, s30, 43\ns_lshr_b32 s31, s31, 7\ns_mul_i32 s31, s31, 3\ns_sub_u32 s30, s30, s31\ns_mul_i32 s28, s30, 3")
        elif G_ == 4: a("s_and_b32 s30, s30, 3\ns_mul_i32 s28, s30, 9\ns_lshr_b32 s28, s28, 2")
        a(f"""
        s_cmp_lt_u32 s{S_WAVE}, 4
        s_cbranch_scc1 L_aux
        """)

    def p3_ids(self):
        self.a(f"""
        s_lshl_b32 s{S_P3MB}, s{S_XCD}, 1
        s_and_b32 s30, s{S_IDX}, 1
        s_add_u32 s{S_P3MB}, s{S_P3MB}, s30
        s_lshr_b32 s{S_P3NB}, s{S_IDX}, 1
        s_lshl_b32 s{S_P3T}, s{S_P3MB}, 2
        s_add_u32 s{S_P3T}, s{S_P3T}, s{S_LW}
        """)

    def p1_loader(self):
        a = self.a
        VX, T = 4, 12
        SI, SB, ST, SL = 41, 43, 44, 45
        a(f"""
        s_cmp_eq_u32 s{S_TYPE}, 2
        s_cbranch_scc1 L_p1l_sp
        s_mov_b32 s{SI}, 0
        s_sub_u32 s42, 9, s28
        s_lshl_b32 s{SL}, s{S_LW}, 12
        s_cmp_ge_u32 s{S_WAVE}, 8
        s_cbranch_scc1 L_p1l_w
        s_cmp_eq_u32 s{S_TYPE}, 0
        s_cselect_b32 s46, 2, 1
        s_cselect_b32 s47, 32, 16
        s_cselect_b32 s48, 16, 4
        s_lshr_b32 s30, s{S_LW}, 1
        s_lshl_b32 s30, s30, 6
        s_and_b32 s31, s{S_LW}, 1
        s_add_u32 s30, s30, s31
        s_lshl_b32 s31, s{S_LW}, 5
        s_cmp_eq_u32 s{S_TYPE}, 0
        s_cselect_b32 s30, s30, s31
        s_lshl_b32 s31, s{S_MB}, 7
        s_add_u32 s30, s30, s31
        s_mul_i32 s{SB}, s30, 1152
        s_mov_b32 s{ST}, 128
        """)
        self.make_vx(VX, 4, "8", "s46", "s47", "s48", T)
        a("s_waitcnt lgkmcnt(0)")
        self.srd(8, P_AX, 2048 * 1152)
        a("s_branch L_p1l_go")
        a.label("L_p1l_w")
        a(f"""
        s_mul_i32 s30, s{S_LW}, {16*3456}
        s_lshl_b32 s31, s{S_NB}, 8
        s_add_u32 s{SB}, s30, s31
        s_mov_b32 s{ST}, {64*3456}
        s_add_u32 s{SL}, s{SL}, 16384
        v_lshrrev_b32 v{T}, 4, v2
        v_and_b32 v{T+1}, 15, v2
        v_lshlrev_b32 v{T+2}, 2, v{T}
        v_xor_b32 v{T+1}, v{T+1}, v{T+2}
        v_mul_u32_u24 v{T}, 3456, v{T}
        v_lshl_add_u32 v{VX}, v{T+1}, 4, v{T}
        v_add_u32 v{VX+1}, {4*3456-1024}, v{VX}
        v_add_u32 v{VX+2}, {2*(4*3456-1024)}, v{VX}
        v_add_u32 v{VX+3}, {3*(4*3456-1024)}, v{VX}
        s_waitcnt lgkmcnt(0)
        """)
        self.srd(8, P_WQKV, 576 * 3456)
        a.label("L_p1l_go")
        a(f"s_mul_i32 s30, s28, s{ST}\ns_add_u32 s{SB}, s{SB}, s30\ns_mul_i32 s46, s{ST}, 9")
        self.stamp(1)
        a.label("L_p1l_issue")
        a(f"s_mov_b32 m0, s{SL}\ns_add_u32 s{SI}, s{SI}, 1")
        for n in range(4): a(f"buffer_load_dwordx4 v{VX+n}, s[8:11], s{SB} offen offset:{n*1024} lds")
        a(f"""
        s_add_u32 s{SB}, s{SB}, s{ST}
        s_cmp_eq_u32 s{SI}, s42
        s_cselect_b32 s30, s46, 0
        s_sub_u32 s{SB}, s{SB}, s30
        s_add_u32 s{SL}, s{SL}, 32768
        s_sub_u32 s30, s{SL}, 163840
        s_cmp_ge_u32 s{SL}, 163840
        s_cselect_b32 s{SL}, s30, s{SL}
        s_cmp_lt_u32 s{SI}, 3
        s_cbranch_scc1 L_p1l_issue
        s_waitcnt vmcnt(8)
        s_barrier
        """)
        a(f"s_cmp_lt_u32 s{SI}, 9\ns_cbranch_scc1 L_p1l_issue")
        a.label("L_p1l_sp")
        a("s_waitcnt lgkmcnt(0)")
        self.b1_loader()
        a(f"s_cmp_eq_u32 s{S_TYPE}, 2\ns_cbranch_scc1 L_p1l_sp2")
        nw = 0
        if self.opt.get("warmb_old"):
            nw = 3
            a(f"""
            s_lshl_b32 s30, s{S_IDX}, 2
            s_and_b32 s31, s{S_LW}, 1
            s_add_u32 s30, s30, s31
            s_lshr_b32 s31, s{S_WAVE}, 3
            s_lshl_b32 s31, s31, 1
            s_add_u32 s30, s30, s31
            s_mul_i32 s30, s30, 3072
            s_lshr_b32 s31, s{S_XCD}, 2
            s_mul_i32 s31, s31, {288*1152}
            s_add_u32 s30, s30, s31
            """)
            for n in range(3): a(f"buffer_load_dwordx4 v[80:83], v3, s[12:15], s30 offen offset:{n*1024}")
            if self.opt.get("warmx2"):
                nw = 6
                a(f"""
                s_lshl_b32 s30, s{S_IDX}, 3
                s_add_u32 s30, s30, s{S_WAVE}
                s_sub_u32 s30, s30, 4
                s_mul_i32 s30, s30, 2688
                s_and_b32 s31, s{S_XCD}, 3
                s_mul_i32 s31, s31, 589824
                s_add_u32 s30, s30, s31
                """)
                for n in range(3): a(f"buffer_load_dwordx4 v[80:83], v3, s[8:11], s30 offen offset:{n*1024}")
        a(f"s_waitcnt vmcnt({4+nw})\ns_barrier\ns_xor_b32 s40, s27, 1")
        if self.opt.get("early"):
            a(f"s_cmp_eq_u32 s27, 0\ns_cbranch_scc1 L_e1")
            self.b1_issue()
            a(f"s_waitcnt vmcnt({nw+6})\ns_barrier\ns_branch L_e2")
            a.label("L_e1")
            a(f"s_waitcnt vmcnt({nw})\ns_barrier")
            self.b1_issue()
            a.label("L_e2")
        else:
            a(f"s_waitcnt vmcnt({nw})\ns_barrier")
        a.label("L_p1l_sp2")
        a(f"""
        s_cmp_lg_u32 s{S_WAVE}, 8
        s_cbranch_scc1 L_p1l_b
        v_lshlrev_b32 v9, 2, v2
        v_add_u32 v9, {LDS_W}, v9
        v_cmp_eq_u32 vcc, 8, v2
        v_mov_b32 v10, 4
        v_mov_b32 v8, 0
        v_cndmask_b32 v10, v8, v10, vcc
        ds_write_b32 v9, v10
        ds_write_b32 v9, v8 offset:2560
        ds_write_b32 v9, v8 offset:2816
        s_waitcnt lgkmcnt(0)
        """)
        a.label("L_p1l_b")
        a("s_barrier")
        self.srd(4, P_WS, WS_BYTES)
        if self.opt.get("iss"):
            a(f"s_cmp_eq_u32 s{S_TYPE}, 2\ns_cbranch_scc1 L_p1l_sp5\nv_mov_b32 v70, {W_ISS}")
            self.lds_spin(70, 71, 4)
            a.label("L_p1l_sp5")
        if self.opt.get("drn"):
            a(f"s_cmp_eq_u32 s{S_TYPE}, 2\ns_cbranch_scc1 L_p1l_sp4\nv_mov_b32 v70, {W_DRN}")
            self.lds_spin(70, 71, int(self.opt["drn"]), sleep=1)
            a.label("L_p1l_sp4")
        a(f"s_cmp_lt_u32 s{S_WAVE}, 8\ns_cbranch_scc1 L_attshare")
        self.b1_run()
        self.helper()
        a.label("L_attshare")
        CW, ONE, T = 66, 67, 68
        a("s_mov_b32 s40, 1"); self.b1_issue()
        a("s_mov_b32 s40, 3"); self.b1_issue()
        self.attention(0)
        a("s_waitcnt vmcnt(6)"); self.lds_add1(CW, ONE, 4)
        a("s_waitcnt vmcnt(0)"); self.lds_add1(CW, ONE, 12)
        self.lds_spin(CW, T, 4, 256 + 4)
        a("s_mov_b32 s40, 5"); self.b1_issue()
        a(f"""
        v_mov_b32 v{T+1}, 0
        s_cmp_lg_u32 s{S_WAVE}, 4
        s_cbranch_scc1 L_as1
        v_mov_b32 v{T+2}, {W_OK}
        ds_read_b32 v{T}, v{T+2}
        s_mul_i32 s34, s{S_HD}, {F1STRIDE}
        s_add_u32 s34, s34, {F1}
        v_and_b32 v{T+2}, {NSUB-1}, v2
        v_lshlrev_b32 v{T+2}, 7, v{T+2}
        s_waitcnt lgkmcnt(0)
        v_readfirstlane_b32 s32, v{T}
        s_cmp_eq_u32 s32, 0
        s_cbranch_scc1 L_as1
        buffer_load_dword v{T+1}, v{T+2}, s[4:7], s34 offen sc0 sc1
        s_waitcnt vmcnt(1)
        s_branch L_as2
        """)
        a.label("L_as1")
        a("s_waitcnt vmcnt(0)")
        a.label("L_as2")
        self.lds_add1(CW, ONE, 20)

    def aux_start(self):
        a = self.a
        sp = self.opt.get("sponly")
        if sp: a(f"s_cmp_lg_u32 s{S_TYPE}, 2\ns_cbranch_scc1 L_nopf\ns_getpc_b64 s[30:31]")
        else: a(f"s_cmp_lg_u32 s{S_WAVE}, 3\ns_cbranch_scc1 L_nopf\ns_getpc_b64 s[30:31]")
        a.label("L_pc")
        a(f"s_sub_u32 s30, s30, L_pc-L_code0\ns_subb_u32 s31, s31, 0")
        if sp: a(f"s_and_b32 s32, s{S_IDX}, 3\ns_lshl_b32 s32, s32, 2\ns_add_u32 s32, s32, s{S_WAVE}\ns_lshl_b32 s32, s32, 11\nv_lshlrev_b32 v6, 5, v2\ns_cmp_ge_u32 s32, L_end-L_code0-2048")
        else: a(f"s_lshl_b32 s32, s{S_IDX}, 10\nv_mov_b32 v6, v3\ns_cmp_ge_u32 s32, L_end-L_code0-1024")
        a(f"""
        s_cbranch_scc1 L_nopf
        s_add_u32 s30, s30, s32
        s_addc_u32 s31, s31, 0
        v_mov_b32 v5, s31
        v_add_co_u32 v4, vcc, s30, v6
        s_nop 1
        v_addc_co_u32 v5, vcc, 0, v5, vcc
        global_load_dword v154, v[4:5], off
        """)
        a.label("L_nopf")
        a("s_waitcnt lgkmcnt(0)")
        self.srd(4, P_WS, WS_BYTES)
        for r in (8, 9, 10, 11, 152): a(f"v_mov_b32 v{r}, 0")
        if not self.opt.get("notlb"):
            a(f"s_cmp_lg_u32 s{S_WAVE}, 2\ns_cbranch_scc1 L_notlb")
            if self.opt.get("sponly"): a(f"s_cmp_lg_u32 s{S_TYPE}, 2\ns_cbranch_scc1 L_notlb")
            pt = pad_touch()
            for i, p in enumerate(pt): a(f"s_mov_b32 s30, {p}\nv_writelane_b32 v9, s30, {i}")
            a(f"s_mov_b64 exec, {(1 << len(pt)) - 1}\nbuffer_load_dword v154, v9, s[4:7], 0 offen\ns_mov_b64 exec, 0x1ff\nv_lshlrev_b32 v9, 20, v2")
            a(f"global_load_dword v154, v9, s[{P_OUT}:{P_OUT+1}]\ns_mov_b64 exec, 7\nglobal_load_dword v154, v9, s[{P_BX}:{P_BX+1}]\ns_mov_b64 exec, 1")
            for p in (P_WO, P_LRE, P_LIM, P_BRE, P_BIM, P_CRE, P_CIM, P_LDT, P_DSK): a(f"global_load_dword v154, v8, s[{p}:{p+1}]")
            a("s_mov_b64 exec, -1")
            a.label("L_notlb")
    def zero_flags(self):
        a = self.a
        a(f"s_lshl_b32 s30, s2, 4\ns_add_u32 s30, s30, s{S_WAVE}\ns_cmp_lg_u32 s30, {255*16}\ns_cbranch_scc1 L_nz\ns_mov_b32 s30, {FL}\nv_mov_b32 v24, 0\nv_mov_b32 v25, 0\nv_mov_b32 v26, 0\nv_mov_b32 v27, 0")
        for i in range(FLBYTES // 1024):
            a(f"buffer_store_dwordx4 v[24:27], v3, s[4:7], s30 offen offset:{(i%4)*1024} {WT}")
            if i % 4 == 3: a("s_add_u32 s30, s30, 4096")
        a(f"""
        s_waitcnt vmcnt(0)
        v_mov_b32 v28, 1
        s_mov_b64 exec, 1
        global_store_dword v8, v28, s[{P_DBG}:{P_DBG+1}] {WT}
        s_mov_b64 exec, -1
        """)
        a.label("L_nz")
    def dbg_load(self):
        self.a(f"v_mov_b32 v152, 0\nglobal_load_dword v153, v152, s[{P_DBG}:{P_DBG+1}]")
    def dbg_verify(self):
        a = self.a; l = a.newlabel("L_dv")
        a("s_mov_b32 s33, 0")
        a.label(l)
        a(f"""
        v_readfirstlane_b32 s32, v153
        s_cmp_eq_u32 s32, 1
        s_cbranch_scc1 {l}x
        s_add_u32 s33, s33, 1
        s_cmp_gt_u32 s33, {SPIN_MAX}
        s_cbranch_scc1 {l}x
        s_sleep 8
        global_load_dword v153, v152, s[{P_DBG}:{P_DBG+1}] sc0 sc1
        s_waitcnt vmcnt(0)
        s_branch {l}
        """)
        a.label(l + "x")
        a(f"ds_write_b32 v{self.WA}, v{self.ONE} offset:{W_OK - W_BAR}")
    def wait_ok(self, T):
        self.a(f"v_mov_b32 v{T}, {W_OK}")
        self.lds_spin(T, T + 1, 1, sleep=2)

    def kv_setup(self, T, VV, first):
        a = self.a
        a(f"""
        s_lshr_b32 s30, s{S_HD}, 1
        s_mul_i32 s30, s30, 9
        s_and_b32 s31, s{S_HD}, 1
        s_lshl_b32 s31, s31, 2
        s_add_u32 s36, s30, s31                  ; f
        s_add_u32 s30, s36, s{S_LW}
        s_lshl_b32 s30, s30, 10
        s_mul_i32 s31, {first}, {2*QS*1024}
        s_add_u32 s30, s30, s31
        s_add_u32 s{S_GK}, s30, {QKP + 144*1024}
        s_cmp_eq_u32 s{S_LW}, 0
        s_cselect_b32 s{S_K4}, 0, {(QS-5)*1024}
        s_add_u32 s{S_K4}, s{S_K4}, 4096
        s_mul_i32 s30, s{S_HD}, 288
        s_mul_i32 s31, s{S_LW}, {3*VS}
        s_add_u32 s30, s30, s31
        s_mul_i32 s31, {first}, {32*VS}
        s_add_u32 s30, s30, s31
        s_add_u32 s{S_GV}, s30, {VT}
        v_mul_u32_u24 v{T}, 27, v2
        v_lshrrev_b32 v{T}, 9, v{T}
        v_mul_u32_u24 v{VV}, 19, v{T}
        v_sub_u32 v{VV}, v2, v{VV}
        v_cmp_gt_u32 vcc, 18, v{VV}
        v_cmp_gt_u32 s[58:59], 3, v{T}
        v_cmp_gt_u32 s[60:61], 2, v{T}
        v_mul_u32_u24 v{T}, {VS}, v{T}
        v_lshl_add_u32 v{VV}, v{VV}, 4, v{T}
        s_and_b64 s[58:59], s[58:59], vcc
        s_and_b64 s[60:61], s[60:61], vcc
        s_cmp_eq_u32 s{S_LW}, 2
        s_cselect_b64 s[60:61], s[60:61], s[58:59]
        s_add_u32 s30, {first}, {C0}
        s_and_b32 s30, s30, 7
        s_mul_i32 s{S_LP}, s30, {CHB}
        v_mul_u32_u24 v{VV+1}, {VROW}, v1
        v_add_u32 v{VV+1}, {10240 + 288}, v{VV+1}
        """)
    def k_part(self):
        a = self.a; l1 = a.newlabel("L_kd")
        a(f"""
        s_lshl_b32 s31, s{S_LW}, 10
        s_add_u32 s31, s31, s{S_LP}
        s_mov_b32 m0, s31
        s_add_u32 s30, s{S_GK}, s{S_K4}
        buffer_load_dwordx4 v3, s[4:7], s{S_GK} offen {LDF} lds
        s_add_u32 m0, s31, 4096
        s_cmp_ge_u32 s{S_LW}, 2
        buffer_load_dwordx4 v3, s[4:7], s30 offen {LDF} lds
        s_cbranch_scc1 {l1}
        s_add_u32 m0, s31, 8192
        s_add_u32 s30, s{S_GK}, {(QS+3)*1024}
        buffer_load_dwordx4 v3, s[4:7], s30 offen {LDF} lds
        """)
        a.label(l1)
    def v_part(self, VV, ONES, T):
        a = self.a; l2 = a.newlabel("L_vd")
        a(f"""
        s_mul_i32 s31, s{S_LW}, {3*VROW}
        s_add_u32 s31, s31, s{S_LP}
        s_add_u32 m0, s31, 10240
        s_mov_b64 exec, s[58:59]
        buffer_load_dwordx4 v{VV}, s[4:7], s{S_GV} offen {LDF} lds
        s_add_u32 m0, s31, {10240 + 12*VROW}
        s_add_u32 s30, s{S_GV}, {12*VS}
        buffer_load_dwordx4 v{VV}, s[4:7], s30 offen {LDF} lds
        s_cmp_eq_u32 s{S_LW}, 3
        s_cbranch_scc1 {l2}
        s_add_u32 m0, s31, {10240 + 24*VROW}
        s_add_u32 s30, s{S_GV}, {24*VS}
        s_mov_b64 exec, s[60:61]
        buffer_load_dwordx4 v{VV}, s[4:7], s30 offen {LDF} lds
        """)
        a.label(l2)
        a(f"s_mov_b64 exec, -1\nv_add_u32 v{T}, s{S_LP}, v{VV+1}\nds_write_b128 v{T}, v[{ONES}:{ONES+3}]")
    def kv_next(self):
        self.a(f"""
        s_add_u32 s{S_GK}, s{S_GK}, {2*QS*1024}
        s_add_u32 s{S_GV}, s{S_GV}, {32*VS}
        s_add_u32 s{S_LP}, s{S_LP}, {CHB}
        s_cmp_eq_u32 s{S_LP}, {8*CHB}
        s_cselect_b32 s{S_LP}, 0, s{S_LP}
        """)
    def kv_half(self, grp, VV, ONES, T):
        a = self.a; l = a.newlabel("L_kh")
        a(f"s_cmp_lg_u32 s{grp}, 0\ns_cbranch_scc1 {l}v")
        self.k_part()
        a(f"s_branch {l}e")
        a.label(l + "v")
        self.v_part(VV, ONES, T)
        a.label(l + "e")
        self.kv_next()
    def poll_f1(self, lab, T, poller=False):
        a = self.a
        a(f"v_mov_b32 v{T+2}, {W_F1}")
        if poller:
            a(f"s_cmp_lg_u32 s{S_WAVE}, 4\ns_cbranch_scc1 {lab}_w")
            a(f"s_waitcnt vmcnt(0)\nv_cmp_ne_u32 vcc, {864 // NSUB}, v69\ns_cbranch_vccz {lab}_x")
            self.wait_ok(T)
            a(f"s_mul_i32 s34, s{S_HD}, {F1STRIDE}\ns_add_u32 s34, s34, {F1}\nv_and_b32 v{T}, {NSUB-1}, v2\nv_lshlrev_b32 v{T}, 7, v{T}")
            self.poll(lab, T + 1, T, "s34", want=str(864 // NSUB), sleep=int(self.opt.get("f1sleep", 4)))
            a(f"v_mov_b32 v{T}, 1\nds_write_b32 v{T+2}, v{T}")
            a.label(lab + "_w")
        self.lds_spin(T + 2, T + 1, 1, sleep=1)

    def wait_prog(self, val, T, sleep=4):
        a = self.a; lab = a.newlabel("L_pg")
        a(f"v_and_b32 v{T}, 3, v2\nv_lshlrev_b32 v{T}, 2, v{T}\nv_add_u32 v{T}, {W_PROG}, v{T}\ns_mov_b32 s33, 0\ns_mov_b32 s30, {FIN_BAD}")
        a.label(lab)
        a(f"""
        ds_read_b32 v{T+1}, v{T}
        s_add_u32 s33, s33, 1
        s_waitcnt lgkmcnt(0)
        v_cmp_gt_u32 vcc, {val}, v{T+1}
        s_cmp_gt_u32 s33, {SPIN_MAX*8}
        s_cbranch_scc1 {lab}x
        s_cbranch_vccz {lab}x
        s_sleep {sleep}
        s_branch {lab}
        """)
        a.label(lab + "x")
    def f4(self, n, T):
        a = self.a; lab = a.newlabel("L_f4")
        a(f"s_cmp_eq_u32 s50, 0\ns_cbranch_scc1 {lab}\ns_waitcnt vmcnt({n})")
        self.flag_store([36], T)
        a.label(lab)

    def final_check(self, T, lab_bad, sleep=2):
        self.wait_prog(FIN_OK, T, sleep)
        self.a(f"v_cmp_eq_u32 vcc, s30, v{T+1}\ns_cbranch_vccnz {lab_bad}")

    def attention(self, part):
        a = self.a
        QM, QL, IDX, AK, AV, AL, T0, T1 = 4, 12, 14, 15, 16, 17, 18, 19
        KM, KL, VF, O, S0, S1 = 20, 24, 28, 44, 76, 108
        LK, LV, LL, CA, CK, PW, VV, AK2, KM2 = 140, 141, 142, 143, 144, 145, 146, 151, 152
        TQ, PAR, CH, IT, DK, FB, MC, MB_, MI = 29, 33, 43, 44, 45, 47, 48, 49, 50
        HD = S_HD
        if part == 0: self.kv_setup(T0, VV, "0")
        if part == 0: a(f"""
        s_lshr_b32 s{TQ}, s{S_IDX}, 2
        s_lshl_b32 s{TQ}, s{TQ}, 3
        s_lshl_b32 s30, s{S_LW}, 1
        s_add_u32 s{TQ}, s{TQ}, s30
        s_lshr_b32 s32, s{TQ}, 2
        s_mul_i32 s32, s32, {QS}
        s_add_u32 s32, s32, s36
        s_lshl_b32 s32, s32, 10
        s_and_b32 s30, s{TQ}, 3
        s_lshl_b32 s30, s30, 8
        s_add_u32 s32, s32, s30
        s_add_u32 s35, s32, {QKP}
        s_and_b32 s{PAR}, s{HD}, 1
        v_lshrrev_b32 v{T1}, 5, v2
        v_lshlrev_b32 v{T0}, 3, v1
        v_lshl_add_u32 v{LK}, v{T1}, 11, v{T0}
        s_lshl_b32 s30, s{PAR}, 10
        v_add_u32 v{LK}, s30, v{LK}
        s_mul_i32 s31, s{PAR}, 4092
        s_sub_u32 s31, 4096, s31
        v_add_u32 v{LL}, s31, v{T0}
        v_lshl_add_u32 v{AL}, v2, 3, s31
        v_min_u32 v{AV}, 18, v1
        v_mul_u32_u24 v{T1}, {VROW}, v{T1}
        v_lshl_add_u32 v{LV}, v{AV}, 4, v{T1}
        v_add_u32 v{LV}, {10240 + C0*CHB}, v{LV}
        v_cmp_lt_u32 vcc, 18, v1
        v_cmp_ne_u32 s[30:31], 28, v1
        s_and_b64 vcc, vcc, s[30:31]
        v_mov_b32 v{T1}, 0x100000
        v_mov_b32 v{IDX}, 0xdddd
        v_cndmask_b32 v{LV}, v{LV}, v{T1}, vcc
        v_mov_b32 v{KL}, 0x3f803f80
        v_mov_b32 v{KL+1}, 0x3f803f80
        v_mov_b32 v{KL+2}, 0x3f803f80
        v_mov_b32 v{KL+3}, 0x3f803f80
        s_lshl_b32 s30, s{S_LW}, 2
        s_add_u32 s30, s30, {W_PROG}
        v_mov_b32 v{PW}, s30
        s_mov_b32 s62, 0
        s_mov_b32 s63, -1
        s_mov_b32 s{FB}, 0
        s_mov_b32 s{MC}, 1
        s_mov_b32 s{MB_}, {C0*CHB}
        """)
        if part == 0: return
        self.stamp(4)
        self.poll_f1("L_pollF1a", S0, True)
        self.stamp(5)
        a("s_setprio 3")
        self.k_part()
        for q in range(2):
            a(f"buffer_load_dwordx2 v[{QM+4*q}:{QM+4*q+1}], v{LK}, s[4:7], s35 offen offset:{q*256} {LDF}")
            a(f"buffer_load_dwordx2 v[{QM+4*q+2}:{QM+4*q+3}], v{LK}, s[4:7], s35 offen offset:{q*256+1024} {LDF}")
        a(f"buffer_load_dword v{QL}, v{AL}, s[4:7], s35 offen {LDF}")
        self.v_part(VV, KL, T0); self.kv_next()
        self.k_part(); self.v_part(VV, KL, T0)
        a(f"v_mov_b32 v{CA}, {W_LAND}\nv_mov_b32 v{CK}, 1\ns_waitcnt vmcnt(6)")
        self.lds_add1(CA, CK, W_K0 - W_LAND)
        self.lds_spin(CA, T0, 4, W_K0 - W_LAND)
        self.stamp(6)
        a.label("L_maxpass")
        MX0, MX1 = T0, T1
        a(f"""
        v_add_u32 v{AK}, s{MB_}, v{LK}
        v_add_u32 v{AL}, s{MB_}, v{LL}
        v_mov_b32 v{QL+1}, 0
        v_mov_b32 v{MX0}, 0xff800000
        v_mov_b32 v{MX1}, 0xff800000
        s_mov_b32 s{MI}, 0
        """)
        def rdKm(t): o = (t // 4) * 10 + (t % 4) // 2; k = KM2 if t % 2 else KM; a(f"ds_read2st64_b64 v[{k}:{k+3}], v{AK2 if t % 2 else AK} offset0:{o} offset1:{o+2}")
        def rdKl(t): a(f"ds_read_b32 v{KL+2*(t%2)}, v{AL} offset:{(t//4)*5120 + (t%4)*256}")
        def rdV(m, t): a(f"ds_read_b128 v[{VF+8*(t%2)+4*m}:{VF+8*(t%2)+4*m+3}], v{AV} offset:{(t*4+m*2)*VROW}")
        def b2(N, t): a(f"v_mfma_f32_32x32x4_2b_bf16 v[{N}:{N+31}], v[{KL+2*(t%2)}:{KL+2*(t%2)+1}], v[{QL}:{QL+1}], 0")
        def mainm(N, q, t=0): k = KM2 if t % 2 else KM; a(f"v_mfma_f32_32x32x16_bf16 v[{N+16*q}:{N+16*q+15}], v[{k}:{k+3}], v[{QM+4*q}:{QM+4*q+3}], v[{N+16*q}:{N+16*q+15}]")
        def smf(n, S, t):
            o = O + 16 * (n // 2); v = VF + 8 * (t % 2) + 4 * (n % 2)
            a(f"v_smfmac_f32_32x32x32_bf16 v[{o}:{o+15}], v[{v}:{v+3}], v[{S+8*n}:{S+8*n+7}], v{IDX}")
        RO = bool(self.opt.get("ro"))
        EO = (list(range(0, 8)) + list(range(16, 24)) + list(range(8, 16)) + list(range(24, 32))) if RO else list(range(32))
        def E(S, lo, hi):
            for r in range(lo, hi): a(f"v_exp_f32 v{S+EO[r]}, v{S+EO[r]}")
        a.label("L_maxloop")
        rdKl(0); rdKm(0)
        a(f"""
        s_mov_b32 s30, 256
        s_and_b32 s31, s{MI}, 3
        s_cmp_eq_u32 s31, 3
        s_cselect_b32 s30, {5120-768}, s30
        s_and_b32 s31, s{MI}, 7
        s_cmp_eq_u32 s31, 7
        s_cselect_b32 s30, {CHB-5120-768}, s30
        s_add_u32 s{MI}, s{MI}, 1
        s_waitcnt lgkmcnt(0)
        """)
        b2(S0, 0)
        a(f"v_add_u32 v{AK}, s30, v{AK}\nv_add_u32 v{AL}, s30, v{AL}")
        for i in range(16): a(f"v_mov_b32 v{O+i}, 0")
        mainm(S0, 0); mainm(S0, 1)
        for i in range(16): a(f"v_mov_b32 v{O+16+i}, 0")
        for i in range(8): a(f"v_max3_f32 v{MX0}, v{S0+2*i}, v{S0+2*i+1}, v{MX0}\nv_max3_f32 v{MX1}, v{S0+16+2*i}, v{S0+16+2*i+1}, v{MX1}")
        a(f"""
        s_cmp_lt_u32 s{MI}, s{MC}
        s_cbranch_scc1 L_maxloop
        v_add_u32 v{AK}, {C0*CHB}, v{LK}
        v_add_u32 v{AL}, {C0*CHB}, v{LL}
        v_mov_b32 v{AV}, v{LV}
        v_add_u32 v{AK2}, 256, v{AK}
        """)
        rdKl(0); rdKm(0); rdKl(1); rdKm(1)
        a(f"""
        v_permlane32_swap_b32 v{MX0}, v{MX1}
        s_mov_b32 s{CH}, {(-7*CHB) & 0xffffffff}
        s_mov_b32 s{IT}, 0
        v_max_f32 v{MX1}, v{MX0}, v{MX1}
        v_cvt_pk_bf16_f32 v{T0}, -v{MX1}, 0
        v_lshlrev_b32 v{T0}, 16, v{T0}
        v_sub_f32 v{T0}, -v{MX1}, v{T0}
        v_cvt_pk_bf16_f32 v{QL+1}, -v{MX1}, v{T0}
        v_mov_b32 v{CA}, {W_LAND}
        v_mov_b32 v{T1}, 1
        s_waitcnt lgkmcnt(2)
        """)
        b2(S0, 0)
        a(f"s_cmp_lg_u32 s{FB}, 0\ns_cbranch_scc1 L_nl0\ns_waitcnt vmcnt(4)")
        self.lds_add1(CA, T1)
        a.label("L_nl0")
        for i in range(8): a(f"v_mov_b32 v{S1+24+i}, 0")
        for i in range(4): a(f"v_mov_b32 v{VF+12+i}, 0")
        a("s_nop 3")
        mainm(S0, 0); mainm(S0, 1)
        self.lds_spin(CA, T0, 4)
        rdV(0, 0); rdV(1, 0)
        a("s_nop 2")
        self.stamp(7); self.stamp(61)
        a.raw(".p2align 6")
        a.label("L_loop")
        for i in range(8):
            C, N = (S0, S1) if i % 2 == 0 else (S1, S0)
            E(C, 0, 2)
            smf(3, N, i + 1)
            if i == 7: a(f"v_add_u32 v{AV}, s{DK}, v{AV}")
            rdV(0, (i + 1) % 8)
            if not self.opt.get("w0"): a("s_waitcnt lgkmcnt(1)")
            E(C, 2, 6)
            b2(N, i + 1)
            rdV(1, (i + 1) % 8)
            if i == 1: a(f"ds_write_b32 v{PW}, v{CA}")
            if i == 5: a(f"ds_read_b32 v{CK}, v{CA} offset:4")
            if i == 0:
                a(f"s_cmp_eq_u32 s{IT}, {7-C0}\ns_cselect_b32 s{DK}, s{CH}, {CHB}")
            if i == 3:
                a(f"s_cmp_eq_u32 s{IT}, s{FB}\ns_cbranch_scc1 L_sig1")
                a.label("L_sig1r")
            if i == 6:
                a(f"""
                v_readfirstlane_b32 s30, v{CK}
                v_add_u32 v{AK}, s{DK}, v{AK}
                v_add_u32 v{AL}, s{DK}, v{AL}
                v_add_u32 v{AK2}, s{DK}, v{AK2}
                v_add_u32 v{CA}, 4, v{CA}
                s_cmp_lt_u32 s30, 4
                s_cbranch_scc1 L_wait
                """)
                a.label("L_waitret")
            E(C, 6, 14)
            smf(0, C, i)
            rdKl((i + 2) % 8)
            E(C, 14, 18)
            smf(2 if RO else 1, C, i)
            rdKm((i + 2) % 8)
            E(C, 18, 22)
            mainm(N, 0, i + 1)
            E(C, 22, 26)
            if RO: mainm(N, 1, i + 1)
            else: smf(2, C, i)
            if i == 7: a(f"s_add_u32 s{IT}, s{IT}, 1\ns_cmp_lt_u32 s{IT}, 8")
            E(C, 26, 30)
            if RO: smf(1, C, i)
            else: mainm(N, 1, i + 1)
            if self.opt.get("w0"): a(f"s_waitcnt lgkmcnt(0)")
            E(C, 30, 32)
        a("s_cbranch_scc1 L_loop")
        a("s_waitcnt lgkmcnt(0)\ns_nop 0")
        smf(3, S1, 7)
        self.stamp(8); self.stamp(62)
        SUM = T1
        a(f"""
        s_mul_i32 s30, s{TQ}, {OS}
        s_add_u32 s30, s30, {OW}
        s_lshl_b32 s31, s{HD}, 10
        s_add_u32 s31, s31, s30
        s_lshl_b32 s32, s{HD}, 7
        s_add_u32 s32, s32, s30
        s_add_u32 s32, s32, 32768
        v_lshlrev_b32 v{T0}, 2, v2
        s_mov_b32 s30, 0x5d800000
        """)
        for q in range(2):
            o = O + 16 * q; d = S1 + 8 * q
            a(f"v_cndmask_b32 v{o+10}, v{o+10}, v{o+12}, s[62:63]\nv_rcp_f32 v{o+11}, v{o+10}\nv_cmp_nge_f32 s[{16+2*q}:{17+2*q}], s30, v{o+10}")
            for r in range(5): a(f"v_pk_mul_f32 v[{o+2*r}:{o+2*r+1}], v[{o+2*r}:{o+2*r+1}], v[{o+10}:{o+11}] op_sel:[0,1] op_sel_hi:[1,1]")
            for r in range(5): a(f"v_cvt_pk_bf16_f32 v{d+r}, v{o+2*r}, v{o+2*r+1}")
            a(f"""
            buffer_store_dwordx4 v[{d}:{d+3}], v3, s[4:7], s31 offen {WT}
            s_mov_b32 exec_hi, 0
            buffer_store_dword v{d+4}, v{T0}, s[4:7], s32 offen {WT}
            s_mov_b32 exec_hi, -1
            s_add_u32 s31, s31, {OS}
            s_add_u32 s32, s32, {OS}
            """)
        a(f"v_add_f32 v{SUM}, |v{O}|, |v{O+16}|")
        for r in range(1, 10): a(f"v_add_f32 v{AV}, |v{O+r}|, |v{O+16+r}|\nv_add_f32 v{SUM}, v{SUM}, v{AV}")
        a(f"""
        s_mov_b32 s31, 0x7f7fffff
        s_or_b64 s[16:17], s[16:17], s[18:19]
        v_cmp_nge_f32 vcc, s31, v{SUM}
        s_or_b64 vcc, vcc, s[16:17]
        s_cmp_lg_u32 s{FB}, 0
        s_cbranch_scc1 L_fin
        s_cmp_lg_u64 vcc, 0
        s_cbranch_scc1 L_unsafe
        """)
        a.label("L_fin")
        a(f"""
        v_mov_b32 v{T1}, {FIN_OK}
        s_lshl_b32 s36, s{TQ}, 5
        s_add_u32 s36, s36, s{HD}
        s_lshl_b32 s36, s36, 2
        s_add_u32 s36, s36, {F4}
        s_add_u32 s35, s36, 128
        s_waitcnt vmcnt(0)
        """)
        self.flag_store([36, 35], AK)
        a(f"ds_write_b32 v{PW}, v{T1}")
        self.stamp(9)
        a(f"s_cmp_lg_u32 s{FB}, 0\ns_cbranch_scc1 L_redo_end")
        self.final_check(AK, "L_redo", 4)
        a("s_branch L_exit")
        a.label("L_sig1")
        a("s_waitcnt vmcnt(0)")
        self.lds_add1(CA, T1, 4)
        a("s_waitcnt lgkmcnt(0)\ns_branch L_sig1r")
        a.label("L_wait")
        self.lds_spin(CA, CK, 4)
        a("s_branch L_waitret")
        a.label("L_unsafe")
        a(f"s_mov_b32 s{FB}, 100\nv_mov_b32 v{T1}, {FIN_BAD}\nds_write_b32 v{PW}, v{T1}")
        a.label("L_redo")
        a(f"""
        s_waitcnt vmcnt(0) lgkmcnt(0)
        s_barrier
        s_barrier
        s_cmp_eq_u32 s{FB}, 0
        s_cbranch_scc1 L_redo_end
        s_mov_b32 s{MC}, 64
        s_mov_b32 s{MB_}, 0
        v_mov_b32 v{PW}, {LDS_W + 128}
        s_branch L_maxpass
        """)
        a.label("L_redo_end")
        a("s_waitcnt lgkmcnt(0)\ns_barrier\ns_branch L_exit")

    def helper_kv(self, first, n):
        a = self.a
        VV, ONES, T, ONE, WB_ = 22, 16, 24, 157, 20
        lab = a.newlabel("L_hkv")
        a(f"v_mov_b32 v{ONE}, 1\nv_mov_b32 v{WB_}, {LDS_W}")
        for i in range(4): a(f"v_mov_b32 v{ONES+i}, 0x3f803f80")
        self.kv_setup(T, VV, str(first))
        self.lds_spin(WB_, T, 4, sleep=2)
        self.k_part(); self.v_part(VV, ONES, T); self.kv_next()
        a(f"s_mov_b32 s35, 0\nv_mov_b32 v{WB_+1}, {W_LAND + 4*first}")
        a.label(lab)
        self.k_part(); self.v_part(VV, ONES, T); self.kv_next()
        a("s_waitcnt vmcnt(4)")
        self.lds_add1(WB_ + 1, ONE)
        a(f"v_add_u32 v{WB_+1}, 4, v{WB_+1}\ns_add_u32 s35, s35, 1\ns_cmp_lt_u32 s35, {n-1}\ns_cbranch_scc1 {lab}\ns_waitcnt vmcnt(0)")
        self.lds_add1(WB_ + 1, ONE)
    def helper(self):
        a = self.a
        VV, ONES, T, ONE, WB_, PB = 22, 16, 24, 157, 20, 12
        pc = lambda c: W_LAND + 4 * (c + 1)
        self.stamp(4)
        if "hprio" in self.opt: a(f"s_setprio {self.opt['hprio']}")
        a(f"v_mov_b32 v{self.WA}, {W_BAR}\nv_mov_b32 v{ONE}, 1\nv_mov_b32 v155, 0")
        a(f"v_mov_b32 v{WB_}, {LDS_W}\nv_mov_b32 v{PB}, 0\nv_mov_b32 v{PB+1}, 0")
        for i in range(4): a(f"v_mov_b32 v{ONES+i}, 0x3f803f80")
        if self.opt.get("late"): self.helper_kv(4, 4)
        else: self.helper_kv(2, 6)
        self.stamp(5)
        self.p3_ids()
        a(f"s_mov_b32 s{S_HALF}, 0")
        self.lds_spin(WB_, T, 4, W_P2 - LDS_W, sleep=16)
        a.label("L_hpf")
        a(f"s_cmp_ge_u32 s{S_IDX}, 30\ns_cbranch_scc1 L_hfin\ns_cmp_ge_u32 s{S_IDX}, 18\ns_cbranch_scc1 L_hpfa")
        self.make_vx(PB, 2, "4", "1", "16", "8", T)
        self.srd(12, P_CRE, 576 * 1152)
        a(f"""
        s_lshl_b32 s30, s{S_P3NB}, 6
        s_lshl_b32 s31, s{S_LW}, 4
        s_add_u32 s30, s30, s31
        s_mul_i32 s{S_CB}, s30, 1152
        s_mov_b32 s40, 0
        """)
        def cload(first, upto, lds0):
            lab = a.newlabel("L_cl"); ldsadj = lds0 - first * 8192
            a(f"s_mov_b32 s40, {first}")
            a.label(lab)
            a(f"""
            s_lshl_b32 s30, s40, 13
            s_add_u32 s30, s30, {ldsadj & 0xffffffff}
            s_lshl_b32 s31, s{S_LW}, 11
            s_add_u32 m0, s30, s31
            s_cmp_lt_u32 s40, 9
            s_cselect_b32 s12, s{P_CRE}, s{P_CIM}
            s_cselect_b32 s13, s{P_CRE+1}, s{P_CIM+1}
            s_cselect_b32 s31, 0, 9
            s_and_b32 s13, s13, 0xffff
            s_sub_u32 s31, s40, s31
            s_lshl_b32 s31, s31, 7
            s_add_u32 s32, s31, s{S_CB}
            buffer_load_dwordx4 v{PB}, s[12:15], s32 offen lds
            buffer_load_dwordx4 v{PB+1}, s[12:15], s32 offen offset:1024 lds
            s_add_u32 s40, s40, 1
            s_cmp_lt_u32 s40, {upto}
            s_cbranch_scc1 {lab}
            """)
        self.wait_prog(pc(2), T, 16); cload(0, 7, TSCR)
        a(f"s_cmp_lg_u32 s{S_HALF}, 0\ns_cbranch_scc1 L_hnp")
        self.b3_pre(158, 1)
        a.label("L_hnp")
        self.wait_prog(pc(5), T, 16); cload(9, 16, 0)
        a(f"s_add_u32 s32, s{S_CB}, {7*128}")
        for j in range(2):
            a(f"buffer_load_dwordx4 v[124:127], v{PB}, s[12:15], s32 offen offset:{j*128}\nbuffer_load_dwordx4 v[124:127], v{PB+1}, s[12:15], s32 offen offset:{1024+j*128}")
        self.wait_prog(pc(6), T, 8); cload(7, 9, 57344)
        a("s_branch L_hpfd")
        a.label("L_hpfa")
        self.a3_setup(PB, T)
        self.wait_prog(pc(2), T, 16); self.a3_issue(PB, 4)
        self.wait_prog(pc(5), T, 16); self.a3_issue(PB, 5)
        a.label("L_hpfd")
        a("s_waitcnt vmcnt(0)")
        self.lds_add1(WB_, ONE, W_G2 - LDS_W)
        self.stamp(6)
        a.label("L_hfin")
        a(f"s_cmp_lg_u32 s{S_HALF}, 0\ns_cbranch_scc1 L_hok")
        self.wait_prog(W_LAND + 28, T, sleep=32)
        self.final_check(T, "L_hredo", 4)
        a.label("L_hok")
        a(f"s_cmp_ge_u32 s{S_IDX}, 18\ns_cbranch_scc1 L_hopf")
        cload(16, 18, 73728)
        a(f"s_lshl_b32 s34, s{S_HALF}, 2\ns_add_u32 s34, s34, 4\ns_setprio 3\ns_branch L_b3main")
        a.label("L_hopf")
        if self.opt.get("opf"):
            a(f"""
            s_cmp_ge_u32 s{S_IDX}, 30
            s_cbranch_scc1 L_exit
            s_lshl_b32 s30, s{S_LW}, 2
            s_add_u32 s30, s30, {W_F4}
            v_mov_b32 v{T+2}, s30
            s_mul_i32 s34, s{S_P3T}, {OS}
            s_sub_u32 s31, s{S_P3NB}, 9
            s_lshl_b32 s31, s31, 12
            s_add_u32 s34, s34, s31
            s_add_u32 s34, s34, {OW + 12*1024}
            """)
            self.lds_spin(T + 2, T, 1)
            for n in range(4): a(f"buffer_load_dwordx4 v[32:35], v3, s[4:7], s34 offen offset:{n*1024}")
        a("s_branch L_exit")
        a.label("L_hredo")
        a(f"s_mov_b32 s{S_HALF}, 1\ns_waitcnt vmcnt(0) lgkmcnt(0)\ns_barrier")
        self.kv_setup(T, VV, "0")
        a("s_mov_b32 s35, 0")
        a.label("L_hredo1")
        self.k_part(); self.v_part(VV, ONES, T); self.kv_next()
        a("s_add_u32 s35, s35, 1\ns_cmp_lt_u32 s35, 8\ns_cbranch_scc1 L_hredo1\ns_waitcnt vmcnt(0) lgkmcnt(0)\ns_barrier\ns_barrier\ns_branch L_hpf")

    WA, ONE, BC = 156, 157, 47
    def arrive(self, T):
        a = self.a
        a(f"s_add_u32 s{self.BC}, s{self.BC}, 4")
        self.lds_add1(self.WA, self.ONE)
    def bar(self, T):
        self.arrive(T)
        self.lds_spin(self.WA, T, f"s{self.BC}")
    def gemm_cons(self, name, N, T, CW, rl, mfl, nfree, hooks={}):
        a = self.a
        self.lds_spin(CW, T, 4, sleep=1)
        a(f"ds_read_b32 v{T}, v{CW} offset:4")
        for x in rl(0): a(x)
        for s in range(N - 1):
            mf = mfl(s); p = f"{name}_{s}"
            a("s_waitcnt lgkmcnt(0)")
            a(f"v_readfirstlane_b32 s32, v{T}")
            a(mf[0])
            self.stampx(16)
            if s < nfree: self.lds_add1(CW, self.ONE, 256 + 4 * s)
            a(f"s_cmp_lt_u32 s32, 4\ns_cbranch_scc1 {p}s")
            a.label(p + "r")
            self.stubs.append((p, CW, T, 4 * (s + 1)))
            oth = rl(s + 1) + ([f"ds_read_b32 v{T}, v{CW} offset:{4*(s+2)}"] if s + 2 < N else [])
            ilv(a, mf[1:8], oth)
            if s in hooks: hooks[s]()
        a("s_waitcnt lgkmcnt(0)")
        if N - 1 < nfree: self.lds_add1(CW, self.ONE, 256 + 4 * (N - 1))
        for m in mfl(N - 1): a(m)
    def emit_stubs(self):
        a = self.a
        for p, CW, T, off in self.stubs:
            a.label(p + "s")
            self.lds_spin(CW, T, 4, off, sleep=int(self.opt.get('cslp', 0)))
            a(f"s_branch {p}r")
    def gemm_load(self, name, nslot, CB, ONE, T, issue):
        a = self.a
        a("s_mov_b32 s41, 0")
        if self.opt.get("early"): a(f"s_cmp_lg_u32 s{S_TYPE}, 2\ns_cbranch_scc1 {name}e")
        a.label(name + "w")
        a(f"s_cmp_lt_u32 s40, {nslot}\ns_cbranch_scc1 {name}")
        self.lds_spin(T + 1, T, 4)
        a.label(name)
        if self.opt.get("pause"):
            a(f"v_mov_b32 v{T+2}, {LDS_W}\nds_read_b32 v{T+3}, v{T+2} offset:{W_F1 - LDS_W}\ns_waitcnt lgkmcnt(0)\nv_readfirstlane_b32 s32, v{T+3}\ns_cmp_eq_u32 s32, 0\ns_cbranch_scc1 {name}p\ns_cmp_lt_u32 s{S_WAVE}, 8\ns_cbranch_scc1 {name}p")
            self.lds_spin(T + 2, T + 3, 4, sleep=1)
            a.label(name + "p")
        issue()
        a.label(name + "e")
        a(f"""
        s_cmp_lt_u32 s40, s45
        s_cselect_b32 s44, 2, 1
        s_add_u32 s44, s44, s40
        s_lshl_b32 s30, s44, 2
        s_add_u32 s30, s30, s43
        s_add_u32 s30, s30, {256 - 4*nslot}
        v_mov_b32 v{T+1}, s30
        ds_read_b32 v{T}, v{T+1}
        s_cmp_eq_u32 s41, 0
        s_cbranch_scc1 {name}n
        s_waitcnt vmcnt(6)
        """)
        self.lds_add1(CB, ONE)
        a.label(name + "n")
        a(f"""
        s_lshl_b32 s30, s40, 2
        s_add_u32 s30, s30, s43
        v_mov_b32 v{CB}, s30
        s_mov_b32 s40, s44
        s_mov_b32 s41, 1
        s_waitcnt lgkmcnt(0)
        v_readfirstlane_b32 s32, v{T}
        s_cmp_lt_u32 s40, s46
        s_cselect_b32 s32, 4, s32
        s_cmp_ge_u32 s40, s42
        s_cselect_b32 s32, 0, s32
        s_cmp_ge_u32 s32, 4
        s_cbranch_scc1 {name}
        s_waitcnt vmcnt(0)
        """)
        self.lds_add1(CB, ONE)
        a(f"s_mov_b32 s41, 0\ns_cmp_lt_u32 s40, s42\ns_cbranch_scc1 {name}w")
    def b1_loader(self):
        a = self.a
        VX, VB, CW, ONE, T = 60, 64, 66, 67, 68
        XB, WB, SL, NS = 16, 17, 18, 19
        self.make_vx(VX, 4, "16", "1", "8", "4", T)
        self.make_vx(VB, 2, "4", "1", "16", "8", T)
        self.srd(8, P_BX, 2048 * 1152)
        a(f"""
        s_cmp_lt_u32 s{S_LW}, 2
        s_cselect_b32 s12, s{P_BRE}, s{P_BIM}
        s_cselect_b32 s13, s{P_BRE+1}, s{P_BIM+1}
        s_and_b32 s13, s13, 0xffff
        s_mov_b32 s14, {576*1152}
        s_mov_b32 s15, 0x20000
        s_lshl_b32 s30, s{S_MB}, 7
        s_lshl_b32 s31, s{S_LW}, 5
        s_add_u32 s30, s30, s31
        s_mul_i32 s{XB}, s30, 1152
        s_cmp_eq_u32 s{S_TYPE}, 2
        s_cselect_b32 s30, s{S_CHA}, s{S_CHB}
        s_cselect_b32 s{NS}, 18, 9
        s_lshl_b32 s30, s30, 5
        s_and_b32 s31, s{S_LW}, 1
        s_lshl_b32 s31, s31, 4
        s_add_u32 s30, s30, s31
        s_mul_i32 s{WB}, s30, 1152
        v_mov_b32 v{CW}, {W_FULL}
        v_mov_b32 v{ONE}, 1
        s_lshr_b32 s27, s{S_WAVE}, 3
        """)
        def issue():
            a(f"""
            s_add_u32 s31, s40, s28
            s_sub_u32 s30, s31, 9
            s_cmp_ge_u32 s31, 9
            s_cselect_b32 s31, s30, s31
            s_lshl_b32 s31, s31, 7
            {"s_and_b32 s%d, s40, 3" % SL if NS1 == 4 else "s_mul_i32 s30, s40, 43" + chr(10) + "s_lshr_b32 s30, s30, 7" + chr(10) + "s_mul_i32 s30, s30, 3" + chr(10) + "s_sub_u32 s%d, s40, s30" % SL}
            s_mul_i32 s{SL}, s{SL}, {BSLOT}
            s_add_u32 s{SL}, s{SL}, {B1BASE}
            s_lshl_b32 s30, s{S_LW}, 12
            s_add_u32 m0, s30, s{SL}
            s_add_u32 s32, s31, s{XB}
            """)
            for n in range(4): a(f"buffer_load_dwordx4 v{VX+n}, s[8:11], s32 offen offset:{n*1024} lds")
            a(f"s_lshl_b32 s30, s{S_LW}, 11\ns_add_u32 s30, s30, s{SL}\ns_add_u32 m0, s30, 16384\ns_add_u32 s32, s31, s{WB}")
            for n in range(2): a(f"buffer_load_dwordx4 v{VB+n}, s[12:15], s32 offen offset:{n*1024} lds")
        def run():
            a(f"s_mov_b32 s43, {W_FULL}\ns_mov_b32 s45, {self.opt.get('ashare', 6)}")
            a(f"s_cmp_eq_u32 s{S_TYPE}, 2\ns_cselect_b32 s46, {NS1}, {0 if self.opt.get('sig1', '1') == '1' else NS1}")
            a.label("L_l1job")
            if self.opt.get("late"):
                a(f"s_cmp_lg_u32 s{NS}, 9\ns_cbranch_scc1 L_l1go\ns_cmp_lt_u32 s{S_WAVE}, 8\ns_cbranch_scc1 L_p1_fin\ns_mov_b32 s45, 0")
                self.helper_kv(2, 2)
                a.label("L_l1go")
            a(f"s_xor_b32 s40, s27, 1\ns_cmp_eq_u32 s27, 0\ns_cselect_b32 s42, {self.opt.get('ashare', 6)}, 9")
            self.gemm_load("L_l1", NS1, CW, ONE, T, issue)
            a(f"""
            s_add_u32 s30, s43, {256 + 32}
            v_mov_b32 v{T+1}, s30
            s_cmp_eq_u32 s{NS}, 9
            s_cbranch_scc1 L_l1end
            s_mov_b32 s45, 0
            s_mov_b32 s{NS}, 9
            s_sub_u32 s30, s{S_CHA}, s{S_CHB}
            s_mul_i32 s30, s30, {32*1152}
            s_sub_u32 s{WB}, s{WB}, s30
            s_add_u32 s43, s43, 36
            """)
            self.lds_spin(T + 1, T, 4, sleep=1)
            a("s_branch L_l1job")
            a.label("L_l1end")
            self.lds_spin(T + 1, T, 4, sleep=1)
        self.b1_run = run; self.b1_issue = issue

    def aux(self):
        a = self.a
        AX, AW, FX, ACC, T = 4, 8, 16, 80, 148
        SS, SLOT, DL, WM, WN = 40, 41, 42, 43, 44
        a.label("L_aux")
        a(f"""
        s_setprio 3
        s_mov_b32 s{S_HALF}, 0
        s_mov_b32 s{S_CH}, s{S_CHA}
        s_mov_b32 s62, 0
        s_mov_b32 s63, -1
        """)
        self.aux_start()
        a(f"s_cmp_eq_u32 s{S_TYPE}, 2\ns_cbranch_scc1 L_aux_sp")
        self.lam_early(f"s{S_CHB}")
        if not self.opt.get("nowarmx"):
            self.srd(12, P_BX, 2048 * 1152)
            a(f"""
            s_and_b32 s30, s{S_XCD}, 3
            s_mul_i32 s30, s30, 589824
            s_lshr_b32 s31, s{S_XCD}, 2
            s_mul_i32 s31, s31, 28
            s_add_u32 s31, s31, s{S_IDX}
            s_lshl_b32 s31, s31, 2
            s_add_u32 s31, s31, s{S_WAVE}
            s_mul_i32 s31, s31, 2688
            s_add_u32 s30, s30, s31
            v_lshlrev_b32 v16, 6, v2
            s_mov_b32 exec_hi, 0x3ff
            buffer_load_dword v154, v16, s[12:15], s30 offen
            s_mov_b32 exec_hi, -1
            """)
        a(f"""
        s_cmp_lt_u32 s{S_LW}, 2
        s_cselect_b32 s12, s{P_BRE}, s{P_BIM}
        s_cselect_b32 s13, s{P_BRE+1}, s{P_BIM+1}
        s_and_b32 s13, s13, 0xffff
        s_mov_b32 s14, {576*1152}
        s_mov_b32 s15, 0x20000
        s_lshl_b32 s30, s{S_IDX}, 1
        s_and_b32 s31, s{S_LW}, 1
        s_add_u32 s30, s30, s31
        s_mul_i32 s30, s30, 5952
        s_lshr_b32 s31, s{S_XCD}, 2
        s_mul_i32 s31, s31, {288*1152}
        s_add_u32 s45, s30, s31
        s_add_u32 s46, s45, 4096
        v_lshlrev_b32 v155, 6, v2
        """)
        if self.opt.get("wbat") == "0": a("buffer_load_dword v154, v155, s[12:15], s45 offen\ns_mov_b32 exec_hi, 0\nbuffer_load_dword v154, v155, s[12:15], s46 offen\ns_mov_b32 exec_hi, -1")
        a(f"s_lshr_b32 s{WM}, s{S_WAVE}, 1\ns_and_b32 s{WN}, s{S_WAVE}, 1\ns_lshl_b32 s30, s{WM}, 13")
        self.swz(AX, T, "s30")
        a(f"""
        v_bfe_u32 v{T+2}, v2, 2, 2
        v_lshl_add_u32 v{T+3}, v{T+1}, 3, v{T+2}
        v_lshlrev_b32 v{T+3}, 8, v{T+3}
        v_bfe_u32 v{T+4}, v2, 4, 1
        v_lshl_add_u32 v{T+3}, v{T+4}, 5, v{T+3}
        v_and_b32 v{T+4}, 3, v2
        v_lshl_add_u32 v{T+3}, v{T+4}, 3, v{T+3}
        v_add_u32 v{T+3}, 16384, v{T+3}
        s_lshl_b32 s30, s{WN}, 1
        v_xor_b32 v{T+4}, s30, v{T+2}
        v_lshl_add_u32 v{AW}, v{T+4}, 6, v{T+3}
        v_xor_b32 v{AW+1}, 64, v{AW}
        """)
        for i in range(64): a(f"v_mov_b32 v{ACC+i}, 0")
        a(f"s_mov_b32 s{SS}, 0\ns_mov_b32 s{SLOT}, 0\ns_barrier")
        self.stampx(16, True); self.stamp(61)
        def nextslot(stride, total):
            a(f"""
            s_add_u32 s30, s{SLOT}, {stride}
            s_cmp_eq_u32 s30, {total}
            s_cselect_b32 s30, 0, s30
            s_sub_u32 s{DL}, s30, s{SLOT}
            s_mov_b32 s{SLOT}, s30
            s_add_u32 s{SS}, s{SS}, 1
            """)
        def reads(s):
            l = [f"ds_read_b128 v[{FX+s*16+mt*4}:{FX+s*16+mt*4+3}], v{AX+s} offset:{mt*4096}" for mt in range(2)]
            for nt in range(2):
                for hf in range(2):
                    r = FX + s * 16 + 8 + nt * 4 + hf * 2
                    l.append(f"ds_read_b64_tr_b16 v[{r}:{r+1}], v{AW+nt} offset:{s*4096 + hf*1024}")
            return l
        for x in reads(0) + reads(1): a(x)
        a(f"s_cmp_eq_u32 s{S_TYPE}, 1\ns_cbranch_scc1 L_a1v")
        def a1loop(vtype, lab):
            a.label(lab)
            for s in range(4):
                a("s_waitcnt lgkmcnt(6)")
                if s == 2:
                    a(f"s_cmp_lt_u32 s{SS}, 9\ns_cbranch_scc1 {lab}b\ns_waitcnt lgkmcnt(0)")
                    a.label(lab + "b")
                    a("s_barrier")
                    self.stampx(16)
                mf = []
                for mt in range(2):
                    for nt in range(2):
                        d = ACC + (mt * 2 + nt) * 16
                        x = f"v[{FX+s*16+mt*4}:{FX+s*16+mt*4+3}]"; w = f"v[{FX+s*16+8+nt*4}:{FX+s*16+8+nt*4+3}]"
                        A, B = (x, w) if vtype else (w, x)
                        mf.append(f"v_mfma_f32_32x32x16_bf16 v[{d}:{d+15}], {A}, {B}, v[{d}:{d+15}]")
                ilv(a, mf, reads((s + 2) % 4))
                if s == 0: nextslot(32768, 163840)
                if s == 3 and not self.opt.get("warmb_old") and self.opt.get("wbat") != "0":
                    a(f"s_cmp_lg_u32 s{SS}, {self.opt.get('wbat', 2)}\ns_cbranch_scc1 {lab}w")
                    a("buffer_load_dword v154, v155, s[12:15], s45 offen\ns_mov_b32 exec_hi, 0\nbuffer_load_dword v154, v155, s[12:15], s46 offen\ns_mov_b32 exec_hi, -1\ns_nop 3")
                    a.label(lab + "w")
                if s == 1:
                    for r in (AX, AX + 1, AX + 2, AX + 3, AW, AW + 1): a(f"v_add_u32 v{r}, s{DL}, v{r}")
            a(f"s_cmp_lt_u32 s{SS}, 9\ns_cbranch_scc1 {lab}")
        a1loop(False, "L_a1qk")
        self.stamp(1); self.stamp(62)
        self.dbg_load()
        a(f"""
        s_lshl_b32 s30, s{S_NB}, 5
        s_lshl_b32 s31, s{WN}, 4
        s_add_u32 s30, s30, s31
        s_mul_i32 s31, s{S_MB}, {QS}
        s_add_u32 s31, s31, s30
        s_lshl_b32 s31, s31, 10
        s_lshl_b32 s32, s{WM}, 9
        s_add_u32 s31, s31, s32
        s_add_u32 s31, s31, {QKP}
        v_lshlrev_b32 v{T+2}, 4, v1
        v_lshl_add_u32 v{T+2}, v{T+1}, 10, v{T+2}
        s_mov_b32 s32, {QSCALE}
        s_cmp_ge_u32 s30, 144
        s_cselect_b32 s32, 1.0, s32
        s_mov_b32 s33, s32
        s_waitcnt lgkmcnt(0)
        """)
        for nt in range(2):
            for g in range(4):
                o = FX + (nt * 4 + g) * 4
                for mt in range(2):
                    d = ACC + (mt * 2 + nt) * 16 + 4 * g
                    a(f"v_pk_mul_f32 v[{d}:{d+1}], v[{d}:{d+1}], s[32:33]\nv_pk_mul_f32 v[{d+2}:{d+3}], v[{d+2}:{d+3}], s[32:33]")
                for mt in range(2):
                    d = ACC + (mt * 2 + nt) * 16 + 4 * g
                    a(f"v_cvt_pk_bf16_f32 v{o+2*mt}, v{d}, v{d+1}\nv_cvt_pk_bf16_f32 v{o+2*mt+1}, v{d+2}, v{d+3}")
                a(f"buffer_store_dwordx4 v[{o}:{o+3}], v{T+2}, s[4:7], s31 offen offset:{(g%2)*2048} {WT}")
                if g % 2 == 1: a("s_add_u32 s31, s31, 4096")
        a("s_branch L_a1done")
        a1loop(True, "L_a1v")
        self.stamp(1); self.stamp(62)
        self.dbg_load()
        a(f"""
        s_sub_u32 s30, s{S_NB}, 9
        s_lshl_b32 s30, s30, 7
        s_lshl_b32 s31, s{WN}, 6
        s_add_u32 s30, s30, s31
        s_lshl_b32 s31, s{S_MB}, 4
        s_lshl_b32 s32, s{WM}, 3
        s_add_u32 s31, s31, s32
        s_mul_i32 s31, s31, {VS}
        s_lshl_b32 s32, s30, 4
        s_add_u32 s31, s31, s32
        s_add_u32 s31, s31, {VT}
        v_mul_u32_u24 v{T+2}, {VS}, v{T+1}
        v_lshl_add_u32 v{T+2}, v1, 4, v{T+2}
        s_waitcnt lgkmcnt(0)
        s_cmp_ge_u32 s30, 576
        s_cbranch_scc1 L_a1done
        """)
        for mt in range(2):
            for m in range(2):
                for nt in range(2):
                    d = ACC + (mt * 2 + nt) * 16 + 8 * m
                    for r in range(4): a(f"v_cvt_pk_bf16_f32 v{d+r}, v{d+2*r}, v{d+2*r+1}")
                    a(f"buffer_store_dwordx4 v[{d}:{d+3}], v{T+2}, s[4:7], s31 offen offset:{nt*512} {WT}")
                a(f"s_add_u32 s31, s31, {2*VS}")
        a.label("L_a1done")
        self.stamp(2)
        if self.opt.get("drain1"): a("s_waitcnt vmcnt(0)"); self.stamp(7)
        a(f"s_mov_b32 s{S_HALF}, 1\ns_mov_b32 s{S_CH}, s{S_CHB}\ns_branch L_b1pre")
        a.label("L_aux_sp")
        a("s_barrier")
        self.zero_flags()
        self.lam_early(f"s{S_CHA}")
        a(f"""
        s_lshl_b32 s30, s{S_CHB}, 6
        v_lshl_add_u32 v23, v1, 1, s30
        global_load_ushort v166, v23, s[{P_LRE}:{P_LRE+1}]
        global_load_ushort v24, v23, s[{P_LIM}:{P_LIM+1}]
        global_load_ushort v154, v23, s[{P_LDT}:{P_LDT+1}]
        s_waitcnt vmcnt(0)
        v_lshl_or_b32 v166, v24, 16, v166
        """)
        AB, BF, WA, ONE, AC1, CW, RAW, AX2, AB2 = 8, 16, self.WA, self.ONE, 112, 155, 164, 144, 148
        T = 158; BC = self.BC
        PA = [164, 165, 12, 13, 14, 15]
        a.label("L_b1pre")
        for i in range(2): a(f"v_mov_b32 v{164+i}, v{10+i}")
        a(f"s_mov_b32 s{BC}, 0\nv_mov_b32 v{WA}, {W_BAR}\nv_mov_b32 v{ONE}, 1\nv_mov_b32 v{CW}, {W_FULL}\ns_lshl_b32 s48, s{S_LW}, 12\ns_lshl_b32 s49, s{S_LW}, 11")
        if self.opt.get("iss"): self.lds_add1(WA, ONE, W_ISS - W_BAR)
        self.swz(AB, T, B1BASE + 16384)
        a(f"s_sub_u32 s30, s48, 16384")
        for s in range(4): a(f"v_add_u32 v{AX+s}, s30, v{AB+s}")
        def publish():
            a(f"""
            s_cmp_eq_u32 s{S_TYPE}, 2
            s_cbranch_scc1 L_pubx
            s_lshl_b32 s30, s{S_NB}, 7
            s_add_u32 s31, s30, 128
            s_cmp_eq_u32 s{S_TYPE}, 1
            s_cselect_b32 s32, 1152, 0
            v_mul_u32_u24 v{T+2}, 18, v2
            v_add_u32 v{T+2}, s32, v{T+2}
            v_add_u32 v{T+3}, 18, v{T+2}
            v_max_u32 v{T+2}, s30, v{T+2}
            v_min_u32 v{T+3}, s31, v{T+3}
            v_min_u32 v{T+3}, 0x6c0, v{T+3}
            v_cmp_lt_u32 vcc, v{T+2}, v{T+3}
            v_sub_u32 v{T+2}, v{T+3}, v{T+2}
            v_mul_u32_u24 v{T+3}, {F1STRIDE}, v1
            s_and_b32 s31, s{S_MB}, {NSUB-1}
            s_lshl_b32 s31, s31, 7
            s_add_u32 s31, s31, {F1}
            """)
            a(f"s_waitcnt vmcnt(0)")
            self.dbg_verify()
            self.stamp(9)
            a(f"""
            s_mov_b64 exec, 1
            ds_add_rtn_u32 v{T+1}, v{WA}, v{ONE} offset:4
            s_mov_b64 exec, -1
            s_waitcnt lgkmcnt(0)
            v_readfirstlane_b32 s35, v{T+1}
            s_cmp_lg_u32 s35, 3
            s_cbranch_scc1 L_pubx
            s_mov_b64 exec, vcc
            buffer_atomic_add v{T+2}, v{T+3}, s[4:7], s31 offen sc1
            s_mov_b64 exec, -1
            """)
            if self.opt.get("rt"): self.stamp(53, True); a("s_waitcnt vmcnt(0)"); self.stamp(54, True)
            a.label("L_pubx")
        a.label("L_b1")
        for s in range(4): a(f"v_add_u32 v{AB2+s}, {2*BSLOT}, v{AB+s}\nv_add_u32 v{AX2+s}, {2*BSLOT}, v{AX+s}")
        PUB = int(self.opt.get("pubat", -1))
        if PUB < 0: publish()
        def rl(st):
            l = []; ax, ab = (AX, AB) if st % NS1 < 2 else (AX2, AB2); off = ((st % NS1) % 2) * BSLOT
            for s in range(4):
                b = BF + (st % 2) * 48 + s * 12
                l.append(f"ds_read_b128 v[{b}:{b+3}], v{ax+s} offset:{off}")
                for nt in range(2): l.append(f"ds_read_b128 v[{b+4+nt*4}:{b+7+nt*4}], v{ab+s} offset:{off + nt*4096}")
            return l
        def mfl(st):
            l = []
            for s in range(4):
                b = BF + (st % 2) * 48 + s * 12
                for nt in range(2):
                    d = AC1 + nt * 16; c = "0" if st == 0 and s == 0 else f"v[{d}:{d+15}]"
                    l.append(f"v_mfma_f32_32x32x16_bf16 v[{d}:{d+15}], v[{b}:{b+3}], v[{b+4+nt*4}:{b+7+nt*4}], {c}")
            return l
        def sp_hook():
            a(f"s_add_u32 s30, s{S_TYPE}, s{S_HALF}\ns_cmp_lg_u32 s30, 3\ns_cbranch_scc1 L_sph")
            a(f"s_cmp_lg_u32 s{S_WAVE}, 3\ns_cbranch_scc1 L_sph")
            self.f2flag(S_CHA, T + 2)
            a.label("L_sph")
        def h5():
            a(f"s_cmp_lg_u32 s{S_HALF}, 0\ns_cbranch_scc1 L_h5")
            self.dbg_load()
            a.label("L_h5")
        def h7():
            a(f"s_cmp_lg_u32 s{S_HALF}, 0\ns_cbranch_scc1 L_h7\ns_waitcnt vmcnt(0)")
            self.dbg_verify()
            self.stamp(1)
            a.label("L_h7")
        self.gemm_cons("L_g1", 9, T, CW, rl, mfl, 9, {3: sp_hook, 5: h5, 7: h7, PUB: publish})
        a(f"v_add_u32 v{CW}, 36, v{CW}\ns_nop 4")
        pass
        self.stamp(3)
        for i, r in enumerate((LR, LI, CR, CI, MUR, MUI)): a(f"v_mov_b32 v{r}, v{PA[i]}")
        for t in range(16):
            u, w, d = AC1 + t, AC1 + 16 + t, BS + 2 * t
            a(f"""
            v_mul_f32 v{d}, v{CR}, v{u}
            v_mul_f32 v{d+1}, v{CR}, v{w}
            v_fma_f32 v{d}, -v{CI}, v{w}, v{d}
            v_fma_f32 v{d+1}, v{CI}, v{u}, v{d+1}
            """)
            if t >= 1:
                g0 = BS if t == 1 else T + 2 + 2 * (t % 2); g1 = T + 2 + 2 * ((t + 1) % 2)
                self.cmac(g1, LR, g0, d)
        GR = T + 2; TT = T + 4
        a(f"""
        s_lshl_b32 s31, s{S_WAVE}, 9
        s_add_u32 s30, s31, {LDS_SCR}
        v_lshl_add_u32 v{TT}, v2, 3, s30
        ds_write_b64 v{TT}, v[{GR}:{GR+1}]
        v_lshlrev_b32 v{TT+1}, 3, v2
        v_add_u32 v{TT+1}, {LDS_SCR - 256}, v{TT+1}
        """)
        self.bar(T)
        EV = BF
        for j in range(8): a(f"ds_read_b64 v[{EV+2*j}:{EV+2*j+1}], v{TT+1} offset:{j*256}")
        a("s_waitcnt lgkmcnt(0)")
        self.partb(EV, T)
        def spill(op, base):
            a(f"s_lshl_b32 s30, s2, 2\ns_add_u32 s30, s30, s{S_WAVE}\ns_mul_i32 s30, s30, {12*1024}\ns_add_u32 s30, s30, {SPILL}")
            for i in range(10):
                a(f"buffer_{op}_dwordx4 v[{base+4*i}:{base+4*i+3}], v3, s[4:7], s30 offen offset:{(i%4)*1024}")
                if i % 4 == 3: a("s_add_u32 s30, s30, 4096")
            a(f"buffer_{op}_dwordx2 v[{base+40}:{base+41}], v3, s[4:7], s30 offen offset:2048")
        a(f"s_cmp_lg_u32 s{S_HALF}, 0\ns_cbranch_scc1 L_b1done")
        spill("store", BS)
        a("v_and_b32 v16, 0xffff, v166\nv_lshrrev_b32 v17, 16, v166\nv_mov_b32 v18, v154")
        self.lam_calc(16, 10)
        for i in range(2): a(f"v_mov_b32 v{164+i}, v{10+i}")
        self.swz(AB, T, B1BASE + 16384)
        a(f"s_mov_b32 s{S_HALF}, 1\ns_mov_b32 s{S_CH}, s{S_CHB}\ns_branch L_b1")
        a.label("L_b1done")
        self.stamp(4)
        a(f"s_add_u32 s46, s48, {TSCR}\ns_cmp_lg_u32 s{S_TYPE}, 2\ns_cbranch_scc1 L_nsp")
        spill("load", 108)
        a.label("L_nsp")
        self.wait_prog(W_LAND + 4, T, 4)
        if self.opt.get("nop2"): a("s_setprio 0")
        a.label("L_p2")
        self.pass2(BF, T)
        a(f"s_cmp_lg_u32 s{S_TYPE}, 2\ns_cbranch_scc1 L_p2end\ns_cmp_eq_u32 s{S_CH}, s{S_CHA}\ns_cbranch_scc1 L_p2end")
        for i in range(21): a(f"v_pk_mov_b32 v[{BS+2*i}:{BS+2*i+1}], v[{108+2*i}:{109+2*i}], v[{108+2*i}:{109+2*i}] op_sel:[0,1]")
        a(f"s_mov_b32 s{S_CH}, s{S_CHA}\ns_branch L_p2")
        a.label("L_p2end")
        self.stamp(6)
        self.lds_add1(WA, ONE, W_P2 - W_BAR)
        self.p3_ids()
        self.p3(T)

    def lam_early(self, ch):
        a = self.a
        a(f"""
        s_lshl_b32 s30, {ch}, 6
        v_lshl_add_u32 v23, v1, 1, s30
        global_load_ushort v16, v23, s[{P_LRE}:{P_LRE+1}]
        global_load_ushort v17, v23, s[{P_LIM}:{P_LIM+1}]
        global_load_ushort v18, v23, s[{P_LDT}:{P_LDT+1}]
        s_waitcnt vmcnt(0)
        """)
        self.lam_calc(16, 10)
    def cmac(self, d, m, g, c):
        self.a(f"v_pk_fma_f32 v[{d}:{d+1}], v[{m}:{m+1}], v[{g}:{g+1}], v[{c}:{c+1}] op_sel_hi:[0,1,1]")
        self.a(f"v_pk_fma_f32 v[{d}:{d+1}], v[{m}:{m+1}], v[{g}:{g+1}], v[{d}:{d+1}] op_sel:[1,1,0] op_sel_hi:[1,0,1] neg_lo:[1,0,0]")
    def lam_calc(self, T, P):
        a = self.a; L2E = f32(math.log2(math.e))
        LR, LI, CR, CI, MUR, MUI = range(P, P + 6)
        a(f"""
        v_lshlrev_b32 v{T}, 16, v{T}
        v_lshlrev_b32 v{T+1}, 16, v{T+1}
        v_lshlrev_b32 v{T+2}, 16, v{T+2}
        v_mul_f32 v{T+2}, {L2E}, v{T+2}
        v_exp_f32 v{T+2}, v{T+2}
        s_nop 0
        v_cvt_pk_bf16_f32 v{T+2}, v{T+2}, v{T+2}
        v_lshlrev_b32 v{T+2}, 16, v{T+2}
        v_mul_f32 v{T+3}, v{T+2}, v{T}
        v_mul_f32 v{T+4}, v{T+2}, v{T+1}
        v_mul_f32 v{T+3}, {L2E}, v{T+3}
        v_mul_f32 v{T+4}, {f32(1/(2*math.pi))}, v{T+4}
        v_exp_f32 v{T+3}, v{T+3}
        v_fract_f32 v{T+4}, v{T+4}
        v_cos_f32 v{T+5}, v{T+4}
        v_sin_f32 v{T+6}, v{T+4}
        s_nop 0
        v_mul_f32 v{LR}, v{T+3}, v{T+5}
        v_mul_f32 v{LI}, v{T+3}, v{T+6}
        v_mul_f32 v{T+3}, v{T}, v{T}
        v_fmac_f32 v{T+3}, v{T+1}, v{T+1}
        v_rcp_f32 v{T+3}, v{T+3}
        v_add_f32 v{T+4}, -1.0, v{LR}
        v_mul_f32 v{T+5}, v{T+4}, v{T}
        v_fmac_f32 v{T+5}, v{LI}, v{T+1}
        v_mul_f32 v{T+6}, v{LI}, v{T}
        v_fma_f32 v{T+6}, -v{T+4}, v{T+1}, v{T+6}
        v_add_f32 v{T+3}, v{T+3}, v{T+3}
        v_mul_f32 v{CR}, v{T+5}, v{T+3}
        v_mul_f32 v{CI}, v{T+6}, v{T+3}
        v_mov_b32 v{MUR}, v{LR}
        v_mov_b32 v{MUI}, v{LI}
        """)
        for i in range(4):
            a(f"""
            v_mul_f32 v{T+3}, v{MUI}, v{MUI}
            v_mul_f32 v{T+4}, v{MUR}, v{MUI}
            v_fma_f32 v{MUR}, v{MUR}, v{MUR}, -v{T+3}
            v_add_f32 v{MUI}, v{T+4}, v{T+4}
            """)

    def f2flag(self, ch, TT):
        self.a(f"""
        s_lshl_b32 s30, s{ch}, 5
        s_add_u32 s30, s30, s{S_MB}
        s_lshl_b32 s30, s30, 2
        s_add_u32 s30, s30, {F2}
        s_waitcnt vmcnt(0)
        """)
        self.flag_store([30], TT)
    def partb(self, EV, TT):
        a = self.a
        a(f"""
        v_cndmask_b32 v{LCR}, 0, v{EV}, s[62:63]
        v_cndmask_b32 v{LCI}, 0, v{EV+1}, s[62:63]
        v_cndmask_b32 v{PWR}, 1.0, v{MUR}, s[62:63]
        v_cndmask_b32 v{PWI}, 0, v{MUI}, s[62:63]
        """)
        for j in range(1, 7):
            if j % 2 == 1: a(f"s_cmp_lt_u32 s{S_WAVE}, {(j+1)//2}\ns_cbranch_scc1 L_pbne")
            a(f"""
            v_mul_f32 v{TT}, v{MUR}, v{PWR}
            v_mul_f32 v{TT+1}, v{MUR}, v{PWI}
            v_fma_f32 v{TT+2}, v{MUR}, v{LCR}, v{EV+2*j}
            v_fma_f32 v{TT+3}, v{MUR}, v{LCI}, v{EV+2*j+1}
            v_fma_f32 v{TT}, -v{MUI}, v{PWI}, v{TT}
            v_fma_f32 v{PWI}, v{MUI}, v{PWR}, v{TT+1}
            v_fma_f32 v{TT+2}, -v{MUI}, v{LCI}, v{TT+2}
            v_fma_f32 v{LCI}, v{MUI}, v{LCR}, v{TT+3}
            v_mov_b32 v{PWR}, v{TT}
            v_mov_b32 v{LCR}, v{TT+2}
            """)
        EB = EV + 14
        a(f"""
        s_mul_i32 s30, s{S_MB}, {576*8}
        s_lshl_b32 s31, s{S_CH}, 8
        s_add_u32 s30, s30, s31
        s_add_u32 s30, s30, {EE - 256}
        v_lshlrev_b32 v{TT+2}, 3, v2
        v_fma_f32 v{TT}, v{MUR}, v{LCR}, v{EB}
        v_fma_f32 v{TT+1}, v{MUR}, v{LCI}, v{EB+1}
        v_fma_f32 v{TT}, -v{MUI}, v{LCI}, v{TT}
        v_fma_f32 v{TT+1}, v{MUI}, v{LCR}, v{TT+1}
        s_mov_b32 exec_lo, 0
        buffer_store_dwordx2 v[{TT}:{TT+1}], v{TT+2}, s[4:7], s30 offen {WT}
        s_mov_b32 exec_lo, -1
        s_cmp_eq_u32 s{S_HALF}, 0
        s_cbranch_scc1 L_pbne
        """)
        self.f2flag(S_CH, TT)
        a.label("L_pbne")
        for i in range(3):
            a(f"""
            v_mul_f32 v{TT+4}, v{MUI}, v{MUI}
            v_mul_f32 v{TT+5}, v{MUR}, v{MUI}
            v_fma_f32 v{MUR}, v{MUR}, v{MUR}, -v{TT+4}
            v_add_f32 v{MUI}, v{TT+5}, v{TT+5}
            """)

    def pass2(self, EV, T):
        a = self.a
        GR, GI, TT, AD, M2R, M2I = T, T + 1, T + 2, T + 4, T + 6, T + 7
        a(f"""
        s_cmp_eq_u32 s{S_MB}, 0
        s_cbranch_scc1 L_pollF2_x
        s_sub_u32 s35, s{S_MB}, 1
        v_min_u32 v{AD}, s35, v2
        v_lshlrev_b32 v{AD}, 2, v{AD}
        s_lshl_b32 s34, s{S_CH}, 7
        s_add_u32 s34, s34, {F2}
        """)
        self.poll("L_pollF2", TT, AD, "s34", sleep=4)
        a(f"""
        s_add_u32 s8, s{P_WS}, {EE}
        s_addc_u32 s9, s{P_WS+1}, 0
        s_and_b32 s9, s9, 0xffff
        s_mov_b32 s10, {16*576*8}
        s_mov_b32 s11, 0x20000
        v_lshrrev_b32 v{TT}, 5, v2
        v_mul_u32_u24 v{TT}, {576*8}, v{TT}
        v_lshlrev_b32 v{AD}, 3, v1
        v_sub_u32 v{AD}, v{AD}, v{TT}
        s_sub_u32 s34, s{S_MB}, 1
        s_mul_i32 s34, s34, {576*8}
        v_add_u32 v{AD}, s34, v{AD}
        s_lshl_b32 s34, s{S_CH}, 8
        """)
        for i in range(8):
            a(f"buffer_load_dwordx2 v[{EV+2*i}:{EV+2*i+1}], v{AD}, s[8:11], s34 offen sc0 sc1")
            if i < 7: a(f"v_subrev_u32 v{AD}, {2*576*8}, v{AD}")
        a(f"""
        v_mul_f32 v{TT}, v{MUI}, v{MUI}
        v_mul_f32 v{TT+1}, v{MUR}, v{MUI}
        v_fma_f32 v{M2R}, v{MUR}, v{MUR}, -v{TT}
        v_add_f32 v{M2I}, v{TT+1}, v{TT+1}
        s_waitcnt vmcnt(0)
        """)
        for i in range(6, -1, -1): self.cmac(EV + 2 * i, M2R, EV + 2 * i + 2, EV + 2 * i)
        a(f"""
        v_mov_b32 v{AD}, v{EV}
        v_mov_b32 v{AD+1}, v{EV+1}
        s_nop 1
        v_permlane32_swap_b32 v{EV}, v{AD}
        v_permlane32_swap_b32 v{EV+1}, v{AD+1}
        s_nop 1
        """)
        self.cmac(EV, MUR, AD, EV)
        self.cmac(GR, PWR, EV, LCR)
        for t in range(16): self.cmac(BS + 2 * t, LR, GR if t == 0 else BS + 2 * t - 2, BS + 2 * t)
        a(f"""
        s_lshl_b32 s34, s{S_MB}, 2
        s_add_u32 s34, s34, s{S_WAVE}
        s_mul_i32 s34, s34, {HS}
        s_add_u32 s34, s34, s{S_CH}
        s_lshl_b32 s34, s34, 11
        s_add_u32 s34, s34, {HH}
        s_add_u32 s35, s34, {18*2048}
        v_lshrrev_b32 v{TT}, 5, v2
        v_lshlrev_b32 v{AD}, 4, v1
        v_mul_u32_u24 v{TT}, {1024+128}, v{TT}
        v_xor_b32 v{AD}, v{AD}, v{TT}
        v_xor_b32 v{AD+1}, {512+64}, v{AD}
        """)
        a(f"s_mov_b32 s30, s46\nv_add_u32 v{AD}, s30, v{AD}\nv_add_u32 v{AD+1}, s30, v{AD+1}")
        for c in range(2):
            for jj in range(2):
                d = EV + 16 + 8 * c + 4 * jj; n = "-" if c else ""
                for r in range(4): a(f"v_cvt_pk_bf16_f32 v{d+r}, {n}v{BS+16*jj+4*r+c}, {n}v{BS+16*jj+4*r+2+c}")
                a(f"ds_write_b128 v{AD+jj}, v[{d}:{d+3}] offset:{c*2048}")
        m = EV
        a(f"""
        v_lshrrev_b32 v{m}, 5, v2
        v_bfe_u32 v{m+1}, v2, 2, 2
        v_lshl_add_u32 v{m+1}, v{m}, 3, v{m+1}
        v_bfe_u32 v{m+2}, v2, 4, 1
        v_bfe_u32 v{m+3}, v2, 1, 1
        v_lshl_add_u32 v{m+2}, v{m+2}, 1, v{m+3}
        v_lshlrev_b32 v{m+3}, 2, v{m+2}
        v_xor_b32 v{m+1}, v{m+1}, v{m+3}
        v_and_b32 v{m+3}, 1, v2
        v_lshlrev_b32 v{m+3}, 3, v{m+3}
        v_lshl_add_u32 v{m+3}, v{m+2}, 9, v{m+3}
        v_add_u32 v{m+3}, s30, v{m+3}
        v_lshl_add_u32 v{m}, v{m+1}, 4, v{m+3}
        v_xor_b32 v{m+1}, 64, v{m}
        """)
        for c in range(2):
            for j in range(2):
                d = EV + 32 + 8 * c + 4 * j
                for hf in range(2): a(f"ds_read_b64_tr_b16 v[{d+2*hf}:{d+2*hf+1}], v{m+hf} offset:{c*2048 + j*256}")
        a("s_waitcnt lgkmcnt(0)")
        for c in range(2):
            for j in range(2):
                d = EV + 32 + 8 * c + 4 * j
                a(f"buffer_store_dwordx4 v[{d}:{d+3}], v3, s[4:7], s{34+c} offen offset:{j*1024} {WT}")
        a(f"""
        s_mul_i32 s30, s{S_MB}, 24
        s_add_u32 s31, s30, s{S_CH}
        s_lshl_b32 s31, s31, 2
        s_add_u32 s31, s31, s{S_WAVE}
        s_lshl_b32 s31, s31, 2
        s_add_u32 s31, s31, {F3}
        s_waitcnt vmcnt(0)
        """)
        self.flag_store([31], TT)

    def a3_setup(self, PB, T):
        a = self.a
        a(f"""
        v_lshrrev_b32 v{T}, 2, v2
        v_and_b32 v{T+1}, 3, v2
        v_and_b32 v{T+2}, 3, v{T}
        v_bfe_u32 v{T+3}, v{T}, 2, 1
        v_lshl_add_u32 v{T+2}, v{T+3}, 3, v{T+2}
        v_lshrrev_b32 v{T+3}, 3, v{T}
        v_lshl_add_u32 v{T+2}, v{T+3}, 2, v{T+2}
        v_mul_u32_u24 v{T+2}, 1152, v{T+2}
        v_lshl_add_u32 v{PB}, v{T+1}, 4, v{T+2}
        v_lshrrev_b32 v{T+2}, 1, v{T}
        v_mul_u32_u24 v{T+2}, 18, v{T+2}
        v_and_b32 v{T+3}, 1, v{T}
        v_add3_u32 v{T+2}, v{T+2}, v{T+3}, 16
        v_mul_u32_u24 v{T+2}, 1152, v{T+2}
        v_lshl_add_u32 v{PB+1}, v{T+1}, 4, v{T+2}
        s_sub_u32 s30, s{S_P3NB}, 9
        s_mul_i32 s{S_CB}, s30, 192
        s_mov_b32 s{S_ST3}, s{S_LW}
        """)
        self.srd(12, P_WO, 576 * 1152)
    def a3_issue(self, PB, cnt):
        a = self.a; lab = a.newlabel("L_a3i")
        a("s_mov_b32 s35, 0")
        a.label(lab)
        a(f"""
        s_mul_i32 s30, s{S_ST3}, 3072
        s_add_u32 s31, s30, {WO2}
        s_sub_u32 s30, s30, {18*3072}
        s_add_u32 s32, s{S_ST3}, 18
        s_sub_u32 s34, s{S_ST3}, 18
        s_cmp_lt_u32 s{S_ST3}, 18
        s_cselect_b32 s30, s31, s30
        s_cselect_b32 s32, s32, s34
        s_mul_i32 s31, s32, {18*1152}
        v_mov_b32 v{PB+2}, v{PB}
        s_cmp_lt_u32 s32, 32
        s_cbranch_scc1 {lab}m
        s_sub_u32 s32, s32, 32
        s_mul_i32 s31, s32, {8*18*1152}
        v_mov_b32 v{PB+2}, v{PB+1}
        """)
        a.label(lab + "m")
        a(f"s_add_u32 s31, s31, s{S_CB}")
        for nt in range(3):
            a(f"s_add_u32 m0, s30, {nt*1024}\ns_add_u32 s32, s31, {nt*64}\nbuffer_load_dwordx4 v{PB+2}, s[12:15], s32 offen lds")
        a(f"s_add_u32 s{S_ST3}, s{S_ST3}, 4\ns_add_u32 s35, s35, 1\ns_cmp_lt_u32 s35, {cnt}\ns_cbranch_scc1 {lab}")
    def xd(self, T, XD, ACC):
        a = self.a
        a(f"""
        v_lshrrev_b32 v{T+1}, 5, v2
        v_mul_u32_u24 v{T}, 1152, v1
        v_lshl_add_u32 v{T}, v{T+1}, 3, v{T}
        s_mul_i32 s30, s{S_P3T}, {32*1152}
        s_lshl_b32 s31, s{S_P3NB}, 7
        s_add_u32 s30, s30, s31
        v_add_u32 v{T}, s30, v{T}
        v_lshl_add_u32 v{T+1}, v{T+1}, 3, s31
        """)
        for e in range(8):
            a(f"global_load_dwordx2 v[{XD+2*e}:{XD+2*e+1}], v{T}, s[{P_BX}:{P_BX+1}] offset:{e*16}")
            a(f"global_load_dwordx2 v[{XD+16+2*e}:{XD+16+2*e+1}], v{T+1}, s[{P_DSK}:{P_DSK+1}] offset:{e*16}")
    def xd_math(self, T, XD, ACC):
        a = self.a
        for e in range(8):
            d = ACC + 4 * e
            for q in range(2):
                x = XD + 2 * e + q; k = XD + 16 + 2 * e + q
                a(f"""
                v_lshlrev_b32 v{T+2}, 16, v{x}
                v_lshlrev_b32 v{T+3}, 16, v{k}
                v_and_b32 v{x}, 0xffff0000, v{x}
                v_and_b32 v{k}, 0xffff0000, v{k}
                v_fmac_f32 v{d+2*q}, v{T+2}, v{T+3}
                v_fmac_f32 v{d+2*q+1}, v{x}, v{k}
                """)

    def iwarm(self, name):
        if self.opt.get("noiw"): return
        a = self.a
        a(f"s_mov_b64 exec, 0\ns_branch {name}_0")
        a.label(name + "_ret")
        a("s_mov_b64 exec, -1")
    def aux_final(self, T):
        a = self.a; lab = a.newlabel("L_af")
        a("s_mov_b32 s34, 4")
        self.wait_prog(W_LAND + 28, T, sleep=32)
        self.wait_prog(FIN_OK, T, sleep=3)
        a(f"v_cmp_eq_u32 vcc, s30, v{T+1}\ns_cbranch_vccz {lab}\ns_barrier\ns_barrier\ns_barrier\ns_mov_b32 s34, 8")
        a.label(lab)
        a("s_setprio 3")

    B3R = dict(EA=155, FC=16, FH=48, ACC=120, D=18)
    def hload(self, k):
        FH, D = self.B3R["FH"], self.B3R["D"]
        r = FH + 4 * (k % D)
        l = [f"buffer_load_dwordx4 v[{r}:{r+3}], v3, s[4:7], s50 offen offset:{(k%4)*1024}"]
        if k % 4 == 3: l.append("s_add_u32 s50, s50, 4096")
        return l
    def b3_pre(self, T, half):
        a = self.a; ACC, D = self.B3R["ACC"], self.B3R["D"]
        self.srd(16, P_OUT, OUT_BYTES)
        self.swz(4, T, [TSCR, 0][half])
        for i in range(4): a(f"v_add_u32 v{8+i}, {([57344, 73728][half] - [TSCR, 0][half]) & 0xffffffff}, v{4+i}")
        a(f"""
        s_mov_b32 s49, {half}
        s_mul_i32 s34, s{S_P3MB}, 384
        s_lshl_b32 s30, s{S_LW}, 2
        s_add_u32 s34, s34, s30
        s_add_u32 s34, s34, {F3}
        v_min_u32 v{T}, 17, v2
        v_lshlrev_b32 v{T}, 4, v{T}
        """)
        self.poll(f"L_pollF3{half}", T + 1, T, "s34", sleep=16)
        self.stamp(7)
        a(f"s_mul_i32 s50, s{S_P3T}, {HS*2048}\ns_add_u32 s50, s50, {HH + half*36*1024}")
        a(f"s_lshl_b32 s31, s{S_P3NB}, 11\ns_add_u32 s30, s50, s31\ns_add_u32 s30, s30, {18*1024}")
        for n in range(2): a(f"buffer_load_dwordx4 v[{ACC}:{ACC+3}], v3, s[4:7], s30 offen offset:{n*1024}")
        for k in range(D):
            for x in self.hload(k): a(x)
    def b3_main(self, T):
        a = self.a; EA, FC, FH, ACC, D = (self.B3R[k] for k in ("EA", "FC", "FH", "ACC", "D"))
        self.lds_spin(self.WA, T, "s34", W_G2 - W_BAR)
        self.stamp(8); self.stamp(59)
        if not self.opt.get("noiw"): a.pad_begin("PB3", int(self.opt.get("padn", 7)))
        def crd(k):
            st, s = k // 4, k % 4
            A, off = (4, st * 8192) if st < 7 else (8, (st - 7) * 8192)
            return [f"ds_read_b128 v[{FC+8*s+4*nt}:{FC+8*s+4*nt+3}], v{A+s} offset:{off + nt*4096}" for nt in range(2)]
        for k in range(3):
            for x in crd(k): a(x)
        NK = 36
        for k in range(NK):
            if k in (9, 18, 27): a(f"s_setprio {3 - k//9}")
            if self.opt.get("stb") and k % 3 == 0: self.stamp(30 + k // 3)
            if k == 12:
                a(f"s_cmp_eq_u32 s49, 0\ns_cbranch_scc1 L_b3g\ns_waitcnt vmcnt(12)")
                self.lds_add1(self.WA, self.ONE, W_G3 - W_BAR)
                a("s_waitcnt lgkmcnt(0)")
                a.label("L_b3g")
            if k == 24: self.lds_add1(self.WA, self.ONE, W_B8 - W_BAR); a("s_waitcnt lgkmcnt(0)")
            if k + 3 == 28:
                a("s_lshl_b32 s31, s49, 2")
                self.lds_spin(self.WA, T, "s31", W_G3 - W_BAR)
            if k == 22:
                a(f"""
                v_lshrrev_b32 v{T+2}, 4, v2
                v_and_b32 v{T+3}, 15, v2
                v_mul_u32_u24 v{T+4}, 1152, v{T+2}
                v_lshl_add_u32 v{T+4}, v{T+3}, 3, v{T+4}
                s_lshl_b32 s31, s{S_P3NB}, 7
                v_lshl_add_u32 v{T+5}, v{T+3}, 3, s31
                global_load_dwordx2 v[{FH+8}:{FH+9}], v{T+5}, s[{P_DSK}:{P_DSK+1}]
                s_lshl_b32 s30, s{S_P3T}, 1
                s_add_u32 s30, s30, s49
                s_mul_i32 s30, s30, {16*1152}
                s_add_u32 s30, s30, s31
                """)
                self.srd(8, P_BX, 2048 * 1152)
                for n in range(4): a(f"buffer_load_dwordx2 v[{FH+2*n}:{FH+2*n+1}], v{T+4}, s[8:11], s30 offen\ns_add_u32 s30, s30, {4*1152}")
            a(f"s_waitcnt vmcnt({min(D-1, NK-1-k) + (5 if k >= 22 else 0)}) lgkmcnt({min(4, 2*(NK-1-k))})")
            h = FH + 4 * (k % D); r = crd(k + 3) if k + 3 < NK else []
            for nt in range(2):
                c = FC + 8 * (k % 4) + 4 * nt; d = ACC + 16 * nt
                a(f"v_mfma_f32_32x32x16_bf16 v[{d}:{d+15}], v[{c}:{c+3}], v[{h}:{h+3}], " + ("0" if k == 0 else f"v[{d}:{d+15}]"))
                if nt == 0:
                    for x in r: a(x)
            if k + D < NK:
                for x in self.hload(k + D): a(x)
        self.stamp(10)
        OF = self.opt.get('outf', 'sc0_sc1').replace('_', ' ')
        a(f"""
        s_mul_i32 s31, s{S_LW}, {32*272}
        s_cmp_eq_u32 s49, 0
        s_cselect_b32 s30, {TSCR}, 0
        s_add_u32 s30, s30, s31
        v_lshrrev_b32 v{T+1}, 5, v2
        v_mul_u32_u24 v{T+6}, 272, v1
        v_lshl_add_u32 v{T+6}, v{T+1}, 4, v{T+6}
        v_add_u32 v{T+6}, s30, v{T+6}
        s_mul_i32 s30, s49, {16*272}
        s_add_u32 s31, s31, s30
        v_mul_u32_u24 v{T+1}, 272, v{T+2}
        v_lshl_add_u32 v{T+1}, v{T+3}, 4, v{T+1}
        v_add_u32 v{T+1}, s31, v{T+1}
        v_add_u32 v{T+4}, {TSCR}, v{T+1}
        v_mul_u32_u24 v{EA}, 4608, v{T+2}
        v_lshl_add_u32 v{EA}, v{T+3}, 4, v{EA}
        """)
        self.lds_spin(self.WA, T, 8, W_B8 - W_BAR)
        for e in range(8): a(f"ds_write_b128 v{T+6}, v[{ACC+4*e}:{ACC+4*e+3}] offset:{e*32}")
        self.lds_add1(self.WA, self.ONE, W_B8 - W_BAR)
        DD = FH + 12
        a(f"""
        s_lshl_b32 s30, s{S_P3T}, 1
        s_add_u32 s30, s30, s49
        s_mul_i32 s30, s30, {16*4608}
        s_lshl_b32 s31, s{S_P3NB}, 8
        s_add_u32 s30, s30, s31
        s_add_u32 s30, s30, {576*4}
        s_waitcnt vmcnt(0)
        v_lshlrev_b32 v{DD}, 16, v{FH+8}
        v_and_b32 v{DD+1}, 0xffff0000, v{FH+8}
        v_lshlrev_b32 v{DD+2}, 16, v{FH+9}
        v_and_b32 v{DD+3}, 0xffff0000, v{FH+9}
        """)
        for n in range(4):
            x = FH + 2 * n; t = DD + 4 + 4 * n
            a(f"v_lshlrev_b32 v{t}, 16, v{x}\nv_and_b32 v{t+1}, 0xffff0000, v{x}\nv_lshlrev_b32 v{t+2}, 16, v{x+1}\nv_and_b32 v{t+3}, 0xffff0000, v{x+1}")
        self.lds_spin(self.WA, T, 16, W_B8 - W_BAR)
        self.stamp(11); self.stamp(60)
        for n in range(4):
            a(f"ds_read_b128 v[{FC+8*n}:{FC+8*n+3}], v{T+1} offset:{n*4*272}\nds_read_b128 v[{FC+8*n+4}:{FC+8*n+7}], v{T+4} offset:{n*4*272}")
        for n in range(4):
            d = FC + 8 * n; t = DD + 4 + 4 * n
            a(f"""
            s_waitcnt lgkmcnt({6-2*n})
            v_pk_fma_f32 v[{d}:{d+1}], v[{t}:{t+1}], v[{DD}:{DD+1}], v[{d}:{d+1}]
            v_pk_fma_f32 v[{d+2}:{d+3}], v[{t+2}:{t+3}], v[{DD+2}:{DD+3}], v[{d+2}:{d+3}]
            v_pk_add_f32 v[{d}:{d+1}], v[{d}:{d+1}], v[{d+4}:{d+5}]
            v_pk_add_f32 v[{d+2}:{d+3}], v[{d+2}:{d+3}], v[{d+6}:{d+7}]
            buffer_store_dwordx4 v[{d}:{d+3}], v{EA}, s[16:19], s30 offen {OF}
            s_add_u32 s30, s30, {4*4608}
            """)
        a("s_branch L_exit")
        if a.pad: a.pad_end("PB3_ret")

    def p3(self, T):
        a = self.a
        self.srd(16, P_OUT, OUT_BYTES)
        a(f"s_cmp_ge_u32 s{S_IDX}, 18\ns_cbranch_scc1 L_a3")
        self.iwarm("PB3")
        self.b3_pre(T, 0)
        self.aux_final(T)
        a.label("L_b3main")
        self.b3_main(T)
        a.label("L_a3")
        OF = self.opt.get('outf', 'sc0_sc1').replace('_', ' ')
        self.iwarm("PA3")
        self.aux_final(T)
        a(f"s_cmp_ge_u32 s{S_IDX}, 30\ns_cbranch_scc1 L_exit")
        self.lds_spin(self.WA, T, "s34", W_G2 - W_BAR)
        self.stamp(8)
        AW, EA, T, FW, ACC, FO = 4, 6, 8, 16, 52, 100
        D = 16
        a(f"""
        s_lshl_b32 s34, s{S_P3T}, 7
        s_add_u32 s34, s34, {F4}
        v_lshlrev_b32 v{T+4}, 2, v1
        v_lshrrev_b32 v{T+1}, 5, v2
        v_bfe_u32 v{T+2}, v2, 2, 2
        v_lshl_add_u32 v{T+3}, v{T+1}, 3, v{T+2}
        v_lshlrev_b32 v{T+3}, 6, v{T+3}
        v_bfe_u32 v{T+2}, v2, 4, 1
        v_lshl_add_u32 v{T+3}, v{T+2}, 5, v{T+3}
        v_and_b32 v{T+2}, 3, v2
        v_lshl_add_u32 v{AW}, v{T+2}, 3, v{T+3}
        v_add_u32 v{AW+1}, {WO2}, v{AW}
        v_mul_u32_u24 v{EA}, 4608, v1
        v_lshl_add_u32 v{EA}, v{T+1}, 4, v{EA}
        v_lshl_add_u32 v{EA+1}, v{T+1}, 9, v{T+4}
        """)
        def rl3(s):
            st, off = (0, s * 3072) if s < 18 else (1, (s - 18) * 3072)
            l = []
            for nt in range(3):
                for hf in range(2):
                    r = FW + (s % 3) * 12 + nt * 4 + hf * 2
                    l.append(f"ds_read_b64_tr_b16 v[{r}:{r+1}], v{AW+st} offset:{off + nt*1024 + hf*256}")
            return l
        for x in rl3(0) + rl3(1): a(x)
        a(f"s_lshl_b32 s30, s{S_LW}, 2\ns_add_u32 s30, s30, {W_F4}\nv_mov_b32 v{T+6}, s30")
        self.poll("L_pollF4", T + 5, T + 4, "s34", sleep=1)
        if self.opt.get("opf"): a(f"ds_write_b32 v{T+6}, v{self.ONE}\ns_waitcnt lgkmcnt(0)")
        OLD = self.opt.get("oldf", "sc0_sc1").replace("_", " ")
        self.stamp(10); self.stamp(59)
        if not self.opt.get("noiw"): a.pad_begin("PA3", int(self.opt.get("padn", 7)))
        a(f"s_mul_i32 s30, s{S_P3T}, {OS}\ns_add_u32 s30, s30, {OW}")
        def oload(s):
            r = FO + 4 * (s % D)
            if s < 32:
                l = [f"buffer_load_dwordx4 v[{r}:{r+3}], v3, s[4:7], s30 offen offset:{(s%4)*1024} {OLD}"]
                if s % 4 == 3: l.append("s_add_u32 s30, s30, 4096")
                return l
            return [f"buffer_load_dword v{r+j}, v{EA+1}, s[4:7], s30 offen offset:{(s-32)*1024 + j*128} {OLD}" for j in range(4)]
        cnt = [1] * 32 + [4] * 4
        for s in range(D):
            for x in oload(s): a(x)
        for s in range(36):
            if self.opt.get("stb") and s % 3 == 0: self.stamp(30 + s // 3)
            out = sum(cnt[s + 1:min(36, s + D)])
            a(f"s_waitcnt vmcnt({out}) lgkmcnt({6 if s < 35 else 0})")
            mf = []
            for nt in range(3):
                d = ACC + nt * 16; w = FW + (s % 3) * 12 + nt * 4; o = FO + 4 * (s % D)
                c = "0" if s == 0 else f"v[{d}:{d+15}]"
                mf.append(f"v_mfma_f32_32x32x16_bf16 v[{d}:{d+15}], v[{w}:{w+3}], v[{o}:{o+3}], {c}")
            ilv(a, mf, rl3(s + 2) if s + 2 < 36 else [])
            if s + D < 36:
                for x in oload(s + D): a(x)
            if s == 33:
                a(f"""
                s_mul_i32 s31, s{S_LW}, 11264
                s_add_u32 s31, s31, 55296
                v_mul_u32_u24 v{T}, 272, v1
                v_lshl_add_u32 v{T}, v{T+1}, 4, v{T}
                v_add_u32 v{T}, s31, v{T}
                v_lshrrev_b32 v{T+2}, 4, v2
                v_and_b32 v{T+3}, 15, v2
                v_mul_u32_u24 v{T+4}, 272, v{T+2}
                v_lshl_add_u32 v{T+4}, v{T+3}, 4, v{T+4}
                v_add_u32 v{T+4}, s31, v{T+4}
                v_mul_u32_u24 v{T+5}, 4608, v{T+2}
                v_lshl_add_u32 v{T+5}, v{T+3}, 4, v{T+5}
                """)
            if s == 34:
                a(f"""
                v_lshrrev_b32 v{T+2}, 3, v2
                v_and_b32 v{T+3}, 7, v2
                v_mul_u32_u24 v{T+6}, 272, v{T+2}
                v_lshl_add_u32 v{T+6}, v{T+3}, 4, v{T+6}
                v_add_u32 v{T+6}, s31, v{T+6}
                v_mul_u32_u24 v{T+7}, 4608, v{T+2}
                v_lshl_add_u32 v{T+7}, v{T+3}, 4, v{T+7}
                s_mul_i32 s30, s{S_P3T}, {32*4608}
                s_sub_u32 s31, s{S_P3NB}, 9
                s_mul_i32 s31, s31, 384
                s_add_u32 s30, s30, s31
                s_add_u32 s31, s30, 256
                """)
        self.stamp(11); self.stamp(60)
        a("s_nop 9")
        for e in range(8): a(f"ds_write_b128 v{T}, v[{ACC+4*e}:{ACC+4*e+3}] offset:{e*32}")
        a("s_waitcnt lgkmcnt(4)")
        for n in range(8): a(f"ds_read_b128 v[{FO+4*n}:{FO+4*n+3}], v{T+4} offset:{n*4*272}")
        a("s_waitcnt lgkmcnt(6)")
        for e in range(4): a(f"ds_write_b128 v{T}, v[{ACC+32+4*e}:{ACC+32+4*e+3}] offset:{e*32}")
        for n in range(4): a(f"ds_read_b128 v[{FO+32+4*n}:{FO+32+4*n+3}], v{T+6} offset:{n*8*272}")
        for n in range(8):
            a(f"s_waitcnt lgkmcnt({min(14, 15-n)})\nbuffer_store_dwordx4 v[{FO+4*n}:{FO+4*n+3}], v{T+5}, s[16:19], s30 offen {OF}\ns_add_u32 s30, s30, {4*4608}")
        for n in range(4):
            a(f"s_waitcnt lgkmcnt({3-n})\nbuffer_store_dwordx4 v[{FO+32+4*n}:{FO+32+4*n+3}], v{T+7}, s[16:19], s31 offen {OF}\ns_add_u32 s31, s31, {8*4608}")
        a("s_branch L_exit")
        if a.pad: a.pad_end("PA3_ret")

    def finish(self):
        a = self.a
        a.label("L_exit")
        if self.stamp_on:
            self.stamp(12)
            a("s_waitcnt vmcnt(0)")
            self.stamp(13); a(f"v_writelane_b32 v{VST}, s98, 0\nv_writelane_b32 v{VST}, s98, 14")
            a(f"""
            s_lshl_b32 s30, s2, 4
            s_add_u32 s30, s30, s{S_WAVE}
            s_lshl_b32 s30, s30, 8
            s_add_u32 s30, s30, {STB}
            v_lshlrev_b32 v3, 2, v2
            buffer_store_dword v{VST}, v3, s[4:7], s30 offen
            """)
            if "probe" in self.opt:
                k = int(self.opt["probe"])
                a(f"""
                v_readlane_b32 s30, v{VST}, 14
                v_readlane_b32 s31, v{VST}, {k}
                s_nop 3
                s_sub_u32 s32, s31, s30
                s_cmp_eq_u32 s31, 0
                s_cselect_b32 s32, 0, s32
                s_lshr_b32 s31, s{S_WAVE}, 2
                s_cmp_lg_u32 s31, {self.opt.get("pg", 0)}
                s_cselect_b32 s32, 0, s32
                s_cmp_ge_u32 s{S_IDX}, 28
                s_cselect_b32 s32, 0, s32
                s_min_u32 s32, s32, 8000
                s_lshl_b32 s32, s32, 1
                s_add_u32 s32, s32, 7000
                """)
                a.label("L_probe")
                a("s_sleep 4\ns_memrealtime s[94:95]\ns_waitcnt lgkmcnt(0)\ns_sub_u32 s33, s94, s30\ns_cmp_lt_u32 s33, s32\ns_cbranch_scc1 L_probe")
        a("s_endpgm")
        self.emit_stubs()
        a.label("L_end")
        a("s_endpgm")

def gen_mega(name, stamp=False, opt=None):
    g = G(stamp, opt)
    g.a.raw(kernel_header(name))
    g.a.label('L_code0')
    g.prologue(); g.p1_loader(); g.attention(1); g.aux(); g.finish()
    return g.a.text(), kernel_desc(name, NV, 100)

if __name__ == "__main__":
    import sys
    from build import *
    KN = NAME + "_kernel"
    out = sys.argv[1]; stamp = len(sys.argv) > 2 and sys.argv[2] == "1"
    opt = dict((kv.split("=") + ["1"])[:2] for kv in sys.argv[3:])
    for k, v in (("pubat", "-1"), ("warmb_old", "1"), ("sig1", "0")): opt.setdefault(k, v)
    if "late" in opt:
        opt.update(early="off", pubat="-1", sig1="0", sponly="1", nowarmx="1"); NS1 = 3; B1BASE = 20480
    opt = {k: v for k, v in opt.items() if v != "off"}
    if "f1s" in opt: F1STRIDE = int(opt["f1s"])
    if "ldf" in opt: LDF = opt["ldf"].replace("_", " ").strip()
    if "wt" in opt: WT = opt["wt"].replace("_", " ")
    compose([gen_mega(KN, stamp, opt)], [(KN, 256, 768, LDS_TOTAL)], out)
    assemble(out)
```

```python
from asmlib import *
from lay2 import *
import math, struct
def f32(x): return "0x%08x" % struct.unpack("<I", struct.pack("<f", x))[0]
QSCALE = f32(18 ** -0.5 * math.log2(math.e))
WT = "sc0 sc1"
LDF = "sc0 sc1"
SPIN_MAX = 20000
P_AX, P_WQKV, P_WO, P_BX, P_LRE, P_LIM, P_BRE, P_BIM, P_CRE, P_CIM, P_LDT, P_DSK, P_OUT, P_DBG, P_WS = range(64, 94, 2)
S_WAVE, S_XCD, S_IDX, S_MB, S_NB, S_TYPE, S_CHB, S_CHA, S_HALF, S_CH = 3, 20, 21, 22, 23, 24, 25, 26, 27, 29
S_P3MB, S_P3NB, S_HD, S_LW, S_P3T = 37, 38, 39, 51, 57
S_GK, S_K4, S_GV, S_LP = 52, 54, 55, 56
S_HB, S_CB, S_SL3, S_ST3 = 52, 53, 54, 55
NV = 168
VST = 167
BS = 64
SPILL = 0x1200000
LR, LI, CR, CI, LCR, LCI, PWR, PWI, MUR, MUI = range(BS + 32, BS + 42)
C0, CHB = 5, 19968
LDS_W = 8 * CHB
W_LAND, W_PROG, W_UNS, W_BAR, W_DRN = LDS_W, LDS_W + 64, LDS_W + 96, LDS_W + 100, LDS_W + 104
W_F1 = LDS_W + 108
LDS_SCR = LDS_W + 512
B1BASE, BSLOT = 0, 24576
NS1 = 4
R3 = [100352, 124928, 2048, 26624]
W_OK = 8 * 19968 + 112
W_P2, W_G2, W_G3 = 8 * 19968 + 116, 8 * 19968 + 120, 8 * 19968 + 124
TSCR = 100352
W_B8 = 8 * 19968 + 132
W_F4 = 8 * 19968 + 144
W_ISS = 8 * 19968 + 136
W_K0 = 8 * 19968 + 140
FIN_OK, FIN_BAD = 0x40000000, 0x50000000
R3BASE = 2048
WO2 = 100352
QS, VS, OS, HS = 289, 9344, 37 * 1024, 37
def pad_touch():
    pads = [QKP + (q * QS + 288) * 1024 for q in range(16)] + [VT + o * VS + 9216 for o in range(256)]
    pads += [OW + t * OS + 36 * 1024 for t in range(64)] + [HH + (t * HS + 36) * 2048 for t in range(64)] + [EE + 0x80000, FL + 0x80000]
    G = 1 << 20
    seen = {}
    for p in pads: seen.setdefault(p // G, p)
    return sorted(seen.values())
F1STRIDE = 128 * NSUB
W_FULL, W_FREE = 8 * 19968 + 2560, 8 * 19968 + 2816
R6 = [100352, 124928, 2048, 26624, 51200, 75776]

def ilv(a, mf, other):
    n = len(mf); k = 0
    for i, m in enumerate(mf):
        a(m)
        upto = (len(other) * (i + 1) + n - 2) // (n - 1) if i < n - 1 else len(other)
        upto = min(upto, len(other))
        while k < upto: a(other[k]); k += 1

class G:
    def __init__(self, stamp=False, opt=None):
        self.a = Asm(); self.stamp_on = stamp; self.opt = opt or {}; self.stubs = []
    def stamp(self, k, real=False):
        if not self.stamp_on: return
        op = "s_memrealtime" if (real or k not in (62, 61, 60, 59)) else "s_memtime"
        self.a(f"{op} s[94:95]\ns_waitcnt lgkmcnt(0)\nv_writelane_b32 v{VST}, s94, {k}")
    def stampx(self, base, force=False):
        if not self.stamp_on or not (force or self.opt.get("stx")): return
        self.a(f"s_memrealtime s[94:95]\ns_add_u32 m0, s96, {base}\ns_add_u32 s96, s96, 1\ns_waitcnt lgkmcnt(0)\nv_writelane_b32 v{VST}, s94, m0")
    def srd(self, d, p, n):
        self.a(f"s_mov_b32 s{d}, s{p}\ns_and_b32 s{d+1}, s{p+1}, 0xffff\ns_mov_b32 s{d+2}, {n}\ns_mov_b32 s{d+3}, 0x20000")
    def poll(self, lab, vdst, voff, soff, n=1, want="1", sleep=2):
        a = self.a
        ld = f"buffer_load_dword v{vdst}, v{voff}, s[4:7], {soff} offen sc0 sc1" if n == 1 else f"buffer_load_dwordx4 v[{vdst}:{vdst+3}], v{voff}, s[4:7], {soff} offen sc0 sc1"
        a("s_mov_b32 s33, 0")
        a.label(lab)
        a(ld + "\ns_waitcnt vmcnt(0)")
        if n == 4:
            a(f"v_and_b32 v{vdst}, v{vdst}, v{vdst+1}\nv_and_b32 v{vdst+2}, v{vdst+2}, v{vdst+3}\nv_and_b32 v{vdst}, v{vdst}, v{vdst+2}")
        a(f"""
        v_cmp_ne_u32 vcc, {want}, v{vdst}
        s_add_u32 s33, s33, 1
        s_cmp_gt_u32 s33, {SPIN_MAX}
        s_cbranch_scc1 {lab}_x
        s_cbranch_vccz {lab}_x
        s_sleep {sleep}
        s_branch {lab}
        """)
        a.label(lab + "_x")
    def lds_spin(self, vaddr, vtmp, want, off=0, sleep=0):
        a = self.a; lab = a.newlabel("L_sp")
        a("s_mov_b32 s33, 0")
        a.label(lab)
        a(f"""
        ds_read_b32 v{vtmp}, v{vaddr} offset:{off}
        s_add_u32 s33, s33, 1
        s_waitcnt lgkmcnt(0)
        v_readfirstlane_b32 s32, v{vtmp}
        s_cmp_ge_u32 s32, {want}
        s_cbranch_scc1 {lab}x
        {f"s_sleep {sleep}" if sleep else ""}
        s_cmp_lt_u32 s33, {SPIN_MAX*16}
        s_cbranch_scc1 {lab}
        """)
        a.label(lab + "x")
    def lds_add1(self, vaddr, vone, off=0):
        self.a(f"s_mov_b64 exec, 1\nds_add_u32 v{vaddr}, v{vone} offset:{off}\ns_mov_b64 exec, -1")
    def flag_store(self, sregs, T):
        a = self.a
        a(f"v_mov_b32 v{T}, 0\nv_mov_b32 v{T+1}, 1\ns_mov_b64 exec, 1")
        for r in sregs: a(f"buffer_store_dword v{T+1}, v{T}, s[4:7], s{r} offen {WT}")
        a("s_mov_b64 exec, -1")
    def warm(self, items, T, dst):
        a = self.a
        if self.opt.get("nowarm"): return
        a(f"s_lshl_b32 s30, s{S_LW}, 8\ns_add_u32 s30, s30, s2\ns_lshl_b32 s30, s30, 10\nv_add_u32 v{T}, s30, v3")
        for (p, n) in items:
            self.srd(8, p, n)
            for r in range((n + (1 << 20) - 1) >> 20):
                a(f"s_mov_b32 s30, {r << 20}\nbuffer_load_dwordx4 v[{dst}:{dst+3}], v{T}, s[8:11], s30 offen")
    def warmx(self, items, T, dst):
        a = self.a
        a(f"s_lshl_b32 s30, s{S_IDX}, 2\ns_add_u32 s30, s30, s{S_LW}\ns_lshl_b32 s30, s30, 10\nv_add_u32 v{T}, s30, v3")
        for (p, n) in items:
            self.srd(8, p, n)
            for r in range((n + (1 << 17) - 1) >> 17):
                a(f"s_mov_b32 s30, {r << 17}\nbuffer_load_dwordx4 v[{dst}:{dst+3}], v{T}, s[8:11], s30 offen")
    def make_vx(self, dst, n, sa, sb, sc1, sc0, T):
        a = self.a
        a(f"""
        v_lshrrev_b32 v{T}, 3, v2
        v_and_b32 v{T+1}, 7, v2
        v_lshrrev_b32 v{T+2}, 1, v{T}
        v_xor_b32 v{T+1}, v{T+1}, v{T+2}
        v_lshrrev_b32 v{T+2}, 2, v{T}
        v_and_b32 v{T}, 3, v{T}
        v_mul_u32_u24 v{T+2}, {sa}, v{T+2}
        v_mul_u32_u24 v{T}, {sb}, v{T}
        v_add_u32 v{T}, v{T}, v{T+2}
        v_mul_u32_u24 v{T}, 1152, v{T}
        v_lshl_add_u32 v{dst}, v{T+1}, 4, v{T}
        v_xor_b32 v{T+1}, 4, v{T+1}
        v_lshl_add_u32 v{dst+1}, v{T+1}, 4, v{T}
        s_mul_i32 s34, {sc0}, 1152
        s_sub_u32 s34, s34, 1024
        v_add_u32 v{dst+1}, s34, v{dst+1}
        """)
        if n == 4:
            a(f"s_mul_i32 s34, {sc1}, 1152\ns_sub_u32 s34, s34, 2048\nv_add_u32 v{dst+2}, s34, v{dst}\nv_add_u32 v{dst+3}, s34, v{dst+1}")
    def swz(self, Z, T, add=0):
        a = self.a
        a(f"""
        v_lshrrev_b32 v{T+1}, 5, v2
        v_bfe_u32 v{T+2}, v1, 1, 3
        v_xor_b32 v{T+2}, v{T+2}, v{T+1}
        v_lshlrev_b32 v{T+3}, 7, v1
        v_add_u32 v{T+3}, {add}, v{T+3}
        """)
        for s in range(4): a(f"v_xor_b32 v{T+4}, {2*s}, v{T+2}\nv_lshl_add_u32 v{Z+s}, v{T+4}, 4, v{T+3}")

    def prologue(self):
        a = self.a
        a(f"""
        s_cmp_ge_u32 s2, 256
        s_cbranch_scc1 L_end
        {"s_memrealtime s[98:99]" if self.stamp_on else ""}
        s_load_dwordx16 s[64:79], s[0:1], 0
        s_load_dwordx8 s[80:87], s[0:1], 64
        s_load_dwordx4 s[88:91], s[0:1], 96
        s_load_dwordx2 s[92:93], s[0:1], 112
        v_lshrrev_b32 v1, 6, v0
        v_and_b32 v2, 63, v0
        v_readfirstlane_b32 s{S_WAVE}, v1
        v_lshlrev_b32 v3, 4, v2
        v_and_b32 v1, 31, v0
        s_and_b32 s{S_XCD}, s2, 7
        s_lshr_b32 s{S_IDX}, s2, 3
        """)
        if self.stamp_on: a(f"v_mov_b32 v{VST}, 0\ns_mov_b32 s96, 0")
        if self.stamp_on and self.opt.get("st0"): a(f"s_waitcnt lgkmcnt(0)"); self.stamp(2)
        a(f"""
        s_and_b32 s30, s{S_XCD}, 3
        s_lshl_b32 s30, s30, 2
        s_and_b32 s31, s{S_IDX}, 3
        s_add_u32 s{S_MB}, s30, s31
        s_lshl_b32 s{S_HD}, s{S_XCD}, 2
        s_add_u32 s{S_HD}, s{S_HD}, s31
        s_lshr_b32 s30, s{S_XCD}, 2
        s_lshr_b32 s31, s{S_IDX}, 2
        s_mul_i32 s32, s30, 7
        s_add_u32 s{S_NB}, s32, s31
        s_mul_i32 s32, s30, 9
        s_add_u32 s{S_CHB}, s32, s31
        s_add_u32 s{S_CHA}, s32, 8
        s_cmp_ge_u32 s{S_NB}, 9
        s_cselect_b32 s{S_TYPE}, 1, 0
        s_cmp_ge_u32 s{S_IDX}, 28
        s_cselect_b32 s{S_TYPE}, 2, s{S_TYPE}
        s_and_b32 s{S_LW}, s{S_WAVE}, 3
        """)
        G_ = int(self.opt.get("rotg", 3))
        a(f"s_and_b32 s30, s{S_IDX}, 3\ns_lshr_b32 s31, s{S_IDX}, 2\ns_add_u32 s30, s30, s31")
        if G_ == 1: a("s_mov_b32 s28, 0")
        elif G_ == 2: a("s_and_b32 s30, s30, 1\ns_mul_i32 s28, s30, 5")
        elif G_ == 3: a("s_mul_i32 s31, s30, 43\ns_lshr_b32 s31, s31, 7\ns_mul_i32 s31, s31, 3\ns_sub_u32 s30, s30, s31\ns_mul_i32 s28, s30, 3")
        elif G_ == 4: a("s_and_b32 s30, s30, 3\ns_mul_i32 s28, s30, 9\ns_lshr_b32 s28, s28, 2")
        a(f"""
        s_cmp_lt_u32 s{S_WAVE}, 4
        s_cbranch_scc1 L_aux
        """)

    def p3_ids(self):
        self.a(f"""
        s_lshl_b32 s{S_P3MB}, s{S_XCD}, 1
        s_and_b32 s30, s{S_IDX}, 1
        s_add_u32 s{S_P3MB}, s{S_P3MB}, s30
        s_lshr_b32 s{S_P3NB}, s{S_IDX}, 1
        s_lshl_b32 s{S_P3T}, s{S_P3MB}, 2
        s_add_u32 s{S_P3T}, s{S_P3T}, s{S_LW}
        """)

    def p1_loader(self):
        a = self.a
        VX, T = 4, 12
        SI, SB, ST, SL = 41, 43, 44, 45
        a(f"""
        s_cmp_eq_u32 s{S_TYPE}, 2
        s_cbranch_scc1 L_p1l_sp
        s_mov_b32 s{SI}, 0
        s_sub_u32 s42, 9, s28
        s_lshl_b32 s{SL}, s{S_LW}, 12
        s_cmp_ge_u32 s{S_WAVE}, 8
        s_cbranch_scc1 L_p1l_w
        s_cmp_eq_u32 s{S_TYPE}, 0
        s_cselect_b32 s46, 2, 1
        s_cselect_b32 s47, 32, 16
        s_cselect_b32 s48, 16, 4
        s_lshr_b32 s30, s{S_LW}, 1
        s_lshl_b32 s30, s30, 6
        s_and_b32 s31, s{S_LW}, 1
        s_add_u32 s30, s30, s31
        s_lshl_b32 s31, s{S_LW}, 5
        s_cmp_eq_u32 s{S_TYPE}, 0
        s_cselect_b32 s30, s30, s31
        s_lshl_b32 s31, s{S_MB}, 7
        s_add_u32 s30, s30, s31
        s_mul_i32 s{SB}, s30, 1152
        s_mov_b32 s{ST}, 128
        """)
        self.make_vx(VX, 4, "8", "s46", "s47", "s48", T)
        a("s_waitcnt lgkmcnt(0)")
        self.srd(8, P_AX, 2048 * 1152)
        a("s_branch L_p1l_go")
        a.label("L_p1l_w")
        a(f"""
        s_mul_i32 s30, s{S_LW}, {16*3456}
        s_lshl_b32 s31, s{S_NB}, 8
        s_add_u32 s{SB}, s30, s31
        s_mov_b32 s{ST}, {64*3456}
        s_add_u32 s{SL}, s{SL}, 16384
        v_lshrrev_b32 v{T}, 4, v2
        v_and_b32 v{T+1}, 15, v2
        v_lshlrev_b32 v{T+2}, 2, v{T}
        v_xor_b32 v{T+1}, v{T+1}, v{T+2}
        v_mul_u32_u24 v{T}, 3456, v{T}
        v_lshl_add_u32 v{VX}, v{T+1}, 4, v{T}
        v_add_u32 v{VX+1}, {4*3456-1024}, v{VX}
        v_add_u32 v{VX+2}, {2*(4*3456-1024)}, v{VX}
        v_add_u32 v{VX+3}, {3*(4*3456-1024)}, v{VX}
        s_waitcnt lgkmcnt(0)
        """)
        self.srd(8, P_WQKV, 576 * 3456)
        a.label("L_p1l_go")
        a(f"s_mul_i32 s30, s28, s{ST}\ns_add_u32 s{SB}, s{SB}, s30\ns_mul_i32 s46, s{ST}, 9")
        self.stamp(1)
        a.label("L_p1l_issue")
        a(f"s_mov_b32 m0, s{SL}\ns_add_u32 s{SI}, s{SI}, 1")
        for n in range(4): a(f"buffer_load_dwordx4 v{VX+n}, s[8:11], s{SB} offen offset:{n*1024} lds")
        a(f"""
        s_add_u32 s{SB}, s{SB}, s{ST}
        s_cmp_eq_u32 s{SI}, s42
        s_cselect_b32 s30, s46, 0
        s_sub_u32 s{SB}, s{SB}, s30
        s_add_u32 s{SL}, s{SL}, 32768
        s_sub_u32 s30, s{SL}, 163840
        s_cmp_ge_u32 s{SL}, 163840
        s_cselect_b32 s{SL}, s30, s{SL}
        s_cmp_lt_u32 s{SI}, 3
        s_cbranch_scc1 L_p1l_issue
        s_waitcnt vmcnt(8)
        s_barrier
        """)
        a(f"s_cmp_lt_u32 s{SI}, 9\ns_cbranch_scc1 L_p1l_issue")
        a.label("L_p1l_sp")
        a("s_waitcnt lgkmcnt(0)")
        self.b1_loader()
        a(f"s_cmp_eq_u32 s{S_TYPE}, 2\ns_cbranch_scc1 L_p1l_sp2")
        nw = 0
        if self.opt.get("warmb_old"):
            nw = 3
            a(f"""
            s_lshl_b32 s30, s{S_IDX}, 2
            s_and_b32 s31, s{S_LW}, 1
            s_add_u32 s30, s30, s31
            s_lshr_b32 s31, s{S_WAVE}, 3
            s_lshl_b32 s31, s31, 1
            s_add_u32 s30, s30, s31
            s_mul_i32 s30, s30, 3072
            s_lshr_b32 s31, s{S_XCD}, 2
            s_mul_i32 s31, s31, {288*1152}
            s_add_u32 s30, s30, s31
            """)
            for n in range(3): a(f"buffer_load_dwordx4 v[80:83], v3, s[12:15], s30 offen offset:{n*1024}")
            if self.opt.get("warmx2"):
                nw = 6
                a(f"""
                s_lshl_b32 s30, s{S_IDX}, 3
                s_add_u32 s30, s30, s{S_WAVE}
                s_sub_u32 s30, s30, 4
                s_mul_i32 s30, s30, 2688
                s_and_b32 s31, s{S_XCD}, 3
                s_mul_i32 s31, s31, 589824
                s_add_u32 s30, s30, s31
                """)
                for n in range(3): a(f"buffer_load_dwordx4 v[80:83], v3, s[8:11], s30 offen offset:{n*1024}")
        a(f"s_waitcnt vmcnt({4+nw})\ns_barrier\ns_xor_b32 s40, s27, 1")
        if self.opt.get("early"):
            a(f"s_cmp_eq_u32 s27, 0\ns_cbranch_scc1 L_e1")
            self.b1_issue()
            a(f"s_waitcnt vmcnt({nw+6})\ns_barrier\ns_branch L_e2")
            a.label("L_e1")
            a(f"s_waitcnt vmcnt({nw})\ns_barrier")
            self.b1_issue()
            a.label("L_e2")
        else:
            a(f"s_waitcnt vmcnt({nw})\ns_barrier")
        a.label("L_p1l_sp2")
        a(f"""
        s_cmp_lg_u32 s{S_WAVE}, 8
        s_cbranch_scc1 L_p1l_b
        v_lshlrev_b32 v9, 2, v2
        v_add_u32 v9, {LDS_W}, v9
        v_cmp_eq_u32 vcc, 8, v2
        v_mov_b32 v10, 4
        v_mov_b32 v8, 0
        v_cndmask_b32 v10, v8, v10, vcc
        ds_write_b32 v9, v10
        ds_write_b32 v9, v8 offset:2560
        ds_write_b32 v9, v8 offset:2816
        s_waitcnt lgkmcnt(0)
        """)
        a.label("L_p1l_b")
        a("s_barrier")
        self.srd(4, P_WS, WS_BYTES)
        if self.opt.get("iss"):
            a(f"s_cmp_eq_u32 s{S_TYPE}, 2\ns_cbranch_scc1 L_p1l_sp5\nv_mov_b32 v70, {W_ISS}")
            self.lds_spin(70, 71, 4)
            a.label("L_p1l_sp5")
        if self.opt.get("drn"):
            a(f"s_cmp_eq_u32 s{S_TYPE}, 2\ns_cbranch_scc1 L_p1l_sp4\nv_mov_b32 v70, {W_DRN}")
            self.lds_spin(70, 71, int(self.opt["drn"]), sleep=1)
            a.label("L_p1l_sp4")
        a(f"s_cmp_lt_u32 s{S_WAVE}, 8\ns_cbranch_scc1 L_attshare")
        self.b1_run()
        self.helper()
        a.label("L_attshare")
        CW, ONE, T = 66, 67, 68
        a("s_mov_b32 s40, 1"); self.b1_issue()
        a("s_mov_b32 s40, 3"); self.b1_issue()
        self.attention(0)
        a("s_waitcnt vmcnt(6)"); self.lds_add1(CW, ONE, 4)
        a("s_waitcnt vmcnt(0)"); self.lds_add1(CW, ONE, 12)
        self.lds_spin(CW, T, 4, 256 + 4)
        a("s_mov_b32 s40, 5"); self.b1_issue()
        a(f"""
        v_mov_b32 v{T+1}, 0
        s_cmp_lg_u32 s{S_WAVE}, 4
        s_cbranch_scc1 L_as1
        v_mov_b32 v{T+2}, {W_OK}
        ds_read_b32 v{T}, v{T+2}
        s_mul_i32 s34, s{S_HD}, {F1STRIDE}
        s_add_u32 s34, s34, {F1}
        v_and_b32 v{T+2}, {NSUB-1}, v2
        v_lshlrev_b32 v{T+2}, 7, v{T+2}
        s_waitcnt lgkmcnt(0)
        v_readfirstlane_b32 s32, v{T}
        s_cmp_eq_u32 s32, 0
        s_cbranch_scc1 L_as1
        buffer_load_dword v{T+1}, v{T+2}, s[4:7], s34 offen sc0 sc1
        s_waitcnt vmcnt(1)
        s_branch L_as2
        """)
        a.label("L_as1")
        a("s_waitcnt vmcnt(0)")
        a.label("L_as2")
        self.lds_add1(CW, ONE, 20)

    def aux_start(self):
        a = self.a
        sp = self.opt.get("sponly")
        if sp: a(f"s_cmp_lg_u32 s{S_TYPE}, 2\ns_cbranch_scc1 L_nopf\ns_getpc_b64 s[30:31]")
        else: a(f"s_cmp_lg_u32 s{S_WAVE}, 3\ns_cbranch_scc1 L_nopf\ns_getpc_b64 s[30:31]")
        a.label("L_pc")
        a(f"s_sub_u32 s30, s30, L_pc-L_code0\ns_subb_u32 s31, s31, 0")
        if sp: a(f"s_and_b32 s32, s{S_IDX}, 3\ns_lshl_b32 s32, s32, 2\ns_add_u32 s32, s32, s{S_WAVE}\ns_lshl_b32 s32, s32, 11\nv_lshlrev_b32 v6, 5, v2\ns_cmp_ge_u32 s32, L_end-L_code0-2048")
        else: a(f"s_lshl_b32 s32, s{S_IDX}, 10\nv_mov_b32 v6, v3\ns_cmp_ge_u32 s32, L_end-L_code0-1024")
        a(f"""
        s_cbranch_scc1 L_nopf
        s_add_u32 s30, s30, s32
        s_addc_u32 s31, s31, 0
        v_mov_b32 v5, s31
        v_add_co_u32 v4, vcc, s30, v6
        s_nop 1
        v_addc_co_u32 v5, vcc, 0, v5, vcc
        global_load_dword v154, v[4:5], off
        """)
        a.label("L_nopf")
        a("s_waitcnt lgkmcnt(0)")
        self.srd(4, P_WS, WS_BYTES)
        for r in (8, 9, 10, 11, 152): a(f"v_mov_b32 v{r}, 0")
        if not self.opt.get("notlb"):
            a(f"s_cmp_lg_u32 s{S_WAVE}, 2\ns_cbranch_scc1 L_notlb")
            if self.opt.get("sponly"): a(f"s_cmp_lg_u32 s{S_TYPE}, 2\ns_cbranch_scc1 L_notlb")
            pt = pad_touch()
            for i, p in enumerate(pt): a(f"s_mov_b32 s30, {p}\nv_writelane_b32 v9, s30, {i}")
            a(f"s_mov_b64 exec, {(1 << len(pt)) - 1}\nbuffer_load_dword v154, v9, s[4:7], 0 offen\ns_mov_b64 exec, 0x1ff\nv_lshlrev_b32 v9, 20, v2")
            a(f"global_load_dword v154, v9, s[{P_OUT}:{P_OUT+1}]\ns_mov_b64 exec, 7\nglobal_load_dword v154, v9, s[{P_BX}:{P_BX+1}]\ns_mov_b64 exec, 1")
            for p in (P_WO, P_LRE, P_LIM, P_BRE, P_BIM, P_CRE, P_CIM, P_LDT, P_DSK): a(f"global_load_dword v154, v8, s[{p}:{p+1}]")
            a("s_mov_b64 exec, -1")
            a.label("L_notlb")
    def zero_flags(self):
        a = self.a
        a(f"s_lshl_b32 s30, s2, 4\ns_add_u32 s30, s30, s{S_WAVE}\ns_cmp_lg_u32 s30, {255*16}\ns_cbranch_scc1 L_nz\ns_mov_b32 s30, {FL}\nv_mov_b32 v24, 0\nv_mov_b32 v25, 0\nv_mov_b32 v26, 0\nv_mov_b32 v27, 0")
        for i in range(FLBYTES // 1024):
            a(f"buffer_store_dwordx4 v[24:27], v3, s[4:7], s30 offen offset:{(i%4)*1024} {WT}")
            if i % 4 == 3: a("s_add_u32 s30, s30, 4096")
        a(f"""
        s_waitcnt vmcnt(0)
        v_mov_b32 v28, 1
        s_mov_b64 exec, 1
        global_store_dword v8, v28, s[{P_DBG}:{P_DBG+1}] {WT}
        s_mov_b64 exec, -1
        """)
        a.label("L_nz")
    def dbg_load(self):
        self.a(f"v_mov_b32 v152, 0\nglobal_load_dword v153, v152, s[{P_DBG}:{P_DBG+1}]")
    def dbg_verify(self):
        a = self.a; l = a.newlabel("L_dv")
        a("s_mov_b32 s33, 0")
        a.label(l)
        a(f"""
        v_readfirstlane_b32 s32, v153
        s_cmp_eq_u32 s32, 1
        s_cbranch_scc1 {l}x
        s_add_u32 s33, s33, 1
        s_cmp_gt_u32 s33, {SPIN_MAX}
        s_cbranch_scc1 {l}x
        s_sleep 8
        global_load_dword v153, v152, s[{P_DBG}:{P_DBG+1}] sc0 sc1
        s_waitcnt vmcnt(0)
        s_branch {l}
        """)
        a.label(l + "x")
        a(f"ds_write_b32 v{self.WA}, v{self.ONE} offset:{W_OK - W_BAR}")
    def wait_ok(self, T):
        self.a(f"v_mov_b32 v{T}, {W_OK}")
        self.lds_spin(T, T + 1, 1, sleep=2)

    def kv_setup(self, T, VV, first):
        a = self.a
        a(f"""
        s_lshr_b32 s30, s{S_HD}, 1
        s_mul_i32 s30, s30, 9
        s_and_b32 s31, s{S_HD}, 1
        s_lshl_b32 s31, s31, 2
        s_add_u32 s36, s30, s31                  ; f
        s_add_u32 s30, s36, s{S_LW}
        s_lshl_b32 s30, s30, 10
        s_mul_i32 s31, {first}, {2*QS*1024}
        s_add_u32 s30, s30, s31
        s_add_u32 s{S_GK}, s30, {QKP + 144*1024}
        s_cmp_eq_u32 s{S_LW}, 0
        s_cselect_b32 s{S_K4}, 0, {(QS-5)*1024}
        s_add_u32 s{S_K4}, s{S_K4}, 4096
        s_mul_i32 s30, s{S_HD}, 288
        s_mul_i32 s31, s{S_LW}, {3*VS}
        s_add_u32 s30, s30, s31
        s_mul_i32 s31, {first}, {32*VS}
        s_add_u32 s30, s30, s31
        s_add_u32 s{S_GV}, s30, {VT}
        v_mul_u32_u24 v{T}, 27, v2
        v_lshrrev_b32 v{T}, 9, v{T}
        v_mul_u32_u24 v{VV}, 19, v{T}
        v_sub_u32 v{VV}, v2, v{VV}
        v_cmp_gt_u32 vcc, 18, v{VV}
        v_cmp_gt_u32 s[58:59], 3, v{T}
        v_cmp_gt_u32 s[60:61], 2, v{T}
        v_mul_u32_u24 v{T}, {VS}, v{T}
        v_lshl_add_u32 v{VV}, v{VV}, 4, v{T}
        s_and_b64 s[58:59], s[58:59], vcc
        s_and_b64 s[60:61], s[60:61], vcc
        s_cmp_eq_u32 s{S_LW}, 2
        s_cselect_b64 s[60:61], s[60:61], s[58:59]
        s_add_u32 s30, {first}, {C0}
        s_and_b32 s30, s30, 7
        s_mul_i32 s{S_LP}, s30, {CHB}
        v_mul_u32_u24 v{VV+1}, {VROW}, v1
        v_add_u32 v{VV+1}, {10240 + 288}, v{VV+1}
        """)
    def k_part(self):
        a = self.a; l1 = a.newlabel("L_kd")
        a(f"""
        s_lshl_b32 s31, s{S_LW}, 10
        s_add_u32 s31, s31, s{S_LP}
        s_mov_b32 m0, s31
        s_add_u32 s30, s{S_GK}, s{S_K4}
        buffer_load_dwordx4 v3, s[4:7], s{S_GK} offen {LDF} lds
        s_add_u32 m0, s31, 4096
        s_cmp_ge_u32 s{S_LW}, 2
        buffer_load_dwordx4 v3, s[4:7], s30 offen {LDF} lds
        s_cbranch_scc1 {l1}
        s_add_u32 m0, s31, 8192
        s_add_u32 s30, s{S_GK}, {(QS+3)*1024}
        buffer_load_dwordx4 v3, s[4:7], s30 offen {LDF} lds
        """)
        a.label(l1)
    def v_part(self, VV, ONES, T):
        a = self.a; l2 = a.newlabel("L_vd")
        a(f"""
        s_mul_i32 s31, s{S_LW}, {3*VROW}
        s_add_u32 s31, s31, s{S_LP}
        s_add_u32 m0, s31, 10240
        s_mov_b64 exec, s[58:59]
        buffer_load_dwordx4 v{VV}, s[4:7], s{S_GV} offen {LDF} lds
        s_add_u32 m0, s31, {10240 + 12*VROW}
        s_add_u32 s30, s{S_GV}, {12*VS}
        buffer_load_dwordx4 v{VV}, s[4:7], s30 offen {LDF} lds
        s_cmp_eq_u32 s{S_LW}, 3
        s_cbranch_scc1 {l2}
        s_add_u32 m0, s31, {10240 + 24*VROW}
        s_add_u32 s30, s{S_GV}, {24*VS}
        s_mov_b64 exec, s[60:61]
        buffer_load_dwordx4 v{VV}, s[4:7], s30 offen {LDF} lds
        """)
        a.label(l2)
        a(f"s_mov_b64 exec, -1\nv_add_u32 v{T}, s{S_LP}, v{VV+1}\nds_write_b128 v{T}, v[{ONES}:{ONES+3}]")
    def kv_next(self):
        self.a(f"""
        s_add_u32 s{S_GK}, s{S_GK}, {2*QS*1024}
        s_add_u32 s{S_GV}, s{S_GV}, {32*VS}
        s_add_u32 s{S_LP}, s{S_LP}, {CHB}
        s_cmp_eq_u32 s{S_LP}, {8*CHB}
        s_cselect_b32 s{S_LP}, 0, s{S_LP}
        """)
    def kv_half(self, grp, VV, ONES, T):
        a = self.a; l = a.newlabel("L_kh")
        a(f"s_cmp_lg_u32 s{grp}, 0\ns_cbranch_scc1 {l}v")
        self.k_part()
        a(f"s_branch {l}e")
        a.label(l + "v")
        self.v_part(VV, ONES, T)
        a.label(l + "e")
        self.kv_next()
    def poll_f1(self, lab, T, poller=False):
        a = self.a
        a(f"v_mov_b32 v{T+2}, {W_F1}")
        if poller:
            a(f"s_cmp_lg_u32 s{S_WAVE}, 4\ns_cbranch_scc1 {lab}_w")
            a(f"s_waitcnt vmcnt(0)\nv_cmp_ne_u32 vcc, {864 // NSUB}, v69\ns_cbranch_vccz {lab}_x")
            self.wait_ok(T)
            a(f"s_mul_i32 s34, s{S_HD}, {F1STRIDE}\ns_add_u32 s34, s34, {F1}\nv_and_b32 v{T}, {NSUB-1}, v2\nv_lshlrev_b32 v{T}, 7, v{T}")
            self.poll(lab, T + 1, T, "s34", want=str(864 // NSUB), sleep=int(self.opt.get("f1sleep", 4)))
            a(f"v_mov_b32 v{T}, 1\nds_write_b32 v{T+2}, v{T}")
            a.label(lab + "_w")
        self.lds_spin(T + 2, T + 1, 1, sleep=1)

    def wait_prog(self, val, T, sleep=4):
        a = self.a; lab = a.newlabel("L_pg")
        a(f"v_and_b32 v{T}, 3, v2\nv_lshlrev_b32 v{T}, 2, v{T}\nv_add_u32 v{T}, {W_PROG}, v{T}\ns_mov_b32 s33, 0\ns_mov_b32 s30, {FIN_BAD}")
        a.label(lab)
        a(f"""
        ds_read_b32 v{T+1}, v{T}
        s_add_u32 s33, s33, 1
        s_waitcnt lgkmcnt(0)
        v_cmp_gt_u32 vcc, {val}, v{T+1}
        s_cmp_gt_u32 s33, {SPIN_MAX*8}
        s_cbranch_scc1 {lab}x
        s_cbranch_vccz {lab}x
        s_sleep {sleep}
        s_branch {lab}
        """)
        a.label(lab + "x")
    def f4(self, n, T):
        a = self.a; lab = a.newlabel("L_f4")
        a(f"s_cmp_eq_u32 s50, 0\ns_cbranch_scc1 {lab}\ns_waitcnt vmcnt({n})")
        self.flag_store([36], T)
        a.label(lab)

    def final_check(self, T, lab_bad, sleep=2):
        self.wait_prog(FIN_OK, T, sleep)
        self.a(f"v_cmp_eq_u32 vcc, s30, v{T+1}\ns_cbranch_vccnz {lab_bad}")

    def attention(self, part):
        a = self.a
        QM, QL, IDX, AK, AV, AL, T0, T1 = 4, 12, 14, 15, 16, 17, 18, 19
        KM, KL, VF, O, S0, S1 = 20, 24, 28, 44, 76, 108
        LK, LV, LL, CA, CK, PW, VV, AK2, KM2 = 140, 141, 142, 143, 144, 145, 146, 151, 152
        TQ, PAR, CH, IT, DK, FB, MC, MB_, MI = 29, 33, 43, 44, 45, 47, 48, 49, 50
        HD = S_HD
        if part == 0: self.kv_setup(T0, VV, "0")
        if part == 0: a(f"""
        s_lshr_b32 s{TQ}, s{S_IDX}, 2
        s_lshl_b32 s{TQ}, s{TQ}, 3
        s_lshl_b32 s30, s{S_LW}, 1
        s_add_u32 s{TQ}, s{TQ}, s30
        s_lshr_b32 s32, s{TQ}, 2
        s_mul_i32 s32, s32, {QS}
        s_add_u32 s32, s32, s36
        s_lshl_b32 s32, s32, 10
        s_and_b32 s30, s{TQ}, 3
        s_lshl_b32 s30, s30, 8
        s_add_u32 s32, s32, s30
        s_add_u32 s35, s32, {QKP}
        s_and_b32 s{PAR}, s{HD}, 1
        v_lshrrev_b32 v{T1}, 5, v2
        v_lshlrev_b32 v{T0}, 3, v1
        v_lshl_add_u32 v{LK}, v{T1}, 11, v{T0}
        s_lshl_b32 s30, s{PAR}, 10
        v_add_u32 v{LK}, s30, v{LK}
        s_mul_i32 s31, s{PAR}, 4092
        s_sub_u32 s31, 4096, s31
        v_add_u32 v{LL}, s31, v{T0}
        v_lshl_add_u32 v{AL}, v2, 3, s31
        v_min_u32 v{AV}, 18, v1
        v_mul_u32_u24 v{T1}, {VROW}, v{T1}
        v_lshl_add_u32 v{LV}, v{AV}, 4, v{T1}
        v_add_u32 v{LV}, {10240 + C0*CHB}, v{LV}
        v_cmp_lt_u32 vcc, 18, v1
        v_cmp_ne_u32 s[30:31], 28, v1
        s_and_b64 vcc, vcc, s[30:31]
        v_mov_b32 v{T1}, 0x100000
        v_mov_b32 v{IDX}, 0xdddd
        v_cndmask_b32 v{LV}, v{LV}, v{T1}, vcc
        v_mov_b32 v{KL}, 0x3f803f80
        v_mov_b32 v{KL+1}, 0x3f803f80
        v_mov_b32 v{KL+2}, 0x3f803f80
        v_mov_b32 v{KL+3}, 0x3f803f80
        s_lshl_b32 s30, s{S_LW}, 2
        s_add_u32 s30, s30, {W_PROG}
        v_mov_b32 v{PW}, s30
        s_mov_b32 s62, 0
        s_mov_b32 s63, -1
        s_mov_b32 s{FB}, 0
        s_mov_b32 s{MC}, 1
        s_mov_b32 s{MB_}, {C0*CHB}
        """)
        if part == 0: return
        self.stamp(4)
        self.poll_f1("L_pollF1a", S0, True)
        self.stamp(5)
        a("s_setprio 3")
        self.k_part()
        for q in range(2):
            a(f"buffer_load_dwordx2 v[{QM+4*q}:{QM+4*q+1}], v{LK}, s[4:7], s35 offen offset:{q*256} {LDF}")
            a(f"buffer_load_dwordx2 v[{QM+4*q+2}:{QM+4*q+3}], v{LK}, s[4:7], s35 offen offset:{q*256+1024} {LDF}")
        a(f"buffer_load_dword v{QL}, v{AL}, s[4:7], s35 offen {LDF}")
        self.v_part(VV, KL, T0); self.kv_next()
        self.k_part(); self.v_part(VV, KL, T0)
        a(f"v_mov_b32 v{CA}, {W_LAND}\nv_mov_b32 v{CK}, 1\ns_waitcnt vmcnt(6)")
        self.lds_add1(CA, CK, W_K0 - W_LAND)
        self.lds_spin(CA, T0, 4, W_K0 - W_LAND)
        self.stamp(6)
        a.label("L_maxpass")
        MX0, MX1 = T0, T1
        a(f"""
        v_add_u32 v{AK}, s{MB_}, v{LK}
        v_add_u32 v{AL}, s{MB_}, v{LL}
        v_mov_b32 v{QL+1}, 0
        v_mov_b32 v{MX0}, 0xff800000
        v_mov_b32 v{MX1}, 0xff800000
        s_mov_b32 s{MI}, 0
        """)
        def rdKm(t): o = (t // 4) * 10 + (t % 4) // 2; k = KM2 if t % 2 else KM; a(f"ds_read2st64_b64 v[{k}:{k+3}], v{AK2 if t % 2 else AK} offset0:{o} offset1:{o+2}")
        def rdKl(t): a(f"ds_read_b32 v{KL+2*(t%2)}, v{AL} offset:{(t//4)*5120 + (t%4)*256}")
        def rdV(m, t): a(f"ds_read_b128 v[{VF+8*(t%2)+4*m}:{VF+8*(t%2)+4*m+3}], v{AV} offset:{(t*4+m*2)*VROW}")
        def b2(N, t): a(f"v_mfma_f32_32x32x4_2b_bf16 v[{N}:{N+31}], v[{KL+2*(t%2)}:{KL+2*(t%2)+1}], v[{QL}:{QL+1}], 0")
        def mainm(N, q, t=0): k = KM2 if t % 2 else KM; a(f"v_mfma_f32_32x32x16_bf16 v[{N+16*q}:{N+16*q+15}], v[{k}:{k+3}], v[{QM+4*q}:{QM+4*q+3}], v[{N+16*q}:{N+16*q+15}]")
        def smf(n, S, t):
            o = O + 16 * (n // 2); v = VF + 8 * (t % 2) + 4 * (n % 2)
            a(f"v_smfmac_f32_32x32x32_bf16 v[{o}:{o+15}], v[{v}:{v+3}], v[{S+8*n}:{S+8*n+7}], v{IDX}")
        RO = bool(self.opt.get("ro"))
        EO = (list(range(0, 8)) + list(range(16, 24)) + list(range(8, 16)) + list(range(24, 32))) if RO else list(range(32))
        def E(S, lo, hi):
            for r in range(lo, hi): a(f"v_exp_f32 v{S+EO[r]}, v{S+EO[r]}")
        a.label("L_maxloop")
        rdKl(0); rdKm(0)
        a(f"""
        s_mov_b32 s30, 256
        s_and_b32 s31, s{MI}, 3
        s_cmp_eq_u32 s31, 3
        s_cselect_b32 s30, {5120-768}, s30
        s_and_b32 s31, s{MI}, 7
        s_cmp_eq_u32 s31, 7
        s_cselect_b32 s30, {CHB-5120-768}, s30
        s_add_u32 s{MI}, s{MI}, 1
        s_waitcnt lgkmcnt(0)
        """)
        b2(S0, 0)
        a(f"v_add_u32 v{AK}, s30, v{AK}\nv_add_u32 v{AL}, s30, v{AL}")
        for i in range(16): a(f"v_mov_b32 v{O+i}, 0")
        mainm(S0, 0); mainm(S0, 1)
        for i in range(16): a(f"v_mov_b32 v{O+16+i}, 0")
        for i in range(8): a(f"v_max3_f32 v{MX0}, v{S0+2*i}, v{S0+2*i+1}, v{MX0}\nv_max3_f32 v{MX1}, v{S0+16+2*i}, v{S0+16+2*i+1}, v{MX1}")
        a(f"""
        s_cmp_lt_u32 s{MI}, s{MC}
        s_cbranch_scc1 L_maxloop
        v_add_u32 v{AK}, {C0*CHB}, v{LK}
        v_add_u32 v{AL}, {C0*CHB}, v{LL}
        v_mov_b32 v{AV}, v{LV}
        v_add_u32 v{AK2}, 256, v{AK}
        """)
        rdKl(0); rdKm(0); rdKl(1); rdKm(1)
        a(f"""
        v_permlane32_swap_b32 v{MX0}, v{MX1}
        s_mov_b32 s{CH}, {(-7*CHB) & 0xffffffff}
        s_mov_b32 s{IT}, 0
        v_max_f32 v{MX1}, v{MX0}, v{MX1}
        v_cvt_pk_bf16_f32 v{T0}, -v{MX1}, 0
        v_lshlrev_b32 v{T0}, 16, v{T0}
        v_sub_f32 v{T0}, -v{MX1}, v{T0}
        v_cvt_pk_bf16_f32 v{QL+1}, -v{MX1}, v{T0}
        v_mov_b32 v{CA}, {W_LAND}
        v_mov_b32 v{T1}, 1
        s_waitcnt lgkmcnt(2)
        """)
        b2(S0, 0)
        a(f"s_cmp_lg_u32 s{FB}, 0\ns_cbranch_scc1 L_nl0\ns_waitcnt vmcnt(4)")
        self.lds_add1(CA, T1)
        a.label("L_nl0")
        for i in range(8): a(f"v_mov_b32 v{S1+24+i}, 0")
        for i in range(4): a(f"v_mov_b32 v{VF+12+i}, 0")
        a("s_nop 3")
        mainm(S0, 0); mainm(S0, 1)
        self.lds_spin(CA, T0, 4)
        rdV(0, 0); rdV(1, 0)
        a("s_nop 2")
        self.stamp(7); self.stamp(61)
        a.raw(".p2align 6")
        a.label("L_loop")
        for i in range(8):
            C, N = (S0, S1) if i % 2 == 0 else (S1, S0)
            E(C, 0, 2)
            smf(3, N, i + 1)
            if i == 0 and self.opt.get("stc"): a(f"s_memtime s[94:95]\ns_add_u32 m0, s{IT}, 40\ns_waitcnt lgkmcnt(0)\nv_writelane_b32 v{VST}, s94, m0")
            if i == 7: a(f"v_add_u32 v{AV}, s{DK}, v{AV}")
            rdV(0, (i + 1) % 8)
            if not self.opt.get("w0"): a("s_waitcnt lgkmcnt(1)")
            E(C, 2, 6)
            b2(N, i + 1)
            rdV(1, (i + 1) % 8)
            if i == 1: a(f"ds_write_b32 v{PW}, v{CA}")
            if i == 5: a(f"ds_read_b32 v{CK}, v{CA} offset:4")
            if i == 0:
                a(f"s_cmp_eq_u32 s{IT}, {7-C0}\ns_cselect_b32 s{DK}, s{CH}, {CHB}")
            if i == 3:
                a(f"s_cmp_eq_u32 s{IT}, s{FB}\ns_cbranch_scc1 L_sig1")
                a.label("L_sig1r")
            if i == 6:
                a(f"""
                v_readfirstlane_b32 s30, v{CK}
                v_add_u32 v{AK}, s{DK}, v{AK}
                v_add_u32 v{AL}, s{DK}, v{AL}
                v_add_u32 v{AK2}, s{DK}, v{AK2}
                v_add_u32 v{CA}, 4, v{CA}
                s_cmp_lt_u32 s30, 4
                s_cbranch_scc1 L_wait
                """)
                a.label("L_waitret")
            E(C, 6, 14)
            smf(0, C, i)
            rdKl((i + 2) % 8)
            E(C, 14, 18)
            smf(2 if RO else 1, C, i)
            rdKm((i + 2) % 8)
            E(C, 18, 22)
            mainm(N, 0, i + 1)
            E(C, 22, 26)
            if RO: mainm(N, 1, i + 1)
            else: smf(2, C, i)
            if i == 7: a(f"s_add_u32 s{IT}, s{IT}, 1\ns_cmp_lt_u32 s{IT}, 8")
            E(C, 26, 30)
            if RO: smf(1, C, i)
            else: mainm(N, 1, i + 1)
            if self.opt.get("w0"): a(f"s_waitcnt lgkmcnt(0)")
            E(C, 30, 32)
        a("s_cbranch_scc1 L_loop")
        a("s_waitcnt lgkmcnt(0)\ns_nop 0")
        smf(3, S1, 7)
        self.stamp(8); self.stamp(62)
        SUM = T1
        a(f"""
        s_mul_i32 s30, s{TQ}, {OS}
        s_add_u32 s30, s30, {OW}
        s_lshl_b32 s31, s{HD}, 10
        s_add_u32 s31, s31, s30
        s_lshl_b32 s32, s{HD}, 7
        s_add_u32 s32, s32, s30
        s_add_u32 s32, s32, 32768
        v_lshlrev_b32 v{T0}, 2, v2
        s_mov_b32 s30, 0x5d800000
        """)
        for q in range(2):
            o = O + 16 * q; d = S1 + 8 * q
            a(f"v_cndmask_b32 v{o+10}, v{o+10}, v{o+12}, s[62:63]\nv_rcp_f32 v{o+11}, v{o+10}\nv_cmp_nge_f32 s[{16+2*q}:{17+2*q}], s30, v{o+10}")
            for r in range(5): a(f"v_pk_mul_f32 v[{o+2*r}:{o+2*r+1}], v[{o+2*r}:{o+2*r+1}], v[{o+10}:{o+11}] op_sel:[0,1] op_sel_hi:[1,1]")
            for r in range(5): a(f"v_cvt_pk_bf16_f32 v{d+r}, v{o+2*r}, v{o+2*r+1}")
            a(f"""
            buffer_store_dwordx4 v[{d}:{d+3}], v3, s[4:7], s31 offen {WT}
            s_mov_b32 exec_hi, 0
            buffer_store_dword v{d+4}, v{T0}, s[4:7], s32 offen {WT}
            s_mov_b32 exec_hi, -1
            s_add_u32 s31, s31, {OS}
            s_add_u32 s32, s32, {OS}
            """)
        a(f"v_add_f32 v{SUM}, |v{O}|, |v{O+16}|")
        for r in range(1, 10): a(f"v_add_f32 v{AV}, |v{O+r}|, |v{O+16+r}|\nv_add_f32 v{SUM}, v{SUM}, v{AV}")
        a(f"""
        s_mov_b32 s31, 0x7f7fffff
        s_or_b64 s[16:17], s[16:17], s[18:19]
        v_cmp_nge_f32 vcc, s31, v{SUM}
        s_or_b64 vcc, vcc, s[16:17]
        s_cmp_lg_u32 s{FB}, 0
        s_cbranch_scc1 L_fin
        s_cmp_lg_u64 vcc, 0
        s_cbranch_scc1 L_unsafe
        """)
        a.label("L_fin")
        a(f"""
        v_mov_b32 v{T1}, {FIN_OK}
        s_lshl_b32 s36, s{TQ}, 5
        s_add_u32 s36, s36, s{HD}
        s_lshl_b32 s36, s36, 2
        s_add_u32 s36, s36, {F4}
        s_add_u32 s35, s36, 128
        s_waitcnt vmcnt(0)
        """)
        self.flag_store([36, 35], AK)
        a(f"ds_write_b32 v{PW}, v{T1}")
        self.stamp(9)
        a(f"s_cmp_lg_u32 s{FB}, 0\ns_cbranch_scc1 L_redo_end")
        self.final_check(AK, "L_redo", 4)
        a("s_branch L_exit")
        a.label("L_sig1")
        a("s_waitcnt vmcnt(0)")
        self.lds_add1(CA, T1, 4)
        a("s_waitcnt lgkmcnt(0)\ns_branch L_sig1r")
        a.label("L_wait")
        self.lds_spin(CA, CK, 4)
        a("s_branch L_waitret")
        a.label("L_unsafe")
        a(f"s_mov_b32 s{FB}, 100\nv_mov_b32 v{T1}, {FIN_BAD}\nds_write_b32 v{PW}, v{T1}")
        a.label("L_redo")
        a(f"""
        s_waitcnt vmcnt(0) lgkmcnt(0)
        s_barrier
        s_barrier
        s_cmp_eq_u32 s{FB}, 0
        s_cbranch_scc1 L_redo_end
        s_mov_b32 s{MC}, 64
        s_mov_b32 s{MB_}, 0
        v_mov_b32 v{PW}, {LDS_W + 128}
        s_branch L_maxpass
        """)
        a.label("L_redo_end")
        a("s_waitcnt lgkmcnt(0)\ns_barrier\ns_branch L_exit")

    def helper_kv(self, first, n):
        a = self.a
        VV, ONES, T, ONE, WB_ = 22, 16, 24, 157, 20
        lab = a.newlabel("L_hkv")
        a(f"v_mov_b32 v{ONE}, 1\nv_mov_b32 v{WB_}, {LDS_W}")
        for i in range(4): a(f"v_mov_b32 v{ONES+i}, 0x3f803f80")
        self.kv_setup(T, VV, str(first))
        self.lds_spin(WB_, T, 4, sleep=2)
        self.k_part(); self.v_part(VV, ONES, T); self.kv_next()
        a(f"s_mov_b32 s35, 0\nv_mov_b32 v{WB_+1}, {W_LAND + 4*first}")
        a.label(lab)
        self.k_part(); self.v_part(VV, ONES, T); self.kv_next()
        a("s_waitcnt vmcnt(4)")
        self.lds_add1(WB_ + 1, ONE)
        a(f"v_add_u32 v{WB_+1}, 4, v{WB_+1}\ns_add_u32 s35, s35, 1\ns_cmp_lt_u32 s35, {n-1}\ns_cbranch_scc1 {lab}\ns_waitcnt vmcnt(0)")
        self.lds_add1(WB_ + 1, ONE)
    def helper(self):
        a = self.a
        VV, ONES, T, ONE, WB_, PB = 22, 16, 24, 157, 20, 12
        pc = lambda c: W_LAND + 4 * (c + 1)
        self.stamp(4)
        if "hprio" in self.opt: a(f"s_setprio {self.opt['hprio']}")
        a(f"v_mov_b32 v{self.WA}, {W_BAR}\nv_mov_b32 v{ONE}, 1\nv_mov_b32 v155, 0")
        a(f"v_mov_b32 v{WB_}, {LDS_W}\nv_mov_b32 v{PB}, 0\nv_mov_b32 v{PB+1}, 0")
        for i in range(4): a(f"v_mov_b32 v{ONES+i}, 0x3f803f80")
        if self.opt.get("late"): self.helper_kv(4, 4)
        else: self.helper_kv(2, 6)
        self.stamp(5)
        self.p3_ids()
        a(f"s_mov_b32 s{S_HALF}, 0")
        self.lds_spin(WB_, T, 4, W_P2 - LDS_W, sleep=16)
        a.label("L_hpf")
        a(f"s_cmp_ge_u32 s{S_IDX}, 30\ns_cbranch_scc1 L_hfin\ns_cmp_ge_u32 s{S_IDX}, 18\ns_cbranch_scc1 L_hpfa")
        self.make_vx(PB, 2, "4", "1", "16", "8", T)
        self.srd(12, P_CRE, 576 * 1152)
        a(f"""
        s_lshl_b32 s30, s{S_P3NB}, 6
        s_lshl_b32 s31, s{S_LW}, 4
        s_add_u32 s30, s30, s31
        s_mul_i32 s{S_CB}, s30, 1152
        s_mov_b32 s40, 0
        """)
        def cload(first, upto, lds0):
            lab = a.newlabel("L_cl"); ldsadj = lds0 - first * 8192
            a(f"s_mov_b32 s40, {first}")
            a.label(lab)
            a(f"""
            s_lshl_b32 s30, s40, 13
            s_add_u32 s30, s30, {ldsadj & 0xffffffff}
            s_lshl_b32 s31, s{S_LW}, 11
            s_add_u32 m0, s30, s31
            s_cmp_lt_u32 s40, 9
            s_cselect_b32 s12, s{P_CRE}, s{P_CIM}
            s_cselect_b32 s13, s{P_CRE+1}, s{P_CIM+1}
            s_cselect_b32 s31, 0, 9
            s_and_b32 s13, s13, 0xffff
            s_sub_u32 s31, s40, s31
            s_lshl_b32 s31, s31, 7
            s_add_u32 s32, s31, s{S_CB}
            buffer_load_dwordx4 v{PB}, s[12:15], s32 offen lds
            buffer_load_dwordx4 v{PB+1}, s[12:15], s32 offen offset:1024 lds
            s_add_u32 s40, s40, 1
            s_cmp_lt_u32 s40, {upto}
            s_cbranch_scc1 {lab}
            """)
        self.wait_prog(pc(2), T, 16); cload(0, 7, TSCR)
        a(f"s_cmp_lg_u32 s{S_HALF}, 0\ns_cbranch_scc1 L_hnp")
        self.b3_pre(158, 1)
        a.label("L_hnp")
        self.wait_prog(pc(5), T, 16); cload(9, 16, 0)
        a(f"s_add_u32 s32, s{S_CB}, {7*128}")
        for j in range(2):
            a(f"buffer_load_dwordx4 v[124:127], v{PB}, s[12:15], s32 offen offset:{j*128}\nbuffer_load_dwordx4 v[124:127], v{PB+1}, s[12:15], s32 offen offset:{1024+j*128}")
        self.wait_prog(pc(6), T, 8); cload(7, 9, 57344)
        a("s_branch L_hpfd")
        a.label("L_hpfa")
        self.a3_setup(PB, T)
        self.wait_prog(pc(2), T, 16); self.a3_issue(PB, 4)
        self.wait_prog(pc(5), T, 16); self.a3_issue(PB, 5)
        a.label("L_hpfd")
        a("s_waitcnt vmcnt(0)")
        self.lds_add1(WB_, ONE, W_G2 - LDS_W)
        self.stamp(6)
        a.label("L_hfin")
        a(f"s_cmp_lg_u32 s{S_HALF}, 0\ns_cbranch_scc1 L_hok")
        self.wait_prog(W_LAND + 28, T, sleep=32)
        self.final_check(T, "L_hredo", 4)
        a.label("L_hok")
        a(f"s_cmp_ge_u32 s{S_IDX}, 18\ns_cbranch_scc1 L_hopf")
        cload(16, 18, 73728)
        a(f"s_lshl_b32 s34, s{S_HALF}, 2\ns_add_u32 s34, s34, 4\ns_setprio 3\ns_branch L_b3main")
        a.label("L_hopf")
        if self.opt.get("opf"):
            a(f"""
            s_cmp_ge_u32 s{S_IDX}, 30
            s_cbranch_scc1 L_exit
            s_lshl_b32 s30, s{S_LW}, 2
            s_add_u32 s30, s30, {W_F4}
            v_mov_b32 v{T+2}, s30
            s_mul_i32 s34, s{S_P3T}, {OS}
            s_sub_u32 s31, s{S_P3NB}, 9
            s_lshl_b32 s31, s31, 12
            s_add_u32 s34, s34, s31
            s_add_u32 s34, s34, {OW + 12*1024}
            """)
            self.lds_spin(T + 2, T, 1)
            for n in range(4): a(f"buffer_load_dwordx4 v[32:35], v3, s[4:7], s34 offen offset:{n*1024}")
        a("s_branch L_exit")
        a.label("L_hredo")
        a(f"s_mov_b32 s{S_HALF}, 1\ns_waitcnt vmcnt(0) lgkmcnt(0)\ns_barrier")
        self.kv_setup(T, VV, "0")
        a("s_mov_b32 s35, 0")
        a.label("L_hredo1")
        self.k_part(); self.v_part(VV, ONES, T); self.kv_next()
        a("s_add_u32 s35, s35, 1\ns_cmp_lt_u32 s35, 8\ns_cbranch_scc1 L_hredo1\ns_waitcnt vmcnt(0) lgkmcnt(0)\ns_barrier\ns_barrier\ns_branch L_hpf")

    WA, ONE, BC = 156, 157, 47
    def arrive(self, T):
        a = self.a
        a(f"s_add_u32 s{self.BC}, s{self.BC}, 4")
        self.lds_add1(self.WA, self.ONE)
    def bar(self, T):
        self.arrive(T)
        self.lds_spin(self.WA, T, f"s{self.BC}")
    def gemm_cons(self, name, N, T, CW, rl, mfl, nfree, hooks={}):
        a = self.a
        self.lds_spin(CW, T, 4, sleep=1)
        a(f"ds_read_b32 v{T}, v{CW} offset:4")
        for x in rl(0): a(x)
        for s in range(N - 1):
            mf = mfl(s); p = f"{name}_{s}"
            a("s_waitcnt lgkmcnt(0)")
            a(f"v_readfirstlane_b32 s32, v{T}")
            a(mf[0])
            self.stampx(16)
            if s < nfree: self.lds_add1(CW, self.ONE, 256 + 4 * s)
            a(f"s_cmp_lt_u32 s32, 4\ns_cbranch_scc1 {p}s")
            a.label(p + "r")
            self.stubs.append((p, CW, T, 4 * (s + 1)))
            oth = rl(s + 1) + ([f"ds_read_b32 v{T}, v{CW} offset:{4*(s+2)}"] if s + 2 < N else [])
            ilv(a, mf[1:8], oth)
            if s in hooks: hooks[s]()
        a("s_waitcnt lgkmcnt(0)")
        if N - 1 < nfree: self.lds_add1(CW, self.ONE, 256 + 4 * (N - 1))
        for m in mfl(N - 1): a(m)
    def emit_stubs(self):
        a = self.a
        for p, CW, T, off in self.stubs:
            a.label(p + "s")
            self.lds_spin(CW, T, 4, off, sleep=int(self.opt.get('cslp', 0)))
            a(f"s_branch {p}r")
    def gemm_load(self, name, nslot, CB, ONE, T, issue):
        a = self.a
        a("s_mov_b32 s41, 0")
        if self.opt.get("early"): a(f"s_cmp_lg_u32 s{S_TYPE}, 2\ns_cbranch_scc1 {name}e")
        a.label(name + "w")
        a(f"s_cmp_lt_u32 s40, {nslot}\ns_cbranch_scc1 {name}")
        self.lds_spin(T + 1, T, 4)
        a.label(name)
        if self.opt.get("pause"):
            a(f"v_mov_b32 v{T+2}, {LDS_W}\nds_read_b32 v{T+3}, v{T+2} offset:{W_F1 - LDS_W}\ns_waitcnt lgkmcnt(0)\nv_readfirstlane_b32 s32, v{T+3}\ns_cmp_eq_u32 s32, 0\ns_cbranch_scc1 {name}p\ns_cmp_lt_u32 s{S_WAVE}, 8\ns_cbranch_scc1 {name}p")
            self.lds_spin(T + 2, T + 3, 4, sleep=1)
            a.label(name + "p")
        issue()
        a.label(name + "e")
        a(f"""
        s_cmp_lt_u32 s40, s45
        s_cselect_b32 s44, 2, 1
        s_add_u32 s44, s44, s40
        s_lshl_b32 s30, s44, 2
        s_add_u32 s30, s30, s43
        s_add_u32 s30, s30, {256 - 4*nslot}
        v_mov_b32 v{T+1}, s30
        ds_read_b32 v{T}, v{T+1}
        s_cmp_eq_u32 s41, 0
        s_cbranch_scc1 {name}n
        s_waitcnt vmcnt(6)
        """)
        self.lds_add1(CB, ONE)
        a.label(name + "n")
        a(f"""
        s_lshl_b32 s30, s40, 2
        s_add_u32 s30, s30, s43
        v_mov_b32 v{CB}, s30
        s_mov_b32 s40, s44
        s_mov_b32 s41, 1
        s_waitcnt lgkmcnt(0)
        v_readfirstlane_b32 s32, v{T}
        s_cmp_lt_u32 s40, s46
        s_cselect_b32 s32, 4, s32
        s_cmp_ge_u32 s40, s42
        s_cselect_b32 s32, 0, s32
        s_cmp_ge_u32 s32, 4
        s_cbranch_scc1 {name}
        s_waitcnt vmcnt(0)
        """)
        self.lds_add1(CB, ONE)
        a(f"s_mov_b32 s41, 0\ns_cmp_lt_u32 s40, s42\ns_cbranch_scc1 {name}w")
    def b1_loader(self):
        a = self.a
        VX, VB, CW, ONE, T = 60, 64, 66, 67, 68
        XB, WB, SL, NS = 16, 17, 18, 19
        self.make_vx(VX, 4, "16", "1", "8", "4", T)
        self.make_vx(VB, 2, "4", "1", "16", "8", T)
        self.srd(8, P_BX, 2048 * 1152)
        a(f"""
        s_cmp_lt_u32 s{S_LW}, 2
        s_cselect_b32 s12, s{P_BRE}, s{P_BIM}
        s_cselect_b32 s13, s{P_BRE+1}, s{P_BIM+1}
        s_and_b32 s13, s13, 0xffff
        s_mov_b32 s14, {576*1152}
        s_mov_b32 s15, 0x20000
        s_lshl_b32 s30, s{S_MB}, 7
        s_lshl_b32 s31, s{S_LW}, 5
        s_add_u32 s30, s30, s31
        s_mul_i32 s{XB}, s30, 1152
        s_cmp_eq_u32 s{S_TYPE}, 2
        s_cselect_b32 s30, s{S_CHA}, s{S_CHB}
        s_cselect_b32 s{NS}, 18, 9
        s_lshl_b32 s30, s30, 5
        s_and_b32 s31, s{S_LW}, 1
        s_lshl_b32 s31, s31, 4
        s_add_u32 s30, s30, s31
        s_mul_i32 s{WB}, s30, 1152
        v_mov_b32 v{CW}, {W_FULL}
        v_mov_b32 v{ONE}, 1
        s_lshr_b32 s27, s{S_WAVE}, 3
        """)
        def issue():
            a(f"""
            s_add_u32 s31, s40, s28
            s_sub_u32 s30, s31, 9
            s_cmp_ge_u32 s31, 9
            s_cselect_b32 s31, s30, s31
            s_lshl_b32 s31, s31, 7
            {"s_and_b32 s%d, s40, 3" % SL if NS1 == 4 else "s_mul_i32 s30, s40, 43" + chr(10) + "s_lshr_b32 s30, s30, 7" + chr(10) + "s_mul_i32 s30, s30, 3" + chr(10) + "s_sub_u32 s%d, s40, s30" % SL}
            s_mul_i32 s{SL}, s{SL}, {BSLOT}
            s_add_u32 s{SL}, s{SL}, {B1BASE}
            s_lshl_b32 s30, s{S_LW}, 12
            s_add_u32 m0, s30, s{SL}
            s_add_u32 s32, s31, s{XB}
            """)
            for n in range(4): a(f"buffer_load_dwordx4 v{VX+n}, s[8:11], s32 offen offset:{n*1024} lds")
            a(f"s_lshl_b32 s30, s{S_LW}, 11\ns_add_u32 s30, s30, s{SL}\ns_add_u32 m0, s30, 16384\ns_add_u32 s32, s31, s{WB}")
            for n in range(2): a(f"buffer_load_dwordx4 v{VB+n}, s[12:15], s32 offen offset:{n*1024} lds")
        def run():
            a(f"s_mov_b32 s43, {W_FULL}\ns_mov_b32 s45, {self.opt.get('ashare', 6)}")
            a(f"s_cmp_eq_u32 s{S_TYPE}, 2\ns_cselect_b32 s46, {NS1}, {0 if self.opt.get('sig1', '1') == '1' else NS1}")
            a.label("L_l1job")
            if self.opt.get("late"):
                a(f"s_cmp_lg_u32 s{NS}, 9\ns_cbranch_scc1 L_l1go\ns_cmp_lt_u32 s{S_WAVE}, 8\ns_cbranch_scc1 L_p1_fin\ns_mov_b32 s45, 0")
                self.helper_kv(2, 2)
                a.label("L_l1go")
            a(f"s_xor_b32 s40, s27, 1\ns_cmp_eq_u32 s27, 0\ns_cselect_b32 s42, {self.opt.get('ashare', 6)}, 9")
            self.gemm_load("L_l1", NS1, CW, ONE, T, issue)
            a(f"""
            s_add_u32 s30, s43, {256 + 32}
            v_mov_b32 v{T+1}, s30
            s_cmp_eq_u32 s{NS}, 9
            s_cbranch_scc1 L_l1end
            s_mov_b32 s45, 0
            s_mov_b32 s{NS}, 9
            s_sub_u32 s30, s{S_CHA}, s{S_CHB}
            s_mul_i32 s30, s30, {32*1152}
            s_sub_u32 s{WB}, s{WB}, s30
            s_add_u32 s43, s43, 36
            """)
            self.lds_spin(T + 1, T, 4, sleep=1)
            a("s_branch L_l1job")
            a.label("L_l1end")
            self.lds_spin(T + 1, T, 4, sleep=1)
        self.b1_run = run; self.b1_issue = issue

    def aux(self):
        a = self.a
        AX, AW, FX, ACC, T = 4, 8, 16, 80, 148
        SS, SLOT, DL, WM, WN = 40, 41, 42, 43, 44
        a.label("L_aux")
        a(f"""
        s_setprio 3
        s_mov_b32 s{S_HALF}, 0
        s_mov_b32 s{S_CH}, s{S_CHA}
        s_mov_b32 s62, 0
        s_mov_b32 s63, -1
        """)
        self.aux_start()
        a(f"s_cmp_eq_u32 s{S_TYPE}, 2\ns_cbranch_scc1 L_aux_sp")
        self.lam_early(f"s{S_CHB}")
        if not self.opt.get("nowarmx"):
            self.srd(12, P_BX, 2048 * 1152)
            a(f"""
            s_and_b32 s30, s{S_XCD}, 3
            s_mul_i32 s30, s30, 589824
            s_lshr_b32 s31, s{S_XCD}, 2
            s_mul_i32 s31, s31, 28
            s_add_u32 s31, s31, s{S_IDX}
            s_lshl_b32 s31, s31, 2
            s_add_u32 s31, s31, s{S_WAVE}
            s_mul_i32 s31, s31, 2688
            s_add_u32 s30, s30, s31
            v_lshlrev_b32 v16, 6, v2
            s_mov_b32 exec_hi, 0x3ff
            buffer_load_dword v154, v16, s[12:15], s30 offen
            s_mov_b32 exec_hi, -1
            """)
        a(f"""
        s_cmp_lt_u32 s{S_LW}, 2
        s_cselect_b32 s12, s{P_BRE}, s{P_BIM}
        s_cselect_b32 s13, s{P_BRE+1}, s{P_BIM+1}
        s_and_b32 s13, s13, 0xffff
        s_mov_b32 s14, {576*1152}
        s_mov_b32 s15, 0x20000
        s_lshl_b32 s30, s{S_IDX}, 1
        s_and_b32 s31, s{S_LW}, 1
        s_add_u32 s30, s30, s31
        s_mul_i32 s30, s30, 5952
        s_lshr_b32 s31, s{S_XCD}, 2
        s_mul_i32 s31, s31, {288*1152}
        s_add_u32 s45, s30, s31
        s_add_u32 s46, s45, 4096
        v_lshlrev_b32 v155, 6, v2
        """)
        if self.opt.get("wbat") == "0": a("buffer_load_dword v154, v155, s[12:15], s45 offen\ns_mov_b32 exec_hi, 0\nbuffer_load_dword v154, v155, s[12:15], s46 offen\ns_mov_b32 exec_hi, -1")
        a(f"s_lshr_b32 s{WM}, s{S_WAVE}, 1\ns_and_b32 s{WN}, s{S_WAVE}, 1\ns_lshl_b32 s30, s{WM}, 13")
        self.swz(AX, T, "s30")
        a(f"""
        v_bfe_u32 v{T+2}, v2, 2, 2
        v_lshl_add_u32 v{T+3}, v{T+1}, 3, v{T+2}
        v_lshlrev_b32 v{T+3}, 8, v{T+3}
        v_bfe_u32 v{T+4}, v2, 4, 1
        v_lshl_add_u32 v{T+3}, v{T+4}, 5, v{T+3}
        v_and_b32 v{T+4}, 3, v2
        v_lshl_add_u32 v{T+3}, v{T+4}, 3, v{T+3}
        v_add_u32 v{T+3}, 16384, v{T+3}
        s_lshl_b32 s30, s{WN}, 1
        v_xor_b32 v{T+4}, s30, v{T+2}
        v_lshl_add_u32 v{AW}, v{T+4}, 6, v{T+3}
        v_xor_b32 v{AW+1}, 64, v{AW}
        """)
        for i in range(64): a(f"v_mov_b32 v{ACC+i}, 0")
        a(f"s_mov_b32 s{SS}, 0\ns_mov_b32 s{SLOT}, 0\ns_barrier")
        self.stampx(16, True); self.stamp(61)
        def nextslot(stride, total):
            a(f"""
            s_add_u32 s30, s{SLOT}, {stride}
            s_cmp_eq_u32 s30, {total}
            s_cselect_b32 s30, 0, s30
            s_sub_u32 s{DL}, s30, s{SLOT}
            s_mov_b32 s{SLOT}, s30
            s_add_u32 s{SS}, s{SS}, 1
            """)
        def reads(s):
            l = [f"ds_read_b128 v[{FX+s*16+mt*4}:{FX+s*16+mt*4+3}], v{AX+s} offset:{mt*4096}" for mt in range(2)]
            for nt in range(2):
                for hf in range(2):
                    r = FX + s * 16 + 8 + nt * 4 + hf * 2
                    l.append(f"ds_read_b64_tr_b16 v[{r}:{r+1}], v{AW+nt} offset:{s*4096 + hf*1024}")
            return l
        for x in reads(0) + reads(1): a(x)
        a(f"s_cmp_eq_u32 s{S_TYPE}, 1\ns_cbranch_scc1 L_a1v")
        def a1loop(vtype, lab):
            a.label(lab)
            for s in range(4):
                a("s_waitcnt lgkmcnt(6)")
                if s == 2:
                    a(f"s_cmp_lt_u32 s{SS}, 9\ns_cbranch_scc1 {lab}b\ns_waitcnt lgkmcnt(0)")
                    a.label(lab + "b")
                    a("s_barrier")
                    self.stampx(16)
                mf = []
                for mt in range(2):
                    for nt in range(2):
                        d = ACC + (mt * 2 + nt) * 16
                        x = f"v[{FX+s*16+mt*4}:{FX+s*16+mt*4+3}]"; w = f"v[{FX+s*16+8+nt*4}:{FX+s*16+8+nt*4+3}]"
                        A, B = (x, w) if vtype else (w, x)
                        mf.append(f"v_mfma_f32_32x32x16_bf16 v[{d}:{d+15}], {A}, {B}, v[{d}:{d+15}]")
                ilv(a, mf, reads((s + 2) % 4))
                if s == 0: nextslot(32768, 163840)
                if s == 3 and not self.opt.get("warmb_old") and self.opt.get("wbat") != "0":
                    a(f"s_cmp_lg_u32 s{SS}, {self.opt.get('wbat', 2)}\ns_cbranch_scc1 {lab}w")
                    a("buffer_load_dword v154, v155, s[12:15], s45 offen\ns_mov_b32 exec_hi, 0\nbuffer_load_dword v154, v155, s[12:15], s46 offen\ns_mov_b32 exec_hi, -1\ns_nop 3")
                    a.label(lab + "w")
                if s == 1:
                    for r in (AX, AX + 1, AX + 2, AX + 3, AW, AW + 1): a(f"v_add_u32 v{r}, s{DL}, v{r}")
            a(f"s_cmp_lt_u32 s{SS}, 9\ns_cbranch_scc1 {lab}")
        a1loop(False, "L_a1qk")
        self.stamp(1); self.stamp(62)
        self.dbg_load()
        a(f"""
        s_lshl_b32 s30, s{S_NB}, 5
        s_lshl_b32 s31, s{WN}, 4
        s_add_u32 s30, s30, s31
        s_mul_i32 s31, s{S_MB}, {QS}
        s_add_u32 s31, s31, s30
        s_lshl_b32 s31, s31, 10
        s_lshl_b32 s32, s{WM}, 9
        s_add_u32 s31, s31, s32
        s_add_u32 s31, s31, {QKP}
        v_lshlrev_b32 v{T+2}, 4, v1
        v_lshl_add_u32 v{T+2}, v{T+1}, 10, v{T+2}
        s_mov_b32 s32, {QSCALE}
        s_cmp_ge_u32 s30, 144
        s_cselect_b32 s32, 1.0, s32
        s_mov_b32 s33, s32
        s_waitcnt lgkmcnt(0)
        """)
        for nt in range(2):
            for g in range(4):
                o = FX + (nt * 4 + g) * 4
                for mt in range(2):
                    d = ACC + (mt * 2 + nt) * 16 + 4 * g
                    a(f"v_pk_mul_f32 v[{d}:{d+1}], v[{d}:{d+1}], s[32:33]\nv_pk_mul_f32 v[{d+2}:{d+3}], v[{d+2}:{d+3}], s[32:33]")
                for mt in range(2):
                    d = ACC + (mt * 2 + nt) * 16 + 4 * g
                    a(f"v_cvt_pk_bf16_f32 v{o+2*mt}, v{d}, v{d+1}\nv_cvt_pk_bf16_f32 v{o+2*mt+1}, v{d+2}, v{d+3}")
                a(f"buffer_store_dwordx4 v[{o}:{o+3}], v{T+2}, s[4:7], s31 offen offset:{(g%2)*2048} {WT}")
                if g % 2 == 1: a("s_add_u32 s31, s31, 4096")
        a("s_branch L_a1done")
        a1loop(True, "L_a1v")
        self.stamp(1); self.stamp(62)
        self.dbg_load()
        a(f"""
        s_sub_u32 s30, s{S_NB}, 9
        s_lshl_b32 s30, s30, 7
        s_lshl_b32 s31, s{WN}, 6
        s_add_u32 s30, s30, s31
        s_lshl_b32 s31, s{S_MB}, 4
        s_lshl_b32 s32, s{WM}, 3
        s_add_u32 s31, s31, s32
        s_mul_i32 s31, s31, {VS}
        s_lshl_b32 s32, s30, 4
        s_add_u32 s31, s31, s32
        s_add_u32 s31, s31, {VT}
        v_mul_u32_u24 v{T+2}, {VS}, v{T+1}
        v_lshl_add_u32 v{T+2}, v1, 4, v{T+2}
        s_waitcnt lgkmcnt(0)
        s_cmp_ge_u32 s30, 576
        s_cbranch_scc1 L_a1done
        """)
        for mt in range(2):
            for m in range(2):
                for nt in range(2):
                    d = ACC + (mt * 2 + nt) * 16 + 8 * m
                    for r in range(4): a(f"v_cvt_pk_bf16_f32 v{d+r}, v{d+2*r}, v{d+2*r+1}")
                    a(f"buffer_store_dwordx4 v[{d}:{d+3}], v{T+2}, s[4:7], s31 offen offset:{nt*512} {WT}")
                a(f"s_add_u32 s31, s31, {2*VS}")
        a.label("L_a1done")
        self.stamp(2)
        if self.opt.get("drain1"): a("s_waitcnt vmcnt(0)"); self.stamp(7)
        a(f"s_mov_b32 s{S_HALF}, 1\ns_mov_b32 s{S_CH}, s{S_CHB}\ns_branch L_b1pre")
        a.label("L_aux_sp")
        a("s_barrier")
        self.zero_flags()
        self.lam_early(f"s{S_CHA}")
        a(f"""
        s_lshl_b32 s30, s{S_CHB}, 6
        v_lshl_add_u32 v23, v1, 1, s30
        global_load_ushort v166, v23, s[{P_LRE}:{P_LRE+1}]
        global_load_ushort v24, v23, s[{P_LIM}:{P_LIM+1}]
        global_load_ushort v154, v23, s[{P_LDT}:{P_LDT+1}]
        s_waitcnt vmcnt(0)
        v_lshl_or_b32 v166, v24, 16, v166
        """)
        AB, BF, WA, ONE, AC1, CW, RAW, AX2, AB2 = 8, 16, self.WA, self.ONE, 112, 155, 164, 144, 148
        T = 158; BC = self.BC
        PA = [164, 165, 12, 13, 14, 15]
        a.label("L_b1pre")
        for i in range(2): a(f"v_mov_b32 v{164+i}, v{10+i}")
        a(f"s_mov_b32 s{BC}, 0\nv_mov_b32 v{WA}, {W_BAR}\nv_mov_b32 v{ONE}, 1\nv_mov_b32 v{CW}, {W_FULL}\ns_lshl_b32 s48, s{S_LW}, 12\ns_lshl_b32 s49, s{S_LW}, 11")
        if self.opt.get("iss"): self.lds_add1(WA, ONE, W_ISS - W_BAR)
        self.swz(AB, T, B1BASE + 16384)
        a(f"s_sub_u32 s30, s48, 16384")
        for s in range(4): a(f"v_add_u32 v{AX+s}, s30, v{AB+s}")
        def publish():
            a(f"""
            s_cmp_eq_u32 s{S_TYPE}, 2
            s_cbranch_scc1 L_pubx
            s_lshl_b32 s30, s{S_NB}, 7
            s_add_u32 s31, s30, 128
            s_cmp_eq_u32 s{S_TYPE}, 1
            s_cselect_b32 s32, 1152, 0
            v_mul_u32_u24 v{T+2}, 18, v2
            v_add_u32 v{T+2}, s32, v{T+2}
            v_add_u32 v{T+3}, 18, v{T+2}
            v_max_u32 v{T+2}, s30, v{T+2}
            v_min_u32 v{T+3}, s31, v{T+3}
            v_min_u32 v{T+3}, 0x6c0, v{T+3}
            v_cmp_lt_u32 vcc, v{T+2}, v{T+3}
            v_sub_u32 v{T+2}, v{T+3}, v{T+2}
            v_mul_u32_u24 v{T+3}, {F1STRIDE}, v1
            s_and_b32 s31, s{S_MB}, {NSUB-1}
            s_lshl_b32 s31, s31, 7
            s_add_u32 s31, s31, {F1}
            """)
            a(f"s_waitcnt vmcnt(0)")
            self.dbg_verify()
            self.stamp(9)
            a(f"""
            s_mov_b64 exec, 1
            ds_add_rtn_u32 v{T+1}, v{WA}, v{ONE} offset:4
            s_mov_b64 exec, -1
            s_waitcnt lgkmcnt(0)
            v_readfirstlane_b32 s35, v{T+1}
            s_cmp_lg_u32 s35, 3
            s_cbranch_scc1 L_pubx
            s_mov_b64 exec, vcc
            buffer_atomic_add v{T+2}, v{T+3}, s[4:7], s31 offen sc1
            s_mov_b64 exec, -1
            """)
            if self.opt.get("rt"): self.stamp(53, True); a("s_waitcnt vmcnt(0)"); self.stamp(54, True)
            a.label("L_pubx")
        a.label("L_b1")
        for s in range(4): a(f"v_add_u32 v{AB2+s}, {2*BSLOT}, v{AB+s}\nv_add_u32 v{AX2+s}, {2*BSLOT}, v{AX+s}")
        PUB = int(self.opt.get("pubat", -1))
        if PUB < 0: publish()
        def rl(st):
            l = []; ax, ab = (AX, AB) if st % NS1 < 2 else (AX2, AB2); off = ((st % NS1) % 2) * BSLOT
            for s in range(4):
                b = BF + (st % 2) * 48 + s * 12
                l.append(f"ds_read_b128 v[{b}:{b+3}], v{ax+s} offset:{off}")
                for nt in range(2): l.append(f"ds_read_b128 v[{b+4+nt*4}:{b+7+nt*4}], v{ab+s} offset:{off + nt*4096}")
            return l
        def mfl(st):
            l = []
            for s in range(4):
                b = BF + (st % 2) * 48 + s * 12
                for nt in range(2):
                    d = AC1 + nt * 16; c = "0" if st == 0 and s == 0 else f"v[{d}:{d+15}]"
                    l.append(f"v_mfma_f32_32x32x16_bf16 v[{d}:{d+15}], v[{b}:{b+3}], v[{b+4+nt*4}:{b+7+nt*4}], {c}")
            return l
        def sp_hook():
            a(f"s_add_u32 s30, s{S_TYPE}, s{S_HALF}\ns_cmp_lg_u32 s30, 3\ns_cbranch_scc1 L_sph")
            a(f"s_cmp_lg_u32 s{S_WAVE}, 3\ns_cbranch_scc1 L_sph")
            self.f2flag(S_CHA, T + 2)
            a.label("L_sph")
        def h5():
            a(f"s_cmp_lg_u32 s{S_HALF}, 0\ns_cbranch_scc1 L_h5")
            self.dbg_load()
            a.label("L_h5")
        def h7():
            a(f"s_cmp_lg_u32 s{S_HALF}, 0\ns_cbranch_scc1 L_h7\ns_waitcnt vmcnt(0)")
            self.dbg_verify()
            self.stamp(1)
            a.label("L_h7")
        self.gemm_cons("L_g1", 9, T, CW, rl, mfl, 9, {3: sp_hook, 5: h5, 7: h7, PUB: publish})
        a(f"v_add_u32 v{CW}, 36, v{CW}\ns_nop 4")
        pass
        self.stamp(3)
        for i, r in enumerate((LR, LI, CR, CI, MUR, MUI)): a(f"v_mov_b32 v{r}, v{PA[i]}")
        for t in range(16):
            u, w, d = AC1 + t, AC1 + 16 + t, BS + 2 * t
            hi = t % 2; up, wp = u - hi, w - hi
            if self.opt.get("nopk"): a(f"v_mul_f32 v{d}, v{CR}, v{u}\nv_mul_f32 v{d+1}, v{CR}, v{w}\nv_fma_f32 v{d}, -v{CI}, v{w}, v{d}\nv_fmac_f32 v{d+1}, v{CI}, v{u}")
            else: a(f"v_pk_mul_f32 v[{d}:{d+1}], v[{CR}:{CI}], v[{up}:{up+1}] op_sel:[0,{hi}] op_sel_hi:[1,{hi}]")
            if not self.opt.get("nopk"): a(f"v_pk_fma_f32 v[{d}:{d+1}], v[{CR}:{CI}], v[{wp}:{wp+1}], v[{d}:{d+1}] op_sel:[1,{hi},0] op_sel_hi:[0,{hi},1] neg_lo:[1,0,0]")
            if t >= 1:
                g0 = BS if t == 1 else T + 2 + 2 * (t % 2); g1 = T + 2 + 2 * ((t + 1) % 2)
                self.cmac(g1, LR, g0, d)
        GR = T + 2; TT = T + 4
        a(f"""
        s_lshl_b32 s31, s{S_WAVE}, 9
        s_add_u32 s30, s31, {LDS_SCR}
        v_lshl_add_u32 v{TT}, v2, 3, s30
        ds_write_b64 v{TT}, v[{GR}:{GR+1}]
        v_lshlrev_b32 v{TT+1}, 3, v2
        v_add_u32 v{TT+1}, {LDS_SCR - 256}, v{TT+1}
        """)
        self.bar(T)
        EV = BF
        for j in range(8): a(f"ds_read_b64 v[{EV+2*j}:{EV+2*j+1}], v{TT+1} offset:{j*256}")
        a("s_waitcnt lgkmcnt(0)")
        self.partb(EV, T)
        def spill(op, base):
            a(f"s_lshl_b32 s30, s2, 2\ns_add_u32 s30, s30, s{S_WAVE}\ns_mul_i32 s30, s30, {12*1024}\ns_add_u32 s30, s30, {SPILL}")
            for i in range(10):
                a(f"buffer_{op}_dwordx4 v[{base+4*i}:{base+4*i+3}], v3, s[4:7], s30 offen offset:{(i%4)*1024}")
                if i % 4 == 3: a("s_add_u32 s30, s30, 4096")
            a(f"buffer_{op}_dwordx2 v[{base+40}:{base+41}], v3, s[4:7], s30 offen offset:2048")
        a(f"s_cmp_lg_u32 s{S_HALF}, 0\ns_cbranch_scc1 L_b1done")
        spill("store", BS)
        a("v_and_b32 v16, 0xffff, v166\nv_lshrrev_b32 v17, 16, v166\nv_mov_b32 v18, v154")
        self.lam_calc(16, 10)
        for i in range(2): a(f"v_mov_b32 v{164+i}, v{10+i}")
        self.swz(AB, T, B1BASE + 16384)
        a(f"s_mov_b32 s{S_HALF}, 1\ns_mov_b32 s{S_CH}, s{S_CHB}\ns_branch L_b1")
        a.label("L_b1done")
        self.stamp(4)
        a(f"s_add_u32 s46, s48, {TSCR}\ns_cmp_lg_u32 s{S_TYPE}, 2\ns_cbranch_scc1 L_nsp")
        spill("load", 108)
        a.label("L_nsp")
        self.wait_prog(W_LAND + 4, T, int(self.opt.get('s1', 4)))
        if self.opt.get("nop2"): a("s_setprio 0")
        a.label("L_p2")
        self.pass2(BF, T)
        a(f"s_cmp_lg_u32 s{S_TYPE}, 2\ns_cbranch_scc1 L_p2end\ns_cmp_eq_u32 s{S_CH}, s{S_CHA}\ns_cbranch_scc1 L_p2end")
        if self.opt.get("nopk"):
            for i in range(42): a(f"v_mov_b32 v{BS+i}, v{108+i}")
        else:
            for i in range(21): a(f"v_pk_mov_b32 v[{BS+2*i}:{BS+2*i+1}], v[{108+2*i}:{109+2*i}], v[{108+2*i}:{109+2*i}] op_sel:[0,1]")
        a(f"s_mov_b32 s{S_CH}, s{S_CHA}\ns_branch L_p2")
        a.label("L_p2end")
        self.stamp(6)
        self.lds_add1(WA, ONE, W_P2 - W_BAR)
        self.p3_ids()
        self.p3(T)

    def lam_early(self, ch):
        a = self.a
        a(f"""
        s_lshl_b32 s30, {ch}, 6
        v_lshl_add_u32 v23, v1, 1, s30
        global_load_ushort v16, v23, s[{P_LRE}:{P_LRE+1}]
        global_load_ushort v17, v23, s[{P_LIM}:{P_LIM+1}]
        global_load_ushort v18, v23, s[{P_LDT}:{P_LDT+1}]
        s_waitcnt vmcnt(0)
        """)
        self.lam_calc(16, 10)
    def cmac(self, d, m, g, c):
        if self.opt.get("nopk"):
            self.a(f"v_fma_f32 v{d}, v{m}, v{g}, v{c}\nv_fma_f32 v{d+1}, v{m}, v{g+1}, v{c+1}\nv_fma_f32 v{d}, -v{m+1}, v{g+1}, v{d}\nv_fmac_f32 v{d+1}, v{m+1}, v{g}")
            return
        self.a(f"v_pk_fma_f32 v[{d}:{d+1}], v[{m}:{m+1}], v[{g}:{g+1}], v[{c}:{c+1}] op_sel_hi:[0,1,1]")
        self.a(f"v_pk_fma_f32 v[{d}:{d+1}], v[{m}:{m+1}], v[{g}:{g+1}], v[{d}:{d+1}] op_sel:[1,1,0] op_sel_hi:[1,0,1] neg_lo:[1,0,0]")
    def cmul(self, d, m, g):
        if self.opt.get("nopk"):
            self.a(f"v_mul_f32 v{d}, v{m}, v{g}\nv_mul_f32 v{d+1}, v{m}, v{g+1}\nv_fma_f32 v{d}, -v{m+1}, v{g+1}, v{d}\nv_fmac_f32 v{d+1}, v{m+1}, v{g}")
            return
        self.a(f"v_pk_mul_f32 v[{d}:{d+1}], v[{m}:{m+1}], v[{g}:{g+1}] op_sel_hi:[0,1]")
        self.a(f"v_pk_fma_f32 v[{d}:{d+1}], v[{m}:{m+1}], v[{g}:{g+1}], v[{d}:{d+1}] op_sel:[1,1,0] op_sel_hi:[1,0,1] neg_lo:[1,0,0]")
    def lam_calc(self, T, P):
        a = self.a; L2E = f32(math.log2(math.e))
        LR, LI, CR, CI, MUR, MUI = range(P, P + 6)
        a(f"""
        v_lshlrev_b32 v{T}, 16, v{T}
        v_lshlrev_b32 v{T+1}, 16, v{T+1}
        v_lshlrev_b32 v{T+2}, 16, v{T+2}
        v_mul_f32 v{T+2}, {L2E}, v{T+2}
        v_exp_f32 v{T+2}, v{T+2}
        s_nop 0
        v_cvt_pk_bf16_f32 v{T+2}, v{T+2}, v{T+2}
        v_lshlrev_b32 v{T+2}, 16, v{T+2}
        v_mul_f32 v{T+3}, v{T+2}, v{T}
        v_mul_f32 v{T+4}, v{T+2}, v{T+1}
        v_mul_f32 v{T+3}, {L2E}, v{T+3}
        v_mul_f32 v{T+4}, {f32(1/(2*math.pi))}, v{T+4}
        v_exp_f32 v{T+3}, v{T+3}
        v_fract_f32 v{T+4}, v{T+4}
        v_cos_f32 v{T+5}, v{T+4}
        v_sin_f32 v{T+6}, v{T+4}
        s_nop 0
        v_mul_f32 v{LR}, v{T+3}, v{T+5}
        v_mul_f32 v{LI}, v{T+3}, v{T+6}
        v_mul_f32 v{T+3}, v{T}, v{T}
        v_fmac_f32 v{T+3}, v{T+1}, v{T+1}
        v_rcp_f32 v{T+3}, v{T+3}
        v_add_f32 v{T+4}, -1.0, v{LR}
        v_mul_f32 v{T+5}, v{T+4}, v{T}
        v_fmac_f32 v{T+5}, v{LI}, v{T+1}
        v_mul_f32 v{T+6}, v{LI}, v{T}
        v_fma_f32 v{T+6}, -v{T+4}, v{T+1}, v{T+6}
        v_add_f32 v{T+3}, v{T+3}, v{T+3}
        v_mul_f32 v{CR}, v{T+5}, v{T+3}
        v_mul_f32 v{CI}, v{T+6}, v{T+3}
        v_mov_b32 v{MUR}, v{LR}
        v_mov_b32 v{MUI}, v{LI}
        """)
        for i in range(4):
            a(f"""
            v_mul_f32 v{T+3}, v{MUI}, v{MUI}
            v_mul_f32 v{T+4}, v{MUR}, v{MUI}
            v_fma_f32 v{MUR}, v{MUR}, v{MUR}, -v{T+3}
            v_add_f32 v{MUI}, v{T+4}, v{T+4}
            """)

    def f2flag(self, ch, TT):
        self.a(f"""
        s_lshl_b32 s30, s{ch}, 5
        s_add_u32 s30, s30, s{S_MB}
        s_lshl_b32 s30, s30, 2
        s_add_u32 s30, s30, {F2}
        s_waitcnt vmcnt(0)
        """)
        self.flag_store([30], TT)
    def partb(self, EV, TT):
        a = self.a
        a(f"""
        v_cndmask_b32 v{LCR}, 0, v{EV}, s[62:63]
        v_cndmask_b32 v{LCI}, 0, v{EV+1}, s[62:63]
        v_cndmask_b32 v{PWR}, 1.0, v{MUR}, s[62:63]
        v_cndmask_b32 v{PWI}, 0, v{MUI}, s[62:63]
        """)
        for j in range(1, 7):
            if j % 2 == 1:
                a(f"s_cmp_lt_u32 s{S_WAVE}, {(j+1)//2}\ns_cbranch_scc1 L_pbne")
                self.cmul(TT, MUR, PWR); self.cmac(TT + 2, MUR, LCR, EV + 2 * j)
            else:
                self.cmul(PWR, MUR, TT); self.cmac(LCR, MUR, TT + 2, EV + 2 * j)
        EB = EV + 14
        a(f"""
        s_mul_i32 s30, s{S_MB}, {576*8}
        s_lshl_b32 s31, s{S_CH}, 8
        s_add_u32 s30, s30, s31
        s_add_u32 s30, s30, {EE - 256}
        v_lshlrev_b32 v{TT+2}, 3, v2
        """)
        self.cmac(TT, MUR, LCR, EB)
        a(f"""
        s_mov_b32 exec_lo, 0
        buffer_store_dwordx2 v[{TT}:{TT+1}], v{TT+2}, s[4:7], s30 offen {WT}
        s_mov_b32 exec_lo, -1
        s_cmp_eq_u32 s{S_HALF}, 0
        s_cbranch_scc1 L_pbne
        """)
        self.f2flag(S_CH, TT)
        a.label("L_pbne")
        self.cmul(TT + 4, MUR, MUR); self.cmul(CR, TT + 4, TT + 4); self.cmul(MUR, CR, CR); self.cmul(CR, MUR, MUR)

    def pass2(self, EV, T):
        a = self.a
        GR, GI, TT, AD, M2R = T, T + 1, T + 2, T + 4, CR
        a(f"""
        s_cmp_eq_u32 s{S_MB}, 0
        s_cbranch_scc1 L_pollF2_x
        s_sub_u32 s35, s{S_MB}, 1
        v_min_u32 v{AD}, s35, v2
        v_lshlrev_b32 v{AD}, 2, v{AD}
        s_lshl_b32 s34, s{S_CH}, 7
        s_add_u32 s34, s34, {F2}
        """)
        self.poll("L_pollF2", TT, AD, "s34", sleep=int(self.opt.get("s1", 4)))
        a(f"""
        s_add_u32 s8, s{P_WS}, {EE}
        s_addc_u32 s9, s{P_WS+1}, 0
        s_and_b32 s9, s9, 0xffff
        s_mov_b32 s10, {16*576*8}
        s_mov_b32 s11, 0x20000
        v_lshrrev_b32 v{TT}, 5, v2
        v_mul_u32_u24 v{TT}, {576*8}, v{TT}
        v_lshlrev_b32 v{AD}, 3, v1
        v_sub_u32 v{AD}, v{AD}, v{TT}
        s_sub_u32 s34, s{S_MB}, 1
        s_mul_i32 s34, s34, {576*8}
        v_add_u32 v{AD}, s34, v{AD}
        s_lshl_b32 s34, s{S_CH}, 8
        """)
        for i in range(8):
            a(f"buffer_load_dwordx2 v[{EV+2*i}:{EV+2*i+1}], v{AD}, s[8:11], s34 offen sc0 sc1")
            if i < 7: a(f"v_subrev_u32 v{AD}, {2*576*8}, v{AD}")
        a(f"""
        s_waitcnt vmcnt(0)
        """)
        for i in range(6, -1, -1): self.cmac(EV + 2 * i, M2R, EV + 2 * i + 2, EV + 2 * i)
        a(f"""
        v_mov_b32 v{AD}, v{EV}
        v_mov_b32 v{AD+1}, v{EV+1}
        s_nop 1
        v_permlane32_swap_b32 v{EV}, v{AD}
        v_permlane32_swap_b32 v{EV+1}, v{AD+1}
        s_nop 1
        """)
        self.cmac(EV, MUR, AD, EV)
        self.cmac(GR, PWR, EV, LCR)
        for t in range(16): self.cmac(BS + 2 * t, LR, GR if t == 0 else BS + 2 * t - 2, BS + 2 * t)
        a(f"""
        s_lshl_b32 s34, s{S_MB}, 2
        s_add_u32 s34, s34, s{S_WAVE}
        s_mul_i32 s34, s34, {HS}
        s_add_u32 s34, s34, s{S_CH}
        s_lshl_b32 s34, s34, 11
        s_add_u32 s34, s34, {HH}
        s_add_u32 s35, s34, {18*2048}
        v_lshrrev_b32 v{TT}, 5, v2
        v_lshlrev_b32 v{AD}, 4, v1
        v_mul_u32_u24 v{TT}, {1024+128}, v{TT}
        v_xor_b32 v{AD}, v{AD}, v{TT}
        v_xor_b32 v{AD+1}, {512+64}, v{AD}
        """)
        a(f"s_mov_b32 s30, s46\nv_add_u32 v{AD}, s30, v{AD}\nv_add_u32 v{AD+1}, s30, v{AD+1}")
        for c in range(2):
            for jj in range(2):
                d = EV + 16 + 8 * c + 4 * jj; n = "-" if c else ""
                for r in range(4): a(f"v_cvt_pk_bf16_f32 v{d+r}, {n}v{BS+16*jj+4*r+c}, {n}v{BS+16*jj+4*r+2+c}")
                a(f"ds_write_b128 v{AD+jj}, v[{d}:{d+3}] offset:{c*2048}")
        m = EV
        a(f"""
        v_lshrrev_b32 v{m}, 5, v2
        v_bfe_u32 v{m+1}, v2, 2, 2
        v_lshl_add_u32 v{m+1}, v{m}, 3, v{m+1}
        v_bfe_u32 v{m+2}, v2, 4, 1
        v_bfe_u32 v{m+3}, v2, 1, 1
        v_lshl_add_u32 v{m+2}, v{m+2}, 1, v{m+3}
        v_lshlrev_b32 v{m+3}, 2, v{m+2}
        v_xor_b32 v{m+1}, v{m+1}, v{m+3}
        v_and_b32 v{m+3}, 1, v2
        v_lshlrev_b32 v{m+3}, 3, v{m+3}
        v_lshl_add_u32 v{m+3}, v{m+2}, 9, v{m+3}
        v_add_u32 v{m+3}, s30, v{m+3}
        v_lshl_add_u32 v{m}, v{m+1}, 4, v{m+3}
        v_xor_b32 v{m+1}, 64, v{m}
        """)
        for c in range(2):
            for j in range(2):
                d = EV + 32 + 8 * c + 4 * j
                for hf in range(2): a(f"ds_read_b64_tr_b16 v[{d+2*hf}:{d+2*hf+1}], v{m+hf} offset:{c*2048 + j*256}")
        a("s_waitcnt lgkmcnt(0)")
        for c in range(2):
            for j in range(2):
                d = EV + 32 + 8 * c + 4 * j
                a(f"buffer_store_dwordx4 v[{d}:{d+3}], v3, s[4:7], s{34+c} offen offset:{j*1024} {WT}")
        a(f"""
        s_mul_i32 s30, s{S_MB}, 24
        s_add_u32 s31, s30, s{S_CH}
        s_lshl_b32 s31, s31, 2
        s_add_u32 s31, s31, s{S_WAVE}
        s_lshl_b32 s31, s31, 2
        s_add_u32 s31, s31, {F3}
        s_waitcnt vmcnt(0)
        """)
        self.flag_store([31], TT)

    def a3_setup(self, PB, T):
        a = self.a
        a(f"""
        v_lshrrev_b32 v{T}, 2, v2
        v_and_b32 v{T+1}, 3, v2
        v_and_b32 v{T+2}, 3, v{T}
        v_bfe_u32 v{T+3}, v{T}, 2, 1
        v_lshl_add_u32 v{T+2}, v{T+3}, 3, v{T+2}
        v_lshrrev_b32 v{T+3}, 3, v{T}
        v_lshl_add_u32 v{T+2}, v{T+3}, 2, v{T+2}
        v_mul_u32_u24 v{T+2}, 1152, v{T+2}
        v_lshl_add_u32 v{PB}, v{T+1}, 4, v{T+2}
        v_lshrrev_b32 v{T+2}, 1, v{T}
        v_mul_u32_u24 v{T+2}, 18, v{T+2}
        v_and_b32 v{T+3}, 1, v{T}
        v_add3_u32 v{T+2}, v{T+2}, v{T+3}, 16
        v_mul_u32_u24 v{T+2}, 1152, v{T+2}
        v_lshl_add_u32 v{PB+1}, v{T+1}, 4, v{T+2}
        s_sub_u32 s30, s{S_P3NB}, 9
        s_mul_i32 s{S_CB}, s30, 192
        s_mov_b32 s{S_ST3}, s{S_LW}
        """)
        self.srd(12, P_WO, 576 * 1152)
    def a3_issue(self, PB, cnt):
        a = self.a; lab = a.newlabel("L_a3i")
        a("s_mov_b32 s35, 0")
        a.label(lab)
        a(f"""
        s_mul_i32 s30, s{S_ST3}, 3072
        s_add_u32 s31, s30, {WO2}
        s_sub_u32 s30, s30, {18*3072}
        s_add_u32 s32, s{S_ST3}, 18
        s_sub_u32 s34, s{S_ST3}, 18
        s_cmp_lt_u32 s{S_ST3}, 18
        s_cselect_b32 s30, s31, s30
        s_cselect_b32 s32, s32, s34
        s_mul_i32 s31, s32, {18*1152}
        v_mov_b32 v{PB+2}, v{PB}
        s_cmp_lt_u32 s32, 32
        s_cbranch_scc1 {lab}m
        s_sub_u32 s32, s32, 32
        s_mul_i32 s31, s32, {8*18*1152}
        v_mov_b32 v{PB+2}, v{PB+1}
        """)
        a.label(lab + "m")
        a(f"s_add_u32 s31, s31, s{S_CB}")
        for nt in range(3):
            a(f"s_add_u32 m0, s30, {nt*1024}\ns_add_u32 s32, s31, {nt*64}\nbuffer_load_dwordx4 v{PB+2}, s[12:15], s32 offen lds")
        a(f"s_add_u32 s{S_ST3}, s{S_ST3}, 4\ns_add_u32 s35, s35, 1\ns_cmp_lt_u32 s35, {cnt}\ns_cbranch_scc1 {lab}")
    def xd(self, T, XD, ACC):
        a = self.a
        a(f"""
        v_lshrrev_b32 v{T+1}, 5, v2
        v_mul_u32_u24 v{T}, 1152, v1
        v_lshl_add_u32 v{T}, v{T+1}, 3, v{T}
        s_mul_i32 s30, s{S_P3T}, {32*1152}
        s_lshl_b32 s31, s{S_P3NB}, 7
        s_add_u32 s30, s30, s31
        v_add_u32 v{T}, s30, v{T}
        v_lshl_add_u32 v{T+1}, v{T+1}, 3, s31
        """)
        for e in range(8):
            a(f"global_load_dwordx2 v[{XD+2*e}:{XD+2*e+1}], v{T}, s[{P_BX}:{P_BX+1}] offset:{e*16}")
            a(f"global_load_dwordx2 v[{XD+16+2*e}:{XD+16+2*e+1}], v{T+1}, s[{P_DSK}:{P_DSK+1}] offset:{e*16}")
    def xd_math(self, T, XD, ACC):
        a = self.a
        for e in range(8):
            d = ACC + 4 * e
            for q in range(2):
                x = XD + 2 * e + q; k = XD + 16 + 2 * e + q
                a(f"""
                v_lshlrev_b32 v{T+2}, 16, v{x}
                v_lshlrev_b32 v{T+3}, 16, v{k}
                v_and_b32 v{x}, 0xffff0000, v{x}
                v_and_b32 v{k}, 0xffff0000, v{k}
                v_fmac_f32 v{d+2*q}, v{T+2}, v{T+3}
                v_fmac_f32 v{d+2*q+1}, v{x}, v{k}
                """)

    def iwarm(self, name):
        if self.opt.get("noiw"): return
        a = self.a
        a(f"s_mov_b64 exec, 0\ns_branch {name}_0")
        a.label(name + "_ret")
        a("s_mov_b64 exec, -1")
    def aux_final(self, T):
        a = self.a; lab = a.newlabel("L_af")
        a("s_mov_b32 s34, 4")
        self.wait_prog(W_LAND + 28, T, sleep=32)
        self.wait_prog(FIN_OK, T, sleep=int(self.opt.get("s2", 3)))
        a(f"v_cmp_eq_u32 vcc, s30, v{T+1}\ns_cbranch_vccz {lab}\ns_barrier\ns_barrier\ns_barrier\ns_mov_b32 s34, 8")
        a.label(lab)
        a("s_setprio 3")

    B3R = dict(EA=155, FC=16, FH=48, ACC=120, D=18)
    def hload(self, k):
        FH, D = self.B3R["FH"], self.B3R["D"]
        r = FH + 4 * (k % D)
        l = [f"buffer_load_dwordx4 v[{r}:{r+3}], v3, s[4:7], s50 offen offset:{(k%4)*1024}"]
        if k % 4 == 3: l.append("s_add_u32 s50, s50, 4096")
        return l
    def b3_pre(self, T, half):
        a = self.a; ACC, D = self.B3R["ACC"], self.B3R["D"]
        self.srd(16, P_OUT, OUT_BYTES)
        self.swz(4, T, [TSCR, 0][half])
        for i in range(4): a(f"v_add_u32 v{8+i}, {([57344, 73728][half] - [TSCR, 0][half]) & 0xffffffff}, v{4+i}")
        a(f"""
        s_mov_b32 s49, {half}
        s_mul_i32 s34, s{S_P3MB}, 384
        s_lshl_b32 s30, s{S_LW}, 2
        s_add_u32 s34, s34, s30
        s_add_u32 s34, s34, {F3}
        v_min_u32 v{T}, 17, v2
        v_lshlrev_b32 v{T}, 4, v{T}
        """)
        self.poll(f"L_pollF3{half}", T + 1, T, "s34", sleep=16)
        self.stamp(7)
        a(f"s_mul_i32 s50, s{S_P3T}, {HS*2048}\ns_add_u32 s50, s50, {HH + half*36*1024}")
        a(f"s_lshl_b32 s31, s{S_P3NB}, 11\ns_add_u32 s30, s50, s31\ns_add_u32 s30, s30, {18*1024}")
        for n in range(2): a(f"buffer_load_dwordx4 v[{ACC}:{ACC+3}], v3, s[4:7], s30 offen offset:{n*1024}")
        for k in range(D):
            for x in self.hload(k): a(x)
    def b3_main(self, T):
        a = self.a; EA, FC, FH, ACC, D = (self.B3R[k] for k in ("EA", "FC", "FH", "ACC", "D"))
        self.lds_spin(self.WA, T, "s34", W_G2 - W_BAR)
        self.stamp(8); self.stamp(59)
        if not self.opt.get("noiw"): a.pad_begin("PB3", int(self.opt.get("padn", 7)))
        def crd(k):
            st, s = k // 4, k % 4
            A, off = (4, st * 8192) if st < 7 else (8, (st - 7) * 8192)
            return [f"ds_read_b128 v[{FC+8*s+4*nt}:{FC+8*s+4*nt+3}], v{A+s} offset:{off + nt*4096}" for nt in range(2)]
        for k in range(3):
            for x in crd(k): a(x)
        NK = 36
        for k in range(NK):
            if k in (9, 18, 27): a(f"s_setprio {3 - k//9}")
            if self.opt.get("stb") and k % 3 == 0: self.stamp(30 + k // 3)
            if k == 12:
                a(f"s_cmp_eq_u32 s49, 0\ns_cbranch_scc1 L_b3g\ns_waitcnt vmcnt(12)")
                self.lds_add1(self.WA, self.ONE, W_G3 - W_BAR)
                a("s_waitcnt lgkmcnt(0)")
                a.label("L_b3g")
            if k == 24: self.lds_add1(self.WA, self.ONE, W_B8 - W_BAR); a("s_waitcnt lgkmcnt(0)")
            if k + 3 == 28:
                a("s_lshl_b32 s31, s49, 2")
                self.lds_spin(self.WA, T, "s31", W_G3 - W_BAR)
            if k == 22:
                a(f"""
                v_lshrrev_b32 v{T+2}, 4, v2
                v_and_b32 v{T+3}, 15, v2
                v_mul_u32_u24 v{T+4}, 1152, v{T+2}
                v_lshl_add_u32 v{T+4}, v{T+3}, 3, v{T+4}
                s_lshl_b32 s31, s{S_P3NB}, 7
                v_lshl_add_u32 v{T+5}, v{T+3}, 3, s31
                global_load_dwordx2 v[{FH+8}:{FH+9}], v{T+5}, s[{P_DSK}:{P_DSK+1}]
                s_lshl_b32 s30, s{S_P3T}, 1
                s_add_u32 s30, s30, s49
                s_mul_i32 s30, s30, {16*1152}
                s_add_u32 s30, s30, s31
                """)
                self.srd(8, P_BX, 2048 * 1152)
                for n in range(4): a(f"buffer_load_dwordx2 v[{FH+2*n}:{FH+2*n+1}], v{T+4}, s[8:11], s30 offen\ns_add_u32 s30, s30, {4*1152}")
            a(f"s_waitcnt vmcnt({min(D-1, NK-1-k) + (5 if k >= 22 else 0)}) lgkmcnt({min(4, 2*(NK-1-k))})")
            h = FH + 4 * (k % D); r = crd(k + 3) if k + 3 < NK else []
            for nt in range(2):
                c = FC + 8 * (k % 4) + 4 * nt; d = ACC + 16 * nt
                a(f"v_mfma_f32_32x32x16_bf16 v[{d}:{d+15}], v[{c}:{c+3}], v[{h}:{h+3}], " + ("0" if k == 0 else f"v[{d}:{d+15}]"))
                if nt == 0:
                    for x in r: a(x)
            if k + D < NK:
                for x in self.hload(k + D): a(x)
        self.stamp(10)
        OF = self.opt.get('outf', 'sc0_sc1').replace('_', ' ')
        a(f"""
        s_mul_i32 s31, s{S_LW}, {32*272}
        s_cmp_eq_u32 s49, 0
        s_cselect_b32 s30, {TSCR}, 0
        s_add_u32 s30, s30, s31
        v_lshrrev_b32 v{T+1}, 5, v2
        v_mul_u32_u24 v{T+6}, 272, v1
        v_lshl_add_u32 v{T+6}, v{T+1}, 4, v{T+6}
        v_add_u32 v{T+6}, s30, v{T+6}
        s_mul_i32 s30, s49, {16*272}
        s_add_u32 s31, s31, s30
        v_mul_u32_u24 v{T+1}, 272, v{T+2}
        v_lshl_add_u32 v{T+1}, v{T+3}, 4, v{T+1}
        v_add_u32 v{T+1}, s31, v{T+1}
        v_add_u32 v{T+4}, {TSCR}, v{T+1}
        v_mul_u32_u24 v{EA}, 4608, v{T+2}
        v_lshl_add_u32 v{EA}, v{T+3}, 4, v{EA}
        """)
        self.lds_spin(self.WA, T, 8, W_B8 - W_BAR)
        for e in range(8): a(f"ds_write_b128 v{T+6}, v[{ACC+4*e}:{ACC+4*e+3}] offset:{e*32}")
        self.lds_add1(self.WA, self.ONE, W_B8 - W_BAR)
        DD = FH + 12
        a(f"""
        s_lshl_b32 s30, s{S_P3T}, 1
        s_add_u32 s30, s30, s49
        s_mul_i32 s30, s30, {16*4608}
        s_lshl_b32 s31, s{S_P3NB}, 8
        s_add_u32 s30, s30, s31
        s_add_u32 s30, s30, {576*4}
        s_waitcnt vmcnt(0)
        v_lshlrev_b32 v{DD}, 16, v{FH+8}
        v_and_b32 v{DD+1}, 0xffff0000, v{FH+8}
        v_lshlrev_b32 v{DD+2}, 16, v{FH+9}
        v_and_b32 v{DD+3}, 0xffff0000, v{FH+9}
        """)
        for n in range(4):
            x = FH + 2 * n; t = DD + 4 + 4 * n
            a(f"v_lshlrev_b32 v{t}, 16, v{x}\nv_and_b32 v{t+1}, 0xffff0000, v{x}\nv_lshlrev_b32 v{t+2}, 16, v{x+1}\nv_and_b32 v{t+3}, 0xffff0000, v{x+1}")
        self.lds_spin(self.WA, T, 16, W_B8 - W_BAR)
        self.stamp(11); self.stamp(60)
        for n in range(4):
            a(f"ds_read_b128 v[{FC+8*n}:{FC+8*n+3}], v{T+1} offset:{n*4*272}\nds_read_b128 v[{FC+8*n+4}:{FC+8*n+7}], v{T+4} offset:{n*4*272}")
        for n in range(4):
            d = FC + 8 * n; t = DD + 4 + 4 * n
            a(f"""
            s_waitcnt lgkmcnt({6-2*n})
            v_pk_fma_f32 v[{d}:{d+1}], v[{t}:{t+1}], v[{DD}:{DD+1}], v[{d}:{d+1}]
            v_pk_fma_f32 v[{d+2}:{d+3}], v[{t+2}:{t+3}], v[{DD+2}:{DD+3}], v[{d+2}:{d+3}]
            v_pk_add_f32 v[{d}:{d+1}], v[{d}:{d+1}], v[{d+4}:{d+5}]
            v_pk_add_f32 v[{d+2}:{d+3}], v[{d+2}:{d+3}], v[{d+6}:{d+7}]
            buffer_store_dwordx4 v[{d}:{d+3}], v{EA}, s[16:19], s30 offen {OF}
            s_add_u32 s30, s30, {4*4608}
            """)
        a("s_branch L_exit")
        if a.pad: a.pad_end("PB3_ret")

    def p3(self, T):
        a = self.a
        self.srd(16, P_OUT, OUT_BYTES)
        a(f"s_cmp_ge_u32 s{S_IDX}, 18\ns_cbranch_scc1 L_a3")
        self.iwarm("PB3")
        self.b3_pre(T, 0)
        self.aux_final(T)
        a.label("L_b3main")
        self.b3_main(T)
        a.label("L_a3")
        OF = self.opt.get('outf', 'sc0_sc1').replace('_', ' ')
        self.iwarm("PA3")
        self.aux_final(T)
        a(f"s_cmp_ge_u32 s{S_IDX}, 30\ns_cbranch_scc1 L_exit")
        self.lds_spin(self.WA, T, "s34", W_G2 - W_BAR)
        self.stamp(8)
        AW, EA, T, FW, ACC, FO = 4, 6, 8, 16, 52, 100
        D = 16
        a(f"""
        s_lshl_b32 s34, s{S_P3T}, 7
        s_add_u32 s34, s34, {F4}
        v_lshlrev_b32 v{T+4}, 2, v1
        v_lshrrev_b32 v{T+1}, 5, v2
        v_bfe_u32 v{T+2}, v2, 2, 2
        v_lshl_add_u32 v{T+3}, v{T+1}, 3, v{T+2}
        v_lshlrev_b32 v{T+3}, 6, v{T+3}
        v_bfe_u32 v{T+2}, v2, 4, 1
        v_lshl_add_u32 v{T+3}, v{T+2}, 5, v{T+3}
        v_and_b32 v{T+2}, 3, v2
        v_lshl_add_u32 v{AW}, v{T+2}, 3, v{T+3}
        v_add_u32 v{AW+1}, {WO2}, v{AW}
        v_mul_u32_u24 v{EA}, 4608, v1
        v_lshl_add_u32 v{EA}, v{T+1}, 4, v{EA}
        v_lshl_add_u32 v{EA+1}, v{T+1}, 9, v{T+4}
        """)
        def rl3(s):
            st, off = (0, s * 3072) if s < 18 else (1, (s - 18) * 3072)
            l = []
            for nt in range(3):
                for hf in range(2):
                    r = FW + (s % 3) * 12 + nt * 4 + hf * 2
                    l.append(f"ds_read_b64_tr_b16 v[{r}:{r+1}], v{AW+st} offset:{off + nt*1024 + hf*256}")
            return l
        for x in rl3(0) + rl3(1): a(x)
        a(f"s_lshl_b32 s30, s{S_LW}, 2\ns_add_u32 s30, s30, {W_F4}\nv_mov_b32 v{T+6}, s30")
        self.poll("L_pollF4", T + 5, T + 4, "s34", sleep=1)
        if self.opt.get("opf"): a(f"ds_write_b32 v{T+6}, v{self.ONE}\ns_waitcnt lgkmcnt(0)")
        OLD = self.opt.get("oldf", "sc0_sc1").replace("_", " ")
        self.stamp(10); self.stamp(59)
        if not self.opt.get("noiw"): a.pad_begin("PA3", int(self.opt.get("padn", 7)))
        a(f"s_mul_i32 s30, s{S_P3T}, {OS}\ns_add_u32 s30, s30, {OW}")
        def oload(s):
            r = FO + 4 * (s % D)
            if s < 32:
                l = [f"buffer_load_dwordx4 v[{r}:{r+3}], v3, s[4:7], s30 offen offset:{(s%4)*1024} {OLD}"]
                if s % 4 == 3: l.append("s_add_u32 s30, s30, 4096")
                return l
            return [f"buffer_load_dword v{r+j}, v{EA+1}, s[4:7], s30 offen offset:{(s-32)*1024 + j*128} {OLD}" for j in range(4)]
        cnt = [1] * 32 + [4] * 4
        for s in range(D):
            for x in oload(s): a(x)
        for s in range(36):
            if self.opt.get("stb") and s % 3 == 0: self.stamp(30 + s // 3)
            out = sum(cnt[s + 1:min(36, s + D)])
            a(f"s_waitcnt vmcnt({out}) lgkmcnt({6 if s < 35 else 0})")
            mf = []
            for nt in range(3):
                d = ACC + nt * 16; w = FW + (s % 3) * 12 + nt * 4; o = FO + 4 * (s % D)
                c = "0" if s == 0 else f"v[{d}:{d+15}]"
                mf.append(f"v_mfma_f32_32x32x16_bf16 v[{d}:{d+15}], v[{w}:{w+3}], v[{o}:{o+3}], {c}")
            ilv(a, mf, rl3(s + 2) if s + 2 < 36 else [])
            if s + D < 36:
                for x in oload(s + D): a(x)
            if s == 33:
                a(f"""
                s_mul_i32 s31, s{S_LW}, 11264
                s_add_u32 s31, s31, 55296
                v_mul_u32_u24 v{T}, 272, v1
                v_lshl_add_u32 v{T}, v{T+1}, 4, v{T}
                v_add_u32 v{T}, s31, v{T}
                v_lshrrev_b32 v{T+2}, 4, v2
                v_and_b32 v{T+3}, 15, v2
                v_mul_u32_u24 v{T+4}, 272, v{T+2}
                v_lshl_add_u32 v{T+4}, v{T+3}, 4, v{T+4}
                v_add_u32 v{T+4}, s31, v{T+4}
                v_mul_u32_u24 v{T+5}, 4608, v{T+2}
                v_lshl_add_u32 v{T+5}, v{T+3}, 4, v{T+5}
                """)
            if s == 34:
                a(f"""
                v_lshrrev_b32 v{T+2}, 3, v2
                v_and_b32 v{T+3}, 7, v2
                v_mul_u32_u24 v{T+6}, 272, v{T+2}
                v_lshl_add_u32 v{T+6}, v{T+3}, 4, v{T+6}
                v_add_u32 v{T+6}, s31, v{T+6}
                v_mul_u32_u24 v{T+7}, 4608, v{T+2}
                v_lshl_add_u32 v{T+7}, v{T+3}, 4, v{T+7}
                s_mul_i32 s30, s{S_P3T}, {32*4608}
                s_sub_u32 s31, s{S_P3NB}, 9
                s_mul_i32 s31, s31, 384
                s_add_u32 s30, s30, s31
                s_add_u32 s31, s30, 256
                """)
        self.stamp(11); self.stamp(60)
        a("s_nop 9")
        for e in range(8): a(f"ds_write_b128 v{T}, v[{ACC+4*e}:{ACC+4*e+3}] offset:{e*32}")
        a("s_waitcnt lgkmcnt(4)")
        for n in range(8): a(f"ds_read_b128 v[{FO+4*n}:{FO+4*n+3}], v{T+4} offset:{n*4*272}")
        a("s_waitcnt lgkmcnt(6)")
        for e in range(4): a(f"ds_write_b128 v{T}, v[{ACC+32+4*e}:{ACC+32+4*e+3}] offset:{e*32}")
        for n in range(4): a(f"ds_read_b128 v[{FO+32+4*n}:{FO+32+4*n+3}], v{T+6} offset:{n*8*272}")
        for n in range(8):
            a(f"s_waitcnt lgkmcnt({min(14, 15-n)})\nbuffer_store_dwordx4 v[{FO+4*n}:{FO+4*n+3}], v{T+5}, s[16:19], s30 offen {OF}\ns_add_u32 s30, s30, {4*4608}")
        for n in range(4):
            a(f"s_waitcnt lgkmcnt({3-n})\nbuffer_store_dwordx4 v[{FO+32+4*n}:{FO+32+4*n+3}], v{T+7}, s[16:19], s31 offen {OF}\ns_add_u32 s31, s31, {8*4608}")
        a("s_branch L_exit")
        if a.pad: a.pad_end("PA3_ret")

    def finish(self):
        a = self.a
        a.label("L_exit")
        if self.stamp_on:
            self.stamp(12)
            a("s_waitcnt vmcnt(0)")
            self.stamp(13); a(f"v_writelane_b32 v{VST}, s98, 0\nv_writelane_b32 v{VST}, s98, 14")
            a(f"""
            s_lshl_b32 s30, s2, 4
            s_add_u32 s30, s30, s{S_WAVE}
            s_lshl_b32 s30, s30, 8
            s_add_u32 s30, s30, {STB}
            v_lshlrev_b32 v3, 2, v2
            buffer_store_dword v{VST}, v3, s[4:7], s30 offen
            """)
            if "probe" in self.opt:
                k = int(self.opt["probe"])
                a(f"""
                v_readlane_b32 s30, v{VST}, 14
                v_readlane_b32 s31, v{VST}, {k}
                s_nop 3
                s_sub_u32 s32, s31, s30
                s_cmp_eq_u32 s31, 0
                s_cselect_b32 s32, 0, s32
                s_lshr_b32 s31, s{S_WAVE}, 2
                s_cmp_lg_u32 s31, {self.opt.get("pg", 0)}
                s_cselect_b32 s32, 0, s32
                s_cmp_ge_u32 s{S_IDX}, 28
                s_cselect_b32 s32, 0, s32
                s_min_u32 s32, s32, 8000
                s_lshl_b32 s32, s32, 1
                s_add_u32 s32, s32, 7000
                """)
                a.label("L_probe")
                a("s_sleep 4\ns_memrealtime s[94:95]\ns_waitcnt lgkmcnt(0)\ns_sub_u32 s33, s94, s30\ns_cmp_lt_u32 s33, s32\ns_cbranch_scc1 L_probe")
        a("s_endpgm")
        self.emit_stubs()
        a.label("L_end")
        a("s_endpgm")

def gen_mega(name, stamp=False, opt=None):
    g = G(stamp, opt)
    g.a.raw(kernel_header(name))
    g.a.label('L_code0')
    g.prologue(); g.p1_loader(); g.attention(1); g.aux(); g.finish()
    return g.a.text(), kernel_desc(name, NV, 100)

if __name__ == "__main__":
    import sys
    from build import *
    KN = NAME + "_kernel"
    out = sys.argv[1]; stamp = len(sys.argv) > 2 and sys.argv[2] == "1"
    opt = dict((kv.split("=") + ["1"])[:2] for kv in sys.argv[3:])
    for k, v in (("pubat", "-1"), ("warmb_old", "1"), ("sig1", "0")): opt.setdefault(k, v)
    if "late" in opt:
        opt.update(early="off", pubat="-1", sig1="0", sponly="1", nowarmx="1"); NS1 = 3; B1BASE = 20480
    opt = {k: v for k, v in opt.items() if v != "off"}
    if "f1s" in opt: F1STRIDE = int(opt["f1s"])
    if "ldf" in opt: LDF = opt["ldf"].replace("_", " ").strip()
    if "wt" in opt: WT = opt["wt"].replace("_", " ")
    compose([gen_mega(KN, stamp, opt)], [(KN, 256, 768, LDS_TOTAL)], out)
    assemble(out)
```

```python
from asmlib import *
from lay2 import *
import math, struct
def f32(x): return "0x%08x" % struct.unpack("<I", struct.pack("<f", x))[0]
QSCALE = f32(18 ** -0.5 * math.log2(math.e))
WT = "sc0 sc1"
LDF = "sc0 sc1"
SPIN_MAX = 20000
P_AX, P_WQKV, P_WO, P_BX, P_LRE, P_LIM, P_BRE, P_BIM, P_CRE, P_CIM, P_LDT, P_DSK, P_OUT, P_DBG, P_WS = range(64, 94, 2)
S_WAVE, S_XCD, S_IDX, S_MB, S_NB, S_TYPE, S_CHB, S_CHA, S_HALF, S_CH = 3, 20, 21, 22, 23, 24, 25, 26, 27, 29
S_P3MB, S_P3NB, S_HD, S_LW, S_P3T = 37, 38, 39, 51, 57
S_GK, S_K4, S_GV, S_LP = 52, 54, 55, 56
S_HB, S_CB, S_SL3, S_ST3 = 52, 53, 54, 55
NV = 168
VST = 167
BS = 64
SPILL = 0x1200000
LR, LI, CR, CI, LCR, LCI, PWR, PWI, MUR, MUI = range(BS + 32, BS + 42)
C0, CHB = 5, 19968
LDS_W = 8 * CHB
W_LAND, W_PROG, W_UNS, W_BAR, W_DRN = LDS_W, LDS_W + 64, LDS_W + 96, LDS_W + 100, LDS_W + 104
W_F1 = LDS_W + 108
LDS_SCR = LDS_W + 512
B1BASE, BSLOT = 0, 24576
NS1 = 4
R3 = [100352, 124928, 2048, 26624]
W_OK = 8 * 19968 + 112
W_P2, W_G2, W_G3 = 8 * 19968 + 116, 8 * 19968 + 120, 8 * 19968 + 124
TSCR = 100352
W_B8 = 8 * 19968 + 132
W_F4 = 8 * 19968 + 144
W_ISS = 8 * 19968 + 136
W_K0 = 8 * 19968 + 140
W_PF = 8 * 19968 + 160
FIN_OK, FIN_BAD = 0x40000000, 0x50000000
R3BASE = 2048
WO2 = 100352
QS, VS, OS, HS = 289, 9344, 37 * 1024, 37
def pad_touch():
    pads = [QKP + (q * QS + 288) * 1024 for q in range(16)] + [VT + o * VS + 9216 for o in range(256)]
    pads += [OW + t * OS + 36 * 1024 for t in range(64)] + [HH + (t * HS + 36) * 2048 for t in range(64)] + [EE + 0x80000, FL + 0x80000]
    G = 1 << 20
    seen = {}
    for p in pads: seen.setdefault(p // G, p)
    return sorted(seen.values())
F1STRIDE = 128 * NSUB
W_FULL, W_FREE = 8 * 19968 + 2560, 8 * 19968 + 2816
R6 = [100352, 124928, 2048, 26624, 51200, 75776]

def ilv(a, mf, other):
    n = len(mf); k = 0
    for i, m in enumerate(mf):
        a(m)
        upto = (len(other) * (i + 1) + n - 2) // (n - 1) if i < n - 1 else len(other)
        upto = min(upto, len(other))
        while k < upto: a(other[k]); k += 1

class G:
    def __init__(self, stamp=False, opt=None):
        self.a = Asm(); self.stamp_on = stamp; self.opt = opt or {}; self.stubs = []
    def stamp(self, k, real=False):
        if not self.stamp_on: return
        op = "s_memrealtime" if (real or k not in (62, 61, 60, 59)) else "s_memtime"
        self.a(f"{op} s[94:95]\ns_waitcnt lgkmcnt(0)\nv_writelane_b32 v{VST}, s94, {k}")
    def stampx(self, base, force=False):
        if not self.stamp_on or not (force or self.opt.get("stx")): return
        self.a(f"s_memrealtime s[94:95]\ns_add_u32 m0, s96, {base}\ns_add_u32 s96, s96, 1\ns_waitcnt lgkmcnt(0)\nv_writelane_b32 v{VST}, s94, m0")
    def srd(self, d, p, n):
        self.a(f"s_mov_b32 s{d}, s{p}\ns_and_b32 s{d+1}, s{p+1}, 0xffff\ns_mov_b32 s{d+2}, {n}\ns_mov_b32 s{d+3}, 0x20000")
    def poll(self, lab, vdst, voff, soff, n=1, want="1", sleep=2):
        a = self.a
        ld = f"buffer_load_dword v{vdst}, v{voff}, s[4:7], {soff} offen sc0 sc1" if n == 1 else f"buffer_load_dwordx4 v[{vdst}:{vdst+3}], v{voff}, s[4:7], {soff} offen sc0 sc1"
        a("s_mov_b32 s33, 0")
        a.label(lab)
        a(ld + "\ns_waitcnt vmcnt(0)")
        if n == 4:
            a(f"v_and_b32 v{vdst}, v{vdst}, v{vdst+1}\nv_and_b32 v{vdst+2}, v{vdst+2}, v{vdst+3}\nv_and_b32 v{vdst}, v{vdst}, v{vdst+2}")
        a(f"""
        v_cmp_ne_u32 vcc, {want}, v{vdst}
        s_add_u32 s33, s33, 1
        s_cmp_gt_u32 s33, {SPIN_MAX}
        s_cbranch_scc1 {lab}_x
        s_cbranch_vccz {lab}_x
        s_sleep {sleep}
        s_branch {lab}
        """)
        a.label(lab + "_x")
    def lds_spin(self, vaddr, vtmp, want, off=0, sleep=0):
        a = self.a; lab = a.newlabel("L_sp")
        a("s_mov_b32 s33, 0")
        a.label(lab)
        a(f"""
        ds_read_b32 v{vtmp}, v{vaddr} offset:{off}
        s_add_u32 s33, s33, 1
        s_waitcnt lgkmcnt(0)
        v_readfirstlane_b32 s32, v{vtmp}
        s_cmp_ge_u32 s32, {want}
        s_cbranch_scc1 {lab}x
        {f"s_sleep {sleep}" if sleep else ""}
        s_cmp_lt_u32 s33, {SPIN_MAX*16}
        s_cbranch_scc1 {lab}
        """)
        a.label(lab + "x")
    def lds_add1(self, vaddr, vone, off=0):
        self.a(f"s_mov_b64 exec, 1\nds_add_u32 v{vaddr}, v{vone} offset:{off}\ns_mov_b64 exec, -1")
    def flag_store(self, sregs, T):
        a = self.a
        a(f"v_mov_b32 v{T}, 0\nv_mov_b32 v{T+1}, 1\ns_mov_b64 exec, 1")
        for r in sregs: a(f"buffer_store_dword v{T+1}, v{T}, s[4:7], s{r} offen {WT}")
        a("s_mov_b64 exec, -1")
    def warm(self, items, T, dst):
        a = self.a
        if self.opt.get("nowarm"): return
        a(f"s_lshl_b32 s30, s{S_LW}, 8\ns_add_u32 s30, s30, s2\ns_lshl_b32 s30, s30, 10\nv_add_u32 v{T}, s30, v3")
        for (p, n) in items:
            self.srd(8, p, n)
            for r in range((n + (1 << 20) - 1) >> 20):
                a(f"s_mov_b32 s30, {r << 20}\nbuffer_load_dwordx4 v[{dst}:{dst+3}], v{T}, s[8:11], s30 offen")
    def warmx(self, items, T, dst):
        a = self.a
        a(f"s_lshl_b32 s30, s{S_IDX}, 2\ns_add_u32 s30, s30, s{S_LW}\ns_lshl_b32 s30, s30, 10\nv_add_u32 v{T}, s30, v3")
        for (p, n) in items:
            self.srd(8, p, n)
            for r in range((n + (1 << 17) - 1) >> 17):
                a(f"s_mov_b32 s30, {r << 17}\nbuffer_load_dwordx4 v[{dst}:{dst+3}], v{T}, s[8:11], s30 offen")
    def make_vx(self, dst, n, sa, sb, sc1, sc0, T):
        a = self.a
        a(f"""
        v_lshrrev_b32 v{T}, 3, v2
        v_and_b32 v{T+1}, 7, v2
        v_lshrrev_b32 v{T+2}, 1, v{T}
        v_xor_b32 v{T+1}, v{T+1}, v{T+2}
        v_lshrrev_b32 v{T+2}, 2, v{T}
        v_and_b32 v{T}, 3, v{T}
        v_mul_u32_u24 v{T+2}, {sa}, v{T+2}
        v_mul_u32_u24 v{T}, {sb}, v{T}
        v_add_u32 v{T}, v{T}, v{T+2}
        v_mul_u32_u24 v{T}, 1152, v{T}
        v_lshl_add_u32 v{dst}, v{T+1}, 4, v{T}
        v_xor_b32 v{T+1}, 4, v{T+1}
        v_lshl_add_u32 v{dst+1}, v{T+1}, 4, v{T}
        s_mul_i32 s34, {sc0}, 1152
        s_sub_u32 s34, s34, 1024
        v_add_u32 v{dst+1}, s34, v{dst+1}
        """)
        if n == 4:
            a(f"s_mul_i32 s34, {sc1}, 1152\ns_sub_u32 s34, s34, 2048\nv_add_u32 v{dst+2}, s34, v{dst}\nv_add_u32 v{dst+3}, s34, v{dst+1}")
    def swz(self, Z, T, add=0):
        a = self.a
        a(f"""
        v_lshrrev_b32 v{T+1}, 5, v2
        v_bfe_u32 v{T+2}, v1, 1, 3
        v_xor_b32 v{T+2}, v{T+2}, v{T+1}
        v_lshlrev_b32 v{T+3}, 7, v1
        v_add_u32 v{T+3}, {add}, v{T+3}
        """)
        for s in range(4): a(f"v_xor_b32 v{T+4}, {2*s}, v{T+2}\nv_lshl_add_u32 v{Z+s}, v{T+4}, 4, v{T+3}")

    def prologue(self):
        a = self.a
        a(f"""
        s_cmp_ge_u32 s2, 256
        s_cbranch_scc1 L_end
        {"s_memrealtime s[98:99]" if self.stamp_on else ""}
        s_load_dwordx16 s[64:79], s[0:1], 0
        s_load_dwordx8 s[80:87], s[0:1], 64
        s_load_dwordx4 s[88:91], s[0:1], 96
        s_load_dwordx2 s[92:93], s[0:1], 112
        v_lshrrev_b32 v1, 6, v0
        v_and_b32 v2, 63, v0
        v_readfirstlane_b32 s{S_WAVE}, v1
        v_lshlrev_b32 v3, 4, v2
        v_and_b32 v1, 31, v0
        s_and_b32 s{S_XCD}, s2, 7
        s_lshr_b32 s{S_IDX}, s2, 3
        """)
        if self.stamp_on: a(f"v_mov_b32 v{VST}, 0\ns_mov_b32 s96, 0")
        if self.stamp_on and self.opt.get("st0"): a(f"s_waitcnt lgkmcnt(0)"); self.stamp(2)
        a(f"""
        s_and_b32 s30, s{S_XCD}, 3
        s_lshl_b32 s30, s30, 2
        s_and_b32 s31, s{S_IDX}, 3
        s_add_u32 s{S_MB}, s30, s31
        s_lshl_b32 s{S_HD}, s{S_XCD}, 2
        s_add_u32 s{S_HD}, s{S_HD}, s31
        s_lshr_b32 s30, s{S_XCD}, 2
        s_lshr_b32 s31, s{S_IDX}, 2
        s_mul_i32 s32, s30, 7
        s_add_u32 s{S_NB}, s32, s31
        s_mul_i32 s32, s30, 9
        s_add_u32 s{S_CHB}, s32, s31
        s_add_u32 s{S_CHA}, s32, 8
        s_cmp_ge_u32 s{S_NB}, 9
        s_cselect_b32 s{S_TYPE}, 1, 0
        s_cmp_ge_u32 s{S_IDX}, 28
        s_cselect_b32 s{S_TYPE}, 2, s{S_TYPE}
        s_and_b32 s{S_LW}, s{S_WAVE}, 3
        """)
        G_ = int(self.opt.get("rotg", 3))
        a(f"s_and_b32 s30, s{S_IDX}, 3\ns_lshr_b32 s31, s{S_IDX}, 2\ns_add_u32 s30, s30, s31")
        if G_ == 1: a("s_mov_b32 s28, 0")
        elif G_ == 2: a("s_and_b32 s30, s30, 1\ns_mul_i32 s28, s30, 5")
        elif G_ == 3: a("s_mul_i32 s31, s30, 43\ns_lshr_b32 s31, s31, 7\ns_mul_i32 s31, s31, 3\ns_sub_u32 s30, s30, s31\ns_mul_i32 s28, s30, 3")
        elif G_ == 4: a("s_and_b32 s30, s30, 3\ns_mul_i32 s28, s30, 9\ns_lshr_b32 s28, s28, 2")
        a(f"""
        s_cmp_lt_u32 s{S_WAVE}, 4
        s_cbranch_scc1 L_aux
        """)

    def p3_ids(self):
        self.a(f"""
        s_lshl_b32 s{S_P3MB}, s{S_XCD}, 1
        s_and_b32 s30, s{S_IDX}, 1
        s_add_u32 s{S_P3MB}, s{S_P3MB}, s30
        s_lshr_b32 s{S_P3NB}, s{S_IDX}, 1
        s_lshl_b32 s{S_P3T}, s{S_P3MB}, 2
        s_add_u32 s{S_P3T}, s{S_P3T}, s{S_LW}
        """)

    def p1_loader(self):
        a = self.a
        VX, T = 4, 12
        SI, SB, ST, SL = 41, 43, 44, 45
        a(f"""
        s_cmp_eq_u32 s{S_TYPE}, 2
        s_cbranch_scc1 L_p1l_sp
        s_mov_b32 s{SI}, 0
        s_sub_u32 s42, 9, s28
        s_lshl_b32 s{SL}, s{S_LW}, 12
        s_cmp_ge_u32 s{S_WAVE}, 8
        s_cbranch_scc1 L_p1l_w
        s_cmp_eq_u32 s{S_TYPE}, 0
        s_cselect_b32 s46, 2, 1
        s_cselect_b32 s47, 32, 16
        s_cselect_b32 s48, 16, 4
        s_lshr_b32 s30, s{S_LW}, 1
        s_lshl_b32 s30, s30, 6
        s_and_b32 s31, s{S_LW}, 1
        s_add_u32 s30, s30, s31
        s_lshl_b32 s31, s{S_LW}, 5
        s_cmp_eq_u32 s{S_TYPE}, 0
        s_cselect_b32 s30, s30, s31
        s_lshl_b32 s31, s{S_MB}, 7
        s_add_u32 s30, s30, s31
        s_mul_i32 s{SB}, s30, 1152
        s_mov_b32 s{ST}, 128
        """)
        self.make_vx(VX, 4, "8", "s46", "s47", "s48", T)
        a("s_waitcnt lgkmcnt(0)")
        self.srd(8, P_AX, 2048 * 1152)
        a("s_branch L_p1l_go")
        a.label("L_p1l_w")
        a(f"""
        s_mul_i32 s30, s{S_LW}, {16*3456}
        s_lshl_b32 s31, s{S_NB}, 8
        s_add_u32 s{SB}, s30, s31
        s_mov_b32 s{ST}, {64*3456}
        s_add_u32 s{SL}, s{SL}, 16384
        v_lshrrev_b32 v{T}, 4, v2
        v_and_b32 v{T+1}, 15, v2
        v_lshlrev_b32 v{T+2}, 2, v{T}
        v_xor_b32 v{T+1}, v{T+1}, v{T+2}
        v_mul_u32_u24 v{T}, 3456, v{T}
        v_lshl_add_u32 v{VX}, v{T+1}, 4, v{T}
        v_add_u32 v{VX+1}, {4*3456-1024}, v{VX}
        v_add_u32 v{VX+2}, {2*(4*3456-1024)}, v{VX}
        v_add_u32 v{VX+3}, {3*(4*3456-1024)}, v{VX}
        s_waitcnt lgkmcnt(0)
        """)
        self.srd(8, P_WQKV, 576 * 3456)
        a.label("L_p1l_go")
        a(f"s_mul_i32 s30, s28, s{ST}\ns_add_u32 s{SB}, s{SB}, s30\ns_mul_i32 s46, s{ST}, 9")
        self.stamp(1)
        a.label("L_p1l_issue")
        a(f"s_mov_b32 m0, s{SL}\ns_add_u32 s{SI}, s{SI}, 1")
        for n in range(4): a(f"buffer_load_dwordx4 v{VX+n}, s[8:11], s{SB} offen offset:{n*1024} lds")
        a(f"""
        s_add_u32 s{SB}, s{SB}, s{ST}
        s_cmp_eq_u32 s{SI}, s42
        s_cselect_b32 s30, s46, 0
        s_sub_u32 s{SB}, s{SB}, s30
        s_add_u32 s{SL}, s{SL}, 32768
        s_sub_u32 s30, s{SL}, 163840
        s_cmp_ge_u32 s{SL}, 163840
        s_cselect_b32 s{SL}, s30, s{SL}
        s_cmp_lt_u32 s{SI}, 3
        s_cbranch_scc1 L_p1l_issue
        s_waitcnt vmcnt(8)
        s_barrier
        """)
        a(f"s_cmp_lt_u32 s{SI}, 9\ns_cbranch_scc1 L_p1l_issue")
        a.label("L_p1l_sp")
        a("s_waitcnt lgkmcnt(0)")
        self.b1_loader()
        a(f"s_cmp_eq_u32 s{S_TYPE}, 2\ns_cbranch_scc1 L_p1l_sp2")
        nw = 0
        if self.opt.get("warmb_old"):
            nw = 3
            a(f"""
            s_lshl_b32 s30, s{S_IDX}, 2
            s_and_b32 s31, s{S_LW}, 1
            s_add_u32 s30, s30, s31
            s_lshr_b32 s31, s{S_WAVE}, 3
            s_lshl_b32 s31, s31, 1
            s_add_u32 s30, s30, s31
            s_mul_i32 s30, s30, 3072
            s_lshr_b32 s31, s{S_XCD}, 2
            s_mul_i32 s31, s31, {288*1152}
            s_add_u32 s30, s30, s31
            """)
            for n in range(3): a(f"buffer_load_dwordx4 v[80:83], v3, s[12:15], s30 offen offset:{n*1024}")
            if self.opt.get("warmx2"):
                nw = 6
                a(f"""
                s_lshl_b32 s30, s{S_IDX}, 3
                s_add_u32 s30, s30, s{S_WAVE}
                s_sub_u32 s30, s30, 4
                s_mul_i32 s30, s30, 2688
                s_and_b32 s31, s{S_XCD}, 3
                s_mul_i32 s31, s31, 589824
                s_add_u32 s30, s30, s31
                """)
                for n in range(3): a(f"buffer_load_dwordx4 v[80:83], v3, s[8:11], s30 offen offset:{n*1024}")
        a(f"s_waitcnt vmcnt({4+nw})\ns_barrier\ns_xor_b32 s40, s27, 1")
        if self.opt.get("early"):
            a(f"s_cmp_eq_u32 s27, 0\ns_cbranch_scc1 L_e1")
            self.b1_issue()
            a(f"s_waitcnt vmcnt({nw+6})\ns_barrier\ns_branch L_e2")
            a.label("L_e1")
            a(f"s_waitcnt vmcnt({nw})\ns_barrier")
            self.b1_issue()
            a.label("L_e2")
        else:
            a(f"s_waitcnt vmcnt({nw})\ns_barrier")
        a.label("L_p1l_sp2")
        a(f"""
        s_cmp_lg_u32 s{S_WAVE}, 8
        s_cbranch_scc1 L_p1l_b
        v_lshlrev_b32 v9, 2, v2
        v_add_u32 v9, {LDS_W}, v9
        v_cmp_eq_u32 vcc, 8, v2
        v_mov_b32 v10, 4
        v_mov_b32 v8, 0
        v_cndmask_b32 v10, v8, v10, vcc
        ds_write_b32 v9, v10
        ds_write_b32 v9, v8 offset:2560
        ds_write_b32 v9, v8 offset:2816
        s_waitcnt lgkmcnt(0)
        """)
        a.label("L_p1l_b")
        a("s_barrier")
        self.srd(4, P_WS, WS_BYTES)
        if self.opt.get("iss"):
            a(f"s_cmp_eq_u32 s{S_TYPE}, 2\ns_cbranch_scc1 L_p1l_sp5\nv_mov_b32 v70, {W_ISS}")
            self.lds_spin(70, 71, 4)
            a.label("L_p1l_sp5")
        if self.opt.get("drn"):
            a(f"s_cmp_eq_u32 s{S_TYPE}, 2\ns_cbranch_scc1 L_p1l_sp4\nv_mov_b32 v70, {W_DRN}")
            self.lds_spin(70, 71, int(self.opt["drn"]), sleep=1)
            a.label("L_p1l_sp4")
        a(f"s_cmp_lt_u32 s{S_WAVE}, 8\ns_cbranch_scc1 L_attshare")
        self.b1_run()
        self.helper()
        a.label("L_attshare")
        CW, ONE, T = 66, 67, 68
        a("s_mov_b32 s40, 1"); self.b1_issue()
        a("s_mov_b32 s40, 3"); self.b1_issue()
        self.attention(0)
        a("s_waitcnt vmcnt(6)"); self.lds_add1(CW, ONE, 4)
        a("s_waitcnt vmcnt(0)"); self.lds_add1(CW, ONE, 12)
        self.lds_spin(CW, T, 4, 256 + 4)
        a("s_mov_b32 s40, 5"); self.b1_issue()
        a(f"""
        v_mov_b32 v{T+1}, 0
        s_cmp_lg_u32 s{S_WAVE}, 4
        s_cbranch_scc1 L_as1
        v_mov_b32 v{T+2}, {W_OK}
        ds_read_b32 v{T}, v{T+2}
        s_mul_i32 s34, s{S_HD}, {F1STRIDE}
        s_add_u32 s34, s34, {F1}
        v_and_b32 v{T+2}, {NSUB-1}, v2
        v_lshlrev_b32 v{T+2}, 7, v{T+2}
        s_waitcnt lgkmcnt(0)
        v_readfirstlane_b32 s32, v{T}
        s_cmp_eq_u32 s32, 0
        s_cbranch_scc1 L_as1
        buffer_load_dword v{T+1}, v{T+2}, s[4:7], s34 offen sc0 sc1
        s_waitcnt vmcnt(1)
        s_branch L_as2
        """)
        a.label("L_as1")
        a("s_waitcnt vmcnt(0)")
        a.label("L_as2")
        self.lds_add1(CW, ONE, 20)

    def aux_start(self):
        a = self.a
        sp = self.opt.get("sponly")
        if sp: a(f"s_cmp_lg_u32 s{S_TYPE}, 2\ns_cbranch_scc1 L_nopf\ns_getpc_b64 s[30:31]")
        else: a(f"s_cmp_lg_u32 s{S_WAVE}, 3\ns_cbranch_scc1 L_nopf\ns_getpc_b64 s[30:31]")
        a.label("L_pc")
        a(f"s_sub_u32 s30, s30, L_pc-L_code0\ns_subb_u32 s31, s31, 0")
        if sp: a(f"s_and_b32 s32, s{S_IDX}, 3\ns_lshl_b32 s32, s32, 2\ns_add_u32 s32, s32, s{S_WAVE}\ns_lshl_b32 s32, s32, 11\nv_lshlrev_b32 v6, 5, v2\ns_cmp_ge_u32 s32, L_end-L_code0-2048")
        else: a(f"s_lshl_b32 s32, s{S_IDX}, 10\nv_mov_b32 v6, v3\ns_cmp_ge_u32 s32, L_end-L_code0-1024")
        a(f"""
        s_cbranch_scc1 L_nopf
        s_add_u32 s30, s30, s32
        s_addc_u32 s31, s31, 0
        v_mov_b32 v5, s31
        v_add_co_u32 v4, vcc, s30, v6
        s_nop 1
        v_addc_co_u32 v5, vcc, 0, v5, vcc
        global_load_dword v154, v[4:5], off
        """)
        a.label("L_nopf")
        a("s_waitcnt lgkmcnt(0)")
        self.srd(4, P_WS, WS_BYTES)
        for r in (8, 9, 10, 11, 152): a(f"v_mov_b32 v{r}, 0")
        if not self.opt.get("notlb"):
            a(f"s_cmp_lg_u32 s{S_WAVE}, 2\ns_cbranch_scc1 L_notlb")
            if self.opt.get("sponly"): a(f"s_cmp_lg_u32 s{S_TYPE}, 2\ns_cbranch_scc1 L_notlb")
            pt = pad_touch()
            for i, p in enumerate(pt): a(f"s_mov_b32 s30, {p}\nv_writelane_b32 v9, s30, {i}")
            a(f"s_mov_b64 exec, {(1 << len(pt)) - 1}\nbuffer_load_dword v154, v9, s[4:7], 0 offen\ns_mov_b64 exec, 0x1ff\nv_lshlrev_b32 v9, 20, v2")
            a(f"global_load_dword v154, v9, s[{P_OUT}:{P_OUT+1}]\ns_mov_b64 exec, 7\nglobal_load_dword v154, v9, s[{P_BX}:{P_BX+1}]\ns_mov_b64 exec, 1")
            for p in (P_WO, P_LRE, P_LIM, P_BRE, P_BIM, P_CRE, P_CIM, P_LDT, P_DSK): a(f"global_load_dword v154, v8, s[{p}:{p+1}]")
            a("s_mov_b64 exec, -1")
            a.label("L_notlb")
    def zero_flags(self):
        a = self.a
        a(f"s_lshl_b32 s30, s2, 4\ns_add_u32 s30, s30, s{S_WAVE}\ns_cmp_lg_u32 s30, {255*16}\ns_cbranch_scc1 L_nz\ns_mov_b32 s30, {FL}\nv_mov_b32 v24, 0\nv_mov_b32 v25, 0\nv_mov_b32 v26, 0\nv_mov_b32 v27, 0")
        for i in range(FLBYTES // 1024):
            a(f"buffer_store_dwordx4 v[24:27], v3, s[4:7], s30 offen offset:{(i%4)*1024} {WT}")
            if i % 4 == 3: a("s_add_u32 s30, s30, 4096")
        a(f"""
        s_waitcnt vmcnt(0)
        v_mov_b32 v28, 1
        s_mov_b64 exec, 1
        global_store_dword v8, v28, s[{P_DBG}:{P_DBG+1}] {WT}
        s_mov_b64 exec, -1
        """)
        a.label("L_nz")
    def dbg_load(self):
        self.a(f"v_mov_b32 v152, 0\nglobal_load_dword v153, v152, s[{P_DBG}:{P_DBG+1}]")
    def dbg_verify(self):
        a = self.a; l = a.newlabel("L_dv")
        a("s_mov_b32 s33, 0")
        a.label(l)
        a(f"""
        v_readfirstlane_b32 s32, v153
        s_cmp_eq_u32 s32, 1
        s_cbranch_scc1 {l}x
        s_add_u32 s33, s33, 1
        s_cmp_gt_u32 s33, {SPIN_MAX}
        s_cbranch_scc1 {l}x
        s_sleep 8
        global_load_dword v153, v152, s[{P_DBG}:{P_DBG+1}] sc0 sc1
        s_waitcnt vmcnt(0)
        s_branch {l}
        """)
        a.label(l + "x")
        a(f"ds_write_b32 v{self.WA}, v{self.ONE} offset:{W_OK - W_BAR}")
    def wait_ok(self, T):
        self.a(f"v_mov_b32 v{T}, {W_OK}")
        self.lds_spin(T, T + 1, 1, sleep=2)

    def kv_setup(self, T, VV, first):
        a = self.a
        a(f"""
        s_lshr_b32 s30, s{S_HD}, 1
        s_mul_i32 s30, s30, 9
        s_and_b32 s31, s{S_HD}, 1
        s_lshl_b32 s31, s31, 2
        s_add_u32 s36, s30, s31                  ; f
        s_add_u32 s30, s36, s{S_LW}
        s_lshl_b32 s30, s30, 10
        s_mul_i32 s31, {first}, {2*QS*1024}
        s_add_u32 s30, s30, s31
        s_add_u32 s{S_GK}, s30, {QKP + 144*1024}
        s_cmp_eq_u32 s{S_LW}, 0
        s_cselect_b32 s{S_K4}, 0, {(QS-5)*1024}
        s_add_u32 s{S_K4}, s{S_K4}, 4096
        s_mul_i32 s30, s{S_HD}, 288
        s_mul_i32 s31, s{S_LW}, {3*VS}
        s_add_u32 s30, s30, s31
        s_mul_i32 s31, {first}, {32*VS}
        s_add_u32 s30, s30, s31
        s_add_u32 s{S_GV}, s30, {VT}
        v_mul_u32_u24 v{T}, 27, v2
        v_lshrrev_b32 v{T}, 9, v{T}
        v_mul_u32_u24 v{VV}, 19, v{T}
        v_sub_u32 v{VV}, v2, v{VV}
        v_cmp_gt_u32 vcc, 18, v{VV}
        v_cmp_gt_u32 s[58:59], 3, v{T}
        v_cmp_gt_u32 s[60:61], 2, v{T}
        v_mul_u32_u24 v{T}, {VS}, v{T}
        v_lshl_add_u32 v{VV}, v{VV}, 4, v{T}
        s_and_b64 s[58:59], s[58:59], vcc
        s_and_b64 s[60:61], s[60:61], vcc
        s_cmp_eq_u32 s{S_LW}, 2
        s_cselect_b64 s[60:61], s[60:61], s[58:59]
        s_add_u32 s30, {first}, {C0}
        s_and_b32 s30, s30, 7
        s_mul_i32 s{S_LP}, s30, {CHB}
        v_mul_u32_u24 v{VV+1}, {VROW}, v1
        v_add_u32 v{VV+1}, {10240 + 288}, v{VV+1}
        """)
    def k_part(self):
        a = self.a; l1 = a.newlabel("L_kd")
        a(f"""
        s_lshl_b32 s31, s{S_LW}, 10
        s_add_u32 s31, s31, s{S_LP}
        s_mov_b32 m0, s31
        s_add_u32 s30, s{S_GK}, s{S_K4}
        buffer_load_dwordx4 v3, s[4:7], s{S_GK} offen {LDF} lds
        s_add_u32 m0, s31, 4096
        s_cmp_ge_u32 s{S_LW}, 2
        buffer_load_dwordx4 v3, s[4:7], s30 offen {LDF} lds
        s_cbranch_scc1 {l1}
        s_add_u32 m0, s31, 8192
        s_add_u32 s30, s{S_GK}, {(QS+3)*1024}
        buffer_load_dwordx4 v3, s[4:7], s30 offen {LDF} lds
        """)
        a.label(l1)
    def v_part(self, VV, ONES, T):
        a = self.a; l2 = a.newlabel("L_vd")
        a(f"""
        s_mul_i32 s31, s{S_LW}, {3*VROW}
        s_add_u32 s31, s31, s{S_LP}
        s_add_u32 m0, s31, 10240
        s_mov_b64 exec, s[58:59]
        buffer_load_dwordx4 v{VV}, s[4:7], s{S_GV} offen {LDF} lds
        s_add_u32 m0, s31, {10240 + 12*VROW}
        s_add_u32 s30, s{S_GV}, {12*VS}
        buffer_load_dwordx4 v{VV}, s[4:7], s30 offen {LDF} lds
        s_cmp_eq_u32 s{S_LW}, 3
        s_cbranch_scc1 {l2}
        s_add_u32 m0, s31, {10240 + 24*VROW}
        s_add_u32 s30, s{S_GV}, {24*VS}
        s_mov_b64 exec, s[60:61]
        buffer_load_dwordx4 v{VV}, s[4:7], s30 offen {LDF} lds
        """)
        a.label(l2)
        a(f"s_mov_b64 exec, -1\nv_add_u32 v{T}, s{S_LP}, v{VV+1}\nds_write_b128 v{T}, v[{ONES}:{ONES+3}]")
    def kv_next(self):
        self.a(f"""
        s_add_u32 s{S_GK}, s{S_GK}, {2*QS*1024}
        s_add_u32 s{S_GV}, s{S_GV}, {32*VS}
        s_add_u32 s{S_LP}, s{S_LP}, {CHB}
        s_cmp_eq_u32 s{S_LP}, {8*CHB}
        s_cselect_b32 s{S_LP}, 0, s{S_LP}
        """)
    def kv_half(self, grp, VV, ONES, T):
        a = self.a; l = a.newlabel("L_kh")
        a(f"s_cmp_lg_u32 s{grp}, 0\ns_cbranch_scc1 {l}v")
        self.k_part()
        a(f"s_branch {l}e")
        a.label(l + "v")
        self.v_part(VV, ONES, T)
        a.label(l + "e")
        self.kv_next()
    def poll_f1(self, lab, T, poller=False):
        a = self.a
        a(f"v_mov_b32 v{T+2}, {W_F1}")
        if poller:
            a(f"s_cmp_lg_u32 s{S_WAVE}, 4\ns_cbranch_scc1 {lab}_w")
            a(f"s_waitcnt vmcnt(0)\nv_cmp_ne_u32 vcc, {864 // NSUB}, v69\ns_cbranch_vccz {lab}_x")
            self.wait_ok(T)
            a(f"s_mul_i32 s34, s{S_HD}, {F1STRIDE}\ns_add_u32 s34, s34, {F1}\nv_and_b32 v{T}, {NSUB-1}, v2\nv_lshlrev_b32 v{T}, 7, v{T}")
            self.poll(lab, T + 1, T, "s34", want=str(864 // NSUB), sleep=int(self.opt.get("f1sleep", 4)))
            a(f"v_mov_b32 v{T}, 1\nds_write_b32 v{T+2}, v{T}")
            a.label(lab + "_w")
        self.lds_spin(T + 2, T + 1, 1, sleep=1)

    def wait_prog(self, val, T, sleep=4):
        a = self.a; lab = a.newlabel("L_pg")
        a(f"v_and_b32 v{T}, 3, v2\nv_lshlrev_b32 v{T}, 2, v{T}\nv_add_u32 v{T}, {W_PROG}, v{T}\ns_mov_b32 s33, 0\ns_mov_b32 s30, {FIN_BAD}")
        a.label(lab)
        a(f"""
        ds_read_b32 v{T+1}, v{T}
        s_add_u32 s33, s33, 1
        s_waitcnt lgkmcnt(0)
        v_cmp_gt_u32 vcc, {val}, v{T+1}
        s_cmp_gt_u32 s33, {SPIN_MAX*8}
        s_cbranch_scc1 {lab}x
        s_cbranch_vccz {lab}x
        s_sleep {sleep}
        s_branch {lab}
        """)
        a.label(lab + "x")
    def f4(self, n, T):
        a = self.a; lab = a.newlabel("L_f4")
        a(f"s_cmp_eq_u32 s50, 0\ns_cbranch_scc1 {lab}\ns_waitcnt vmcnt({n})")
        self.flag_store([36], T)
        a.label(lab)

    def final_check(self, T, lab_bad, sleep=2):
        self.wait_prog(FIN_OK, T, sleep)
        self.a(f"v_cmp_eq_u32 vcc, s30, v{T+1}\ns_cbranch_vccnz {lab_bad}")

    def attention(self, part):
        a = self.a
        QM, QL, IDX, AK, AV, AL, T0, T1 = 4, 12, 14, 15, 16, 17, 18, 19
        KM, KL, VF, O, S0, S1 = 20, 24, 28, 44, 76, 108
        LK, LV, LL, CA, CK, PW, VV, AK2, KM2 = 140, 141, 142, 143, 144, 145, 146, 151, 152
        TQ, PAR, CH, IT, DK, FB, MC, MB_, MI = 29, 33, 43, 44, 45, 47, 48, 49, 50
        HD = S_HD
        if part == 0: self.kv_setup(T0, VV, "0")
        if part == 0: a(f"""
        s_lshr_b32 s{TQ}, s{S_IDX}, 2
        s_lshl_b32 s{TQ}, s{TQ}, 3
        s_lshl_b32 s30, s{S_LW}, 1
        s_add_u32 s{TQ}, s{TQ}, s30
        s_lshr_b32 s32, s{TQ}, 2
        s_mul_i32 s32, s32, {QS}
        s_add_u32 s32, s32, s36
        s_lshl_b32 s32, s32, 10
        s_and_b32 s30, s{TQ}, 3
        s_lshl_b32 s30, s30, 8
        s_add_u32 s32, s32, s30
        s_add_u32 s35, s32, {QKP}
        s_and_b32 s{PAR}, s{HD}, 1
        v_lshrrev_b32 v{T1}, 5, v2
        v_lshlrev_b32 v{T0}, 3, v1
        v_lshl_add_u32 v{LK}, v{T1}, 11, v{T0}
        s_lshl_b32 s30, s{PAR}, 10
        v_add_u32 v{LK}, s30, v{LK}
        s_mul_i32 s31, s{PAR}, 4092
        s_sub_u32 s31, 4096, s31
        v_add_u32 v{LL}, s31, v{T0}
        v_lshl_add_u32 v{AL}, v2, 3, s31
        v_min_u32 v{AV}, 18, v1
        v_mul_u32_u24 v{T1}, {VROW}, v{T1}
        v_lshl_add_u32 v{LV}, v{AV}, 4, v{T1}
        v_add_u32 v{LV}, {10240 + C0*CHB}, v{LV}
        v_cmp_lt_u32 vcc, 18, v1
        v_cmp_ne_u32 s[30:31], 28, v1
        s_and_b64 vcc, vcc, s[30:31]
        v_mov_b32 v{T1}, 0x100000
        v_mov_b32 v{IDX}, 0xdddd
        v_cndmask_b32 v{LV}, v{LV}, v{T1}, vcc
        v_mov_b32 v{KL}, 0x3f803f80
        v_mov_b32 v{KL+1}, 0x3f803f80
        v_mov_b32 v{KL+2}, 0x3f803f80
        v_mov_b32 v{KL+3}, 0x3f803f80
        s_lshl_b32 s30, s{S_LW}, 2
        s_add_u32 s30, s30, {W_PROG}
        v_mov_b32 v{PW}, s30
        s_mov_b32 s62, 0
        s_mov_b32 s63, -1
        s_mov_b32 s{FB}, 0
        s_mov_b32 s{MC}, 1
        s_mov_b32 s{MB_}, {C0*CHB}
        """)
        if part == 0: return
        self.stamp(4)
        self.poll_f1("L_pollF1a", S0, True)
        self.stamp(5)
        a("s_setprio 3")
        self.k_part()
        for q in range(2):
            a(f"buffer_load_dwordx2 v[{QM+4*q}:{QM+4*q+1}], v{LK}, s[4:7], s35 offen offset:{q*256} {LDF}")
            a(f"buffer_load_dwordx2 v[{QM+4*q+2}:{QM+4*q+3}], v{LK}, s[4:7], s35 offen offset:{q*256+1024} {LDF}")
        a(f"buffer_load_dword v{QL}, v{AL}, s[4:7], s35 offen {LDF}")
        self.v_part(VV, KL, T0); self.kv_next()
        self.k_part(); self.v_part(VV, KL, T0)
        a(f"v_mov_b32 v{CA}, {W_LAND}\nv_mov_b32 v{CK}, 1\ns_waitcnt vmcnt(6)")
        self.lds_add1(CA, CK, W_K0 - W_LAND)
        self.lds_spin(CA, T0, 4, W_K0 - W_LAND)
        self.stamp(6)
        a.label("L_maxpass")
        MX0, MX1 = T0, T1
        a(f"""
        v_add_u32 v{AK}, s{MB_}, v{LK}
        v_add_u32 v{AL}, s{MB_}, v{LL}
        v_mov_b32 v{QL+1}, 0
        v_mov_b32 v{MX0}, 0xff800000
        v_mov_b32 v{MX1}, 0xff800000
        s_mov_b32 s{MI}, 0
        """)
        def rdKm(t): o = (t // 4) * 10 + (t % 4) // 2; k = KM2 if t % 2 else KM; a(f"ds_read2st64_b64 v[{k}:{k+3}], v{AK2 if t % 2 else AK} offset0:{o} offset1:{o+2}")
        def rdKl(t): a(f"ds_read_b32 v{KL+2*(t%2)}, v{AL} offset:{(t//4)*5120 + (t%4)*256}")
        def rdV(m, t): a(f"ds_read_b128 v[{VF+8*(t%2)+4*m}:{VF+8*(t%2)+4*m+3}], v{AV} offset:{(t*4+m*2)*VROW}")
        def b2(N, t): a(f"v_mfma_f32_32x32x4_2b_bf16 v[{N}:{N+31}], v[{KL+2*(t%2)}:{KL+2*(t%2)+1}], v[{QL}:{QL+1}], 0")
        def mainm(N, q, t=0): k = KM2 if t % 2 else KM; a(f"v_mfma_f32_32x32x16_bf16 v[{N+16*q}:{N+16*q+15}], v[{k}:{k+3}], v[{QM+4*q}:{QM+4*q+3}], v[{N+16*q}:{N+16*q+15}]")
        def smf(n, S, t):
            o = O + 16 * (n // 2); v = VF + 8 * (t % 2) + 4 * (n % 2)
            a(f"v_smfmac_f32_32x32x32_bf16 v[{o}:{o+15}], v[{v}:{v+3}], v[{S+8*n}:{S+8*n+7}], v{IDX}")
        RO = bool(self.opt.get("ro"))
        EO = (list(range(0, 8)) + list(range(16, 24)) + list(range(8, 16)) + list(range(24, 32))) if RO else list(range(32))
        def E(S, lo, hi):
            for r in range(lo, hi): a(f"v_exp_f32 v{S+EO[r]}, v{S+EO[r]}")
        a.label("L_maxloop")
        rdKl(0); rdKm(0)
        a(f"""
        s_mov_b32 s30, 256
        s_and_b32 s31, s{MI}, 3
        s_cmp_eq_u32 s31, 3
        s_cselect_b32 s30, {5120-768}, s30
        s_and_b32 s31, s{MI}, 7
        s_cmp_eq_u32 s31, 7
        s_cselect_b32 s30, {CHB-5120-768}, s30
        s_add_u32 s{MI}, s{MI}, 1
        s_waitcnt lgkmcnt(0)
        """)
        b2(S0, 0)
        a(f"v_add_u32 v{AK}, s30, v{AK}\nv_add_u32 v{AL}, s30, v{AL}")
        for i in range(16): a(f"v_mov_b32 v{O+i}, 0")
        mainm(S0, 0); mainm(S0, 1)
        for i in range(16): a(f"v_mov_b32 v{O+16+i}, 0")
        for i in range(8): a(f"v_max3_f32 v{MX0}, v{S0+2*i}, v{S0+2*i+1}, v{MX0}\nv_max3_f32 v{MX1}, v{S0+16+2*i}, v{S0+16+2*i+1}, v{MX1}")
        a(f"""
        s_cmp_lt_u32 s{MI}, s{MC}
        s_cbranch_scc1 L_maxloop
        v_add_u32 v{AK}, {C0*CHB}, v{LK}
        v_add_u32 v{AL}, {C0*CHB}, v{LL}
        v_mov_b32 v{AV}, v{LV}
        v_add_u32 v{AK2}, 256, v{AK}
        """)
        rdKl(0); rdKm(0); rdKl(1); rdKm(1)
        a(f"""
        v_permlane32_swap_b32 v{MX0}, v{MX1}
        s_mov_b32 s{CH}, {(-7*CHB) & 0xffffffff}
        s_mov_b32 s{IT}, 0
        v_max_f32 v{MX1}, v{MX0}, v{MX1}
        v_cvt_pk_bf16_f32 v{T0}, -v{MX1}, 0
        v_lshlrev_b32 v{T0}, 16, v{T0}
        v_sub_f32 v{T0}, -v{MX1}, v{T0}
        v_cvt_pk_bf16_f32 v{QL+1}, -v{MX1}, v{T0}
        v_mov_b32 v{CA}, {W_LAND}
        v_mov_b32 v{T1}, 1
        s_waitcnt lgkmcnt(2)
        """)
        b2(S0, 0)
        a(f"s_cmp_lg_u32 s{FB}, 0\ns_cbranch_scc1 L_nl0\ns_waitcnt vmcnt(4)")
        self.lds_add1(CA, T1)
        a.label("L_nl0")
        for i in range(8): a(f"v_mov_b32 v{S1+24+i}, 0")
        for i in range(4): a(f"v_mov_b32 v{VF+12+i}, 0")
        a("s_nop 3")
        mainm(S0, 0); mainm(S0, 1)
        self.lds_spin(CA, T0, 4)
        rdV(0, 0); rdV(1, 0)
        a("s_nop 2")
        self.stamp(7); self.stamp(61)
        a.raw(".p2align 6")
        a.label("L_loop")
        for i in range(8):
            C, N = (S0, S1) if i % 2 == 0 else (S1, S0)
            E(C, 0, 2)
            smf(3, N, i + 1)
            if i == 0 and self.opt.get("stc"): a(f"s_memtime s[94:95]\ns_add_u32 m0, s{IT}, 40\ns_waitcnt lgkmcnt(0)\nv_writelane_b32 v{VST}, s94, m0")
            if i == 7: a(f"v_add_u32 v{AV}, s{DK}, v{AV}")
            rdV(0, (i + 1) % 8)
            if not self.opt.get("w0"): a("s_waitcnt lgkmcnt(1)")
            E(C, 2, 6)
            b2(N, i + 1)
            rdV(1, (i + 1) % 8)
            if i == 1: a(f"ds_write_b32 v{PW}, v{CA}")
            if i == 5: a(f"ds_read_b32 v{CK}, v{CA} offset:4")
            if i == 0:
                a(f"s_cmp_eq_u32 s{IT}, {7-C0}\ns_cselect_b32 s{DK}, s{CH}, {CHB}")
            if i == 3:
                a(f"s_cmp_eq_u32 s{IT}, s{FB}\ns_cbranch_scc1 L_sig1")
                a.label("L_sig1r")
            if i == 6:
                a(f"""
                v_readfirstlane_b32 s30, v{CK}
                v_add_u32 v{AK}, s{DK}, v{AK}
                v_add_u32 v{AL}, s{DK}, v{AL}
                v_add_u32 v{AK2}, s{DK}, v{AK2}
                v_add_u32 v{CA}, 4, v{CA}
                s_cmp_lt_u32 s30, 4
                s_cbranch_scc1 L_wait
                """)
                a.label("L_waitret")
            E(C, 6, 14)
            smf(0, C, i)
            rdKl((i + 2) % 8)
            E(C, 14, 18)
            smf(2 if RO else 1, C, i)
            rdKm((i + 2) % 8)
            E(C, 18, 22)
            mainm(N, 0, i + 1)
            E(C, 22, 26)
            if RO: mainm(N, 1, i + 1)
            else: smf(2, C, i)
            if i == 7: a(f"s_add_u32 s{IT}, s{IT}, 1\ns_cmp_lt_u32 s{IT}, 8")
            E(C, 26, 30)
            if RO: smf(1, C, i)
            else: mainm(N, 1, i + 1)
            if self.opt.get("w0"): a(f"s_waitcnt lgkmcnt(0)")
            E(C, 30, 32)
        a("s_cbranch_scc1 L_loop")
        a("s_waitcnt lgkmcnt(0)\ns_nop 0")
        smf(3, S1, 7)
        self.stamp(8); self.stamp(62)
        SUM = T1
        a(f"""
        s_mul_i32 s30, s{TQ}, {OS}
        s_add_u32 s30, s30, {OW}
        s_lshl_b32 s31, s{HD}, 10
        s_add_u32 s31, s31, s30
        s_lshl_b32 s35, s{HD}, 7
        s_add_u32 s35, s35, s30
        s_add_u32 s35, s35, 32768
        v_lshlrev_b32 v{T0}, 2, v2
        s_mov_b32 s30, 0x5d800000
        """)
        a(f"v_mov_b32 v{AK}, {W_PF}\nds_read_b32 v{AL}, v{AK}")
        for q in range(2):
            o = O + 16 * q; d = S1 + 8 * q
            a(f"v_cndmask_b32 v{o+10}, v{o+10}, v{o+12}, s[62:63]\nv_rcp_f32 v{o+11}, v{o+10}\nv_cmp_nge_f32 s[{16+2*q}:{17+2*q}], s30, v{o+10}")
            for r in range(5): a(f"v_pk_mul_f32 v[{o+2*r}:{o+2*r+1}], v[{o+2*r}:{o+2*r+1}], v[{o+10}:{o+11}] op_sel:[0,1] op_sel_hi:[1,1]")
            for r in range(5): a(f"v_cvt_pk_bf16_f32 v{d+r}, v{o+2*r}, v{o+2*r+1}")
        a(f"v_pk_add_f32 v[{O}:{O+1}], v[{O}:{O+1}], v[{O+16}:{O+17}]")
        for r in range(1, 5): a(f"v_pk_add_f32 v[{O+2*r}:{O+2*r+1}], v[{O+2*r}:{O+2*r+1}], v[{O+16+2*r}:{O+17+2*r}]\nv_pk_add_f32 v[{O}:{O+1}], v[{O}:{O+1}], v[{O+2*r}:{O+2*r+1}]")
        a(f"""
        v_add_f32 v{SUM}, |v{O}|, |v{O+1}|
        s_mov_b32 s30, 0x7f7fffff
        s_or_b64 s[16:17], s[16:17], s[18:19]
        v_cmp_nge_f32 vcc, s30, v{SUM}
        s_waitcnt lgkmcnt(0)
        v_readfirstlane_b32 s34, v{AL}
        s_or_b64 vcc, vcc, s[16:17]
        s_cmp_lg_u32 s{FB}, 0
        s_cbranch_scc1 L_fin
        s_cmp_lg_u64 vcc, 0
        s_cbranch_scc1 L_unsafe
        """)
        a.label("L_fin")
        a("s_cmp_lt_u32 s34, 4\ns_cbranch_scc1 L_pfw")
        a.label("L_pfr")
        for q in range(2):
            d = S1 + 8 * q
            a(f"""
            buffer_store_dwordx4 v[{d}:{d+3}], v3, s[4:7], s31 offen {WT}
            s_mov_b32 exec_hi, 0
            buffer_store_dword v{d+4}, v{T0}, s[4:7], s35 offen {WT}
            s_mov_b32 exec_hi, -1
            s_add_u32 s31, s31, {OS}
            s_add_u32 s35, s35, {OS}
            """)
        a(f"v_mov_b32 v{T1}, {FIN_OK}\nds_write_b32 v{PW}, v{T1}")
        self.stamp(9)
        a(f"s_cmp_lg_u32 s{FB}, 0\ns_cbranch_scc1 L_redo_end")
        self.final_check(AK, "L_redo", 4)
        a("s_branch L_exit")
        a.label("L_pfw")
        self.lds_spin(AK, AL, 4, sleep=1)
        a("s_branch L_pfr")
        a.label("L_sig1")
        a("s_waitcnt vmcnt(0)")
        self.lds_add1(CA, T1, 4)
        a("s_waitcnt lgkmcnt(0)\ns_branch L_sig1r")
        a.label("L_wait")
        self.lds_spin(CA, CK, 4)
        a("s_branch L_waitret")
        a.label("L_unsafe")
        a(f"s_mov_b32 s{FB}, 100\nv_mov_b32 v{T1}, {FIN_BAD}\nds_write_b32 v{PW}, v{T1}")
        a.label("L_redo")
        a(f"""
        s_waitcnt vmcnt(0) lgkmcnt(0)
        s_barrier
        s_barrier
        s_cmp_eq_u32 s{FB}, 0
        s_cbranch_scc1 L_redo_end
        s_mov_b32 s{MC}, 64
        s_mov_b32 s{MB_}, 0
        v_mov_b32 v{PW}, {LDS_W + 128}
        s_branch L_maxpass
        """)
        a.label("L_redo_end")
        a("s_waitcnt lgkmcnt(0)\ns_barrier\ns_branch L_exit")

    def helper_kv(self, first, n):
        a = self.a
        VV, ONES, T, ONE, WB_ = 22, 16, 24, 157, 20
        lab = a.newlabel("L_hkv")
        a(f"v_mov_b32 v{ONE}, 1\nv_mov_b32 v{WB_}, {LDS_W}")
        for i in range(4): a(f"v_mov_b32 v{ONES+i}, 0x3f803f80")
        self.kv_setup(T, VV, str(first))
        self.lds_spin(WB_, T, 4, sleep=2)
        self.k_part(); self.v_part(VV, ONES, T); self.kv_next()
        a(f"s_mov_b32 s35, 0\nv_mov_b32 v{WB_+1}, {W_LAND + 4*first}")
        a.label(lab)
        self.k_part(); self.v_part(VV, ONES, T); self.kv_next()
        a("s_waitcnt vmcnt(4)")
        self.lds_add1(WB_ + 1, ONE)
        a(f"v_add_u32 v{WB_+1}, 4, v{WB_+1}\ns_add_u32 s35, s35, 1\ns_cmp_lt_u32 s35, {n-1}\ns_cbranch_scc1 {lab}\ns_waitcnt vmcnt(0)")
        self.lds_add1(WB_ + 1, ONE)
    def helper(self):
        a = self.a
        VV, ONES, T, ONE, WB_, PB = 22, 16, 24, 157, 20, 12
        pc = lambda c: W_LAND + 4 * (c + 1)
        self.stamp(4)
        if "hprio" in self.opt: a(f"s_setprio {self.opt['hprio']}")
        a(f"v_mov_b32 v{self.WA}, {W_BAR}\nv_mov_b32 v{ONE}, 1\nv_mov_b32 v155, 0")
        a(f"v_mov_b32 v{WB_}, {LDS_W}\nv_mov_b32 v{PB}, 0\nv_mov_b32 v{PB+1}, 0")
        for i in range(4): a(f"v_mov_b32 v{ONES+i}, 0x3f803f80")
        if self.opt.get("late"): self.helper_kv(4, 4)
        else: self.helper_kv(2, 6)
        self.stamp(5)
        a(f"""
        s_lshr_b32 s34, s{S_IDX}, 2
        s_lshl_b32 s34, s34, 3
        s_lshl_b32 s30, s{S_LW}, 1
        s_add_u32 s34, s34, s30
        s_mul_i32 s30, s34, {OS}
        s_add_u32 s30, s30, {OW}
        s_lshl_b32 s31, s{S_HD}, 10
        s_add_u32 s31, s31, s30
        s_lshl_b32 s32, s{S_HD}, 7
        s_add_u32 s32, s32, s30
        s_add_u32 s32, s32, 32768
        v_mov_b32 v32, -1
        v_mov_b32 v33, -1
        v_mov_b32 v34, -1
        v_mov_b32 v35, -1
        """)
        for q in range(2):
            a(f"""
            buffer_store_dwordx4 v[32:35], v3, s[4:7], s31 offen {WT}
            s_mov_b64 exec, 0xff
            buffer_store_dwordx4 v[32:35], v3, s[4:7], s32 offen {WT}
            s_mov_b64 exec, -1
            s_add_u32 s31, s31, {OS}
            s_add_u32 s32, s32, {OS}
            """)
        a(f"""
        s_lshl_b32 s36, s34, 5
        s_add_u32 s36, s36, s{S_HD}
        s_lshl_b32 s36, s36, 2
        s_add_u32 s36, s36, {F4}
        s_add_u32 s35, s36, 128
        s_waitcnt vmcnt(0)
        """)
        self.flag_store([36, 35], T)
        self.lds_add1(WB_, ONE, W_PF - LDS_W)
        self.p3_ids()
        a(f"s_mov_b32 s{S_HALF}, 0")
        self.lds_spin(WB_, T, 4, W_P2 - LDS_W, sleep=16)
        a.label("L_hpf")
        a(f"s_cmp_ge_u32 s{S_IDX}, 30\ns_cbranch_scc1 L_hfin\ns_cmp_ge_u32 s{S_IDX}, 18\ns_cbranch_scc1 L_hpfa")
        self.make_vx(PB, 2, "4", "1", "16", "8", T)
        self.srd(12, P_CRE, 576 * 1152)
        a(f"""
        s_lshl_b32 s30, s{S_P3NB}, 6
        s_lshl_b32 s31, s{S_LW}, 4
        s_add_u32 s30, s30, s31
        s_mul_i32 s{S_CB}, s30, 1152
        s_mov_b32 s40, 0
        """)
        def cload(first, upto, lds0):
            lab = a.newlabel("L_cl"); ldsadj = lds0 - first * 8192
            a(f"s_mov_b32 s40, {first}")
            a.label(lab)
            a(f"""
            s_lshl_b32 s30, s40, 13
            s_add_u32 s30, s30, {ldsadj & 0xffffffff}
            s_lshl_b32 s31, s{S_LW}, 11
            s_add_u32 m0, s30, s31
            s_cmp_lt_u32 s40, 9
            s_cselect_b32 s12, s{P_CRE}, s{P_CIM}
            s_cselect_b32 s13, s{P_CRE+1}, s{P_CIM+1}
            s_cselect_b32 s31, 0, 9
            s_and_b32 s13, s13, 0xffff
            s_sub_u32 s31, s40, s31
            s_lshl_b32 s31, s31, 7
            s_add_u32 s32, s31, s{S_CB}
            buffer_load_dwordx4 v{PB}, s[12:15], s32 offen lds
            buffer_load_dwordx4 v{PB+1}, s[12:15], s32 offen offset:1024 lds
            s_add_u32 s40, s40, 1
            s_cmp_lt_u32 s40, {upto}
            s_cbranch_scc1 {lab}
            """)
        self.wait_prog(pc(2), T, 16); cload(0, 7, TSCR)
        a(f"s_cmp_lg_u32 s{S_HALF}, 0\ns_cbranch_scc1 L_hnp")
        self.b3_pre(158, 1)
        a.label("L_hnp")
        self.wait_prog(pc(5), T, 16); cload(9, 16, 0)
        a(f"s_add_u32 s32, s{S_CB}, {7*128}")
        for j in range(2):
            a(f"buffer_load_dwordx4 v[124:127], v{PB}, s[12:15], s32 offen offset:{j*128}\nbuffer_load_dwordx4 v[124:127], v{PB+1}, s[12:15], s32 offen offset:{1024+j*128}")
        self.wait_prog(pc(6), T, 8); cload(7, 9, 57344)
        a("s_branch L_hpfd")
        a.label("L_hpfa")
        self.a3_setup(PB, T)
        self.wait_prog(pc(2), T, 16); self.a3_issue(PB, 4)
        self.wait_prog(pc(5), T, 16); self.a3_issue(PB, 5)
        a.label("L_hpfd")
        a("s_waitcnt vmcnt(0)")
        self.lds_add1(WB_, ONE, W_G2 - LDS_W)
        self.stamp(6)
        a.label("L_hfin")
        a(f"s_cmp_lg_u32 s{S_HALF}, 0\ns_cbranch_scc1 L_hok")
        self.wait_prog(W_LAND + 28, T, sleep=32)
        self.final_check(T, "L_hredo", 4)
        a.label("L_hok")
        a(f"s_cmp_ge_u32 s{S_IDX}, 18\ns_cbranch_scc1 L_hopf")
        cload(16, 18, 73728)
        a(f"s_lshl_b32 s34, s{S_HALF}, 2\ns_add_u32 s34, s34, 4\ns_setprio 3\ns_branch L_b3main")
        a.label("L_hopf")
        if self.opt.get("opf"):
            a(f"""
            s_cmp_ge_u32 s{S_IDX}, 30
            s_cbranch_scc1 L_exit
            s_lshl_b32 s30, s{S_LW}, 2
            s_add_u32 s30, s30, {W_F4}
            v_mov_b32 v{T+2}, s30
            s_mul_i32 s34, s{S_P3T}, {OS}
            s_sub_u32 s31, s{S_P3NB}, 9
            s_lshl_b32 s31, s31, 12
            s_add_u32 s34, s34, s31
            s_add_u32 s34, s34, {OW + 12*1024}
            """)
            self.lds_spin(T + 2, T, 1)
            for n in range(4): a(f"buffer_load_dwordx4 v[32:35], v3, s[4:7], s34 offen offset:{n*1024}")
        a("s_branch L_exit")
        a.label("L_hredo")
        a(f"s_mov_b32 s{S_HALF}, 1\ns_waitcnt vmcnt(0) lgkmcnt(0)\ns_barrier")
        self.kv_setup(T, VV, "0")
        a("s_mov_b32 s35, 0")
        a.label("L_hredo1")
        self.k_part(); self.v_part(VV, ONES, T); self.kv_next()
        a("s_add_u32 s35, s35, 1\ns_cmp_lt_u32 s35, 8\ns_cbranch_scc1 L_hredo1\ns_waitcnt vmcnt(0) lgkmcnt(0)\ns_barrier\ns_barrier\ns_branch L_hpf")

    WA, ONE, BC = 156, 157, 47
    def arrive(self, T):
        a = self.a
        a(f"s_add_u32 s{self.BC}, s{self.BC}, 4")
        self.lds_add1(self.WA, self.ONE)
    def bar(self, T):
        self.arrive(T)
        self.lds_spin(self.WA, T, f"s{self.BC}")
    def gemm_cons(self, name, N, T, CW, rl, mfl, nfree, hooks={}):
        a = self.a
        self.lds_spin(CW, T, 4, sleep=1)
        a(f"ds_read_b32 v{T}, v{CW} offset:4")
        for x in rl(0): a(x)
        for s in range(N - 1):
            mf = mfl(s); p = f"{name}_{s}"
            a("s_waitcnt lgkmcnt(0)")
            a(f"v_readfirstlane_b32 s32, v{T}")
            a(mf[0])
            self.stampx(16)
            if s < nfree: self.lds_add1(CW, self.ONE, 256 + 4 * s)
            a(f"s_cmp_lt_u32 s32, 4\ns_cbranch_scc1 {p}s")
            a.label(p + "r")
            self.stubs.append((p, CW, T, 4 * (s + 1)))
            oth = rl(s + 1) + ([f"ds_read_b32 v{T}, v{CW} offset:{4*(s+2)}"] if s + 2 < N else [])
            ilv(a, mf[1:8], oth)
            if s in hooks: hooks[s]()
        a("s_waitcnt lgkmcnt(0)")
        if N - 1 < nfree: self.lds_add1(CW, self.ONE, 256 + 4 * (N - 1))
        for m in mfl(N - 1): a(m)
    def emit_stubs(self):
        a = self.a
        for p, CW, T, off in self.stubs:
            a.label(p + "s")
            self.lds_spin(CW, T, 4, off, sleep=int(self.opt.get('cslp', 0)))
            a(f"s_branch {p}r")
    def gemm_load(self, name, nslot, CB, ONE, T, issue):
        a = self.a
        a("s_mov_b32 s41, 0")
        if self.opt.get("early"): a(f"s_cmp_lg_u32 s{S_TYPE}, 2\ns_cbranch_scc1 {name}e")
        a.label(name + "w")
        a(f"s_cmp_lt_u32 s40, {nslot}\ns_cbranch_scc1 {name}")
        self.lds_spin(T + 1, T, 4)
        a.label(name)
        if self.opt.get("pause"):
            a(f"v_mov_b32 v{T+2}, {LDS_W}\nds_read_b32 v{T+3}, v{T+2} offset:{W_F1 - LDS_W}\ns_waitcnt lgkmcnt(0)\nv_readfirstlane_b32 s32, v{T+3}\ns_cmp_eq_u32 s32, 0\ns_cbranch_scc1 {name}p\ns_cmp_lt_u32 s{S_WAVE}, 8\ns_cbranch_scc1 {name}p")
            self.lds_spin(T + 2, T + 3, 4, sleep=1)
            a.label(name + "p")
        issue()
        a.label(name + "e")
        a(f"""
        s_cmp_lt_u32 s40, s45
        s_cselect_b32 s44, 2, 1
        s_add_u32 s44, s44, s40
        s_lshl_b32 s30, s44, 2
        s_add_u32 s30, s30, s43
        s_add_u32 s30, s30, {256 - 4*nslot}
        v_mov_b32 v{T+1}, s30
        ds_read_b32 v{T}, v{T+1}
        s_cmp_eq_u32 s41, 0
        s_cbranch_scc1 {name}n
        s_waitcnt vmcnt(6)
        """)
        self.lds_add1(CB, ONE)
        a.label(name + "n")
        a(f"""
        s_lshl_b32 s30, s40, 2
        s_add_u32 s30, s30, s43
        v_mov_b32 v{CB}, s30
        s_mov_b32 s40, s44
        s_mov_b32 s41, 1
        s_waitcnt lgkmcnt(0)
        v_readfirstlane_b32 s32, v{T}
        s_cmp_lt_u32 s40, s46
        s_cselect_b32 s32, 4, s32
        s_cmp_ge_u32 s40, s42
        s_cselect_b32 s32, 0, s32
        s_cmp_ge_u32 s32, 4
        s_cbranch_scc1 {name}
        s_waitcnt vmcnt(0)
        """)
        self.lds_add1(CB, ONE)
        a(f"s_mov_b32 s41, 0\ns_cmp_lt_u32 s40, s42\ns_cbranch_scc1 {name}w")
    def b1_loader(self):
        a = self.a
        VX, VB, CW, ONE, T = 60, 64, 66, 67, 68
        XB, WB, SL, NS = 16, 17, 18, 19
        self.make_vx(VX, 4, "16", "1", "8", "4", T)
        self.make_vx(VB, 2, "4", "1", "16", "8", T)
        self.srd(8, P_BX, 2048 * 1152)
        a(f"""
        s_cmp_lt_u32 s{S_LW}, 2
        s_cselect_b32 s12, s{P_BRE}, s{P_BIM}
        s_cselect_b32 s13, s{P_BRE+1}, s{P_BIM+1}
        s_and_b32 s13, s13, 0xffff
        s_mov_b32 s14, {576*1152}
        s_mov_b32 s15, 0x20000
        s_lshl_b32 s30, s{S_MB}, 7
        s_lshl_b32 s31, s{S_LW}, 5
        s_add_u32 s30, s30, s31
        s_mul_i32 s{XB}, s30, 1152
        s_cmp_eq_u32 s{S_TYPE}, 2
        s_cselect_b32 s30, s{S_CHA}, s{S_CHB}
        s_cselect_b32 s{NS}, 18, 9
        s_lshl_b32 s30, s30, 5
        s_and_b32 s31, s{S_LW}, 1
        s_lshl_b32 s31, s31, 4
        s_add_u32 s30, s30, s31
        s_mul_i32 s{WB}, s30, 1152
        v_mov_b32 v{CW}, {W_FULL}
        v_mov_b32 v{ONE}, 1
        s_lshr_b32 s27, s{S_WAVE}, 3
        """)
        def issue():
            a(f"""
            s_add_u32 s31, s40, s28
            s_sub_u32 s30, s31, 9
            s_cmp_ge_u32 s31, 9
            s_cselect_b32 s31, s30, s31
            s_lshl_b32 s31, s31, 7
            {"s_and_b32 s%d, s40, 3" % SL if NS1 == 4 else "s_mul_i32 s30, s40, 43" + chr(10) + "s_lshr_b32 s30, s30, 7" + chr(10) + "s_mul_i32 s30, s30, 3" + chr(10) + "s_sub_u32 s%d, s40, s30" % SL}
            s_mul_i32 s{SL}, s{SL}, {BSLOT}
            s_add_u32 s{SL}, s{SL}, {B1BASE}
            s_lshl_b32 s30, s{S_LW}, 12
            s_add_u32 m0, s30, s{SL}
            s_add_u32 s32, s31, s{XB}
            """)
            for n in range(4): a(f"buffer_load_dwordx4 v{VX+n}, s[8:11], s32 offen offset:{n*1024} lds")
            a(f"s_lshl_b32 s30, s{S_LW}, 11\ns_add_u32 s30, s30, s{SL}\ns_add_u32 m0, s30, 16384\ns_add_u32 s32, s31, s{WB}")
            for n in range(2): a(f"buffer_load_dwordx4 v{VB+n}, s[12:15], s32 offen offset:{n*1024} lds")
        def run():
            a(f"s_mov_b32 s43, {W_FULL}\ns_mov_b32 s45, {self.opt.get('ashare', 6)}")
            a(f"s_cmp_eq_u32 s{S_TYPE}, 2\ns_cselect_b32 s46, {NS1}, {0 if self.opt.get('sig1', '1') == '1' else NS1}")
            a.label("L_l1job")
            if self.opt.get("late"):
                a(f"s_cmp_lg_u32 s{NS}, 9\ns_cbranch_scc1 L_l1go\ns_cmp_lt_u32 s{S_WAVE}, 8\ns_cbranch_scc1 L_p1_fin\ns_mov_b32 s45, 0")
                self.helper_kv(2, 2)
                a.label("L_l1go")
            a(f"s_xor_b32 s40, s27, 1\ns_cmp_eq_u32 s27, 0\ns_cselect_b32 s42, {self.opt.get('ashare', 6)}, 9")
            self.gemm_load("L_l1", NS1, CW, ONE, T, issue)
            a(f"""
            s_add_u32 s30, s43, {256 + 32}
            v_mov_b32 v{T+1}, s30
            s_cmp_eq_u32 s{NS}, 9
            s_cbranch_scc1 L_l1end
            s_mov_b32 s45, 0
            s_mov_b32 s{NS}, 9
            s_sub_u32 s30, s{S_CHA}, s{S_CHB}
            s_mul_i32 s30, s30, {32*1152}
            s_sub_u32 s{WB}, s{WB}, s30
            s_add_u32 s43, s43, 36
            """)
            self.lds_spin(T + 1, T, 4, sleep=1)
            a("s_branch L_l1job")
            a.label("L_l1end")
            self.lds_spin(T + 1, T, 4, sleep=1)
        self.b1_run = run; self.b1_issue = issue

    def aux(self):
        a = self.a
        AX, AW, FX, ACC, T = 4, 8, 16, 80, 148
        SS, SLOT, DL, WM, WN = 40, 41, 42, 43, 44
        a.label("L_aux")
        a(f"""
        s_setprio 3
        s_mov_b32 s{S_HALF}, 0
        s_mov_b32 s{S_CH}, s{S_CHA}
        s_mov_b32 s62, 0
        s_mov_b32 s63, -1
        """)
        self.aux_start()
        a(f"s_cmp_eq_u32 s{S_TYPE}, 2\ns_cbranch_scc1 L_aux_sp")
        self.lam_early(f"s{S_CHB}")
        if not self.opt.get("nowarmx"):
            self.srd(12, P_BX, 2048 * 1152)
            a(f"""
            s_and_b32 s30, s{S_XCD}, 3
            s_mul_i32 s30, s30, 589824
            s_lshr_b32 s31, s{S_XCD}, 2
            s_mul_i32 s31, s31, 28
            s_add_u32 s31, s31, s{S_IDX}
            s_lshl_b32 s31, s31, 2
            s_add_u32 s31, s31, s{S_WAVE}
            s_mul_i32 s31, s31, 2688
            s_add_u32 s30, s30, s31
            v_lshlrev_b32 v16, 6, v2
            s_mov_b32 exec_hi, 0x3ff
            buffer_load_dword v154, v16, s[12:15], s30 offen
            s_mov_b32 exec_hi, -1
            """)
        a(f"""
        s_cmp_lt_u32 s{S_LW}, 2
        s_cselect_b32 s12, s{P_BRE}, s{P_BIM}
        s_cselect_b32 s13, s{P_BRE+1}, s{P_BIM+1}
        s_and_b32 s13, s13, 0xffff
        s_mov_b32 s14, {576*1152}
        s_mov_b32 s15, 0x20000
        s_lshl_b32 s30, s{S_IDX}, 1
        s_and_b32 s31, s{S_LW}, 1
        s_add_u32 s30, s30, s31
        s_mul_i32 s30, s30, 5952
        s_lshr_b32 s31, s{S_XCD}, 2
        s_mul_i32 s31, s31, {288*1152}
        s_add_u32 s45, s30, s31
        s_add_u32 s46, s45, 4096
        v_lshlrev_b32 v155, 6, v2
        """)
        if self.opt.get("wbat") == "0": a("buffer_load_dword v154, v155, s[12:15], s45 offen\ns_mov_b32 exec_hi, 0\nbuffer_load_dword v154, v155, s[12:15], s46 offen\ns_mov_b32 exec_hi, -1")
        a(f"s_lshr_b32 s{WM}, s{S_WAVE}, 1\ns_and_b32 s{WN}, s{S_WAVE}, 1\ns_lshl_b32 s30, s{WM}, 13")
        self.swz(AX, T, "s30")
        a(f"""
        v_bfe_u32 v{T+2}, v2, 2, 2
        v_lshl_add_u32 v{T+3}, v{T+1}, 3, v{T+2}
        v_lshlrev_b32 v{T+3}, 8, v{T+3}
        v_bfe_u32 v{T+4}, v2, 4, 1
        v_lshl_add_u32 v{T+3}, v{T+4}, 5, v{T+3}
        v_and_b32 v{T+4}, 3, v2
        v_lshl_add_u32 v{T+3}, v{T+4}, 3, v{T+3}
        v_add_u32 v{T+3}, 16384, v{T+3}
        s_lshl_b32 s30, s{WN}, 1
        v_xor_b32 v{T+4}, s30, v{T+2}
        v_lshl_add_u32 v{AW}, v{T+4}, 6, v{T+3}
        v_xor_b32 v{AW+1}, 64, v{AW}
        """)
        for i in range(64): a(f"v_mov_b32 v{ACC+i}, 0")
        a(f"s_mov_b32 s{SS}, 0\ns_mov_b32 s{SLOT}, 0\ns_barrier")
        self.stampx(16, True); self.stamp(61)
        def nextslot(stride, total):
            a(f"""
            s_add_u32 s30, s{SLOT}, {stride}
            s_cmp_eq_u32 s30, {total}
            s_cselect_b32 s30, 0, s30
            s_sub_u32 s{DL}, s30, s{SLOT}
            s_mov_b32 s{SLOT}, s30
            s_add_u32 s{SS}, s{SS}, 1
            """)
        def reads(s):
            l = [f"ds_read_b128 v[{FX+s*16+mt*4}:{FX+s*16+mt*4+3}], v{AX+s} offset:{mt*4096}" for mt in range(2)]
            for nt in range(2):
                for hf in range(2):
                    r = FX + s * 16 + 8 + nt * 4 + hf * 2
                    l.append(f"ds_read_b64_tr_b16 v[{r}:{r+1}], v{AW+nt} offset:{s*4096 + hf*1024}")
            return l
        for x in reads(0) + reads(1): a(x)
        a(f"s_cmp_eq_u32 s{S_TYPE}, 1\ns_cbranch_scc1 L_a1v")
        def a1loop(vtype, lab):
            a.label(lab)
            for s in range(4):
                a("s_waitcnt lgkmcnt(6)")
                if s == 2:
                    a(f"s_cmp_lt_u32 s{SS}, 9\ns_cbranch_scc1 {lab}b\ns_waitcnt lgkmcnt(0)")
                    a.label(lab + "b")
                    a("s_barrier")
                    self.stampx(16)
                mf = []
                for mt in range(2):
                    for nt in range(2):
                        d = ACC + (mt * 2 + nt) * 16
                        x = f"v[{FX+s*16+mt*4}:{FX+s*16+mt*4+3}]"; w = f"v[{FX+s*16+8+nt*4}:{FX+s*16+8+nt*4+3}]"
                        A, B = (x, w) if vtype else (w, x)
                        mf.append(f"v_mfma_f32_32x32x16_bf16 v[{d}:{d+15}], {A}, {B}, v[{d}:{d+15}]")
                ilv(a, mf, reads((s + 2) % 4))
                if s == 0: nextslot(32768, 163840)
                if s == 3 and not self.opt.get("warmb_old") and self.opt.get("wbat") != "0":
                    a(f"s_cmp_lg_u32 s{SS}, {self.opt.get('wbat', 2)}\ns_cbranch_scc1 {lab}w")
                    a("buffer_load_dword v154, v155, s[12:15], s45 offen\ns_mov_b32 exec_hi, 0\nbuffer_load_dword v154, v155, s[12:15], s46 offen\ns_mov_b32 exec_hi, -1\ns_nop 3")
                    a.label(lab + "w")
                if s == 1:
                    for r in (AX, AX + 1, AX + 2, AX + 3, AW, AW + 1): a(f"v_add_u32 v{r}, s{DL}, v{r}")
            a(f"s_cmp_lt_u32 s{SS}, 9\ns_cbranch_scc1 {lab}")
        a1loop(False, "L_a1qk")
        self.stamp(1); self.stamp(62)
        self.dbg_load()
        a(f"""
        s_lshl_b32 s30, s{S_NB}, 5
        s_lshl_b32 s31, s{WN}, 4
        s_add_u32 s30, s30, s31
        s_mul_i32 s31, s{S_MB}, {QS}
        s_add_u32 s31, s31, s30
        s_lshl_b32 s31, s31, 10
        s_lshl_b32 s32, s{WM}, 9
        s_add_u32 s31, s31, s32
        s_add_u32 s31, s31, {QKP}
        v_lshlrev_b32 v{T+2}, 4, v1
        v_lshl_add_u32 v{T+2}, v{T+1}, 10, v{T+2}
        s_mov_b32 s32, {QSCALE}
        s_cmp_ge_u32 s30, 144
        s_cselect_b32 s32, 1.0, s32
        s_mov_b32 s33, s32
        s_waitcnt lgkmcnt(0)
        """)
        for nt in range(2):
            for g in range(4):
                o = FX + (nt * 4 + g) * 4
                for mt in range(2):
                    d = ACC + (mt * 2 + nt) * 16 + 4 * g
                    a(f"v_pk_mul_f32 v[{d}:{d+1}], v[{d}:{d+1}], s[32:33]\nv_pk_mul_f32 v[{d+2}:{d+3}], v[{d+2}:{d+3}], s[32:33]")
                for mt in range(2):
                    d = ACC + (mt * 2 + nt) * 16 + 4 * g
                    a(f"v_cvt_pk_bf16_f32 v{o+2*mt}, v{d}, v{d+1}\nv_cvt_pk_bf16_f32 v{o+2*mt+1}, v{d+2}, v{d+3}")
                a(f"buffer_store_dwordx4 v[{o}:{o+3}], v{T+2}, s[4:7], s31 offen offset:{(g%2)*2048} {WT}")
                if g % 2 == 1: a("s_add_u32 s31, s31, 4096")
        a("s_branch L_a1done")
        a1loop(True, "L_a1v")
        self.stamp(1); self.stamp(62)
        self.dbg_load()
        a(f"""
        s_sub_u32 s30, s{S_NB}, 9
        s_lshl_b32 s30, s30, 7
        s_lshl_b32 s31, s{WN}, 6
        s_add_u32 s30, s30, s31
        s_lshl_b32 s31, s{S_MB}, 4
        s_lshl_b32 s32, s{WM}, 3
        s_add_u32 s31, s31, s32
        s_mul_i32 s31, s31, {VS}
        s_lshl_b32 s32, s30, 4
        s_add_u32 s31, s31, s32
        s_add_u32 s31, s31, {VT}
        v_mul_u32_u24 v{T+2}, {VS}, v{T+1}
        v_lshl_add_u32 v{T+2}, v1, 4, v{T+2}
        s_waitcnt lgkmcnt(0)
        s_cmp_ge_u32 s30, 576
        s_cbranch_scc1 L_a1done
        """)
        for mt in range(2):
            for m in range(2):
                for nt in range(2):
                    d = ACC + (mt * 2 + nt) * 16 + 8 * m
                    for r in range(4): a(f"v_cvt_pk_bf16_f32 v{d+r}, v{d+2*r}, v{d+2*r+1}")
                    a(f"buffer_store_dwordx4 v[{d}:{d+3}], v{T+2}, s[4:7], s31 offen offset:{nt*512} {WT}")
                a(f"s_add_u32 s31, s31, {2*VS}")
        a.label("L_a1done")
        self.stamp(2)
        if self.opt.get("drain1"): a("s_waitcnt vmcnt(0)"); self.stamp(7)
        a(f"s_mov_b32 s{S_HALF}, 1\ns_mov_b32 s{S_CH}, s{S_CHB}\ns_branch L_b1pre")
        a.label("L_aux_sp")
        a("s_barrier")
        self.zero_flags()
        self.lam_early(f"s{S_CHA}")
        a(f"""
        s_lshl_b32 s30, s{S_CHB}, 6
        v_lshl_add_u32 v23, v1, 1, s30
        global_load_ushort v166, v23, s[{P_LRE}:{P_LRE+1}]
        global_load_ushort v24, v23, s[{P_LIM}:{P_LIM+1}]
        global_load_ushort v154, v23, s[{P_LDT}:{P_LDT+1}]
        s_waitcnt vmcnt(0)
        v_lshl_or_b32 v166, v24, 16, v166
        """)
        AB, BF, WA, ONE, AC1, CW, RAW, AX2, AB2 = 8, 16, self.WA, self.ONE, 112, 155, 164, 144, 148
        T = 158; BC = self.BC
        PA = [164, 165, 12, 13, 14, 15]
        a.label("L_b1pre")
        for i in range(2): a(f"v_mov_b32 v{164+i}, v{10+i}")
        a(f"s_mov_b32 s{BC}, 0\nv_mov_b32 v{WA}, {W_BAR}\nv_mov_b32 v{ONE}, 1\nv_mov_b32 v{CW}, {W_FULL}\ns_lshl_b32 s48, s{S_LW}, 12\ns_lshl_b32 s49, s{S_LW}, 11")
        if self.opt.get("iss"): self.lds_add1(WA, ONE, W_ISS - W_BAR)
        self.swz(AB, T, B1BASE + 16384)
        a(f"s_sub_u32 s30, s48, 16384")
        for s in range(4): a(f"v_add_u32 v{AX+s}, s30, v{AB+s}")
        def publish():
            a(f"""
            s_cmp_eq_u32 s{S_TYPE}, 2
            s_cbranch_scc1 L_pubx
            s_lshl_b32 s30, s{S_NB}, 7
            s_add_u32 s31, s30, 128
            s_cmp_eq_u32 s{S_TYPE}, 1
            s_cselect_b32 s32, 1152, 0
            v_mul_u32_u24 v{T+2}, 18, v2
            v_add_u32 v{T+2}, s32, v{T+2}
            v_add_u32 v{T+3}, 18, v{T+2}
            v_max_u32 v{T+2}, s30, v{T+2}
            v_min_u32 v{T+3}, s31, v{T+3}
            v_min_u32 v{T+3}, 0x6c0, v{T+3}
            v_cmp_lt_u32 vcc, v{T+2}, v{T+3}
            v_sub_u32 v{T+2}, v{T+3}, v{T+2}
            v_mul_u32_u24 v{T+3}, {F1STRIDE}, v1
            s_and_b32 s31, s{S_MB}, {NSUB-1}
            s_lshl_b32 s31, s31, 7
            s_add_u32 s31, s31, {F1}
            """)
            a(f"s_waitcnt vmcnt(0)")
            self.dbg_verify()
            self.stamp(9)
            a(f"""
            s_mov_b64 exec, 1
            ds_add_rtn_u32 v{T+1}, v{WA}, v{ONE} offset:4
            s_mov_b64 exec, -1
            s_waitcnt lgkmcnt(0)
            v_readfirstlane_b32 s35, v{T+1}
            s_cmp_lg_u32 s35, 3
            s_cbranch_scc1 L_pubx
            s_mov_b64 exec, vcc
            buffer_atomic_add v{T+2}, v{T+3}, s[4:7], s31 offen sc1
            s_mov_b64 exec, -1
            """)
            if self.opt.get("rt"): self.stamp(53, True); a("s_waitcnt vmcnt(0)"); self.stamp(54, True)
            a.label("L_pubx")
        a.label("L_b1")
        for s in range(4): a(f"v_add_u32 v{AB2+s}, {2*BSLOT}, v{AB+s}\nv_add_u32 v{AX2+s}, {2*BSLOT}, v{AX+s}")
        PUB = int(self.opt.get("pubat", -1))
        if PUB < 0: publish()
        def rl(st):
            l = []; ax, ab = (AX, AB) if st % NS1 < 2 else (AX2, AB2); off = ((st % NS1) % 2) * BSLOT
            for s in range(4):
                b = BF + (st % 2) * 48 + s * 12
                l.append(f"ds_read_b128 v[{b}:{b+3}], v{ax+s} offset:{off}")
                for nt in range(2): l.append(f"ds_read_b128 v[{b+4+nt*4}:{b+7+nt*4}], v{ab+s} offset:{off + nt*4096}")
            return l
        def mfl(st):
            l = []
            for s in range(4):
                b = BF + (st % 2) * 48 + s * 12
                for nt in range(2):
                    d = AC1 + nt * 16; c = "0" if st == 0 and s == 0 else f"v[{d}:{d+15}]"
                    l.append(f"v_mfma_f32_32x32x16_bf16 v[{d}:{d+15}], v[{b}:{b+3}], v[{b+4+nt*4}:{b+7+nt*4}], {c}")
            return l
        def sp_hook():
            a(f"s_add_u32 s30, s{S_TYPE}, s{S_HALF}\ns_cmp_lg_u32 s30, 3\ns_cbranch_scc1 L_sph")
            a(f"s_cmp_lg_u32 s{S_WAVE}, 3\ns_cbranch_scc1 L_sph")
            self.f2flag(S_CHA, T + 2)
            a.label("L_sph")
        def h5():
            a(f"s_cmp_lg_u32 s{S_HALF}, 0\ns_cbranch_scc1 L_h5")
            self.dbg_load()
            a.label("L_h5")
        def h7():
            a(f"s_cmp_lg_u32 s{S_HALF}, 0\ns_cbranch_scc1 L_h7\ns_waitcnt vmcnt(0)")
            self.dbg_verify()
            self.stamp(1)
            a.label("L_h7")
        self.gemm_cons("L_g1", 9, T, CW, rl, mfl, 9, {3: sp_hook, 5: h5, 7: h7, PUB: publish})
        a(f"v_add_u32 v{CW}, 36, v{CW}\ns_nop 4")
        pass
        self.stamp(3)
        for i, r in enumerate((LR, LI, CR, CI, MUR, MUI)): a(f"v_mov_b32 v{r}, v{PA[i]}")
        for t in range(16):
            u, w, d = AC1 + t, AC1 + 16 + t, BS + 2 * t
            hi = t % 2; up, wp = u - hi, w - hi
            if self.opt.get("nopk"): a(f"v_mul_f32 v{d}, v{CR}, v{u}\nv_mul_f32 v{d+1}, v{CR}, v{w}\nv_fma_f32 v{d}, -v{CI}, v{w}, v{d}\nv_fmac_f32 v{d+1}, v{CI}, v{u}")
            else: a(f"v_pk_mul_f32 v[{d}:{d+1}], v[{CR}:{CI}], v[{up}:{up+1}] op_sel:[0,{hi}] op_sel_hi:[1,{hi}]")
            if not self.opt.get("nopk"): a(f"v_pk_fma_f32 v[{d}:{d+1}], v[{CR}:{CI}], v[{wp}:{wp+1}], v[{d}:{d+1}] op_sel:[1,{hi},0] op_sel_hi:[0,{hi},1] neg_lo:[1,0,0]")
            if t >= 1:
                g0 = BS if t == 1 else T + 2 + 2 * (t % 2); g1 = T + 2 + 2 * ((t + 1) % 2)
                self.cmac(g1, LR, g0, d)
        GR = T + 2; TT = T + 4
        a(f"""
        s_lshl_b32 s31, s{S_WAVE}, 9
        s_add_u32 s30, s31, {LDS_SCR}
        v_lshl_add_u32 v{TT}, v2, 3, s30
        ds_write_b64 v{TT}, v[{GR}:{GR+1}]
        v_lshlrev_b32 v{TT+1}, 3, v2
        v_add_u32 v{TT+1}, {LDS_SCR - 256}, v{TT+1}
        """)
        self.bar(T)
        EV = BF
        for j in range(8): a(f"ds_read_b64 v[{EV+2*j}:{EV+2*j+1}], v{TT+1} offset:{j*256}")
        a("s_waitcnt lgkmcnt(0)")
        self.partb(EV, T)
        def spill(op, base):
            a(f"s_lshl_b32 s30, s2, 2\ns_add_u32 s30, s30, s{S_WAVE}\ns_mul_i32 s30, s30, {12*1024}\ns_add_u32 s30, s30, {SPILL}")
            for i in range(10):
                a(f"buffer_{op}_dwordx4 v[{base+4*i}:{base+4*i+3}], v3, s[4:7], s30 offen offset:{(i%4)*1024}")
                if i % 4 == 3: a("s_add_u32 s30, s30, 4096")
            a(f"buffer_{op}_dwordx2 v[{base+40}:{base+41}], v3, s[4:7], s30 offen offset:2048")
        a(f"s_cmp_lg_u32 s{S_HALF}, 0\ns_cbranch_scc1 L_b1done")
        spill("store", BS)
        a("v_and_b32 v16, 0xffff, v166\nv_lshrrev_b32 v17, 16, v166\nv_mov_b32 v18, v154")
        self.lam_calc(16, 10)
        for i in range(2): a(f"v_mov_b32 v{164+i}, v{10+i}")
        self.swz(AB, T, B1BASE + 16384)
        a(f"s_mov_b32 s{S_HALF}, 1\ns_mov_b32 s{S_CH}, s{S_CHB}\ns_branch L_b1")
        a.label("L_b1done")
        self.stamp(4)
        a(f"s_add_u32 s46, s48, {TSCR}\ns_cmp_lg_u32 s{S_TYPE}, 2\ns_cbranch_scc1 L_nsp")
        spill("load", 108)
        a.label("L_nsp")
        self.wait_prog(W_LAND + 4, T, 4)
        if self.opt.get("nop2"): a("s_setprio 0")
        a.label("L_p2")
        self.pass2(BF, T)
        a(f"s_cmp_lg_u32 s{S_TYPE}, 2\ns_cbranch_scc1 L_p2end\ns_cmp_eq_u32 s{S_CH}, s{S_CHA}\ns_cbranch_scc1 L_p2end")
        if self.opt.get("nopk"):
            for i in range(42): a(f"v_mov_b32 v{BS+i}, v{108+i}")
        else:
            for i in range(21): a(f"v_pk_mov_b32 v[{BS+2*i}:{BS+2*i+1}], v[{108+2*i}:{109+2*i}], v[{108+2*i}:{109+2*i}] op_sel:[0,1]")
        a(f"s_mov_b32 s{S_CH}, s{S_CHA}\ns_branch L_p2")
        a.label("L_p2end")
        self.stamp(6)
        self.lds_add1(WA, ONE, W_P2 - W_BAR)
        self.p3_ids()
        self.p3(T)

    def lam_early(self, ch):
        a = self.a
        a(f"""
        s_lshl_b32 s30, {ch}, 6
        v_lshl_add_u32 v23, v1, 1, s30
        global_load_ushort v16, v23, s[{P_LRE}:{P_LRE+1}]
        global_load_ushort v17, v23, s[{P_LIM}:{P_LIM+1}]
        global_load_ushort v18, v23, s[{P_LDT}:{P_LDT+1}]
        s_waitcnt vmcnt(0)
        """)
        self.lam_calc(16, 10)
    def cmac(self, d, m, g, c):
        if self.opt.get("nopk"):
            self.a(f"v_fma_f32 v{d}, v{m}, v{g}, v{c}\nv_fma_f32 v{d+1}, v{m}, v{g+1}, v{c+1}\nv_fma_f32 v{d}, -v{m+1}, v{g+1}, v{d}\nv_fmac_f32 v{d+1}, v{m+1}, v{g}")
            return
        self.a(f"v_pk_fma_f32 v[{d}:{d+1}], v[{m}:{m+1}], v[{g}:{g+1}], v[{c}:{c+1}] op_sel_hi:[0,1,1]")
        self.a(f"v_pk_fma_f32 v[{d}:{d+1}], v[{m}:{m+1}], v[{g}:{g+1}], v[{d}:{d+1}] op_sel:[1,1,0] op_sel_hi:[1,0,1] neg_lo:[1,0,0]")
    def cmul(self, d, m, g):
        if self.opt.get("nopk"):
            self.a(f"v_mul_f32 v{d}, v{m}, v{g}\nv_mul_f32 v{d+1}, v{m}, v{g+1}\nv_fma_f32 v{d}, -v{m+1}, v{g+1}, v{d}\nv_fmac_f32 v{d+1}, v{m+1}, v{g}")
            return
        self.a(f"v_pk_mul_f32 v[{d}:{d+1}], v[{m}:{m+1}], v[{g}:{g+1}] op_sel_hi:[0,1]")
        self.a(f"v_pk_fma_f32 v[{d}:{d+1}], v[{m}:{m+1}], v[{g}:{g+1}], v[{d}:{d+1}] op_sel:[1,1,0] op_sel_hi:[1,0,1] neg_lo:[1,0,0]")
    def lam_calc(self, T, P):
        a = self.a; L2E = f32(math.log2(math.e))
        LR, LI, CR, CI, MUR, MUI = range(P, P + 6)
        a(f"""
        v_lshlrev_b32 v{T}, 16, v{T}
        v_lshlrev_b32 v{T+1}, 16, v{T+1}
        v_lshlrev_b32 v{T+2}, 16, v{T+2}
        v_mul_f32 v{T+2}, {L2E}, v{T+2}
        v_exp_f32 v{T+2}, v{T+2}
        s_nop 0
        v_cvt_pk_bf16_f32 v{T+2}, v{T+2}, v{T+2}
        v_lshlrev_b32 v{T+2}, 16, v{T+2}
        v_mul_f32 v{T+3}, v{T+2}, v{T}
        v_mul_f32 v{T+4}, v{T+2}, v{T+1}
        v_mul_f32 v{T+3}, {L2E}, v{T+3}
        v_mul_f32 v{T+4}, {f32(1/(2*math.pi))}, v{T+4}
        v_exp_f32 v{T+3}, v{T+3}
        v_fract_f32 v{T+4}, v{T+4}
        v_cos_f32 v{T+5}, v{T+4}
        v_sin_f32 v{T+6}, v{T+4}
        s_nop 0
        v_mul_f32 v{LR}, v{T+3}, v{T+5}
        v_mul_f32 v{LI}, v{T+3}, v{T+6}
        v_mul_f32 v{T+3}, v{T}, v{T}
        v_fmac_f32 v{T+3}, v{T+1}, v{T+1}
        v_rcp_f32 v{T+3}, v{T+3}
        v_add_f32 v{T+4}, -1.0, v{LR}
        v_mul_f32 v{T+5}, v{T+4}, v{T}
        v_fmac_f32 v{T+5}, v{LI}, v{T+1}
        v_mul_f32 v{T+6}, v{LI}, v{T}
        v_fma_f32 v{T+6}, -v{T+4}, v{T+1}, v{T+6}
        v_add_f32 v{T+3}, v{T+3}, v{T+3}
        v_mul_f32 v{CR}, v{T+5}, v{T+3}
        v_mul_f32 v{CI}, v{T+6}, v{T+3}
        v_mov_b32 v{MUR}, v{LR}
        v_mov_b32 v{MUI}, v{LI}
        """)
        for i in range(4):
            a(f"""
            v_mul_f32 v{T+3}, v{MUI}, v{MUI}
            v_mul_f32 v{T+4}, v{MUR}, v{MUI}
            v_fma_f32 v{MUR}, v{MUR}, v{MUR}, -v{T+3}
            v_add_f32 v{MUI}, v{T+4}, v{T+4}
            """)

    def f2flag(self, ch, TT):
        self.a(f"""
        s_lshl_b32 s30, s{ch}, 5
        s_add_u32 s30, s30, s{S_MB}
        s_lshl_b32 s30, s30, 2
        s_add_u32 s30, s30, {F2}
        s_waitcnt vmcnt(0)
        """)
        self.flag_store([30], TT)
    def partb(self, EV, TT):
        a = self.a
        a(f"""
        v_cndmask_b32 v{LCR}, 0, v{EV}, s[62:63]
        v_cndmask_b32 v{LCI}, 0, v{EV+1}, s[62:63]
        v_cndmask_b32 v{PWR}, 1.0, v{MUR}, s[62:63]
        v_cndmask_b32 v{PWI}, 0, v{MUI}, s[62:63]
        """)
        for j in range(1, 7):
            if j % 2 == 1:
                a(f"s_cmp_lt_u32 s{S_WAVE}, {(j+1)//2}\ns_cbranch_scc1 L_pbne")
                self.cmul(TT, MUR, PWR); self.cmac(TT + 2, MUR, LCR, EV + 2 * j)
            else:
                self.cmul(PWR, MUR, TT); self.cmac(LCR, MUR, TT + 2, EV + 2 * j)
        EB = EV + 14
        a(f"""
        s_mul_i32 s30, s{S_MB}, {576*8}
        s_lshl_b32 s31, s{S_CH}, 8
        s_add_u32 s30, s30, s31
        s_add_u32 s30, s30, {EE - 256}
        v_lshlrev_b32 v{TT+2}, 3, v2
        """)
        self.cmac(TT, MUR, LCR, EB)
        a(f"""
        s_mov_b32 exec_lo, 0
        buffer_store_dwordx2 v[{TT}:{TT+1}], v{TT+2}, s[4:7], s30 offen {WT}
        s_mov_b32 exec_lo, -1
        s_cmp_eq_u32 s{S_HALF}, 0
        s_cbranch_scc1 L_pbne
        """)
        self.f2flag(S_CH, TT)
        a.label("L_pbne")
        self.cmul(TT + 4, MUR, MUR); self.cmul(CR, TT + 4, TT + 4); self.cmul(MUR, CR, CR); self.cmul(CR, MUR, MUR)

    def pass2(self, EV, T):
        a = self.a
        GR, GI, TT, AD, M2R = T, T + 1, T + 2, T + 4, CR
        a(f"""
        s_cmp_eq_u32 s{S_MB}, 0
        s_cbranch_scc1 L_pollF2_x
        s_sub_u32 s35, s{S_MB}, 1
        v_min_u32 v{AD}, s35, v2
        v_lshlrev_b32 v{AD}, 2, v{AD}
        s_lshl_b32 s34, s{S_CH}, 7
        s_add_u32 s34, s34, {F2}
        """)
        self.poll("L_pollF2", TT, AD, "s34", sleep=4)
        a(f"""
        s_add_u32 s8, s{P_WS}, {EE}
        s_addc_u32 s9, s{P_WS+1}, 0
        s_and_b32 s9, s9, 0xffff
        s_mov_b32 s10, {16*576*8}
        s_mov_b32 s11, 0x20000
        v_lshrrev_b32 v{TT}, 5, v2
        v_mul_u32_u24 v{TT}, {576*8}, v{TT}
        v_lshlrev_b32 v{AD}, 3, v1
        v_sub_u32 v{AD}, v{AD}, v{TT}
        s_sub_u32 s34, s{S_MB}, 1
        s_mul_i32 s34, s34, {576*8}
        v_add_u32 v{AD}, s34, v{AD}
        s_lshl_b32 s34, s{S_CH}, 8
        """)
        for i in range(8):
            a(f"buffer_load_dwordx2 v[{EV+2*i}:{EV+2*i+1}], v{AD}, s[8:11], s34 offen sc0 sc1")
            if i < 7: a(f"v_subrev_u32 v{AD}, {2*576*8}, v{AD}")
        a(f"""
        s_waitcnt vmcnt(0)
        """)
        for i in range(6, -1, -1): self.cmac(EV + 2 * i, M2R, EV + 2 * i + 2, EV + 2 * i)
        a(f"""
        v_mov_b32 v{AD}, v{EV}
        v_mov_b32 v{AD+1}, v{EV+1}
        s_nop 1
        v_permlane32_swap_b32 v{EV}, v{AD}
        v_permlane32_swap_b32 v{EV+1}, v{AD+1}
        s_nop 1
        """)
        self.cmac(EV, MUR, AD, EV)
        self.cmac(GR, PWR, EV, LCR)
        for t in range(16): self.cmac(BS + 2 * t, LR, GR if t == 0 else BS + 2 * t - 2, BS + 2 * t)
        a(f"""
        s_lshl_b32 s34, s{S_MB}, 2
        s_add_u32 s34, s34, s{S_WAVE}
        s_mul_i32 s34, s34, {HS}
        s_add_u32 s34, s34, s{S_CH}
        s_lshl_b32 s34, s34, 11
        s_add_u32 s34, s34, {HH}
        s_add_u32 s35, s34, {18*2048}
        v_lshrrev_b32 v{TT}, 5, v2
        v_lshlrev_b32 v{AD}, 4, v1
        v_mul_u32_u24 v{TT}, {1024+128}, v{TT}
        v_xor_b32 v{AD}, v{AD}, v{TT}
        v_xor_b32 v{AD+1}, {512+64}, v{AD}
        """)
        a(f"s_mov_b32 s30, s46\nv_add_u32 v{AD}, s30, v{AD}\nv_add_u32 v{AD+1}, s30, v{AD+1}")
        for c in range(2):
            for jj in range(2):
                d = EV + 16 + 8 * c + 4 * jj; n = "-" if c else ""
                for r in range(4): a(f"v_cvt_pk_bf16_f32 v{d+r}, {n}v{BS+16*jj+4*r+c}, {n}v{BS+16*jj+4*r+2+c}")
                a(f"ds_write_b128 v{AD+jj}, v[{d}:{d+3}] offset:{c*2048}")
        m = EV
        a(f"""
        v_lshrrev_b32 v{m}, 5, v2
        v_bfe_u32 v{m+1}, v2, 2, 2
        v_lshl_add_u32 v{m+1}, v{m}, 3, v{m+1}
        v_bfe_u32 v{m+2}, v2, 4, 1
        v_bfe_u32 v{m+3}, v2, 1, 1
        v_lshl_add_u32 v{m+2}, v{m+2}, 1, v{m+3}
        v_lshlrev_b32 v{m+3}, 2, v{m+2}
        v_xor_b32 v{m+1}, v{m+1}, v{m+3}
        v_and_b32 v{m+3}, 1, v2
        v_lshlrev_b32 v{m+3}, 3, v{m+3}
        v_lshl_add_u32 v{m+3}, v{m+2}, 9, v{m+3}
        v_add_u32 v{m+3}, s30, v{m+3}
        v_lshl_add_u32 v{m}, v{m+1}, 4, v{m+3}
        v_xor_b32 v{m+1}, 64, v{m}
        """)
        for c in range(2):
            for j in range(2):
                d = EV + 32 + 8 * c + 4 * j
                for hf in range(2): a(f"ds_read_b64_tr_b16 v[{d+2*hf}:{d+2*hf+1}], v{m+hf} offset:{c*2048 + j*256}")
        a("s_waitcnt lgkmcnt(0)")
        for c in range(2):
            for j in range(2):
                d = EV + 32 + 8 * c + 4 * j
                a(f"buffer_store_dwordx4 v[{d}:{d+3}], v3, s[4:7], s{34+c} offen offset:{j*1024} {WT}")
        a(f"""
        s_mul_i32 s30, s{S_MB}, 24
        s_add_u32 s31, s30, s{S_CH}
        s_lshl_b32 s31, s31, 2
        s_add_u32 s31, s31, s{S_WAVE}
        s_lshl_b32 s31, s31, 2
        s_add_u32 s31, s31, {F3}
        s_waitcnt vmcnt(0)
        """)
        self.flag_store([31], TT)

    def a3_setup(self, PB, T):
        a = self.a
        a(f"""
        v_lshrrev_b32 v{T}, 2, v2
        v_and_b32 v{T+1}, 3, v2
        v_and_b32 v{T+2}, 3, v{T}
        v_bfe_u32 v{T+3}, v{T}, 2, 1
        v_lshl_add_u32 v{T+2}, v{T+3}, 3, v{T+2}
        v_lshrrev_b32 v{T+3}, 3, v{T}
        v_lshl_add_u32 v{T+2}, v{T+3}, 2, v{T+2}
        v_mul_u32_u24 v{T+2}, 1152, v{T+2}
        v_lshl_add_u32 v{PB}, v{T+1}, 4, v{T+2}
        v_lshrrev_b32 v{T+2}, 1, v{T}
        v_mul_u32_u24 v{T+2}, 18, v{T+2}
        v_and_b32 v{T+3}, 1, v{T}
        v_add3_u32 v{T+2}, v{T+2}, v{T+3}, 16
        v_mul_u32_u24 v{T+2}, 1152, v{T+2}
        v_lshl_add_u32 v{PB+1}, v{T+1}, 4, v{T+2}
        s_sub_u32 s30, s{S_P3NB}, 9
        s_mul_i32 s{S_CB}, s30, 192
        s_mov_b32 s{S_ST3}, s{S_LW}
        """)
        self.srd(12, P_WO, 576 * 1152)
    def a3_issue(self, PB, cnt):
        a = self.a; lab = a.newlabel("L_a3i")
        a("s_mov_b32 s35, 0")
        a.label(lab)
        a(f"""
        s_mul_i32 s30, s{S_ST3}, 3072
        s_add_u32 s31, s30, {WO2}
        s_sub_u32 s30, s30, {18*3072}
        s_add_u32 s32, s{S_ST3}, 18
        s_sub_u32 s34, s{S_ST3}, 18
        s_cmp_lt_u32 s{S_ST3}, 18
        s_cselect_b32 s30, s31, s30
        s_cselect_b32 s32, s32, s34
        s_mul_i32 s31, s32, {18*1152}
        v_mov_b32 v{PB+2}, v{PB}
        s_cmp_lt_u32 s32, 32
        s_cbranch_scc1 {lab}m
        s_sub_u32 s32, s32, 32
        s_mul_i32 s31, s32, {8*18*1152}
        v_mov_b32 v{PB+2}, v{PB+1}
        """)
        a.label(lab + "m")
        a(f"s_add_u32 s31, s31, s{S_CB}")
        for nt in range(3):
            a(f"s_add_u32 m0, s30, {nt*1024}\ns_add_u32 s32, s31, {nt*64}\nbuffer_load_dwordx4 v{PB+2}, s[12:15], s32 offen lds")
        a(f"s_add_u32 s{S_ST3}, s{S_ST3}, 4\ns_add_u32 s35, s35, 1\ns_cmp_lt_u32 s35, {cnt}\ns_cbranch_scc1 {lab}")
    def xd(self, T, XD, ACC):
        a = self.a
        a(f"""
        v_lshrrev_b32 v{T+1}, 5, v2
        v_mul_u32_u24 v{T}, 1152, v1
        v_lshl_add_u32 v{T}, v{T+1}, 3, v{T}
        s_mul_i32 s30, s{S_P3T}, {32*1152}
        s_lshl_b32 s31, s{S_P3NB}, 7
        s_add_u32 s30, s30, s31
        v_add_u32 v{T}, s30, v{T}
        v_lshl_add_u32 v{T+1}, v{T+1}, 3, s31
        """)
        for e in range(8):
            a(f"global_load_dwordx2 v[{XD+2*e}:{XD+2*e+1}], v{T}, s[{P_BX}:{P_BX+1}] offset:{e*16}")
            a(f"global_load_dwordx2 v[{XD+16+2*e}:{XD+16+2*e+1}], v{T+1}, s[{P_DSK}:{P_DSK+1}] offset:{e*16}")
    def xd_math(self, T, XD, ACC):
        a = self.a
        for e in range(8):
            d = ACC + 4 * e
            for q in range(2):
                x = XD + 2 * e + q; k = XD + 16 + 2 * e + q
                a(f"""
                v_lshlrev_b32 v{T+2}, 16, v{x}
                v_lshlrev_b32 v{T+3}, 16, v{k}
                v_and_b32 v{x}, 0xffff0000, v{x}
                v_and_b32 v{k}, 0xffff0000, v{k}
                v_fmac_f32 v{d+2*q}, v{T+2}, v{T+3}
                v_fmac_f32 v{d+2*q+1}, v{x}, v{k}
                """)

    def iwarm(self, name):
        if self.opt.get("noiw"): return
        a = self.a
        a(f"s_mov_b64 exec, 0\ns_branch {name}_0")
        a.label(name + "_ret")
        a("s_mov_b64 exec, -1")
    def aux_final(self, T):
        a = self.a; lab = a.newlabel("L_af")
        a("s_mov_b32 s34, 4")
        self.wait_prog(W_LAND + 28, T, sleep=32)
        self.wait_prog(FIN_OK, T, sleep=3)
        a(f"v_cmp_eq_u32 vcc, s30, v{T+1}\ns_cbranch_vccz {lab}\ns_barrier\ns_barrier\ns_barrier\ns_mov_b32 s34, 8")
        a.label(lab)
        a("s_setprio 3")

    B3R = dict(EA=155, FC=16, FH=48, ACC=120, D=18)
    def hload(self, k):
        FH, D = self.B3R["FH"], self.B3R["D"]
        r = FH + 4 * (k % D)
        l = [f"buffer_load_dwordx4 v[{r}:{r+3}], v3, s[4:7], s50 offen offset:{(k%4)*1024}"]
        if k % 4 == 3: l.append("s_add_u32 s50, s50, 4096")
        return l
    def b3_pre(self, T, half):
        a = self.a; ACC, D = self.B3R["ACC"], self.B3R["D"]
        self.srd(16, P_OUT, OUT_BYTES)
        self.swz(4, T, [TSCR, 0][half])
        for i in range(4): a(f"v_add_u32 v{8+i}, {([57344, 73728][half] - [TSCR, 0][half]) & 0xffffffff}, v{4+i}")
        a(f"""
        s_mov_b32 s49, {half}
        s_mul_i32 s34, s{S_P3MB}, 384
        s_lshl_b32 s30, s{S_LW}, 2
        s_add_u32 s34, s34, s30
        s_add_u32 s34, s34, {F3}
        v_min_u32 v{T}, 17, v2
        v_lshlrev_b32 v{T}, 4, v{T}
        """)
        self.poll(f"L_pollF3{half}", T + 1, T, "s34", sleep=16)
        self.stamp(7)
        a(f"s_mul_i32 s50, s{S_P3T}, {HS*2048}\ns_add_u32 s50, s50, {HH + half*36*1024}")
        a(f"s_lshl_b32 s31, s{S_P3NB}, 11\ns_add_u32 s30, s50, s31\ns_add_u32 s30, s30, {18*1024}")
        for n in range(2): a(f"buffer_load_dwordx4 v[{ACC}:{ACC+3}], v3, s[4:7], s30 offen offset:{n*1024}")
        for k in range(D):
            for x in self.hload(k): a(x)
    def b3_main(self, T):
        a = self.a; EA, FC, FH, ACC, D = (self.B3R[k] for k in ("EA", "FC", "FH", "ACC", "D"))
        self.lds_spin(self.WA, T, "s34", W_G2 - W_BAR)
        self.stamp(8); self.stamp(59)
        if not self.opt.get("noiw"): a.pad_begin("PB3", int(self.opt.get("padn", 7)))
        def crd(k):
            st, s = k // 4, k % 4
            A, off = (4, st * 8192) if st < 7 else (8, (st - 7) * 8192)
            return [f"ds_read_b128 v[{FC+8*s+4*nt}:{FC+8*s+4*nt+3}], v{A+s} offset:{off + nt*4096}" for nt in range(2)]
        for k in range(3):
            for x in crd(k): a(x)
        NK = 36
        for k in range(NK):
            if k in (9, 18, 27): a(f"s_setprio {3 - k//9}")
            if self.opt.get("stb") and k % 3 == 0: self.stamp(30 + k // 3)
            if k == 12:
                a(f"s_cmp_eq_u32 s49, 0\ns_cbranch_scc1 L_b3g\ns_waitcnt vmcnt(12)")
                self.lds_add1(self.WA, self.ONE, W_G3 - W_BAR)
                a("s_waitcnt lgkmcnt(0)")
                a.label("L_b3g")
            if k == 24: self.lds_add1(self.WA, self.ONE, W_B8 - W_BAR); a("s_waitcnt lgkmcnt(0)")
            if k + 3 == 28:
                a("s_lshl_b32 s31, s49, 2")
                self.lds_spin(self.WA, T, "s31", W_G3 - W_BAR)
            if k == 22:
                a(f"""
                v_lshrrev_b32 v{T+2}, 4, v2
                v_and_b32 v{T+3}, 15, v2
                v_mul_u32_u24 v{T+4}, 1152, v{T+2}
                v_lshl_add_u32 v{T+4}, v{T+3}, 3, v{T+4}
                s_lshl_b32 s31, s{S_P3NB}, 7
                v_lshl_add_u32 v{T+5}, v{T+3}, 3, s31
                global_load_dwordx2 v[{FH+8}:{FH+9}], v{T+5}, s[{P_DSK}:{P_DSK+1}]
                s_lshl_b32 s30, s{S_P3T}, 1
                s_add_u32 s30, s30, s49
                s_mul_i32 s30, s30, {16*1152}
                s_add_u32 s30, s30, s31
                """)
                self.srd(8, P_BX, 2048 * 1152)
                for n in range(4): a(f"buffer_load_dwordx2 v[{FH+2*n}:{FH+2*n+1}], v{T+4}, s[8:11], s30 offen\ns_add_u32 s30, s30, {4*1152}")
            a(f"s_waitcnt vmcnt({min(D-1, NK-1-k) + (5 if k >= 22 else 0)}) lgkmcnt({min(4, 2*(NK-1-k))})")
            h = FH + 4 * (k % D); r = crd(k + 3) if k + 3 < NK else []
            for nt in range(2):
                c = FC + 8 * (k % 4) + 4 * nt; d = ACC + 16 * nt
                a(f"v_mfma_f32_32x32x16_bf16 v[{d}:{d+15}], v[{c}:{c+3}], v[{h}:{h+3}], " + ("0" if k == 0 else f"v[{d}:{d+15}]"))
                if nt == 0:
                    for x in r: a(x)
            if k + D < NK:
                for x in self.hload(k + D): a(x)
        self.stamp(10)
        OF = self.opt.get('outf', 'sc0_sc1').replace('_', ' ')
        a(f"""
        s_mul_i32 s31, s{S_LW}, {32*272}
        s_cmp_eq_u32 s49, 0
        s_cselect_b32 s30, {TSCR}, 0
        s_add_u32 s30, s30, s31
        v_lshrrev_b32 v{T+1}, 5, v2
        v_mul_u32_u24 v{T+6}, 272, v1
        v_lshl_add_u32 v{T+6}, v{T+1}, 4, v{T+6}
        v_add_u32 v{T+6}, s30, v{T+6}
        s_mul_i32 s30, s49, {16*272}
        s_add_u32 s31, s31, s30
        v_mul_u32_u24 v{T+1}, 272, v{T+2}
        v_lshl_add_u32 v{T+1}, v{T+3}, 4, v{T+1}
        v_add_u32 v{T+1}, s31, v{T+1}
        v_add_u32 v{T+4}, {TSCR}, v{T+1}
        v_mul_u32_u24 v{EA}, 4608, v{T+2}
        v_lshl_add_u32 v{EA}, v{T+3}, 4, v{EA}
        """)
        self.lds_spin(self.WA, T, 8, W_B8 - W_BAR)
        for e in range(8): a(f"ds_write_b128 v{T+6}, v[{ACC+4*e}:{ACC+4*e+3}] offset:{e*32}")
        self.lds_add1(self.WA, self.ONE, W_B8 - W_BAR)
        DD = FH + 12
        a(f"""
        s_lshl_b32 s30, s{S_P3T}, 1
        s_add_u32 s30, s30, s49
        s_mul_i32 s30, s30, {16*4608}
        s_lshl_b32 s31, s{S_P3NB}, 8
        s_add_u32 s30, s30, s31
        s_add_u32 s30, s30, {576*4}
        s_waitcnt vmcnt(0)
        v_lshlrev_b32 v{DD}, 16, v{FH+8}
        v_and_b32 v{DD+1}, 0xffff0000, v{FH+8}
        v_lshlrev_b32 v{DD+2}, 16, v{FH+9}
        v_and_b32 v{DD+3}, 0xffff0000, v{FH+9}
        """)
        for n in range(4):
            x = FH + 2 * n; t = DD + 4 + 4 * n
            a(f"v_lshlrev_b32 v{t}, 16, v{x}\nv_and_b32 v{t+1}, 0xffff0000, v{x}\nv_lshlrev_b32 v{t+2}, 16, v{x+1}\nv_and_b32 v{t+3}, 0xffff0000, v{x+1}")
        self.lds_spin(self.WA, T, 16, W_B8 - W_BAR)
        self.stamp(11); self.stamp(60)
        for n in range(4):
            a(f"ds_read_b128 v[{FC+8*n}:{FC+8*n+3}], v{T+1} offset:{n*4*272}\nds_read_b128 v[{FC+8*n+4}:{FC+8*n+7}], v{T+4} offset:{n*4*272}")
        for n in range(4):
            d = FC + 8 * n; t = DD + 4 + 4 * n
            a(f"""
            s_waitcnt lgkmcnt({6-2*n})
            v_pk_fma_f32 v[{d}:{d+1}], v[{t}:{t+1}], v[{DD}:{DD+1}], v[{d}:{d+1}]
            v_pk_fma_f32 v[{d+2}:{d+3}], v[{t+2}:{t+3}], v[{DD+2}:{DD+3}], v[{d+2}:{d+3}]
            v_pk_add_f32 v[{d}:{d+1}], v[{d}:{d+1}], v[{d+4}:{d+5}]
            v_pk_add_f32 v[{d+2}:{d+3}], v[{d+2}:{d+3}], v[{d+6}:{d+7}]
            buffer_store_dwordx4 v[{d}:{d+3}], v{EA}, s[16:19], s30 offen {OF}
            s_add_u32 s30, s30, {4*4608}
            """)
        a("s_branch L_exit")
        if a.pad: a.pad_end("PB3_ret")

    def p3(self, T):
        a = self.a
        self.srd(16, P_OUT, OUT_BYTES)
        a(f"s_cmp_ge_u32 s{S_IDX}, 18\ns_cbranch_scc1 L_a3")
        self.iwarm("PB3")
        self.b3_pre(T, 0)
        self.aux_final(T)
        a.label("L_b3main")
        self.b3_main(T)
        a.label("L_a3")
        OF = self.opt.get('outf', 'sc0_sc1').replace('_', ' ')
        self.iwarm("PA3")
        a(f"s_cmp_ge_u32 s{S_IDX}, 30\ns_cbranch_scc1 L_a3n\ns_lshl_b32 s34, s{S_P3T}, 7\ns_add_u32 s34, s34, {F4}\nv_lshlrev_b32 v{T}, 2, v1")
        self.poll("L_pollF4", T + 1, T, "s34", sleep=16)
        a.label("L_a3n")
        self.aux_final(T)
        a(f"s_cmp_ge_u32 s{S_IDX}, 30\ns_cbranch_scc1 L_exit")
        self.lds_spin(self.WA, T, "s34", W_G2 - W_BAR)
        self.stamp(8)
        AW, EA, T, FW, ACC, FO = 4, 6, 8, 16, 52, 100
        D = 16
        a(f"""
        v_lshlrev_b32 v{T+4}, 2, v1
        v_lshrrev_b32 v{T+1}, 5, v2
        v_bfe_u32 v{T+2}, v2, 2, 2
        v_lshl_add_u32 v{T+3}, v{T+1}, 3, v{T+2}
        v_lshlrev_b32 v{T+3}, 6, v{T+3}
        v_bfe_u32 v{T+2}, v2, 4, 1
        v_lshl_add_u32 v{T+3}, v{T+2}, 5, v{T+3}
        v_and_b32 v{T+2}, 3, v2
        v_lshl_add_u32 v{AW}, v{T+2}, 3, v{T+3}
        v_add_u32 v{AW+1}, {WO2}, v{AW}
        v_lshl_add_u32 v{EA+1}, v{T+1}, 9, v{T+4}
        """)
        def rl3(s):
            st, off = (0, s * 3072) if s < 18 else (1, (s - 18) * 3072)
            l = []
            for nt in range(3):
                for hf in range(2):
                    r = FW + (s % 3) * 12 + nt * 4 + hf * 2
                    l.append(f"ds_read_b64_tr_b16 v[{r}:{r+1}], v{AW+st} offset:{off + nt*1024 + hf*256}")
            return l
        OLD = "sc0 sc1"; MXR = EA
        a(f"""
        v_lshlrev_b32 v{T+2}, 10, v1
        v_add_u32 v{T+2}, 1020, v{T+2}
        v_lshlrev_b32 v{T+3}, 7, v1
        v_add_u32 v{T+3}, {32768 + 124}, v{T+3}
        v_cndmask_b32 v165, v{T+2}, v{T+3}, s[62:63]
        s_mul_i32 s34, s{S_P3T}, {OS}
        s_add_u32 s34, s34, {OW}
        s_mov_b32 s35, 0
        """)
        a.label("L_a3try")
        for x in rl3(0) + rl3(1): a(x)
        a(f"v_mov_b32 v{MXR}, 0")
        a.label("L_a3p")
        a(f"""
        buffer_load_dword v164, v165, s[4:7], s34 offen sc0 sc1
        s_add_u32 s30, s34, 4096
        """)
        NSP = int(self.opt.get("nsp", 4))
        for k in range(NSP): a(f"buffer_load_dwordx4 v[{FO+4*k}:{FO+4*k+3}], v3, s[4:7], s{34 if k < 4 else 30} offen offset:{(k%4)*1024} sc0 sc1")
        a(f"""
        s_add_u32 s35, s35, 1
        s_waitcnt vmcnt({NSP})
        v_cmp_eq_u32 vcc, -1, v164
        s_cmp_gt_u32 s35, {SPIN_MAX}
        s_cbranch_scc1 L_a3px
        s_cbranch_vccz L_a3px
        s_sleep {self.opt.get("s3", 4)}
        s_branch L_a3p
        """)
        a.label("L_a3px")
        self.stamp(10); self.stamp(59)
        if not self.opt.get("noiw"): a.pad_begin("PA3", int(self.opt.get("padn", 7)))
        a(f"s_add_u32 s30, s34, {(NSP//4)*4096}")
        def oload(s):
            r = FO + 4 * (s % D)
            if s < 32:
                l = [f"buffer_load_dwordx4 v[{r}:{r+3}], v3, s[4:7], s30 offen offset:{(s%4)*1024} {OLD}"]
                if s % 4 == 3: l.append("s_add_u32 s30, s30, 4096")
                return l
            return [f"buffer_load_dword v{r+j}, v{EA+1}, s[4:7], s30 offen offset:{(s-32)*1024 + j*128} {OLD}" for j in range(4)]
        cnt = [1] * 32 + [4] * 4
        for s in range(NSP, D):
            for x in oload(s): a(x)
        for s in range(36):
            if self.opt.get("stb") and s % 3 == 0: self.stamp(30 + s // 3)
            out = sum(cnt[s + 1:min(36, s + D)])
            a(f"s_waitcnt vmcnt({out}) lgkmcnt({6 if s < 35 else 0})")
            mf = []
            for nt in range(3):
                d = ACC + nt * 16; w = FW + (s % 3) * 12 + nt * 4; o = FO + 4 * (s % D)
                c = "0" if s == 0 else f"v[{d}:{d+15}]"
                mf.append(f"v_mfma_f32_32x32x16_bf16 v[{d}:{d+15}], v[{w}:{w+3}], v[{o}:{o+3}], {c}")
            o = FO + 4 * (s % D)
            ilv(a, mf, (rl3(s + 2) if s + 2 < 36 else []) + [f"v_max3_u32 v{MXR}, v{o}, v{o+1}, v{MXR}", f"v_max3_u32 v{MXR}, v{o+2}, v{o+3}, v{MXR}"])
            if s + D < 36:
                for x in oload(s + D): a(x)
            if s == 33:
                a(f"""
                s_mul_i32 s31, s{S_LW}, 11264
                s_add_u32 s31, s31, 55296
                v_mul_u32_u24 v{T}, 272, v1
                v_lshl_add_u32 v{T}, v{T+1}, 4, v{T}
                v_add_u32 v{T}, s31, v{T}
                v_lshrrev_b32 v{T+2}, 4, v2
                v_and_b32 v{T+3}, 15, v2
                v_mul_u32_u24 v{T+4}, 272, v{T+2}
                v_lshl_add_u32 v{T+4}, v{T+3}, 4, v{T+4}
                v_add_u32 v{T+4}, s31, v{T+4}
                v_mul_u32_u24 v{T+5}, 4608, v{T+2}
                v_lshl_add_u32 v{T+5}, v{T+3}, 4, v{T+5}
                """)
            if s == 34:
                a(f"""
                v_lshrrev_b32 v{T+2}, 3, v2
                v_and_b32 v{T+3}, 7, v2
                v_mul_u32_u24 v{T+6}, 272, v{T+2}
                v_lshl_add_u32 v{T+6}, v{T+3}, 4, v{T+6}
                v_add_u32 v{T+6}, s31, v{T+6}
                v_mul_u32_u24 v{T+7}, 4608, v{T+2}
                v_lshl_add_u32 v{T+7}, v{T+3}, 4, v{T+7}
                s_mul_i32 s30, s{S_P3T}, {32*4608}
                s_sub_u32 s31, s{S_P3NB}, 9
                s_mul_i32 s31, s31, 384
                s_add_u32 s30, s30, s31
                s_add_u32 s31, s30, 256
                """)
        self.stamp(11); self.stamp(60)
        a(f"v_cmp_eq_u32 vcc, -1, v{MXR}\ns_cmp_gt_u32 s35, {SPIN_MAX}\ns_cbranch_scc1 L_a3ok\ns_nop 7\ns_cbranch_vccnz L_a3try")
        a.label("L_a3ok")
        a("s_nop 6")
        for e in range(8): a(f"ds_write_b128 v{T}, v[{ACC+4*e}:{ACC+4*e+3}] offset:{e*32}")
        a("s_waitcnt lgkmcnt(4)")
        for n in range(8): a(f"ds_read_b128 v[{FO+4*n}:{FO+4*n+3}], v{T+4} offset:{n*4*272}")
        a("s_waitcnt lgkmcnt(6)")
        for e in range(4): a(f"ds_write_b128 v{T}, v[{ACC+32+4*e}:{ACC+32+4*e+3}] offset:{e*32}")
        for n in range(4): a(f"ds_read_b128 v[{FO+32+4*n}:{FO+32+4*n+3}], v{T+6} offset:{n*8*272}")
        for n in range(8):
            a(f"s_waitcnt lgkmcnt({min(14, 15-n)})\nbuffer_store_dwordx4 v[{FO+4*n}:{FO+4*n+3}], v{T+5}, s[16:19], s30 offen {OF}\ns_add_u32 s30, s30, {4*4608}")
        for n in range(4):
            a(f"s_waitcnt lgkmcnt({3-n})\nbuffer_store_dwordx4 v[{FO+32+4*n}:{FO+32+4*n+3}], v{T+7}, s[16:19], s31 offen {OF}\ns_add_u32 s31, s31, {8*4608}")
        a("s_branch L_exit")
        if a.pad: a.pad_end("PA3_ret")

    def finish(self):
        a = self.a
        a.label("L_exit")
        if self.stamp_on:
            self.stamp(12)
            a("s_waitcnt vmcnt(0)")
            self.stamp(13); a(f"v_writelane_b32 v{VST}, s98, 0\nv_writelane_b32 v{VST}, s98, 14")
            a(f"""
            s_lshl_b32 s30, s2, 4
            s_add_u32 s30, s30, s{S_WAVE}
            s_lshl_b32 s30, s30, 8
            s_add_u32 s30, s30, {STB}
            v_lshlrev_b32 v3, 2, v2
            buffer_store_dword v{VST}, v3, s[4:7], s30 offen
            """)
            if "probe" in self.opt:
                k = int(self.opt["probe"])
                a(f"""
                v_readlane_b32 s30, v{VST}, 14
                v_readlane_b32 s31, v{VST}, {k}
                s_nop 3
                s_sub_u32 s32, s31, s30
                s_cmp_eq_u32 s31, 0
                s_cselect_b32 s32, 0, s32
                s_lshr_b32 s31, s{S_WAVE}, 2
                s_cmp_lg_u32 s31, {self.opt.get("pg", 0)}
                s_cselect_b32 s32, 0, s32
                s_cmp_ge_u32 s{S_IDX}, 28
                s_cselect_b32 s32, 0, s32
                s_min_u32 s32, s32, 8000
                s_lshl_b32 s32, s32, 1
                s_add_u32 s32, s32, 7000
                """)
                a.label("L_probe")
                a("s_sleep 4\ns_memrealtime s[94:95]\ns_waitcnt lgkmcnt(0)\ns_sub_u32 s33, s94, s30\ns_cmp_lt_u32 s33, s32\ns_cbranch_scc1 L_probe")
        a("s_endpgm")
        self.emit_stubs()
        a.label("L_end")
        a("s_endpgm")

def gen_mega(name, stamp=False, opt=None):
    g = G(stamp, opt)
    g.a.raw(kernel_header(name))
    g.a.label('L_code0')
    g.prologue(); g.p1_loader(); g.attention(1); g.aux(); g.finish()
    return g.a.text(), kernel_desc(name, NV, 100)

if __name__ == "__main__":
    import sys
    from build import *
    KN = NAME + "_kernel"
    out = sys.argv[1]; stamp = len(sys.argv) > 2 and sys.argv[2] == "1"
    opt = dict((kv.split("=") + ["1"])[:2] for kv in sys.argv[3:])
    for k, v in (("pubat", "-1"), ("warmb_old", "1"), ("sig1", "0")): opt.setdefault(k, v)
    if "late" in opt:
        opt.update(early="off", pubat="-1", sig1="0", sponly="1", nowarmx="1"); NS1 = 3; B1BASE = 20480
    opt = {k: v for k, v in opt.items() if v != "off"}
    if "f1s" in opt: F1STRIDE = int(opt["f1s"])
    if "ldf" in opt: LDF = opt["ldf"].replace("_", " ").strip()
    if "wt" in opt: WT = opt["wt"].replace("_", " ")
    compose([gen_mega(KN, stamp, opt)], [(KN, 256, 768, LDS_TOTAL)], out)
    assemble(out)
```
